```python
import torch

def _softmax(x, axis=-1):
    return torch.softmax(x, dim=axis)
def _gelu(x):
    return torch.nn.functional.gelu(x, approximate="tanh")
def _silu(x):
    return torch.nn.functional.silu(x)
def _sigmoid(x):
    return torch.sigmoid(x)
def _layernorm(x, axis=-1, eps=1e-5):
    m = x.mean(dim=axis, keepdim=True)
    v = x.var(dim=axis, keepdim=True, unbiased=False)
    return (x - m) / torch.sqrt(v + eps)
def _scatter_add(tgt, idx, src, axis=0):
    return tgt.clone().index_add_(axis, idx, src)
def _segment_sum(src, seg, n):
    out = torch.zeros((n,) + src.shape[1:], dtype=src.dtype)
    return out.index_add_(0, seg, src)
def _pad(x, pw):
    flat = tuple(v for pair in reversed(pw) for v in pair)
    return torch.nn.functional.pad(x, flat)

kernel_name = 'parallel_sum__compressed_kv_cla__dense_activation_silu__prompt'

def setup_inputs():

    _w = (lambda a: (lambda t: t.to(torch.bfloat16) if t.is_floating_point() else t)(torch.as_tensor(a)))
    def _A_setup():
        B, H, Sq, Sk, D, M = 1, 16, 2048, 2048, 256, 448
        Dc = 4 * D
        return {
            "x": _w((lambda *s: torch.randn(*s, dtype=torch.bfloat16) * 0.05)(B, Sq, M)),
            "c_kv": _w((lambda *s: torch.randn(*s, dtype=torch.bfloat16) * 0.4)(B, Sk, Dc)),
            "w_q": _w((lambda *s: torch.randn(*s, dtype=torch.bfloat16) * 3.2)(M, H, D) * (M ** -0.5)),
            "w_uk": _w((lambda *s: torch.randn(*s, dtype=torch.bfloat16) * 3.2)(Dc, H, D) * (Dc ** -0.5)),
            "w_uv": _w((lambda *s: torch.randn(*s, dtype=torch.bfloat16) * 0.4)(Dc, H, D) * (Dc ** -0.5)),
            "w_o": _w((lambda *s: torch.randn(*s, dtype=torch.bfloat16) * 0.4)(H, D, M) * ((H * D) ** -0.5)),
        }
    _A_in = _A_setup()

    def _B_setup():
        B, S, D, F = 1, 2048, 448, 1792
        return {
            "x": _w((lambda *s: torch.randn(*s, dtype=torch.bfloat16) * 0.05)(B, S, D)),
            "w1": _w((lambda *s: torch.randn(*s, dtype=torch.bfloat16) * 0.8)(D, F) * (D ** -0.5)),
            "w2": _w((lambda *s: torch.randn(*s, dtype=torch.bfloat16) * 0.1)(F, D) * (F ** -0.5)),
        }
    _B_in = _B_setup()

    return {
        "A_x": _A_in["x"],
        "A_c_kv": _A_in["c_kv"],
        "A_w_q": _A_in["w_q"],
        "A_w_uk": _A_in["w_uk"],
        "A_w_uv": _A_in["w_uv"],
        "A_w_o": _A_in["w_o"],
        "B_x": _B_in["x"],
        "B_w1": _B_in["w1"],
        "B_w2": _B_in["w2"],
    }

def reference(A_x, A_c_kv, A_w_q, A_w_uk, A_w_uv, A_w_o, B_x, B_w1, B_w2):
    def _A_ref(x, c_kv, w_q, w_uk, w_uv, w_o):
        B, Sq, M = x.shape[0], x.shape[1], x.shape[2]
        Sk = c_kv.shape[1]
        H, D = w_q.shape[1], w_q.shape[2]
        q = torch.einsum("bqm,mhd->bhqd", x, w_q)
        k = torch.einsum("bkc,chd->bhkd", c_kv, w_uk)
        v = torch.einsum("bkc,chd->bhkd", c_kv, w_uv)
        scores = torch.einsum("bhqd,bhkd->bhqk", q, k) * (D ** -0.5)
        off = Sk - Sq
        qi = torch.arange(Sq)[:, None]
        kj = torch.arange(Sk)[None, :]
        cmask = kj <= (qi + off)
        scores = torch.where(cmask[None, None], scores, -1e9)
        p = _softmax(scores, axis=-1)
        ctx = torch.einsum("bhqk,bhkd->bhqd", p, v)
        return torch.einsum("bhqd,hdm->bqm", ctx, w_o)

    def _B_ref(x, w1, w2):
        h = torch.einsum("bsd,df->bsf", x, w1)
        h = _silu(h)
        out = torch.einsum("bsf,fd->bsd", h, w2)
        return out

    x = A_x
    xn = _layernorm(x, axis=-1)
    return x + _A_ref(xn, A_c_kv, A_w_q, A_w_uk, A_w_uv, A_w_o) + _B_ref(xn, B_w1, B_w2)
```

```python
MB = 1 << 20
KV_OFF = 0
Q_OFF = 32 * MB
H_OFF = 48 * MB
OP_OFF = 56 * MB
ML_OFF = 72 * MB
Y_OFF = 80 * MB
STAMP_OFF = 128 * MB
DUMMY_OFF = 192 * MB
WS_BYTES = 256 * MB

X_BYTES = 2048 * 448 * 2
CKV_BYTES = 2048 * 1024 * 2
WQ_BYTES = 448 * 4096 * 2
WU_BYTES = 1024 * 4096 * 2
WO_BYTES = 4096 * 448 * 2
W1_BYTES = 448 * 1792 * 2
W2_BYTES = 1792 * 448 * 2
OUT_BYTES = 2048 * 448 * 2

MFMA = "v_mfma_f32_32x32x16_bf16"


def v(b, n=1):
    return f"v{b}" if n == 1 else f"v[{b}:{b+n-1}]"


def a(b, n=1):
    return f"a{b}" if n == 1 else f"a[{b}:{b+n-1}]"


def s(b, n=1):
    return f"s{b}" if n == 1 else f"s[{b}:{b+n-1}]"


def srd(e, d, ptr, nbytes):
    e(f"s_mov_b32 s{d}, s{ptr}")
    e(f"s_mov_b32 s{d+1}, s{ptr+1}")
    e(f"s_mov_b32 s{d+2}, {nbytes:#x}")
    e(f"s_mov_b32 s{d+3}, 0x20000")


def load_kernargs(e):
    e("s_load_dwordx16 s[64:79], s[0:1], 0")
    e("s_load_dwordx8 s[80:87], s[0:1], 64")


P_X, P_CKV, P_WQ, P_WUK, P_WUV, P_WO, P_W1, P_W2, P_OUT, P_DBG, P_WS = 64, 66, 68, 70, 72, 74, 78, 80, 82, 84, 86


def kd(name, vgpr, acc, sgpr=102):
    return f""".amdhsa_kernel {name}
  .amdhsa_next_free_vgpr {vgpr}
  .amdhsa_next_free_sgpr {sgpr}
  .amdhsa_accum_offset {acc}
  .amdhsa_group_segment_fixed_size 0
  .amdhsa_kernarg_size 96
  .amdhsa_user_sgpr_count 2
  .amdhsa_user_sgpr_kernarg_segment_ptr 1
  .amdhsa_system_sgpr_workgroup_id_x 1
.end_amdhsa_kernel
"""


def f32(x):
    import struct
    return "0x%08x" % struct.unpack("<I", struct.pack("<f", x))[0]
```

```python
import re

REG_RE = re.compile(r"^(-?)(?:abs\()?([vas])(?:(\d+)|\[(\d+):(\d+)\])\)?$")
TRANS = ("v_exp_f32", "v_log_f32", "v_rcp_f32", "v_rsq_f32", "v_sqrt_f32", "v_sin_f32", "v_cos_f32")


def regs_of(tok):
    tok = tok.strip()
    if tok in ("vcc", "exec", "m0", "scc"):
        return [(tok, 0)]
    if tok in ("vcc_lo", "vcc_hi"):
        return [("vcc", 0)]
    m = REG_RE.match(tok)
    if not m:
        return []
    f = m.group(2)
    if m.group(3) is not None:
        return [(f, int(m.group(3)))]
    return [(f, i) for i in range(int(m.group(4)), int(m.group(5)) + 1)]


class Ins:
    __slots__ = ("text", "op", "rd", "wr", "kind", "n", "srcc", "passes", "tag")

    def __init__(self, text, tag=None):
        self.text = text
        self.tag = tag
        t = text.split(";")[0].strip()
        self.rd, self.wr, self.srcc, self.passes, self.n = set(), set(), set(), 0, 0
        if t.endswith(":"):
            self.op, self.kind = t, "label"
            return
        if not t or t.startswith("."):
            self.op, self.kind = t, "dir"
            return
        parts = t.split(None, 1)
        op = parts[0]
        self.op = op
        rest = parts[1] if len(parts) > 1 else ""
        ops = [o.strip() for o in rest.split(",")] if rest else []
        mods = []
        if ops:
            last = ops[-1].split()
            ops[-1] = last[0] if last else ""
            mods = last[1:]
        R = [regs_of(o) for o in ops]

        def rd(i):
            for r in R[i]:
                self.rd.add(r)

        def wr(i):
            for r in R[i]:
                self.wr.add(r)

        if op == "s_nop":
            self.kind, self.n = "nop", int(ops[0], 0) + 1
        elif op == "s_waitcnt":
            self.kind = "wait"
        elif op == "s_barrier":
            self.kind = "barrier"
        elif op in ("s_endpgm", "s_setprio", "s_sleep"):
            self.kind = "salu"
        elif op.startswith("s_cbranch") or op == "s_branch":
            self.kind = "branch"
            if "scc" in op:
                self.rd.add(("scc", 0))
            if "vcc" in op:
                self.rd.add(("vcc", 0))
            if "exec" in op:
                self.rd.add(("exec", 0))
        elif op.startswith("s_load") or op in ("s_memtime", "s_memrealtime"):
            self.kind = "smem"
            wr(0)
            for i in range(1, len(ops)):
                rd(i)
        elif op.startswith("s_cmp"):
            self.kind = "salu"
            for i in range(len(ops)):
                rd(i)
            self.wr.add(("scc", 0))
        elif op.startswith("s_"):
            self.kind = "salu"
            wr(0)
            for i in range(1, len(ops)):
                rd(i)
            if op.startswith("s_cselect") or op.startswith("s_addc") or op.startswith("s_subb"):
                self.rd.add(("scc", 0))
            if "saveexec" in op:
                self.rd.add(("exec", 0))
                self.wr.add(("exec", 0))
            if not (op.startswith("s_mov") or op.startswith("s_mul") or op.startswith("s_cselect") or op.startswith("s_getreg")):
                self.wr.add(("scc", 0))
            if op in ("s_addk_i32", "s_mulk_i32"):
                rd(0)
        elif op.startswith("v_mfma"):
            self.kind = "mfma"
            wr(0)
            rd(1)
            rd(2)
            rd(3)
            self.srcc = set(R[3])
            self.passes = 8 if "32x32" in op else 4
        elif op.startswith("ds_read") or op.startswith("ds_bpermute") or op.startswith("ds_swizzle"):
            self.kind = "ds_rd"
            wr(0)
            for i in range(1, len(ops)):
                rd(i)
        elif op.startswith("ds_write"):
            self.kind = "ds_wr"
            for i in range(len(ops)):
                rd(i)
        elif op.startswith("buffer_load") and "lds" in mods:
            self.kind = "vm_dma"
            for i in range(len(ops)):
                rd(i)
            self.rd.add(("m0", 0))
        elif op.startswith("buffer_load") or op.startswith("global_load"):
            self.kind = "vm_ld"
            wr(0)
            for i in range(1, len(ops)):
                rd(i)
        elif op.startswith("buffer_store") or op.startswith("global_store"):
            self.kind = "vm_st"
            for i in range(len(ops)):
                rd(i)
            if op.endswith("x4") or op.endswith("x3"):
                di = 0 if op.startswith("buffer") else 1
                self.srcc = set(R[di])
        elif op.startswith("buffer_atomic") or op.startswith("global_atomic"):
            self.kind = "vm_st"
            for i in range(len(ops)):
                rd(i)
            if "sc0" in mods:
                self.kind = "vm_ld"
                wr(0)
        elif op in ("buffer_wbl2", "buffer_inv"):
            self.kind = "vm_st"
        elif op.startswith("v_"):
            base = op.replace("_e32", "").replace("_e64", "")
            self.kind = "trans" if base in TRANS else "valu"
            wr(0)
            st = 1
            if base in ("v_add_co_u32", "v_sub_co_u32", "v_addc_co_u32"):
                wr(1)
                st = 2
            for i in range(st, len(ops)):
                rd(i)
            if base.startswith("v_fmac") or base.startswith("v_dot2c") or base.startswith("v_pk_fmac"):
                rd(0)
            if base.startswith("v_permlane"):
                rd(0)
                wr(1)
            self.rd.add(("exec", 0))
        else:
            raise ValueError("unknown instruction: " + text)

    def states(self):
        if self.kind == "nop":
            return self.n
        if self.kind in ("label", "dir"):
            return 0
        return 1


def parse_wait(text):
    vm = re.search(r"vmcnt\((\d+)\)", text)
    lg = re.search(r"lgkmcnt\((\d+)\)", text)
    return (int(vm.group(1)) if vm else None, int(lg.group(1)) if lg else None)


class Seg:
    def __init__(self, name, lds=None, vm=None):
        self.name = name
        self.ins = []
        self.lds = list(lds) if lds else []
        self.vm = list(vm) if vm else []

    def raw(self, text, tag=None):
        i = Ins(text, tag)
        self.ins.append(i)
        return i

    def _need(self, i):
        touched = i.rd | i.wr
        nl = None
        for k, d in enumerate(self.lds):
            if d & touched:
                nl = len(self.lds) - 1 - k
        nv = None
        for k, (tg, d) in enumerate(self.vm):
            if d & touched:
                nv = len(self.vm) - 1 - k
        return nv, nl

    def wait(self, vm=None, lgkm=None):
        parts = []
        if vm is not None and vm < len(self.vm):
            assert vm <= 63
            parts.append(f"vmcnt({vm})")
            self.vm = self.vm[len(self.vm) - vm:] if vm else []
        if lgkm is not None and lgkm < len(self.lds):
            lgkm = min(lgkm, 15)
            parts.append(f"lgkmcnt({lgkm})")
            self.lds = self.lds[len(self.lds) - lgkm:] if lgkm else []
        if parts:
            self.raw("s_waitcnt " + " ".join(parts))

    def wait_force(self, vm=None, lgkm=None):
        parts = []
        if vm is not None:
            parts.append(f"vmcnt({vm})")
            if vm < len(self.vm):
                self.vm = self.vm[len(self.vm) - vm:] if vm else []
        if lgkm is not None:
            parts.append(f"lgkmcnt({lgkm})")
            if lgkm < len(self.lds):
                self.lds = self.lds[len(self.lds) - lgkm:] if lgkm else []
        self.raw("s_waitcnt " + " ".join(parts))

    def wait_tag(self, tag):
        last = None
        for k, (tg, d) in enumerate(self.vm):
            if tg == tag:
                last = k
        if last is not None:
            self.wait(vm=min(63, len(self.vm) - 1 - last))

    def __call__(self, text, tag=None):
        i = Ins(text, tag)
        nv, nl = self._need(i)
        if nv is not None or nl is not None:
            self.wait(vm=None if nv is None else min(nv, 63), lgkm=nl)
        self.ins.append(i)
        if i.kind == "ds_rd":
            self.lds.append(frozenset(i.wr))
        elif i.kind == "ds_wr":
            self.lds.append(frozenset())
        elif i.kind == "smem":
            self.lds.append(frozenset(i.wr))
            self.lds.append(frozenset(i.wr))
        elif i.kind == "vm_ld":
            self.vm.append((tag, frozenset(i.wr)))
        elif i.kind in ("vm_st", "vm_dma"):
            self.vm.append((tag, frozenset()))
        elif i.kind == "wait":
            vm, lg = parse_wait(text)
            if vm is not None and vm < len(self.vm):
                self.vm = self.vm[len(self.vm) - vm:] if vm else []
            if lg is not None and lg < len(self.lds):
                self.lds = self.lds[len(self.lds) - lg:] if lg else []
        return i

    def label(self, name):
        self.raw(name + ":")

    def nop(self, n):
        while n > 0:
            k = min(n, 16)
            self.raw(f"s_nop {k-1}")
            n -= k

    def text(self):
        out = []
        for i in self.ins:
            out.append(i.text if i.kind in ("label",) else "  " + i.text)
        return "\n".join(out) + "\n"


def is_valu(i):
    return i.kind in ("valu", "trans")


def required(p, c):
    need = 0
    vreg = lambda s: {r for r in s if r[0] in ("v", "a")}
    sreg = lambda s: {r for r in s if r[0] in ("s", "vcc")}
    if is_valu(p):
        w = vreg(p.wr)
        if c.kind == "mfma" and w & c.rd:
            need = max(need, 2)
        if is_valu(c) and w & c.rd:
            if c.op.startswith("v_readfirstlane") or c.op.startswith("v_readlane"):
                need = max(need, 1)
            if c.op.startswith("v_permlane") or "dpp" in c.text:
                need = max(need, 2)
            if p.kind == "trans" and c.kind != "trans":
                need = max(need, 1)
            if "sdwa" in p.text and "dst_sel:DWORD" not in p.text:
                need = max(need, 1)
        ws = sreg(p.wr)
        if ws:
            if is_valu(c) and ws & c.rd:
                need = max(need, 4 if c.op.startswith(("v_readlane", "v_writelane")) else 2)
            if c.kind.startswith("vm_") and ws & c.rd:
                need = max(need, 5)
    if p.kind == "mfma":
        idx = {4: 0, 8: 1}[p.passes]
        d = p.wr
        if c.kind == "mfma":
            if d & c.srcc:
                if not (c.srcc == d and c.passes == p.passes):
                    need = max(need, (6, 10)[idx])
            ab = c.rd - c.srcc if not (c.rd - c.srcc) <= c.srcc else set()
            toks = c.text.split(None, 1)[1].split(",")
            abr = set(regs_of(toks[1])) | set(regs_of(toks[2]))
            if d & abr:
                need = max(need, (8, 12)[idx])
            if d & c.wr and not (c.srcc == d):
                need = max(need, (6, 10)[idx])
        elif is_valu(c):
            if d & (c.rd | c.wr):
                need = max(need, (8, 12)[idx])
            if p.srcc & c.wr:
                need = max(need, (3, 7)[idx])
        elif c.kind in ("ds_rd", "ds_wr", "vm_ld", "vm_st", "vm_dma"):
            if d & (c.rd | c.wr):
                need = max(need, (8, 12)[idx])
            if p.srcc & c.wr:
                need = max(need, (3, 7)[idx])
    if p.kind == "salu" and ("m0", 0) in p.wr and c.kind == "vm_dma":
        need = max(need, 1)
    if p.kind == "vm_st" and p.srcc and p.srcc & c.wr:
        need = max(need, 2 if is_valu(c) else 1)
    return need


def check_trace(name, ins, fix=False):
    probs = []
    real = [i for i in ins if i.kind not in ("label", "dir")]
    for k, c in enumerate(real):
        dist = 0
        j = k - 1
        while j >= 0 and dist < 20:
            p = real[j]
            r = required(p, c)
            if r > dist:
                probs.append(f"[{name}] hazard need {r} have {dist}: '{p.text}' -> '{c.text}'")
            dist += p.states()
            j -= 1
    lds, vm = [], []
    for c in real:
        touched = c.rd | c.wr
        for d, t in lds:
            if d & touched:
                probs.append(f"[{name}] missing lgkm wait: '{t}' -> '{c.text}'")
        for d, t in vm:
            if d & touched:
                probs.append(f"[{name}] missing vm wait: '{t}' -> '{c.text}'")
        if c.kind == "ds_rd":
            lds.append((frozenset(c.wr), c.text))
        elif c.kind == "ds_wr":
            lds.append((frozenset(), c.text))
        elif c.kind == "smem":
            lds.insert(len(lds), (frozenset(c.wr), c.text + " (smem)"))
        elif c.kind == "vm_ld":
            vm.append((frozenset(c.wr), c.text))
        elif c.kind in ("vm_st", "vm_dma"):
            vm.append((frozenset(), c.text))
        elif c.kind == "wait":
            v, l = parse_wait(c.text)
            if v is not None and v < len(vm):
                vm = vm[len(vm) - v:] if v else []
            if l is not None:
                if l == 0:
                    lds = []
                elif any("(smem)" in t for d, t in lds):
                    pass
                elif l < len(lds):
                    lds = lds[len(lds) - l:]
    return probs


def fix_hazards(seg, prev=()):
    out = [i for i in prev if i.kind not in ("label", "dir")]
    base = len(out)
    res = []
    for c in seg.ins:
        if c.kind in ("label", "dir"):
            res.append(c)
            continue
        dist, j, pad = 0, len(out) - 1, 0
        while j >= 0 and dist < 20:
            p = out[j]
            r = required(p, c)
            if r > dist:
                pad = max(pad, r - dist)
            dist += p.states()
            j -= 1
        while pad > 0:
            k = min(pad, 16)
            n = Ins(f"s_nop {k-1}")
            out.append(n)
            res.append(n)
            pad -= k
        out.append(c)
        res.append(c)
    seg.ins = res


def weave(seg, spine, fillers):
    def put(x):
        if isinstance(x, list):
            for y in x:
                put(y)
        elif callable(x):
            x(seg)
        elif isinstance(x, tuple):
            seg(x[0], x[1])
        else:
            seg(x)
    for x in fillers.get(-1, []):
        put(x)
    for g, m in enumerate(spine):
        put(m)
        for x in fillers.get(g, []):
            put(x)


def spread(fill, items, g0, g1, per=None):
    n = len(items)
    if n == 0:
        return
    span = g1 - g0
    for k, it in enumerate(items):
        g = g0 + (k * span) // n
        fill.setdefault(g, []).append(it)
```

```python
from emit import *
from common import *
import math

S_CKV, S_W, S_WS, S_X, S_WQ, S_W1 = 8, 12, 16, 20, 24, 28
V_AA, V_AB, V_DA, V_DB = 8, 12, 16, 24
V_FA, V_FB, V_XN, V_T = 32, 64, 96, 208
SLOT_ORDER = [0, 1, 4, 5, 2, 3, 6, 7]


def stamp(e, opt, idx):
    if opt.get("stamps"):
        e(f"s_memtime s[{88+2*idx}:{89+2*idx}]")
        e.wait_force(lgkm=0)


def gen_k1(opt):
    ST = opt.get("kv_store_mod", "")
    e = Seg("k1_pro")
    e.label("proj_kernel")
    e("s_cmp_ge_u32 s2, 256")
    e("s_cbranch_scc1 K1_END")
    load_kernargs(e)
    e("v_lshrrev_b32 v1, 6, v0")
    e("v_and_b32 v0, 63, v0")
    e("v_readfirstlane_b32 s3, v1")
    e("s_and_b32 s32, s2, 7")
    e("s_lshr_b32 s33, s2, 3")
    e("s_and_b32 s34, s33, 7")
    e("s_lshr_b32 s36, s33, 3")
    e("s_and_b32 s35, s36, 1")
    e("s_lshl_b32 s4, s32, 1")
    e("s_add_u32 s35, s35, s4")
    e("s_lshr_b32 s36, s36, 1")
    e("s_lshr_b32 s37, s33, 1")
    e("s_and_b32 s38, s33, 1")
    e("s_add_u32 s38, s38, s4")
    e("s_and_b32 s5, s3, 1")
    e("s_lshr_b32 s6, s3, 1")
    e("v_and_b32 v1, 31, v0")
    e("v_lshrrev_b32 v2, 5, v0")
    e("v_lshrrev_b32 v3, 4, v0")
    e("v_bfe_u32 v4, v0, 2, 2")
    e("v_and_b32 v5, 3, v0")
    e("s_lshl_b32 s7, s34, 8")
    e("s_lshl_b32 s39, s3, 6")
    e("s_add_u32 s7, s7, s39")
    e("v_lshrrev_b32 v6, 3, v0")
    e("v_add_u32 v6, s7, v6")
    e("v_lshlrev_b32 v6, 11, v6")
    e("v_and_b32 v7, 7, v0")
    e("v_xor_b32 v7, v7, v3")
    e("v_lshlrev_b32 v7, 4, v7")
    for j in range(8):
        e(f"v_xor_b32 v{V_DA+j}, {(j&1)<<6}, v7")
        e(f"v_add_u32 v{V_DA+j}, v{V_DA+j}, v6")
        if j:
            e(f"v_add_u32 v{V_DA+j}, {j*16384-(j&3)*1024}, v{V_DA+j}")
    e("s_lshl_b32 s7, s3, 4")
    e("v_add_u32 v6, s7, v2")
    e("v_lshlrev_b32 v6, 13, v6")
    e("s_lshl_b32 s7, s35, 9")
    e("v_add_u32 v6, s7, v6")
    e("v_lshl_add_u32 v6, v5, 4, v6")
    e("v_lshrrev_b32 v7, 2, v1")
    e("v_xor_b32 v7, v7, v2")
    e("v_lshlrev_b32 v7, 6, v7")
    for j in range(8):
        e(f"v_xor_b32 v{V_DB+j}, {(j&1)<<7}, v7")
        e(f"v_add_u32 v{V_DB+j}, v{V_DB+j}, v6")
        if j:
            e(f"v_add_u32 v{V_DB+j}, {j*16384-(j&3)*1024}, v{V_DB+j}")
    e("s_lshl_b32 s44, s3, 13")
    e("s_mov_b32 s40, 0")
    e("s_mov_b32 s41, 0")
    e.wait_force(lgkm=0)
    srd(e, S_CKV, P_CKV, CKV_BYTES)
    e("s_cmp_eq_u32 s36, 0")
    e(f"s_cselect_b32 s{S_W}, s{P_WUK}, s{P_WUV}")
    e(f"s_cselect_b32 s{S_W+1}, s{P_WUK+1}, s{P_WUV+1}")
    e(f"s_mov_b32 s{S_W+2}, {WU_BYTES:#x}")
    e(f"s_mov_b32 s{S_W+3}, 0x20000")
    stamp(e, opt, 0)

    def dma_items(b):
        it = []
        for j in range(8):
            pre = [f"s_add_u32 m0, s44, {b*32768 + (j>>2)*4096}"] if (j & 3) == 0 else []
            post = [f"s_add_u32 s40, s40, {0 if opt.get('dma_fixed') else 128}"] if j == 7 else []
            it.append((pre, f"buffer_load_dwordx4 v{V_DA+j}, s[{S_CKV}:{S_CKV+3}], s40 offen offset:{(j&3)*1024} lds", post))
        for j in range(8):
            pre = [f"s_add_u32 m0, s44, {65536 + b*32768 + (j>>2)*4096}"] if (j & 3) == 0 else []
            post = [f"s_add_u32 s41, s41, {0 if opt.get('dma_fixed') else 0x80000}"] if j == 7 else []
            it.append((pre, f"buffer_load_dwordx4 v{V_DB+j}, s[{S_W}:{S_W+3}], s41 offen offset:{(j&3)*1024} lds", post))
        return it

    def emit_dma(e, items, tag="dma"):
        for pre, d, post in items:
            for x in pre:
                e(x)
                e.nop(1)
            e(d, tag)
            for x in post:
                e(x)

    NK3 = opt.get("nk3", 8)
    emit_dma(e, dma_items(0))
    emit_dma(e, dma_items(1)[:NK3])
    srd(e, S_WS, P_WS, WS_BYTES)
    srd(e, S_X, P_X, X_BYTES)
    srd(e, S_WQ, P_WQ, WQ_BYTES)
    srd(e, S_W1, P_W1, W1_BYTES)
    e("s_lshl_b32 s7, s5, 7")
    e("v_add_u32 v6, s7, v1")
    e("v_lshlrev_b32 v6, 7, v6")
    e("v_bfe_u32 v7, v1, 1, 3")
    e("v_xor_b32 v7, v7, v2")
    e("v_lshl_add_u32 v6, v7, 4, v6")
    for k in range(4):
        e(f"v_xor_b32 v{V_AA+k}, {k<<5}, v6")
    e("v_lshrrev_b32 v6, 1, v3")
    e("v_lshl_add_u32 v6, v6, 3, v4")
    e("v_lshlrev_b32 v6, 9, v6")
    e("s_lshl_b32 s7, s6, 8")
    e("s_add_u32 s7, s7, 0x10000")
    e("v_add_u32 v6, s7, v6")
    e("v_and_b32 v7, 1, v3")
    e("v_lshl_add_u32 v6, v7, 5, v6")
    e("v_lshl_add_u32 v6, v5, 3, v6")
    for nb in range(4):
        e(f"v_xor_b32 v7, {nb}, v4")
        e(f"v_lshl_add_u32 v{V_AB+nb}, v7, 6, v6")
    for i in range(256):
        e(f"v_accvgpr_write_b32 a{i}, 0")

    def frag_reads(b, ks, st):
        r = []
        if opt.get("no_reads"):
            return r
        fa, fb = V_FA + st * 16, V_FB + st * 16
        order = [("a", 0), ("b", 0), ("a", 1), ("a", 2), ("a", 3), ("b", 1), ("b", 2), ("b", 3)]
        for t, i in order:
            if t == "a":
                r.append(f"ds_read_b128 {v(fa+i*4,4)}, v{V_AA+ks} offset:{i*4096 + b*32768}")
            else:
                for u in range(2):
                    r.append(f"ds_read_b64_tr_b16 {v(fb+i*4+u*2,2)}, v{V_AB+i} offset:{(16*ks+4*u)*512 + b*32768}")
        return r

    e.wait(vm=NK3)
    e("s_barrier")
    for r in frag_reads(0, 0, 0):
        e(r)
    e("s_mov_b32 s42, 0")
    stamp(e, opt, 1)
    e("s_cmp_eq_u32 s36, 0")
    e("s_cbranch_scc0 K1_LOOP_V")
    pro = e

    def place_dma(fill, items, g0, g1):
        n = len(items)
        for k, (pre, d, post) in enumerate(items):
            g = g0 + (k * (g1 - g0)) // n
            for x in pre:
                fill.setdefault(g - 1, []).append(x)
            if not (opt.get("no_dma") and "s46" not in d):
                fill.setdefault(g, []).append((d, "dma"))
            for x in post:
                fill.setdefault(g, []).append(x)

    def ktile(e, kind, b, dma_k0, dma_k3, last=False, extra=None):
        for ks in range(4):
            st = ks & 1
            fa, fb = V_FA + st * 16, V_FB + st * 16
            spine = []
            for i in range(4):
                for j in range(4):
                    acc = a((i * 4 + j) * 16, 16)
                    W, C = v(fb + i * 4, 4), v(fa + j * 4, 4)
                    A, B = (W, C) if kind == 0 else (C, W)
                    spine.append(f"{MFMA} {acc}, {A}, {B}, {acc}")
            fill = {}
            fill[-1] = [lambda e: e.wait_force(lgkm=0)]
            if ks < 3:
                spread(fill, frag_reads(b, ks + 1, st ^ 1), 0, 12)
                if ks == 0 and dma_k0:
                    place_dma(fill, dma_k0, 1, 16)
            else:
                fill[0] = [lambda e: e.wait_force(vm=0), "s_barrier"]
                if not last:
                    spread(fill, frag_reads(b ^ 1, 0, 0), 0, 12)
                if dma_k3:
                    place_dma(fill, dma_k3, 2, 16)
            if extra:
                extra(ks, fill)
            weave(e, spine, fill)

    V_DQ, V_D1 = V_T, V_T + 4
    V_AT = V_T + 8
    NT = 21

    def b_dma(u):
        part, kt = divmod(u, 7)
        slot = SLOT_ORDER[u % 8]
        it = []
        for j in range(4):
            pre = []
            if j == 0:
                pre.append(f"s_add_u32 m0, s45, {slot*16384}")
                off = kt * 64 * 3584 if part == 0 else kt * 64 * 8192 + (part - 1) * 256
                pre.append(f"s_mov_b32 s46, {off}")
            if part == 0:
                d = f"buffer_load_dwordx4 v{V_D1+j}, s[{S_W1}:{S_W1+3}], s46 offen offset:{j*1024} lds"
            else:
                d = f"buffer_load_dwordx4 v{V_DQ+j}, s[{S_WQ}:{S_WQ+3}], s46 offen offset:{j*1024} lds"
            it.append((pre, d, []))
        return it

    def b_setup(e):
        e("s_lshl_b32 s45, s3, 12")
        e("s_lshl_b32 s7, s3, 4")
        e("v_add_u32 v6, s7, v3")
        e("v_xor_b32 v7, v4, v3")
        e("v_lshlrev_b32 v7, 6, v7")
        e("v_lshl_add_u32 v7, v5, 4, v7")
        e("s_lshl_b32 s7, s38, 9")
        e(f"v_lshlrev_b32 v{V_DQ}, 13, v6")
        e(f"v_add3_u32 v{V_DQ}, v{V_DQ}, v7, s7")
        for j in range(1, 4):
            e(f"v_add_u32 v{V_DQ+j}, {j*4*8192 - j*1024}, v{V_DQ}")
        e("s_lshr_b32 s7, s38, 1")
        e("s_mul_i32 s7, s7, 7")
        e("s_and_b32 s47, s38, 1")
        e("s_lshl_b32 s47, s47, 2")
        e("s_add_u32 s47, s47, s7")
        e("s_lshl_b32 s7, s47, 6")
        e(f"v_mul_u32_u24 v{V_D1}, 3584, v6")
        e(f"v_add3_u32 v{V_D1}, v{V_D1}, v7, s7")
        for j in range(1, 4):
            e(f"v_add_u32 v{V_D1+j}, {j*4*3584 - j*1024}, v{V_D1}")
        e("v_lshrrev_b32 v6, 1, v3")
        e("v_lshl_add_u32 v6, v6, 3, v4")
        e("v_lshlrev_b32 v6, 8, v6")
        e("v_and_b32 v7, 1, v3")
        e("v_lshl_add_u32 v6, v7, 5, v6")
        e("v_lshl_add_u32 v6, v5, 3, v6")
        for nb in range(4):
            e(f"v_xor_b32 v7, {nb}, v4")
            e(f"v_lshl_add_u32 v{V_AT+nb}, v7, 6, v6")
            e(f"v_add_u32 v{V_AT+4+nb}, 0x10000, v{V_AT+nb}")

    br = pro.ins[-2:]
    pro.ins = pro.ins[:-2]
    b_setup(pro)
    pro.ins += br

    segs = [pro]
    traces = []
    tails = {}
    for kind in range(2):
        nm = "KV"[kind]
        lp = Seg(f"k1_loop{nm}", pro.lds, pro.vm)
        lp.label(f"K1_LOOP_{nm}")
        d0, d1 = dma_items(0), dma_items(1)
        ktile(lp, kind, 0, d1[NK3:], d0[:NK3])
        ktile(lp, kind, 1, d0[NK3:], d1[:NK3])
        lp("s_add_u32 s42, s42, 1")
        lp("s_cmp_lt_u32 s42, 7")
        lp(f"s_cbranch_scc1 K1_LOOP_{nm}")
        assert opt.get('no_dma') or len(lp.vm) == len(pro.vm), (len(lp.vm), len(pro.vm))
        tl = Seg(f"k1_tail{nm}", lp.lds, lp.vm)
        bd = [b_dma(u) for u in range(8)]
        ktile(tl, kind, 0, d1[NK3:], bd[0] + bd[1] + bd[2] + bd[3])
        ktile(tl, kind, 1, None, bd[4] + bd[5] + bd[6] + bd[7], last=True)
        if kind == 0:
            tl("s_branch K1_EPI")
        segs += [lp, tl]
        tails[kind] = tl
        traces.append([pro, lp, lp, tl])

    e = Seg("k1_epi", tails[0].lds, tails[0].vm)
    e.label("K1_EPI")
    stamp(e, opt, 2)
    e("s_lshl_b32 s7, s37, 7")
    e("s_lshl_b32 s39, s3, 5")
    e("s_add_u32 s7, s7, s39")
    e("v_add_u32 v6, s7, v1")
    e("v_mul_u32_u24 v6, 896, v6")
    e("v_lshl_add_u32 v6, v2, 4, v6")
    for ks in range(28):
        e(f"buffer_load_dwordx4 {v(V_XN+ks*4,4)}, v6, s[{S_X}:{S_X+3}], 0 offen offset:{ks*32}", "x")
    e("v_lshlrev_b32 v7, 4, v0")
    e("s_lshl_b32 s48, s35, 6")
    e("s_lshl_b32 s7, s34, 3")
    e("s_add_u32 s48, s48, s7")
    e("s_lshl_b32 s7, s5, 2")
    e("s_add_u32 s48, s48, s7")
    e("s_lshl_b32 s48, s48, 15")
    e("s_lshl_b32 s7, s36, 14")
    e("s_add_u32 s48, s48, s7")
    e("s_lshl_b32 s7, s6, 13")
    e("s_add_u32 s48, s48, s7")
    T = V_FA
    n = 0
    for j in range(4):
        for i in range(4):
            if (i & 1) == 0:
                e(f"s_add_u32 s49, s48, {KV_OFF + j*32768 + (i>>1)*4096}")
            ab = (i * 4 + j) * 16
            t = T + (n % 2) * 32
            n += 1
            for r in range(16):
                e(f"v_accvgpr_read_b32 v{t+r}, a{ab+r}")
            for r in range(8):
                e(f"v_cvt_pk_bf16_f32 v{t+16+r}, v{t+2*r}, v{t+2*r+1}")
            for c in range(2):
                e(f"buffer_store_dwordx4 {v(t+16+4*c,4)}, v7, s[{S_WS}:{S_WS+3}], s49 offen offset:{(i&1)*2048+c*1024}{ST}", "st")
    stamp(e, opt, 3)
    e("s_mov_b32 s50, 0x3f803f80")
    for k in range(8):
        e(f"v_mov_b32 v{T+k}, 0")
    for r in range(112):
        e(f"v_dot2_f32_bf16 v{T+(r&3)}, v{V_XN+r}, s50, v{T+(r&3)}")
        e(f"v_dot2_f32_bf16 v{T+4+(r&3)}, v{V_XN+r}, v{V_XN+r}, v{T+4+(r&3)}")
    e.nop(4)
    e(f"v_add_f32 v{T}, v{T}, v{T+1}")
    e(f"v_add_f32 v{T+2}, v{T+2}, v{T+3}")
    e(f"v_add_f32 v{T+4}, v{T+4}, v{T+5}")
    e(f"v_add_f32 v{T+6}, v{T+6}, v{T+7}")
    e(f"v_add_f32 v{T}, v{T}, v{T+2}")
    e(f"v_add_f32 v{T+4}, v{T+4}, v{T+6}")
    e(f"v_mov_b32 v{T+1}, v{T}")
    e(f"v_mov_b32 v{T+5}, v{T+4}")
    e(f"v_permlane32_swap_b32 v{T}, v{T+1}")
    e(f"v_permlane32_swap_b32 v{T+4}, v{T+5}")
    e(f"v_add_f32 v{T}, v{T}, v{T+1}")
    e(f"v_add_f32 v{T+4}, v{T+4}, v{T+5}")
    e(f"v_mul_f32 v{T}, {f32(1/448)}, v{T}")
    e(f"v_mul_f32 v{T+4}, {f32(1/448)}, v{T+4}")
    e(f"v_fma_f32 v{T+4}, -v{T}, v{T}, v{T+4}")
    e(f"v_max_f32 v{T+4}, 0, v{T+4}")
    e(f"v_add_f32 v{T+4}, {f32(1e-5)}, v{T+4}")
    e(f"v_rsq_f32 v{T+4}, v{T+4}")
    e(f"v_mul_f32 v{T}, v{T}, v{T+4}")
    for r in range(112):
        t = T + 8 + (r % 8) * 2
        e(f"v_lshlrev_b32 v{t}, 16, v{V_XN+r}")
        e(f"v_and_b32 v{t+1}, 0xffff0000, v{V_XN+r}")
        e(f"v_fma_f32 v{t}, v{t}, v{T+4}, -v{T}")
        e(f"v_fma_f32 v{t+1}, v{t+1}, v{T+4}, -v{T}")
        e(f"v_cvt_pk_bf16_f32 v{V_XN+r}, v{t}, v{t+1}")
    stamp(e, opt, 4)
    D = opt.get("b_depth", 7)
    NF = NT * 16

    def b_read(f):
        u, rem = divmod(f, 16)
        ks, nb = divmod(rem, 4)
        slot = SLOT_ORDER[u % 8]
        fr = V_FA + (f % 16) * 4
        at = V_AT + (4 if slot >= 4 else 0) + nb
        return [f"ds_read_b64_tr_b16 {v(fr+2*h,2)}, v{at} offset:{(slot&3)*16384 + (16*ks+4*h)*256}" for h in range(2)]

    def b_sync(g):
        def fn(e):
            e.wait_tag(f"b{g}")
            e("s_barrier")
            if g >= 2:
                for u in (2 * g + 4, 2 * g + 5):
                    if u < NT:
                        emit_dma(e, b_dma(u), f"b{u//2}")
        return fn

    vm = []
    k = 0
    for tg, d in e.vm:
        if tg == "dma":
            vm.append((f"b{2 + k // 8}", d))
            k += 1
        else:
            vm.append((tg, d))
    e.vm = vm

    QS = f32(math.log2(math.e) / 16.0)
    TQ = V_T + 16

    def q_epi(part):
        ops = []
        for nb in range(4):
            ab = part * 64 + nb * 16
            for c in range(2):
                t = TQ + ((nb * 2 + c) % 2) * 16
                for r in range(8):
                    ops.append(f"v_accvgpr_read_b32 v{t+r}, a{ab+8*c+r}")
                if part == 0:
                    for r in range(8):
                        ops.append(f"v_mul_f32 v{t+8+r}, {f32(-math.log2(math.e))}, v{t+r}")
                    for r in range(8):
                        ops.append(f"v_exp_f32 v{t+8+r}, v{t+8+r}")
                    for r in range(8):
                        ops.append(f"v_add_f32 v{t+8+r}, 1.0, v{t+8+r}")
                    for r in range(8):
                        ops.append(f"v_rcp_f32 v{t+8+r}, v{t+8+r}")
                    for r in range(8):
                        ops.append(f"v_mul_f32 v{t+r}, v{t+r}, v{t+8+r}")
                else:
                    for r in range(8):
                        ops.append(f"v_mul_f32 v{t+r}, {QS}, v{t+r}")
                for r in range(4):
                    ops.append(f"v_cvt_pk_bf16_f32 v{t+8+r}, v{t+2*r}, v{t+2*r+1}")
                if part == 0:
                    sb = 53 if nb == 3 else 51
                    ops.append((f"buffer_store_dwordx4 {v(t+8,4)}, v7, s[{S_WS}:{S_WS+3}], s{sb + (0 if nb == 3 else (nb >> 1))} offen offset:{(nb&1)*2048 + c*1024}", "st"))
                else:
                    ops.append((f"buffer_store_dwordx4 {v(t+8,4)}, v7, s[{S_WS}:{S_WS+3}], s{54 + (part-1)*2 + (nb>>1)} offen offset:{(nb&1)*2048 + c*1024}", "st"))
        return ops

    e("s_lshl_b32 s7, s37, 2")
    e("s_add_u32 s7, s7, s3")
    e("s_mul_i32 s51, s7, 112")
    e("s_lshl_b32 s39, s47, 1")
    e("s_add_u32 s51, s51, s39")
    e("s_lshl_b32 s51, s51, 10")
    e(f"s_add_u32 s51, s51, {H_OFF}")
    e("s_add_u32 s52, s51, 4096")
    e("s_and_b32 s39, s38, 1")
    e("s_cmp_eq_u32 s39, 0")
    e(f"s_cselect_b32 s53, s52, {DUMMY_OFF:#x}")
    e("s_lshl_b32 s54, s38, 6")
    e("s_add_u32 s54, s54, s7")
    e("s_lshl_b32 s54, s54, 14")
    e(f"s_add_u32 s54, s54, {Q_OFF}")
    for k in range(1, 4):
        e(f"s_add_u32 s{54+k}, s54, {k*4096}")

    spine, fill = [], {}
    b_sync(0)(e)
    for f in range(D):
        for r in b_read(f):
            e(r)
    for f in range(NF):
        u, rem = divmod(f, 16)
        part, kt = divmod(u, 7)
        ks, nb = divmod(rem, 4)
        acc = a(part * 64 + nb * 16, 16)
        c = "0" if (kt == 0 and ks == 0) else acc
        spine.append(f"{MFMA} {acc}, {v(V_FA+(f%16)*4,4)}, {v(V_XN+(kt*4+ks)*4,4)}, {c}")
        nf = f + D
        if nf < NF:
            if nf % 32 == 0:
                fill.setdefault(f, []).append(b_sync(nf // 32))
            fill.setdefault(f, []).extend(b_read(nf))
    spread(fill, q_epi(0), 112 + 4, 224)
    spread(fill, q_epi(1), 224 + 4, 336)
    weave(e, spine, fill)
    stamp(e, opt, 5)
    e.nop(12)
    for x in q_epi(2):
        if isinstance(x, tuple):
            e(x[0], x[1])
        else:
            e(x)
    if opt.get("stamps"):
        stamp(e, opt, 6)
        e("s_lshl_b32 s7, s2, 2")
        e("s_add_u32 s7, s7, s3")
        e("s_lshl_b32 s7, s7, 6")
        e(f"s_add_u32 s7, s7, {128*MB}")
        e("v_mov_b32 v2, 0")
        for i in range(7):
            e(f"v_mov_b32 v3, s{88+2*i}")
            e(f"buffer_store_dword v3, v2, s[{S_WS}:{S_WS+3}], s7 offen offset:{4*i}")
    e.label("K1_END")
    e("s_endpgm")
    segs.append(e)
    for t in traces:
        t.append(e)
    return segs, traces
```

```python
from emit import *
from common import *

LDS_BYTES = 160 * 1024
S_WS, S_WO, S_W2 = 8, 12, 16
V_L0, V_L1, V_L16, V_KA, V_VA, V_DMA, V_D0, V_NEGBIG, V_MAX, V_MS = 8, 9, 10, 11, 12, 13, 14, 15, 16, 17
V_T = 18
V_S = (32, 48)
V_P = (64, 72)
V_NM = 80
V_X = 96
V_O = 128
A_Q, A_Q2, A_F, A_HF = 0, 64, 128, 192
S_HEAD, S_QT, S_NH, S_N, S_T, S_FLOOR, S_KRD, S_VRD, S_KWR, S_VWR = 32, 33, 34, 35, 36, 37, 38, 39, 40, 41
S_KVB, S_IK, S_IV1, S_IV2, S_Q30, S_W4K, S_PAIR = 42, 43, 44, 45, 46, 47, 48
THR = 16.0


def stamp(e, opt, idx):
    if opt.get("stamps2"):
        e(f"s_memtime s[{88+2*idx}:{89+2*idx}]")
        e.wait_force(lgkm=0)


def wait_reg(e, regs):
    rs = set(regs_of(regs))
    n = None
    for k, d in enumerate(e.lds):
        if d & rs:
            n = len(e.lds) - 1 - k
    if n is not None:
        e.wait(lgkm=n)


def gen_k2(opt):
    D = opt.get("a_depth", 12)
    e = Seg("k2_pro")
    e.label("attn_kernel")
    e("s_cmp_ge_u32 s2, 256")
    e("s_cbranch_scc1 K2_END")
    load_kernargs(e)
    e("v_lshrrev_b32 v1, 6, v0")
    e("v_and_b32 v0, 63, v0")
    e("v_readfirstlane_b32 s3, v1")
    e("s_and_b32 s4, s2, 7")
    e("s_lshr_b32 s5, s2, 3")
    e("s_lshl_b32 s4, s4, 1")
    e(f"s_and_b32 s{S_HEAD}, s5, 1")
    e(f"s_add_u32 s{S_HEAD}, s{S_HEAD}, s4")
    e(f"s_lshr_b32 s{S_QT}, s5, 1")
    e(f"s_lshl_b32 s4, s{S_QT}, 2")
    e(f"s_sub_u32 s{S_NH}, 30, s4")
    e(f"s_sub_u32 s{S_Q30}, s4, 30")
    e(f"s_sub_u32 s6, 15, s{S_QT}")
    e(f"s_cmp_ge_u32 s{S_QT}, 8")
    e(f"s_cselect_b32 s{S_NH}, 0, s{S_NH}")
    e(f"s_cselect_b32 s7, s{S_QT}, s6")
    e(f"s_cselect_b32 s{S_PAIR}, s6, s{S_QT}")
    e(f"s_lshl_b32 s4, s{S_HEAD}, 3")
    e(f"s_add_u32 s{S_PAIR}, s{S_PAIR}, s4")
    e(f"s_lshl_b32 s{S_W4K}, s3, 12")
    e(f"s_lshl_b32 s{S_KVB}, s{S_HEAD}, 21")
    e(f"v_lshlrev_b32 v{V_L16}, 4, v0")
    e(f"v_add_u32 v{V_DMA}, s{S_W4K}, v{V_L16}")
    e("v_and_b32 v1, 31, v0")
    e("v_lshrrev_b32 v2, 5, v0")
    e("v_lshlrev_b32 v3, 2, v2")
    e(f"v_sub_u32 v{V_D0}, v1, v3")
    e(f"v_mov_b32 v{V_NEGBIG}, {f32(-1e30)}")
    e.wait_force(lgkm=0)
    srd(e, S_WS, P_WS, WS_BYTES)
    srd(e, S_WO, P_WO, WO_BYTES)
    srd(e, S_W2, P_W2, W2_BYTES)
    stamp(e, opt, 0)

    def idx_ops(dst, nreg, add):
        return [
            f"s_add_u32 s49, s{nreg}, {add}",
            "s_add_u32 s50, s49, 30",
            "s_sub_u32 s51, 29, s49",
            f"s_add_u32 s52, s49, s{S_Q30}",
            "s_cmp_lt_u32 s49, 30",
            "s_cselect_b32 s51, s51, s52",
            f"s_cmp_lt_u32 s49, s{S_NH}",
            "s_cselect_b32 s50, s50, s51",
            "s_lshl_b32 s50, s50, 15",
            f"s_add_u32 s{dst}, s50, s{S_KVB}",
        ]

    def dmaK():
        return [f"s_add_u32 m0, s{S_KWR}, s{S_W4K}"] + [
            (f"buffer_load_dwordx4 v{V_DMA}, s[{S_WS}:{S_WS+3}], s{S_IK} offen offset:{j*1024} lds", "dma") for j in range(4)
        ] + [f"s_add_u32 s{S_KWR}, s{S_KWR}, 0x4000", f"s_and_b32 s{S_KWR}, s{S_KWR}, 0xffff"]

    def dmaV(src):
        return [f"s_add_u32 m0, s{S_VWR}, s{S_W4K}", f"s_add_u32 s53, s{src}, 0x4000"] + [
            (f"buffer_load_dwordx4 v{V_DMA}, s[{S_WS}:{S_WS+3}], s53 offen offset:{j*1024} lds", "dma") for j in range(4)
        ] + [f"s_add_u32 s{S_VWR}, s{S_VWR}, 0x4000", f"s_and_b32 s{S_VWR}, s{S_VWR}, 0xffff", f"s_or_b32 s{S_VWR}, s{S_VWR}, 0x10000"]

    def run(e, ops):
        for x in ops:
            if isinstance(x, list):
                run(e, x)
            elif callable(x):
                x(e)
            elif isinstance(x, tuple):
                e(x[0], x[1])
            else:
                e(x)

    e(f"s_mov_b32 s{S_N}, 0")
    e(f"s_mov_b32 s{S_KWR}, 0")
    e(f"s_mov_b32 s{S_VWR}, 0x10000")
    run(e, idx_ops(S_IK, S_N, 0))
    run(e, dmaK())
    e(f"s_mov_b32 s{S_IV1}, s{S_IK}")
    e(f"s_lshl_b32 s4, s{S_HEAD}, 6")
    e("s_add_u32 s4, s4, s3")
    e("s_lshl_b32 s5, s7, 2")
    e("s_add_u32 s5, s5, s4")
    e("s_lshl_b32 s5, s5, 14")
    e(f"s_add_u32 s5, s5, {Q_OFF}")
    for k in range(16):
        if k and k % 4 == 0:
            e("s_add_u32 s5, s5, 4096")
        e(f"buffer_load_dwordx4 {a(A_Q+4*k,4)}, v{V_L16}, s[{S_WS}:{S_WS+3}], s5 offen offset:{(k%4)*1024}", "q")
    run(e, dmaV(S_IV1))
    run(e, idx_ops(S_IK, S_N, 1))
    run(e, dmaK())
    run(e, dmaV(S_IK))
    run(e, idx_ops(S_IK, S_N, 2))
    run(e, dmaK())
    e(f"s_mov_b32 s{S_IV1}, s{S_IK}")
    run(e, idx_ops(S_IK, S_N, 3))
    run(e, dmaK())
    e(f"s_mov_b32 s{S_IV2}, s{S_IK}")
    e(f"s_lshl_b32 s5, s{S_QT}, 2")
    e("s_add_u32 s5, s5, s4")
    e("s_lshl_b32 s5, s5, 14")
    e(f"s_add_u32 s5, s5, {Q_OFF}")
    for k in range(16):
        if k and k % 4 == 0:
            e("s_add_u32 s5, s5, 4096")
        e(f"buffer_load_dwordx4 {a(A_Q2+4*k,4)}, v{V_L16}, s[{S_WS}:{S_WS+3}], s5 offen offset:{(k%4)*1024}", "q2")
    e(f"s_lshl_b32 s5, s{S_QT}, 2")
    e("s_add_u32 s5, s5, s3")
    e("s_mul_i32 s5, s5, 112")
    e(f"s_mul_i32 s6, s{S_HEAD}, 7")
    e("s_add_u32 s5, s5, s6")
    e("s_lshl_b32 s5, s5, 10")
    e(f"s_add_u32 s5, s5, {H_OFF}")
    for k in range(7):
        if k == 4:
            e("s_add_u32 s5, s5, 4096")
        e(f"buffer_load_dwordx4 {a(A_HF+4*k,4)}, v{V_L16}, s[{S_WS}:{S_WS+3}], s5 offen offset:{(k%4)*1024}", "hf")
    for r in range(128):
        e(f"v_mov_b32 v{V_O+r}, 0")
    for r in range(16):
        e(f"v_mov_b32 v{V_NM+r}, 0")
    e(f"v_mov_b32 v{V_L0}, 0")
    e(f"v_mov_b32 v{V_L1}, 0")
    e(f"s_mov_b32 s{S_T}, 0xff800000")
    e(f"s_mov_b32 s{S_FLOOR}, 0xff800000")
    e(f"s_mov_b32 s{S_KRD}, 0")
    e(f"s_mov_b32 s{S_VRD}, 0x10000")
    e(f"v_mov_b32 v{V_KA}, v{V_L16}")

    def rd(f):
        f %= 32
        d = a(A_F + (f % 16) * 4, 4)
        if f < 16:
            return f"ds_read_b128 {d}, v{V_KA} offset:{f*1024}"
        g, dt = divmod(f - 16, 8)
        return f"ds_read_b128 {d}, v{V_VA} offset:{(dt*2+g)*1024}"

    def mf(f, par):
        fr = a(A_F + (f % 16) * 4, 4)
        if f < 16:
            S = v(V_S[par ^ 1], 16)
            C = v(V_NM, 16) if f == 0 else S
            return f"{MFMA} {S}, {fr}, {a(A_Q+4*f,4)}, {C}"
        g, dt = divmod(f - 16, 8)
        O = v(V_O + dt * 16, 16)
        return f"{MFMA} {O}, {fr}, {v(V_P[par]+4*g,4)}, {O}"

    def adv_k():
        return [f"s_add_u32 s{S_KRD}, s{S_KRD}, 0x4000", f"s_and_b32 s{S_KRD}, s{S_KRD}, 0xffff",
                f"v_add_u32 v{V_KA}, s{S_KRD}, v{V_L16}"]

    def adv_v():
        return [f"v_add_u32 v{V_VA}, s{S_VRD}, v{V_L16}", f"s_add_u32 s{S_VRD}, s{S_VRD}, 0x4000",
                f"s_and_b32 s{S_VRD}, s{S_VRD}, 0xffff", f"s_or_b32 s{S_VRD}, s{S_VRD}, 0x10000"]

    def max_ops(par):
        S = V_S[par]
        t = V_T
        ops = [f"v_max3_f32 v{t+k}, v{S+3*k}, v{S+3*k+1}, v{S+3*k+2}" for k in range(5)]
        ops += [f"v_max3_f32 v{t}, v{t}, v{t+1}, v{t+2}", f"v_max3_f32 v{t+3}, v{t+3}, v{t+4}, v{S+15}",
                f"v_max_f32 v{V_MAX}, v{t}, v{t+3}", f"v_cmp_lt_f32 vcc, s{S_T}, v{V_MAX}"]
        return ops

    def soft_ops(par):
        S, P = V_S[par], V_P[par]
        ops = []
        for k in range(9):
            if k < 8:
                ops += [f"v_exp_f32 v{S+2*k}, v{S+2*k}", f"v_exp_f32 v{S+2*k+1}, v{S+2*k+1}"]
            if k > 0:
                j = k - 1
                ops += [f"v_cvt_pk_bf16_f32 v{P+j}, v{S+2*j}, v{S+2*j+1}",
                        f"v_add_f32 v{V_L0}, v{V_L0}, v{S+2*j}", f"v_add_f32 v{V_L1}, v{V_L1}, v{S+2*j+1}"]
        return ops

    def bar(vm):
        return [lambda e: e.wait_force(vm=vm), "s_barrier"]

    def waits(fill, lo, hi):
        for f in range(lo, hi, 4):
            r = a(A_F + ((f + 3) % 16) * 4, 4)
            fill.setdefault(f - 1, []).append(lambda e, r=r: wait_reg(e, r))

    e.wait_tag("q")
    e("s_barrier")
    for f in range(D):
        e(rd(f))
    spine = [mf(f, 1) for f in range(16)]
    fill = {}
    for f in range(16):
        nf = f + D
        if nf == 16:
            fill.setdefault(f, []).extend([lambda e: e.wait_force(vm=31, lgkm=0), "s_barrier"] + adv_k())
        fill.setdefault(f, []).append(rd(nf % 16))
    waits(fill, 0, 16)
    weave(e, spine, fill)
    run(e, idx_ops(S_IK, S_N, 4))
    run(e, dmaK())
    e.nop(4)
    run(e, max_ops(0))
    e("s_branch K2_RARE1")
    pro = e
    stateL, stateV = list(e.lds), [("dma", frozenset())] * 63

    segs = [pro]

    def step(name, par, lds, vm):
        e = Seg(name, lds, vm)
        e.label(f"K2_STEP{par}")
        if par == 1:
            e(f"s_add_u32 s49, s{S_N}, 1")
            e(f"s_cmp_eq_u32 s49, s{S_NH}")
            e("s_cbranch_scc1 K2_SW1")
            e.label("K2_SW1_RET")
        spine = [mf(f, par) for f in range(32)]
        fill = {}
        waits(fill, 0, 32)
        for f in range(32):
            nf = f + D
            if nf == 16:
                fill.setdefault(f, []).extend(adv_v())
            if nf == 32:
                fill.setdefault(f, []).extend(bar(8) + adv_k())
            fill.setdefault(f, []).append(rd(nf))
        so = soft_ops(par)
        spread(fill, so[:22], 0, 14)
        spread(fill, so[22:], 14, 22)
        dv = dmaV(S_IV1)
        fill.setdefault(0, []).extend(dv[:2])
        for j in range(4):
            fill.setdefault(1 + 2 * j, []).append(dv[2 + j])
        fill.setdefault(8, []).extend(dv[6:] + [f"s_mov_b32 s{S_IV1}, s{S_IV2}", f"s_mov_b32 s{S_IV2}, s{S_IK}"])
        io = idx_ops(S_IK, S_N, 5)
        fill.setdefault(10, []).extend(io[:4])
        fill.setdefault(11, []).extend(io[4:6])
        fill.setdefault(12, []).extend(io[6:])
        fill.setdefault(19, []).extend([f"s_cmp_ge_u32 s{S_N}, 29", f"s_cbranch_scc1 K2_MASK{par}", f"K2_MASK{par}_RET:"])
        spread(fill, max_ops(par ^ 1), 22, 31)
        dk = dmaK()
        g0 = 32 - D
        fill.setdefault(g0, []).append(dk[0])
        for j in range(4):
            fill.setdefault(min(31, g0 + 1 + 2 * j), []).append(dk[1 + j])
        fill.setdefault(31, []).extend(dk[5:])
        weave(e, spine, fill)
        e(f"s_add_u32 s{S_N}, s{S_N}, 1")
        if par == 1:
            e(f"s_cmp_eq_u32 s{S_N}, s{S_NH}")
            e("s_cbranch_scc1 K2_SW2")
        e(f"s_cbranch_vccnz K2_RARE{par}")
        e.label(f"K2_RARE{par}_RET")
        if par == 0:
            e(f"s_cmp_eq_u32 s{S_N}, 33")
            e("s_cbranch_scc1 K2_TAIL")
        else:
            e("s_branch K2_STEP0")
        return e

    s0 = step("k2_step0", 0, stateL, stateV)
    s1 = step("k2_step1", 1, s0.lds, s0.vm)
    assert s1.lds == stateL and s0.lds == stateL
    segs += [s0, s1]

    def rare(par):
        e = Seg(f"k2_rare{par}", stateL, stateV)
        e.label(f"K2_RARE{par}")
        S = V_S[par ^ 1]
        t = V_T
        e(f"v_mov_b32 v{t}, v{V_MAX}")
        e.nop(2)
        e(f"v_permlane32_swap_b32 v{V_MAX}, v{t}")
        e(f"v_max_f32 v{t}, v{V_MAX}, v{t}")
        e(f"v_max_f32 v{t}, s{S_FLOOR}, v{t}")
        e(f"v_max_f32 v{t+1}, 0, v{t}")
        e(f"v_exp_f32 v{t+1}, -v{t+1}")
        for r in range(16):
            e(f"v_sub_f32 v{S+r}, v{S+r}, v{t}")
        for r in range(16):
            e(f"v_sub_f32 v{V_NM+r}, v{V_NM+r}, v{t}")
        e(f"v_mul_f32 v{V_L0}, v{V_L0}, v{t+1}")
        e(f"v_mul_f32 v{V_L1}, v{V_L1}, v{t+1}")
        for r in range(128):
            e(f"v_mul_f32 v{V_O+r}, v{V_O+r}, v{t+1}")
        e(f"s_mov_b32 s{S_T}, {f32(THR)}")
        e(f"s_mov_b32 s{S_FLOOR}, 0")
        e.nop(2)
        e(f"s_branch K2_RARE{par}_RET")
        return e

    def mask(par):
        e = Seg(f"k2_mask{par}", stateL, stateV)
        e.label(f"K2_MASK{par}")
        S = V_S[par ^ 1]
        e(f"s_sub_u32 s54, s{S_N}, 29")
        e("s_sub_u32 s54, s54, s3")
        e("s_lshl_b32 s54, s54, 5")
        e(f"v_subrev_u32 v{V_X}, s54, v{V_D0}")
        e.nop(8)
        for h in range(2):
            for r in range(8 * h, 8 * h + 8):
                e(f"v_cmp_le_i32 s[{64+2*(r%8)}:{65+2*(r%8)}], {8*(r>>2)+(r&3)}, v{V_X}")
            for r in range(8 * h, 8 * h + 8):
                e(f"v_cndmask_b32 v{S+r}, v{V_NEGBIG}, v{S+r}, s[{64+2*(r%8)}:{65+2*(r%8)}]")
        e(f"s_branch K2_MASK{par}_RET")
        return e

    r0, r1, m0, m1 = rare(0), rare(1), mask(0), mask(1)

    sw1 = Seg("k2_sw1", stateL, stateV)
    e = sw1
    e.label("K2_SW1")
    for r in range(64):
        e(f"v_accvgpr_mov_b32 a{A_Q+r}, a{A_Q2+r}")
    e(f"v_mov_b32 v{V_MS}, v{V_NM}")
    for r in range(16):
        e(f"v_mov_b32 v{V_NM+r}, 0")
    e.nop(2)
    e("s_branch K2_SW1_RET")

    sw2 = Seg("k2_sw2", stateL, stateV)
    e = sw2
    e.label("K2_SW2")
    e(f"s_lshl_b32 s54, s{S_PAIR}, 2")
    e("s_add_u32 s54, s54, s3")
    e("s_lshl_b32 s55, s54, 9")
    e(f"s_add_u32 s55, s55, {ML_OFF}")
    e("s_lshl_b32 s54, s54, 15")
    e(f"s_add_u32 s54, s54, {OP_OFF}")
    e(f"v_add_f32 v{V_L0}, v{V_L0}, v{V_L1}")
    e(f"v_lshrrev_b32 v{V_X}, 2, v{V_L16}")
    e(f"buffer_store_dword v{V_MS}, v{V_X}, s[{S_WS}:{S_WS+3}], s55 offen sc1")
    e(f"buffer_store_dword v{V_L0}, v{V_X}, s[{S_WS}:{S_WS+3}], s55 offen offset:256 sc1")
    e.nop(8)
    for k in range(32):
        if k and k % 4 == 0:
            e("s_add_u32 s54, s54, 4096")
        e(f"buffer_store_dwordx4 {v(V_O+4*k,4)}, v{V_L16}, s[{S_WS}:{S_WS+3}], s54 offen offset:{(k%4)*1024} sc1")
    e.wait_force(vm=0)
    e(f"s_and_b32 s54, s{S_PAIR}, 3")
    e("s_lshl_b32 s54, s54, 3")
    e("s_lshl_b32 s54, 1, s54")
    e(f"s_lshr_b32 s55, s{S_PAIR}, 2")
    e("s_lshl_b32 s55, s55, 2")
    e(f"v_mov_b32 v{V_X}, s55")
    e(f"v_mov_b32 v{V_X+1}, s54")
    e("s_mov_b64 exec, 1")
    e(f"global_atomic_add v{V_X}, v{V_X+1}, s[{P_DBG}:{P_DBG+1}]")
    e("s_mov_b64 exec, -1")
    for r in range(128):
        e(f"v_mov_b32 v{V_O+r}, 0")
    e(f"v_mov_b32 v{V_L0}, 0")
    e(f"v_mov_b32 v{V_L1}, 0")
    e(f"s_mov_b32 s{S_T}, 0xff800000")
    e(f"s_mov_b32 s{S_FLOOR}, 0xff800000")
    e("s_branch K2_RARE1")

    e = Seg("k2_tail", stateL, stateV)
    e.label("K2_TAIL")
    run(e, adv_v())
    e.wait(lgkm=0)
    for f in range(16, 16 + D):
        e(rd(f))
    run(e, soft_ops(1))
    spine = [mf(f, 1) for f in range(16, 32)]
    fill = {}
    for f in range(16, 32):
        if f + D < 32:
            fill.setdefault(f - 16, []).append(rd(f + D))
    weave(e, spine, fill)
    stamp(e, opt, 1)

    V_EV, V_EA = V_X, V_X + 4
    ES = 49152
    e("v_lshrrev_b32 v1, 3, v0")
    e("v_mul_u32_u24 v1, 896, v1")
    e("v_bfe_u32 v2, v0, 2, 1")
    e("v_bfe_u32 v3, v0, 4, 1")
    e("v_xor_b32 v2, v2, v3")
    e("v_lshl_add_u32 v1, v2, 6, v1")
    e("v_and_b32 v2, 3, v0")
    e(f"v_lshl_add_u32 v{V_EV}, v2, 4, v1")
    for j in range(1, 4):
        e(f"v_add_u32 v{V_EV+j}, {j*7168 - j*1024}, v{V_EV}")
    e(f"s_mul_i32 s56, s{S_HEAD}, 229376")
    e("s_mul_i32 s4, s3, 57344")
    e("s_add_u32 s56, s56, s4")
    e(f"s_mul_i32 s57, s{S_HEAD}, 100352")
    e("s_mul_i32 s4, s3, 28672")
    e("s_add_u32 s57, s57, s4")
    e("s_mov_b32 s58, 0")
    e("s_mov_b32 s59, 0")
    e(f"s_lshl_b32 s60, s3, 13")

    def e_dma():
        ops = []
        for grp in range(2):
            ops.append("s_add_u32 s61, s58, s60")
            ops.append(f"s_add_u32 m0, s61, {grp*4096}")
            ops.append(f"s_add_u32 s61, s56, {grp*32*896}")
            for j in range(4):
                ops.append((f"buffer_load_dwordx4 v{V_EV+j}, s[{S_WO}:{S_WO+3}], s61 offen offset:{j*1024} lds", "edma"))
        ops.append(f"s_add_u32 s61, s58, s{S_W4K}")
        ops.append("s_add_u32 m0, s61, 0x8000")
        ops.append("s_add_u32 s56, s56, 128")
        for j in range(4):
            ops.append((f"buffer_load_dwordx4 v{V_EV+j}, s[{S_W2}:{S_W2+3}], s57 offen offset:{j*1024} lds", "edma"))
        ops += [["s_add_u32 s57, s57, 128", f"s_add_u32 s58, s58, {ES}", f"s_cmp_eq_u32 s58, {3*ES}", "s_cselect_b32 s58, 0, s58"]]
        return ops

    e.vm = []
    e.wait_force(vm=0)
    e("s_barrier")
    for t in range(2):
        run(e, e_dma())
    e("v_lshrrev_b32 v1, 5, v0")
    e("v_bfe_u32 v2, v0, 2, 2")
    e("v_lshl_add_u32 v1, v1, 2, v2")
    e("v_lshlrev_b32 v1, 7, v1")
    e("v_lshl_add_u32 v1, v3, 5, v1")
    e("v_and_b32 v2, 3, v0")
    e("v_lshl_add_u32 v1, v2, 3, v1")
    e("v_bfe_u32 v2, v0, 3, 1")
    e(f"v_lshl_add_u32 v{V_EA}, v2, 6, v1")
    e(f"v_xor_b32 v{V_EA+1}, 64, v{V_EA}")

    t = V_T
    e(f"v_add_f32 v{V_L0}, v{V_L0}, v{V_L1}")
    e(f"s_cmp_ge_u32 s{S_QT}, 8")
    e("s_cbranch_scc1 K2_MERGE")
    e(f"v_mov_b32 v{t}, v{V_L0}")
    e.nop(2)
    e(f"v_permlane32_swap_b32 v{V_L0}, v{t}")
    e(f"v_add_f32 v{t}, v{V_L0}, v{t}")
    e(f"v_rcp_f32 v{t}, v{t}")
    e.nop(1)
    CT = V_S[0]
    for k in range(64):
        e(f"v_mul_f32 v{V_O+2*k}, v{V_O+2*k}, v{t}")
        e(f"v_mul_f32 v{V_O+2*k+1}, v{V_O+2*k+1}, v{t}")
        e(f"v_cvt_pk_bf16_f32 v{CT+k}, v{V_O+2*k}, v{V_O+2*k+1}")
    e("s_branch K2_EPI")
    tail = e

    mg = Seg("k2_merge", e.lds, e.vm)
    e = mg
    e.label("K2_MERGE")
    e(f"s_and_b32 s54, s{S_PAIR}, 3")
    e("s_lshl_b32 s54, s54, 3")
    e(f"s_lshr_b32 s55, s{S_PAIR}, 2")
    e("s_lshl_b32 s55, s55, 2")
    e(f"v_mov_b32 v{t}, s55")
    e("s_mov_b32 s53, 0")
    e.label("K2_POLL")
    e(f"global_load_dword v{t+1}, v{t}, s[{P_DBG}:{P_DBG+1}] sc1")
    e.wait_force(vm=0)
    e(f"v_readfirstlane_b32 s55, v{t+1}")
    e("s_lshr_b32 s55, s55, s54")
    e("s_and_b32 s55, s55, 0xff")
    e("s_cmp_ge_u32 s55, 4")
    e("s_cbranch_scc1 K2_POLL_OK")
    e("s_sleep 8")
    e("s_add_u32 s53, s53, 1")
    e(f"s_cmp_lt_u32 s53, {opt.get('poll_max', 200000)}")
    e("s_cbranch_scc1 K2_POLL")
    e.label("K2_POLL_OK")
    e("s_barrier")
    e(f"s_lshl_b32 s54, s{S_PAIR}, 2")
    e("s_add_u32 s54, s54, s3")
    e("s_lshl_b32 s55, s54, 9")
    e(f"s_add_u32 s55, s55, {ML_OFF}")
    e("s_lshl_b32 s54, s54, 15")
    e(f"s_add_u32 s54, s54, {OP_OFF}")
    e(f"v_lshrrev_b32 v{t}, 2, v{V_L16}")
    e(f"buffer_load_dword v{t+1}, v{t}, s[{S_WS}:{S_WS+3}], s55 offen sc1")
    e(f"buffer_load_dword v{t+2}, v{t}, s[{S_WS}:{S_WS+3}], s55 offen offset:256 sc1")
    e(f"v_mov_b32 v{V_MS}, v{V_NM}")
    for k in range(32):
        if k and k % 4 == 0:
            e("s_add_u32 s54, s54, 4096")
        e(f"buffer_load_dwordx4 {a(4*k,4)}, v{V_L16}, s[{S_WS}:{S_WS+3}], s54 offen offset:{(k%4)*1024} sc1")
    e(f"v_min_f32 v{t+3}, v{V_MS}, v{t+1}")
    e(f"v_sub_f32 v{t+4}, v{t+3}, v{V_MS}")
    e(f"v_sub_f32 v{t+5}, v{t+3}, v{t+1}")
    e(f"v_exp_f32 v{t+4}, v{t+4}")
    e(f"v_exp_f32 v{t+5}, v{t+5}")
    e.nop(1)
    e(f"v_mul_f32 v{t+6}, v{V_L0}, v{t+4}")
    e(f"v_fma_f32 v{t+6}, v{t+2}, v{t+5}, v{t+6}")
    e(f"v_mov_b32 v{t+7}, v{t+6}")
    e.nop(2)
    e(f"v_permlane32_swap_b32 v{t+6}, v{t+7}")
    e(f"v_add_f32 v{t+6}, v{t+6}, v{t+7}")
    e(f"v_rcp_f32 v{t+6}, v{t+6}")
    e.nop(1)
    e(f"v_mul_f32 v{t+4}, v{t+4}, v{t+6}")
    e(f"v_mul_f32 v{t+5}, v{t+5}, v{t+6}")
    for k in range(64):
        u = t + 8 + (k % 2) * 2
        e(f"v_accvgpr_read_b32 v{u}, a{2*k}")
        e(f"v_accvgpr_read_b32 v{u+1}, a{2*k+1}")
        e(f"v_mul_f32 v{V_O+2*k}, v{V_O+2*k}, v{t+4}")
        e(f"v_mul_f32 v{V_O+2*k+1}, v{V_O+2*k+1}, v{t+4}")
        e(f"v_fma_f32 v{V_O+2*k}, v{u}, v{t+5}, v{V_O+2*k}")
        e(f"v_fma_f32 v{V_O+2*k+1}, v{u+1}, v{t+5}, v{V_O+2*k+1}")
        e(f"v_cvt_pk_bf16_f32 v{CT+k}, v{V_O+2*k}, v{V_O+2*k+1}")

    e = Seg("k2_epi", [], [])
    e.label("K2_EPI")
    stamp(e, opt, 2)
    YA = (V_O, V_O + 16)
    YP = V_O + 32
    VC = (V_EA + 2, V_EA + 3)
    e(f"s_lshl_b32 s62, s{S_HEAD}, 6")
    e(f"s_lshl_b32 s4, s{S_QT}, 2")
    e("s_add_u32 s62, s62, s4")
    e("s_add_u32 s62, s62, s3")
    e("s_mul_i32 s62, s62, 28672")
    e(f"s_add_u32 s62, s62, {Y_OFF}")
    e("s_mov_b32 s63, 0")
    ED = opt.get("e_depth", 7)
    NFE = 46

    def erd(f):
        f %= NFE
        seg, ks = divmod(f, 23)
        d = A_F + (f % 8) * 4 if f < 40 else A_F + 32 + (f - 40) * 4
        return [f"ds_read_b64_tr_b16 {a(d+2*u,2)}, v{VC[seg]} offset:{(16*ks+8*u)*128}" for u in range(2)]

    def efr(f):
        d = A_F + (f % 8) * 4 if f < 40 else A_F + 32 + (f - 40) * 4
        return a(d, 4)

    def eadv():
        return [f"v_add_u32 v{VC[0]}, s59, v{V_EA}", f"v_add_u32 v{VC[1]}, s59, v{V_EA+1}",
                f"s_add_u32 s59, s59, {ES}", f"s_cmp_eq_u32 s59, {3*ES}", "s_cselect_b32 s59, 0, s59"]

    def ecvt(seg, off):
        ops = [f"v_cvt_pk_bf16_f32 v{YP+8*seg+r}, v{YA[seg]+2*r}, v{YA[seg]+2*r+1}" for r in range(8)]
        ops += [(f"buffer_store_dwordx4 {v(YP+8*seg+4*c,4)}, v{V_L16}, s[{S_WS}:{S_WS+3}], s62 offen offset:{off+c*1024}{opt.get('y_store_mod','')}", "st") for c in range(2)]
        return ops

    e.wait_force(vm=0)
    e("s_barrier")
    run(e, eadv())
    for f in range(ED):
        run(e, erd(f))
    e("s_mov_b32 s4, s62")
    e(f"s_mov_b32 s62, {DUMMY_OFF}")
    epro = e

    lp = Seg("k2_eloop", e.lds, [("x", frozenset())] * 63)
    e = lp
    e.label("K2_ELOOP")
    spine, fill = [], {}
    for f in range(NFE):
        seg, ks = divmod(f, 23)
        B = v(CT + 4 * ks, 4) if ks < 16 else a(A_HF + 4 * (ks - 16), 4)
        acc = v(YA[seg], 16)
        spine.append(f"{MFMA} {acc}, {efr(f)}, {B}, {'0' if ks == 0 else acc}")
        nf = f + ED
        if nf == NFE:
            fill.setdefault(f, []).extend([lambda e: e.wait_force(vm=18, lgkm=0), "s_barrier"] + eadv())
        fill.setdefault(f, []).extend(erd(nf))
    for f in range(0, NFE, 2):
        r = efr(min(f + 1, NFE - 1))
        fill.setdefault(f - 1, []).append(lambda e, r=r: wait_reg(e, r))
    spread(fill, ecvt(1, 2048), 3, 13)
    fill.setdefault(13, []).extend(["s_add_u32 s62, s62, 4096", "s_cmp_eq_u32 s63, 0", "s_cselect_b32 s62, s4, s62"])
    ed = e_dma()
    spread(fill, ed, 14, 30)
    spread(fill, ecvt(0, 0), 30, 39)
    weave(e, spine, fill)
    e("s_add_u32 s63, s63, 1")
    e("s_cmp_lt_u32 s63, 7")
    e("s_cbranch_scc1 K2_ELOOP")
    assert lp.lds == epro.lds

    e = Seg("k2_fin", lp.lds, lp.vm)
    e.nop(12)
    run(e, ecvt(1, 2048))
    if opt.get("stamps2"):
        stamp(e, opt, 3)
        e("s_lshl_b32 s7, s2, 2")
        e("s_add_u32 s7, s7, s3")
        e("s_lshl_b32 s7, s7, 6")
        e(f"s_add_u32 s7, s7, {STAMP_OFF}")
        e("v_mov_b32 v2, 0")
        for i in range(4):
            e(f"v_mov_b32 v3, s{88+2*i}")
            e(f"buffer_store_dword v3, v2, s[{S_WS}:{S_WS+3}], s7 offen offset:{4*i}")
    e.label("K2_END")
    e("s_endpgm")
    fin = e

    segs += [tail, mg, epro, lp, fin, r0, r1, m0, m1, sw1, sw2]
    traces = [
        [pro, r1, s0, s1, s0, r0, s1, r1, s0, tail, epro, lp, lp, fin],
        [pro, r1, s0, sw1, s1, sw2, r1, s0, tail, mg, epro, lp, fin],
        [s0, m0, s1, m1],
    ]
    return segs, traces
```

```python
from emit import *
from common import *

GRID = 448
VGPRS = 96


def gen_k3(opt):
    e = Seg("k3")
    e.label("reduce_kernel")
    e(f"s_cmp_ge_u32 s2, {GRID}")
    e("s_cbranch_scc1 K3_END")
    load_kernargs(e)
    e("v_lshrrev_b32 v1, 6, v0")
    e("v_and_b32 v0, 63, v0")
    e("v_readfirstlane_b32 s3, v1")
    e("s_lshl_b32 s4, s2, 2")
    e("s_add_u32 s4, s4, s3")
    e("s_lshl_b32 s5, s4, 10")
    e(f"s_add_u32 s5, s5, {Y_OFF}")
    e("v_lshlrev_b32 v1, 4, v0")
    e(f"s_mul_hi_u32 s6, s4, {(1<<32)//28 + 1}")
    e("s_mul_i32 s7, s6, 28")
    e("s_sub_u32 s7, s4, s7")
    e.wait_force(lgkm=0)
    stamp(e, opt, 0)
    srd(e, 8, P_WS, WS_BYTES)
    srd(e, 12, P_X, X_BYTES)
    srd(e, 16, P_OUT, OUT_BYTES)
    for h in range(16):
        e(f"buffer_load_dwordx4 {v(16+4*h,4)}, v1, s[8:11], s5 offen")
        if h < 15:
            e(f"s_add_u32 s5, s5, {64*28*1024}")
    e("v_and_b32 v2, 31, v0")
    e("v_lshrrev_b32 v3, 5, v0")
    e("s_lshl_b32 s6, s6, 5")
    e("v_add_u32 v2, s6, v2")
    e("v_mul_u32_u24 v2, 896, v2")
    e("v_lshl_add_u32 v2, v3, 3, v2")
    e("s_lshl_b32 s7, s7, 5")
    e("v_add_u32 v2, s7, v2")
    e("buffer_load_dwordx2 v[4:5], v2, s[12:15], 0 offen")
    e("buffer_load_dwordx2 v[6:7], v2, s[12:15], 0 offen offset:16")
    for h in range(16):
        for r in range(4):
            src = 16 + 4 * h + r
            if h == 0:
                e(f"v_lshlrev_b32 v{80+2*r}, 16, v{src}")
                e(f"v_and_b32 v{81+2*r}, 0xffff0000, v{src}")
            else:
                e(f"v_lshlrev_b32 v{88+2*(r&1)}, 16, v{src}")
                e(f"v_and_b32 v{89+2*(r&1)}, 0xffff0000, v{src}")
                e(f"v_add_f32 v{80+2*r}, v{80+2*r}, v{88+2*(r&1)}")
                e(f"v_add_f32 v{81+2*r}, v{81+2*r}, v{89+2*(r&1)}")
    for r in range(4):
        e(f"v_lshlrev_b32 v88, 16, v{4+r}")
        e(f"v_and_b32 v89, 0xffff0000, v{4+r}")
        e(f"v_add_f32 v{80+2*r}, v{80+2*r}, v88")
        e(f"v_add_f32 v{81+2*r}, v{81+2*r}, v89")
        e(f"v_cvt_pk_bf16_f32 v{8+r}, v{80+2*r}, v{81+2*r}")
    e("buffer_store_dwordx2 v[8:9], v2, s[16:19], 0 offen")
    e("buffer_store_dwordx2 v[10:11], v2, s[16:19], 0 offen offset:16")
    stamp(e, opt, 1)
    stamp_flush(e, opt, 2, 8, 2)
    e.label("K3_END")
    e("s_endpgm")
    return [e], [[e]]
```

```python
import sys, json
from emit import *
from common import *
import k1

NAME = "parallel_sum__compressed_kv_cla__dense_activation_silu__prompt"

def build(opt, kernels=("k1", "k2", "k3")):
    hdr = []
    body = []
    kds = []
    probs = []
    def finish(segs, traces):
        done = set()
        for t in traces:
            prev = []
            for sg in t:
                if id(sg) not in done:
                    fix_hazards(sg, prev)
                    done.add(id(sg))
                prev = sg.ins[-40:]
        for n, t in enumerate(traces):
            ins = [i for sg in t for i in sg.ins]
            probs.extend(check_trace("+".join(sg.name for sg in t), ins))
        body.append(".p2align 8\n" + "".join(sg.text() for sg in segs))
    if "k1" in kernels:
        hdr.append("; @launch kernel=proj_kernel grid=(256,1,1) block=(256,1,1) lds=131072")
        finish(*k1.gen_k1(opt))
        kds.append(kd("proj_kernel", 512, 256))
    if "k2" in kernels:
        import k2
        hdr.append(f"; @launch kernel=attn_kernel grid=(256,1,1) block=(256,1,1) lds={k2.LDS_BYTES}")
        finish(*k2.gen_k2(opt))
        kds.append(kd("attn_kernel", 512, 256))
    if "k3" in kernels:
        import k3
        hdr.append(f"; @launch kernel=reduce_kernel grid=({k3.GRID},1,1) block=(256,1,1) lds=0")
        finish(*k3.gen_k3(opt))
        kds.append(kd("reduce_kernel", k3.VGPRS, k3.VGPRS))
    ref = open(f"cdna_kernels/{NAME}.s.ref").read().splitlines()
    top = [l for l in ref if l.startswith(";") and "@launch" not in l and "Override" not in l and "grid=ceil" not in l]
    txt = "\n".join(top) + "\n" + "\n".join(hdr) + "\n"
    txt += '.amdgcn_target "amdgcn-amd-amdhsa--gfx950"\n.text\n'
    for k in ("proj_kernel", "attn_kernel", "reduce_kernel"):
        if any(k in h for h in hdr):
            txt += f".globl {k}\n.type {k},@function\n"
    txt += "".join(body)
    txt += '.section .rodata,"a"\n'
    for k in kds:
        txt += ".p2align 6\n" + k
    return txt, probs

if __name__ == "__main__":
    out = sys.argv[1]
    kernels = sys.argv[2].split(",") if len(sys.argv) > 2 else ("k1", "k2", "k3")
    opt = json.loads(sys.argv[3]) if len(sys.argv) > 3 else {}
    txt, probs = build(opt, kernels)
    for p in probs[:40]:
        print("PROBLEM", p)
    open(out, "w").write(txt)
    print("wrote", out, len(txt), "bytes;", len(probs), "problems")
```

```python
from emit import *
from common import *

LDS_BYTES = 160 * 1024
S_WS, S_WO, S_W2, S_Y1 = 16, 8, 12, 28
V_L16, V_PD = 1, 2
V_DMA, V_DMA2 = 3, 4
V_L0, V_L1, V_VA, V_D0, V_NEGBIG, V_MAX, V_MS = 8, 9, 10, 13, 14, 15, 16
V_T = 18
V_S = (32, 48)
V_P = (64, 72)
V_NM = 80
V_X = 96
V_O = 128
A_Q, A_Q2, A_F, A_HF = 0, 64, 128, 192
S_HEAD, S_QT, S_NH, S_IT, S_T, S_RET, S_DELTA, S_ITH, S_OFFH, S_OFFD = 32, 33, 34, 35, 36, 37, 38, 39, 40, 41
S_KVB, S_W4K, S_PAIR, S_ITSW, S_ITSIG, S_PEND = 42, 43, 48, 49, 50, 51
S_OFF = 44
THR = 16.0
VSLOT = {32: 0x20000, 33: 0x24000}
S_NEG = 52
KVM = [""]


def setup_s(e):
    e(f"s_lshl_b32 s4, s{S_QT}, 2")
    e(f"s_sub_u32 s{S_NH}, 30, s4")
    e(f"s_sub_u32 s6, 15, s{S_QT}")
    e(f"s_cmp_ge_u32 s{S_QT}, 8")
    e(f"s_cselect_b32 s{S_NH}, 0, s{S_NH}")
    e(f"s_cselect_b32 s{S_PAIR}, s6, s{S_QT}")
    e(f"s_lshl_b32 s5, s{S_HEAD}, 3")
    e(f"s_add_u32 s{S_PAIR}, s{S_PAIR}, s5")
    e(f"s_lshl_b32 s{S_W4K}, s3, 12")
    e(f"s_lshl_b32 s{S_KVB}, s{S_HEAD}, 21")
    e(f"s_sub_u32 s5, 29, s{S_NH}")
    e("s_lshl_b32 s5, s5, 15")
    e(f"s_add_u32 s{S_OFFH}, s5, s{S_KVB}")
    e("s_lshl_b32 s5, s4, 15")
    e(f"s_add_u32 s{S_OFFD}, s5, s{S_KVB}")
    e(f"s_sub_u32 s5, s{S_NH}, 6")
    e("s_lshr_b32 s5, s5, 2")
    e(f"s_cmp_ge_u32 s{S_NH}, 6")
    e(f"s_cselect_b32 s{S_ITH}, s5, 99")
    e(f"s_lshr_b32 s5, s{S_NH}, 2")
    e(f"s_cmp_ge_u32 s{S_QT}, 8")
    e(f"s_cselect_b32 s{S_ITSW}, 99, s5")
    e(f"s_add_u32 s{S_ITSIG}, s{S_ITSW}, 1")
    e("s_cmp_eq_u32 s3, 0")
    e(f"s_cselect_b32 s{S_ITSIG}, s{S_ITSIG}, 99")
    e(f"s_mov_b32 s{S_NEG}, 0xffff8000")
    e(f"s_mov_b32 s{S_PEND}, 0")
    e(f"s_mov_b32 s{S_IT}, 0")
    e(f"s_mov_b32 s{S_T}, {f32(THR)}")


def setup_dma(e):
    e(f"v_lshlrev_b32 v{V_L16}, 4, v0")
    e(f"v_add_u32 v{V_DMA}, s{S_W4K}, v{V_L16}")
    e(f"v_add_u32 v{V_DMA2}, 0x4000, v{V_DMA}")


def setup_v(e):
    e(f"s_mul_i32 s5, s{S_QT}, 112")
    e("s_mul_i32 s6, s3, 28")
    e("s_add_u32 s5, s5, s6")
    e(f"v_min_u32 v{V_T}, 27, v0")
    e(f"v_add_u32 v{V_T}, s5, v{V_T}")
    e(f"s_mul_i32 s5, s{S_HEAD}, 229376")
    e(f"v_lshl_add_u32 v{V_X+1}, v{V_T}, 7, s5")
    e("s_mul_i32 s6, s3, 13")
    e(f"v_min_u32 v{V_T}, 12, v0")
    e(f"v_add_u32 v{V_T}, s6, v{V_T}")
    e(f"v_min_u32 v{V_T}, 48, v{V_T}")
    e(f"s_mul_i32 s5, s{S_QT}, 49")
    e(f"v_add_u32 v{V_T}, s5, v{V_T}")
    e(f"s_mul_i32 s5, s{S_HEAD}, 100352")
    e(f"v_lshl_add_u32 v{V_X+2}, v{V_T}, 7, s5")
    e(f"v_add_u32 v{V_VA}, 0x10000, v{V_L16}")
    e(f"v_and_b32 v{V_T}, 31, v0")
    e(f"v_lshrrev_b32 v{V_T+1}, 5, v0")
    e(f"v_lshlrev_b32 v{V_T+1}, 2, v{V_T+1}")
    e(f"v_sub_u32 v{V_D0}, v{V_T}, v{V_T+1}")
    e(f"v_mov_b32 v{V_NEGBIG}, {f32(-1e30)}")
    e(f"v_mov_b64 {v(V_X+4,2)}, 0")
    e(f"v_mov_b64 {v(V_X+6,2)}, 0")


def idx_ops(dst, n):
    return [
        f"s_mov_b32 s{dst}, {(29-n) << 15}",
        f"s_cmp_gt_u32 s{S_NH}, {n}",
        f"s_cselect_b32 s{dst}, {(30+n) << 15}, s{dst}",
        f"s_add_u32 s{dst}, s{dst}, s{S_KVB}",
    ]


def dmaK(slot, off, tag="dma"):
    return [f"s_add_u32 m0, s{S_W4K}, {slot*16384}"] + [
        (f"buffer_load_dwordx4 v{V_DMA}, s[{S_WS}:{S_WS+3}], s{off} offen offset:{j*1024}{KVM[0]} lds", tag) for j in range(4)]


def dmaV(base, off, tag="dma"):
    return [f"s_add_u32 m0, s{S_W4K}, {base}"] + [
        (f"buffer_load_dwordx4 v{V_DMA2}, s[{S_WS}:{S_WS+3}], s{off} offen offset:{j*1024}{KVM[0]} lds", tag) for j in range(4)]


def first_loads():
    out = []
    for n in range(4):
        out.append(idx_ops(S_OFF + n, n))
    seq = [out[0] + dmaK(0, S_OFF + 0, "k0"), dmaV(0x10000, S_OFF + 0, "v0"), out[1] + dmaK(1, S_OFF + 1, "k1"),
           dmaV(0x14000, S_OFF + 1, "v1"), out[2] + dmaK(2, S_OFF + 2, "k2"), out[3] + dmaK(3, S_OFF + 3, "k3")]
    return seq


def init_state(e):
    for r in range(0, 128, 2):
        e(f"v_mov_b64 {v(V_O+r,2)}, 0")
    for r in range(0, 16, 2):
        e(f"v_mov_b64 {v(V_NM+r,2)}, 0")
    e(f"v_mov_b64 {v(V_L0,2)}, 0")


def gen_attn(e, opt, end_label, finish=None):
    D = opt.get("a_depth", 14)
    WG = opt.get("a_waitgrp", 4)
    YM = opt.get("y_store_mod", "")
    NEPF = 0 if opt.get("no_epf") else 2

    def rd(f, kslot, vbase):
        d = a(A_F + (f % 16) * 4, 4)
        if f < 16:
            return f"ds_read_b128 {d}, v{V_L16} offset:{kslot*16384 + f*1024}"
        g, dt = divmod(f - 16, 8)
        return f"ds_read_b128 {d}, v{V_VA} offset:{vbase + (dt*2+g)*1024}"

    def mf(f, par):
        fr = a(A_F + (f % 16) * 4, 4)
        if f < 16:
            S = v(V_S[par ^ 1], 16)
            C = v(V_NM, 16) if f == 0 else S
            return f"{MFMA} {S}, {fr}, {a(A_Q+4*f,4)}, {C}"
        g, dt = divmod(f - 16, 8)
        O = v(V_O + dt * 16, 16)
        return f"{MFMA} {O}, {fr}, {v(V_P[par]+4*g,4)}, {O}"

    def max_ops(par):
        S = V_S[par]
        t = V_T
        ops = [f"v_max3_f32 v{t+k}, v{S+3*k}, v{S+3*k+1}, v{S+3*k+2}" for k in range(5)]
        ops += [f"v_max3_f32 v{t}, v{t}, v{t+1}, v{t+2}", f"v_max3_f32 v{t+3}, v{t+3}, v{t+4}, v{S+15}",
                f"v_max_f32 v{V_MAX}, v{t}, v{t+3}", f"v_cmp_lt_f32 vcc, s{S_T}, v{V_MAX}"]
        return ops

    def soft_ops(par):
        S, P = V_S[par], V_P[par]
        ops = []
        for k in range(9):
            if k < 8:
                ops += [f"v_exp_f32 v{S+2*k}, v{S+2*k}", f"v_exp_f32 v{S+2*k+1}, v{S+2*k+1}"]
            if k > 0:
                j = k - 1
                ops += [f"v_cvt_pk_bf16_f32 v{P+j}, v{S+2*j}, v{S+2*j+1}",
                        f"v_add_f32 v{V_L0}, v{V_L0}, v{S+2*j}", f"v_add_f32 v{V_L1}, v{V_L1}, v{S+2*j+1}"]
        return ops

    def mask_ops(par, t):
        S = V_S[par]
        ops = [[f"s_sub_u32 s54, {t}, s3", "s_lshl_b32 s54, s54, 5", f"v_subrev_u32 v{V_X}, s54, v{V_D0}"]]
        for h in range(4):
            for r in range(4 * h, 4 * h + 4):
                ops.append(f"v_cmp_le_i32 s[{64+2*(r%8)}:{65+2*(r%8)}], {8*(r>>2)+(r&3)}, v{V_X}")
            if h > 0:
                for r in range(4 * h - 4, 4 * h):
                    ops.append(f"v_cndmask_b32 v{S+r}, v{V_NEGBIG}, v{S+r}, s[{64+2*(r%8)}:{65+2*(r%8)}]")
        ops.append("s_nop 0")
        for r in range(12, 16):
            ops.append(f"v_cndmask_b32 v{S+r}, v{V_NEGBIG}, v{S+r}, s[{64+2*(r%8)}:{65+2*(r%8)}]")
        return ops

    def waits(fill, lo, hi, shift=0):
        for f in range(lo, hi, WG):
            r = a(A_F + ((f + WG - 1) % 16) * 4, 4)
            fill.setdefault(f - 1 - shift, []).append(lambda e, r=r: wait_reg(e, r))

    def place(fill, ops, g0, step=2):
        fill.setdefault(g0, []).append(ops[0])
        for j, d in enumerate(ops[1:]):
            fill.setdefault(g0 + 1 + step * j, []).append(d)

    rare_sites = {0: [], 1: []}
    stubs = Seg("a_stubs")

    def rare_check(e, par, name):
        k = len(rare_sites[par])
        rare_sites[par].append(name)
        e(f"s_cbranch_vccnz A_ST_{name}")
        e.label(f"A_RET_{name}")
        stubs.label(f"A_ST_{name}")
        stubs(f"s_mov_b32 s{S_RET}, {k}")
        stubs(f"s_branch A_RARE{par}")

    V_EV, V_EA = V_X + 4, V_X + 8

    def e_setup():
        ops = ["v_lshrrev_b32 v24, 3, v0", "v_mul_u32_u24 v24, 896, v24", "v_bfe_u32 v25, v0, 2, 1", "v_bfe_u32 v26, v0, 4, 1",
               "v_xor_b32 v25, v25, v26", "v_lshl_add_u32 v24, v25, 6, v24", "v_and_b32 v25, 3, v0",
               f"v_lshl_add_u32 v{V_EV}, v25, 4, v24"]
        ops += [f"v_add_u32 v{V_EV+j}, {j*7168 - j*1024}, v{V_EV}" for j in range(1, 4)]
        ops += [f"s_mul_i32 s56, s{S_HEAD}, 229376", "s_mul_i32 s4, s3, 57344", "s_add_u32 s56, s56, s4",
                f"s_mul_i32 s57, s{S_HEAD}, 100352", "s_mul_i32 s4, s3, 28672", "s_add_u32 s57, s57, s4",
                "s_lshl_b32 s60, s3, 13"]
        ops += ["v_lshrrev_b32 v24, 5, v0", "v_bfe_u32 v25, v0, 2, 2", "v_lshl_add_u32 v24, v24, 2, v25", "v_lshlrev_b32 v24, 7, v24",
                "v_lshl_add_u32 v24, v26, 5, v24", "v_and_b32 v25, 3, v0", "v_lshl_add_u32 v24, v25, 3, v24", "v_bfe_u32 v25, v0, 3, 1",
                f"v_lshl_add_u32 v{V_EA}, v25, 6, v24", f"v_xor_b32 v{V_EA+1}, 64, v{V_EA}"]
        ops += [f"s_lshl_b32 s62, s{S_HEAD}, 6", f"s_lshl_b32 s4, s{S_QT}, 2", "s_add_u32 s62, s62, s4", "s_add_u32 s62, s62, s3",
                "s_mul_i32 s62, s62, 28672", f"s_add_u32 s62, s62, {Y_OFF}"]
        return ops

    def e_dma(tag="edma"):
        ops = []
        for grp in range(2):
            ops.append(["s_add_u32 s61, s58, s60", f"s_add_u32 m0, s61, {grp*4096}", f"s_add_u32 s61, s56, {grp*32*896}"])
            for j in range(4):
                ops.append((f"buffer_load_dwordx4 v{V_EV+j}, s[{S_WO}:{S_WO+3}], s61 offen offset:{j*1024} lds", tag))
        ops.append([f"s_add_u32 m0, s59, s{S_W4K}", "s_add_u32 s56, s56, 128"])
        for j in range(4):
            ops.append((f"buffer_load_dwordx4 v{V_EV+j}, s[{S_W2}:{S_W2+3}], s57 offen offset:{j*1024} lds", tag))
        ops.append("s_add_u32 s57, s57, 128")
        return ops

    EO = (0x8000, 0x14000, 0x20000)
    E2 = (0x10000, 0x1c000, 0x0)

    e.wait_tag("q")
    e.wait_tag("k0")
    e("s_barrier")
    for f in range(D):
        e(rd(f, 0, 0))
    spine = [mf(f, 1) for f in range(16)]
    fill = {}
    waits(fill, 0, 16)
    for f in range(16):
        nf = f + D
        if nf == 16:
            fill.setdefault(f, []).extend([lambda e: e.wait_tag("k1"), lambda e: e.wait(lgkm=0), "s_barrier"])
        fill.setdefault(f, []).append(rd(nf % 16, 0 if nf < 16 else 1, 0))
    weave(e, spine, fill)
    run(e, idx_ops(S_OFF + 0, 4))
    e(f"s_cmp_gt_u32 s{S_NH}, 4")
    e(f"s_cselect_b32 s{S_DELTA}, 0x8000, s{S_NEG}")
    run(e, dmaK(0, S_OFF + 0))
    run(e, max_ops(0))
    stamp(e, opt, 1, raw=True)
    stamp(e, opt, "a_loop", raw=True)
    e(f"s_mov_b32 s{S_RET}, 0")
    e("s_branch A_FIRST")
    pro = e
    stateL, stateV = list(e.lds), [("dma", frozenset())] * 63

    def step(e, p, n=None):
        par = p & 1
        nm = f"L{p}" if n is None else f"P{n}"
        if p == 1:
            e(f"s_cmp_eq_u32 s{S_IT}, s{S_ITSW}")
            e(f"s_cbranch_scc1 A_SW1")
            e.label(f"A_SW1_RET_{nm}")
        spine = [mf(f, par) for f in range(32)]
        fill = {}
        waits(fill, 0, 32)
        vb = p * 16384 if n not in VSLOT else VSLOT[n] - 0x10000
        gb = 32 - D
        if n == 32:
            fill.setdefault(-1, []).append(f"v_add_u32 v{V_VA}, 0x10000, v{V_VA}")
            vb = 0
        for f in range(32):
            nf = f + D
            if nf == 32 and (n is None or n <= 30):
                vm = (8 + (NEPF if p in (0, 3) else 0)) if (n is None or n < 29) else (16 if n == 29 else 0)
                fill.setdefault(f, []).extend([lambda e, vm=vm: e.wait_force(vm=vm), "s_barrier"])
            if nf < 32:
                fill.setdefault(f, []).append(rd(nf, (p + 1) % 4, vb))
            elif n != 32:
                fill.setdefault(f, []).append(rd(nf - 32, (p + 2) % 4, 0))
        if n is None or n <= 29:
            place(fill, dmaV(0x10000 + ((p + 2) % 4) * 16384, S_OFF + (p + 2) % 4), 0)
        if n is None or n <= 28:
            o = [f"s_add_u32 s{S_OFF+(p+1)%4}, s{S_OFF+p}, s{S_DELTA}"]
            if p == 1:
                d = S_OFF + 2
                o += [[f"s_cmp_eq_u32 s{S_IT}, s{S_ITH}", f"s_cselect_b32 s{d}, s{S_OFFH}, s{d}", f"s_cselect_b32 s{S_DELTA}, s{S_NEG}, s{S_DELTA}"],
                      [f"s_cmp_eq_u32 s{S_IT}, 6", f"s_cselect_b32 s{d}, s{S_OFFD}, s{d}", f"s_cselect_b32 s{S_DELTA}, 0x8000, s{S_DELTA}"]]
            else:
                pass
            place(fill, dmaK((p + 1) % 4, S_OFF + (p + 1) % 4), gb, 3)
            pour(fill, o, 9, gb)
        if n == 29:
            place(fill, dmaV(VSLOT[32], S_OFF + 0), 8, 1)
            place(fill, dmaV(VSLOT[33], S_OFF + 1), 13, 1)
        if n == 28:
            pour(fill, e_setup(), 9, 31)
        if n == 30:
            fill.setdefault(gb, []).extend([f"s_mov_b32 s58, {EO[0]}", f"s_mov_b32 s59, {E2[0]}"])
            pour(fill, e_dma("e0"), gb + 1, 32)
        if n is None and p == 2:
            fill.setdefault(9, []).extend([f"s_cmp_eq_u32 s{S_IT}, s{S_ITSIG}", "s_cbranch_scc1 A_SIG", "A_SIG_RET:"])
        if n is None and p == 3 and NEPF:
            fill.setdefault(10, []).append((f"buffer_load_dword v{V_PD}, v{V_X+1}, s[{S_WO}:{S_WO+3}], 0 offen", "pf"))
            fill.setdefault(12, []).append((f"buffer_load_dword v{V_PD}, v{V_X+2}, s[{S_W2}:{S_W2+3}], 0 offen", "pf"))
        so = soft_ops(par)
        mo = (mask_ops(par ^ 1, n - 29) if n is not None and n >= 29 else []) + max_ops(par ^ 1)
        sa = [x for x in so if not x.startswith("v_add")]
        pour(fill, sa[:14], 0, 13)
        pour(fill, sa[14:], 13, 23)
        pour(fill, mo, 19 if len(mo) > 9 else 21, 32)
        for x in so:
            if x.startswith("v_add"):
                src = x.split(",")[-1].strip()
                g0 = [g for g in fill for y in fill[g] if isinstance(y, str) and y.startswith(f"v_exp_f32 {src},")][0]
                g = min(range(g0 + 1, 32), key=lambda g: (load_of(fill, g), g))
                fill[g].append(x)
        if opt.get("verbose"):
            print(gap_report(f"step {nm}", fill, 32), [load_of(fill, g) for g in range(32)])
        weave(e, spine, fill)
        if p == 1:
            e(f"s_cmp_eq_u32 s{S_IT}, s{S_ITSW}")
            e("s_cbranch_scc1 A_SW2")
        rare_check(e, par, nm)

    lp = Seg("a_loop", stateL, stateV)
    lp.label("A_LOOP")
    for p in range(4):
        step(lp, p)
    lp(f"s_add_u32 s{S_IT}, s{S_IT}, 1")
    lp(f"s_cmp_lt_u32 s{S_IT}, 7")
    lp("s_cbranch_scc1 A_LOOP")
    assert lp.lds == stateL

    peel = {}
    for n in range(28, 33):
        sg = Seg(f"a_p{n}", stateL, stateV)
        step(sg, n % 4, n)
        if n >= 29 and n < 32:
            sg(f"s_cmp_eq_u32 s3, {n-29}")
            sg(f"s_cbranch_scc1 A_TAILW{n-29}")
        peel[n] = sg

    def signal(e):
        flag_line(e, 55, FL_PAIR, S_PAIR)
        flag_set(e, S_WS, 55, 1, V_X + 12)
        e(f"s_mov_b32 s{S_PEND}, 0")

    def tail_body(e, par):
        e.wait(lgkm=0)
        for f in range(16, 16 + D):
            e(rd(f, 0, 0))
        so = soft_ops(par)
        run(e, so[:22])
        spine = [mf(f, par) for f in range(16, 32)]
        fill = {}
        waits(fill, 16, 32, 16)
        for f in range(16, 32):
            if f + D < 32:
                fill.setdefault(f - 16, []).append(rd(f + D, 0, 0))
        pour(fill, so[22:], 0, 7)
        weave(e, spine, fill)

    t3 = Seg("a_tail1", stateL, stateV)
    t3(f"v_add_u32 v{V_VA}, 0x4000, v{V_VA}")
    t3.label("A_TAIL1")
    tail_body(t3, 1)
    t3.label("A_FIN")
    t0 = Seg("a_tail0", stateL, stateV)
    t0.label("A_TAILW0")
    t0(f"v_add_u32 v{V_VA}, 0x8000, v{V_VA}")
    t0("s_branch A_TAIL0")
    t0.label("A_TAILW1")
    t0(f"v_add_u32 v{V_VA}, 0xc000, v{V_VA}")
    t0("s_branch A_TAIL1")
    t0.label("A_TAILW2")
    t0(f"v_add_u32 v{V_VA}, 0x10000, v{V_VA}")
    t0.label("A_TAIL0")
    tail_body(t0, 0)
    t0("s_cmp_lg_u32 s3, 0")
    t0("s_cbranch_scc1 A_FIN")
    t0.wait_force(vm=0)
    t0("s_barrier")
    t0(f"s_mov_b32 s58, {EO[0]}")
    t0(f"s_mov_b32 s59, {E2[0]}")
    run(t0, e_dma("e0"))
    t0(f"s_cmp_eq_u32 s{S_PEND}, 0")
    t0("s_cbranch_scc1 A_FIN")
    signal(t0)
    t0("s_branch A_FIN")

    def ret_chain(e, names):
        for k, nm in enumerate(names[:-1]):
            e(f"s_cmp_eq_u32 s{S_RET}, {k}")
            e(f"s_cbranch_scc1 A_RET_{nm}")
        e(f"s_branch A_RET_{names[-1]}")

    def rare(par):
        e = Seg(f"a_rare{par}", stateL, stateV)
        e.label(f"A_RARE{par}")
        S = V_S[par ^ 1]
        t = V_T
        e(f"v_mov_b32 v{t}, v{V_MAX}")
        e.nop(2)
        e(f"v_permlane32_swap_b32 v{V_MAX}, v{t}")
        e(f"v_max3_f32 v{t}, v{V_MAX}, v{t}, 0")
        e(f"v_exp_f32 v{t+1}, -v{t}")
        for r in range(16):
            e(f"v_sub_f32 v{S+r}, v{S+r}, v{t}")
        for r in range(16):
            e(f"v_sub_f32 v{V_NM+r}, v{V_NM+r}, v{t}")
        e(f"v_mul_f32 v{V_L0}, v{V_L0}, v{t+1}")
        e(f"v_mul_f32 v{V_L1}, v{V_L1}, v{t+1}")
        for r in range(128):
            e(f"v_mul_f32 v{V_O+r}, v{V_O+r}, v{t+1}")
        ret_chain(e, rare_sites[par])
        return e

    r0, r1 = rare(0), rare(1)

    fs = Seg("a_first", stateL, stateV)
    e = fs
    e.label("A_FIRST")
    t = V_T
    e(f"v_mov_b32 v{t}, v{V_MAX}")
    e.nop(2)
    e(f"v_permlane32_swap_b32 v{V_MAX}, v{t}")
    e(f"v_max_f32 v{t}, v{V_MAX}, v{t}")
    for r in range(16):
        e(f"v_sub_f32 v{V_S[0]+r}, v{V_S[0]+r}, v{t}")
    for r in range(16):
        e(f"v_sub_f32 v{V_NM+r}, 0, v{t}")
    e(f"s_cmp_eq_u32 s{S_RET}, 0")
    e("s_cbranch_scc1 A_LOOP")
    e(f"s_cmp_eq_u32 s{S_IT}, 7")
    e("s_cbranch_scc1 A_RET_P29")
    e("s_branch A_RET_L1")

    sw1 = Seg("a_sw1", stateL, stateV)
    e = sw1
    e.label("A_SW1")
    for r in range(64):
        e(f"v_accvgpr_mov_b32 a{A_Q+r}, a{A_Q2+r}")
    e(f"v_mov_b32 v{V_MS}, v{V_NM}")
    for r in range(0, 16, 2):
        e(f"v_mov_b64 {v(V_NM+r,2)}, 0")
    e(f"s_cmp_eq_u32 s{S_IT}, 7")
    e("s_cbranch_scc1 A_SW1_RET_P29")
    e("s_branch A_SW1_RET_L1")

    def part_addr(e):
        e(f"s_lshl_b32 s54, s{S_PAIR}, 2")
        e("s_add_u32 s54, s54, s3")
        e("s_lshl_b32 s55, s54, 9")
        e(f"s_add_u32 s55, s55, {ML_OFF}")
        e("s_lshl_b32 s54, s54, 14")
        e(f"s_add_u32 s54, s54, {OP_OFF}")

    sw2 = Seg("a_sw2", stateL, stateV)
    e = sw2
    e.label("A_SW2")
    part_addr(e)
    t = V_X + 12
    e(f"v_add_f32 v{V_L0}, v{V_L0}, v{V_L1}")
    e(f"v_mov_b32 v{t}, v{V_L0}")
    e(f"v_lshrrev_b32 v{t+2}, 2, v{V_L16}")
    e.nop(1)
    e(f"v_permlane32_swap_b32 v{V_L0}, v{t}")
    e(f"v_add_f32 v{V_L0}, v{V_L0}, v{t}")
    e(f"v_rcp_f32 v{t}, v{V_L0}")
    e(f"buffer_store_dword v{V_MS}, v{t+2}, s[{S_WS}:{S_WS+3}], s55 offen sc1")
    e(f"buffer_store_dword v{V_L0}, v{t+2}, s[{S_WS}:{S_WS+3}], s55 offen offset:256 sc1")
    e(f"v_mov_b32 v{t+1}, v{t}")
    e.nop(4)
    for k in range(16):
        if k and k % 4 == 0:
            e("s_add_u32 s54, s54, 4096")
        u = t + 4 + (k % 2) * 4
        for r in range(4):
            o = V_O + 8 * k + 2 * r
            e(f"v_pk_mul_f32 {v(o,2)}, {v(o,2)}, {v(t,2)}")
        for r in range(4):
            o = V_O + 8 * k + 2 * r
            e(f"v_cvt_pk_bf16_f32 v{u+r}, v{o}, v{o+1}")
        for r in range(4):
            e(f"v_mov_b64 {v(V_O+8*k+2*r,2)}, 0")
        e(f"buffer_store_dwordx4 {v(u,4)}, v{V_L16}, s[{S_WS}:{S_WS+3}], s54 offen offset:{(k%4)*1024} sc1")
    e(f"v_mov_b64 {v(V_L0,2)}, 0")
    e(f"s_mov_b32 s{S_PEND}, 1")
    e(f"s_mov_b32 s{S_RET}, 1")
    e("s_branch A_FIRST")

    sig = Seg("a_sig", stateL, stateV)
    sig.label("A_SIG")
    signal(sig)
    sig("s_branch A_SIG_RET")

    e = Seg("a_fin", [], stateV)
    stamp(e, opt, 2)
    stamp(e, opt, "a_fin")
    t = V_T
    CT = V_S[0]
    e(f"v_add_f32 v{V_L0}, v{V_L0}, v{V_L1}")
    e(f"v_mov_b32 v{t}, v{V_L0}")
    e(f"s_cmp_ge_u32 s{S_QT}, 8")
    e.nop(1)
    e(f"v_permlane32_swap_b32 v{V_L0}, v{t}")
    e(f"v_add_f32 v{V_L0}, v{V_L0}, v{t}")
    e("s_cbranch_scc1 A_MERGE")
    e(f"v_rcp_f32 v{t}, v{V_L0}")
    e.nop(1)
    e(f"v_mov_b32 v{t+1}, v{t}")
    e.nop(4)
    for k in range(64):
        e(f"v_pk_mul_f32 {v(V_O+2*k,2)}, {v(V_O+2*k,2)}, {v(t,2)}")
        if k:
            e(f"v_cvt_pk_bf16_f32 v{CT+k-1}, v{V_O+2*k-2}, v{V_O+2*k-1}")
    e(f"v_cvt_pk_bf16_f32 v{CT+63}, v{V_O+126}, v{V_O+127}")
    e("s_branch A_EPI")
    fin = e

    mg = Seg("a_merge", [], stateV)
    e = mg
    e.label("A_MERGE")
    flag_line(e, 55, FL_PAIR, S_PAIR)
    e(f"v_mov_b32 v{t}, 8")
    e("s_mov_b32 s53, 0")
    e.label("A_POLL")
    e(f"buffer_load_dwordx2 {v(t+2,2)}, v{t}, s[{S_WS}:{S_WS+3}], s55 offen sc1")
    e.wait_force(vm=0)
    flag_test(e, t + 2)
    e("s_cbranch_scc1 A_POLL_OK")
    e("s_sleep 4")
    e("s_add_u32 s53, s53, 1")
    e(f"s_cmp_lt_u32 s53, {opt.get('poll_max', 200000)}")
    e("s_cbranch_scc1 A_POLL")
    e.label("A_POLL_OK")
    part_addr(e)
    e(f"v_lshrrev_b32 v{t}, 2, v{V_L16}")
    e(f"buffer_load_dword v{t+1}, v{t}, s[{S_WS}:{S_WS+3}], s55 offen sc1")
    e(f"buffer_load_dword v{t+2}, v{t}, s[{S_WS}:{S_WS+3}], s55 offen offset:256 sc1")
    e(f"v_mov_b32 v{V_MS}, v{V_NM}")
    for k in range(16):
        if k and k % 4 == 0:
            e("s_add_u32 s54, s54, 4096")
        e(f"buffer_load_dwordx4 {v(CT+4*k,4)}, v{V_L16}, s[{S_WS}:{S_WS+3}], s54 offen offset:{(k%4)*1024} sc1")
    e(f"v_min_f32 v{t+3}, v{V_MS}, v{t+1}")
    e(f"v_sub_f32 v{t+4}, v{t+3}, v{V_MS}")
    e(f"v_sub_f32 v{t+6}, v{t+3}, v{t+1}")
    e(f"v_exp_f32 v{t+4}, v{t+4}")
    e(f"v_exp_f32 v{t+6}, v{t+6}")
    e.nop(1)
    e(f"v_mul_f32 v{t+6}, v{t+6}, v{t+2}")
    e(f"v_fma_f32 v{t+3}, v{V_L0}, v{t+4}, v{t+6}")
    e(f"v_rcp_f32 v{t+3}, v{t+3}")
    e.nop(1)
    e(f"v_mul_f32 v{t+4}, v{t+4}, v{t+3}")
    e(f"v_mul_f32 v{t+6}, v{t+6}, v{t+3}")
    e(f"v_mov_b32 v{t+5}, v{t+4}")
    e(f"v_mov_b32 v{t+7}, v{t+6}")
    for k in range(64):
        e(f"v_pk_mul_f32 {v(V_O+2*k,2)}, {v(V_O+2*k,2)}, {v(t+4,2)}")
    for k in range(64):
        u = t + 8 + (k % 2) * 2
        e(f"v_lshlrev_b32 v{u}, 16, v{CT+k}")
        e(f"v_and_b32 v{u+1}, 0xffff0000, v{CT+k}")
        e(f"v_pk_fma_f32 {v(V_O+2*k,2)}, {v(u,2)}, {v(t+6,2)}, {v(V_O+2*k,2)}")
        e(f"v_cvt_pk_bf16_f32 v{CT+k}, v{V_O+2*k}, v{V_O+2*k+1}")

    e = Seg("a_epi", [], [])
    e.label("A_EPI")
    stamp(e, opt, 3)
    stamp(e, opt, "a_epi")
    YA = (V_O, V_O + 16)
    YP = V_O + 32
    VC = V_O + 48
    ED = opt.get("e_depth", 7)
    NFE = 46

    def epos(f):
        return A_F + (f % 8) * 4 if f < 40 else A_F + 32 + (f - 40) * 4

    def erd(f):
        f %= NFE
        seg, ks = divmod(f, 23)
        base, k = (VC + seg, ks) if ks < 16 else (VC + 2 + seg, ks - 16)
        return [f"ds_read_b64_tr_b16 {a(epos(f)+2*u,2)}, v{base} offset:{(16*k+8*u)*128}" for u in range(2)]

    def eadv():
        return [f"v_add_u32 v{VC}, s64, v{V_EA}", f"v_add_u32 v{VC+1}, s64, v{V_EA+1}",
                f"v_add_u32 v{VC+2}, s67, v{V_EA}", f"v_add_u32 v{VC+3}, s67, v{V_EA+1}"]

    def erot():
        return ["s_mov_b32 s58, s66", "s_mov_b32 s59, s69", "s_mov_b32 s66, s64", "s_mov_b32 s69, s67",
                "s_mov_b32 s64, s65", "s_mov_b32 s67, s68", "s_mov_b32 s65, s58", "s_mov_b32 s68, s59"]

    def ecvt(seg, off):
        ops = [f"v_cvt_pk_bf16_f32 v{YP+8*seg+r}, v{YA[seg]+2*r}, v{YA[seg]+2*r+1}" for r in range(8)]
        sr = S_Y1 if seg else S_WS
        ops += [(f"buffer_store_dwordx4 {v(YP+8*seg+4*c,4)}, v{V_L16}, s[{sr}:{sr+3}], s62 offen offset:{off+c*1024}{YM}", "st") for c in range(2)]
        return ops

    for k in range(3):
        e(f"s_mov_b32 s{64+k}, {EO[k]}")
        e(f"s_mov_b32 s{67+k}, {E2[k]}")
    e("s_mov_b32 s63, 0")
    run(e, eadv())
    e.wait_force(vm=0)
    e("s_barrier")
    e(f"s_mov_b32 s58, {EO[1]}")
    e(f"s_mov_b32 s59, {E2[1]}")
    for f in range(ED):
        run(e, erd(f))
    run(e, e_dma())
    e(f"s_mov_b32 s{S_Y1}, s{S_WS}")
    e(f"s_mov_b32 s{S_Y1+1}, s{S_WS+1}")
    e(f"s_mov_b32 s{S_Y1+2}, 0")
    e(f"s_mov_b32 s{S_Y1+3}, 0x20000")
    e("s_sub_u32 s62, s62, 4096")
    epro = e

    lpe = Seg("a_eloop", e.lds, [("x", frozenset())] * 63)
    e = lpe
    e.label("A_ELOOP")
    spine, fill = [], {}
    for f in range(NFE):
        seg, ks = divmod(f, 23)
        B = v(CT + 4 * ks, 4) if ks < 16 else a(A_HF + 4 * (ks - 16), 4)
        acc = v(YA[seg], 16)
        spine.append(f"{MFMA} {acc}, {a(epos(f),4)}, {B}, {'0' if ks == 0 else acc}")
        nf = f + ED
        if nf == NFE:
            fill.setdefault(f, []).extend([lambda e: e.wait_force(vm=16, lgkm=0), "s_barrier"] + eadv())
        fill.setdefault(f, []).extend(erd(nf))
    for f in range(0, NFE, 2):
        r = a(epos(min(f + 1, NFE - 1)), 4)
        fill.setdefault(f - 1, []).append(lambda e, r=r: wait_reg(e, r))
    pour(fill, erot() + e_dma(), 0, 24)
    pour(fill, ecvt(1, 2048) + [["s_add_u32 s62, s62, 4096", f"s_mov_b32 s{S_Y1+2}, {WS_BYTES:#x}"]], 4, 22)
    pour(fill, ecvt(0, 0), 27, 38)
    if opt.get("verbose"):
        print(gap_report("eloop", fill, NFE), [load_of(fill, g) for g in range(NFE)])
    weave(e, spine, fill)
    e("s_add_u32 s63, s63, 1")
    e("s_cmp_lt_u32 s63, 7")
    e("s_cbranch_scc1 A_ELOOP")
    assert lpe.lds == epro.lds

    e = Seg("a_end", lpe.lds, lpe.vm)
    e.nop(12)
    run(e, ecvt(1, 2048))
    if finish:
        finish(e)
    e.label(end_label)
    e("s_endpgm")
    end = e

    pl = [peel[n] for n in range(28, 33)]
    segs = [pro, lp] + pl + [t3, fin, mg, epro, lpe, end, t0, stubs, r0, r1, fs, sw1, sw2, sig]
    traces = [
        [pro, fs, lp, lp] + pl + [t3, fin, epro, lpe, lpe, end],
        [lp, peel[28], peel[29], t0, fin, mg, epro],
        [lp, r1, lp], [peel[28], r0, peel[29]], [peel[28], sw1, peel[29], sw2, fs, peel[30]], [sig], [stubs],
        [peel[30], peel[31], t0], [peel[29], peel[30], t3],
    ]
    return segs, traces
```

```python
MB = 1 << 20
KV_OFF = 0
Q_OFF = 32 * MB
H_OFF = 48 * MB
OP_OFF = 56 * MB
ML_OFF = 72 * MB
Y_OFF = 80 * MB
XN_OFF = 112 * MB
FL_OFF = 116 * MB
STAMP_OFF = 128 * MB
DUMMY_OFF = 192 * MB
WS_BYTES = 256 * MB

X_BYTES = 2048 * 448 * 2
CKV_BYTES = 2048 * 1024 * 2
WQ_BYTES = 448 * 4096 * 2
WU_BYTES = 1024 * 4096 * 2
WO_BYTES = 4096 * 448 * 2
W1_BYTES = 448 * 1792 * 2
W2_BYTES = 1792 * 448 * 2
OUT_BYTES = 2048 * 448 * 2

MFMA = "v_mfma_f32_32x32x16_bf16"
QSCALE = 1.4426950408889634 / 16.0


def v(b, n=1):
    return f"v{b}" if n == 1 else f"v[{b}:{b+n-1}]"


def a(b, n=1):
    return f"a{b}" if n == 1 else f"a[{b}:{b+n-1}]"


def s(b, n=1):
    return f"s{b}" if n == 1 else f"s[{b}:{b+n-1}]"


def srd(e, d, ptr, nbytes):
    e(f"s_mov_b32 s{d}, s{ptr}")
    e(f"s_mov_b32 s{d+1}, s{ptr+1}")
    e(f"s_mov_b32 s{d+2}, {nbytes:#x}")
    e(f"s_mov_b32 s{d+3}, 0x20000")


def load_kernargs(e):
    e("s_load_dwordx16 s[64:79], s[0:1], 0")
    e("s_load_dwordx8 s[80:87], s[0:1], 64")


P_X, P_CKV, P_WQ, P_WUK, P_WUV, P_WO, P_W1, P_W2, P_OUT, P_DBG, P_WS = 64, 66, 68, 70, 72, 74, 78, 80, 82, 84, 86


def kd(name, vgpr, acc, sgpr=102):
    return f""".amdhsa_kernel {name}
  .amdhsa_next_free_vgpr {vgpr}
  .amdhsa_next_free_sgpr {sgpr}
  .amdhsa_accum_offset {acc}
  .amdhsa_group_segment_fixed_size 0
  .amdhsa_kernarg_size 96
  .amdhsa_user_sgpr_count 2
  .amdhsa_user_sgpr_kernarg_segment_ptr 1
  .amdhsa_system_sgpr_workgroup_id_x 1
.end_amdhsa_kernel
"""


def f32(x):
    import struct
    return "0x%08x" % struct.unpack("<I", struct.pack("<f", x))[0]


def stamp(e, opt, idx, raw=False):
    if isinstance(idx, str):
        pts = opt.get("sp", [])
        if idx not in pts:
            return
        idx = pts.index(idx)
    elif opt.get("sp") and e.name.startswith(opt.get("spk", "k1")):
        return
    if opt.get("stamps"):
        f = e.raw if raw else e
        f("s_memtime s[100:101]")
        f("s_waitcnt lgkmcnt(0)")
        f(f"s_mov_b32 s{88+2*idx}, s100")
        f("s_memrealtime s[100:101]")
        f("s_waitcnt lgkmcnt(0)")
        f(f"s_mov_b32 s{89+2*idx}, s100")


def stamp_flush(e, opt, kern, srd_ws, n, waves=4):
    if opt.get("stamps"):
        e(f"s_mul_i32 s7, s2, {waves}")
        e("s_add_u32 s7, s7, s3")
        e("s_lshl_b32 s7, s7, 6")
        e(f"s_add_u32 s7, s7, {STAMP_OFF + kern*MB}")
        e("v_mov_b32 v2, 0")
        for i in range(2 * n):
            e(f"v_mov_b32 v3, s{88+i}")
            e(f"buffer_store_dword v3, v2, s[{srd_ws}:{srd_ws+3}], s7 offen offset:{4*i}")


S_N0, S_N1 = 86, 87
NONCE_K = 0x5bd1e995
FL_XN, FL_KV, FL_Y, FL_PAIR, FL_YA, FL_KV2 = 0, 16, 32, 48, 176, 192
LDS_NONCE = 0x27ff0


def flag_line(e, dst, base, idx_sreg):
    e(f"s_lshl_b32 s{dst}, s{idx_sreg}, 9")
    e(f"s_add_u32 s{dst}, s{dst}, {FL_OFF + base*512}")


def flag_set(e, ws, line_sreg, slot, vt):
    e(f"v_mov_b32 v{vt}, s{S_N0}")
    e(f"v_mov_b32 v{vt+1}, s{S_N1}")
    e(f"v_mov_b32 v{vt+2}, {slot*8 if isinstance(slot, int) else slot}")
    e("s_mov_b64 exec, 1")
    e(f"buffer_store_dwordx2 v[{vt}:{vt+1}], v{vt+2}, s[{ws}:{ws+3}], s{line_sreg} offen sc1")
    e("s_mov_b64 exec, -1")


def flag_test(e, vd, sa=4):
    e(f"v_cmp_eq_u32 vcc, s{S_N0}, v{vd}")
    e(f"v_cmp_eq_u32 s[{sa}:{sa+1}], s{S_N1}, v{vd+1}")
    e.nop(1)
    e(f"s_and_b64 vcc, vcc, s[{sa}:{sa+1}]")
    e("s_cmp_eq_u64 vcc, exec")
```

```python
import re

REG_RE = re.compile(r"^(-?)(?:abs\()?([vas])(?:(\d+)|\[(\d+):(\d+)\])\)?$")
TRANS = ("v_exp_f32", "v_log_f32", "v_rcp_f32", "v_rsq_f32", "v_sqrt_f32", "v_sin_f32", "v_cos_f32")


def regs_of(tok):
    tok = tok.strip()
    if tok in ("vcc", "exec", "m0", "scc"):
        return [(tok, 0)]
    if tok in ("vcc_lo", "vcc_hi"):
        return [("vcc", 0)]
    if tok in ("exec_lo", "exec_hi"):
        return [("exec", 0)]
    m = REG_RE.match(tok)
    if not m:
        return []
    f = m.group(2)
    if m.group(3) is not None:
        return [(f, int(m.group(3)))]
    return [(f, i) for i in range(int(m.group(4)), int(m.group(5)) + 1)]


class Ins:
    __slots__ = ("text", "op", "rd", "wr", "kind", "n", "srcc", "passes", "tag")

    def __init__(self, text, tag=None):
        self.text = text
        self.tag = tag
        t = text.split(";")[0].strip()
        self.rd, self.wr, self.srcc, self.passes, self.n = set(), set(), set(), 0, 0
        if t.endswith(":"):
            self.op, self.kind = t, "label"
            return
        if not t or t.startswith("."):
            self.op, self.kind = t, "dir"
            return
        parts = t.split(None, 1)
        op = parts[0]
        self.op = op
        rest = parts[1] if len(parts) > 1 else ""
        ops = [o.strip() for o in rest.split(",")] if rest else []
        mods = []
        if ops:
            last = ops[-1].split()
            ops[-1] = last[0] if last else ""
            mods = last[1:]
        R = [regs_of(o) for o in ops]

        def rd(i):
            for r in R[i]:
                self.rd.add(r)

        def wr(i):
            for r in R[i]:
                self.wr.add(r)

        if op == "s_nop":
            self.kind, self.n = "nop", int(ops[0], 0) + 1
        elif op == "s_waitcnt":
            self.kind = "wait"
        elif op == "s_barrier":
            self.kind = "barrier"
        elif op in ("s_endpgm", "s_setprio", "s_sleep"):
            self.kind = "salu"
        elif op.startswith("s_cbranch") or op == "s_branch":
            self.kind = "branch"
            if "scc" in op:
                self.rd.add(("scc", 0))
            if "vcc" in op:
                self.rd.add(("vcc", 0))
            if "exec" in op:
                self.rd.add(("exec", 0))
        elif op.startswith("s_load") or op in ("s_memtime", "s_memrealtime"):
            self.kind = "smem"
            wr(0)
            for i in range(1, len(ops)):
                rd(i)
        elif op.startswith("s_cmp") or op.startswith("s_bitcmp"):
            self.kind = "salu"
            for i in range(len(ops)):
                rd(i)
            self.wr.add(("scc", 0))
        elif op.startswith("s_"):
            self.kind = "salu"
            wr(0)
            for i in range(1, len(ops)):
                rd(i)
            if op.startswith("s_cselect") or op.startswith("s_addc") or op.startswith("s_subb"):
                self.rd.add(("scc", 0))
            if "saveexec" in op:
                self.rd.add(("exec", 0))
                self.wr.add(("exec", 0))
            if not (op.startswith("s_mov") or op.startswith("s_mul") or op.startswith("s_cselect") or op.startswith("s_getreg") or op.startswith("s_getpc")):
                self.wr.add(("scc", 0))
            if op in ("s_addk_i32", "s_mulk_i32"):
                rd(0)
        elif op.startswith("v_mfma"):
            self.kind = "mfma"
            wr(0)
            rd(1)
            rd(2)
            rd(3)
            self.srcc = set(R[3])
            self.passes = 8 if "32x32" in op else 4
        elif op.startswith("ds_read") or op.startswith("ds_bpermute") or op.startswith("ds_swizzle"):
            self.kind = "ds_rd"
            wr(0)
            for i in range(1, len(ops)):
                rd(i)
        elif op.startswith("ds_write"):
            self.kind = "ds_wr"
            for i in range(len(ops)):
                rd(i)
        elif op.startswith("buffer_load") and "lds" in mods:
            self.kind = "vm_dma"
            for i in range(len(ops)):
                rd(i)
            self.rd.add(("m0", 0))
        elif op.startswith("buffer_load") or op.startswith("global_load"):
            self.kind = "vm_ld"
            if tag != "pf":
                wr(0)
            for i in range(1, len(ops)):
                rd(i)
        elif op.startswith("buffer_store") or op.startswith("global_store"):
            self.kind = "vm_st"
            for i in range(len(ops)):
                rd(i)
            if op.endswith("x4") or op.endswith("x3"):
                di = 0 if op.startswith("buffer") else 1
                self.srcc = set(R[di])
        elif op.startswith("buffer_atomic") or op.startswith("global_atomic"):
            self.kind = "vm_st"
            for i in range(len(ops)):
                rd(i)
            if "sc0" in mods and tag != "pf":
                self.kind = "vm_ld"
                wr(0)
        elif op in ("buffer_wbl2", "buffer_inv"):
            self.kind = "vm_st"
        elif op.startswith("v_"):
            base = op.replace("_e32", "").replace("_e64", "")
            self.kind = "trans" if base in TRANS else "valu"
            wr(0)
            st = 1
            if base in ("v_add_co_u32", "v_sub_co_u32", "v_addc_co_u32"):
                wr(1)
                st = 2
            for i in range(st, len(ops)):
                rd(i)
            if base.startswith("v_fmac") or base.startswith("v_dot2c") or base.startswith("v_pk_fmac"):
                rd(0)
            if base.startswith("v_permlane"):
                rd(0)
                wr(1)
            self.rd.add(("exec", 0))
        else:
            raise ValueError("unknown instruction: " + text)

    def states(self):
        if self.kind == "nop":
            return self.n
        if self.kind in ("label", "dir"):
            return 0
        return 1


def parse_wait(text):
    vm = re.search(r"vmcnt\((\d+)\)", text)
    lg = re.search(r"lgkmcnt\((\d+)\)", text)
    return (int(vm.group(1)) if vm else None, int(lg.group(1)) if lg else None)


class Seg:
    def __init__(self, name, lds=None, vm=None):
        self.name = name
        self.ins = []
        self.lds = list(lds) if lds else []
        self.vm = list(vm) if vm else []

    def raw(self, text, tag=None):
        i = Ins(text, tag)
        self.ins.append(i)
        return i

    def _need(self, i):
        touched = i.rd | i.wr
        nl = None
        for k, d in enumerate(self.lds):
            if d & touched:
                nl = len(self.lds) - 1 - k
        nv = None
        for k, (tg, d) in enumerate(self.vm):
            if d & touched:
                nv = len(self.vm) - 1 - k
        return nv, nl

    def wait(self, vm=None, lgkm=None):
        parts = []
        if vm is not None and vm < len(self.vm):
            assert vm <= 63
            parts.append(f"vmcnt({vm})")
            self.vm = self.vm[len(self.vm) - vm:] if vm else []
        if lgkm is not None and lgkm < len(self.lds):
            lgkm = min(lgkm, 15)
            parts.append(f"lgkmcnt({lgkm})")
            self.lds = self.lds[len(self.lds) - lgkm:] if lgkm else []
        if parts:
            self.raw("s_waitcnt " + " ".join(parts))

    def wait_force(self, vm=None, lgkm=None):
        parts = []
        if vm is not None:
            parts.append(f"vmcnt({vm})")
            if vm < len(self.vm):
                self.vm = self.vm[len(self.vm) - vm:] if vm else []
        if lgkm is not None:
            parts.append(f"lgkmcnt({lgkm})")
            if lgkm < len(self.lds):
                self.lds = self.lds[len(self.lds) - lgkm:] if lgkm else []
        self.raw("s_waitcnt " + " ".join(parts))

    def wait_tag(self, tag):
        last = None
        for k, (tg, d) in enumerate(self.vm):
            if tg == tag:
                last = k
        if last is not None:
            self.wait(vm=min(63, len(self.vm) - 1 - last))

    def __call__(self, text, tag=None):
        i = Ins(text, tag)
        nv, nl = self._need(i)
        if nv is not None or nl is not None:
            self.wait(vm=None if nv is None else min(nv, 63), lgkm=nl)
        self.ins.append(i)
        if i.kind == "ds_rd":
            self.lds.append(frozenset(i.wr))
        elif i.kind == "ds_wr":
            self.lds.append(frozenset())
        elif i.kind == "smem":
            self.lds.append(frozenset(i.wr))
            self.lds.append(frozenset(i.wr))
        elif i.kind == "vm_ld":
            self.vm.append((tag, frozenset(i.wr)))
        elif i.kind in ("vm_st", "vm_dma"):
            self.vm.append((tag, frozenset()))
        elif i.kind == "wait":
            vm, lg = parse_wait(text)
            if vm is not None and vm < len(self.vm):
                self.vm = self.vm[len(self.vm) - vm:] if vm else []
            if lg is not None and lg < len(self.lds):
                self.lds = self.lds[len(self.lds) - lg:] if lg else []
        return i

    def label(self, name):
        self.raw(name + ":")

    def nop(self, n):
        while n > 0:
            k = min(n, 16)
            self.raw(f"s_nop {k-1}")
            n -= k

    def text(self):
        out = []
        for i in self.ins:
            out.append(i.text if i.kind in ("label",) else "  " + i.text)
        return "\n".join(out) + "\n"


def is_valu(i):
    return i.kind in ("valu", "trans")


def required(p, c):
    need = 0
    vreg = lambda s: {r for r in s if r[0] in ("v", "a")}
    sreg = lambda s: {r for r in s if r[0] in ("s", "vcc")}
    if is_valu(p):
        w = vreg(p.wr)
        if c.kind == "mfma" and w & c.rd:
            need = max(need, 2)
        if is_valu(c) and w & c.rd:
            if c.op.startswith("v_readfirstlane") or c.op.startswith("v_readlane"):
                need = max(need, 1)
            if c.op.startswith("v_permlane") or "dpp" in c.text:
                need = max(need, 2)
            if p.kind == "trans" and c.kind != "trans":
                need = max(need, 1)
            if "sdwa" in p.text and "dst_sel:DWORD" not in p.text:
                need = max(need, 1)
        ws = sreg(p.wr)
        if ws:
            if is_valu(c) and ws & c.rd:
                need = max(need, 4 if c.op.startswith(("v_readlane", "v_writelane")) else 2)
            if c.kind.startswith("vm_") and ws & c.rd:
                need = max(need, 5)
    if p.kind == "mfma":
        idx = {4: 0, 8: 1}[p.passes]
        d = p.wr
        if c.kind == "mfma":
            if d & c.srcc:
                if not (c.srcc == d and c.passes == p.passes):
                    need = max(need, (6, 10)[idx])
            ab = c.rd - c.srcc if not (c.rd - c.srcc) <= c.srcc else set()
            toks = c.text.split(None, 1)[1].split(",")
            abr = set(regs_of(toks[1])) | set(regs_of(toks[2]))
            if d & abr:
                need = max(need, (8, 12)[idx])
            if d & c.wr and not (c.srcc == d):
                need = max(need, (6, 10)[idx])
        elif is_valu(c):
            if d & (c.rd | c.wr):
                need = max(need, (8, 12)[idx])
            if p.srcc & c.wr:
                need = max(need, (3, 7)[idx])
        elif c.kind in ("ds_rd", "ds_wr", "vm_ld", "vm_st", "vm_dma"):
            if d & (c.rd | c.wr):
                need = max(need, (8, 12)[idx])
            if p.srcc & c.wr:
                need = max(need, (3, 7)[idx])
    if p.kind == "salu" and ("m0", 0) in p.wr and c.kind == "vm_dma":
        need = max(need, 1)
    if p.kind == "vm_st" and p.srcc and p.srcc & c.wr:
        need = max(need, 2 if is_valu(c) else 1)
    return need


def check_trace(name, ins, fix=False):
    probs = []
    real = [i for i in ins if i.kind not in ("label", "dir")]
    for k, c in enumerate(real):
        dist = 0
        j = k - 1
        while j >= 0 and dist < 20:
            p = real[j]
            r = required(p, c)
            if r > dist:
                probs.append(f"[{name}] hazard need {r} have {dist}: '{p.text}' -> '{c.text}'")
            dist += p.states()
            j -= 1
    lds, vm = [], []
    for c in real:
        touched = c.rd | c.wr
        for d, t in lds:
            if d & touched:
                probs.append(f"[{name}] missing lgkm wait: '{t}' -> '{c.text}'")
        for d, t in vm:
            if d & touched:
                probs.append(f"[{name}] missing vm wait: '{t}' -> '{c.text}'")
        if c.kind == "ds_rd":
            lds.append((frozenset(c.wr), c.text))
        elif c.kind == "ds_wr":
            lds.append((frozenset(), c.text))
        elif c.kind == "smem":
            lds.insert(len(lds), (frozenset(c.wr), c.text + " (smem)"))
        elif c.kind == "vm_ld":
            vm.append((frozenset(c.wr), c.text))
        elif c.kind in ("vm_st", "vm_dma"):
            vm.append((frozenset(), c.text))
        elif c.kind == "wait":
            v, l = parse_wait(c.text)
            if v is not None and v < len(vm):
                vm = vm[len(vm) - v:] if v else []
            if l is not None:
                if l == 0:
                    lds = []
                elif any("(smem)" in t for d, t in lds):
                    pass
                elif l < len(lds):
                    lds = lds[len(lds) - l:]
    return probs


def fix_hazards(seg, prev=()):
    out = [i for i in prev if i.kind not in ("label", "dir")]
    base = len(out)
    res = []
    for c in seg.ins:
        if c.kind in ("label", "dir"):
            res.append(c)
            continue
        dist, j, pad = 0, len(out) - 1, 0
        while j >= 0 and dist < 20:
            p = out[j]
            r = required(p, c)
            if r > dist:
                pad = max(pad, r - dist)
            dist += p.states()
            j -= 1
        while pad > 0:
            k = min(pad, 16)
            n = Ins(f"s_nop {k-1}")
            out.append(n)
            res.append(n)
            pad -= k
        out.append(c)
        res.append(c)
    seg.ins = res


def weave(seg, spine, fillers):
    def put(x):
        if isinstance(x, list):
            for y in x:
                put(y)
        elif callable(x):
            x(seg)
        elif isinstance(x, tuple):
            seg(x[0], x[1])
        else:
            seg(x)
    for x in fillers.get(-1, []):
        put(x)
    for g, m in enumerate(spine):
        put(m)
        for x in fillers.get(g, []):
            put(x)


def spread(fill, items, g0, g1, per=None):
    n = len(items)
    if n == 0:
        return
    span = g1 - g0
    for k, it in enumerate(items):
        g = g0 + (k * span) // n
        fill.setdefault(g, []).append(it)


def cost_of(x):
    if isinstance(x, list):
        return sum(cost_of(y) for y in x)
    if callable(x):
        return getattr(x, "cost", 1)
    t = x[0] if isinstance(x, tuple) else x
    if t.endswith(":"):
        return 0
    op = t.split()[0]
    if op in TRANS:
        return 2
    return 1


def load_of(fill, g):
    return sum(cost_of(x) for x in fill.get(g, []))


def pour(fill, items, g0, g1):
    if not items:
        return
    gaps = list(range(g0, g1))
    base = [load_of(fill, g) for g in gaps]
    total = sum(cost_of(x) for x in items)
    lo, hi = 0.0, max(base) + total
    for _ in range(50):
        mid = (lo + hi) / 2
        if sum(max(0.0, mid - b) for b in base) >= total:
            hi = mid
        else:
            lo = mid
    free = [max(0.0, hi - b) for b in base]
    cum, acc = [], 0.0
    for f in free:
        acc += f
        cum.append(acc)
    pos, gi = 0.0, 0
    for x in items:
        c = cost_of(x)
        mid = pos + c / 2.0
        while gi < len(gaps) - 1 and cum[gi] < mid:
            gi += 1
        fill.setdefault(gaps[gi], []).append(x)
        pos += c


def run(e, ops):
    for x in ops:
        if isinstance(x, list):
            run(e, x)
        elif callable(x):
            x(e)
        elif isinstance(x, tuple):
            e(x[0], x[1])
        else:
            e(x)


def wait_reg(e, regs):
    rs = set(regs_of(regs))
    n = None
    for k, d in enumerate(e.lds):
        if d & rs:
            n = len(e.lds) - 1 - k
    if n is not None:
        e.wait(lgkm=n)


def gap_report(name, fill, n):
    loads = [load_of(fill, g) for g in range(n)]
    return f"{name}: gaps {n} total {sum(loads)} max {max(loads)} avg {sum(loads)/n:.2f} over5 {sum(max(0,l-5) for l in loads)} over6 {sum(max(0,l-6) for l in loads)}"
```

```python
from emit import *
from common import *
import math

S_CKV, S_W, S_WS, S_X, S_WQ, S_W1 = 8, 12, 16, 20, 24, 28
V_L16, V_PD, V_PA, V_PB, V_FO, V_FL = 1, 2, 3, 4, 5, 6
V_AA, V_AB, V_DA, V_DB = 8, 12, 16, 24
V_FA, V_FB, V_XN = 32, 64, 96
V_DQ, V_D1, V_AT, V_T = 208, 212, 216, 224
SLOT_ORDER = [0, 1, 4, 5, 2, 3, 6, 7]
H_ACC = (64, 80, 224, 240)


def gen_k1(opt):
    ST = opt.get("kv_store_mod", "")
    SQ = opt.get("q_store_mod", "")
    PFD = opt.get("pfd", 2)
    NPF = 0 if opt.get("no_pf") else 2
    e = Seg("k1_pro")
    e.label("proj_kernel")
    e("s_cmp_ge_u32 s2, 256")
    e("s_cbranch_scc1 K1_END")
    stamp(e, opt, "entry")
    load_kernargs(e)
    e("v_lshrrev_b32 v1, 6, v0")
    e("v_and_b32 v0, 63, v0")
    e("v_readfirstlane_b32 s3, v1")
    e("s_and_b32 s32, s2, 7")
    e("s_lshr_b32 s33, s2, 3")
    e("s_and_b32 s34, s33, 7")
    e("s_lshr_b32 s43, s33, 3")
    e("s_and_b32 s35, s43, 1")
    e("s_lshl_b32 s4, s32, 1")
    e("s_add_u32 s35, s35, s4")
    e("s_lshr_b32 s36, s43, 1")
    e("s_lshr_b32 s37, s33, 1")
    e("s_and_b32 s38, s33, 1")
    e("s_add_u32 s38, s38, s4")
    e("s_and_b32 s5, s3, 1")
    e("s_lshr_b32 s6, s3, 1")
    e("v_and_b32 v1, 31, v0")
    e("v_lshrrev_b32 v2, 5, v0")
    e("v_lshrrev_b32 v3, 4, v0")
    e("v_bfe_u32 v4, v0, 2, 2")
    e("v_and_b32 v5, 3, v0")
    e("s_lshl_b32 s7, s34, 8")
    e("s_lshl_b32 s39, s3, 6")
    e("s_add_u32 s7, s7, s39")
    e("v_lshrrev_b32 v6, 3, v0")
    e("v_add_u32 v6, s7, v6")
    e("v_lshlrev_b32 v6, 11, v6")
    e("v_and_b32 v7, 7, v0")
    e("v_xor_b32 v7, v7, v3")
    e("v_lshlrev_b32 v7, 4, v7")
    for j in range(8):
        e(f"v_xor_b32 v{V_DA+j}, {(j&1)<<6}, v7")
        e(f"v_add_u32 v{V_DA+j}, v{V_DA+j}, v6")
        if j:
            e(f"v_add_u32 v{V_DA+j}, {j*16384-(j&3)*1024}, v{V_DA+j}")
    e("s_lshl_b32 s7, s3, 4")
    e("v_add_u32 v6, s7, v2")
    e("v_lshlrev_b32 v6, 13, v6")
    e("s_lshl_b32 s7, s35, 9")
    e("v_add_u32 v6, s7, v6")
    e("v_lshl_add_u32 v6, v5, 4, v6")
    e("v_lshrrev_b32 v7, 2, v1")
    e("v_xor_b32 v7, v7, v2")
    e("v_lshlrev_b32 v7, 6, v7")
    for j in range(8):
        e(f"v_xor_b32 v{V_DB+j}, {(j&1)<<7}, v7")
        e(f"v_add_u32 v{V_DB+j}, v{V_DB+j}, v6")
        if j:
            e(f"v_add_u32 v{V_DB+j}, {j*16384-(j&3)*1024}, v{V_DB+j}")
    e("s_lshl_b32 s7, s37, 7")
    e("s_lshl_b32 s39, s38, 3")
    e("s_add_u32 s7, s7, s39")
    e("v_and_b32 v6, 7, v0")
    e("v_add_u32 v6, s7, v6")
    e("v_mul_u32_u24 v6, 896, v6")
    e("v_lshrrev_b32 v7, 3, v0")
    e("v_lshl_add_u32 v6, v7, 4, v6")
    e("s_lshl_b32 s44, s3, 13")
    e("s_mov_b32 s40, 0")
    e("s_mov_b32 s41, 0")
    e.wait_force(lgkm=0)
    srd(e, S_CKV, P_CKV, CKV_BYTES)
    e("s_cmp_eq_u32 s36, 0")
    e(f"s_cselect_b32 s{S_W}, s{P_WUK}, s{P_WUV}")
    e(f"s_cselect_b32 s{S_W+1}, s{P_WUK+1}, s{P_WUV+1}")
    e(f"s_mov_b32 s{S_W+2}, {WU_BYTES:#x}")
    e(f"s_mov_b32 s{S_W+3}, 0x20000")
    srd(e, S_X, P_X, X_BYTES)
    stamp(e, opt, 0)
    stamp(e, opt, "karg")

    def dma_items(b):
        it = []
        for j in range(8):
            pre = [f"s_add_u32 m0, s44, {b*32768 + (j>>2)*4096}"] if (j & 3) == 0 else []
            post = ["s_add_u32 s40, s40, 128"] if j == 7 else []
            it.append((pre, f"buffer_load_dwordx4 v{V_DA+j}, s[{S_CKV}:{S_CKV+3}], s40 offen offset:{(j&3)*1024} lds", post))
        for j in range(8):
            pre = [f"s_add_u32 m0, s44, {65536 + b*32768 + (j>>2)*4096}"] if (j & 3) == 0 else []
            post = ["s_add_u32 s41, s41, 0x80000"] if j == 7 else []
            it.append((pre, f"buffer_load_dwordx4 v{V_DB+j}, s[{S_W}:{S_W+3}], s41 offen offset:{(j&3)*1024} lds", post))
        return it

    def emit_dma(e, items, tag="dma"):
        for pre, d, post in items:
            for x in pre:
                e(x)
            e(d, tag)
            for x in post:
                e(x)

    NK3 = 8
    for i in range(7):
        e(f"buffer_load_dwordx4 {v(V_XN+i*4,4)}, v6, s[{S_X}:{S_X+3}], 0 offen offset:{i*128}", "x")
    emit_dma(e, dma_items(0), "t0")
    emit_dma(e, dma_items(1)[:NK3])
    stamp(e, opt, "dma")
    srd(e, S_WS, P_WS, WS_BYTES)
    srd(e, S_WQ, P_WQ, WQ_BYTES)
    srd(e, S_W1, P_W1, W1_BYTES)
    e("s_lshl_b32 s7, s5, 7")
    e("v_add_u32 v6, s7, v1")
    e("v_lshlrev_b32 v6, 7, v6")
    e("v_bfe_u32 v7, v1, 1, 3")
    e("v_xor_b32 v7, v7, v2")
    e("v_lshl_add_u32 v6, v7, 4, v6")
    for k in range(4):
        e(f"v_xor_b32 v{V_AA+k}, {k<<5}, v6")
    e("v_lshrrev_b32 v6, 1, v3")
    e("v_lshl_add_u32 v6, v6, 3, v4")
    e("v_lshlrev_b32 v6, 9, v6")
    e("s_lshl_b32 s7, s6, 8")
    e("s_add_u32 s7, s7, 0x10000")
    e("v_add_u32 v6, s7, v6")
    e("v_and_b32 v7, 1, v3")
    e("v_lshl_add_u32 v6, v7, 5, v6")
    e("v_lshl_add_u32 v6, v5, 3, v6")
    for nb in range(4):
        e(f"v_xor_b32 v7, {nb}, v4")
        e(f"v_lshl_add_u32 v{V_AB+nb}, v7, 6, v6")
    e("s_lshl_b32 s45, s3, 12")
    e("s_lshl_b32 s7, s3, 4")
    e("v_add_u32 v6, s7, v3")
    e("v_xor_b32 v7, v4, v3")
    e("v_lshlrev_b32 v7, 6, v7")
    e("v_lshl_add_u32 v7, v5, 4, v7")
    e("s_lshl_b32 s58, s38, 9")
    e(f"v_lshlrev_b32 v{V_DQ}, 13, v6")
    e(f"v_add3_u32 v{V_DQ}, v{V_DQ}, v7, s58")
    for j in range(1, 4):
        e(f"v_add_u32 v{V_DQ+j}, {j*4*8192 - j*1024}, v{V_DQ}")
    e("s_lshr_b32 s7, s38, 1")
    e("s_mul_i32 s7, s7, 7")
    e("s_and_b32 s47, s38, 1")
    e("s_lshl_b32 s47, s47, 2")
    e("s_add_u32 s47, s47, s7")
    e("s_lshl_b32 s59, s47, 6")
    e(f"v_mul_u32_u24 v{V_D1}, 3584, v6")
    e(f"v_add3_u32 v{V_D1}, v{V_D1}, v7, s59")
    for j in range(1, 4):
        e(f"v_add_u32 v{V_D1+j}, {j*4*3584 - j*1024}, v{V_D1}")
    e("v_lshrrev_b32 v6, 1, v3")
    e("v_lshl_add_u32 v6, v6, 3, v4")
    e("v_lshlrev_b32 v6, 8, v6")
    e("v_and_b32 v7, 1, v3")
    e("v_lshl_add_u32 v6, v7, 5, v6")
    e("v_lshl_add_u32 v6, v5, 3, v6")
    for nb in range(4):
        e(f"v_xor_b32 v7, {nb}, v4")
        e(f"v_lshl_add_u32 v{V_AT+nb}, v7, 6, v6")
        e(f"v_add_u32 v{V_AT+4+nb}, 0x10000, v{V_AT+nb}")
    e("s_lshl_b32 s7, s34, 8")
    e("s_lshl_b32 s39, s43, 6")
    e("s_add_u32 s7, s7, s39")
    e("s_lshl_b32 s39, s3, 4")
    e("s_add_u32 s7, s7, s39")
    e("v_and_b32 v6, 15, v0")
    e("v_add_u32 v6, s7, v6")
    e("v_lshlrev_b32 v6, 11, v6")
    e(f"v_add_u32 v{V_PA}, {PFD*128}, v6")
    e("s_lshl_b32 s7, s34, 3")
    e("s_lshl_b32 s39, s3, 1")
    e("s_add_u32 s7, s7, s39")
    e("v_bfe_u32 v6, v0, 2, 1")
    e("v_add_u32 v6, s7, v6")
    e("v_lshlrev_b32 v6, 13, v6")
    e("v_lshl_add_u32 v6, v5, 7, v6")
    e("s_lshl_b32 s7, s35, 9")
    e(f"s_add_u32 s7, s7, {PFD*0x80000}")
    e(f"v_add_u32 v{V_PB}, s7, v6")
    e(f"v_lshlrev_b32 v{V_L16}, 4, v0")
    PFM = opt.get("pf_mod", "")
    if NPF:
        for t in range(2, PFD + 2):
            e(f"s_mov_b32 s7, {(t - PFD) * 128 & 0xffffffff}") if t >= PFD else None
            if t >= PFD:
                e(f"buffer_load_dword v{V_PD}, v{V_PA}, s[{S_CKV}:{S_CKV+3}], s7 offen{PFM}", "pf")
                e(f"s_mov_b32 s7, {(t - PFD) * 0x80000}")
                e(f"buffer_load_dword v{V_PD}, v{V_PB}, s[{S_W}:{S_W+3}], s7 offen{PFM}", "pf")
            else:
                e(f"v_subrev_u32 v6, {(PFD - t) * 128}, v{V_PA}")
                e(f"buffer_load_dword v{V_PD}, v6, s[{S_CKV}:{S_CKV+3}], 0 offen{PFM}", "pf")
                e(f"v_subrev_u32 v6, {(PFD - t) * 0x80000}, v{V_PB}")
                e(f"buffer_load_dword v{V_PD}, v6, s[{S_W}:{S_W+3}], 0 offen{PFM}", "pf")
        e("s_mul_i32 s7, s37, 28")
        e("s_mul_i32 s39, s3, 7")
        e("s_add_u32 s7, s7, s39")
        e("v_lshrrev_b32 v6, 2, v0")
        e("v_min_u32 v6, 6, v6")
        e("v_add_u32 v6, s7, v6")
        e("v_lshlrev_b32 v7, 13, v6")
        e("v_lshl_add_u32 v7, v5, 7, v7")
        e(f"buffer_load_dword v{V_PD}, v7, s[{S_WQ}:{S_WQ+3}], s58 offen{PFM}", "pf")
        e("v_mul_u32_u24 v7, 3584, v6")
        e("v_min_u32 v6, 2, v5")
        e("v_lshl_add_u32 v7, v6, 7, v7")
        e(f"buffer_load_dword v{V_PD}, v7, s[{S_W1}:{S_W1+3}], s59 offen{PFM}", "pf")
    stamp(e, opt, "pf")
    for i in range(256):
        e(f"v_accvgpr_write_b32 a{i}, 0")
    e("s_lshl_b32 s48, s35, 6")
    e("s_lshl_b32 s7, s34, 3")
    e("s_add_u32 s48, s48, s7")
    e("s_lshl_b32 s7, s5, 2")
    e("s_add_u32 s48, s48, s7")
    e("s_lshl_b32 s48, s48, 15")
    e("s_lshl_b32 s7, s36, 14")
    e("s_add_u32 s48, s48, s7")
    e("s_lshl_b32 s7, s6, 13")
    e("s_add_u32 s48, s48, s7")
    e("s_lshl_b32 s7, s37, 2")
    e("s_add_u32 s7, s7, s3")
    e("s_mul_i32 s51, s7, 112")
    e("s_lshl_b32 s39, s47, 1")
    e("s_add_u32 s51, s51, s39")
    e("s_lshl_b32 s51, s51, 10")
    e(f"s_add_u32 s51, s51, {H_OFF}")
    e("s_add_u32 s52, s51, 4096")
    e("s_and_b32 s39, s38, 1")
    e("s_cmp_eq_u32 s39, 0")
    e(f"s_cselect_b32 s53, s52, {DUMMY_OFF:#x}")
    e("s_lshl_b32 s54, s38, 6")
    e("s_add_u32 s54, s54, s7")
    e("s_lshl_b32 s54, s54, 14")
    e(f"s_add_u32 s54, s54, {Q_OFF}")
    for k in range(1, 4):
        e(f"s_add_u32 s{54+k}, s54, {k*4096}")
    stamp(e, opt, 1)

    T = V_T

    def layernorm(e, n, reduce):
        e("s_mov_b32 s50, 0x3f803f80")
        for k in range(8):
            e(f"v_mov_b32 v{T+k}, 0")
        for r in range(n):
            e(f"v_dot2_f32_bf16 v{T+(r&3)}, v{V_XN+r}, s50, v{T+(r&3)}")
            e(f"v_dot2_f32_bf16 v{T+4+(r&3)}, v{V_XN+r}, v{V_XN+r}, v{T+4+(r&3)}")
        e.nop(4)
        e(f"v_add_f32 v{T}, v{T}, v{T+1}")
        e(f"v_add_f32 v{T+2}, v{T+2}, v{T+3}")
        e(f"v_add_f32 v{T+4}, v{T+4}, v{T+5}")
        e(f"v_add_f32 v{T+6}, v{T+6}, v{T+7}")
        e(f"v_add_f32 v{T}, v{T}, v{T+2}")
        e(f"v_add_f32 v{T+4}, v{T+4}, v{T+6}")
        for step in reduce:
            if step == 8:
                e.nop(2)
                e(f"v_add_f32_dpp v{T}, v{T}, v{T} row_ror:8 row_mask:0xf bank_mask:0xf")
                e(f"v_add_f32_dpp v{T+4}, v{T+4}, v{T+4} row_ror:8 row_mask:0xf bank_mask:0xf")
            else:
                e(f"v_mov_b32 v{T+1}, v{T}")
                e(f"v_mov_b32 v{T+5}, v{T+4}")
                e.nop(2)
                e(f"v_permlane{step}_swap_b32 v{T}, v{T+1}")
                e(f"v_permlane{step}_swap_b32 v{T+4}, v{T+5}")
                e(f"v_add_f32 v{T}, v{T}, v{T+1}")
                e(f"v_add_f32 v{T+4}, v{T+4}, v{T+5}")
        e(f"v_mul_f32 v{T}, {f32(1/448)}, v{T}")
        e(f"v_mul_f32 v{T+4}, {f32(1/448)}, v{T+4}")
        e(f"v_fma_f32 v{T+4}, -v{T}, v{T}, v{T+4}")
        e(f"v_max_f32 v{T+4}, 0, v{T+4}")
        e(f"v_add_f32 v{T+4}, {f32(1e-5)}, v{T+4}")
        e(f"v_rsq_f32 v{T+4}, v{T+4}")
        e(f"v_mul_f32 v{T}, v{T}, v{T+4}")
        e(f"v_mov_b32 v{T+5}, v{T+4}")
        e(f"v_sub_f32 v{T}, 0, v{T}")
        e(f"v_mov_b32 v{T+1}, v{T}")
        for r in range(n):
            t = T + 8 + (r % 8) * 2
            e(f"v_lshlrev_b32 v{t}, 16, v{V_XN+r}")
            e(f"v_and_b32 v{t+1}, 0xffff0000, v{V_XN+r}")
            e(f"v_pk_fma_f32 {v(t,2)}, {v(t,2)}, {v(T+4,2)}, {v(T,2)}")
            e(f"v_cvt_pk_bf16_f32 v{V_XN+r}, v{t}, v{t+1}")

    e("s_lshl_b32 s7, s37, 2")
    e(f"v_mov_b32 v{V_FO}, s7")
    e("s_cmp_eq_u32 s3, 0")
    e("s_cselect_b32 s60, 1, 99")
    e("s_add_u32 s62, s7, s3")
    e("s_mul_i32 s62, s62, 28672")
    e(f"s_add_u32 s62, s62, {XN_OFF}")
    e("s_cbranch_scc0 K1_NOLN") if False else None
    e("s_cmp_eq_u32 s3, 0")
    e("s_cbranch_scc1 K1_LN")
    lnp = Seg("k1_lnprod", e.lds, e.vm)
    q = lnp
    q.label("K1_LN")
    layernorm(q, 28, (8, 16, 32))
    q("s_lshr_b32 s7, s38, 2")
    q("s_lshl_b32 s39, s37, 2")
    q("s_add_u32 s7, s7, s39")
    q("s_mul_i32 s7, s7, 28672")
    q(f"s_add_u32 s7, s7, {XN_OFF}")
    q("s_and_b32 s39, s38, 3")
    q("s_lshl_b32 s39, s39, 7")
    q("v_and_b32 v6, 7, v0")
    q("v_lshlrev_b32 v6, 4, v6")
    q("v_lshrrev_b32 v7, 3, v0")
    q("v_lshl_add_u32 v6, v7, 9, v6")
    q("v_add_u32 v6, s39, v6")
    for i in range(7):
        q(f"buffer_store_dwordx4 {v(V_XN+4*i,4)}, v6, s[{S_WS}:{S_WS+3}], s7 offen sc1", "st")
        if i < 6:
            q("s_add_u32 s7, s7, 4096")
    q.wait_tag("t0")
    q("s_branch K1_LN_RET")

    def frag_reads(b, ks, st):
        r = []
        fa, fb = V_FA + st * 16, V_FB + st * 16
        order = [("a", 0), ("b", 0), ("a", 1), ("a", 2), ("a", 3), ("b", 1), ("b", 2), ("b", 3)]
        for t, i in order:
            if t == "a":
                r.append(f"ds_read_b128 {v(fa+i*4,4)}, v{V_AA+ks} offset:{i*4096 + b*32768}")
            else:
                for u in range(2):
                    r.append(f"ds_read_b64_tr_b16 {v(fb+i*4+u*2,2)}, v{V_AB+i} offset:{(16*ks+4*u)*512 + b*32768}")
        return r

    e.wait_tag("t0")
    e.label("K1_LN_RET")
    stamp(e, opt, 2)
    stamp(e, opt, "t0")
    e("s_barrier")
    stamp(e, opt, "bar")
    for r in frag_reads(0, 0, 0):
        e(r)
    e("s_mov_b32 s42, 0")
    e("s_cmp_eq_u32 s36, 0")
    e("s_cbranch_scc0 K1_LOOP_V")
    pro = e

    def place_dma(fill, items, g0, g1, tag="dma"):
        n = len(items)
        for k, (pre, d, post) in enumerate(items):
            g = g0 + (k * (g1 - g0)) // n
            for x in pre:
                fill.setdefault(g - 1, []).append(x)
            fill.setdefault(g, []).append((d, tag if isinstance(tag, str) else tag[k]))
            for x in post:
                fill.setdefault(g, []).append(x)

    def pf(e):
        e(f"buffer_load_dword v{V_PD}, v{V_PA}, s[{S_CKV}:{S_CKV+3}], s40 offen{PFM}", "pf")

    def pf2(e):
        e(f"buffer_load_dword v{V_PD}, v{V_PB}, s[{S_W}:{S_W+3}], s41 offen{PFM}", "pf")

    def ktile(e, kind, b, dma_k0, dma_k3, last=False, pref=True, tag3="dma", tag0="dma", flag=False, xn=None):
        for ks in range(4):
            st = ks & 1
            fa, fb = V_FA + st * 16, V_FB + st * 16
            spine = []
            for i in range(4):
                for j in range(4):
                    acc = a((i * 4 + j) * 16, 16)
                    W, C = v(fb + i * 4, 4), v(fa + j * 4, 4)
                    A, B = (W, C) if kind == 0 else (C, W)
                    spine.append(f"{MFMA} {acc}, {A}, {B}, {acc}")
            fill = {}
            fill[-1] = [lambda e: e.wait_force(lgkm=0)]
            if ks < 3:
                spread(fill, frag_reads(b, ks + 1, st ^ 1), 0, 12)
                if ks == 0 and dma_k0:
                    place_dma(fill, dma_k0, 1, 16, tag0)
                if ks == 1 and pref and NPF:
                    fill.setdefault(4, []).append(pf)
                    fill.setdefault(13, []).append(pf2)
                if ks == 2 and flag:
                    fill.setdefault(13, []).append(f"global_load_dword v{V_FL}, v{V_FO}, s[{P_DBG}:{P_DBG+1}] sc1")
                if ks in (1, 2) and xn is not None:
                    k0 = xn + (ks - 1) * 7
                    for k in range(k0, k0 + 7):
                        g = 1 + 2 * (k - k0)
                        if k % 4 == 0 and k:
                            fill.setdefault(g - 1, []).append("s_add_u32 s62, s62, 4096")
                        fill.setdefault(g, []).append((f"buffer_load_dwordx4 {v(V_XN+4*k,4)}, v{V_L16}, s[{S_WS}:{S_WS+3}], s62 offen offset:{(k%4)*1024} sc1", "xn"))
            else:
                if last:
                    fill[0] = ["s_barrier"]
                else:
                    fill[0] = [lambda e: e.wait_force(vm=(NPF if pref else 0) + (1 if flag else 0) + (14 if xn is not None else 0)), "s_barrier"]
                    spread(fill, frag_reads(b ^ 1, 0, 0), 0, 12)
                if dma_k3:
                    place_dma(fill, dma_k3, 2, 16, tag3)
            weave(e, spine, fill)

    NT = 21

    def b_dma(u):
        part, kt = divmod(u, 7)
        slot = SLOT_ORDER[u % 8]
        it = []
        for j in range(4):
            pre = []
            if j == 0:
                pre.append(f"s_add_u32 m0, s45, {slot*16384}")
                off = kt * 64 * 3584 if part == 0 else kt * 64 * 8192 + (part - 1) * 256
                pre.append(f"s_mov_b32 s46, {off}")
            if part == 0:
                d = f"buffer_load_dwordx4 v{V_D1+j}, s[{S_W1}:{S_W1+3}], s46 offen offset:{j*1024} lds"
            else:
                d = f"buffer_load_dwordx4 v{V_DQ+j}, s[{S_WQ}:{S_WQ+3}], s46 offen offset:{j*1024} lds"
            it.append((pre, d, []))
        return it

    segs = [pro]
    traces = []
    tails = {}
    extra = [lnp]
    vm_loop = [("dma", frozenset())] * 40
    for kind in range(2):
        nm = "KV"[kind]
        lp = Seg(f"k1_loop{nm}", pro.lds, vm_loop)
        lp.label(f"K1_LOOP_{nm}")
        d0, d1 = dma_items(0), dma_items(1)
        ktile(lp, kind, 0, d1[NK3:], d0[:NK3])
        ktile(lp, kind, 1, d0[NK3:], d1[:NK3])
        lp("s_add_u32 s42, s42, 1")
        lp("s_cmp_eq_u32 s42, s60")
        lp(f"s_cbranch_scc1 K1_SIG_{nm}")
        lp.label(f"K1_SIG_{nm}_RET")
        for it in range(1, 8):
            if f"it{it}" in opt.get("sp", []):
                lp(f"s_cmp_lg_u32 s42, {it}")
                lp(f"s_cbranch_scc1 K1_NS{it}_{nm}")
                stamp(lp, opt, f"it{it}", raw=True)
                lp.label(f"K1_NS{it}_{nm}")
        lp("s_cmp_lg_u32 s42, 6")
        lp(f"s_cbranch_scc1 K1_NOPOLL_{nm}")
        lp(f"global_load_dword v{V_FL}, v{V_FO}, s[{P_DBG}:{P_DBG+1}] sc1", "pf")
        lp.label(f"K1_NOPOLL_{nm}")
        lp("s_cmp_lt_u32 s42, 7")
        lp(f"s_cbranch_scc1 K1_LOOP_{nm}")
        tl = Seg(f"k1_tail{nm}", lp.lds, lp.vm)
        bd = [b_dma(u) for u in range(8)]
        tl(f"v_readfirstlane_b32 s61, v{V_FL}")
        ktile(tl, kind, 0, d1[NK3:], bd[0] + bd[1], pref=False, tag3="b0", xn=0)
        ktile(tl, kind, 1, bd[2] + bd[3], bd[4] + bd[5], last=True, pref=False, tag0="b1", tag3="b2", xn=14)
        sg = Seg(f"k1_sig{nm}")
        sg.label(f"K1_SIG_{nm}")
        sg("v_mov_b32 v7, 1")
        sg("s_mov_b64 exec, 1")
        sg(f"global_atomic_add v{V_FO}, v7, s[{P_DBG}:{P_DBG+1}]")
        sg("s_mov_b64 exec, -1")
        sg(f"s_branch K1_SIG_{nm}_RET")
        extra.append(sg)
        if kind == 0:
            tl("s_branch K1_EPI")
        segs += [lp, tl]
        tails[kind] = tl
        traces.append([pro, lp, lp, tl])

    e = Seg("k1_epi", tails[0].lds, tails[0].vm)
    e.label("K1_EPI")
    stamp(e, opt, 3)
    stamp(e, opt, "epi")
    e(f"s_cmp_lt_u32 s61, {99 if opt.get('force_fb') else 16}")
    e("s_cbranch_scc1 K1_FB")
    e.label("K1_FB_RET")
    fb = Seg("k1_fb")
    fb.label("K1_FB")
    fb.wait_force(vm=0)
    fb("s_lshl_b32 s7, s37, 7")
    fb("s_lshl_b32 s39, s3, 5")
    fb("s_add_u32 s7, s7, s39")
    fb("v_and_b32 v6, 31, v0")
    fb("v_add_u32 v6, s7, v6")
    fb("v_mul_u32_u24 v6, 896, v6")
    fb("v_lshrrev_b32 v7, 5, v0")
    fb("v_lshl_add_u32 v6, v7, 4, v6")
    for ks in range(28):
        fb(f"buffer_load_dwordx4 {v(V_XN+ks*4,4)}, v6, s[{S_X}:{S_X+3}], 0 offen offset:{ks*32}", "x")
    layernorm(fb, 112, (32,))
    fb.nop(2)
    fb("s_branch K1_FB_RET")
    extra.append(fb)
    D = opt.get("b_depth", 7)
    NF = NT * 16

    def b_read(f):
        u, rem = divmod(f, 16)
        ks, nb = divmod(rem, 4)
        slot = SLOT_ORDER[u % 8]
        fr = V_FA + (f % 8) * 4
        at = V_AT + (4 if slot >= 4 else 0) + nb
        return [f"ds_read_b64_tr_b16 {v(fr+2*h,2)}, v{at} offset:{(slot&3)*16384 + (16*ks+4*h)*256}" for h in range(2)]

    def kv_epi(b):
        i, j = divmod(b, 4)
        t = 8
        ops = [f"s_add_u32 s49, s48, {KV_OFF + j*32768 + (i>>1)*4096}"]
        for c in range(2):
            for r in range(8):
                ops.append(f"v_accvgpr_read_b32 v{t+r}, a{b*16+8*c+r}")
            for r in range(4):
                ops.append(f"v_cvt_pk_bf16_f32 v{t+8+r}, v{t+2*r}, v{t+2*r+1}")
            ops.append((f"buffer_store_dwordx4 {v(t+8,4)}, v{V_L16}, s[{S_WS}:{S_WS+3}], s49 offen offset:{(i&1)*2048+c*1024}{ST}", "st"))
        return ops

    QS = f32(math.log2(math.e) / 16.0)

    def q_epi(part):
        ops = []
        t = 20
        for nb in range(4):
            for c in range(2):
                if part == 0:
                    hb = H_ACC[nb] + 8 * c
                    for r in range(8):
                        ops.append(f"v_mul_f32 v{t+r}, {f32(-math.log2(math.e))}, v{hb+r}")
                    for r in range(8):
                        ops.append(f"v_exp_f32 v{t+r}, v{t+r}")
                    for r in range(8):
                        ops.append(f"v_add_f32 v{t+r}, 1.0, v{t+r}")
                    for r in range(8):
                        ops.append(f"v_rcp_f32 v{t+r}, v{t+r}")
                    for r in range(8):
                        ops.append(f"v_mul_f32 v{t+r}, v{t+r}, v{hb+r}")
                    sb = (51, 51, 52, 53)[nb]
                else:
                    ab = (part - 1) * 64 + nb * 16 + 8 * c
                    for r in range(8):
                        ops.append(f"v_accvgpr_read_b32 v{t+r}, a{ab+r}")
                    for r in range(8):
                        ops.append(f"v_mul_f32 v{t+r}, {QS}, v{t+r}")
                    sb = 54 + (part - 1) * 2 + (nb >> 1)
                for r in range(4):
                    ops.append(f"v_cvt_pk_bf16_f32 v{t+8+r}, v{t+2*r}, v{t+2*r+1}")
                ops.append((f"buffer_store_dwordx4 {v(t+8,4)}, v{V_L16}, s[{S_WS}:{S_WS+3}], s{sb} offen offset:{(nb&1)*2048 + c*1024}{SQ}", "st"))
        return ops

    spine, fill = [], {}
    e.wait_tag("b0")
    e("s_barrier")
    for f in range(D):
        for r in b_read(f):
            e(r)
    place_dma(fill, b_dma(6) + b_dma(7), 1, 24, "b3")
    for f in range(NF):
        u, rem = divmod(f, 16)
        part, kt = divmod(u, 7)
        ks, nb = divmod(rem, 4)
        acc = v(H_ACC[nb], 16) if part == 0 else a((part - 1) * 64 + nb * 16, 16)
        c = "0" if (kt == 0 and ks == 0) else acc
        spine.append(f"{MFMA} {acc}, {v(V_FA+(f%8)*4,4)}, {v(V_XN+(kt*4+ks)*4,4)}, {c}")
        nf = f + D
        if nf < NF:
            if nf % 32 == 0:
                g = nf // 32
                fill.setdefault(f, []).extend([lambda e, g=g: e.wait_tag(f"b{g}"), "s_barrier"])
                if g >= 2:
                    its = []
                    for u2 in (2 * g + 4, 2 * g + 5):
                        if u2 < NT:
                            its += b_dma(u2)
                    if its:
                        place_dma(fill, its, f + 2, f + 26, f"b{g+2}")
            fill.setdefault(f, []).extend(b_read(nf))
        if f % 2 == 0:
            r = v(V_FA + (min(f + 1, NF - 1) % 8) * 4, 4)
            fill.setdefault(f - 1, []).append(lambda e, r=r: wait_reg(e, r))
    nb1, nb2 = opt.get("kv_split", (9, 13))
    pour(fill, sum((kv_epi(b) for b in range(0, nb1)), []), 2, 108)
    pour(fill, q_epi(0), 112 + 5, 222)
    pour(fill, sum((kv_epi(b) for b in range(nb1, nb2)), []), 108, 222)
    pour(fill, q_epi(1), 224 + 5, 336)
    pour(fill, sum((kv_epi(b) for b in range(nb2, 16)), []), 222, 330)
    print(gap_report("k1(b)", fill, NF))
    weave(e, spine, fill)
    stamp(e, opt, 4)
    e.nop(12)
    run(e, q_epi(2))
    stamp(e, opt, 5)
    stamp(e, opt, "end")
    stamp_flush(e, opt, 0, S_WS, 6)
    e.label("K1_END")
    e("s_endpgm")
    segs.append(e)
    for t in traces:
        t.append(e)
    segs += extra
    traces += [[pro, lnp], [tails[0], fb, e]] + [[x] for x in extra]
    return segs, traces
```

```python
from emit import *
from common import *
from attn import *


def gen_k2(opt):
    e = Seg("k2_pro")
    e.label("attn_kernel")
    e("s_cmp_ge_u32 s2, 256")
    e("s_cbranch_scc1 K2_END")
    load_kernargs(e)
    e("v_lshrrev_b32 v1, 6, v0")
    e("v_and_b32 v0, 63, v0")
    e("v_readfirstlane_b32 s3, v1")
    e("s_and_b32 s4, s2, 7")
    e("s_lshr_b32 s5, s2, 3")
    e("s_lshl_b32 s4, s4, 1")
    e(f"s_and_b32 s{S_HEAD}, s5, 1")
    e(f"s_add_u32 s{S_HEAD}, s{S_HEAD}, s4")
    e(f"s_lshr_b32 s{S_QT}, s5, 1")
    setup_s(e)
    setup_dma(e)
    setup_v(e)
    e.wait_force(lgkm=0)
    srd(e, S_WS, P_WS, WS_BYTES)
    srd(e, S_WO, P_WO, WO_BYTES)
    srd(e, S_W2, P_W2, W2_BYTES)
    stamp(e, opt, 0)
    fl = first_loads()
    run(e, fl[0])
    e(f"s_sub_u32 s6, 15, s{S_QT}")
    e(f"s_max_u32 s7, s6, s{S_QT}")
    e(f"s_lshl_b32 s4, s{S_HEAD}, 6")
    e("s_add_u32 s4, s4, s3")
    e("s_lshl_b32 s5, s7, 2")
    e("s_add_u32 s5, s5, s4")
    e("s_lshl_b32 s5, s5, 14")
    e(f"s_add_u32 s5, s5, {Q_OFF}")
    for k in range(16):
        if k and k % 4 == 0:
            e("s_add_u32 s5, s5, 4096")
        e(f"buffer_load_dwordx4 {a(A_Q+4*k,4)}, v{V_L16}, s[{S_WS}:{S_WS+3}], s5 offen offset:{(k%4)*1024}", "q")
    for x in fl[1:]:
        run(e, x)
    e(f"s_lshl_b32 s5, s{S_QT}, 2")
    e("s_add_u32 s5, s5, s4")
    e("s_lshl_b32 s5, s5, 14")
    e(f"s_add_u32 s5, s5, {Q_OFF}")
    for k in range(16):
        if k and k % 4 == 0:
            e("s_add_u32 s5, s5, 4096")
        e(f"buffer_load_dwordx4 {a(A_Q2+4*k,4)}, v{V_L16}, s[{S_WS}:{S_WS+3}], s5 offen offset:{(k%4)*1024}", "q2")
    e(f"s_lshl_b32 s5, s{S_QT}, 2")
    e("s_add_u32 s5, s5, s3")
    e("s_mul_i32 s5, s5, 112")
    e(f"s_mul_i32 s6, s{S_HEAD}, 7")
    e("s_add_u32 s5, s5, s6")
    e("s_lshl_b32 s5, s5, 10")
    e(f"s_add_u32 s5, s5, {H_OFF}")
    for k in range(7):
        if k == 4:
            e("s_add_u32 s5, s5, 4096")
        e(f"buffer_load_dwordx4 {a(A_HF+4*k,4)}, v{V_L16}, s[{S_WS}:{S_WS+3}], s5 offen offset:{(k%4)*1024}", "hf")
    init_state(e)

    def finish(e):
        stamp(e, opt, 4)
        stamp_flush(e, opt, 1, S_WS, 5)

    return gen_attn(e, opt, "K2_END", finish)
```

```python
from emit import *
from common import *
import attn
from attn import S_HEAD, S_QT, S_W4K, S_PAIR, S_WS, S_WO, S_W2, A_Q, A_Q2, A_HF, V_L16, V_PD
import math

NAME = "parallel_sum__compressed_kv_cla__dense_activation_silu__prompt_kernel"
LDS_BYTES = 160 * 1024
S_CKV, S_W, S_X, S_WQ, S_W1, S_QST, S_OUT = 8, 12, 20, 24, 28, 68, 24
SA, SB, S_LP, S_W8K, S_SIGIT, S_KIND, S_BO, S_KVBASE, S_KVC, S_QB, S_QC, S_XNB, S_XNF = 53, 54, 55, 56, 57, 58, 59, 60, 61, 62, 63, 66, 67
S_HA, S_KVSLOT = 76, 77
V_PA, V_PB, V_FO, V_FL = 3, 4, 5, 6
V_AA, V_AB, V_DA, V_DB = 8, 12, 16, 24
V_FA, V_FB, V_XN = 32, 64, 96
V_DQ, V_D1, V_AT, V_T = 208, 212, 216, 224
SLOT_ORDER = [0, 1, 4, 5, 2, 3, 6, 7]
H_ACC = (64, 80, 224, 240)

def gen_mega(opt):
    ST = opt.get("kv_store_mod", " sc1")
    attn.KVM[0] = opt.get("kv_load_mod", "")
    opt = dict(opt)
    opt.setdefault("y_store_mod", " sc1")
    opt["spk"] = ""
    PFD = 2
    NPF = 2
    PMAX = opt.get("poll_max", 200000)
    e = Seg("m_pro")
    e.label(NAME)
    e("s_cmp_ge_u32 s2, 256")
    e("s_cbranch_scc1 M_END")
    stamp(e, opt, "entry")
    load_kernargs(e)
    e("v_lshrrev_b32 v1, 6, v0")
    e("v_and_b32 v0, 63, v0")
    e("v_readfirstlane_b32 s3, v1")
    e("s_and_b32 s4, s2, 7")
    e("s_lshl_b32 s4, s4, 1")
    e("s_lshr_b32 s5, s2, 3")
    e("s_and_b32 s34, s5, 7")
    e("s_lshr_b32 s35, s5, 3")
    e("s_and_b32 s42, s35, 1")
    e("s_add_u32 s42, s42, s4")
    e(f"s_lshr_b32 s{S_KIND}, s35, 1")
    e(f"s_lshr_b32 s{S_QT}, s5, 1")
    e(f"s_and_b32 s{S_HEAD}, s5, 1")
    e(f"s_add_u32 s{S_HEAD}, s{S_HEAD}, s4")
    e("s_and_b32 s36, s3, 1")
    e("s_lshr_b32 s37, s3, 1")
    L31, HI, G, R4, C = 224, 225, 226, 227, 228
    e(f"v_and_b32 v{L31}, 31, v0")
    e(f"v_lshrrev_b32 v{HI}, 5, v0")
    e(f"v_lshrrev_b32 v{G}, 4, v0")
    e(f"v_bfe_u32 v{R4}, v0, 2, 2")
    e(f"v_and_b32 v{C}, 3, v0")
    e("s_lshl_b32 s7, s34, 8")
    e("s_lshl_b32 s39, s35, 6")
    e("s_add_u32 s7, s7, s39")
    e("s_lshl_b32 s39, s3, 4")
    e("s_add_u32 s7, s7, s39")
    e("v_and_b32 v6, 15, v0")
    e("v_add_u32 v6, s7, v6")
    e(f"v_lshlrev_b32 v{V_PA}, 11, v6")
    e(f"v_lshl_add_u32 v7, v{G}, 7, v{V_PA}")
    e("s_lshl_b32 s7, s34, 3")
    e("s_lshl_b32 s39, s3, 1")
    e("s_add_u32 s7, s7, s39")
    e("v_bfe_u32 v6, v0, 2, 1")
    e("v_add_u32 v6, s7, v6")
    e("v_lshlrev_b32 v6, 13, v6")
    e(f"v_lshl_add_u32 v6, v{C}, 7, v6")
    e("s_lshl_b32 s7, s42, 9")
    e(f"v_add_u32 v{V_PB}, s7, v6")
    e("v_bfe_u32 v6, v0, 3, 2")
    e(f"v_lshl_add_u32 v5, v6, 19, v{V_PB}")
    e(f"s_lshl_b32 s7, s{S_QT}, 7")
    e(f"s_lshl_b32 s39, s{S_HEAD}, 3")
    e("s_add_u32 s7, s7, s39")
    e("v_and_b32 v6, 7, v0")
    e("v_add_u32 v6, s7, v6")
    e("v_mul_u32_u24 v6, 896, v6")
    e("v_lshrrev_b32 v1, 3, v0")
    e("v_lshl_add_u32 v6, v1, 4, v6")
    e("s_lshl_b32 s40, s3, 8")
    e("s_add_u32 s41, s40, 128")
    e("s_cmp_eq_u32 s3, 3")
    e("s_cselect_b32 s41, 0, s41")
    e.wait_force(lgkm=0)
    e(f"s_mov_b32 s{S_HA}, s42")
    e(f"s_lshl_b32 s{S_KVSLOT}, s{S_KIND}, 3")
    e(f"s_add_u32 s{S_KVSLOT}, s{S_KVSLOT}, s34")
    e(f"s_lshl_b32 s{S_KVSLOT}, s{S_KVSLOT}, 3")
    srd(e, S_CKV, P_CKV, CKV_BYTES)
    e(f"s_cmp_eq_u32 s{S_KIND}, 0")
    e(f"s_cselect_b32 s{S_W}, s{P_WUK}, s{P_WUV}")
    e(f"s_cselect_b32 s{S_W+1}, s{P_WUK+1}, s{P_WUV+1}")
    e(f"s_mov_b32 s{S_W+2}, {WU_BYTES:#x}")
    e(f"s_mov_b32 s{S_W+3}, 0x20000")
    srd(e, S_X, P_X, X_BYTES)
    stamp(e, opt, 0)
    stamp(e, opt, "karg")
    e(f"buffer_load_dword v{V_PD}, v7, s[{S_CKV}:{S_CKV+3}], 0 offen", "pf")
    e(f"buffer_load_dword v{V_PD}, v5, s[{S_W}:{S_W+3}], 0 offen", "pf")
    for i in range(7):
        e(f"buffer_load_dwordx4 {v(V_XN+i*4,4)}, v6, s[{S_X}:{S_X+3}], 0 offen offset:{i*128}", "x")
    e(f"buffer_load_dwordx4 {v(V_XN+28,4)}, v6, s[{S_X}:{S_X+3}], s40 offen", "x")
    e(f"buffer_load_dwordx4 {v(V_XN+32,4)}, v6, s[{S_X}:{S_X+3}], s41 offen", "x")
    e(f"v_add_u32 v{V_PA}, {PFD*128}, v{V_PA}")
    e(f"v_add_u32 v{V_PB}, {PFD*0x80000}, v{V_PB}")
    e("s_lshl_b32 s7, s34, 8")
    e("s_lshl_b32 s39, s3, 6")
    e("s_add_u32 s7, s7, s39")
    e("v_add_u32 v6, s7, v1")
    e("v_lshlrev_b32 v6, 11, v6")
    e("v_and_b32 v7, 7, v0")
    e(f"v_xor_b32 v7, v7, v{G}")
    e("v_lshlrev_b32 v7, 4, v7")
    for j in range(8):
        e(f"v_xor_b32 v{V_DA+j}, {(j&1)<<6}, v7")
        e(f"v_add_u32 v{V_DA+j}, v{V_DA+j}, v6")
        if j:
            e(f"v_add_u32 v{V_DA+j}, {j*16384-(j&3)*1024}, v{V_DA+j}")
    e("s_lshl_b32 s7, s3, 4")
    e(f"v_add_u32 v6, s7, v{HI}")
    e("v_lshlrev_b32 v6, 13, v6")
    e(f"s_lshl_b32 s7, s{S_HA}, 9")
    e("v_add_u32 v6, s7, v6")
    e(f"v_lshl_add_u32 v6, v{C}, 4, v6")
    e(f"v_lshrrev_b32 v7, 2, v{L31}")
    e(f"v_xor_b32 v7, v7, v{HI}")
    e("v_lshlrev_b32 v7, 6, v7")
    for j in range(8):
        e(f"v_xor_b32 v{V_DB+j}, {(j&1)<<7}, v7")
        e(f"v_add_u32 v{V_DB+j}, v{V_DB+j}, v6")
        if j:
            e(f"v_add_u32 v{V_DB+j}, {j*16384-(j&3)*1024}, v{V_DB+j}")
    e(f"s_lshl_b32 s{S_W8K}, s3, 13")
    e(f"s_mov_b32 s{SA}, 0")
    e(f"s_mov_b32 s{SB}, 0")

    def dma_items(b):
        it = []
        for j in range(8):
            pre = [f"s_add_u32 m0, s{S_W8K}, {b*32768 + (j>>2)*4096}"] if (j & 3) == 0 else []
            post = [f"s_add_u32 s{SA}, s{SA}, 128"] if j == 7 else []
            it.append((pre, f"buffer_load_dwordx4 v{V_DA+j}, s[{S_CKV}:{S_CKV+3}], s{SA} offen offset:{(j&3)*1024} lds", post))
        for j in range(8):
            pre = [f"s_add_u32 m0, s{S_W8K}, {65536 + b*32768 + (j>>2)*4096}"] if (j & 3) == 0 else []
            post = [f"s_add_u32 s{SB}, s{SB}, 0x80000"] if j == 7 else []
            it.append((pre, f"buffer_load_dwordx4 v{V_DB+j}, s[{S_W}:{S_W+3}], s{SB} offen offset:{(j&3)*1024} lds", post))
        return it

    NK3 = 8
    q = Seg("tmp")
    srd(q, S_WS, P_WS, WS_BYTES)
    srd(q, S_WQ, P_WQ, WQ_BYTES)
    srd(q, S_W1, P_W1, W1_BYTES)
    q("s_lshl_b32 s7, s36, 7")
    q(f"v_add_u32 v6, s7, v{L31}")
    q("v_lshlrev_b32 v6, 7, v6")
    q(f"v_bfe_u32 v7, v{L31}, 1, 3")
    q(f"v_xor_b32 v7, v7, v{HI}")
    q("v_lshl_add_u32 v6, v7, 4, v6")
    for k in range(4):
        q(f"v_xor_b32 v{V_AA+k}, {k<<5}, v6")
    q(f"v_lshrrev_b32 v6, 1, v{G}")
    q(f"v_lshl_add_u32 v6, v6, 3, v{R4}")
    q("v_lshlrev_b32 v6, 9, v6")
    q("s_lshl_b32 s7, s37, 8")
    q("s_add_u32 s7, s7, 0x10000")
    q("v_add_u32 v6, s7, v6")
    q(f"v_and_b32 v7, 1, v{G}")
    q("v_lshl_add_u32 v6, v7, 5, v6")
    q(f"v_lshl_add_u32 v6, v{C}, 3, v6")
    for nb in range(4):
        q(f"v_xor_b32 v7, {nb}, v{R4}")
        q(f"v_lshl_add_u32 v{V_AB+nb}, v7, 6, v6")
    q("s_lshl_b32 s7, s3, 4")
    q(f"v_add_u32 v6, s7, v{G}")
    q(f"v_xor_b32 v7, v{R4}, v{G}")
    q("v_lshlrev_b32 v7, 6, v7")
    q(f"v_lshl_add_u32 v7, v{C}, 4, v7")
    q(f"s_lshl_b32 s38, s{S_HEAD}, 9")
    q(f"v_lshlrev_b32 v{V_DQ}, 13, v6")
    q(f"v_add3_u32 v{V_DQ}, v{V_DQ}, v7, s38")
    for j in range(1, 4):
        q(f"v_add_u32 v{V_DQ+j}, {j*4*8192 - j*1024}, v{V_DQ}")
    q(f"s_mul_i32 s39, s{S_HEAD}, 224")
    q(f"v_mul_u32_u24 v{V_D1}, 3584, v6")
    q(f"v_add3_u32 v{V_D1}, v{V_D1}, v7, s39")
    for j in range(1, 4):
        q(f"v_add_u32 v{V_D1+j}, {j*4*3584 - j*1024}, v{V_D1}")
    q(f"v_lshrrev_b32 v6, 1, v{G}")
    q(f"v_lshl_add_u32 v6, v6, 3, v{R4}")
    q("v_lshlrev_b32 v6, 8, v6")
    q(f"v_and_b32 v7, 1, v{G}")
    q("v_lshl_add_u32 v6, v7, 5, v6")
    q(f"v_lshl_add_u32 v6, v{C}, 3, v6")
    for nb in range(4):
        q(f"v_xor_b32 v7, {nb}, v{R4}")
        q(f"v_lshl_add_u32 v{V_AT+nb}, v7, 6, v6")
        q(f"v_add_u32 v{V_AT+4+nb}, 0x10000, v{V_AT+nb}")
    q(f"s_mul_i32 s7, s{S_QT}, 28")
    q("s_mul_i32 s6, s3, 7")
    q("s_add_u32 s7, s7, s6")
    q("v_lshrrev_b32 v6, 2, v0")
    q("v_min_u32 v6, 6, v6")
    q("v_add_u32 v6, s7, v6")
    q("v_lshlrev_b32 v7, 13, v6")
    q(f"v_lshl_add_u32 v7, v{C}, 7, v7")
    q("v_add_u32 v229, s38, v7")
    q("v_mul_u32_u24 v7, 3584, v6")
    q(f"v_min_u32 v6, 2, v{C}")
    q("v_lshl_add_u32 v7, v6, 7, v7")
    q("v_add_u32 v230, s39, v7")
    q(f"s_lshl_b32 s{S_KVBASE}, s{S_HA}, 6")
    q("s_lshl_b32 s7, s34, 3")
    q(f"s_add_u32 s{S_KVBASE}, s{S_KVBASE}, s7")
    q("s_lshl_b32 s7, s36, 2")
    q(f"s_add_u32 s{S_KVBASE}, s{S_KVBASE}, s7")
    q(f"s_lshl_b32 s{S_KVBASE}, s{S_KVBASE}, 15")
    q(f"s_lshl_b32 s7, s{S_KIND}, 14")
    q(f"s_add_u32 s{S_KVBASE}, s{S_KVBASE}, s7")
    q("s_lshl_b32 s7, s37, 13")
    q(f"s_add_u32 s{S_KVBASE}, s{S_KVBASE}, s7")
    q(f"s_lshl_b32 s7, s{S_QT}, 2")
    q(f"v_and_b32 v{V_FO}, 15, v0")
    q(f"v_lshlrev_b32 v{V_FO}, 3, v{V_FO}")
    q(f"s_add_u32 s{S_XNB}, s7, s3")
    q(f"s_mul_i32 s{S_XNB}, s{S_XNB}, 28672")
    q(f"s_add_u32 s{S_XNB}, s{S_XNB}, {XN_OFF}")
    q(f"v_lshlrev_b32 v{V_L16}, 4, v0")
    for i in range(256):
        q(f"v_accvgpr_write_b32 a{i}, 0")
    work = [i.text for i in q.ins]
    first = [(x, "t0") for x in dma_items(0)] + [(x, "dma") for x in dma_items(1)[:NK3]]
    per = -(-len(work) // len(first))
    for k, ((pre, d, post), tag) in enumerate(first):
        for x in pre:
            e(x)
        e(d, tag)
        for x in post:
            e(x)
        for x in work[k * per:(k + 1) * per]:
            e(x)
    e(f"buffer_load_dword v{V_PD}, v229, s[{S_WQ}:{S_WQ+3}], 0 offen", "pf")
    e(f"buffer_load_dword v{V_PD}, v230, s[{S_W1}:{S_W1+3}], 0 offen", "pf")
    e("s_cmp_lg_u32 s3, 0")
    e("s_cbranch_scc1 M_NOCAS")
    e("s_memrealtime s[44:45]")
    e(f"v_mov_b32 v{V_XN+41}, 0")
    e.wait_force(lgkm=0)
    e("s_or_b32 s44, s44, 1")
    e(f"v_mov_b32 v{V_XN+40}, s44")
    e(f"v_mov_b32 v{V_XN+42}, s44")
    e("s_mov_b64 exec, 1")
    e.raw(f"global_atomic_cmpswap v{V_XN+43}, v{V_XN+41}, {v(V_XN+40,2)}, s[{P_DBG}:{P_DBG+1}] sc0")
    e("s_mov_b64 exec, -1")
    e.label("M_NOCAS")
    stamp(e, opt, "dma")
    e(f"s_lshr_b32 s7, s{S_HEAD}, 2")
    e(f"s_lshl_b32 s39, s{S_QT}, 2")
    e("s_add_u32 s7, s7, s39")
    e("s_mul_i32 s7, s7, 28672")
    e(f"s_add_u32 s7, s7, {XN_OFF}")
    e("s_lshl_b32 s40, s40, 5")
    e("s_lshl_b32 s41, s41, 5")
    e(f"s_add_u32 s{S_QB}, s40, s7")
    e(f"s_add_u32 s{S_QC}, s41, s7")
    e(f"s_and_b32 s39, s{S_HEAD}, 3")
    e("s_lshl_b32 s39, s39, 7")
    e("v_and_b32 v6, 7, v0")
    e("v_lshlrev_b32 v6, 4, v6")
    e("v_lshrrev_b32 v7, 3, v0")
    e("v_lshl_add_u32 v6, v7, 9, v6")
    e("v_add_u32 v6, s39, v6")
    attn.setup_s(e)
    e("s_cmp_eq_u32 s3, 0")
    e(f"s_cselect_b32 s{S_SIGIT}, 1, 99")
    e(f"s_mov_b32 s{S_QST}, s{P_WS}")
    e(f"s_mov_b32 s{S_QST+1}, s{P_WS+1}")
    e(f"s_cmp_ge_u32 s{S_QT}, 8")
    e(f"s_cselect_b32 s{S_QST+2}, {WS_BYTES:#x}, 0")
    e(f"s_mov_b32 s{S_QST+3}, 0x20000")
    stamp(e, opt, 1)

    T = V_T

    def layernorm(e, n, reduce, norm):
        e("s_mov_b32 s7, 0x3f803f80")
        for k in range(8):
            e(f"v_mov_b32 v{T+k}, 0")
        for r in range(n):
            e(f"v_dot2_f32_bf16 v{T+(r&3)}, v{V_XN+r}, s7, v{T+(r&3)}")
            e(f"v_dot2_f32_bf16 v{T+4+(r&3)}, v{V_XN+r}, v{V_XN+r}, v{T+4+(r&3)}")
        e.nop(4)
        e(f"v_add_f32 v{T}, v{T}, v{T+1}")
        e(f"v_add_f32 v{T+2}, v{T+2}, v{T+3}")
        e(f"v_add_f32 v{T+4}, v{T+4}, v{T+5}")
        e(f"v_add_f32 v{T+6}, v{T+6}, v{T+7}")
        e(f"v_add_f32 v{T}, v{T}, v{T+2}")
        e(f"v_add_f32 v{T+4}, v{T+4}, v{T+6}")
        for step in reduce:
            if step == 8:
                e.nop(2)
                e(f"v_add_f32_dpp v{T}, v{T}, v{T} row_ror:8 row_mask:0xf bank_mask:0xf")
                e(f"v_add_f32_dpp v{T+4}, v{T+4}, v{T+4} row_ror:8 row_mask:0xf bank_mask:0xf")
            else:
                e(f"v_mov_b32 v{T+1}, v{T}")
                e(f"v_mov_b32 v{T+5}, v{T+4}")
                e.nop(2)
                e(f"v_permlane{step}_swap_b32 v{T}, v{T+1}")
                e(f"v_permlane{step}_swap_b32 v{T+4}, v{T+5}")
                e(f"v_add_f32 v{T}, v{T}, v{T+1}")
                e(f"v_add_f32 v{T+4}, v{T+4}, v{T+5}")
        e(f"v_mul_f32 v{T}, {f32(1/448)}, v{T}")
        e(f"v_mul_f32 v{T+4}, {f32(1/448)}, v{T+4}")
        e(f"v_fma_f32 v{T+4}, -v{T}, v{T}, v{T+4}")
        e(f"v_max_f32 v{T+4}, 0, v{T+4}")
        e(f"v_add_f32 v{T+4}, {f32(1e-5)}, v{T+4}")
        e(f"v_rsq_f32 v{T+4}, v{T+4}")
        e(f"v_mul_f32 v{T}, v{T}, v{T+4}")
        e(f"v_mov_b32 v{T+5}, v{T+4}")
        e(f"v_sub_f32 v{T}, 0, v{T}")
        e(f"v_mov_b32 v{T+1}, v{T}")
        for r in norm:
            t = T + 8 + (r % 8) * 2
            e(f"v_lshlrev_b32 v{t}, 16, v{V_XN+r}")
            e(f"v_and_b32 v{t+1}, 0xffff0000, v{V_XN+r}")
            e(f"v_pk_fma_f32 {v(t,2)}, {v(t,2)}, {v(T+4,2)}, {v(T,2)}")
            e(f"v_cvt_pk_bf16_f32 v{V_XN+r}, v{t}, v{t+1}")

    layernorm(e, 28, (8, 16, 32), range(28, 36))
    e(f"buffer_store_dwordx4 {v(V_XN+28,4)}, v6, s[{S_WS}:{S_WS+3}], s{S_QB} offen sc1", "st")
    e(f"buffer_store_dwordx4 {v(V_XN+32,4)}, v6, s[{S_WS}:{S_WS+3}], s{S_QC} offen sc1", "st")
    e(f"s_lshl_b32 s{S_QB}, s{S_PAIR}, 2")
    e(f"s_add_u32 s{S_QB}, s{S_QB}, s3")
    e(f"s_lshl_b32 s{S_QB}, s{S_QB}, 14")
    e(f"s_add_u32 s{S_QB}, s{S_QB}, {Q_OFF}")

    def frag_reads(b, ks, st):
        r = []
        fa, fb = V_FA + st * 16, V_FB + st * 16
        order = [("a", 0), ("b", 0), ("a", 1), ("a", 2), ("a", 3), ("b", 1), ("b", 2), ("b", 3)]
        for t, i in order:
            if t == "a":
                r.append(f"ds_read_b128 {v(fa+i*4,4)}, v{V_AA+ks} offset:{i*4096 + b*32768}")
            else:
                for u in range(2):
                    r.append(f"ds_read_b64_tr_b16 {v(fb+i*4+u*2,2)}, v{V_AB+i} offset:{(16*ks+4*u)*512 + b*32768}")
        return r

    e.wait_tag("t0")
    stamp(e, opt, "t0")
    e("s_barrier")
    stamp(e, opt, "bar")
    for r in frag_reads(0, 0, 0):
        e(r)
    e(f"s_mov_b32 s{S_LP}, 0")
    e(f"s_cmp_eq_u32 s{S_KIND}, 0")
    e("s_cbranch_scc0 M_LOOP_V")
    pro = e

    def place_dma(fill, items, g0, g1, tag="dma"):
        n = len(items)
        for k, (pre, d, post) in enumerate(items):
            g = g0 + (k * (g1 - g0)) // n
            for x in pre:
                fill.setdefault(g - 1, []).append(x)
            fill.setdefault(g, []).append((d, tag))
            for x in post:
                fill.setdefault(g, []).append(x)

    def ktile(e, kind, b, dma_k0, dma_k3, last=False, pref=True, tag3="dma", tag0="dma", xn=None):
        for ks in range(4):
            st = ks & 1
            fa, fb = V_FA + st * 16, V_FB + st * 16
            spine = []
            for i in range(4):
                for j in range(4):
                    acc = a((i * 4 + j) * 16, 16)
                    W, Cc = v(fb + i * 4, 4), v(fa + j * 4, 4)
                    A, B = (W, Cc) if kind == 0 else (Cc, W)
                    spine.append(f"{MFMA} {acc}, {A}, {B}, {acc}")
            fill = {}
            fill[-1] = [lambda e: e.wait_force(lgkm=0)]
            if ks < 3:
                spread(fill, frag_reads(b, ks + 1, st ^ 1), 0, 12)
                if ks == 0 and dma_k0:
                    place_dma(fill, dma_k0, 1, 16, tag0)
                if ks == 1 and pref:
                    fill.setdefault(4, []).append((f"buffer_load_dword v{V_PD}, v{V_PA}, s[{S_CKV}:{S_CKV+3}], s{SA} offen", "pf"))
                    fill.setdefault(13, []).append((f"buffer_load_dword v{V_PD}, v{V_PB}, s[{S_W}:{S_W+3}], s{SB} offen", "pf"))
                if ks in (1, 2) and xn is not None:
                    k0 = xn + (ks - 1) * 7
                    for k in range(k0, k0 + 7):
                        g = 1 + 2 * (k - k0)
                        if k % 4 == 0 and k:
                            fill.setdefault(g - 1, []).append(f"s_add_u32 s{S_XNB}, s{S_XNB}, 4096")
                        fill.setdefault(g, []).append((f"buffer_load_dwordx4 {v(V_XN+4*k,4)}, v{V_L16}, s[{S_WS}:{S_WS+3}], s{S_XNB} offen offset:{(k%4)*1024} sc1", "xn"))
            else:
                if last:
                    fill[0] = ["s_barrier"]
                else:
                    fill[0] = [lambda e: e.wait_force(vm=(NPF if pref else 0) + (14 if xn is not None else 0)), "s_barrier"]
                    spread(fill, frag_reads(b ^ 1, 0, 0), 0, 12)
                if dma_k3:
                    place_dma(fill, dma_k3, 2, 16, tag3)
            weave(e, spine, fill)

    NT = 21

    def b_dma(u):
        part, kt = divmod(u, 7)
        slot = SLOT_ORDER[u % 8]
        it = []
        for j in range(4):
            pre = []
            if j == 0:
                pre.append(f"s_add_u32 m0, s{S_W4K}, {slot*16384}")
                off = kt * 64 * 3584 if part == 2 else kt * 64 * 8192 + part * 256
                pre.append(f"s_mov_b32 s{S_BO}, {off}")
            if part == 2:
                d = f"buffer_load_dwordx4 v{V_D1+j}, s[{S_W1}:{S_W1+3}], s{S_BO} offen offset:{j*1024} lds"
            else:
                d = f"buffer_load_dwordx4 v{V_DQ+j}, s[{S_WQ}:{S_WQ+3}], s{S_BO} offen offset:{j*1024} lds"
            it.append((pre, d, []))
        return it

    segs = [pro]
    traces = []
    tails = {}
    extra = []
    vm_loop = [("dma", frozenset())] * 40
    for kind in range(2):
        nm = "KV"[kind]
        lp = Seg(f"m_loop{nm}", pro.lds, vm_loop)
        lp.label(f"M_LOOP_{nm}")
        d0, d1 = dma_items(0), dma_items(1)
        ktile(lp, kind, 0, d1[NK3:], d0[:NK3])
        ktile(lp, kind, 1, d0[NK3:], d1[:NK3])
        lp(f"s_add_u32 s{S_LP}, s{S_LP}, 1")
        lp(f"s_cmp_eq_u32 s{S_LP}, s{S_SIGIT}")
        lp(f"s_cbranch_scc1 M_SIG_{nm}")
        lp.label(f"M_SIG_{nm}_RET")
        for it in range(1, 8):
            if f"it{it}" in opt.get("sp", []):
                lp(f"s_cmp_lg_u32 s{S_LP}, {it}")
                lp(f"s_cbranch_scc1 M_NS{it}_{nm}")
                stamp(lp, opt, f"it{it}", raw=True)
                lp.label(f"M_NS{it}_{nm}")
        lp(f"s_cmp_lg_u32 s{S_LP}, 6")
        lp(f"s_cbranch_scc1 M_NOPOLL_{nm}")
        flag_line(lp, 7, FL_XN, S_QT)
        lp(f"buffer_load_dwordx2 {v(V_FL,2)}, v{V_FO}, s[{S_WS}:{S_WS+3}], s7 offen sc1", "pf")
        lp(f"v_mov_b32 v{V_XN+40}, {LDS_NONCE}")
        lp.raw(f"ds_read_b64 {v(V_XN+42,2)}, v{V_XN+40}")
        lp.label(f"M_NOPOLL_{nm}")
        lp(f"s_cmp_lt_u32 s{S_LP}, 7")
        lp(f"s_cbranch_scc1 M_LOOP_{nm}")
        tl = Seg(f"m_tail{nm}", lp.lds, lp.vm)
        bd = [b_dma(u) for u in range(8)]
        tl(f"v_readfirstlane_b32 s{S_N0}, v{V_XN+42}")
        tl(f"v_readfirstlane_b32 s{S_N1}, v{V_XN+43}")
        tl.nop(2)
        flag_test(tl, V_FL)
        tl(f"s_cselect_b32 s{S_XNF}, 1, 0")
        ktile(tl, kind, 0, d1[NK3:], bd[0] + bd[1], pref=False, tag3="b0", xn=0)
        ktile(tl, kind, 1, bd[2] + bd[3], bd[4] + bd[5], last=True, pref=False, tag0="b1", tag3="b2", xn=14)
        if kind == 0:
            tl("s_branch M_B")
        sg = Seg(f"m_sig{nm}")
        sg.label(f"M_SIG_{nm}")
        sg(f"v_readfirstlane_b32 s{S_N0}, v{V_XN+43}")
        sg(f"v_readfirstlane_b32 s{S_N1}, v{V_XN+42}")
        sg(f"s_cmp_eq_u32 s{S_N0}, 0")
        sg(f"s_cselect_b32 s{S_N0}, s{S_N1}, s{S_N0}")
        sg(f"s_xor_b32 s{S_N1}, s{S_N0}, {NONCE_K:#x}")
        flag_line(sg, 7, FL_XN, S_QT)
        sg(f"s_lshl_b32 s6, s{S_HEAD}, 3")
        flag_set(sg, S_WS, 7, "s6", V_XN + 40)
        sg(f"v_mov_b32 v{V_XN+42}, {LDS_NONCE}")
        sg(f"ds_write_b64 v{V_XN+42}, {v(V_XN+40,2)}")
        sg(f"s_branch M_SIG_{nm}_RET")
        extra.append(sg)
        segs += [lp, tl]
        tails[kind] = tl
        traces.append([pro, lp, lp, tl])

    e = Seg("m_b", tails[0].lds, tails[0].vm)
    e.label("M_B")
    stamp(e, opt, 2)
    stamp(e, opt, "b")
    e(f"s_cmp_lt_u32 s{S_XNF}, {99 if opt.get('force_fb') else 1}")
    e("s_cbranch_scc1 M_FB")
    e.label("M_FB_RET")
    srd(e, S_WO, P_WO, WO_BYTES)
    srd(e, S_W2, P_W2, W2_BYTES)
    attn.setup_dma(e)
    fb = Seg("m_fb")
    fb.label("M_FB")
    fb.wait_force(vm=0)
    fb(f"s_lshl_b32 s7, s{S_QT}, 7")
    fb("s_lshl_b32 s6, s3, 5")
    fb("s_add_u32 s7, s7, s6")
    fb("v_and_b32 v6, 31, v0")
    fb("v_add_u32 v6, s7, v6")
    fb("v_mul_u32_u24 v6, 896, v6")
    fb("v_lshrrev_b32 v7, 5, v0")
    fb("v_lshl_add_u32 v6, v7, 4, v6")
    for ks in range(28):
        fb(f"buffer_load_dwordx4 {v(V_XN+ks*4,4)}, v6, s[{S_X}:{S_X+3}], 0 offen offset:{ks*32}", "x")
    layernorm(fb, 112, (32,), range(112))
    fb.nop(2)
    fb("s_branch M_FB_RET")
    extra.append(fb)

    D = opt.get("b_depth", 7)
    NF = NT * 16

    def b_read(f):
        u, rem = divmod(f, 16)
        ks, nb = divmod(rem, 4)
        slot = SLOT_ORDER[u % 8]
        fr = V_FA + (f % 8) * 4
        at = V_AT + (4 if slot >= 4 else 0) + nb
        return [f"ds_read_b64_tr_b16 {v(fr+2*h,2)}, v{at} offset:{(slot&3)*16384 + (16*ks+4*h)*256}" for h in range(2)]

    def kv_epi(b):
        i, j = divmod(b, 4)
        t = 8
        ops = [f"s_add_u32 s{S_KVC}, s{S_KVBASE}, {KV_OFF + j*32768 + (i>>1)*4096}"]
        for c in range(2):
            for r in range(8):
                ops.append(f"v_accvgpr_read_b32 v{t+r}, a{b*16+8*c+r}")
            for r in range(4):
                ops.append(f"v_cvt_pk_bf16_f32 v{t+8+r}, v{t+2*r}, v{t+2*r+1}")
            ops.append((f"buffer_store_dwordx4 {v(t+8,4)}, v{V_L16}, s[{S_WS}:{S_WS+3}], s{S_KVC} offen offset:{(i&1)*2048+c*1024}{ST}", "kvst"))
        return ops

    QS = f32(math.log2(math.e) / 16.0)

    def q_epi(part):
        ops = []
        t = 20
        for nb in range(4):
            if nb % 2 == 0:
                ops.append(f"s_add_u32 s{S_QC}, s{S_QB}, {part*8192 + (nb>>1)*4096}")
            for c in range(2):
                if part == 0:
                    for r in range(8):
                        ops.append(f"v_mul_f32 v{t+r}, {QS}, v{H_ACC[nb]+8*c+r}")
                else:
                    for r in range(8):
                        ops.append(f"v_accvgpr_read_b32 v{t+r}, a{nb*16+8*c+r}")
                    for r in range(8):
                        ops.append(f"v_mul_f32 v{t+r}, {QS}, v{t+r}")
                for r in range(4):
                    ops.append(f"v_cvt_pk_bf16_f32 v{t+8+r}, v{t+2*r}, v{t+2*r+1}")
                ops.append((f"buffer_store_dwordx4 {v(t+8,4)}, v{V_L16}, s[{S_QST}:{S_QST+3}], s{S_QC} offen offset:{(nb&1)*2048 + c*1024} sc1", "qst"))
                for r in range(4):
                    ops.append(f"v_accvgpr_write_b32 a{A_Q2 + part*32 + nb*8 + c*4 + r}, v{t+8+r}")
        return ops

    def h_epi():
        ops = []
        for k in range(7):
            nb, c = divmod(k, 2)
            t = 8 + (k % 2) * 12
            hb = H_ACC[nb] + 8 * c
            for r in range(8):
                ops.append(f"v_mul_f32 v{t+r}, {f32(-math.log2(math.e))}, v{hb+r}")
            for r in range(8):
                ops.append(f"v_exp_f32 v{t+r}, v{t+r}")
            for r in range(8):
                ops.append(f"v_add_f32 v{t+r}, 1.0, v{t+r}")
            for r in range(8):
                ops.append(f"v_rcp_f32 v{t+r}, v{t+r}")
            for r in range(8):
                ops.append(f"v_mul_f32 v{t+r}, v{t+r}, v{hb+r}")
            for r in range(4):
                ops.append(f"v_cvt_pk_bf16_f32 v{t+8+r}, v{t+2*r}, v{t+2*r+1}")
            for r in range(4):
                ops.append(f"v_accvgpr_write_b32 a{A_HF + 4*k + r}, v{t+8+r}")
        return ops

    GKV, GQ = opt.get("g_kv", 8), opt.get("g_q", 10)
    spine, fill = [], {}
    e.wait_tag("b0")
    e("s_barrier")
    for f in range(D):
        for r in b_read(f):
            e(r)
    place_dma(fill, b_dma(6) + b_dma(7), 1, 24, "b3")
    for f in range(NF):
        u, rem = divmod(f, 16)
        part, kt = divmod(u, 7)
        ks, nb = divmod(rem, 4)
        acc = a(nb * 16, 16) if part == 1 else v(H_ACC[nb], 16)
        c = "0" if (kt == 0 and ks == 0) else acc
        spine.append(f"{MFMA} {acc}, {v(V_FA+(f%8)*4,4)}, {v(V_XN+(kt*4+ks)*4,4)}, {c}")
        nf = f + D
        if nf < NF:
            if nf % 32 == 0:
                g = nf // 32
                ops = [lambda e, g=g: e.wait_tag(f"b{g}")]
                if g == GKV:
                    ops.append(lambda e: e.wait_tag("kvst"))
                if g == GQ:
                    ops.append(lambda e: e.wait_tag("qst"))
                ops.append("s_barrier")
                if g == GKV:
                    ops += ["s_cmp_eq_u32 s3, 0", "s_cbranch_scc1 M_SKV", "M_SKV_RET:"]
                if g == GQ:
                    ops += ["s_cmp_eq_u32 s3, 0", "s_cbranch_scc1 M_SQ", "M_SQ_RET:"]
                fill.setdefault(f, []).extend(ops)
                if g >= 2:
                    its = []
                    for u2 in (2 * g + 4, 2 * g + 5):
                        if u2 < NT:
                            its += b_dma(u2)
                    if its:
                        place_dma(fill, its, f + 2, f + 26, f"b{g+2}")
            fill.setdefault(f, []).extend(b_read(nf))
        if f % 2 == 0:
            r = v(V_FA + (min(f + 1, NF - 1) % 8) * 4, 4)
            fill.setdefault(f - 1, []).append(lambda e, r=r: wait_reg(e, r))
    nb1, gkv_end, gq0, gq1 = opt.get("kv_split", (11, 190, 117, 290))
    pour(fill, sum((kv_epi(b) for b in range(0, nb1)), []), 2, 108)
    pour(fill, sum((kv_epi(b) for b in range(nb1, 16)), []), 108, gkv_end)
    pour(fill, q_epi(0), gq0, 220)
    pour(fill, q_epi(1), 224 + 5, gq1)
    gp = opt.get("g_poll", 322)
    fill.setdefault(gp, []).extend(["s_cmp_eq_u32 s3, 0", "s_cbranch_scc1 M_P1", "M_P1_RET:"])
    print(gap_report("phase B", fill, NF))
    weave(e, spine, fill)
    stamp(e, opt, 3)
    stamp(e, opt, "bend")

    skv = Seg("m_skv")
    skv.label("M_SKV")
    flag_line(skv, 7, FL_KV, S_HA)
    flag_set(skv, S_WS, 7, f"s{S_KVSLOT}", 8)
    skv("s_branch M_SKV_RET")
    sq = Seg("m_sq")
    sq.label("M_SQ")
    sq(f"s_cmp_lt_u32 s{S_QT}, 8")
    sq("s_cbranch_scc1 M_SQ_RET")
    flag_line(sq, 7, FL_PAIR, S_PAIR)
    flag_set(sq, S_WS, 7, 0, 8)
    sq("s_branch M_SQ_RET")

    def poll_loads(e):
        e(f"buffer_load_dwordx2 v[10:11], v{V_FO}, s[{S_WS}:{S_WS+3}], s72 offen sc1")
        e(f"buffer_load_dwordx2 v[12:13], v14, s[{S_WS}:{S_WS+3}], s73 offen sc1")

    p1 = Seg("m_p1")
    p1.label("M_P1")
    flag_line(p1, 72, FL_KV, S_HEAD)
    flag_line(p1, 73, FL_PAIR, S_PAIR)
    p1(f"s_cmp_ge_u32 s{S_QT}, 8")
    p1("s_cselect_b32 s73, s72, s73")
    p1("v_mov_b32 v14, 0")
    poll_loads(p1)
    p1("s_branch M_P1_RET")
    extra += [skv, sq, p1]

    e("s_cmp_lg_u32 s3, 0")
    e("s_cbranch_scc1 M_POLL_OK")
    e("s_mov_b32 s6, 0")
    e.label("M_POLL")
    e.wait_force(vm=0)
    flag_test(e, 10)
    e("s_cselect_b32 s7, 1, 0")
    flag_test(e, 12)
    e("s_cselect_b32 s7, s7, 0")
    e("s_cmp_eq_u32 s7, 1")
    e("s_cbranch_scc1 M_POLL_OK")
    e("s_sleep 4")
    poll_loads(e)
    e("s_add_u32 s6, s6, 1")
    e(f"s_cmp_lt_u32 s6, {PMAX}")
    e("s_cbranch_scc1 M_POLL")
    e.wait_force(vm=0)
    e.label("M_POLL_OK")
    e.wait_force(lgkm=0)
    e("s_barrier")
    stamp(e, opt, "polled")
    e(f"s_cmp_ge_u32 s{S_QT}, 8")
    e("s_cbranch_scc1 M_BIGQ")
    for k in range(16):
        if k and k % 4 == 0:
            e(f"s_add_u32 s{S_QB}, s{S_QB}, 4096")
        e(f"buffer_load_dwordx4 {a(A_Q+4*k,4)}, v{V_L16}, s[{S_WS}:{S_WS+3}], s{S_QB} offen offset:{(k%4)*1024} sc1", "q")
    e.label("M_BIGQ")
    fl = attn.first_loads()
    he = h_epi()
    per = -(-len(he) // 24)
    k = 0
    for grp in fl:
        for x in grp:
            run(e, [x])
            if isinstance(x, tuple):
                run(e, he[k * per:(k + 1) * per])
                k += 1
    e(f"s_cmp_ge_u32 s{S_QT}, 8")
    e("s_cbranch_scc1 M_COPYQ")
    e.label("M_COPYQ_RET")
    cq = Seg("m_copyq")
    cq.label("M_COPYQ")
    for r in range(64):
        cq(f"v_accvgpr_mov_b32 a{A_Q+r}, a{A_Q2+r}")
    cq("s_branch M_COPYQ_RET")
    extra.append(cq)
    srd(e, S_OUT, P_OUT, OUT_BYTES)
    attn.setup_v(e)
    attn.init_state(e)
    stamp(e, opt, 4)
    stamp(e, opt, "a0")

    def finish(e):
        stamp(e, opt, "yend")
        e.wait_force(vm=0)
        e("s_barrier")
        flag_line(e, 55, FL_Y, S_QT)
        e("s_cmp_lg_u32 s3, 0")
        e("s_cbranch_scc1 M_NOSY")
        e(f"s_lshl_b32 s6, s{S_HEAD}, 3")
        flag_set(e, S_WS, 55, "s6", 8)
        e.label("M_NOSY")
        e(f"s_lshl_b32 s7, s{S_QT}, 2")
        e(f"s_lshr_b32 s4, s{S_HEAD}, 2")
        e("s_add_u32 s4, s4, s7")
        e(f"s_and_b32 s5, s{S_HEAD}, 3")
        e("s_lshl_b32 s6, s3, 2")
        e("s_add_u32 s5, s5, s6")
        e("s_mul_i32 s6, s4, 28")
        e("s_add_u32 s6, s6, s5")
        e("s_lshl_b32 s6, s6, 10")
        e(f"s_add_u32 s53, s6, {Y_OFF}")
        e("s_add_u32 s54, s53, 16384")
        e("v_and_b32 v2, 31, v0")
        e("v_lshrrev_b32 v3, 5, v0")
        e("s_lshl_b32 s4, s4, 5")
        e("v_add_u32 v2, s4, v2")
        e("v_mul_u32_u24 v2, 896, v2")
        e("v_lshl_add_u32 v2, v3, 3, v2")
        e("s_lshl_b32 s5, s5, 5")
        e("v_add_u32 v2, s5, v2")
        e(f"buffer_load_dwordx2 v[12:13], v2, s[{S_X}:{S_X+3}], 0 offen")
        e(f"buffer_load_dwordx2 v[14:15], v2, s[{S_X}:{S_X+3}], 0 offen offset:16")
        e(f"buffer_load_dwordx2 v[16:17], v2, s[{S_X}:{S_X+3}], 0 offen offset:512")
        e(f"buffer_load_dwordx2 v[18:19], v2, s[{S_X}:{S_X+3}], 0 offen offset:528")
        e("s_cmp_lg_u32 s3, 0")
        e("s_cbranch_scc1 M_YOK")
        e("s_mov_b32 s6, 0")
        e.label("M_YPOLL")
        e(f"buffer_load_dwordx2 v[10:11], v{V_FO}, s[{S_WS}:{S_WS+3}], s55 offen sc1")
        e.wait_force(vm=0)
        flag_test(e, 10)
        e("s_cbranch_scc1 M_YOK")
        e("s_sleep 2")
        e("s_add_u32 s6, s6, 1")
        e(f"s_cmp_lt_u32 s6, {PMAX}")
        e("s_cbranch_scc1 M_YPOLL")
        e.label("M_YOK")
        e.wait_force(vm=0)
        e("s_barrier")
        stamp(e, opt, "ypoll")

        def loads(base, sreg):
            for h in range(16):
                e(f"buffer_load_dwordx4 {v(base+4*h,4)}, v{V_L16}, s[{S_WS}:{S_WS+3}], s{sreg} offen sc1")
                if h < 15:
                    e(f"s_add_u32 s{sreg}, s{sreg}, {64*28*1024}")

        def reduce(base, xr, off):
            acc, t = 20, 28
            for r in range(4):
                e(f"v_lshlrev_b32 v{acc+2*r}, 16, v{xr+r}")
                e(f"v_and_b32 v{acc+1+2*r}, 0xffff0000, v{xr+r}")
            for h in range(16):
                for r in range(4):
                    src = base + 4 * h + r
                    u = t + 2 * (r & 1)
                    e(f"v_lshlrev_b32 v{u}, 16, v{src}")
                    e(f"v_and_b32 v{u+1}, 0xffff0000, v{src}")
                    e(f"v_pk_add_f32 {v(acc+2*r,2)}, {v(acc+2*r,2)}, {v(u,2)}")
            for r in range(4):
                e(f"v_cvt_pk_bf16_f32 v{xr+r}, v{acc+2*r}, v{acc+1+2*r}")
            e(f"buffer_store_dwordx2 {v(xr,2)}, v2, s[{S_OUT}:{S_OUT+3}], 0 offen offset:{off}")
            e(f"buffer_store_dwordx2 {v(xr+2,2)}, v2, s[{S_OUT}:{S_OUT+3}], 0 offen offset:{off+16}")

        e("s_cmp_eq_u32 s3, 3")
        e("s_cbranch_scc1 M_ONE")
        loads(96, 54)
        e.label("M_ONE")
        vm_save = list(e.vm)
        e.vm = []
        loads(32, 53)
        reduce(32, 12, 0)
        e("s_cmp_eq_u32 s3, 3")
        e("s_cbranch_scc1 M_DONE")
        reduce(96, 16, 512)
        e.label("M_DONE")
        stamp(e, opt, 5)
        stamp(e, opt, "end")
        stamp_flush(e, opt, 0, S_WS, 6)

    aopt = dict(opt)
    if not opt.get("sp"):
        aopt["sp"] = ["none"]
        aopt["spk"] = ""
    asegs, atraces = attn.gen_attn(e, aopt, "M_END", finish)
    segs += asegs + extra
    for t in traces:
        t.append(e)
    traces += atraces + [[tails[0], fb, e]] + [[x] for x in extra]
    return segs, traces
```

```python
import sys, json
from emit import *
from common import *
import k1

NAME = "parallel_sum__compressed_kv_cla__dense_activation_silu__prompt"

def build(opt, kernels=("k1", "k2", "k3")):
    hdr = []
    body = []
    kds = []
    probs = []
    def finish(segs, traces):
        done = set()
        for t in traces:
            prev = []
            for sg in t:
                if id(sg) not in done:
                    fix_hazards(sg, prev)
                    done.add(id(sg))
                prev = sg.ins[-40:]
        for n, t in enumerate(traces):
            ins = [i for sg in t for i in sg.ins]
            probs.extend(check_trace("+".join(sg.name for sg in t), ins))
        body.append(".p2align 8\n" + "".join(sg.text() for sg in segs))
    if "mega" in kernels:
        import mega
        hdr.append(f"; @launch grid=(256,1,1) block=(256,1,1) lds={mega.LDS_BYTES}")
        finish(*mega.gen_mega(opt))
        kds.append(kd(mega.NAME, 512, 256))
    if "k1" in kernels:
        hdr.append("; @launch kernel=proj_kernel grid=(256,1,1) block=(256,1,1) lds=131072")
        finish(*k1.gen_k1(opt))
        kds.append(kd("proj_kernel", 512, 256))
    if "k2" in kernels:
        import k2
        hdr.append(f"; @launch kernel=attn_kernel grid=(256,1,1) block=(256,1,1) lds={k2.LDS_BYTES}")
        finish(*k2.gen_k2(opt))
        kds.append(kd("attn_kernel", 512, 256))
    if "k3" in kernels:
        import k3
        hdr.append(f"; @launch kernel=reduce_kernel grid=({k3.GRID},1,1) block=(256,1,1) lds=0")
        finish(*k3.gen_k3(opt))
        kds.append(kd("reduce_kernel", k3.VGPRS, k3.VGPRS))
    ref = open(f"cdna_kernels/{NAME}.s.ref").read().splitlines()
    top = [l for l in ref if l.startswith(";") and "@launch" not in l and "Override" not in l and "grid=ceil" not in l]
    txt = "\n".join(top) + "\n" + "\n".join(hdr) + "\n"
    txt += '.amdgcn_target "amdgcn-amd-amdhsa--gfx950"\n.text\n'
    for k in ("proj_kernel", "attn_kernel", "reduce_kernel"):
        if any(k in h for h in hdr):
            txt += f".globl {k}\n.type {k},@function\n"
    if "mega" in kernels:
        txt += f".globl {NAME}_kernel\n.type {NAME}_kernel,@function\n"
    txt += "".join(body)
    txt += '.section .rodata,"a"\n'
    for k in kds:
        txt += ".p2align 6\n" + k
    return txt, probs

if __name__ == "__main__":
    out = sys.argv[1]
    kernels = sys.argv[2].split(",") if len(sys.argv) > 2 else ("k1", "k2", "k3")
    opt = json.loads(sys.argv[3]) if len(sys.argv) > 3 else {}
    import emit
    emit.VMEM_COST[0] = opt.get('vmem_cost', 1)
    emit.W2_ORDER[0] = opt.get('w2_order', 1)
    txt, probs = build(opt, kernels)
    for p in probs[:40]:
        print("PROBLEM", p)
    open(out, "w").write(txt)
    print("wrote", out, len(txt), "bytes;", len(probs), "problems")
```

```python
from emit import *
from common import *

LDS_BYTES = 160 * 1024
S_WS, S_WO, S_W2, S_Y1 = 16, 8, 12, 28
V_L16, V_PD = 1, 2
V_DMA, V_DMA2 = 3, 4
V_L0, V_L1, V_VA, V_D0, V_NEGBIG, V_MAX, V_MS = 8, 9, 10, 13, 14, 15, 16
V_T = 18
V_S = (32, 48)
V_P = (64, 72)
V_NM = 80
V_X = 96
V_O = 128
A_Q, A_Q2, A_F, A_HF = 0, 64, 128, 192
S_HEAD, S_QT, S_NH, S_IT, S_T, S_RET, S_DELTA, S_ITH, S_OFFH, S_OFFD = 32, 33, 34, 35, 36, 37, 38, 39, 40, 41
S_KVB, S_W4K, S_PAIR, S_ITSW, S_ITSIG, S_PEND = 42, 43, 48, 49, 50, 51
S_OFF = 44
THR = 16.0
VSLOT = {32: 0x20000, 33: 0x24000}
S_NEG = 52
KVM = [""]


def setup_s(e):
    e(f"s_lshl_b32 s4, s{S_QT}, 2")
    e(f"s_sub_u32 s{S_NH}, 30, s4")
    e(f"s_sub_u32 s6, 15, s{S_QT}")
    e(f"s_cmp_ge_u32 s{S_QT}, 8")
    e(f"s_cselect_b32 s{S_NH}, 0, s{S_NH}")
    e(f"s_cselect_b32 s{S_PAIR}, s6, s{S_QT}")
    e(f"s_lshl_b32 s5, s{S_HEAD}, 3")
    e(f"s_add_u32 s{S_PAIR}, s{S_PAIR}, s5")
    e(f"s_lshl_b32 s{S_W4K}, s3, 12")
    e(f"s_lshl_b32 s{S_KVB}, s{S_HEAD}, 21")
    e(f"s_sub_u32 s5, 29, s{S_NH}")
    e("s_lshl_b32 s5, s5, 15")
    e(f"s_add_u32 s{S_OFFH}, s5, s{S_KVB}")
    e("s_lshl_b32 s5, s4, 15")
    e(f"s_add_u32 s{S_OFFD}, s5, s{S_KVB}")
    e(f"s_sub_u32 s5, s{S_NH}, 6")
    e("s_lshr_b32 s5, s5, 2")
    e(f"s_cmp_ge_u32 s{S_NH}, 6")
    e(f"s_cselect_b32 s{S_ITH}, s5, 99")
    e(f"s_lshr_b32 s5, s{S_NH}, 2")
    e(f"s_cmp_ge_u32 s{S_QT}, 8")
    e(f"s_cselect_b32 s{S_ITSW}, 99, s5")
    e(f"s_mov_b32 s{S_ITSIG}, s{S_ITSW}")
    e("s_cmp_eq_u32 s3, 0")
    e(f"s_cselect_b32 s{S_ITSIG}, s{S_ITSIG}, 99")
    e(f"s_mov_b32 s{S_NEG}, 0xffff8000")
    e(f"s_mov_b32 s{S_PEND}, 0")
    e(f"s_mov_b32 s{S_IT}, 0")
    e(f"s_mov_b32 s{S_T}, {f32(THR)}")


def setup_dma(e):
    e(f"v_lshlrev_b32 v{V_L16}, 4, v0")
    e(f"v_add_u32 v{V_DMA}, s{S_W4K}, v{V_L16}")
    e(f"v_add_u32 v{V_DMA2}, 0x4000, v{V_DMA}")


def setup_v(e):
    e(f"s_mul_i32 s5, s{S_QT}, 112")
    e("s_mul_i32 s6, s3, 28")
    e("s_add_u32 s5, s5, s6")
    e(f"v_min_u32 v{V_T}, 27, v0")
    e(f"v_add_u32 v{V_T}, s5, v{V_T}")
    e(f"s_mul_i32 s5, s{S_HEAD}, 229376")
    e(f"v_lshl_add_u32 v{V_X+1}, v{V_T}, 7, s5")
    e("s_mul_i32 s6, s3, 13")
    e(f"v_min_u32 v{V_T}, 12, v0")
    e(f"v_add_u32 v{V_T}, s6, v{V_T}")
    e(f"v_min_u32 v{V_T}, 48, v{V_T}")
    e(f"s_mul_i32 s5, s{S_QT}, 49")
    e(f"v_add_u32 v{V_T}, s5, v{V_T}")
    e(f"s_mul_i32 s5, s{S_HEAD}, 100352")
    e(f"v_lshl_add_u32 v{V_X+2}, v{V_T}, 7, s5")
    e(f"v_add_u32 v{V_VA}, 0x10000, v{V_L16}")
    e(f"v_and_b32 v{V_T}, 31, v0")
    e(f"v_lshrrev_b32 v{V_T+1}, 5, v0")
    e(f"v_lshlrev_b32 v{V_T+1}, 2, v{V_T+1}")
    e(f"v_sub_u32 v{V_D0}, v{V_T}, v{V_T+1}")
    e(f"v_mov_b32 v{V_NEGBIG}, {f32(-1e30)}")
    e(f"v_mov_b64 {v(V_X+4,2)}, 0")
    e(f"v_mov_b64 {v(V_X+6,2)}, 0")


def idx_ops(dst, n):
    return [
        f"s_mov_b32 s{dst}, {(29-n) << 15}",
        f"s_cmp_gt_u32 s{S_NH}, {n}",
        f"s_cselect_b32 s{dst}, {(30+n) << 15}, s{dst}",
        f"s_add_u32 s{dst}, s{dst}, s{S_KVB}",
    ]


def dmaK(slot, off, tag="dma"):
    return [f"s_add_u32 m0, s{S_W4K}, {slot*16384}"] + [
        (f"buffer_load_dwordx4 v{V_DMA}, s[{S_WS}:{S_WS+3}], s{off} offen offset:{j*1024}{KVM[0]} lds", tag) for j in range(4)]


def dmaV(base, off, tag="dma"):
    return [f"s_add_u32 m0, s{S_W4K}, {base}"] + [
        (f"buffer_load_dwordx4 v{V_DMA2}, s[{S_WS}:{S_WS+3}], s{off} offen offset:{j*1024}{KVM[0]} lds", tag) for j in range(4)]


def first_loads():
    out = []
    for n in range(4):
        out.append(idx_ops(S_OFF + n, n))
    seq = [out[0] + dmaK(0, S_OFF + 0, "k0"), dmaV(0x10000, S_OFF + 0, "v0"), out[1] + dmaK(1, S_OFF + 1, "k1"),
           dmaV(0x14000, S_OFF + 1, "v1"), out[2] + dmaK(2, S_OFF + 2, "k2"), out[3] + dmaK(3, S_OFF + 3, "k3")]
    return seq


def init_state(e):
    for r in range(0, 128, 2):
        e(f"v_mov_b64 {v(V_O+r,2)}, 0")
    for r in range(0, 16, 2):
        e(f"v_mov_b64 {v(V_NM+r,2)}, 0")
    e(f"v_mov_b64 {v(V_L0,2)}, 0")


def gen_attn(e, opt, end_label, finish=None, hooks=None):
    D = opt.get("a_depth", 14)
    WG = opt.get("a_waitgrp", 4)
    YM = opt.get("y_store_mod", "")
    NEPF = 0 if opt.get("no_epf") else (3 if opt.get("code_pf") else 2)

    def rd(f, kslot, vbase):
        d = a(A_F + (f % 16) * 4, 4)
        if f < 16:
            return f"ds_read_b128 {d}, v{V_L16} offset:{kslot*16384 + f*1024}"
        g, dt = divmod(f - 16, 8)
        return f"ds_read_b128 {d}, v{V_VA} offset:{vbase + (dt*2+g)*1024}"

    def mf(f, par):
        fr = a(A_F + (f % 16) * 4, 4)
        if f < 16:
            S = v(V_S[par ^ 1], 16)
            C = v(V_NM, 16) if f == 0 else S
            return f"{MFMA} {S}, {fr}, {a(A_Q+4*f,4)}, {C}"
        g, dt = divmod(f - 16, 8)
        O = v(V_O + dt * 16, 16)
        return f"{MFMA} {O}, {fr}, {v(V_P[par]+4*g,4)}, {O}"

    def max_ops(par):
        S = V_S[par]
        t = V_T
        ops = [f"v_max3_f32 v{t+k}, v{S+3*k}, v{S+3*k+1}, v{S+3*k+2}" for k in range(5)]
        ops += [f"v_max3_f32 v{t}, v{t}, v{t+1}, v{t+2}", f"v_max3_f32 v{t+3}, v{t+3}, v{t+4}, v{S+15}",
                f"v_max_f32 v{V_MAX}, v{t}, v{t+3}", f"v_cmp_lt_f32 vcc, s{S_T}, v{V_MAX}"]
        return ops

    def soft_ops(par):
        S, P = V_S[par], V_P[par]
        ops = []
        for k in range(9):
            if k < 8:
                ops += [f"v_exp_f32 v{S+2*k}, v{S+2*k}", f"v_exp_f32 v{S+2*k+1}, v{S+2*k+1}"]
            if k > 0:
                j = k - 1
                ops += [f"v_cvt_pk_bf16_f32 v{P+j}, v{S+2*j}, v{S+2*j+1}",
                        f"v_add_f32 v{V_L0}, v{V_L0}, v{S+2*j}", f"v_add_f32 v{V_L1}, v{V_L1}, v{S+2*j+1}"]
        return ops

    def mask_ops(par, t):
        S = V_S[par]
        ops = [[f"s_sub_u32 s54, {t}, s3", "s_lshl_b32 s54, s54, 5", f"v_subrev_u32 v{V_X}, s54, v{V_D0}"]]
        for h in range(4):
            for r in range(4 * h, 4 * h + 4):
                ops.append(f"v_cmp_le_i32 s[{64+2*(r%8)}:{65+2*(r%8)}], {8*(r>>2)+(r&3)}, v{V_X}")
            if h > 0:
                for r in range(4 * h - 4, 4 * h):
                    ops.append(f"v_cndmask_b32 v{S+r}, v{V_NEGBIG}, v{S+r}, s[{64+2*(r%8)}:{65+2*(r%8)}]")
        ops.append("s_nop 0")
        for r in range(12, 16):
            ops.append(f"v_cndmask_b32 v{S+r}, v{V_NEGBIG}, v{S+r}, s[{64+2*(r%8)}:{65+2*(r%8)}]")
        return ops

    def waits(fill, lo, hi, shift=0):
        for f in range(lo, hi, WG):
            r = a(A_F + ((f + WG - 1) % 16) * 4, 4)
            fill.setdefault(f - 1 - shift, []).append(lambda e, r=r: wait_reg(e, r))

    def place(fill, ops, g0, step=2):
        fill.setdefault(g0, []).append(ops[0])
        for j, d in enumerate(ops[1:]):
            fill.setdefault(g0 + 1 + step * j, []).append(d)

    rare_sites = {0: [], 1: []}
    stubs = Seg("a_stubs")

    def rare_check(e, par, name):
        k = len(rare_sites[par])
        rare_sites[par].append(name)
        e(f"s_cbranch_vccnz A_ST_{name}")
        e.label(f"A_RET_{name}")
        stubs.label(f"A_ST_{name}")
        stubs(f"s_mov_b32 s{S_RET}, {k}")
        stubs(f"s_branch A_RARE{par}")

    V_EV, V_EA = V_X + 4, V_X + 8

    def e_setup():
        ops = ["v_lshrrev_b32 v24, 3, v0", "v_mul_u32_u24 v24, 896, v24", "v_bfe_u32 v25, v0, 2, 1", "v_bfe_u32 v26, v0, 4, 1",
               "v_xor_b32 v25, v25, v26", "v_lshl_add_u32 v24, v25, 6, v24", "v_and_b32 v25, 3, v0",
               f"v_lshl_add_u32 v{V_EV}, v25, 4, v24"]
        ops += [f"v_add_u32 v{V_EV+j}, {j*7168 - j*1024}, v{V_EV}" for j in range(1, 4)]
        ops += [f"s_mul_i32 s56, s{S_HEAD}, 229376", "s_mul_i32 s4, s3, 57344", "s_add_u32 s56, s56, s4",
                f"s_mul_i32 s57, s{S_HEAD}, 100352", "s_mul_i32 s4, s3, 28672", "s_add_u32 s57, s57, s4",
                "s_lshl_b32 s60, s3, 13"]
        ops += ["v_lshrrev_b32 v24, 5, v0", "v_bfe_u32 v25, v0, 2, 2", "v_lshl_add_u32 v24, v24, 2, v25", "v_lshlrev_b32 v24, 7, v24",
                "v_lshl_add_u32 v24, v26, 5, v24", "v_and_b32 v25, 3, v0", "v_lshl_add_u32 v24, v25, 3, v24", "v_bfe_u32 v25, v0, 3, 1",
                f"v_lshl_add_u32 v{V_EA}, v25, 6, v24", f"v_xor_b32 v{V_EA+1}, 64, v{V_EA}"]
        ops += [f"s_lshl_b32 s62, s{S_HEAD}, 6", f"s_lshl_b32 s4, s{S_QT}, 2", "s_add_u32 s62, s62, s4", "s_add_u32 s62, s62, s3",
                "s_mul_i32 s62, s62, 28672", f"s_add_u32 s62, s62, {Y_OFF}"]
        return ops

    def e_dma(tag="edma"):
        ops = []
        for grp in range(2):
            ops.append(["s_add_u32 s61, s58, s60", f"s_add_u32 m0, s61, {grp*4096}", f"s_add_u32 s61, s56, {grp*32*896}"])
            for j in range(4):
                ops.append((f"buffer_load_dwordx4 v{V_EV+j}, s[{S_WO}:{S_WO+3}], s61 offen offset:{j*1024} lds", tag))
        ops.append([f"s_add_u32 m0, s59, s{S_W4K}", "s_add_u32 s56, s56, 128"])
        for j in range(4):
            ops.append((f"buffer_load_dwordx4 v{V_EV+j}, s[{S_W2}:{S_W2+3}], s57 offen offset:{j*1024} lds", tag))
        ops.append("s_add_u32 s57, s57, 128")
        return ops

    EO = (0x8000, 0x14000, 0x20000)
    E2 = (0x10000, 0x1c000, 0x0)

    e.wait_tag("q")
    e.wait_tag("k0")
    e("s_barrier")
    for f in range(D):
        e(rd(f, 0, 0))
    spine = [mf(f, 1) for f in range(16)]
    fill = {}
    waits(fill, 0, 16)
    for f in range(16):
        nf = f + D
        if nf == 16:
            fill.setdefault(f, []).extend([lambda e: e.wait_tag("k1"), lambda e: e.wait(lgkm=0), "s_barrier"])
        fill.setdefault(f, []).append(rd(nf % 16, 0 if nf < 16 else 1, 0))
    weave(e, spine, fill)
    run(e, idx_ops(S_OFF + 0, 4))
    e(f"s_cmp_gt_u32 s{S_NH}, 4")
    e(f"s_cselect_b32 s{S_DELTA}, 0x8000, s{S_NEG}")
    run(e, dmaK(0, S_OFF + 0))
    run(e, max_ops(0))
    stamp(e, opt, 1, raw=True)
    stamp(e, opt, "a_loop", raw=True)
    e(f"s_mov_b32 s{S_RET}, 0")
    e("s_branch A_FIRST")
    pro = e
    stateL, stateV = list(e.lds), [("dma", frozenset())] * 63

    def step(e, p, n=None):
        par = p & 1
        nm = f"L{p}" if n is None else f"P{n}"
        if p == 1:
            e(f"s_cmp_eq_u32 s{S_IT}, s{S_ITSW}")
            e(f"s_cbranch_scc1 A_SW1")
            e.label(f"A_SW1_RET_{nm}")
        spine = [mf(f, par) for f in range(32)]
        fill = {}
        waits(fill, 0, 32)
        vb = p * 16384 if n not in VSLOT else VSLOT[n] - 0x10000
        gb = 32 - D
        if n == 32:
            fill.setdefault(-1, []).append(f"v_add_u32 v{V_VA}, 0x10000, v{V_VA}")
            vb = 0
        for f in range(32):
            nf = f + D
            if nf == 32 and (n is None or n <= 30):
                vm = (8 + (NEPF if p in (0, 3) else 0)) if (n is None or n < 29) else (16 if n == 29 else 0)
                if n is None and p == 2:
                    fill.setdefault(f, []).extend([f"s_cmp_eq_u32 s{S_IT}, s{S_ITSW}", "s_cbranch_scc1 A_ALTW",
                                                   lambda e, vm=vm: e.wait_force(vm=vm), "A_ALTW_RET:", "s_barrier"])
                else:
                    fill.setdefault(f, []).extend([lambda e, vm=vm: e.wait_force(vm=vm), "s_barrier"])
            if nf < 32:
                fill.setdefault(f, []).append(rd(nf, (p + 1) % 4, vb))
            elif n != 32:
                fill.setdefault(f, []).append(rd(nf - 32, (p + 2) % 4, 0))
        if n is None or n <= 29:
            place(fill, dmaV(0x10000 + ((p + 2) % 4) * 16384, S_OFF + (p + 2) % 4), 0)
        if n is None or n <= 28:
            o = [f"s_add_u32 s{S_OFF+(p+1)%4}, s{S_OFF+p}, s{S_DELTA}"]
            if p == 1:
                d = S_OFF + 2
                o += [[f"s_cmp_eq_u32 s{S_IT}, s{S_ITH}", f"s_cselect_b32 s{d}, s{S_OFFH}, s{d}", f"s_cselect_b32 s{S_DELTA}, s{S_NEG}, s{S_DELTA}"],
                      [f"s_cmp_eq_u32 s{S_IT}, 6", f"s_cselect_b32 s{d}, s{S_OFFD}, s{d}", f"s_cselect_b32 s{S_DELTA}, 0x8000, s{S_DELTA}"]]
            else:
                pass
            place(fill, dmaK((p + 1) % 4, S_OFF + (p + 1) % 4), gb, 3)
            pour(fill, o, 9, gb)
        if n == 29:
            place(fill, dmaV(VSLOT[32], S_OFF + 0), 8, 1)
            place(fill, dmaV(VSLOT[33], S_OFF + 1), 13, 1)
        if n == 28:
            pour(fill, e_setup(), 9, 31)
        if n == 30:
            fill.setdefault(gb, []).extend([f"s_mov_b32 s58, {EO[0]}", f"s_mov_b32 s59, {E2[0]}"])
            pour(fill, e_dma("e0"), gb + 1, 32)
        if n is None and p == 3:
            fill.setdefault(gb + 2, []).extend([f"s_cmp_eq_u32 s{S_IT}, s{S_ITSIG}", "s_cbranch_scc1 A_SIG", "A_SIG_RET:"])
        if n == 31:
            fill.setdefault(2, []).extend([lambda e: flag_line(e, 55, FL_PAIR, S_PAIR), f"v_mov_b32 v{V_X+12}, 8"])
            fill.setdefault(4, []).append((f"buffer_load_dwordx2 {v(V_X+14,2)}, v{V_X+12}, s[{S_WS}:{S_WS+3}], s55 offen sc1", "ep"))
        if n is None and p == 3 and NEPF:
            fill.setdefault(10, []).append((f"buffer_load_dword v{V_PD}, v{V_X+1}, s[{S_WO}:{S_WO+3}], 0 offen", "pf"))
            fill.setdefault(12, []).append((f"buffer_load_dword v{V_PD}, v{V_X+2}, s[{S_W2}:{S_W2+3}], 0 offen", "pf"))
            if NEPF == 3:
                fill.setdefault(14, []).append((f"global_load_dword v{V_PD}, v{V_X+3}, s[80:81]", "pf"))
        so = soft_ops(par)
        mo = (mask_ops(par ^ 1, n - 29) if n is not None and n >= 29 else []) + max_ops(par ^ 1)
        sa = [x for x in so if not x.startswith("v_add")]
        pour(fill, sa[:14], 0, 13)
        pour(fill, sa[14:], 13, 23)
        pour(fill, mo, 19 if len(mo) > 9 else 21, 32)
        for x in so:
            if x.startswith("v_add"):
                src = x.split(",")[-1].strip()
                g0 = [g for g in fill for y in fill[g] if isinstance(y, str) and y.startswith(f"v_exp_f32 {src},")][0]
                g = min(range(g0 + 1, 32), key=lambda g: (load_of(fill, g), g))
                fill[g].append(x)
        if opt.get("verbose"):
            print(gap_report(f"step {nm}", fill, 32), [load_of(fill, g) for g in range(32)])
        weave(e, spine, fill)
        if p == 1:
            e(f"s_cmp_eq_u32 s{S_IT}, s{S_ITSW}")
            e("s_cbranch_scc1 A_SW2")
        rare_check(e, par, nm)

    lp = Seg("a_loop", stateL, stateV)
    lp.label("A_LOOP")
    for p in range(4):
        step(lp, p)
    lp(f"s_add_u32 s{S_IT}, s{S_IT}, 1")
    lp(f"s_cmp_lt_u32 s{S_IT}, 7")
    lp("s_cbranch_scc1 A_LOOP")
    assert lp.lds == stateL

    peel = {}
    for n in range(28, 33):
        sg = Seg(f"a_p{n}", stateL, stateV)
        step(sg, n % 4, n)
        if n == 31:
            sg(f"s_cmp_ge_u32 s{S_QT}, 8")
            sg("s_cbranch_scc1 A_EARLY")
            sg.label("A_EARLY_RET")
        if n >= 29 and n < 32:
            sg(f"s_cmp_eq_u32 s3, {n-29}")
            sg(f"s_cbranch_scc1 A_TAILW{n-29}")
        peel[n] = sg

    def signal(e):
        flag_line(e, 55, FL_PAIR, S_PAIR)
        flag_set(e, S_WS, 55, 1, V_X + 12)
        e(f"s_mov_b32 s{S_PEND}, 0")

    def tail_body(e, par):
        e.wait(lgkm=0)
        for f in range(16, 16 + D):
            e(rd(f, 0, 0))
        so = soft_ops(par)
        run(e, so[:22])
        spine = [mf(f, par) for f in range(16, 32)]
        fill = {}
        waits(fill, 16, 32, 16)
        for f in range(16, 32):
            if f + D < 32:
                fill.setdefault(f - 16, []).append(rd(f + D, 0, 0))
        pour(fill, so[22:], 0, 7)
        weave(e, spine, fill)

    t3 = Seg("a_tail1", stateL, stateV)
    t3(f"v_add_u32 v{V_VA}, 0x4000, v{V_VA}")
    t3.label("A_TAIL1")
    tail_body(t3, 1)
    t3.label("A_FIN")
    t0 = Seg("a_tail0", stateL, stateV)
    t0.label("A_TAILW0")
    t0(f"v_add_u32 v{V_VA}, 0x8000, v{V_VA}")
    t0("s_branch A_TAIL0")
    t0.label("A_TAILW1")
    t0(f"v_add_u32 v{V_VA}, 0xc000, v{V_VA}")
    t0("s_branch A_TAIL1")
    t0.label("A_TAILW2")
    t0(f"v_add_u32 v{V_VA}, 0x10000, v{V_VA}")
    t0.label("A_TAIL0")
    tail_body(t0, 0)
    t0("s_cmp_lg_u32 s3, 0")
    t0("s_cbranch_scc1 A_FIN")
    t0.wait_force(vm=0)
    t0("s_barrier")
    t0(f"s_mov_b32 s58, {EO[0]}")
    t0(f"s_mov_b32 s59, {E2[0]}")
    run(t0, e_dma("e0"))
    t0(f"s_cmp_eq_u32 s{S_PEND}, 0")
    t0("s_cbranch_scc1 A_FIN")
    signal(t0)
    t0("s_branch A_FIN")

    def ret_chain(e, names):
        for k, nm in enumerate(names[:-1]):
            e(f"s_cmp_eq_u32 s{S_RET}, {k}")
            e(f"s_cbranch_scc1 A_RET_{nm}")
        e(f"s_branch A_RET_{names[-1]}")

    def rare(par):
        e = Seg(f"a_rare{par}", stateL, stateV)
        e.label(f"A_RARE{par}")
        S = V_S[par ^ 1]
        t = V_T
        e(f"v_mov_b32 v{t}, v{V_MAX}")
        e.nop(2)
        e(f"v_permlane32_swap_b32 v{V_MAX}, v{t}")
        e(f"v_max3_f32 v{t}, v{V_MAX}, v{t}, 0")
        e(f"v_exp_f32 v{t+1}, -v{t}")
        for r in range(16):
            e(f"v_sub_f32 v{S+r}, v{S+r}, v{t}")
        for r in range(16):
            e(f"v_sub_f32 v{V_NM+r}, v{V_NM+r}, v{t}")
        e(f"v_mul_f32 v{V_L0}, v{V_L0}, v{t+1}")
        e(f"v_mul_f32 v{V_L1}, v{V_L1}, v{t+1}")
        for r in range(128):
            e(f"v_mul_f32 v{V_O+r}, v{V_O+r}, v{t+1}")
        ret_chain(e, rare_sites[par])
        return e

    r0, r1 = rare(0), rare(1)

    fs = Seg("a_first", stateL, stateV)
    e = fs
    e.label("A_FIRST")
    t = V_T
    e(f"v_mov_b32 v{t}, v{V_MAX}")
    e.nop(2)
    e(f"v_permlane32_swap_b32 v{V_MAX}, v{t}")
    e(f"v_max_f32 v{t}, v{V_MAX}, v{t}")
    for r in range(16):
        e(f"v_sub_f32 v{V_S[0]+r}, v{V_S[0]+r}, v{t}")
    for r in range(16):
        e(f"v_sub_f32 v{V_NM+r}, 0, v{t}")
    e(f"s_cmp_eq_u32 s{S_RET}, 0")
    e("s_cbranch_scc1 A_LOOP")
    e(f"s_cmp_eq_u32 s{S_IT}, 7")
    e("s_cbranch_scc1 A_RET_P29")
    e("s_branch A_RET_L1")

    sw1 = Seg("a_sw1", stateL, stateV)
    e = sw1
    e.label("A_SW1")
    for r in range(64):
        e(f"v_accvgpr_mov_b32 a{A_Q+r}, a{A_Q2+r}")
    e(f"v_mov_b32 v{V_MS}, v{V_NM}")
    for r in range(0, 16, 2):
        e(f"v_mov_b64 {v(V_NM+r,2)}, 0")
    e(f"s_cmp_eq_u32 s{S_IT}, 7")
    e("s_cbranch_scc1 A_SW1_RET_P29")
    e("s_branch A_SW1_RET_L1")

    def part_addr(e):
        e(f"s_lshl_b32 s54, s{S_PAIR}, 2")
        e("s_add_u32 s54, s54, s3")
        e("s_lshl_b32 s55, s54, 9")
        e(f"s_add_u32 s55, s55, {ML_OFF}")
        e("s_lshl_b32 s54, s54, 14")
        e(f"s_add_u32 s54, s54, {OP_OFF}")

    sw2 = Seg("a_sw2", stateL, stateV)
    e = sw2
    e.label("A_SW2")
    part_addr(e)
    t = V_X + 12
    e(f"v_add_f32 v{V_L0}, v{V_L0}, v{V_L1}")
    e(f"v_lshrrev_b32 v{t+2}, 2, v{V_L16}")
    e(f"buffer_store_dword v{V_MS}, v{t+2}, s[{S_WS}:{S_WS+3}], s55 offen sc1")
    e(f"buffer_store_dword v{V_L0}, v{t+2}, s[{S_WS}:{S_WS+3}], s55 offen offset:256 sc1")
    for k in range(16):
        if k and k % 4 == 0:
            e("s_add_u32 s54, s54, 4096")
        u = t + 4 + (k % 2) * 4
        for r in range(4):
            o = V_O + 8 * k + 2 * r
            e(f"v_cvt_pk_bf16_f32 v{u+r}, v{o}, v{o+1}")
        for r in range(4):
            e(f"v_mov_b64 {v(V_O+8*k+2*r,2)}, 0")
        e(f"buffer_store_dwordx4 {v(u,4)}, v{V_L16}, s[{S_WS}:{S_WS+3}], s54 offen offset:{(k%4)*1024} sc1")
    e(f"v_mov_b64 {v(V_L0,2)}, 0")
    e(f"s_mov_b32 s{S_PEND}, 1")
    e(f"s_mov_b32 s{S_RET}, 1")
    e("s_branch A_FIRST")

    sig = Seg("a_sig", stateL, stateV)
    sig.label("A_SIG")
    signal(sig)
    sig("s_branch A_SIG_RET")
    sig.label("A_ALTW")
    sig.wait_force(vm=26)
    sig("s_branch A_ALTW_RET")

    e = Seg("a_fin", [], stateV)
    stamp(e, opt, 2)
    stamp(e, opt, "a_fin")
    t = V_T
    CT = V_S[0]
    e(f"v_add_f32 v{V_L0}, v{V_L0}, v{V_L1}")
    e(f"s_cmp_ge_u32 s{S_QT}, 8")
    e("s_cbranch_scc1 A_MERGE")
    e(f"v_mov_b32 v{t}, v{V_L0}")
    e.nop(2)
    e(f"v_permlane32_swap_b32 v{V_L0}, v{t}")
    e(f"v_add_f32 v{V_L0}, v{V_L0}, v{t}")
    e(f"v_rcp_f32 v{t}, v{V_L0}")
    e.nop(1)
    e(f"v_mov_b32 v{t+1}, v{t}")
    e.nop(4)
    for k in range(64):
        e(f"v_pk_mul_f32 {v(V_O+2*k,2)}, {v(V_O+2*k,2)}, {v(t,2)}")
        if k:
            e(f"v_cvt_pk_bf16_f32 v{CT+k-1}, v{V_O+2*k-2}, v{V_O+2*k-1}")
    e(f"v_cvt_pk_bf16_f32 v{CT+63}, v{V_O+126}, v{V_O+127}")
    e("s_branch A_EPI")
    fin = e

    ML = V_X + 16

    def part_loads(e):
        part_addr(e)
        e(f"v_lshrrev_b32 v{V_X+12}, 2, v{V_L16}")
        e(f"buffer_load_dword v{ML}, v{V_X+12}, s[{S_WS}:{S_WS+3}], s55 offen sc1")
        e(f"buffer_load_dword v{ML+1}, v{V_X+12}, s[{S_WS}:{S_WS+3}], s55 offen offset:256 sc1")
        for k in range(16):
            if k and k % 4 == 0:
                e("s_add_u32 s54, s54, 4096")
            e(f"buffer_load_dwordx4 {a(A_Q2+4*k,4)}, v{V_L16}, s[{S_WS}:{S_WS+3}], s54 offen offset:{(k%4)*1024} sc1")

    early = Seg("a_early", stateL, peel[31].vm)
    e = early
    e.label("A_EARLY")
    flag_test(e, V_X + 14)
    e("s_cbranch_scc0 A_EARLY_RET")
    part_loads(e)
    e(f"s_mov_b32 s{S_PEND}, 2")
    e("s_branch A_EARLY_RET")

    mg = Seg("a_merge", [], stateV)
    e = mg
    e.label("A_MERGE")
    e(f"s_cmp_eq_u32 s{S_PEND}, 2")
    e("s_cbranch_scc1 A_HAVE")
    flag_line(e, 55, FL_PAIR, S_PAIR)
    e(f"v_mov_b32 v{t}, 8")
    e("s_mov_b32 s53, 0")
    e.label("A_POLL")
    e(f"buffer_load_dwordx2 {v(t+2,2)}, v{t}, s[{S_WS}:{S_WS+3}], s55 offen sc1")
    e.wait_force(vm=0)
    flag_test(e, t + 2)
    e("s_cbranch_scc1 A_POLL_OK")
    e("s_sleep 4")
    e("s_add_u32 s53, s53, 1")
    e(f"s_cmp_lt_u32 s53, {opt.get('poll_max', 200000)}")
    e("s_cbranch_scc1 A_POLL")
    e.label("A_POLL_OK")
    part_loads(e)
    e.label("A_HAVE")
    e(f"v_min_f32 v{t+3}, v{V_NM}, v{ML}")
    e(f"v_sub_f32 v{t+4}, v{t+3}, v{V_NM}")
    e(f"v_sub_f32 v{t+6}, v{t+3}, v{ML}")
    e(f"v_exp_f32 v{t+4}, v{t+4}")
    e(f"v_exp_f32 v{t+6}, v{t+6}")
    e.nop(1)
    e(f"v_mul_f32 v{t+3}, v{t+6}, v{ML+1}")
    e(f"v_fma_f32 v{t+3}, v{V_L0}, v{t+4}, v{t+3}")
    e(f"v_mov_b32 v{t+2}, v{t+3}")
    e.nop(2)
    e(f"v_permlane32_swap_b32 v{t+3}, v{t+2}")
    e(f"v_add_f32 v{t+3}, v{t+3}, v{t+2}")
    e(f"v_rcp_f32 v{t+3}, v{t+3}")
    e.nop(1)
    e(f"v_mul_f32 v{t+4}, v{t+4}, v{t+3}")
    e(f"v_mul_f32 v{t+6}, v{t+6}, v{t+3}")
    e(f"v_mov_b32 v{t+5}, v{t+4}")
    e(f"v_mov_b32 v{t+7}, v{t+6}")
    for k in range(64):
        e(f"v_pk_mul_f32 {v(V_O+2*k,2)}, {v(V_O+2*k,2)}, {v(t+4,2)}")
    for k in range(64):
        u = t + 8 + (k % 2) * 2
        e(f"v_accvgpr_read_b32 v{u+1}, a{A_Q2+k}")
        if k:
            e(f"v_cvt_pk_bf16_f32 v{CT+k-1}, v{V_O+2*k-2}, v{V_O+2*k-1}")
        e(f"v_lshlrev_b32 v{u}, 16, v{u+1}")
        e(f"v_and_b32 v{u+1}, 0xffff0000, v{u+1}")
        e(f"v_pk_fma_f32 {v(V_O+2*k,2)}, {v(u,2)}, {v(t+6,2)}, {v(V_O+2*k,2)}")
    e(f"v_cvt_pk_bf16_f32 v{CT+63}, v{V_O+126}, v{V_O+127}")

    e = Seg("a_epi", [], [])
    e.label("A_EPI")
    stamp(e, opt, 3)
    stamp(e, opt, "a_epi")
    YA = (V_O, V_O + 16)
    YP = V_O + 32
    VC = V_O + 48
    ED = opt.get("e_depth", 7)
    NFE, NT = 46, 7
    NF = NFE * NT

    def erd(f):
        c, r = divmod(f, NFE)
        seg, ks = divmod(r, 23)
        off = (EO[c % 3] + 16 * ks * 128) if ks < 16 else (E2[c % 3] + 16 * (ks - 16) * 128)
        base = (V_EA, VC, VC + 2)[off >> 16] + seg
        off &= 0xffff
        return [f"ds_read_b64_tr_b16 {a(A_F+(f%8)*4+2*u,2)}, v{base} offset:{off+u*1024}" for u in range(2)]

    def ecvt(c, seg):
        ops = [f"v_cvt_pk_bf16_f32 v{YP+8*seg+r}, v{YA[seg]+2*r}, v{YA[seg]+2*r+1}" for r in range(8)]
        st = [(f"buffer_store_dwordx4 {v(YP+8*seg+4*k,4)}, v{V_L16}, s[{S_WS}:{S_WS+3}], s62 offen offset:{seg*2048+k*1024}{YM}",
               "ya" if c < 4 else "yb") for k in range(2)]
        if seg == 1 and c < NT - 1:
            st.append("s_add_u32 s62, s62, 4096")
        return ops, st

    def edma_at(t):
        return [[f"s_mov_b32 s58, {EO[t%3]}", f"s_mov_b32 s59, {E2[t%3]}"]] + e_dma(f"e{t}")

    for k in range(2):
        e(f"v_add_u32 v{VC+k}, 0x10000, v{V_EA+k}")
        e(f"v_add_u32 v{VC+2+k}, 0x20000, v{V_EA+k}")
    e.wait_force(vm=0)
    e("s_barrier")
    for f in range(ED):
        run(e, erd(f))
    spine, fill = [], {}
    for f in range(NF):
        c, r = divmod(f, NFE)
        seg, ks = divmod(r, 23)
        B = v(CT + 4 * ks, 4) if ks < 16 else a(A_HF + 4 * (ks - 16), 4)
        acc = v(YA[seg], 16)
        spine.append(f"{MFMA} {acc}, {a(A_F+(f%8)*4,4)}, {B}, {'0' if ks == 0 else acc}")
        nf = f + ED
        if nf < NF:
            if nf % NFE == 0:
                t = nf // NFE
                ops = [lambda e, t=t: e.wait_tag(f"e{t}")]
                if t == 6:
                    ops.append(lambda e: e.wait_tag("ya"))
                if t <= 4:
                    ops.append(lambda e: e.wait(lgkm=0))
                fill.setdefault(f, []).extend(ops + ["s_barrier"])
            fill.setdefault(f, []).extend(erd(nf))
        if f % 2 == 0:
            rr = a(A_F + (min(f + 1, NF - 1) % 8) * 4, 4)
            fill.setdefault(f - 1, []).append(lambda e, rr=rr: wait_reg(e, rr))
    if hooks:
        hooks(fill, NFE, ED)
    spread(fill, edma_at(1), 0, 20)
    spread(fill, edma_at(2), 20, 52)
    for t in range(3, NT):
        g0 = max((t - 2) * NFE - ED + 1, 52)
        spread(fill, edma_at(t), g0, (t - 1) * NFE - ED)
    for c in range(NT):
        o, st = ecvt(c, 0)
        pour(fill, o + st, c * NFE + 27, c * NFE + 44)
        if c < NT - 1:
            o, st = ecvt(c, 1)
            if c == NT - 2 and hooks:
                pour(fill, o, (c + 1) * NFE + 4, (c + 1) * NFE + 21)
                fill.setdefault((c + 1) * NFE + 25, []).append(st[0])
                fill.setdefault((c + 1) * NFE + 26, []).extend(st[1:])
            else:
                pour(fill, o + st, (c + 1) * NFE + 4, (c + 1) * NFE + 21)
    if opt.get("verbose"):
        print(gap_report("epilogue", fill, NF), [load_of(fill, g) for g in range(NF)])
    weave(e, spine, fill)
    e.nop(12)
    o, st = ecvt(NT - 1, 1)
    run(e, o + st)
    if finish:
        finish(e)
    e.label(end_label)
    e("s_endpgm")
    epi = e

    pl = [peel[n] for n in range(28, 33)]
    segs = [pro, lp] + pl + [t3, fin, mg, epi, t0, stubs, r0, r1, fs, sw1, sw2, sig, early]
    traces = [
        [pro, fs, lp, lp] + pl + [t3, fin, epi],
        [lp, peel[28], peel[29], t0, fin, mg, epi],
        [lp, r1, lp], [peel[28], r0, peel[29]], [peel[28], sw1, peel[29], sw2, fs, peel[30]], [sig], [stubs],
        [peel[30], peel[31], t0], [peel[29], peel[30], t3], [peel[31], early, peel[32], t3, fin],
    ]
    return segs, traces
```

```python
from emit import *
from common import *
import attn
from attn import S_HEAD, S_QT, S_W4K, S_PAIR, S_WS, S_WO, S_W2, A_Q, A_Q2, A_HF, V_L16, V_PD
import math

NAME = "parallel_sum__compressed_kv_cla__dense_activation_silu__prompt_kernel"
LDS_BYTES = 160 * 1024
S_CKV, S_W, S_X, S_WQ, S_W1, S_QST, S_OUT = 8, 12, 20, 24, 28, 68, 24
SA, SB, S_LP, S_W8K, S_SIGIT, S_KIND, S_BO, S_KVBASE, S_KVC, S_QB, S_QC, S_XNB, S_XNF = 53, 54, 55, 56, 57, 58, 59, 60, 61, 62, 63, 66, 67
S_HA, S_KVSLOT = 76, 77
V_PA, V_PB, V_FO, V_FL = 3, 4, 5, 6
V_AA, V_AB, V_DA, V_DB = 8, 12, 16, 24
V_FA, V_FB, V_XN = 32, 64, 96
V_DQ, V_D1, V_AT, V_T = 208, 212, 216, 224
SLOT_ORDER = [0, 1, 4, 5, 2, 3, 6, 7]
H_ACC = (64, 80, 224, 240)
V_CP = V_XN + 45

def gen_mega(opt):
    ST = opt.get("kv_store_mod", " sc1")
    attn.KVM[0] = opt.get("kv_load_mod", "")
    opt = dict(opt)
    opt.setdefault("y_store_mod", " sc1")
    opt["spk"] = ""
    PFD = 2
    NPF = 2
    PMAX = opt.get("poll_max", 200000)
    e = Seg("m_pro")
    e.label(NAME)
    e("s_cmp_ge_u32 s2, 256")
    e("s_cbranch_scc1 M_END")
    stamp(e, opt, "entry")
    load_kernargs(e)
    e("v_lshrrev_b32 v1, 6, v0")
    e("v_and_b32 v0, 63, v0")
    e("v_readfirstlane_b32 s3, v1")
    e("s_and_b32 s4, s2, 7")
    e("s_lshl_b32 s4, s4, 1")
    e("s_lshr_b32 s5, s2, 3")
    e("s_and_b32 s34, s5, 7")
    e("s_lshr_b32 s35, s5, 3")
    e("s_and_b32 s42, s35, 1")
    e("s_add_u32 s42, s42, s4")
    e(f"s_lshr_b32 s{S_KIND}, s35, 1")
    e(f"s_lshr_b32 s{S_QT}, s5, 1")
    e(f"s_and_b32 s{S_HEAD}, s5, 1")
    e(f"s_add_u32 s{S_HEAD}, s{S_HEAD}, s4")
    e("s_and_b32 s36, s3, 1")
    e("s_lshr_b32 s37, s3, 1")
    L31, HI, G, R4, C = 224, 225, 226, 227, 228
    e(f"v_and_b32 v{L31}, 31, v0")
    e(f"v_lshrrev_b32 v{HI}, 5, v0")
    e(f"v_lshrrev_b32 v{G}, 4, v0")
    e(f"v_bfe_u32 v{R4}, v0, 2, 2")
    e(f"v_and_b32 v{C}, 3, v0")
    e("s_lshl_b32 s7, s34, 8")
    e("s_lshl_b32 s39, s35, 6")
    e("s_add_u32 s7, s7, s39")
    e("s_lshl_b32 s39, s3, 4")
    e("s_add_u32 s7, s7, s39")
    e("v_and_b32 v6, 15, v0")
    e("v_add_u32 v6, s7, v6")
    e(f"v_lshlrev_b32 v{V_PA}, 11, v6")
    e(f"v_lshl_add_u32 v7, v{G}, 7, v{V_PA}")
    e("s_lshl_b32 s7, s34, 3")
    e("s_lshl_b32 s39, s3, 1")
    e("s_add_u32 s7, s7, s39")
    e("v_bfe_u32 v6, v0, 2, 1")
    e("v_add_u32 v6, s7, v6")
    e("v_lshlrev_b32 v6, 13, v6")
    e(f"v_lshl_add_u32 v6, v{C}, 7, v6")
    e("s_lshl_b32 s7, s42, 9")
    e(f"v_add_u32 v{V_PB}, s7, v6")
    e("v_bfe_u32 v6, v0, 3, 2")
    e(f"v_lshl_add_u32 v5, v6, 19, v{V_PB}")
    e(f"s_lshl_b32 s7, s{S_QT}, 7")
    e(f"s_lshl_b32 s39, s{S_HEAD}, 3")
    e("s_add_u32 s7, s7, s39")
    e("v_and_b32 v6, 7, v0")
    e("v_add_u32 v6, s7, v6")
    e("v_mul_u32_u24 v6, 896, v6")
    e("v_lshrrev_b32 v1, 3, v0")
    e("v_lshl_add_u32 v6, v1, 4, v6")
    e("s_lshl_b32 s40, s3, 8")
    e("s_add_u32 s41, s40, 128")
    e("s_cmp_eq_u32 s3, 3")
    e("s_cselect_b32 s41, 0, s41")
    e.wait_force(lgkm=0)
    e(f"s_mov_b32 s{S_HA}, s42")
    e(f"s_lshl_b32 s{S_KVSLOT}, s{S_KIND}, 3")
    e(f"s_add_u32 s{S_KVSLOT}, s{S_KVSLOT}, s34")
    e(f"s_lshl_b32 s{S_KVSLOT}, s{S_KVSLOT}, 3")
    srd(e, S_CKV, P_CKV, CKV_BYTES)
    e(f"s_cmp_eq_u32 s{S_KIND}, 0")
    e(f"s_cselect_b32 s{S_W}, s{P_WUK}, s{P_WUV}")
    e(f"s_cselect_b32 s{S_W+1}, s{P_WUK+1}, s{P_WUV+1}")
    e(f"s_mov_b32 s{S_W+2}, {WU_BYTES:#x}")
    e(f"s_mov_b32 s{S_W+3}, 0x20000")
    srd(e, S_X, P_X, X_BYTES)
    stamp(e, opt, 0)
    stamp(e, opt, "karg")
    e(f"buffer_load_dword v{V_PD}, v7, s[{S_CKV}:{S_CKV+3}], 0 offen", "pf")
    e(f"buffer_load_dword v{V_PD}, v5, s[{S_W}:{S_W+3}], 0 offen", "pf")
    for i in range(7):
        e(f"buffer_load_dwordx4 {v(V_XN+i*4,4)}, v6, s[{S_X}:{S_X+3}], 0 offen offset:{i*128}", "x")
    e(f"buffer_load_dwordx4 {v(V_XN+28,4)}, v6, s[{S_X}:{S_X+3}], s40 offen", "x")
    e(f"buffer_load_dwordx4 {v(V_XN+32,4)}, v6, s[{S_X}:{S_X+3}], s41 offen", "x")
    e(f"v_add_u32 v{V_PA}, {PFD*128}, v{V_PA}")
    e(f"v_add_u32 v{V_PB}, {PFD*0x80000}, v{V_PB}")
    e("s_lshl_b32 s7, s34, 8")
    e("s_lshl_b32 s39, s3, 6")
    e("s_add_u32 s7, s7, s39")
    e("v_add_u32 v6, s7, v1")
    e("v_lshlrev_b32 v6, 11, v6")
    e("v_and_b32 v7, 7, v0")
    e(f"v_xor_b32 v7, v7, v{G}")
    e("v_lshlrev_b32 v7, 4, v7")
    for j in range(8):
        e(f"v_xor_b32 v{V_DA+j}, {(j&1)<<6}, v7")
        e(f"v_add_u32 v{V_DA+j}, v{V_DA+j}, v6")
        if j:
            e(f"v_add_u32 v{V_DA+j}, {j*16384-(j&3)*1024}, v{V_DA+j}")
    e("s_lshl_b32 s7, s3, 4")
    e(f"v_add_u32 v6, s7, v{HI}")
    e("v_lshlrev_b32 v6, 13, v6")
    e(f"s_lshl_b32 s7, s{S_HA}, 9")
    e("v_add_u32 v6, s7, v6")
    e(f"v_lshl_add_u32 v6, v{C}, 4, v6")
    e(f"v_lshrrev_b32 v7, 2, v{L31}")
    e(f"v_xor_b32 v7, v7, v{HI}")
    e("v_lshlrev_b32 v7, 6, v7")
    for j in range(8):
        e(f"v_xor_b32 v{V_DB+j}, {(j&1)<<7}, v7")
        e(f"v_add_u32 v{V_DB+j}, v{V_DB+j}, v6")
        if j:
            e(f"v_add_u32 v{V_DB+j}, {j*16384-(j&3)*1024}, v{V_DB+j}")
    e(f"s_lshl_b32 s{S_W8K}, s3, 13")
    e(f"s_mov_b32 s{SA}, 0")
    e(f"s_mov_b32 s{SB}, 0")

    def dma_items(b):
        it = []
        for j in range(8):
            pre = [f"s_add_u32 m0, s{S_W8K}, {b*32768 + (j>>2)*4096}"] if (j & 3) == 0 else []
            post = [f"s_add_u32 s{SA}, s{SA}, 128"] if j == 7 else []
            it.append((pre, f"buffer_load_dwordx4 v{V_DA+j}, s[{S_CKV}:{S_CKV+3}], s{SA} offen offset:{(j&3)*1024} lds", post))
        for j in range(8):
            pre = [f"s_add_u32 m0, s{S_W8K}, {65536 + b*32768 + (j>>2)*4096}"] if (j & 3) == 0 else []
            post = [f"s_add_u32 s{SB}, s{SB}, 0x80000"] if j == 7 else []
            it.append((pre, f"buffer_load_dwordx4 v{V_DB+j}, s[{S_W}:{S_W+3}], s{SB} offen offset:{(j&3)*1024} lds", post))
        return it

    NK3 = 8
    q = Seg("tmp")
    srd(q, S_WS, P_WS, WS_BYTES)
    srd(q, S_WQ, P_WQ, WQ_BYTES)
    srd(q, S_W1, P_W1, W1_BYTES)
    q("s_lshl_b32 s7, s36, 7")
    q(f"v_add_u32 v6, s7, v{L31}")
    q("v_lshlrev_b32 v6, 7, v6")
    q(f"v_bfe_u32 v7, v{L31}, 1, 3")
    q(f"v_xor_b32 v7, v7, v{HI}")
    q("v_lshl_add_u32 v6, v7, 4, v6")
    for k in range(4):
        q(f"v_xor_b32 v{V_AA+k}, {k<<5}, v6")
    q(f"v_lshrrev_b32 v6, 1, v{G}")
    q(f"v_lshl_add_u32 v6, v6, 3, v{R4}")
    q("v_lshlrev_b32 v6, 9, v6")
    q("s_lshl_b32 s7, s37, 8")
    q("s_add_u32 s7, s7, 0x10000")
    q("v_add_u32 v6, s7, v6")
    q(f"v_and_b32 v7, 1, v{G}")
    q("v_lshl_add_u32 v6, v7, 5, v6")
    q(f"v_lshl_add_u32 v6, v{C}, 3, v6")
    for nb in range(4):
        q(f"v_xor_b32 v7, {nb}, v{R4}")
        q(f"v_lshl_add_u32 v{V_AB+nb}, v7, 6, v6")
    q("s_lshl_b32 s7, s3, 4")
    q(f"v_add_u32 v6, s7, v{G}")
    q(f"v_xor_b32 v7, v{R4}, v{G}")
    q("v_lshlrev_b32 v7, 6, v7")
    q(f"v_lshl_add_u32 v7, v{C}, 4, v7")
    q(f"s_lshl_b32 s38, s{S_HEAD}, 9")
    q(f"v_lshlrev_b32 v{V_DQ}, 13, v6")
    q(f"v_add3_u32 v{V_DQ}, v{V_DQ}, v7, s38")
    for j in range(1, 4):
        q(f"v_add_u32 v{V_DQ+j}, {j*4*8192 - j*1024}, v{V_DQ}")
    q(f"s_mul_i32 s39, s{S_HEAD}, 224")
    q(f"v_mul_u32_u24 v{V_D1}, 3584, v6")
    q(f"v_add3_u32 v{V_D1}, v{V_D1}, v7, s39")
    for j in range(1, 4):
        q(f"v_add_u32 v{V_D1+j}, {j*4*3584 - j*1024}, v{V_D1}")
    q(f"v_lshrrev_b32 v6, 1, v{G}")
    q(f"v_lshl_add_u32 v6, v6, 3, v{R4}")
    q("v_lshlrev_b32 v6, 8, v6")
    q(f"v_and_b32 v7, 1, v{G}")
    q("v_lshl_add_u32 v6, v7, 5, v6")
    q(f"v_lshl_add_u32 v6, v{C}, 3, v6")
    for nb in range(4):
        q(f"v_xor_b32 v7, {nb}, v{R4}")
        q(f"v_lshl_add_u32 v{V_AT+nb}, v7, 6, v6")
        q(f"v_add_u32 v{V_AT+4+nb}, 0x10000, v{V_AT+nb}")
    q(f"s_mul_i32 s7, s{S_QT}, 28")
    q("s_mul_i32 s6, s3, 7")
    q("s_add_u32 s7, s7, s6")
    q("v_lshrrev_b32 v6, 2, v0")
    q("v_min_u32 v6, 6, v6")
    q("v_add_u32 v6, s7, v6")
    q("v_lshlrev_b32 v7, 13, v6")
    q(f"v_lshl_add_u32 v7, v{C}, 7, v7")
    q("v_add_u32 v229, s38, v7")
    q("v_mul_u32_u24 v7, 3584, v6")
    q(f"v_min_u32 v6, 2, v{C}")
    q("v_lshl_add_u32 v7, v6, 7, v7")
    q("v_add_u32 v230, s39, v7")
    q(f"s_lshl_b32 s{S_KVBASE}, s{S_HA}, 6")
    q("s_lshl_b32 s7, s34, 3")
    q(f"s_add_u32 s{S_KVBASE}, s{S_KVBASE}, s7")
    q("s_lshl_b32 s7, s36, 2")
    q(f"s_add_u32 s{S_KVBASE}, s{S_KVBASE}, s7")
    q(f"s_lshl_b32 s{S_KVBASE}, s{S_KVBASE}, 15")
    q(f"s_lshl_b32 s7, s{S_KIND}, 14")
    q(f"s_add_u32 s{S_KVBASE}, s{S_KVBASE}, s7")
    q("s_lshl_b32 s7, s37, 13")
    q(f"s_add_u32 s{S_KVBASE}, s{S_KVBASE}, s7")
    q(f"s_lshl_b32 s7, s{S_QT}, 2")
    q(f"v_and_b32 v{V_FO}, 15, v0")
    q(f"v_lshlrev_b32 v{V_FO}, 3, v{V_FO}")
    q(f"s_add_u32 s{S_XNB}, s7, s3")
    q(f"s_mul_i32 s{S_XNB}, s{S_XNB}, 28672")
    q(f"s_add_u32 s{S_XNB}, s{S_XNB}, {XN_OFF}")
    q(f"v_lshlrev_b32 v{V_L16}, 4, v0")
    q("s_lshr_b32 s7, s2, 3")
    q("s_lshl_b32 s7, s7, 2")
    q("s_add_u32 s7, s7, s3")
    q("s_mul_i32 s7, s7, 768")
    q(f"v_min_u32 v{V_CP}, 5, v0")
    q(f"v_lshl_add_u32 v{V_CP}, v{V_CP}, 7, s7")
    for i in range(256):
        q(f"v_accvgpr_write_b32 a{i}, 0")
    work = [i.text for i in q.ins]
    first = [(x, "t0") for x in dma_items(0)] + [(x, "dma") for x in dma_items(1)[:NK3]]
    per = -(-len(work) // len(first))
    for k, ((pre, d, post), tag) in enumerate(first):
        for x in pre:
            e(x)
        e(d, tag)
        for x in post:
            e(x)
        for x in work[k * per:(k + 1) * per]:
            e(x)
    e(f"buffer_load_dword v{V_PD}, v229, s[{S_WQ}:{S_WQ+3}], 0 offen", "pf")
    e(f"buffer_load_dword v{V_PD}, v230, s[{S_W1}:{S_W1+3}], 0 offen", "pf")
    e("s_cmp_lg_u32 s3, 0")
    e("s_cbranch_scc1 M_NOCAS")
    e("s_memrealtime s[44:45]")
    e(f"v_mov_b32 v{V_XN+41}, 0")
    e.wait_force(lgkm=0)
    e("s_or_b32 s44, s44, 1")
    e(f"v_mov_b32 v{V_XN+40}, s44")
    e(f"v_mov_b32 v{V_XN+42}, s44")
    e("s_mov_b64 exec, 1")
    e.raw(f"global_atomic_cmpswap v{V_XN+43}, v{V_XN+41}, {v(V_XN+40,2)}, s[{P_DBG}:{P_DBG+1}] sc0")
    e("s_mov_b64 exec, -1")
    e.label("M_NOCAS")
    stamp(e, opt, "dma")
    e(f"s_lshr_b32 s7, s{S_HEAD}, 2")
    e(f"s_lshl_b32 s39, s{S_QT}, 2")
    e("s_add_u32 s7, s7, s39")
    e("s_mul_i32 s7, s7, 28672")
    e(f"s_add_u32 s7, s7, {XN_OFF}")
    e("s_lshl_b32 s40, s40, 5")
    e("s_lshl_b32 s41, s41, 5")
    e(f"s_add_u32 s{S_QB}, s40, s7")
    e(f"s_add_u32 s{S_QC}, s41, s7")
    e(f"s_and_b32 s39, s{S_HEAD}, 3")
    e("s_lshl_b32 s39, s39, 7")
    e("v_and_b32 v6, 7, v0")
    e("v_lshlrev_b32 v6, 4, v6")
    e("v_lshrrev_b32 v7, 3, v0")
    e("v_lshl_add_u32 v6, v7, 9, v6")
    e("v_add_u32 v6, s39, v6")
    attn.setup_s(e)
    e("s_cmp_eq_u32 s3, 0")
    e(f"s_cselect_b32 s{S_SIGIT}, 1, 99")
    e(f"s_mov_b32 s{S_QST}, s{P_WS}")
    e(f"s_mov_b32 s{S_QST+1}, s{P_WS+1}")
    e(f"s_cmp_ge_u32 s{S_QT}, 8")
    e(f"s_cselect_b32 s{S_QST+2}, {WS_BYTES:#x}, 0")
    e(f"s_mov_b32 s{S_QST+3}, 0x20000")
    stamp(e, opt, 1)

    T = V_T

    def layernorm(e, n, reduce, norm):
        e("s_mov_b32 s7, 0x3f803f80")
        for k in range(8):
            e(f"v_mov_b32 v{T+k}, 0")
        for r in range(n):
            e(f"v_dot2_f32_bf16 v{T+(r&3)}, v{V_XN+r}, s7, v{T+(r&3)}")
            e(f"v_dot2_f32_bf16 v{T+4+(r&3)}, v{V_XN+r}, v{V_XN+r}, v{T+4+(r&3)}")
        e.nop(4)
        e(f"v_add_f32 v{T}, v{T}, v{T+1}")
        e(f"v_add_f32 v{T+2}, v{T+2}, v{T+3}")
        e(f"v_add_f32 v{T+4}, v{T+4}, v{T+5}")
        e(f"v_add_f32 v{T+6}, v{T+6}, v{T+7}")
        e(f"v_add_f32 v{T}, v{T}, v{T+2}")
        e(f"v_add_f32 v{T+4}, v{T+4}, v{T+6}")
        for step in reduce:
            if step == 8:
                e.nop(2)
                e(f"v_add_f32_dpp v{T}, v{T}, v{T} row_ror:8 row_mask:0xf bank_mask:0xf")
                e(f"v_add_f32_dpp v{T+4}, v{T+4}, v{T+4} row_ror:8 row_mask:0xf bank_mask:0xf")
            else:
                e(f"v_mov_b32 v{T+1}, v{T}")
                e(f"v_mov_b32 v{T+5}, v{T+4}")
                e.nop(2)
                e(f"v_permlane{step}_swap_b32 v{T}, v{T+1}")
                e(f"v_permlane{step}_swap_b32 v{T+4}, v{T+5}")
                e(f"v_add_f32 v{T}, v{T}, v{T+1}")
                e(f"v_add_f32 v{T+4}, v{T+4}, v{T+5}")
        e(f"v_mul_f32 v{T}, {f32(1/448)}, v{T}")
        e(f"v_mul_f32 v{T+4}, {f32(1/448)}, v{T+4}")
        e(f"v_fma_f32 v{T+4}, -v{T}, v{T}, v{T+4}")
        e(f"v_max_f32 v{T+4}, 0, v{T+4}")
        e(f"v_add_f32 v{T+4}, {f32(1e-5)}, v{T+4}")
        e(f"v_rsq_f32 v{T+4}, v{T+4}")
        e(f"v_mul_f32 v{T}, v{T}, v{T+4}")
        e(f"v_mov_b32 v{T+5}, v{T+4}")
        e(f"v_sub_f32 v{T}, 0, v{T}")
        e(f"v_mov_b32 v{T+1}, v{T}")
        for r in norm:
            t = T + 8 + (r % 8) * 2
            e(f"v_lshlrev_b32 v{t}, 16, v{V_XN+r}")
            e(f"v_and_b32 v{t+1}, 0xffff0000, v{V_XN+r}")
            e(f"v_pk_fma_f32 {v(t,2)}, {v(t,2)}, {v(T+4,2)}, {v(T,2)}")
            e(f"v_cvt_pk_bf16_f32 v{V_XN+r}, v{t}, v{t+1}")

    layernorm(e, 28, (8, 16, 32), range(28, 36))
    e(f"buffer_store_dwordx4 {v(V_XN+28,4)}, v6, s[{S_WS}:{S_WS+3}], s{S_QB} offen sc1", "st")
    e(f"buffer_store_dwordx4 {v(V_XN+32,4)}, v6, s[{S_WS}:{S_WS+3}], s{S_QC} offen sc1", "st")
    e(f"s_lshl_b32 s{S_QB}, s{S_PAIR}, 2")
    e(f"s_add_u32 s{S_QB}, s{S_QB}, s3")
    e(f"s_lshl_b32 s{S_QB}, s{S_QB}, 14")
    e(f"s_add_u32 s{S_QB}, s{S_QB}, {Q_OFF}")

    def frag_reads(b, ks, st):
        r = []
        fa, fb = V_FA + st * 16, V_FB + st * 16
        order = [("a", 0), ("b", 0), ("a", 1), ("a", 2), ("a", 3), ("b", 1), ("b", 2), ("b", 3)]
        for t, i in order:
            if t == "a":
                r.append(f"ds_read_b128 {v(fa+i*4,4)}, v{V_AA+ks} offset:{i*4096 + b*32768}")
            else:
                for u in range(2):
                    r.append(f"ds_read_b64_tr_b16 {v(fb+i*4+u*2,2)}, v{V_AB+i} offset:{(16*ks+4*u)*512 + b*32768}")
        return r

    e.wait_tag("t0")
    stamp(e, opt, "t0")
    e("s_barrier")
    stamp(e, opt, "bar")
    for r in frag_reads(0, 0, 0):
        e(r)
    e(f"s_mov_b32 s{S_LP}, 0")
    e(f"s_cmp_eq_u32 s{S_KIND}, 0")
    e("s_cbranch_scc0 M_LOOP_V")
    pro = e

    def place_dma(fill, items, g0, g1, tag="dma"):
        n = len(items)
        for k, (pre, d, post) in enumerate(items):
            g = g0 + (k * (g1 - g0)) // n
            for x in pre:
                fill.setdefault(g - 1, []).append(x)
            fill.setdefault(g, []).append((d, tag))
            for x in post:
                fill.setdefault(g, []).append(x)

    def ktile(e, kind, b, dma_k0, dma_k3, last=False, pref=True, tag3="dma", tag0="dma", xn=None):
        for ks in range(4):
            st = ks & 1
            fa, fb = V_FA + st * 16, V_FB + st * 16
            spine = []
            for i in range(4):
                for j in range(4):
                    acc = a((i * 4 + j) * 16, 16)
                    W, Cc = v(fb + i * 4, 4), v(fa + j * 4, 4)
                    A, B = (W, Cc) if kind == 0 else (Cc, W)
                    spine.append(f"{MFMA} {acc}, {A}, {B}, {acc}")
            fill = {}
            fill[-1] = [lambda e: e.wait_force(lgkm=0)]
            if ks < 3:
                spread(fill, frag_reads(b, ks + 1, st ^ 1), 0, 12)
                if ks == 0 and dma_k0:
                    place_dma(fill, dma_k0, 1, 16, tag0)
                if ks == 1 and pref:
                    fill.setdefault(4, []).append((f"buffer_load_dword v{V_PD}, v{V_PA}, s[{S_CKV}:{S_CKV+3}], s{SA} offen", "pf"))
                    fill.setdefault(13, []).append((f"buffer_load_dword v{V_PD}, v{V_PB}, s[{S_W}:{S_W+3}], s{SB} offen", "pf"))
                if ks in (1, 2) and xn is not None:
                    k0 = xn + (ks - 1) * 7
                    for k in range(k0, k0 + 7):
                        g = 1 + 2 * (k - k0)
                        if k % 4 == 0 and k:
                            fill.setdefault(g - 1, []).append(f"s_add_u32 s{S_XNB}, s{S_XNB}, 4096")
                        fill.setdefault(g, []).append((f"buffer_load_dwordx4 {v(V_XN+4*k,4)}, v{V_L16}, s[{S_WS}:{S_WS+3}], s{S_XNB} offen offset:{(k%4)*1024} sc1", "xn"))
            else:
                if last:
                    fill[0] = ["s_barrier"]
                else:
                    fill[0] = [lambda e: e.wait_force(vm=(NPF if pref else 0) + (14 if xn is not None else 0)), "s_barrier"]
                    spread(fill, frag_reads(b ^ 1, 0, 0), 0, 12)
                if dma_k3:
                    place_dma(fill, dma_k3, 2, 16, tag3)
            weave(e, spine, fill)

    NT = 21

    def b_dma(u):
        part, kt = divmod(u, 7)
        slot = SLOT_ORDER[u % 8]
        it = []
        for j in range(4):
            pre = []
            if j == 0:
                pre.append(f"s_add_u32 m0, s{S_W4K}, {slot*16384}")
                off = kt * 64 * 3584 if part == 2 else kt * 64 * 8192 + part * 256
                pre.append(f"s_mov_b32 s{S_BO}, {off}")
            if part == 2:
                d = f"buffer_load_dwordx4 v{V_D1+j}, s[{S_W1}:{S_W1+3}], s{S_BO} offen offset:{j*1024} lds"
            else:
                d = f"buffer_load_dwordx4 v{V_DQ+j}, s[{S_WQ}:{S_WQ+3}], s{S_BO} offen offset:{j*1024} lds"
            it.append((pre, d, []))
        return it

    segs = [pro]
    traces = []
    tails = {}
    extra = []
    vm_loop = [("dma", frozenset())] * 40
    for kind in range(2):
        nm = "KV"[kind]
        lp = Seg(f"m_loop{nm}", pro.lds, vm_loop)
        lp.label(f"M_LOOP_{nm}")
        d0, d1 = dma_items(0), dma_items(1)
        ktile(lp, kind, 0, d1[NK3:], d0[:NK3])
        ktile(lp, kind, 1, d0[NK3:], d1[:NK3])
        lp(f"s_add_u32 s{S_LP}, s{S_LP}, 1")
        lp(f"s_cmp_eq_u32 s{S_LP}, s{S_SIGIT}")
        lp(f"s_cbranch_scc1 M_SIG_{nm}")
        lp.label(f"M_SIG_{nm}_RET")
        for it in range(1, 8):
            if f"it{it}" in opt.get("sp", []):
                lp(f"s_cmp_lg_u32 s{S_LP}, {it}")
                lp(f"s_cbranch_scc1 M_NS{it}_{nm}")
                stamp(lp, opt, f"it{it}", raw=True)
                lp.label(f"M_NS{it}_{nm}")
        lp(f"s_cmp_lg_u32 s{S_LP}, 6")
        lp(f"s_cbranch_scc1 M_NOPOLL_{nm}")
        flag_line(lp, 7, FL_XN, S_QT)
        lp(f"buffer_load_dwordx2 {v(V_FL,2)}, v{V_FO}, s[{S_WS}:{S_WS+3}], s7 offen sc1", "pf")
        lp(f"v_mov_b32 v{V_XN+40}, {LDS_NONCE}")
        lp.raw(f"ds_read_b64 {v(V_XN+42,2)}, v{V_XN+40}")
        if not opt.get("no_cpf"):
            lp("s_getpc_b64 s[4:5]")
            lp.label(f"M_PC_{nm}")
            lp(f"v_min_u32 v{V_XN+44}, M_CODE_END-M_PC_{nm}-8, v{V_CP}")
            lp(f"global_load_dword v{V_PD}, v{V_XN+44}, s[4:5]", "pf")
        lp.label(f"M_NOPOLL_{nm}")
        lp(f"s_cmp_lt_u32 s{S_LP}, 7")
        lp(f"s_cbranch_scc1 M_LOOP_{nm}")
        tl = Seg(f"m_tail{nm}", lp.lds, lp.vm)
        bd = [b_dma(u) for u in range(8)]
        tl(f"v_readfirstlane_b32 s{S_N0}, v{V_XN+42}")
        tl(f"v_readfirstlane_b32 s{S_N1}, v{V_XN+43}")
        tl.nop(2)
        flag_test(tl, V_FL)
        tl(f"s_cselect_b32 s{S_XNF}, 1, 0")
        ktile(tl, kind, 0, d1[NK3:], bd[0] + bd[1], pref=False, tag3="b0", xn=0)
        ktile(tl, kind, 1, bd[2] + bd[3], bd[4] + bd[5], last=True, pref=False, tag0="b1", tag3="b2", xn=14)
        if kind == 0:
            tl("s_branch M_B")
        sg = Seg(f"m_sig{nm}")
        sg.label(f"M_SIG_{nm}")
        sg(f"v_readfirstlane_b32 s{S_N0}, v{V_XN+43}")
        sg(f"v_readfirstlane_b32 s{S_N1}, v{V_XN+42}")
        sg(f"s_cmp_eq_u32 s{S_N0}, 0")
        sg(f"s_cselect_b32 s{S_N0}, s{S_N1}, s{S_N0}")
        sg(f"s_xor_b32 s{S_N1}, s{S_N0}, {NONCE_K:#x}")
        flag_line(sg, 7, FL_XN, S_QT)
        sg(f"s_lshl_b32 s6, s{S_HEAD}, 3")
        flag_set(sg, S_WS, 7, "s6", V_XN + 40)
        sg(f"v_mov_b32 v{V_XN+42}, {LDS_NONCE}")
        sg(f"ds_write_b64 v{V_XN+42}, {v(V_XN+40,2)}")
        sg(f"s_branch M_SIG_{nm}_RET")
        extra.append(sg)
        segs += [lp, tl]
        tails[kind] = tl
        traces.append([pro, lp, lp, tl])

    e = Seg("m_b", tails[0].lds, tails[0].vm)
    e.label("M_B")
    stamp(e, opt, 2)
    stamp(e, opt, "b")
    e(f"s_cmp_lt_u32 s{S_XNF}, {99 if opt.get('force_fb') else 1}")
    e("s_cbranch_scc1 M_FB")
    e.label("M_FB_RET")
    srd(e, S_WO, P_WO, WO_BYTES)
    srd(e, S_W2, P_W2, W2_BYTES)
    attn.setup_dma(e)
    fb = Seg("m_fb")
    fb.label("M_FB")
    fb.wait_force(vm=0)
    fb(f"s_lshl_b32 s7, s{S_QT}, 7")
    fb("s_lshl_b32 s6, s3, 5")
    fb("s_add_u32 s7, s7, s6")
    fb("v_and_b32 v6, 31, v0")
    fb("v_add_u32 v6, s7, v6")
    fb("v_mul_u32_u24 v6, 896, v6")
    fb("v_lshrrev_b32 v7, 5, v0")
    fb("v_lshl_add_u32 v6, v7, 4, v6")
    for ks in range(28):
        fb(f"buffer_load_dwordx4 {v(V_XN+ks*4,4)}, v6, s[{S_X}:{S_X+3}], 0 offen offset:{ks*32}", "x")
    layernorm(fb, 112, (32,), range(112))
    fb.nop(2)
    fb("s_branch M_FB_RET")
    extra.append(fb)

    D = opt.get("b_depth", 7)
    NF = NT * 16

    def b_read(f):
        u, rem = divmod(f, 16)
        ks, nb = divmod(rem, 4)
        slot = SLOT_ORDER[u % 8]
        fr = V_FA + (f % 8) * 4
        at = V_AT + (4 if slot >= 4 else 0) + nb
        return [f"ds_read_b64_tr_b16 {v(fr+2*h,2)}, v{at} offset:{(slot&3)*16384 + (16*ks+4*h)*256}" for h in range(2)]

    def kv_epi(b):
        i, j = divmod(b, 4)
        t = 8
        ops = [f"s_add_u32 s{S_KVC}, s{S_KVBASE}, {KV_OFF + j*32768 + (i>>1)*4096}"]
        for c in range(2):
            for r in range(8):
                ops.append(f"v_accvgpr_read_b32 v{t+r}, a{b*16+8*c+r}")
            for r in range(4):
                ops.append(f"v_cvt_pk_bf16_f32 v{t+8+r}, v{t+2*r}, v{t+2*r+1}")
            ops.append((f"buffer_store_dwordx4 {v(t+8,4)}, v{V_L16}, s[{S_WS}:{S_WS+3}], s{S_KVC} offen offset:{(i&1)*2048+c*1024}{ST}", "kvst"))
        return ops

    QS = f32(math.log2(math.e) / 16.0)

    def q_epi(part):
        ops = []
        t = 20
        for nb in range(4):
            if nb % 2 == 0:
                ops.append(f"s_add_u32 s{S_QC}, s{S_QB}, {part*8192 + (nb>>1)*4096}")
            for c in range(2):
                if part == 0:
                    for r in range(8):
                        ops.append(f"v_mul_f32 v{t+r}, {QS}, v{H_ACC[nb]+8*c+r}")
                else:
                    for r in range(8):
                        ops.append(f"v_accvgpr_read_b32 v{t+r}, a{nb*16+8*c+r}")
                    for r in range(8):
                        ops.append(f"v_mul_f32 v{t+r}, {QS}, v{t+r}")
                for r in range(4):
                    ops.append(f"v_cvt_pk_bf16_f32 v{t+8+r}, v{t+2*r}, v{t+2*r+1}")
                ops.append((f"buffer_store_dwordx4 {v(t+8,4)}, v{V_L16}, s[{S_QST}:{S_QST+3}], s{S_QC} offen offset:{(nb&1)*2048 + c*1024} sc1", "qst"))
                for r in range(4):
                    ops.append(f"v_accvgpr_write_b32 a{A_Q2 + part*32 + nb*8 + c*4 + r}, v{t+8+r}")
        return ops

    def h_epi():
        ops = []
        for k in range(7):
            nb, c = divmod(k, 2)
            t = 8 + (k % 2) * 12
            hb = H_ACC[nb] + 8 * c
            for r in range(8):
                ops.append(f"v_mul_f32 v{t+r}, {f32(-math.log2(math.e))}, v{hb+r}")
            for r in range(8):
                ops.append(f"v_exp_f32 v{t+r}, v{t+r}")
            for r in range(8):
                ops.append(f"v_add_f32 v{t+r}, 1.0, v{t+r}")
            for r in range(8):
                ops.append(f"v_rcp_f32 v{t+r}, v{t+r}")
            for r in range(8):
                ops.append(f"v_mul_f32 v{t+r}, v{t+r}, v{hb+r}")
            for r in range(4):
                ops.append(f"v_cvt_pk_bf16_f32 v{t+8+r}, v{t+2*r}, v{t+2*r+1}")
            for r in range(4):
                ops.append(f"v_accvgpr_write_b32 a{A_HF + 4*k + r}, v{t+8+r}")
        return ops

    GKV, GQ = opt.get("g_kv", 8), opt.get("g_q", 10)
    spine, fill = [], {}
    e.wait_tag("b0")
    e("s_barrier")
    for f in range(D):
        for r in b_read(f):
            e(r)
    place_dma(fill, b_dma(6) + b_dma(7), 1, 24, "b3")
    for f in range(NF):
        u, rem = divmod(f, 16)
        part, kt = divmod(u, 7)
        ks, nb = divmod(rem, 4)
        acc = a(nb * 16, 16) if part == 1 else v(H_ACC[nb], 16)
        c = "0" if (kt == 0 and ks == 0) else acc
        spine.append(f"{MFMA} {acc}, {v(V_FA+(f%8)*4,4)}, {v(V_XN+(kt*4+ks)*4,4)}, {c}")
        nf = f + D
        if nf < NF:
            if nf % 32 == 0:
                g = nf // 32
                ops = [lambda e, g=g: e.wait_tag(f"b{g}")]
                if g == GKV:
                    ops.append(lambda e: e.wait_tag("kvst"))
                if g == GQ:
                    ops.append(lambda e: e.wait_tag("qst"))
                ops.append("s_barrier")
                if g == GKV:
                    ops += ["s_cmp_eq_u32 s3, 0", "s_cbranch_scc1 M_SKV", "M_SKV_RET:"]
                if g == GQ:
                    ops += ["s_cmp_eq_u32 s3, 0", "s_cbranch_scc1 M_SQ", "M_SQ_RET:"]
                fill.setdefault(f, []).extend(ops)
                if g >= 2:
                    its = []
                    for u2 in (2 * g + 4, 2 * g + 5):
                        if u2 < NT:
                            its += b_dma(u2)
                    if its:
                        place_dma(fill, its, f + 2, f + 26, f"b{g+2}")
            fill.setdefault(f, []).extend(b_read(nf))
        if f % 2 == 0:
            r = v(V_FA + (min(f + 1, NF - 1) % 8) * 4, 4)
            fill.setdefault(f - 1, []).append(lambda e, r=r: wait_reg(e, r))
    nb1, gkv_end, gq0, gq1 = opt.get("kv_split", (11, 190, 117, 290))
    pour(fill, sum((kv_epi(b) for b in range(0, nb1)), []), 2, 108)
    pour(fill, sum((kv_epi(b) for b in range(nb1, 16)), []), 108, gkv_end)
    pour(fill, q_epi(0), gq0, 220)
    pour(fill, q_epi(1), 224 + 5, gq1)
    gp = opt.get("g_poll", 322)
    fill.setdefault(gp, []).extend(["s_cmp_eq_u32 s3, 0", "s_cbranch_scc1 M_P1", "M_P1_RET:"])
    print(gap_report("phase B", fill, NF))
    weave(e, spine, fill)
    stamp(e, opt, 3)
    stamp(e, opt, "bend")

    skv = Seg("m_skv")
    skv.label("M_SKV")
    flag_line(skv, 7, FL_KV, S_HA)
    flag_set(skv, S_WS, 7, f"s{S_KVSLOT}", 8)
    skv("s_branch M_SKV_RET")
    sq = Seg("m_sq")
    sq.label("M_SQ")
    sq(f"s_cmp_lt_u32 s{S_QT}, 8")
    sq("s_cbranch_scc1 M_SQ_RET")
    flag_line(sq, 7, FL_PAIR, S_PAIR)
    flag_set(sq, S_WS, 7, 0, 8)
    sq("s_branch M_SQ_RET")

    def poll_loads(e):
        e(f"buffer_load_dwordx2 v[10:11], v{V_FO}, s[{S_WS}:{S_WS+3}], s72 offen sc1")
        e(f"buffer_load_dwordx2 v[12:13], v14, s[{S_WS}:{S_WS+3}], s73 offen sc1")

    p1 = Seg("m_p1")
    p1.label("M_P1")
    flag_line(p1, 72, FL_KV, S_HEAD)
    flag_line(p1, 73, FL_PAIR, S_PAIR)
    p1(f"s_cmp_ge_u32 s{S_QT}, 8")
    p1("s_cselect_b32 s73, s72, s73")
    p1("v_mov_b32 v14, 0")
    poll_loads(p1)
    p1("s_branch M_P1_RET")
    extra += [skv, sq, p1]

    e("s_cmp_lg_u32 s3, 0")
    e("s_cbranch_scc1 M_POLL_OK")
    e("s_mov_b32 s6, 0")
    e.label("M_POLL")
    e.wait_force(vm=0)
    flag_test(e, 10)
    e("s_cselect_b32 s7, 1, 0")
    flag_test(e, 12)
    e("s_cselect_b32 s7, s7, 0")
    e("s_cmp_eq_u32 s7, 1")
    e("s_cbranch_scc1 M_POLL_OK")
    e("s_sleep 4")
    poll_loads(e)
    e("s_add_u32 s6, s6, 1")
    e(f"s_cmp_lt_u32 s6, {PMAX}")
    e("s_cbranch_scc1 M_POLL")
    e.wait_force(vm=0)
    e.label("M_POLL_OK")
    e.wait_force(lgkm=0)
    e("s_barrier")
    stamp(e, opt, "polled")
    e(f"s_cmp_ge_u32 s{S_QT}, 8")
    e("s_cbranch_scc1 M_BIGQ")
    for k in range(16):
        if k and k % 4 == 0:
            e(f"s_add_u32 s{S_QB}, s{S_QB}, 4096")
        e(f"buffer_load_dwordx4 {a(A_Q+4*k,4)}, v{V_L16}, s[{S_WS}:{S_WS+3}], s{S_QB} offen offset:{(k%4)*1024} sc1", "q")
    e.label("M_BIGQ")
    fl = attn.first_loads()
    he = h_epi()
    per = -(-len(he) // 24)
    k = 0
    for grp in fl:
        for x in grp:
            run(e, [x])
            if isinstance(x, tuple):
                run(e, he[k * per:(k + 1) * per])
                k += 1
    e(f"s_cmp_ge_u32 s{S_QT}, 8")
    e("s_cbranch_scc1 M_COPYQ")
    e.label("M_COPYQ_RET")
    cq = Seg("m_copyq")
    cq.label("M_COPYQ")
    for r in range(64):
        cq(f"v_accvgpr_mov_b32 a{A_Q+r}, a{A_Q2+r}")
    cq("s_branch M_COPYQ_RET")
    extra.append(cq)
    srd(e, S_OUT, P_OUT, OUT_BYTES)
    attn.setup_v(e)
    e("s_getpc_b64 s[80:81]")
    e.label("M_PC_A")
    e("s_lshr_b32 s7, s2, 3")
    e("s_lshl_b32 s7, s7, 2")
    e("s_add_u32 s7, s7, s3")
    e("s_mul_i32 s7, s7, 512")
    e(f"v_min_u32 v{attn.V_X+3}, 3, v0")
    e(f"v_lshl_add_u32 v{attn.V_X+3}, v{attn.V_X+3}, 7, s7")
    e(f"v_min_u32 v{attn.V_X+3}, M_CODE_END-M_PC_A-8, v{attn.V_X+3}")
    attn.init_state(e)
    stamp(e, opt, 4)
    stamp(e, opt, "a0")

    RA, RB, XR, VO, VP = 180, 32, 12, 2, 10

    def hooks(fill, NFE, ED):
        g = 6 * NFE - ED
        fill[g].extend(["s_cmp_eq_u32 s3, 0", "s_cbranch_scc1 M_SYA", "M_SYA_RET:"])
        ops = [f"s_lshl_b32 s7, s{S_QT}, 2", f"s_lshr_b32 s4, s{S_HEAD}, 2", "s_add_u32 s4, s4, s7",
               f"s_and_b32 s5, s{S_HEAD}, 3", "s_lshl_b32 s6, s3, 2", "s_add_u32 s5, s5, s6",
               "s_mul_i32 s6, s4, 28", "s_add_u32 s6, s6, s5", "s_lshl_b32 s6, s6, 10",
               f"s_add_u32 s53, s6, {Y_OFF}", "s_add_u32 s54, s53, 16384",
               f"v_and_b32 v{VO}, 31, v0", "v_lshrrev_b32 v3, 5, v0", "s_lshl_b32 s4, s4, 5", f"v_add_u32 v{VO}, s4, v{VO}",
               f"v_mul_u32_u24 v{VO}, 896, v{VO}", f"v_lshl_add_u32 v{VO}, v3, 3, v{VO}", "s_lshl_b32 s5, s5, 5",
               f"v_add_u32 v{VO}, s5, v{VO}"]
        ops += [f"buffer_load_dwordx2 {v(XR+2*k,2)}, v{VO}, s[{S_X}:{S_X+3}], 0 offen offset:{(k>>1)*512+(k&1)*16}" for k in range(4)]
        ops += [lambda e: flag_line(e, 55, FL_Y, S_QT), lambda e: flag_line(e, 63, FL_YA, S_QT)]
        pour(fill, ops, 5 * NFE + 2, 5 * NFE + 34)
        fill.setdefault(6 * NFE + opt.get("g_pa", 22), []).append(
            (f"buffer_load_dwordx2 {v(VP,2)}, v{V_FO}, s[{S_WS}:{S_WS+3}], s63 offen sc1", "pa"))

    sya = Seg("m_sya")
    sya.label("M_SYA")
    sya(f"s_lshl_b32 s6, s{S_HEAD}, 3")
    flag_set(sya, S_WS, 63, "s6", 20)
    sya("s_branch M_SYA_RET")
    extra.append(sya)

    def finish(e):
        stamp(e, opt, "yend")

        def loads(base, sreg, tag):
            for h in range(16):
                e(f"buffer_load_dwordx4 {v(base+4*h,4)}, v{V_L16}, s[{S_WS}:{S_WS+3}], s{sreg} offen sc1", tag)
                if h < 15:
                    e(f"s_add_u32 s{sreg}, s{sreg}, {64*28*1024}")

        def reduce(base, xr, off):
            acc, t = 20, 28
            for r in range(4):
                e(f"v_lshlrev_b32 v{acc+2*r}, 16, v{xr+r}")
                e(f"v_and_b32 v{acc+1+2*r}, 0xffff0000, v{xr+r}")
            for h in range(16):
                for r in range(4):
                    src = base + 4 * h + r
                    u = t + 2 * (r & 1)
                    e(f"v_lshlrev_b32 v{u}, 16, v{src}")
                    e(f"v_and_b32 v{u+1}, 0xffff0000, v{src}")
                    e(f"v_pk_add_f32 {v(acc+2*r,2)}, {v(acc+2*r,2)}, {v(u,2)}")
            for r in range(4):
                e(f"v_cvt_pk_bf16_f32 v{xr+r}, v{acc+2*r}, v{acc+1+2*r}")
            e(f"buffer_store_dwordx2 {v(xr,2)}, v{VO}, s[{S_OUT}:{S_OUT+3}], 0 offen offset:{off}")
            e(f"buffer_store_dwordx2 {v(xr+2,2)}, v{VO}, s[{S_OUT}:{S_OUT+3}], 0 offen offset:{off+16}")

        flag_test(e, VP)
        e("s_cselect_b32 s60, 1, 0")
        e("s_cbranch_scc0 M_NOA")
        loads(RA, 53, "ra")
        e.wait_force(vm=16)
        e("s_branch M_A1")
        e.label("M_NOA")
        e.wait_force(vm=0)
        e.label("M_A1")
        e("s_barrier")

        def spin(name, line):
            e("s_mov_b32 s6, 0")
            e.label(name)
            e(f"buffer_load_dwordx2 {v(VP,2)}, v{V_FO}, s[{S_WS}:{S_WS+3}], s{line} offen sc1")
            e.wait_force(vm=0)
            flag_test(e, VP)
            e(f"s_cbranch_scc1 {name}_OK")
            e("s_sleep 2")
            e("s_add_u32 s6, s6, 1")
            e(f"s_cmp_lt_u32 s6, {PMAX}")
            e(f"s_cbranch_scc1 {name}")
            e.label(name + "_OK")

        e("s_cmp_lg_u32 s3, 3")
        e("s_cbranch_scc1 M_PA_OK")
        e(f"s_lshl_b32 s6, s{S_HEAD}, 3")
        flag_set(e, S_WS, 55, "s6", 20)
        e("s_cmp_eq_u32 s60, 1")
        e("s_cbranch_scc1 M_PA_OK")
        spin("M_PA", 63)
        e("s_barrier")
        e("s_cmp_eq_u32 s60, 1")
        e("s_cbranch_scc1 M_A2")
        loads(RA, 53, "ra")
        e.label("M_A2")
        e("s_cmp_eq_u32 s3, 3")
        e("s_cbranch_scc1 M_W3")
        e.wait_force(vm=0)
        reduce(RA, XR, 0)
        e("s_barrier")
        stamp(e, opt, "ypoll")
        e.vm = []
        loads(RB, 54, "rb")
        reduce(RB, XR + 4, 512)
        e("s_branch M_DONE")
        e.label("M_W3")
        spin("M_PB", 55)
        e("s_barrier")
        stamp(e, opt, "ypoll")
        reduce(RA, XR, 0)
        e.label("M_DONE")
        stamp(e, opt, 5)
        stamp(e, opt, "end")
        stamp_flush(e, opt, 0, S_WS, 6)

    aopt = dict(opt)
    aopt["code_pf"] = not opt.get("no_cpf")
    if not opt.get("sp"):
        aopt["sp"] = ["none"]
        aopt["spk"] = ""
    asegs, atraces = attn.gen_attn(e, aopt, "M_END", finish, hooks)
    z = Seg("m_z")
    z.label("M_CODE_END")
    segs += asegs + extra + [z]
    for t in traces:
        t.append(e)
    traces += atraces + [[tails[0], fb, e]] + [[x] for x in extra]
    return segs, traces
```

```python
from emit import *
from common import *

LDS_BYTES = 160 * 1024
S_WS, S_WO, S_W2, S_Y1 = 16, 8, 12, 28
V_L16, V_PD = 1, 2
V_DMA, V_DMA2 = 3, 4
V_L0, V_L1, V_VA, V_HA, V_D0, V_NEGBIG, V_MAX, V_MS = 8, 9, 10, 11, 13, 14, 15, 16
V_T = 18
V_S = (32, 48)
V_P = (64, 72)
V_NM = 80
V_X = 96
V_O = 128
A_Q, A_Q2, A_F, A_HF = 0, 64, 128, 192
S_HEAD, S_QT, S_NH, S_IT, S_T, S_RET, S_DELTA, S_ITH, S_OFFH, S_OFFD = 32, 33, 34, 35, 36, 37, 38, 39, 40, 41
S_KVB, S_W4K, S_PAIR, S_ITSW, S_ITSIG, S_PEND = 42, 43, 48, 49, 50, 51
S_OFF = 44
THR = 16.0
VSLOT = {32: 0x20000, 33: 0x24000}
S_NEG, S_QS, S_PFO, S_PFD = 52, 82, 83, 84
V_KP = 12
KPD = 7
KVM = [""]


def setup_s(e):
    e(f"s_lshl_b32 s4, s{S_QT}, 2")
    e(f"s_sub_u32 s{S_NH}, 30, s4")
    e(f"s_sub_u32 s6, 15, s{S_QT}")
    e(f"s_cmp_ge_u32 s{S_QT}, 8")
    e(f"s_cselect_b32 s{S_NH}, 0, s{S_NH}")
    e(f"s_cselect_b32 s{S_PAIR}, s6, s{S_QT}")
    e(f"s_lshl_b32 s5, s{S_HEAD}, 3")
    e(f"s_add_u32 s{S_PAIR}, s{S_PAIR}, s5")
    e(f"s_lshl_b32 s{S_W4K}, s3, 12")
    e(f"s_lshl_b32 s{S_KVB}, s{S_HEAD}, 21")
    e(f"s_sub_u32 s5, 29, s{S_NH}")
    e("s_lshl_b32 s5, s5, 15")
    e(f"s_add_u32 s{S_OFFH}, s5, s{S_KVB}")
    e("s_lshl_b32 s5, s4, 15")
    e(f"s_add_u32 s{S_OFFD}, s5, s{S_KVB}")
    e(f"s_sub_u32 s5, s{S_NH}, 6")
    e("s_lshr_b32 s5, s5, 2")
    e(f"s_cmp_ge_u32 s{S_NH}, 6")
    e(f"s_cselect_b32 s{S_ITH}, s5, 99")
    e(f"s_lshr_b32 s5, s{S_NH}, 2")
    e(f"s_cmp_ge_u32 s{S_QT}, 8")
    e(f"s_cselect_b32 s{S_ITSW}, 99, s5")
    e(f"s_mov_b32 s{S_ITSIG}, s{S_ITSW}")
    e("s_cmp_eq_u32 s3, 0")
    e(f"s_cselect_b32 s{S_ITSIG}, s{S_ITSIG}, 99")
    e(f"s_mov_b32 s{S_NEG}, 0xffff8000")
    e(f"s_mov_b32 s{S_PEND}, 0")
    e(f"s_mov_b32 s{S_IT}, 0")
    e(f"s_mov_b32 s{S_T}, {f32(THR)}")


def setup_dma(e):
    e(f"v_lshlrev_b32 v{V_L16}, 4, v0")
    e(f"v_add_u32 v{V_DMA}, s{S_W4K}, v{V_L16}")
    e(f"v_add_u32 v{V_DMA2}, 0x4000, v{V_DMA}")


def setup_v(e):
    e(f"s_mul_i32 s5, s{S_QT}, 112")
    e("s_mul_i32 s6, s3, 28")
    e("s_add_u32 s5, s5, s6")
    e(f"v_min_u32 v{V_T}, 27, v0")
    e(f"v_add_u32 v{V_T}, s5, v{V_T}")
    e(f"s_mul_i32 s5, s{S_HEAD}, 229376")
    e(f"v_lshl_add_u32 v{V_X+1}, v{V_T}, 7, s5")
    e("s_mul_i32 s6, s3, 13")
    e(f"v_min_u32 v{V_T}, 12, v0")
    e(f"v_add_u32 v{V_T}, s6, v{V_T}")
    e(f"v_min_u32 v{V_T}, 48, v{V_T}")
    e(f"s_mul_i32 s5, s{S_QT}, 49")
    e(f"v_add_u32 v{V_T}, s5, v{V_T}")
    e(f"s_mul_i32 s5, s{S_HEAD}, 100352")
    e(f"v_lshl_add_u32 v{V_X+2}, v{V_T}, 7, s5")
    e(f"v_add_u32 v{V_VA}, 0x10000, v{V_L16}")
    e(f"v_and_b32 v{V_T}, 31, v0")
    e(f"v_lshrrev_b32 v{V_T+1}, 5, v0")
    e(f"v_lshlrev_b32 v{V_T+1}, 2, v{V_T+1}")
    e(f"v_sub_u32 v{V_D0}, v{V_T}, v{V_T+1}")
    e(f"v_mov_b32 v{V_NEGBIG}, {f32(-1e30)}")
    e(f"s_mov_b32 s{S_QS}, {f32(QSCALE)}")
    e(f"s_and_b32 s5, s{S_QT}, 7")
    e("s_lshl_b32 s5, s5, 2")
    e("s_add_u32 s5, s5, s3")
    e("s_lshl_b32 s5, s5, 10")
    e(f"v_and_b32 v{V_T}, 7, v0")
    e(f"v_lshl_add_u32 v{V_KP}, v{V_T}, 7, s5")
    e(f"v_bfe_u32 v{V_T}, v0, 3, 2")
    e(f"v_lshl_add_u32 v{V_KP}, v{V_T}, 15, v{V_KP}")
    e(f"s_cmp_ge_u32 s{S_QT}, 8")
    e(f"s_cselect_b32 s{S_PFO}, {29 - KPD - 3}, {30 + KPD}")
    e(f"s_cselect_b32 s{S_PFD}, -4, 4")
    e("s_mul_i32 s5, s3, 7168")
    e("s_add_u32 s5, s5, 0x20000")
    e(f"v_add_u32 v{V_HA}, s5, v{V_L16}")


def idx_ops(dst, n):
    return [
        f"s_mov_b32 s{dst}, {(29-n) << 15}",
        f"s_cmp_gt_u32 s{S_NH}, {n}",
        f"s_cselect_b32 s{dst}, {(30+n) << 15}, s{dst}",
        f"s_add_u32 s{dst}, s{dst}, s{S_KVB}",
    ]


def dmaK(slot, off, tag="dma", S_WS=S_WS):
    return [f"s_add_u32 m0, s{S_W4K}, {slot*16384}"] + [
        (f"buffer_load_dwordx4 v{V_DMA}, s[{S_WS}:{S_WS+3}], s{off} offen offset:{j*1024}{KVM[0]} lds", tag) for j in range(4)]


def dmaV(base, off, tag="dma", S_WS=S_WS):
    return [f"s_add_u32 m0, s{S_W4K}, {base}"] + [
        (f"buffer_load_dwordx4 v{V_DMA2}, s[{S_WS}:{S_WS+3}], s{off} offen offset:{j*1024}{KVM[0]} lds", tag) for j in range(4)]


def first_loads(sr=S_WS):
    out = [[idx_ops(S_OFF + n, n)] for n in range(4)]
    seq = [out[0] + dmaK(0, S_OFF + 0, "k0", sr), dmaV(0x10000, S_OFF + 0, "v0", sr), out[1] + dmaK(1, S_OFF + 1, "k1", sr),
           dmaV(0x14000, S_OFF + 1, "v1", sr), out[2] + dmaK(2, S_OFF + 2, "k2", sr), out[3] + dmaK(3, S_OFF + 3, "k3", sr)]
    return seq


def init_state(e, o_from=V_O):
    for r in range(o_from, V_O + 128, 2):
        e(f"v_mov_b64 {v(r,2)}, 0")
    for r in range(0, 16, 2):
        e(f"v_mov_b64 {v(V_NM+r,2)}, 0")
    e(f"v_mov_b64 {v(V_L0,2)}, 0")


def gen_attn(e, opt, end_label, finish=None, hooks=None):
    D = opt.get("a_depth", 14)
    WG = opt.get("a_waitgrp", 4)
    YM = opt.get("y_store_mod", "")
    KPF = 1 if opt.get("kpf") else 0
    NEPF = 0 if opt.get("no_epf") else (3 if opt.get("code_pf") else 2)

    def rd(f, kslot, vbase):
        d = a(A_F + (f % 16) * 4, 4)
        if f < 16:
            return f"ds_read_b128 {d}, v{V_L16} offset:{kslot*16384 + f*1024}"
        g, dt = divmod(f - 16, 8)
        return f"ds_read_b128 {d}, v{V_VA} offset:{vbase + (dt*2+g)*1024}"

    def mf(f, par):
        fr = a(A_F + (f % 16) * 4, 4)
        if f < 16:
            S = v(V_S[par ^ 1], 16)
            C = v(V_NM, 16) if f == 0 else S
            return f"{MFMA} {S}, {fr}, {a(A_Q+4*f,4)}, {C}"
        g, dt = divmod(f - 16, 8)
        O = v(V_O + dt * 16, 16)
        return f"{MFMA} {O}, {fr}, {v(V_P[par]+4*g,4)}, {O}"

    def max_ops(par):
        S = V_S[par]
        t = V_T
        ops = [f"v_max3_f32 v{t+k}, v{S+3*k}, v{S+3*k+1}, v{S+3*k+2}" for k in range(5)]
        ops += [f"v_max3_f32 v{t}, v{t}, v{t+1}, v{t+2}", f"v_max3_f32 v{t+3}, v{t+3}, v{t+4}, v{S+15}",
                f"v_max_f32 v{V_MAX}, v{t}, v{t+3}", f"v_cmp_lt_f32 vcc, s{S_T}, v{V_MAX}"]
        return ops

    def soft_ops(par):
        S, P = V_S[par], V_P[par]
        ops = []
        for k in range(9):
            if k < 8:
                ops += [f"v_exp_f32 v{S+2*k}, v{S+2*k}", f"v_exp_f32 v{S+2*k+1}, v{S+2*k+1}"]
            if k > 0:
                j = k - 1
                ops += [f"v_cvt_pk_bf16_f32 v{P+j}, v{S+2*j}, v{S+2*j+1}",
                        f"v_add_f32 v{V_L0}, v{V_L0}, v{S+2*j}", f"v_add_f32 v{V_L1}, v{V_L1}, v{S+2*j+1}"]
        return ops

    def mask_ops(par, t):
        S = V_S[par]
        ops = [[f"s_sub_u32 s54, {t}, s3", "s_lshl_b32 s54, s54, 5", f"v_subrev_u32 v{V_X}, s54, v{V_D0}"]]
        for h in range(4):
            for r in range(4 * h, 4 * h + 4):
                ops.append(f"v_cmp_le_i32 s[{64+2*(r%8)}:{65+2*(r%8)}], {8*(r>>2)+(r&3)}, v{V_X}")
            if h > 0:
                for r in range(4 * h - 4, 4 * h):
                    ops.append(f"v_cndmask_b32 v{S+r}, v{V_NEGBIG}, v{S+r}, s[{64+2*(r%8)}:{65+2*(r%8)}]")
        ops.append("s_nop 0")
        for r in range(12, 16):
            ops.append(f"v_cndmask_b32 v{S+r}, v{V_NEGBIG}, v{S+r}, s[{64+2*(r%8)}:{65+2*(r%8)}]")
        return ops

    def waits(fill, lo, hi, shift=0):
        for f in range(lo, hi, WG):
            r = a(A_F + ((f + WG - 1) % 16) * 4, 4)
            fill.setdefault(f - 1 - shift, []).append(lambda e, r=r: wait_reg(e, r))

    def place(fill, ops, g0, step=2):
        fill.setdefault(g0, []).append(ops[0])
        for j, d in enumerate(ops[1:]):
            fill.setdefault(g0 + 1 + step * j, []).append(d)

    rare_sites = {0: [], 1: []}
    stubs = Seg("a_stubs")

    def rare_check(e, par, name):
        k = len(rare_sites[par])
        rare_sites[par].append(name)
        e(f"s_cbranch_vccnz A_ST_{name}")
        e.label(f"A_RET_{name}")
        stubs.label(f"A_ST_{name}")
        stubs(f"s_mov_b32 s{S_RET}, {k}")
        stubs(f"s_branch A_RARE{par}")

    V_EV, V_EA = V_X + 4, V_X + 8

    def e_setup():
        ops = ["v_lshrrev_b32 v24, 3, v0", "v_mul_u32_u24 v24, 896, v24", "v_bfe_u32 v25, v0, 2, 1", "v_bfe_u32 v26, v0, 4, 1",
               "v_xor_b32 v25, v25, v26", "v_lshl_add_u32 v24, v25, 6, v24", "v_and_b32 v25, 3, v0",
               f"v_lshl_add_u32 v{V_EV}, v25, 4, v24"]
        ops += [f"v_add_u32 v{V_EV+j}, {j*7168 - j*1024}, v{V_EV}" for j in range(1, 4)]
        ops += [f"s_mul_i32 s56, s{S_HEAD}, 229376", "s_mul_i32 s4, s3, 57344", "s_add_u32 s56, s56, s4",
                f"s_mul_i32 s57, s{S_HEAD}, 100352", "s_mul_i32 s4, s3, 28672", "s_add_u32 s57, s57, s4",
                "s_lshl_b32 s60, s3, 13"]
        ops += ["v_lshrrev_b32 v24, 5, v0", "v_bfe_u32 v25, v0, 2, 2", "v_lshl_add_u32 v24, v24, 2, v25", "v_lshlrev_b32 v24, 7, v24",
                "v_lshl_add_u32 v24, v26, 5, v24", "v_and_b32 v25, 3, v0", "v_lshl_add_u32 v24, v25, 3, v24", "v_bfe_u32 v25, v0, 3, 1",
                f"v_lshl_add_u32 v{V_EA}, v25, 6, v24", f"v_xor_b32 v{V_EA+1}, 64, v{V_EA}"]
        ops += [f"s_lshl_b32 s62, s{S_HEAD}, 6", f"s_lshl_b32 s4, s{S_QT}, 2", "s_add_u32 s62, s62, s4", "s_add_u32 s62, s62, s3",
                "s_mul_i32 s62, s62, 28672", f"s_add_u32 s62, s62, {Y_OFF}"]
        return ops

    def e_dma(tag="edma"):
        ops = []
        for grp in range(2):
            ops.append(["s_add_u32 s61, s58, s60", f"s_add_u32 m0, s61, {grp*4096}", f"s_add_u32 s61, s56, {grp*32*896}"])
            for j in range(4):
                ops.append((f"buffer_load_dwordx4 v{V_EV+j}, s[{S_WO}:{S_WO+3}], s61 offen offset:{j*1024} lds", tag))
        ops.append([f"s_add_u32 m0, s59, s{S_W4K}", "s_add_u32 s56, s56, 128"])
        for j in range(4):
            ops.append((f"buffer_load_dwordx4 v{V_EV+j}, s[{S_W2}:{S_W2+3}], s57 offen offset:{j*1024} lds", tag))
        ops.append("s_add_u32 s57, s57, 128")
        return ops

    EO = (0x8000, 0x14000, 0x20000)
    E2 = (0x10000, 0x1c000, 0x0)

    e.wait_tag("q")
    e.wait_tag("k0")
    e.wait(lgkm=0)
    e("s_barrier")
    HS = opt["stash"]
    for k in range(7):
        e(f"ds_write_b128 v{V_HA}, {v(HS+4*k,4)} offset:{k*1024}")
    for f in range(D):
        e(rd(f, 0, 0))
    spine = [mf(f, 1) for f in range(16)]
    fill = {}
    waits(fill, 0, 16)
    for f in range(16):
        nf = f + D
        if nf == 16:
            fill.setdefault(f, []).extend([lambda e: e.wait_tag("k1"), lambda e: e.wait(lgkm=0), "s_barrier"])
        fill.setdefault(f, []).append(rd(nf % 16, 0 if nf < 16 else 1, 0))
    weave(e, spine, fill)
    run(e, idx_ops(S_OFF + 0, 4))
    e(f"s_cmp_gt_u32 s{S_NH}, 4")
    e(f"s_cselect_b32 s{S_DELTA}, 0x8000, s{S_NEG}")
    run(e, dmaK(0, S_OFF + 0))
    run(e, max_ops(0))
    stamp(e, opt, 1, raw=True)
    stamp(e, opt, "a_loop", raw=True)
    e(f"s_mov_b32 s{S_RET}, 0")
    e("s_branch A_FIRST")
    pro = e
    stateL, stateV = list(e.lds), [("dma", frozenset())] * 63

    def step(e, p, n=None):
        par = p & 1
        nm = f"L{p}" if n is None else f"P{n}"
        if p == 1:
            e(f"s_cmp_eq_u32 s{S_IT}, s{S_ITSW}")
            e(f"s_cbranch_scc1 A_SW1")
            e.label(f"A_SW1_RET_{nm}")
        spine = [mf(f, par) for f in range(32)]
        fill = {}
        waits(fill, 0, 32)
        vb = p * 16384 if n not in VSLOT else VSLOT[n] - 0x10000
        gb = 32 - D
        if n == 32:
            fill.setdefault(-1, []).append(f"v_add_u32 v{V_VA}, 0x10000, v{V_VA}")
            vb = 0
        for f in range(32):
            nf = f + D
            if nf == 32 and (n is None or n <= 30):
                vm = (8 + (NEPF if p in (0, 3) else 0) + (KPF if (p in (0, 1) and n is None) else 0)) if (n is None or n < 29) else (16 if n == 29 else 0)
                if n is None and p == 2:
                    fill.setdefault(f, []).extend([f"s_cmp_eq_u32 s{S_IT}, s{S_ITSW}", "s_cbranch_scc1 A_ALTW",
                                                   lambda e, vm=vm: e.wait_force(vm=vm), "A_ALTW_RET:", "s_barrier"])
                else:
                    fill.setdefault(f, []).extend([lambda e, vm=vm: e.wait_force(vm=vm), "s_barrier"])
            if nf < 32:
                fill.setdefault(f, []).append(rd(nf, (p + 1) % 4, vb))
            elif n != 32:
                fill.setdefault(f, []).append(rd(nf - 32, (p + 2) % 4, 0))
        if n is None or n <= 29:
            place(fill, dmaV(0x10000 + ((p + 2) % 4) * 16384, S_OFF + (p + 2) % 4), 0)
        if n is None or n <= 28:
            o = [f"s_add_u32 s{S_OFF+(p+1)%4}, s{S_OFF+p}, s{S_DELTA}"]
            if p == 1:
                d = S_OFF + 2
                o += [[f"s_cmp_eq_u32 s{S_IT}, s{S_ITH}", f"s_cselect_b32 s{d}, s{S_OFFH}, s{d}", f"s_cselect_b32 s{S_DELTA}, s{S_NEG}, s{S_DELTA}"],
                      [f"s_cmp_eq_u32 s{S_IT}, 6", f"s_cselect_b32 s{d}, s{S_OFFD}, s{d}", f"s_cselect_b32 s{S_DELTA}, 0x8000, s{S_DELTA}"]]
            else:
                pass
            place(fill, dmaK((p + 1) % 4, S_OFF + (p + 1) % 4), gb, 3)
            pour(fill, o, 9, gb)
        if n == 29:
            place(fill, dmaV(VSLOT[32], S_OFF + 0), 8, 1)
            place(fill, dmaV(VSLOT[33], S_OFF + 1), 13, 1)
        if n == 28:
            pour(fill, e_setup(), 9, 31)
        if n == 30:
            fill.setdefault(gb, []).extend([f"s_mov_b32 s58, {EO[0]}", f"s_mov_b32 s59, {E2[0]}"])
            pour(fill, e_dma("e0"), gb + 1, 32)
        if n is None and p == 3:
            fill.setdefault(gb + 2, []).extend([f"s_cmp_eq_u32 s{S_IT}, s{S_ITSIG}", "s_cbranch_scc1 A_SIG", "A_SIG_RET:"])
        if n == 31:
            fill.setdefault(2, []).extend([lambda e: flag_line(e, 55, FL_PAIR, S_PAIR), f"v_mov_b32 v{V_X+12}, 8"])
            fill.setdefault(4, []).append((f"buffer_load_dwordx2 {v(V_X+14,2)}, v{V_X+12}, s[{S_WS}:{S_WS+3}], s55 offen sc1", "ep"))
        if n is None and p == 0 and KPF:
            fill.setdefault(9, []).append([f"s_max_i32 s53, s{S_PFO}, 0", "s_min_i32 s53, s53, 60", "s_lshl_b32 s53, s53, 15",
                                           f"s_add_u32 s53, s53, s{S_KVB}"])
            fill.setdefault(11, []).append((f"buffer_load_dword v{V_PD}, v{V_KP}, s[{S_WS}:{S_WS+3}], s53 offen", "pf"))
            fill.setdefault(12, []).append(f"s_add_i32 s{S_PFO}, s{S_PFO}, s{S_PFD}")
        if n is None and p == 3 and NEPF:
            fill.setdefault(10, []).append((f"buffer_load_dword v{V_PD}, v{V_X+1}, s[{S_WO}:{S_WO+3}], 0 offen", "pf"))
            fill.setdefault(12, []).append((f"buffer_load_dword v{V_PD}, v{V_X+2}, s[{S_W2}:{S_W2+3}], 0 offen", "pf"))
            if NEPF == 3:
                fill.setdefault(14, []).append((f"global_load_dword v{V_PD}, v{V_X+3}, s[80:81]", "pf"))
        if n is None:
            RW, X_, T_, OU = V_X + 24, V_X + 28, V_T + 6, V_T + 10
            h = p >> 1
            if p == 0:
                fill.setdefault(0, []).append(f"ds_read_b128 {v(RW,4)}, v{V_HA}")
            if p % 2 == 0:
                sl = []
                for r in range(2):
                    sl += [f"v_lshlrev_b32 v{X_+2*r}, 16, v{RW+2*h+r}", f"v_and_b32 v{X_+2*r+1}, 0xffff0000, v{RW+2*h+r}"]
                sl += [f"v_mul_f32 v{T_+r}, {f32(-1.4426950408889634 / QSCALE)}, v{X_+r}" for r in range(4)]
                sl += [f"v_exp_f32 v{T_+r}, v{T_+r}" for r in range(4)]
            else:
                sl = [f"v_fma_f32 v{T_+r}, v{T_+r}, s{S_QS}, s{S_QS}" for r in range(4)]
                sl += [f"v_rcp_f32 v{T_+r}, v{T_+r}" for r in range(4)]
                sl += [f"v_mul_f32 v{T_+r}, v{T_+r}, v{X_+r}" for r in range(4)]
                sl += [f"v_cvt_pk_bf16_f32 v{OU+2*h+r}, v{T_+2*r}, v{T_+2*r+1}" for r in range(2)]
                if p == 3:
                    sl += [f"ds_write_b128 v{V_HA}, {v(OU,4)}", f"v_add_u32 v{V_HA}, 0x400, v{V_HA}"]
            silu = sl
        else:
            silu = []
        if n == 28:
            fill.setdefault(-1, []).append(f"v_subrev_u32 v{V_HA}, 0x1c00, v{V_HA}")
            for k in range(7):
                fill.setdefault(k, []).append(f"ds_read_b128 {a(A_HF+4*k,4)}, v{V_HA} offset:{k*1024}")
        so = soft_ops(par)
        mo = (mask_ops(par ^ 1, n - 29) if n is not None and n >= 29 else []) + max_ops(par ^ 1)
        sa = [x for x in so if not x.startswith("v_add")]
        pour(fill, sa[:14], 0, 13)
        pour(fill, sa[14:], 13, 23)
        pour(fill, mo, 19 if len(mo) > 9 else 21, 32)
        pour(fill, silu, 14 if p == 0 else 0, 17 if p == 3 else 32)
        for x in so:
            if x.startswith("v_add"):
                src = x.split(",")[-1].strip()
                g0 = [g for g in fill for y in fill[g] if isinstance(y, str) and y.startswith(f"v_exp_f32 {src},")][0]
                g = min(range(g0 + 1, 32), key=lambda g: (load_of(fill, g), g))
                fill[g].append(x)
        if n is None:
            def drop(pred):
                for g in fill:
                    fill[g] = [x for x in fill[g] if not pred(x)]
            txt = lambda x: x[0] if isinstance(x, tuple) else (x if isinstance(x, str) else "")
            if opt.get("x_nobar"):
                drop(lambda x: txt(x) == "s_barrier")
            if opt.get("x_nodma"):
                drop(lambda x: " lds" in txt(x))
            if opt.get("x_novalu"):
                drop(lambda x: txt(x).startswith(("v_exp", "v_add_f32", "v_cvt", "v_max", "v_mul", "v_rcp", "v_fma", "v_lshl", "v_and")))
            if opt.get("x_noexp"):
                for g in fill:
                    fill[g] = [x.replace("v_exp_f32", "v_mov_b32").replace("v_rcp_f32", "v_mov_b32") if isinstance(x, str) else x for x in fill[g]]
        if opt.get("verbose"):
            print(gap_report(f"step {nm}", fill, 32), [load_of(fill, g) for g in range(32)])
        weave(e, spine, fill)
        if p == 1:
            e(f"s_cmp_eq_u32 s{S_IT}, s{S_ITSW}")
            e("s_cbranch_scc1 A_SW2")
        rare_check(e, par, nm)

    lp = Seg("a_loop", stateL, stateV)
    lp.label("A_LOOP")
    for p in range(4):
        step(lp, p)
    lp(f"s_add_u32 s{S_IT}, s{S_IT}, 1")
    lp(f"s_cmp_lt_u32 s{S_IT}, 7")
    lp("s_cbranch_scc1 A_LOOP")
    stamp(lp, opt, "a_lend", raw=True)
    assert lp.lds == stateL

    peel = {}
    for n in range(28, 33):
        sg = Seg(f"a_p{n}", stateL, stateV)
        step(sg, n % 4, n)
        if n == 31:
            sg(f"s_cmp_ge_u32 s{S_QT}, 8")
            sg("s_cbranch_scc1 A_EARLY")
            sg.label("A_EARLY_RET")
        if n >= 29 and n < 32:
            sg(f"s_cmp_eq_u32 s3, {n-29}")
            sg(f"s_cbranch_scc1 A_TAILW{n-29}")
        peel[n] = sg

    def signal(e):
        flag_line(e, 55, FL_PAIR, S_PAIR)
        flag_set(e, S_WS, 55, 1, V_X + 12)
        e(f"s_mov_b32 s{S_PEND}, 0")

    def tail_body(e, par):
        e.wait(lgkm=0)
        for f in range(16, 16 + D):
            e(rd(f, 0, 0))
        so = soft_ops(par)
        run(e, so[:22])
        spine = [mf(f, par) for f in range(16, 32)]
        fill = {}
        waits(fill, 16, 32, 16)
        for f in range(16, 32):
            if f + D < 32:
                fill.setdefault(f - 16, []).append(rd(f + D, 0, 0))
        pour(fill, so[22:], 0, 7)
        weave(e, spine, fill)

    t3 = Seg("a_tail1", stateL, stateV)
    t3(f"v_add_u32 v{V_VA}, 0x4000, v{V_VA}")
    t3.label("A_TAIL1")
    tail_body(t3, 1)
    t3.label("A_FIN")
    t0 = Seg("a_tail0", stateL, stateV)
    t0.label("A_TAILW0")
    t0(f"v_add_u32 v{V_VA}, 0x8000, v{V_VA}")
    t0("s_branch A_TAIL0")
    t0.label("A_TAILW1")
    t0(f"v_add_u32 v{V_VA}, 0xc000, v{V_VA}")
    t0("s_branch A_TAIL1")
    t0.label("A_TAILW2")
    t0(f"v_add_u32 v{V_VA}, 0x10000, v{V_VA}")
    t0.label("A_TAIL0")
    tail_body(t0, 0)
    t0("s_cmp_lg_u32 s3, 0")
    t0("s_cbranch_scc1 A_FIN")
    t0.wait_force(vm=0)
    t0("s_barrier")
    t0(f"s_mov_b32 s58, {EO[0]}")
    t0(f"s_mov_b32 s59, {E2[0]}")
    run(t0, e_dma("e0"))
    t0(f"s_cmp_eq_u32 s{S_PEND}, 0")
    t0("s_cbranch_scc1 A_FIN")
    signal(t0)
    t0("s_branch A_FIN")

    def ret_chain(e, names):
        for k, nm in enumerate(names[:-1]):
            e(f"s_cmp_eq_u32 s{S_RET}, {k}")
            e(f"s_cbranch_scc1 A_RET_{nm}")
        e(f"s_branch A_RET_{names[-1]}")

    def rare(par):
        e = Seg(f"a_rare{par}", stateL, stateV)
        e.label(f"A_RARE{par}")
        S = V_S[par ^ 1]
        t = V_T
        e(f"v_mov_b32 v{t}, v{V_MAX}")
        e.nop(2)
        e(f"v_permlane32_swap_b32 v{V_MAX}, v{t}")
        e(f"v_max3_f32 v{t}, v{V_MAX}, v{t}, 0")
        e(f"v_exp_f32 v{t+1}, -v{t}")
        for r in range(16):
            e(f"v_sub_f32 v{S+r}, v{S+r}, v{t}")
        for r in range(16):
            e(f"v_sub_f32 v{V_NM+r}, v{V_NM+r}, v{t}")
        e(f"v_mul_f32 v{V_L0}, v{V_L0}, v{t+1}")
        e(f"v_mul_f32 v{V_L1}, v{V_L1}, v{t+1}")
        for r in range(128):
            e(f"v_mul_f32 v{V_O+r}, v{V_O+r}, v{t+1}")
        ret_chain(e, rare_sites[par])
        return e

    r0, r1 = rare(0), rare(1)

    fs = Seg("a_first", stateL, stateV)
    e = fs
    e.label("A_FIRST")
    t = V_T
    e(f"v_mov_b32 v{t}, v{V_MAX}")
    e.nop(2)
    e(f"v_permlane32_swap_b32 v{V_MAX}, v{t}")
    e(f"v_max_f32 v{t}, v{V_MAX}, v{t}")
    for r in range(16):
        e(f"v_sub_f32 v{V_S[0]+r}, v{V_S[0]+r}, v{t}")
    for r in range(16):
        e(f"v_sub_f32 v{V_NM+r}, 0, v{t}")
    e(f"s_cmp_eq_u32 s{S_RET}, 0")
    e("s_cbranch_scc1 A_LOOP")
    e(f"s_cmp_eq_u32 s{S_IT}, 7")
    e("s_cbranch_scc1 A_RET_P29")
    e("s_branch A_RET_L1")

    sw1 = Seg("a_sw1", stateL, stateV)
    e = sw1
    e.label("A_SW1")
    for r in range(64):
        e(f"v_accvgpr_mov_b32 a{A_Q+r}, a{A_Q2+r}")
    e(f"v_mov_b32 v{V_MS}, v{V_NM}")
    for r in range(0, 16, 2):
        e(f"v_mov_b64 {v(V_NM+r,2)}, 0")
    e(f"s_cmp_eq_u32 s{S_IT}, 7")
    e("s_cbranch_scc1 A_SW1_RET_P29")
    e("s_branch A_SW1_RET_L1")

    def part_addr(e):
        e(f"s_lshl_b32 s54, s{S_PAIR}, 2")
        e("s_add_u32 s54, s54, s3")
        e("s_lshl_b32 s55, s54, 9")
        e(f"s_add_u32 s55, s55, {ML_OFF}")
        e("s_lshl_b32 s54, s54, 14")
        e(f"s_add_u32 s54, s54, {OP_OFF}")

    sw2 = Seg("a_sw2", stateL, stateV)
    e = sw2
    e.label("A_SW2")
    part_addr(e)
    t = V_X + 12
    e(f"v_add_f32 v{V_L0}, v{V_L0}, v{V_L1}")
    e(f"v_lshrrev_b32 v{t+2}, 2, v{V_L16}")
    e(f"buffer_store_dword v{V_MS}, v{t+2}, s[{S_WS}:{S_WS+3}], s55 offen sc1")
    e(f"buffer_store_dword v{V_L0}, v{t+2}, s[{S_WS}:{S_WS+3}], s55 offen offset:256 sc1")
    for k in range(16):
        if k and k % 4 == 0:
            e("s_add_u32 s54, s54, 4096")
        u = t + 4 + (k % 2) * 4
        for r in range(4):
            o = V_O + 8 * k + 2 * r
            e(f"v_cvt_pk_bf16_f32 v{u+r}, v{o}, v{o+1}")
        for r in range(4):
            e(f"v_mov_b64 {v(V_O+8*k+2*r,2)}, 0")
        e(f"buffer_store_dwordx4 {v(u,4)}, v{V_L16}, s[{S_WS}:{S_WS+3}], s54 offen offset:{(k%4)*1024} sc1")
    e(f"v_mov_b64 {v(V_L0,2)}, 0")
    e(f"s_mov_b32 s{S_PEND}, 1")
    e(f"s_mov_b32 s{S_RET}, 1")
    e("s_branch A_FIRST")

    sig = Seg("a_sig", stateL, stateV)
    sig.label("A_SIG")
    signal(sig)
    sig("s_branch A_SIG_RET")
    sig.label("A_ALTW")
    sig.wait_force(vm=26)
    sig("s_branch A_ALTW_RET")

    e = Seg("a_fin", [], stateV)
    stamp(e, opt, 2)
    stamp(e, opt, "a_fin")
    t = V_T
    CT = V_S[0]
    e(f"v_add_f32 v{V_L0}, v{V_L0}, v{V_L1}")
    e(f"s_cmp_ge_u32 s{S_QT}, 8")
    e("s_cbranch_scc1 A_MERGE")
    e(f"v_mov_b32 v{t}, v{V_L0}")
    e.nop(2)
    e(f"v_permlane32_swap_b32 v{V_L0}, v{t}")
    e(f"v_add_f32 v{V_L0}, v{V_L0}, v{t}")
    e(f"v_rcp_f32 v{t}, v{V_L0}")
    e.nop(1)
    e(f"v_mov_b32 v{t+1}, v{t}")
    e.nop(4)
    for k in range(64):
        e(f"v_pk_mul_f32 {v(V_O+2*k,2)}, {v(V_O+2*k,2)}, {v(t,2)}")
        if k:
            e(f"v_cvt_pk_bf16_f32 v{CT+k-1}, v{V_O+2*k-2}, v{V_O+2*k-1}")
    e(f"v_cvt_pk_bf16_f32 v{CT+63}, v{V_O+126}, v{V_O+127}")
    e("s_branch A_EPI")
    fin = e

    ML = V_X + 16

    def part_loads(e):
        part_addr(e)
        e(f"v_lshrrev_b32 v{V_X+12}, 2, v{V_L16}")
        e(f"buffer_load_dword v{ML}, v{V_X+12}, s[{S_WS}:{S_WS+3}], s55 offen sc1")
        e(f"buffer_load_dword v{ML+1}, v{V_X+12}, s[{S_WS}:{S_WS+3}], s55 offen offset:256 sc1")
        for k in range(16):
            if k and k % 4 == 0:
                e("s_add_u32 s54, s54, 4096")
            e(f"buffer_load_dwordx4 {a(A_Q2+4*k,4)}, v{V_L16}, s[{S_WS}:{S_WS+3}], s54 offen offset:{(k%4)*1024} sc1")

    early = Seg("a_early", stateL, peel[31].vm)
    e = early
    e.label("A_EARLY")
    flag_test(e, V_X + 14)
    e("s_cbranch_scc0 A_EARLY_RET")
    part_loads(e)
    e(f"s_mov_b32 s{S_PEND}, 2")
    e("s_branch A_EARLY_RET")

    mg = Seg("a_merge", [], stateV)
    e = mg
    e.label("A_MERGE")
    e(f"s_cmp_eq_u32 s{S_PEND}, 2")
    e("s_cbranch_scc1 A_HAVE")
    flag_line(e, 55, FL_PAIR, S_PAIR)
    e(f"v_mov_b32 v{t}, 8")
    e("s_mov_b32 s53, 0")
    e.label("A_POLL")
    e(f"buffer_load_dwordx2 {v(t+2,2)}, v{t}, s[{S_WS}:{S_WS+3}], s55 offen sc1")
    e.wait_force(vm=0)
    flag_test(e, t + 2)
    e("s_cbranch_scc1 A_POLL_OK")
    e("s_sleep 4")
    e("s_add_u32 s53, s53, 1")
    e(f"s_cmp_lt_u32 s53, {opt.get('poll_max', 200000)}")
    e("s_cbranch_scc1 A_POLL")
    e.label("A_POLL_OK")
    part_loads(e)
    e.label("A_HAVE")
    e(f"v_min_f32 v{t+3}, v{V_NM}, v{ML}")
    e(f"v_sub_f32 v{t+4}, v{t+3}, v{V_NM}")
    e(f"v_sub_f32 v{t+6}, v{t+3}, v{ML}")
    e(f"v_exp_f32 v{t+4}, v{t+4}")
    e(f"v_exp_f32 v{t+6}, v{t+6}")
    e.nop(1)
    e(f"v_mul_f32 v{t+3}, v{t+6}, v{ML+1}")
    e(f"v_fma_f32 v{t+3}, v{V_L0}, v{t+4}, v{t+3}")
    e(f"v_mov_b32 v{t+2}, v{t+3}")
    e.nop(2)
    e(f"v_permlane32_swap_b32 v{t+3}, v{t+2}")
    e(f"v_add_f32 v{t+3}, v{t+3}, v{t+2}")
    e(f"v_rcp_f32 v{t+3}, v{t+3}")
    e.nop(1)
    e(f"v_mul_f32 v{t+4}, v{t+4}, v{t+3}")
    e(f"v_mul_f32 v{t+6}, v{t+6}, v{t+3}")
    e(f"v_mov_b32 v{t+5}, v{t+4}")
    e(f"v_mov_b32 v{t+7}, v{t+6}")
    for k in range(64):
        e(f"v_pk_mul_f32 {v(V_O+2*k,2)}, {v(V_O+2*k,2)}, {v(t+4,2)}")
    for k in range(64):
        u = t + 8 + (k % 2) * 2
        e(f"v_accvgpr_read_b32 v{u+1}, a{A_Q2+k}")
        if k:
            e(f"v_cvt_pk_bf16_f32 v{CT+k-1}, v{V_O+2*k-2}, v{V_O+2*k-1}")
        e(f"v_lshlrev_b32 v{u}, 16, v{u+1}")
        e(f"v_and_b32 v{u+1}, 0xffff0000, v{u+1}")
        e(f"v_pk_fma_f32 {v(V_O+2*k,2)}, {v(u,2)}, {v(t+6,2)}, {v(V_O+2*k,2)}")
    e(f"v_cvt_pk_bf16_f32 v{CT+63}, v{V_O+126}, v{V_O+127}")

    e = Seg("a_epi", [], [])
    e.label("A_EPI")
    stamp(e, opt, 3)
    stamp(e, opt, "a_epi")
    YA = (V_O, V_O + 16)
    YP = V_O + 32
    VC = V_O + 48
    ED = opt.get("e_depth", 7)
    NFE, NT = 46, 7
    NF = NFE * NT

    def erd(f):
        c, r = divmod(f, NFE)
        seg, ks = divmod(r, 23)
        off = (EO[c % 3] + 16 * ks * 128) if ks < 16 else (E2[c % 3] + 16 * (ks - 16) * 128)
        base = (V_EA, VC, VC + 2)[off >> 16] + seg
        off &= 0xffff
        return [f"ds_read_b64_tr_b16 {a(A_F+(f%8)*4+2*u,2)}, v{base} offset:{off+u*1024}" for u in range(2)]

    def ecvt(c, seg):
        ops = [f"v_cvt_pk_bf16_f32 v{YP+8*seg+r}, v{YA[seg]+2*r}, v{YA[seg]+2*r+1}" for r in range(8)]
        st = [(f"buffer_store_dwordx4 {v(YP+8*seg+4*k,4)}, v{V_L16}, s[{S_WS}:{S_WS+3}], s62 offen offset:{seg*2048+k*1024}{YM}",
               "ya" if c < 4 else "yb") for k in range(2)]
        if seg == 1 and c < NT - 1:
            st.append("s_add_u32 s62, s62, 4096")
        return ops, st

    def edma_at(t):
        return [[f"s_mov_b32 s58, {EO[t%3]}", f"s_mov_b32 s59, {E2[t%3]}"]] + e_dma(f"e{t}")

    for k in range(2):
        e(f"v_add_u32 v{VC+k}, 0x10000, v{V_EA+k}")
        e(f"v_add_u32 v{VC+2+k}, 0x20000, v{V_EA+k}")
    e.wait_force(vm=0)
    e("s_barrier")
    for f in range(ED):
        run(e, erd(f))
    spine, fill = [], {}
    for f in range(NF):
        c, r = divmod(f, NFE)
        seg, ks = divmod(r, 23)
        B = v(CT + 4 * ks, 4) if ks < 16 else a(A_HF + 4 * (ks - 16), 4)
        acc = v(YA[seg], 16)
        spine.append(f"{MFMA} {acc}, {a(A_F+(f%8)*4,4)}, {B}, {'0' if ks == 0 else acc}")
        nf = f + ED
        if nf < NF:
            if nf % NFE == 0:
                t = nf // NFE
                ops = [lambda e, t=t: e.wait_tag(f"e{t}")]
                if t == 6:
                    ops.append(lambda e: e.wait_tag("ya"))
                if t <= 4:
                    ops.append(lambda e: e.wait(lgkm=0))
                fill.setdefault(f, []).extend(ops + ["s_barrier"])
            fill.setdefault(f, []).extend(erd(nf))
        if f % 2 == 0:
            rr = a(A_F + (min(f + 1, NF - 1) % 8) * 4, 4)
            fill.setdefault(f - 1, []).append(lambda e, rr=rr: wait_reg(e, rr))
    if hooks:
        hooks(fill, NFE, ED)
    spread(fill, edma_at(1), 0, 20)
    spread(fill, edma_at(2), 20, 52)
    for t in range(3, NT):
        g0 = max((t - 2) * NFE - ED + 1, 52)
        spread(fill, edma_at(t), g0, (t - 1) * NFE - ED)
    for c in range(NT):
        o, st = ecvt(c, 0)
        pour(fill, o + st, c * NFE + 27, c * NFE + 44)
        if c < NT - 1:
            o, st = ecvt(c, 1)
            if c == NT - 2 and hooks:
                pour(fill, o, (c + 1) * NFE + 4, (c + 1) * NFE + 21)
                fill.setdefault((c + 1) * NFE + 25, []).append(st[0])
                fill.setdefault((c + 1) * NFE + 26, []).extend(st[1:])
            else:
                pour(fill, o + st, (c + 1) * NFE + 4, (c + 1) * NFE + 21)
    if opt.get("verbose"):
        print(gap_report("epilogue", fill, NF), [load_of(fill, g) for g in range(NF)])
    weave(e, spine, fill)
    e.nop(12)
    o, st = ecvt(NT - 1, 1)
    run(e, o + st)
    if finish:
        finish(e)
    e.label(end_label)
    e("s_endpgm")
    epi = e

    pl = [peel[n] for n in range(28, 33)]
    segs = [pro, lp] + pl + [t3, fin, mg, epi, t0, stubs, r0, r1, fs, sw1, sw2, sig, early]
    traces = [
        [pro, fs, lp, lp] + pl + [t3, fin, epi],
        [lp, peel[28], peel[29], t0, fin, mg, epi],
        [lp, r1, lp], [peel[28], r0, peel[29]], [peel[28], sw1, peel[29], sw2, fs, peel[30]], [sig], [stubs],
        [peel[30], peel[31], t0], [peel[29], peel[30], t3], [peel[31], early, peel[32], t3, fin],
    ]
    return segs, traces
```

```python
from emit import *
from common import *
import attn
from attn import S_HEAD, S_QT, S_W4K, S_PAIR, S_WS, S_WO, S_W2, A_Q, A_Q2, A_HF, V_L16, V_PD
import math

NAME = "parallel_sum__compressed_kv_cla__dense_activation_silu__prompt_kernel"
LDS_BYTES = 160 * 1024
S_CKV, S_W, S_X, S_WQ, S_W1, S_QST, S_OUT = 8, 12, 20, 24, 28, 68, 24
SA, SB, S_LP, S_W8K, S_SIGIT, S_KIND, S_BO, S_KVBASE, S_KVC, S_QB, S_QC, S_XNB, S_XNF = 53, 54, 55, 56, 57, 58, 59, 60, 61, 62, 63, 66, 67
S_HA, S_KVSLOT = 76, 77
V_PA, V_PB, V_FO, V_FL = 3, 4, 5, 6
V_AA, V_AB, V_DA, V_DB = 8, 12, 16, 24
V_FA, V_FB, V_XN = 32, 64, 96
V_AB16, V_AA16, V_WR, V_ST = 8, 212, 224, 7
V_DQ, V_D1, V_AT, V_T = 208, 212, 216, 224
SLOT_ORDER = [8, 9, 0, 1, 4, 5, 2, 3, 6, 7]
V_AT3 = 212
S_KVE, S_EARLY = 24, 72
H_ACC = (64, 80, 224, 240)
V_CP = V_XN + 45

def gen_mega(opt):
    ST = opt.get("kv_store_mod", " sc1")
    attn.KVM[0] = opt.get("kv_load_mod", "")
    opt = dict(opt)
    opt.setdefault("y_store_mod", " sc1")
    opt["spk"] = ""
    PFD = 2
    A16 = opt.get("a16", 1)
    NPF = 2
    PMAX = opt.get("poll_max", 200000)
    e = Seg("m_pro")
    e.label(NAME)
    e("s_cmp_ge_u32 s2, 256")
    e("s_cbranch_scc1 M_END")
    stamp(e, opt, "entry")
    load_kernargs(e)
    e("v_lshrrev_b32 v1, 6, v0")
    e("v_and_b32 v0, 63, v0")
    e("v_readfirstlane_b32 s3, v1")
    e("s_and_b32 s4, s2, 7")
    e("s_lshl_b32 s4, s4, 1")
    e("s_lshr_b32 s5, s2, 3")
    e("s_and_b32 s34, s5, 7")
    e("s_lshr_b32 s35, s5, 3")
    e("s_and_b32 s42, s35, 1")
    e("s_add_u32 s42, s42, s4")
    e(f"s_lshr_b32 s{S_KIND}, s35, 1")
    e(f"s_lshr_b32 s{S_QT}, s5, 1")
    e(f"s_and_b32 s{S_HEAD}, s5, 1")
    e(f"s_add_u32 s{S_HEAD}, s{S_HEAD}, s4")
    e("s_and_b32 s36, s3, 1")
    e("s_lshr_b32 s37, s3, 1")
    L31, HI, G, R4, C = 224, 225, 226, 227, 228
    e(f"v_and_b32 v{L31}, 31, v0")
    e(f"v_lshrrev_b32 v{HI}, 5, v0")
    e(f"v_lshrrev_b32 v{G}, 4, v0")
    e(f"v_bfe_u32 v{R4}, v0, 2, 2")
    e(f"v_and_b32 v{C}, 3, v0")
    e("s_lshl_b32 s7, s34, 8")
    e("s_lshl_b32 s39, s35, 6")
    e("s_add_u32 s7, s7, s39")
    e("s_lshl_b32 s39, s3, 4")
    e("s_add_u32 s7, s7, s39")
    e("v_and_b32 v6, 15, v0")
    e("v_add_u32 v6, s7, v6")
    e(f"v_lshlrev_b32 v{V_PA}, 11, v6")
    e(f"v_lshl_add_u32 v7, v{G}, 7, v{V_PA}")
    e("s_lshl_b32 s7, s34, 3")
    e("s_lshl_b32 s39, s3, 1")
    e("s_add_u32 s7, s7, s39")
    e("v_bfe_u32 v6, v0, 2, 1")
    e("v_add_u32 v6, s7, v6")
    e("v_lshlrev_b32 v6, 13, v6")
    e(f"v_lshl_add_u32 v6, v{C}, 7, v6")
    e("s_lshl_b32 s7, s42, 9")
    e(f"v_add_u32 v{V_PB}, s7, v6")
    e("v_bfe_u32 v6, v0, 3, 2")
    e(f"v_lshl_add_u32 v5, v6, 19, v{V_PB}")
    e(f"s_lshl_b32 s7, s{S_QT}, 7")
    e(f"s_lshl_b32 s39, s{S_HEAD}, 3")
    e("s_add_u32 s7, s7, s39")
    e("v_and_b32 v6, 7, v0")
    e("v_add_u32 v6, s7, v6")
    e("v_mul_u32_u24 v6, 896, v6")
    e("v_lshrrev_b32 v1, 3, v0")
    e("v_lshl_add_u32 v6, v1, 4, v6")
    e("s_lshl_b32 s40, s3, 8")
    e("s_add_u32 s41, s40, 128")
    e("s_cmp_eq_u32 s3, 3")
    e("s_cselect_b32 s41, 0, s41")
    e.wait_force(lgkm=0)
    e(f"s_mov_b32 s{S_HA}, s42")
    e(f"s_lshl_b32 s{S_KVSLOT}, s{S_KIND}, 3")
    e(f"s_add_u32 s{S_KVSLOT}, s{S_KVSLOT}, s34")
    e(f"s_lshl_b32 s{S_KVSLOT}, s{S_KVSLOT}, 3")
    srd(e, S_CKV, P_CKV, CKV_BYTES)
    e(f"s_cmp_eq_u32 s{S_KIND}, 0")
    e(f"s_cselect_b32 s{S_W}, s{P_WUK}, s{P_WUV}")
    e(f"s_cselect_b32 s{S_W+1}, s{P_WUK+1}, s{P_WUV+1}")
    e(f"s_mov_b32 s{S_W+2}, {WU_BYTES:#x}")
    e(f"s_mov_b32 s{S_W+3}, 0x20000")
    srd(e, S_X, P_X, X_BYTES)
    stamp(e, opt, 0)
    stamp(e, opt, "karg")
    e(f"buffer_load_dword v{V_PD}, v7, s[{S_CKV}:{S_CKV+3}], 0 offen", "pf")
    e(f"buffer_load_dword v{V_PD}, v5, s[{S_W}:{S_W+3}], 0 offen", "pf")
    for i in range(7):
        e(f"buffer_load_dwordx4 {v(V_XN+i*4,4)}, v6, s[{S_X}:{S_X+3}], 0 offen offset:{i*128}", "x")
    e(f"buffer_load_dwordx4 {v(V_XN+28,4)}, v6, s[{S_X}:{S_X+3}], s40 offen", "x")
    e(f"buffer_load_dwordx4 {v(V_XN+32,4)}, v6, s[{S_X}:{S_X+3}], s41 offen", "x")
    e(f"v_add_u32 v{V_PA}, {PFD*128}, v{V_PA}")
    e(f"v_add_u32 v{V_PB}, {PFD*0x80000}, v{V_PB}")
    e("s_lshl_b32 s7, s34, 8")
    e("s_lshl_b32 s39, s3, 6")
    e("s_add_u32 s7, s7, s39")
    e("v_add_u32 v6, s7, v1")
    e("v_lshlrev_b32 v6, 11, v6")
    e("v_and_b32 v7, 7, v0")
    e(f"v_xor_b32 v7, v7, v{G}")
    e("v_lshlrev_b32 v7, 4, v7")
    for j in range(8):
        e(f"v_xor_b32 v{V_DA+j}, {(((j ^ (j >> 1)) & 1) if A16 else (j & 1)) << 6}, v7")
        e(f"v_add_u32 v{V_DA+j}, v{V_DA+j}, v6")
        if j:
            e(f"v_add_u32 v{V_DA+j}, {j*16384-(j&3)*1024}, v{V_DA+j}")
    e("s_lshl_b32 s7, s3, 4")
    e(f"v_add_u32 v6, s7, v{HI}")
    e("v_lshlrev_b32 v6, 13, v6")
    e(f"s_lshl_b32 s7, s{S_HA}, 9")
    e("v_add_u32 v6, s7, v6")
    e(f"v_lshrrev_b32 v7, 2, v{L31}")
    e(f"v_xor_b32 v7, v7, v{HI}")
    e("v_lshlrev_b32 v7, 6, v7")
    e(f"v_lshl_add_u32 v7, v{C}, 4, v7")
    for j in range(8):
        e(f"v_xor_b32 v{V_DB+j}, {((j&1)<<7) ^ (48 * ((j >> 2) & 1) if A16 else 0)}, v7")
        e(f"v_add_u32 v{V_DB+j}, v{V_DB+j}, v6")
        if j:
            e(f"v_add_u32 v{V_DB+j}, {j*16384-(j&3)*1024}, v{V_DB+j}")
    e(f"s_lshl_b32 s{S_W8K}, s3, 13")
    e(f"s_mov_b32 s{SA}, 0")
    e(f"s_mov_b32 s{SB}, 0")

    def dma_items(b):
        it = []
        for j in range(8):
            pre = [f"s_add_u32 m0, s{S_W8K}, {b*32768 + (j>>2)*4096}"] if (j & 3) == 0 else []
            post = [f"s_add_u32 s{SA}, s{SA}, 128"] if j == 7 else []
            it.append((pre, f"buffer_load_dwordx4 v{V_DA+j}, s[{S_CKV}:{S_CKV+3}], s{SA} offen offset:{(j&3)*1024} lds", post))
        for j in range(8):
            pre = [f"s_add_u32 m0, s{S_W8K}, {65536 + b*32768 + (j>>2)*4096}"] if (j & 3) == 0 else []
            post = [f"s_add_u32 s{SB}, s{SB}, 0x80000"] if j == 7 else []
            it.append((pre, f"buffer_load_dwordx4 v{V_DB+j}, s[{S_W}:{S_W+3}], s{SB} offen offset:{(j&3)*1024} lds", post))
        return it

    NK3 = opt.get('nk3', 12) if A16 else 8
    q = Seg("tmp")
    srd(q, S_WS, P_WS, WS_BYTES)
    srd(q, S_WQ, P_WQ, WQ_BYTES)
    srd(q, S_W1, P_W1, W1_BYTES)
    if not A16:
        q("s_lshl_b32 s7, s36, 7")
        q(f"v_add_u32 v6, s7, v{L31}")
        q("v_lshlrev_b32 v6, 7, v6")
        q(f"v_bfe_u32 v7, v{L31}, 1, 3")
        q(f"v_xor_b32 v7, v7, v{HI}")
        q("v_lshl_add_u32 v6, v7, 4, v6")
        for k in range(4):
            q(f"v_xor_b32 v{V_AA+k}, {k<<5}, v6")
        q(f"v_lshrrev_b32 v6, 1, v{G}")
        q(f"v_lshl_add_u32 v6, v6, 3, v{R4}")
        q("v_lshlrev_b32 v6, 9, v6")
        q("s_lshl_b32 s7, s37, 8")
        q("s_add_u32 s7, s7, 0x10000")
        q("v_add_u32 v6, s7, v6")
        q(f"v_and_b32 v7, 1, v{G}")
        q("v_lshl_add_u32 v6, v7, 5, v6")
        q(f"v_lshl_add_u32 v6, v{C}, 3, v6")
        for nb in range(4):
            q(f"v_xor_b32 v7, {nb}, v{R4}")
            q(f"v_lshl_add_u32 v{V_AB+nb}, v7, 6, v6")
    else:
        q("v_and_b32 v6, 15, v0")
        q("v_and_b32 v7, 8, v0")
        q(f"v_mul_u32_u24 v7, s{S_KIND}, v7")
        q("v_add_u32 v6, v6, v7")
        q("s_lshl_b32 s7, s36, 7")
        q("v_add_u32 v6, s7, v6")
        q("v_lshlrev_b32 v6, 7, v6")
        q("v_bfe_u32 v7, v0, 1, 3")
        q(f"v_xor_b32 v7, v7, v{G}")
        q(f"v_lshl_add_u32 v{V_AA16}, v7, 4, v6")
        q(f"v_xor_b32 v{V_AA16+1}, 64, v{V_AA16}")
        q(f"v_lshl_add_u32 v6, v{G}, 3, v{R4}")
        q("v_lshlrev_b32 v6, 9, v6")
        q("s_lshl_b32 s7, s37, 8")
        q("s_add_u32 s7, s7, 0x10000")
        q("v_add_u32 v6, s7, v6")
        q(f"v_and_b32 v7, 1, v{C}")
        q("v_lshl_add_u32 v6, v7, 3, v6")
        q(f"v_and_b32 v7, 1, v{G}")
        q("v_mul_u32_u24 v7, 3, v7")
        q(f"v_lshl_add_u32 v7, v{R4}, 2, v7")
        q(f"v_lshrrev_b32 v231, 1, v{C}")
        q(f"s_sub_u32 s7, 1, s{S_KIND}")
        q("v_lshlrev_b32 v231, s7, v231")
        q("v_xor_b32 v7, v7, v231")
        q("v_lshl_add_u32 v6, v7, 4, v6")
        for i in range(8):
            nat, perm = i << 5, ((i >> 1) << 6) | ((i & 1) << 4)
            if nat == perm:
                q(f"v_xor_b32 v{V_AB16+i}, {nat}, v6")
            else:
                q(f"s_mul_i32 s7, s{S_KIND}, {nat - perm}")
                q(f"s_add_u32 s7, s7, {perm}")
                q(f"v_xor_b32 v{V_AB16+i}, s7, v6")
    q("s_lshl_b32 s7, s3, 4")
    q(f"v_add_u32 v6, s7, v{G}")
    q(f"v_xor_b32 v7, v{R4}, v{G}")
    q("v_lshlrev_b32 v7, 6, v7")
    q(f"v_lshl_add_u32 v7, v{C}, 4, v7")
    q(f"s_lshl_b32 s38, s{S_HEAD}, 9")
    q(f"v_lshlrev_b32 v{V_DQ}, 13, v6")
    q(f"v_add3_u32 v{V_DQ}, v{V_DQ}, v7, s38")
    for j in range(1, 4):
        q(f"v_add_u32 v{V_DQ+j}, {j*4*8192 - j*1024}, v{V_DQ}")
    q(f"s_mul_i32 s39, s{S_HEAD}, 224")
    q(f"v_mul_u32_u24 v{V_D1+3}, 3584, v6")
    q(f"v_add3_u32 v{V_D1+3}, v{V_D1+3}, v7, s39")
    q(f"v_lshrrev_b32 v6, 1, v{G}")
    q(f"v_lshl_add_u32 v6, v6, 3, v{R4}")
    q("v_lshlrev_b32 v6, 8, v6")
    q(f"v_and_b32 v7, 1, v{G}")
    q("v_lshl_add_u32 v6, v7, 5, v6")
    q(f"v_lshl_add_u32 v6, v{C}, 3, v6")
    for nb in range(4):
        q(f"v_xor_b32 v7, {nb}, v{R4}")
        q(f"v_lshl_add_u32 v{V_AT+nb}, v7, 6, v6")
        q(f"v_add_u32 v{V_AT+4+nb}, 0x10000, v{V_AT+nb}")
    q(f"s_mul_i32 s7, s{S_QT}, 28")
    q("s_mul_i32 s6, s3, 7")
    q("s_add_u32 s7, s7, s6")
    q("v_lshrrev_b32 v6, 2, v0")
    q("v_min_u32 v6, 6, v6")
    q("v_add_u32 v6, s7, v6")
    q("v_lshlrev_b32 v7, 13, v6")
    q(f"v_lshl_add_u32 v7, v{C}, 7, v7")
    q("v_add_u32 v142, s38, v7")
    q("v_mul_u32_u24 v7, 3584, v6")
    q(f"v_min_u32 v6, 2, v{C}")
    q("v_lshl_add_u32 v7, v6, 7, v7")
    q("v_add_u32 v143, s39, v7")
    q(f"s_lshl_b32 s{S_KVBASE}, s{S_HA}, 6")
    q("s_lshl_b32 s7, s34, 3")
    q(f"s_add_u32 s{S_KVBASE}, s{S_KVBASE}, s7")
    q("s_lshl_b32 s7, s36, 2")
    q(f"s_add_u32 s{S_KVBASE}, s{S_KVBASE}, s7")
    q(f"s_lshl_b32 s{S_KVBASE}, s{S_KVBASE}, 15")
    q(f"s_lshl_b32 s7, s{S_KIND}, 14")
    q(f"s_add_u32 s{S_KVBASE}, s{S_KVBASE}, s7")
    q("s_lshl_b32 s7, s37, 13")
    q(f"s_add_u32 s{S_KVBASE}, s{S_KVBASE}, s7")
    q(f"s_lshl_b32 s7, s{S_QT}, 2")
    q(f"v_and_b32 v{V_FO}, 15, v0")
    q(f"v_lshlrev_b32 v{V_FO}, 3, v{V_FO}")
    q(f"s_add_u32 s{S_XNB}, s7, s3")
    q(f"s_mul_i32 s{S_XNB}, s{S_XNB}, 28672")
    q(f"s_add_u32 s{S_XNB}, s{S_XNB}, {XN_OFF}")
    q(f"v_lshlrev_b32 v{V_L16}, 4, v0")
    q("s_lshr_b32 s7, s2, 3")
    q("s_lshl_b32 s7, s7, 2")
    q("s_add_u32 s7, s7, s3")
    q("s_mul_i32 s7, s7, 768")
    q(f"v_min_u32 v{V_CP}, 5, v0")
    q(f"v_lshl_add_u32 v{V_CP}, v{V_CP}, 7, s7")
    for i in range(256):
        q(f"v_accvgpr_write_b32 a{i}, 0")
    work = [i.text for i in q.ins]
    first = [(x, "t0") for x in dma_items(0)] + [(x, "dma") for x in dma_items(1)[:NK3]]
    per = -(-len(work) // len(first))
    for k, ((pre, d, post), tag) in enumerate(first):
        for x in pre:
            e(x)
        e(d, tag)
        for x in post:
            e(x)
        for x in work[k * per:(k + 1) * per]:
            e(x)
    e(f"buffer_load_dword v{V_PD}, v142, s[{S_WQ}:{S_WQ+3}], 0 offen", "pf")
    e(f"buffer_load_dword v{V_PD}, v143, s[{S_W1}:{S_W1+3}], 0 offen", "pf")
    e("s_cmp_lg_u32 s3, 0")
    e("s_cbranch_scc1 M_NOCAS")
    e("s_memrealtime s[44:45]")
    e(f"v_mov_b32 v{V_XN+41}, 0")
    e.wait_force(lgkm=0)
    e("s_or_b32 s44, s44, 1")
    e(f"v_mov_b32 v{V_XN+40}, s44")
    e(f"v_mov_b32 v{V_XN+42}, s44")
    e("s_mov_b64 exec, 1")
    e.raw(f"global_atomic_cmpswap v{V_XN+43}, v{V_XN+41}, {v(V_XN+40,2)}, s[{P_DBG}:{P_DBG+1}] sc0")
    e("s_mov_b64 exec, -1")
    e.label("M_NOCAS")
    stamp(e, opt, "dma")
    e(f"s_lshr_b32 s7, s{S_HEAD}, 2")
    e(f"s_lshl_b32 s39, s{S_QT}, 2")
    e("s_add_u32 s7, s7, s39")
    e("s_mul_i32 s7, s7, 28672")
    e(f"s_add_u32 s7, s7, {XN_OFF}")
    e("s_lshl_b32 s40, s40, 5")
    e("s_lshl_b32 s41, s41, 5")
    e(f"s_add_u32 s{S_QB}, s40, s7")
    e(f"s_add_u32 s{S_QC}, s41, s7")
    e(f"s_and_b32 s39, s{S_HEAD}, 3")
    e("s_lshl_b32 s39, s39, 7")
    e("v_and_b32 v6, 7, v0")
    e("v_lshlrev_b32 v6, 4, v6")
    e("v_lshrrev_b32 v7, 3, v0")
    e("v_lshl_add_u32 v6, v7, 9, v6")
    e("v_add_u32 v6, s39, v6")
    attn.setup_s(e)
    e("s_cmp_eq_u32 s3, 0")
    e(f"s_cselect_b32 s{S_SIGIT}, 1, 99")
    e(f"s_mov_b32 s{S_QST}, s{P_WS}")
    e(f"s_mov_b32 s{S_QST+1}, s{P_WS+1}")
    e(f"s_cmp_ge_u32 s{S_QT}, 8")
    e(f"s_cselect_b32 s{S_QST+2}, {WS_BYTES:#x}, 0")
    e(f"s_mov_b32 s{S_QST+3}, 0x20000")
    stamp(e, opt, 1)

    T = V_T

    def layernorm(e, n, reduce, norm):
        e("s_mov_b32 s7, 0x3f803f80")
        for k in range(8):
            e(f"v_mov_b32 v{T+k}, 0")
        for r in range(n):
            e(f"v_dot2_f32_bf16 v{T+(r&3)}, v{V_XN+r}, s7, v{T+(r&3)}")
            e(f"v_dot2_f32_bf16 v{T+4+(r&3)}, v{V_XN+r}, v{V_XN+r}, v{T+4+(r&3)}")
        e.nop(4)
        e(f"v_add_f32 v{T}, v{T}, v{T+1}")
        e(f"v_add_f32 v{T+2}, v{T+2}, v{T+3}")
        e(f"v_add_f32 v{T+4}, v{T+4}, v{T+5}")
        e(f"v_add_f32 v{T+6}, v{T+6}, v{T+7}")
        e(f"v_add_f32 v{T}, v{T}, v{T+2}")
        e(f"v_add_f32 v{T+4}, v{T+4}, v{T+6}")
        for step in reduce:
            if step == 8:
                e.nop(2)
                e(f"v_add_f32_dpp v{T}, v{T}, v{T} row_ror:8 row_mask:0xf bank_mask:0xf")
                e(f"v_add_f32_dpp v{T+4}, v{T+4}, v{T+4} row_ror:8 row_mask:0xf bank_mask:0xf")
            else:
                e(f"v_mov_b32 v{T+1}, v{T}")
                e(f"v_mov_b32 v{T+5}, v{T+4}")
                e.nop(2)
                e(f"v_permlane{step}_swap_b32 v{T}, v{T+1}")
                e(f"v_permlane{step}_swap_b32 v{T+4}, v{T+5}")
                e(f"v_add_f32 v{T}, v{T}, v{T+1}")
                e(f"v_add_f32 v{T+4}, v{T+4}, v{T+5}")
        e(f"v_mul_f32 v{T}, {f32(1/448)}, v{T}")
        e(f"v_mul_f32 v{T+4}, {f32(1/448)}, v{T+4}")
        e(f"v_fma_f32 v{T+4}, -v{T}, v{T}, v{T+4}")
        e(f"v_max_f32 v{T+4}, 0, v{T+4}")
        e(f"v_add_f32 v{T+4}, {f32(1e-5)}, v{T+4}")
        e(f"v_rsq_f32 v{T+4}, v{T+4}")
        e(f"v_mul_f32 v{T+4}, {f32(QSCALE)}, v{T+4}")
        e(f"v_mul_f32 v{T}, v{T}, v{T+4}")
        e(f"v_mov_b32 v{T+5}, v{T+4}")
        e(f"v_sub_f32 v{T}, 0, v{T}")
        e(f"v_mov_b32 v{T+1}, v{T}")
        for r in norm:
            t = T + 8 + (r % 8) * 2
            e(f"v_lshlrev_b32 v{t}, 16, v{V_XN+r}")
            e(f"v_and_b32 v{t+1}, 0xffff0000, v{V_XN+r}")
            e(f"v_pk_fma_f32 {v(t,2)}, {v(t,2)}, {v(T+4,2)}, {v(T,2)}")
            e(f"v_cvt_pk_bf16_f32 v{V_XN+r}, v{t}, v{t+1}")

    layernorm(e, 28, (8, 16, 32), range(28, 36))
    e(f"buffer_store_dwordx4 {v(V_XN+28,4)}, v6, s[{S_WS}:{S_WS+3}], s{S_QB} offen sc1", "st")
    e(f"buffer_store_dwordx4 {v(V_XN+32,4)}, v6, s[{S_WS}:{S_WS+3}], s{S_QC} offen sc1", "st")
    e(f"s_lshl_b32 s{S_QB}, s{S_PAIR}, 2")
    e(f"s_add_u32 s{S_QB}, s{S_QB}, s3")
    e(f"s_lshl_b32 s{S_QB}, s{S_QB}, 14")
    e(f"s_add_u32 s{S_QB}, s{S_QB}, {Q_OFF}")

    def frag_reads(b, ks, st):
        r = []
        fa, fb = V_FA + st * 16, V_FB + st * 16
        order = [("a", 0), ("b", 0), ("a", 1), ("a", 2), ("a", 3), ("b", 1), ("b", 2), ("b", 3)]
        for t, i in order:
            if t == "a":
                r.append(f"ds_read_b128 {v(fa+i*4,4)}, v{V_AA+ks} offset:{i*4096 + b*32768}")
            else:
                for u in range(2):
                    r.append(f"ds_read_b64_tr_b16 {v(fb+i*4+u*2,2)}, v{V_AB+i} offset:{(16*ks+4*u)*512 + b*32768}")
        return r

    e.wait_tag("t0")
    stamp(e, opt, "t0")
    e("s_barrier")
    stamp(e, opt, "bar")
    if not A16:
        for r in frag_reads(0, 0, 0):
            e(r)
    e(f"s_mov_b32 s{S_LP}, 0")
    e(f"s_cmp_eq_u32 s{S_KIND}, 0")
    e("s_cbranch_scc0 M_PRE_V")
    pro = e

    def place_dma(fill, items, g0, g1, tag="dma"):
        n = len(items)
        for k, item in enumerate(items):
            pre, d, post = item[:3]
            g = g0 + (k * (g1 - g0)) // n
            for x in pre:
                fill.setdefault(g - 1, []).append(x)
            fill.setdefault(g, []).append((d, item[3] if len(item) > 3 else tag))
            for x in post:
                fill.setdefault(g, []).append(x)

    def ktile(e, kind, b, dma_k0, dma_k3, last=False, pref=True, tag3="dma", tag0="dma", xn=None):
        for ks in range(4):
            st = ks & 1
            fa, fb = V_FA + st * 16, V_FB + st * 16
            spine = []
            for i in range(4):
                for j in range(4):
                    acc = a((i * 4 + j) * 16, 16)
                    W, Cc = v(fb + i * 4, 4), v(fa + j * 4, 4)
                    A, B = (W, Cc) if kind == 0 else (Cc, W)
                    spine.append(f"{MFMA} {acc}, {A}, {B}, {acc}")
            fill = {}
            fill[-1] = [lambda e: e.wait_force(lgkm=0)]
            if ks < 3:
                spread(fill, frag_reads(b, ks + 1, st ^ 1), 0, 12)
                if ks == 0 and dma_k0:
                    place_dma(fill, dma_k0, 1, 16, tag0)
                if ks == 1 and pref:
                    fill.setdefault(4, []).append((f"buffer_load_dword v{V_PD}, v{V_PA}, s[{S_CKV}:{S_CKV+3}], s{SA} offen", "pf"))
                    fill.setdefault(13, []).append((f"buffer_load_dword v{V_PD}, v{V_PB}, s[{S_W}:{S_W+3}], s{SB} offen", "pf"))
                if ks in (1, 2) and xn is not None:
                    k0 = xn + (ks - 1) * 7
                    for k in range(k0, k0 + 7):
                        g = 1 + 2 * (k - k0)
                        if k % 4 == 0 and k:
                            fill.setdefault(g - 1, []).append(f"s_add_u32 s{S_XNB}, s{S_XNB}, 4096")
                        fill.setdefault(g, []).append((f"buffer_load_dwordx4 {v(V_XN+4*k,4)}, v{V_L16}, s[{S_WS}:{S_WS+3}], s{S_XNB} offen offset:{(k%4)*1024} sc1", "xn"))
            else:
                if last:
                    fill[0] = ["s_barrier"]
                else:
                    fill[0] = [lambda e: e.wait_force(vm=(NPF if pref else 0) + (14 if xn is not None else 0)), "s_barrier"]
                    spread(fill, frag_reads(b ^ 1, 0, 0), 0, 12)
                if dma_k3:
                    place_dma(fill, dma_k3, 2, 16, tag3)
            weave(e, spine, fill)

    def c_read(kind, b, s_, j):
        off = j * 2048 if kind == 0 else (j >> 1) * 4096 + (j & 1) * 1024
        return f"ds_read_b128 {v(V_FA + s_*32 + j*4, 4)}, v{V_AA16 + ((s_ ^ j) & 1)} offset:{off + b*32768}"

    def w_read(b, s_, i):
        return [f"ds_read_b64_tr_b16 {v(V_WR + i*4 + 2*u, 2)}, v{V_AB16+i} offset:{(32*s_ + 4*u)*512 + b*32768}" for u in range(2)]

    def ktile16(e, kind, b, dma_k0, dma_k3, last=False, pref=True, tag3="dma", tag0="dma", xn=None):
        for s_ in range(2):
            spine = []
            for i in range(8):
                for j in range(8):
                    if kind == 0:
                        dt, bb, kb, nb = i >> 1, i & 1, j >> 1, j & 1
                    else:
                        dt, nb, kb, bb = i >> 1, i & 1, j >> 1, j & 1
                    acc = a((dt * 4 + kb) * 16 + nb * 8 + bb * 4, 4)
                    W, Cc = v(V_WR + i * 4, 4), v(V_FA + s_ * 32 + j * 4, 4)
                    A, B = (W, Cc) if kind == 0 else (Cc, W)
                    spine.append(f"v_mfma_f32_16x16x32_bf16 {acc}, {A}, {B}, {acc}")
            fill = {}
            nb_, ns = (b, 1) if s_ == 0 else (b ^ 1, 0)
            more = not (last and s_ == 1)
            for i in range(8):
                r = v(V_WR + i * 4, 4)
                fill.setdefault(8 * i - 1, []).append(lambda e, r=r: wait_reg(e, r))
            r = v(V_FA + s_ * 32 + 28, 4)
            fill.setdefault(-1, []).append(lambda e, r=r: wait_reg(e, r))
            if s_ == 1:
                nx = 14 if xn is not None else 0
                if last:
                    fill.setdefault(7, []).extend([lambda e: e.wait(lgkm=0), "s_barrier"])
                elif pref:
                    fill.setdefault(7, []).extend([lambda e: e.wait_force(vm=NPF, lgkm=0), "s_barrier"])
                else:
                    fill.setdefault(7, []).extend([lambda e: e.wait_tag("dma"), lambda e: e.wait(lgkm=0), "s_barrier"])
            if more:
                for i in range(8):
                    wr = w_read(nb_, ns, i)
                    fill.setdefault(8 * i + 7, []).append(wr[0])
                    fill.setdefault(min(8 * i + 8, 63), []).append(wr[1])
                for j in range(8):
                    fill.setdefault(10 + 6 * j, []).append(c_read(kind, nb_, ns, j))
            if s_ == 0:
                if dma_k0:
                    place_dma(fill, dma_k0, 2, min(30, 2 + (7 * len(dma_k0)) // 2), tag0)
                if pref:
                    fill.setdefault(36, []).append((f"buffer_load_dword v{V_PD}, v{V_PA}, s[{S_CKV}:{S_CKV+3}], s{SA} offen", "pf"))
                    fill.setdefault(44, []).append((f"buffer_load_dword v{V_PD}, v{V_PB}, s[{S_W}:{S_W+3}], s{SB} offen", "pf"))
                if xn is not None:
                    for k in range(xn, xn + 14):
                        g = 31 + ((k - xn) * 32) // 14
                        if k % 4 == 0 and k:
                            fill.setdefault(g - 1, []).append(f"s_add_u32 s{S_XNB}, s{S_XNB}, 4096")
                        fill.setdefault(g, []).append((f"buffer_load_dwordx4 {v(V_XN+4*k,4)}, v{V_L16}, s[{S_WS}:{S_WS+3}], s{S_XNB} offen offset:{(k%4)*1024} sc1", "xn"))
            elif dma_k3:
                place_dma(fill, dma_k3, 11, 62, tag3)
            weave(e, spine, fill)

    if A16:
        ktile = ktile16

    NT = 21

    def b_dma(u):
        part, kt = divmod(u, 7)
        slot = SLOT_ORDER[u % 10]
        it = []
        for j in range(4):
            pre = []
            if j == 0:
                pre.append(f"s_add_u32 m0, s{S_W4K}, {slot*16384}")
                off = kt * 64 * 3584 if part == 2 else kt * 64 * 8192 + part * 256
                pre.append(f"s_mov_b32 s{S_BO}, {off}")
            if part == 2:
                d = f"buffer_load_dwordx4 v{V_DQ+j}, s[{S_W1}:{S_W1+3}], s{S_BO} offen offset:{j*1024} lds"
            else:
                d = f"buffer_load_dwordx4 v{V_DQ+j}, s[{S_WQ}:{S_WQ+3}], s{S_BO} offen offset:{j*1024} lds"
            it.append((pre, d, [], f"b{u//2}"))
        return it

    segs = [pro]
    traces = []
    tails = {}
    extra = []
    vm_loop = [("dma", frozenset())] * 40
    for kind in range(2):
        nm = "KV"[kind]
        pre = Seg(f"m_pre{nm}", pro.lds, pro.vm)
        pre.label(f"M_PRE_{nm}")
        if A16:
            seq = sorted([(8 * i + 7, 0, w_read(0, 0, i)[0]) for i in range(8)] + [(min(8 * i + 8, 63), 1, w_read(0, 0, i)[1]) for i in range(8)]
                         + [(10 + 6 * j, 2, c_read(kind, 0, 0, j)) for j in range(8)])
            for _, _, x in seq:
                pre(x)
        lp = Seg(f"m_loop{nm}", pre.lds, vm_loop)
        lp.label(f"M_LOOP_{nm}")
        d0, d1 = dma_items(0), dma_items(1)
        ktile(lp, kind, 0, d1[NK3:], d0[:NK3])
        ktile(lp, kind, 1, d0[NK3:], d1[:NK3])
        assert not A16 or lp.lds == pre.lds, (len(lp.lds), len(pre.lds))
        lp(f"s_add_u32 s{S_LP}, s{S_LP}, 1")
        lp(f"s_cmp_eq_u32 s{S_LP}, s{S_SIGIT}")
        lp(f"s_cbranch_scc1 M_SIG_{nm}")
        lp.label(f"M_SIG_{nm}_RET")
        for it in range(1, 8):
            if f"it{it}" in opt.get("sp", []):
                lp(f"s_cmp_lg_u32 s{S_LP}, {it}")
                lp(f"s_cbranch_scc1 M_NS{it}_{nm}")
                stamp(lp, opt, f"it{it}", raw=True)
                lp.label(f"M_NS{it}_{nm}")
        lp(f"s_cmp_lg_u32 s{S_LP}, 6")
        lp(f"s_cbranch_scc1 M_NOPOLL_{nm}")
        flag_line(lp, 7, FL_XN, S_QT)
        lp(f"buffer_load_dwordx2 {v(V_FL,2)}, v{V_FO}, s[{S_WS}:{S_WS+3}], s7 offen sc1", "pf")
        lp(f"v_mov_b32 v{V_XN+40}, {LDS_NONCE}")
        lp.raw(f"ds_read_b64 {v(V_XN+42,2)}, v{V_XN+40}")
        if not opt.get("no_bpf"):
            lp(f"buffer_load_dword v{V_PD}, v142, s[{S_WQ}:{S_WQ+3}], 0 offen", "pf")
            lp(f"buffer_load_dword v{V_PD}, v143, s[{S_W1}:{S_W1+3}], 0 offen", "pf")
        if not opt.get("no_cpf"):
            lp("s_getpc_b64 s[4:5]")
            lp.label(f"M_PC_{nm}")
            lp(f"v_min_u32 v{V_XN+44}, M_CODE_END-M_PC_{nm}-8, v{V_CP}")
            lp(f"global_load_dword v{V_PD}, v{V_XN+44}, s[4:5]", "pf")
        lp.label(f"M_NOPOLL_{nm}")
        lp(f"s_cmp_lt_u32 s{S_LP}, 7")
        lp(f"s_cbranch_scc1 M_LOOP_{nm}")
        tl = Seg(f"m_tail{nm}", lp.lds, lp.vm)
        bd = sum((b_dma(u) for u in range(10)), [])
        tl(f"v_readfirstlane_b32 s{S_N0}, v{V_XN+42}")
        tl(f"v_readfirstlane_b32 s{S_N1}, v{V_XN+43}")
        tl.nop(2)
        flag_test(tl, V_FL)
        tl(f"s_cselect_b32 s{S_XNF}, 1, 0")
        ktile(tl, kind, 0, d1[NK3:] + bd[:8], bd[8:20], pref=False, xn=0)
        ktile(tl, kind, 1, bd[20:24], bd[24:36], last=True, pref=False, xn=14)
        if kind == 0:
            tl("s_branch M_B")
        sg = Seg(f"m_sig{nm}")
        sg.label(f"M_SIG_{nm}")
        sg(f"v_readfirstlane_b32 s{S_N0}, v{V_XN+43}")
        sg(f"v_readfirstlane_b32 s{S_N1}, v{V_XN+42}")
        sg(f"s_cmp_eq_u32 s{S_N0}, 0")
        sg(f"s_cselect_b32 s{S_N0}, s{S_N1}, s{S_N0}")
        sg(f"s_xor_b32 s{S_N1}, s{S_N0}, {NONCE_K:#x}")
        flag_line(sg, 7, FL_XN, S_QT)
        sg(f"s_lshl_b32 s6, s{S_HEAD}, 3")
        flag_set(sg, S_WS, 7, "s6", V_XN + 40)
        sg(f"v_mov_b32 v{V_XN+42}, {LDS_NONCE}")
        sg(f"ds_write_b64 v{V_XN+42}, {v(V_XN+40,2)}")
        sg(f"s_branch M_SIG_{nm}_RET")
        extra.append(sg)
        segs += [pre, lp, tl]
        tails[kind] = tl
        traces.append([pro, pre, lp, lp, tl])

    e = Seg("m_b", tails[0].lds, tails[0].vm)
    e.label("M_B")
    stamp(e, opt, 2)
    stamp(e, opt, "b")
    e(f"s_cmp_lt_u32 s{S_XNF}, {99 if opt.get('force_fb') else 1}")
    e("s_cbranch_scc1 M_FB")
    e.label("M_FB_RET")
    srd(e, S_WO, P_WO, WO_BYTES)
    srd(e, S_W2, P_W2, W2_BYTES)
    attn.setup_dma(e)
    e(f"v_and_b32 v{V_ST}, 15, v0")
    e(f"v_lshlrev_b32 v{V_ST}, 4, v{V_ST}")
    e("v_lshrrev_b32 v6, 4, v0")
    e(f"v_lshl_add_u32 v{V_ST}, v6, 9, v{V_ST}")
    e(f"v_mov_b32 v6, v{V_D1+3}")
    for nb in range(4):
        e(f"v_add_u32 v{V_AT3+nb}, 0x20000, v{V_AT+nb}")
    fb = Seg("m_fb")
    fb.label("M_FB")
    fb.wait_force(vm=0)
    fb(f"s_lshl_b32 s7, s{S_QT}, 7")
    fb("s_lshl_b32 s6, s3, 5")
    fb("s_add_u32 s7, s7, s6")
    fb("v_and_b32 v6, 31, v0")
    fb("v_add_u32 v6, s7, v6")
    fb("v_mul_u32_u24 v6, 896, v6")
    fb("v_lshrrev_b32 v7, 5, v0")
    fb("v_lshl_add_u32 v6, v7, 4, v6")
    for ks in range(28):
        fb(f"buffer_load_dwordx4 {v(V_XN+ks*4,4)}, v6, s[{S_X}:{S_X+3}], 0 offen offset:{ks*32}", "x")
    layernorm(fb, 112, (32,), range(112))
    fb.nop(2)
    fb("s_branch M_FB_RET")
    extra.append(fb)

    D = opt.get("b_depth", 7)
    NF = NT * 16

    def b_read(f):
        u, rem = divmod(f, 16)
        ks, nb = divmod(rem, 4)
        slot = SLOT_ORDER[u % 10]
        fr = V_FA + (f % 8) * 4
        at = (V_AT, V_AT + 4, V_AT3)[slot >> 2] + nb
        return [f"ds_read_b64_tr_b16 {v(fr+2*h,2)}, v{at} offset:{(slot&3)*16384 + (16*ks+4*h)*256}" for h in range(2)]

    def kv_epi(b):
        i, j = divmod(b, 4)
        t = 8
        ops = [f"s_add_u32 s{S_KVC}, s{S_KVBASE}, {KV_OFF + j*32768 + (i>>1)*4096}"]
        for c in range(2):
            for r in range(8):
                ops.append(f"v_accvgpr_read_b32 v{t+r}, a{b*16+8*c+r}")
            for r in range(4):
                ops.append(f"v_cvt_pk_bf16_f32 v{t+8+r}, v{t+2*r}, v{t+2*r+1}")
            ops.append((f"buffer_store_dwordx4 {v(t+8,4)}, v{V_ST if A16 else V_L16}, s[{S_WS}:{S_WS+3}], s{S_KVC} offen offset:{(i&1)*2048+c*(256 if A16 else 1024)}{ST}", "kvst"))
        if opt.get("x_nokvst"):
            ops = [o for o in ops if not isinstance(o, tuple)]
        if opt.get("x_noepi"):
            ops = []
        return ops

    def q_epi(part):
        ops = []
        t = 20
        for nb in range(4):
            if nb % 2 == 0:
                ops.append(f"s_add_u32 s{S_QC}, s{S_QB}, {part*8192 + (nb>>1)*4096}")
            for c in range(2):
                if part == 0:
                    src = H_ACC[nb] + 8 * c
                else:
                    src = t
                    for r in range(8):
                        ops.append(f"v_accvgpr_read_b32 v{t+r}, a{nb*16+8*c+r}")
                for r in range(4):
                    ops.append(f"v_cvt_pk_bf16_f32 v{t+8+r}, v{src+2*r}, v{src+2*r+1}")
                ops.append((f"buffer_store_dwordx4 {v(t+8,4)}, v{V_L16}, s[{S_QST}:{S_QST+3}], s{S_QC} offen offset:{(nb&1)*2048 + c*1024} sc1", "qst"))
                for r in range(4):
                    ops.append(f"v_accvgpr_write_b32 a{A_Q2 + part*32 + nb*8 + c*4 + r}, v{t+8+r}")
        return ops

    WB = opt.get("wb")
    GKV, GQ = opt.get("g_kv", 7), 9
    fl = attn.first_loads(S_KVE)
    spine, fill = [], {}
    e.wait_tag("b0")
    e("s_barrier")
    for f in range(D):
        for r in b_read(f):
            e(r)
    place_dma(fill, b_dma(9), 1, 16)
    for f in range(NF):
        u, rem = divmod(f, 16)
        part, kt = divmod(u, 7)
        ks, nb = divmod(rem, 4)
        acc = a(nb * 16, 16) if part == 1 else v(H_ACC[nb], 16)
        c = "0" if (kt == 0 and ks == 0) else acc
        spine.append(f"{MFMA} {acc}, {v(V_FA+(f%8)*4,4)}, {v(V_XN+(kt*4+ks)*4,4)}, {c}")
        nf = f + D
        if nf < NF:
            if nf % 32 == 0:
                g = nf // 32
                ops = [lambda e, g=g: e.wait_tag(f"b{g}")]
                if g == (GKV - 1 if WB else GKV):
                    ops.append(lambda e: e.wait_tag("kvst"))
                if WB and g == GKV:
                    ops.append(lambda e: e.wait_tag("wb"))
                if g == GQ:
                    ops += [lambda e: flag_test(e, 10), f"s_cselect_b32 s{S_EARLY}, 1, 0",
                            f"s_cselect_b32 s{S_KVE+2}, {WS_BYTES:#x}, 0"]
                ops.append("s_barrier")
                if g == GKV:
                    ops += ["s_cmp_eq_u32 s3, 0", "s_cbranch_scc1 M_SKV", "M_SKV_RET:"]
                if g == GQ:
                    ops += ["s_cmp_eq_u32 s3, 0", "s_cbranch_scc1 M_SQ", "M_SQ_RET:"]
                if WB and g in WB:
                    ops += ["s_cmp_lg_u32 s3, 0", f"s_cbranch_scc1 M_NWB{g}", lambda e: e.raw("buffer_wbl2 sc1"), f"M_NWB{g}:"]
                if WB and g == GKV - 1:
                    ops += [("buffer_wbl2 sc1", "wb")]
                if g == 4:
                    ops += [f"v_add_u32 v{V_DQ+j}, {j*4*3584 - j*1024}, v6" for j in range(4)]
                ops.append(lambda e, g=g: stamp(e, opt, f"g{g}", raw=True))
                fill.setdefault(f, []).extend(ops)
                if g >= 2:
                    its = []
                    for u2 in (2 * g + 6, 2 * g + 7):
                        if u2 < NT:
                            its += b_dma(u2)
                    if its:
                        place_dma(fill, its, f + 2, f + 30)
                if g == 9:
                    spread(fill, sum(fl[:4], []), f + 2, f + 32)
                if g == 10:
                    spread(fill, sum(fl[4:], []), f + 2, f + 20)
            fill.setdefault(f, []).extend(b_read(nf))
        if f % 2 == 0:
            r = v(V_FA + (min(f + 1, NF - 1) % 8) * 4, 4)
            fill.setdefault(f - 1, []).append(lambda e, r=r: wait_reg(e, r))
    nb1, gkv_end, gq0, gq1 = opt.get("kv_split", (11, 170, 150, 268))
    pour(fill, sum((kv_epi(b) for b in range(0, nb1)), []), 2, 108)
    pour(fill, sum((kv_epi(b) for b in range(nb1, 16)), []), 108, gkv_end)
    pour(fill, q_epi(0), gq0, 220)
    pour(fill, q_epi(1), 224 + 5, gq1)
    pour(fill, [f"s_mov_b32 s{S_KVE}, s{S_WS}", f"s_mov_b32 s{S_KVE+1}, s{S_WS+1}", f"s_mov_b32 s{S_KVE+3}, 0x20000",
                lambda e: flag_line(e, 73, FL_KV, S_HEAD), lambda e: flag_line(e, 74, FL_PAIR, S_PAIR), "v_mov_b32 v14, 0"], 221, 229)
    fill.setdefault(gq1 + 1, []).append(f"buffer_load_dwordx2 v[10:11], v{V_FO}, s[{S_WS}:{S_WS+3}], s73 offen sc1")
    fill.setdefault(opt.get("g_poll", 333), []).append(f"buffer_load_dwordx2 v[6:7], v14, s[{S_WS}:{S_WS+3}], s74 offen sc1")
    pour(fill, [f"v_accvgpr_mov_b32 a{A_Q+r}, a{A_Q2+r}" for r in range(64)], gq1 + 2, 334)
    for k in range(8, 26):
        for r in (0, 2):
            g = min(range(224 + 4 * k + 5, 336), key=lambda g: (load_of(fill, g), g))
            fill.setdefault(g, []).append(f"v_mov_b64 {v(V_XN+4*k+r,2)}, 0")
    print(gap_report("phase B", fill, NF))
    weave(e, spine, fill)
    stamp(e, opt, 3)
    stamp(e, opt, "bend")

    skv = Seg("m_skv")
    skv.label("M_SKV")
    flag_line(skv, 7, FL_KV, S_HA)
    flag_set(skv, S_WS, 7, f"s{S_KVSLOT}", 8)
    skv("s_branch M_SKV_RET")
    sq = Seg("m_sq")
    sq.label("M_SQ")
    sq(f"s_cmp_lt_u32 s{S_QT}, 8")
    sq("s_cbranch_scc1 M_SQ_RET")
    flag_set(sq, S_WS, 74, 0, 16)
    sq("s_branch M_SQ_RET")

    def spin(e, name, vd, voff, line, first=True):
        e("s_mov_b32 s6, 0")
        e.label(name)
        if first:
            e(f"buffer_load_dwordx2 {v(vd,2)}, v{voff}, s[{S_WS}:{S_WS+3}], s{line} offen sc1")
        e.wait_force(vm=0)
        flag_test(e, vd)
        e(f"s_cbranch_scc1 {name}_OK")
        e("s_sleep 2")
        if not first:
            e(f"buffer_load_dwordx2 {v(vd,2)}, v{voff}, s[{S_WS}:{S_WS+3}], s{line} offen sc1")
        e("s_add_u32 s6, s6, 1")
        e(f"s_cmp_lt_u32 s6, {PMAX}")
        e(f"s_cbranch_scc1 {name}")
        e.wait_force(vm=0)
        e.label(name + "_OK")

    late = Seg("m_late")
    late.label("M_LATE")
    spin(late, "M_PKV", 10, V_FO, 73)
    for grp in attn.first_loads(S_WS):
        run(late, grp)
    late.wait_force(vm=0)
    late("s_branch M_LATE_RET")
    gq = Seg("m_getq")
    gq.label("M_GETQ")
    spin(gq, "M_PQ", 6, 14, 74, first=False)
    for k in range(16):
        if k and k % 4 == 0:
            gq(f"s_add_u32 s{S_QB}, s{S_QB}, 4096")
        gq(f"buffer_load_dwordx4 {a(A_Q+4*k,4)}, v{V_L16}, s[{S_WS}:{S_WS+3}], s{S_QB} offen offset:{(k%4)*1024} sc1", "q")
    gq("s_branch M_GETQ_RET")
    wq = Seg("m_waitq")
    wq.label("M_WAITQ")
    wq.wait_force(vm=0)
    wq("s_branch M_WAITQ_RET")
    extra += [skv, sq, late, gq, wq]

    e(f"s_cmp_eq_u32 s{S_EARLY}, {2 if opt.get('force_late') else 1}")
    e("s_cbranch_scc0 M_LATE")
    e.label("M_LATE_RET")
    e(f"s_cmp_lt_u32 s{S_QT}, 8")
    e("s_cbranch_scc1 M_GETQ")
    e.label("M_GETQ_RET")
    stamp(e, opt, "polled")
    HS = V_XN + 4
    for k in range(28):
        nb, r = divmod(k, 8)
        e(f"v_cvt_pk_bf16_f32 v{HS+k}, v{H_ACC[nb]+2*r}, v{H_ACC[nb]+2*r+1}")
    srd(e, S_OUT, P_OUT, OUT_BYTES)
    attn.setup_v(e)
    e("s_getpc_b64 s[80:81]")
    e.label("M_PC_A")
    e("s_lshr_b32 s7, s2, 3")
    e("s_lshl_b32 s7, s7, 2")
    e("s_add_u32 s7, s7, s3")
    e("s_mul_i32 s7, s7, 512")
    e(f"v_min_u32 v{attn.V_X+3}, 3, v0")
    e(f"v_lshl_add_u32 v{attn.V_X+3}, v{attn.V_X+3}, 7, s7")
    e(f"v_min_u32 v{attn.V_X+3}, M_CODE_END-M_PC_A-8, v{attn.V_X+3}")
    attn.init_state(e, V_XN + 4 * 26)
    e(f"s_cmp_lt_u32 s{S_QT}, 8")
    e("s_cbranch_scc1 M_WAITQ")
    e.label("M_WAITQ_RET")
    stamp(e, opt, 4)
    stamp(e, opt, "a0")

    RA, RB, XR, VO, VP = 180, 32, 12, 2, 10

    def hooks(fill, NFE, ED):
        g = 6 * NFE - ED
        fill[g].extend(["s_cmp_eq_u32 s3, 0", "s_cbranch_scc1 M_SYA", "M_SYA_RET:"])
        ops = [f"s_lshl_b32 s7, s{S_QT}, 2", f"s_lshr_b32 s4, s{S_HEAD}, 2", "s_add_u32 s4, s4, s7",
               f"s_and_b32 s5, s{S_HEAD}, 3", "s_lshl_b32 s6, s3, 2", "s_add_u32 s5, s5, s6",
               "s_mul_i32 s6, s4, 28", "s_add_u32 s6, s6, s5", "s_lshl_b32 s6, s6, 10",
               f"s_add_u32 s53, s6, {Y_OFF}", "s_add_u32 s54, s53, 16384",
               f"v_and_b32 v{VO}, 31, v0", "v_lshrrev_b32 v3, 5, v0", "s_lshl_b32 s4, s4, 5", f"v_add_u32 v{VO}, s4, v{VO}",
               f"v_mul_u32_u24 v{VO}, 896, v{VO}", f"v_lshl_add_u32 v{VO}, v3, 3, v{VO}", "s_lshl_b32 s5, s5, 5",
               f"v_add_u32 v{VO}, s5, v{VO}"]
        ops += [f"buffer_load_dwordx2 {v(XR+2*k,2)}, v{VO}, s[{S_X}:{S_X+3}], 0 offen offset:{(k>>1)*512+(k&1)*16}" for k in range(4)]
        ops += [lambda e: flag_line(e, 55, FL_Y, S_QT), lambda e: flag_line(e, 63, FL_YA, S_QT)]
        pour(fill, ops, 5 * NFE + 2, 5 * NFE + 34)
        fill.setdefault(6 * NFE + opt.get("g_pa", 22), []).append(
            (f"buffer_load_dwordx2 {v(VP,2)}, v{V_FO}, s[{S_WS}:{S_WS+3}], s63 offen sc1", "pa"))

    sya = Seg("m_sya")
    sya.label("M_SYA")
    sya(f"s_lshl_b32 s6, s{S_HEAD}, 3")
    flag_set(sya, S_WS, 63, "s6", 20)
    sya("s_branch M_SYA_RET")
    extra.append(sya)

    def finish(e):
        stamp(e, opt, "yend")

        def loads(base, sreg, tag):
            for h in range(16):
                e(f"buffer_load_dwordx4 {v(base+4*h,4)}, v{V_L16}, s[{S_WS}:{S_WS+3}], s{sreg} offen sc1", tag)
                if h < 15:
                    e(f"s_add_u32 s{sreg}, s{sreg}, {64*28*1024}")

        def reduce(base, xr, off):
            acc, t = 20, 28
            for r in range(4):
                e(f"v_lshlrev_b32 v{acc+2*r}, 16, v{xr+r}")
                e(f"v_and_b32 v{acc+1+2*r}, 0xffff0000, v{xr+r}")
            for h in range(16):
                for r in range(4):
                    src = base + 4 * h + r
                    u = t + 2 * (r & 1)
                    e(f"v_lshlrev_b32 v{u}, 16, v{src}")
                    e(f"v_and_b32 v{u+1}, 0xffff0000, v{src}")
                    e(f"v_pk_add_f32 {v(acc+2*r,2)}, {v(acc+2*r,2)}, {v(u,2)}")
            for r in range(4):
                e(f"v_cvt_pk_bf16_f32 v{xr+r}, v{acc+2*r}, v{acc+1+2*r}")
            e(f"buffer_store_dwordx2 {v(xr,2)}, v{VO}, s[{S_OUT}:{S_OUT+3}], 0 offen offset:{off}")
            e(f"buffer_store_dwordx2 {v(xr+2,2)}, v{VO}, s[{S_OUT}:{S_OUT+3}], 0 offen offset:{off+16}")

        flag_test(e, VP)
        e("s_cselect_b32 s60, 1, 0")
        e("s_cbranch_scc0 M_NOA")
        loads(RA, 53, "ra")
        e.wait_force(vm=16)
        e("s_branch M_A1")
        e.label("M_NOA")
        e.wait_force(vm=0)
        e.label("M_A1")
        e("s_barrier")

        e("s_cmp_lg_u32 s3, 3")
        e("s_cbranch_scc1 M_PA_OK")
        e(f"s_lshl_b32 s6, s{S_HEAD}, 3")
        flag_set(e, S_WS, 55, "s6", 20)
        e("s_cmp_eq_u32 s60, 1")
        e("s_cbranch_scc1 M_PA_OK")
        spin(e, "M_PA", VP, V_FO, 63)
        e("s_barrier")
        e("s_cmp_eq_u32 s60, 1")
        e("s_cbranch_scc1 M_A2")
        loads(RA, 53, "ra")
        e.label("M_A2")
        e("s_cmp_eq_u32 s3, 3")
        e("s_cbranch_scc1 M_W3")
        e.wait_force(vm=0)
        reduce(RA, XR, 0)
        e("s_barrier")
        stamp(e, opt, "ypoll")
        e.vm = []
        loads(RB, 54, "rb")
        reduce(RB, XR + 4, 512)
        e("s_branch M_DONE")
        e.label("M_W3")
        spin(e, "M_PB", VP, V_FO, 55)
        e("s_barrier")
        stamp(e, opt, "ypoll")
        reduce(RA, XR, 0)
        e.label("M_DONE")
        stamp(e, opt, 5)
        stamp(e, opt, "end")
        stamp_flush(e, opt, 0, S_WS, 6)

    aopt = dict(opt)
    aopt["code_pf"] = not opt.get("no_cpf")
    aopt["stash"] = HS
    if not opt.get("sp"):
        aopt["sp"] = ["none"]
        aopt["spk"] = ""
    asegs, atraces = attn.gen_attn(e, aopt, "M_END", finish, hooks)
    z = Seg("m_z")
    z.label("M_CODE_END")
    segs += asegs + extra + [z]
    for t in traces:
        t.append(e)
    traces += atraces + [[tails[0], fb, e]] + [[x] for x in extra]
    return segs, traces
```

```python
from emit import *
from common import *
import attn
from attn import S_HEAD, S_QT, S_W4K, S_PAIR, S_WS, S_WO, S_W2, A_Q, A_Q2, A_HF, V_L16, V_PD
import math

NAME = "parallel_sum__compressed_kv_cla__dense_activation_silu__prompt_kernel"
LDS_BYTES = 160 * 1024
S_CKV, S_W, S_X, S_WQ, S_W1, S_QST, S_OUT = 8, 12, 20, 24, 28, 68, 24
SA, SB, S_LP, S_W8K, S_SIGIT, S_KIND, S_BO, S_KVBASE, S_KVC, S_QB, S_QC, S_XNB, S_XNF = 53, 54, 55, 56, 57, 58, 59, 60, 61, 62, 63, 66, 67
S_HA, S_KVSLOT = 76, 77
V_PA, V_PB, V_FO, V_FL = 3, 4, 5, 6
V_AA, V_AB, V_DA, V_DB = 8, 12, 16, 24
V_FA, V_FB, V_XN = 32, 64, 96
V_AB16, V_AA16, V_WR, V_ST = 8, 212, 224, 7
V_DQ, V_D1, V_AT, V_T = 208, 212, 216, 224
SLOT_ORDER = [8, 9, 0, 1, 4, 5, 2, 3, 6, 7]
V_AT3 = 212
S_KVE, S_EARLY = 24, 72
H_ACC = (64, 80, 224, 240)
V_CP = V_XN + 45

def gen_mega(opt):
    ST = opt.get("kv_store_mod", " sc1")
    attn.KVM[0] = opt.get("kv_load_mod", "")
    opt = dict(opt)
    opt.setdefault("y_store_mod", " sc1")
    opt["spk"] = ""
    PFD = 2
    A16 = opt.get("a16", 1)
    NPF = 2
    PMAX = opt.get("poll_max", 200000)
    e = Seg("m_pro")
    e.label(NAME)
    e("s_cmp_ge_u32 s2, 256")
    e("s_cbranch_scc1 M_END")
    stamp(e, opt, "entry")
    load_kernargs(e)
    e("v_lshrrev_b32 v1, 6, v0")
    e("v_and_b32 v0, 63, v0")
    e("v_readfirstlane_b32 s3, v1")
    e("s_and_b32 s4, s2, 7")
    e("s_lshl_b32 s4, s4, 1")
    e("s_lshr_b32 s5, s2, 3")
    e("s_and_b32 s34, s5, 7")
    e("s_lshr_b32 s35, s5, 3")
    e("s_and_b32 s42, s35, 1")
    e("s_add_u32 s42, s42, s4")
    e(f"s_lshr_b32 s{S_KIND}, s35, 1")
    e(f"s_lshr_b32 s{S_QT}, s5, 1")
    e(f"s_and_b32 s{S_HEAD}, s5, 1")
    e(f"s_add_u32 s{S_HEAD}, s{S_HEAD}, s4")
    e("s_and_b32 s36, s3, 1")
    e("s_lshr_b32 s37, s3, 1")
    L31, HI, G, R4, C = 224, 225, 226, 227, 228
    e(f"v_and_b32 v{L31}, 31, v0")
    e(f"v_lshrrev_b32 v{HI}, 5, v0")
    e(f"v_lshrrev_b32 v{G}, 4, v0")
    e(f"v_bfe_u32 v{R4}, v0, 2, 2")
    e(f"v_and_b32 v{C}, 3, v0")
    e("s_lshl_b32 s7, s34, 8")
    e("s_lshl_b32 s39, s35, 6")
    e("s_add_u32 s7, s7, s39")
    e("s_lshl_b32 s39, s3, 4")
    e("s_add_u32 s7, s7, s39")
    e("v_and_b32 v6, 15, v0")
    e("v_add_u32 v6, s7, v6")
    e(f"v_lshlrev_b32 v{V_PA}, 11, v6")
    e(f"v_and_b32 v7, 1, v{G}")
    e(f"v_lshl_add_u32 v7, v7, 7, v{V_PA}")
    e("s_lshl_b32 s7, s34, 3")
    e("s_lshl_b32 s39, s3, 1")
    e("s_add_u32 s7, s7, s39")
    e("v_bfe_u32 v6, v0, 2, 1")
    e("v_add_u32 v6, s7, v6")
    e("v_lshlrev_b32 v6, 13, v6")
    e(f"v_lshl_add_u32 v6, v{C}, 7, v6")
    e("s_lshl_b32 s7, s42, 9")
    e(f"v_add_u32 v{V_PB}, s7, v6")
    e("v_bfe_u32 v6, v0, 3, 1")
    e(f"v_lshl_add_u32 v5, v6, 19, v{V_PB}")
    e("v_lshrrev_b32 v1, 3, v0")
    e.wait_force(lgkm=0)
    e(f"s_mov_b32 s{S_HA}, s42")
    e(f"s_lshl_b32 s{S_KVSLOT}, s{S_KIND}, 3")
    e(f"s_add_u32 s{S_KVSLOT}, s{S_KVSLOT}, s34")
    e(f"s_lshl_b32 s{S_KVSLOT}, s{S_KVSLOT}, 3")
    srd(e, S_CKV, P_CKV, CKV_BYTES)
    e(f"s_cmp_eq_u32 s{S_KIND}, 0")
    e(f"s_cselect_b32 s{S_W}, s{P_WUK}, s{P_WUV}")
    e(f"s_cselect_b32 s{S_W+1}, s{P_WUK+1}, s{P_WUV+1}")
    e(f"s_mov_b32 s{S_W+2}, {WU_BYTES:#x}")
    e(f"s_mov_b32 s{S_W+3}, 0x20000")
    stamp(e, opt, 0)
    stamp(e, opt, "karg")
    e(f"buffer_load_dword v{V_PD}, v7, s[{S_CKV}:{S_CKV+3}], 0 offen", "pf")
    e(f"buffer_load_dword v{V_PD}, v5, s[{S_W}:{S_W+3}], 0 offen", "pf")
    e("v_add_u32 v144, 256, v7")
    e("v_add_u32 v145, 0x100000, v5")
    e(f"v_add_u32 v{V_PA}, {PFD*128}, v{V_PA}")
    e(f"v_add_u32 v{V_PB}, {PFD*0x80000}, v{V_PB}")
    e("s_lshl_b32 s7, s34, 8")
    e("s_lshl_b32 s39, s3, 6")
    e("s_add_u32 s7, s7, s39")
    e("v_add_u32 v6, s7, v1")
    e("v_lshlrev_b32 v6, 11, v6")
    e("v_and_b32 v7, 7, v0")
    e(f"v_xor_b32 v7, v7, v{G}")
    e("v_lshlrev_b32 v7, 4, v7")
    for j in range(8):
        e(f"v_xor_b32 v{V_DA+j}, {(((j ^ (j >> 1)) & 1) if A16 else (j & 1)) << 6}, v7")
        e(f"v_add_u32 v{V_DA+j}, v{V_DA+j}, v6")
        if j:
            e(f"v_add_u32 v{V_DA+j}, {j*16384-(j&3)*1024}, v{V_DA+j}")
    e("s_lshl_b32 s7, s3, 4")
    e(f"v_add_u32 v6, s7, v{HI}")
    e("v_lshlrev_b32 v6, 13, v6")
    e(f"s_lshl_b32 s7, s{S_HA}, 9")
    e("v_add_u32 v6, s7, v6")
    e(f"v_lshrrev_b32 v7, 2, v{L31}")
    e(f"v_xor_b32 v7, v7, v{HI}")
    e("v_lshlrev_b32 v7, 6, v7")
    e(f"v_lshl_add_u32 v7, v{C}, 4, v7")
    for j in range(8):
        e(f"v_xor_b32 v{V_DB+j}, {((j&1)<<7) ^ (48 * ((j >> 2) & 1) if A16 else 0)}, v7")
        e(f"v_add_u32 v{V_DB+j}, v{V_DB+j}, v6")
        if j:
            e(f"v_add_u32 v{V_DB+j}, {j*16384-(j&3)*1024}, v{V_DB+j}")
    e(f"s_lshl_b32 s{S_W8K}, s3, 13")
    e(f"s_mov_b32 s{SA}, 0")
    e(f"s_mov_b32 s{SB}, 0")

    def dma_items(b):
        it = []
        for j in range(8):
            pre = [f"s_add_u32 m0, s{S_W8K}, {b*32768 + (j>>2)*4096}"] if (j & 3) == 0 else []
            post = [f"s_add_u32 s{SA}, s{SA}, 128"] if j == 7 else []
            it.append((pre, f"buffer_load_dwordx4 v{V_DA+j}, s[{S_CKV}:{S_CKV+3}], s{SA} offen offset:{(j&3)*1024} lds", post))
        for j in range(8):
            pre = [f"s_add_u32 m0, s{S_W8K}, {65536 + b*32768 + (j>>2)*4096}"] if (j & 3) == 0 else []
            post = [f"s_add_u32 s{SB}, s{SB}, 0x80000"] if j == 7 else []
            it.append((pre, f"buffer_load_dwordx4 v{V_DB+j}, s[{S_W}:{S_W+3}], s{SB} offen offset:{(j&3)*1024} lds", post))
        return it

    NK3 = opt.get('nk3', 12) if A16 else 8
    q = Seg("tmp")
    srd(q, S_WS, P_WS, WS_BYTES)
    srd(q, S_X, P_X, X_BYTES)
    srd(q, S_WQ, P_WQ, WQ_BYTES)
    srd(q, S_W1, P_W1, W1_BYTES)
    if not A16:
        q("s_lshl_b32 s7, s36, 7")
        q(f"v_add_u32 v6, s7, v{L31}")
        q("v_lshlrev_b32 v6, 7, v6")
        q(f"v_bfe_u32 v7, v{L31}, 1, 3")
        q(f"v_xor_b32 v7, v7, v{HI}")
        q("v_lshl_add_u32 v6, v7, 4, v6")
        for k in range(4):
            q(f"v_xor_b32 v{V_AA+k}, {k<<5}, v6")
        q(f"v_lshrrev_b32 v6, 1, v{G}")
        q(f"v_lshl_add_u32 v6, v6, 3, v{R4}")
        q("v_lshlrev_b32 v6, 9, v6")
        q("s_lshl_b32 s7, s37, 8")
        q("s_add_u32 s7, s7, 0x10000")
        q("v_add_u32 v6, s7, v6")
        q(f"v_and_b32 v7, 1, v{G}")
        q("v_lshl_add_u32 v6, v7, 5, v6")
        q(f"v_lshl_add_u32 v6, v{C}, 3, v6")
        for nb in range(4):
            q(f"v_xor_b32 v7, {nb}, v{R4}")
            q(f"v_lshl_add_u32 v{V_AB+nb}, v7, 6, v6")
    else:
        q("v_and_b32 v6, 15, v0")
        q("v_and_b32 v7, 8, v0")
        q(f"v_mul_u32_u24 v7, s{S_KIND}, v7")
        q("v_add_u32 v6, v6, v7")
        q("s_lshl_b32 s7, s36, 7")
        q("v_add_u32 v6, s7, v6")
        q("v_lshlrev_b32 v6, 7, v6")
        q("v_bfe_u32 v7, v0, 1, 3")
        q(f"v_xor_b32 v7, v7, v{G}")
        q(f"v_lshl_add_u32 v{V_AA16}, v7, 4, v6")
        q(f"v_xor_b32 v{V_AA16+1}, 64, v{V_AA16}")
        q(f"v_lshl_add_u32 v6, v{G}, 3, v{R4}")
        q("v_lshlrev_b32 v6, 9, v6")
        q("s_lshl_b32 s7, s37, 8")
        q("s_add_u32 s7, s7, 0x10000")
        q("v_add_u32 v6, s7, v6")
        q(f"v_and_b32 v7, 1, v{C}")
        q("v_lshl_add_u32 v6, v7, 3, v6")
        q(f"v_and_b32 v7, 1, v{G}")
        q("v_mul_u32_u24 v7, 3, v7")
        q(f"v_lshl_add_u32 v7, v{R4}, 2, v7")
        q(f"v_lshrrev_b32 v231, 1, v{C}")
        q(f"s_sub_u32 s7, 1, s{S_KIND}")
        q("v_lshlrev_b32 v231, s7, v231")
        q("v_xor_b32 v7, v7, v231")
        q("v_lshl_add_u32 v6, v7, 4, v6")
        for i in range(8):
            nat, perm = i << 5, ((i >> 1) << 6) | ((i & 1) << 4)
            if nat == perm:
                q(f"v_xor_b32 v{V_AB16+i}, {nat}, v6")
            else:
                q(f"s_mul_i32 s7, s{S_KIND}, {nat - perm}")
                q(f"s_add_u32 s7, s7, {perm}")
                q(f"v_xor_b32 v{V_AB16+i}, s7, v6")
    q("s_lshl_b32 s7, s3, 4")
    q(f"v_add_u32 v6, s7, v{G}")
    q(f"v_xor_b32 v7, v{R4}, v{G}")
    q("v_lshlrev_b32 v7, 6, v7")
    q(f"v_lshl_add_u32 v7, v{C}, 4, v7")
    q(f"s_lshl_b32 s38, s{S_HEAD}, 9")
    q(f"v_lshlrev_b32 v{V_DQ}, 13, v6")
    q(f"v_add3_u32 v{V_DQ}, v{V_DQ}, v7, s38")
    for j in range(1, 4):
        q(f"v_add_u32 v{V_DQ+j}, {j*4*8192 - j*1024}, v{V_DQ}")
    q(f"s_mul_i32 s39, s{S_HEAD}, 224")
    q(f"v_mul_u32_u24 v{V_D1+3}, 3584, v6")
    q(f"v_add3_u32 v{V_D1+3}, v{V_D1+3}, v7, s39")
    q(f"v_lshrrev_b32 v6, 1, v{G}")
    q(f"v_lshl_add_u32 v6, v6, 3, v{R4}")
    q("v_lshlrev_b32 v6, 8, v6")
    q(f"v_and_b32 v7, 1, v{G}")
    q("v_lshl_add_u32 v6, v7, 5, v6")
    q(f"v_lshl_add_u32 v6, v{C}, 3, v6")
    for nb in range(4):
        q(f"v_xor_b32 v7, {nb}, v{R4}")
        q(f"v_lshl_add_u32 v{V_AT+nb}, v7, 6, v6")
        q(f"v_add_u32 v{V_AT+4+nb}, 0x10000, v{V_AT+nb}")
    q(f"s_mul_i32 s7, s{S_QT}, 28")
    q("s_mul_i32 s6, s3, 7")
    q("s_add_u32 s7, s7, s6")
    q("v_lshrrev_b32 v6, 2, v0")
    q("v_min_u32 v6, 6, v6")
    q("v_add_u32 v6, s7, v6")
    q("v_lshlrev_b32 v7, 13, v6")
    q(f"v_lshl_add_u32 v7, v{C}, 7, v7")
    q("v_add_u32 v142, s38, v7")
    q("v_mul_u32_u24 v7, 3584, v6")
    q(f"v_min_u32 v6, 2, v{C}")
    q("v_lshl_add_u32 v7, v6, 7, v7")
    q("v_add_u32 v143, s39, v7")
    q(f"s_lshl_b32 s{S_KVBASE}, s{S_HA}, 6")
    q("s_lshl_b32 s7, s34, 3")
    q(f"s_add_u32 s{S_KVBASE}, s{S_KVBASE}, s7")
    q("s_lshl_b32 s7, s36, 2")
    q(f"s_add_u32 s{S_KVBASE}, s{S_KVBASE}, s7")
    q(f"s_lshl_b32 s{S_KVBASE}, s{S_KVBASE}, 15")
    q(f"s_lshl_b32 s7, s{S_KIND}, 14")
    q(f"s_add_u32 s{S_KVBASE}, s{S_KVBASE}, s7")
    q("s_lshl_b32 s7, s37, 13")
    q(f"s_add_u32 s{S_KVBASE}, s{S_KVBASE}, s7")
    q(f"s_lshl_b32 s7, s{S_QT}, 2")
    q(f"v_and_b32 v{V_FO}, 15, v0")
    q(f"v_lshlrev_b32 v{V_FO}, 3, v{V_FO}")
    q(f"s_add_u32 s{S_XNB}, s7, s3")
    q(f"s_mul_i32 s{S_XNB}, s{S_XNB}, 28672")
    q(f"s_add_u32 s{S_XNB}, s{S_XNB}, {XN_OFF}")
    q(f"v_lshlrev_b32 v{V_L16}, 4, v0")
    q("s_lshr_b32 s7, s2, 3")
    q("s_lshl_b32 s7, s7, 2")
    q("s_add_u32 s7, s7, s3")
    q("s_mul_i32 s7, s7, 768")
    q(f"v_min_u32 v{V_CP}, 5, v0")
    q(f"v_lshl_add_u32 v{V_CP}, v{V_CP}, 7, s7")
    for i in range(256):
        q(f"v_accvgpr_write_b32 a{i}, 0")
    q(f"s_lshl_b32 s7, s{S_QT}, 4")
    q(f"s_add_u32 s7, s7, s{S_HEAD}")
    q("s_mul_i32 s7, s7, 7168")
    q("v_min_u32 v6, 56, v0")
    q("v_lshl_add_u32 v146, v6, 7, s7")
    attn.setup_s(q)
    q(f"s_mov_b32 s{S_QST}, s{P_WS}")
    q(f"s_mov_b32 s{S_QST+1}, s{P_WS+1}")
    q(f"s_cmp_ge_u32 s{S_QT}, 8")
    q(f"s_cselect_b32 s{S_QST+2}, {WS_BYTES:#x}, 0")
    q(f"s_mov_b32 s{S_QST+3}, 0x20000")
    q(f"s_lshl_b32 s{S_QB}, s{S_PAIR}, 2")
    q(f"s_add_u32 s{S_QB}, s{S_QB}, s3")
    q(f"s_lshl_b32 s{S_QB}, s{S_QB}, 14")
    q(f"s_add_u32 s{S_QB}, s{S_QB}, {Q_OFF}")
    zero = [i.text for i in q.ins if i.text.startswith("v_accvgpr_write")]
    rest = [i.text for i in q.ins if not i.text.startswith("v_accvgpr_write")]
    nz = opt.get("pre_zero", 64)
    for x in rest + zero[:nz]:
        e(x)
    zero = zero[nz:]
    stamp(e, opt, "setup")
    e.wait_tag("pf")
    stamp(e, opt, "touch")
    first = [(x, "t0") for x in dma_items(0)] + [(x, "dma") for x in dma_items(1)[:NK3]]
    per = -(-len(zero) // len(first))
    for k, ((pre, d, post), tag) in enumerate(first):
        run(e, pre + [(d, tag)] + post + zero[k * per:(k + 1) * per])
    e(f"buffer_load_dword v{V_PD}, v144, s[{S_CKV}:{S_CKV+3}], 0 offen", "pf")
    e(f"buffer_load_dword v{V_PD}, v145, s[{S_W}:{S_W+3}], 0 offen", "pf")
    e(f"buffer_load_dword v{V_PD}, v146, s[{S_X}:{S_X+3}], 0 offen", "pf")
    e("s_or_b32 s7, s2, s3")
    e("s_cbranch_scc1 M_NOPUB")
    e("s_memrealtime s[4:5]")
    e("v_mov_b32 v6, 0")
    e.wait_force(lgkm=0)
    e("s_or_b32 s4, s4, 1")
    e("v_mov_b32 v7, s4")
    e("s_mov_b64 exec, 1")
    e.raw(f"global_store_dword v6, v7, s[{P_DBG}:{P_DBG+1}] sc1")
    e("s_mov_b64 exec, -1")
    e.label("M_NOPUB")
    stamp(e, opt, "dma")
    stamp(e, opt, 1)

    def layernorm(e, n, reduce, norm, T=V_T):
        e("s_mov_b32 s7, 0x3f803f80")
        for k in range(8):
            e(f"v_mov_b32 v{T+k}, 0")
        for r in range(n):
            e(f"v_dot2_f32_bf16 v{T+(r&3)}, v{V_XN+r}, s7, v{T+(r&3)}")
            e(f"v_dot2_f32_bf16 v{T+4+(r&3)}, v{V_XN+r}, v{V_XN+r}, v{T+4+(r&3)}")
        e.nop(4)
        e(f"v_add_f32 v{T}, v{T}, v{T+1}")
        e(f"v_add_f32 v{T+2}, v{T+2}, v{T+3}")
        e(f"v_add_f32 v{T+4}, v{T+4}, v{T+5}")
        e(f"v_add_f32 v{T+6}, v{T+6}, v{T+7}")
        e(f"v_add_f32 v{T}, v{T}, v{T+2}")
        e(f"v_add_f32 v{T+4}, v{T+4}, v{T+6}")
        for step in reduce:
            if step == 8:
                e.nop(2)
                e(f"v_add_f32_dpp v{T}, v{T}, v{T} row_ror:8 row_mask:0xf bank_mask:0xf")
                e(f"v_add_f32_dpp v{T+4}, v{T+4}, v{T+4} row_ror:8 row_mask:0xf bank_mask:0xf")
            else:
                e(f"v_mov_b32 v{T+1}, v{T}")
                e(f"v_mov_b32 v{T+5}, v{T+4}")
                e.nop(2)
                e(f"v_permlane{step}_swap_b32 v{T}, v{T+1}")
                e(f"v_permlane{step}_swap_b32 v{T+4}, v{T+5}")
                e(f"v_add_f32 v{T}, v{T}, v{T+1}")
                e(f"v_add_f32 v{T+4}, v{T+4}, v{T+5}")
        e(f"v_mul_f32 v{T}, {f32(1/448)}, v{T}")
        e(f"v_mul_f32 v{T+4}, {f32(1/448)}, v{T+4}")
        e(f"v_fma_f32 v{T+4}, -v{T}, v{T}, v{T+4}")
        e(f"v_max_f32 v{T+4}, 0, v{T+4}")
        e(f"v_add_f32 v{T+4}, {f32(1e-5)}, v{T+4}")
        e(f"v_rsq_f32 v{T+4}, v{T+4}")
        e(f"v_mul_f32 v{T+4}, {f32(QSCALE)}, v{T+4}")
        e(f"v_mul_f32 v{T}, v{T}, v{T+4}")
        e(f"v_mov_b32 v{T+5}, v{T+4}")
        e(f"v_sub_f32 v{T}, 0, v{T}")
        e(f"v_mov_b32 v{T+1}, v{T}")
        for r in norm:
            t = T + 8 + (r % 8) * 2
            e(f"v_lshlrev_b32 v{t}, 16, v{V_XN+r}")
            e(f"v_and_b32 v{t+1}, 0xffff0000, v{V_XN+r}")
            e(f"v_pk_fma_f32 {v(t,2)}, {v(t,2)}, {v(T+4,2)}, {v(T,2)}")
            e(f"v_cvt_pk_bf16_f32 v{V_XN+r}, v{t}, v{t+1}")

    hk = Seg("m_hook")
    hk.label("M_HOOK")
    hk("s_lshl_b32 s4, s3, 8")
    hk("s_add_u32 s5, s4, 128")
    hk("s_cmp_eq_u32 s3, 3")
    hk("s_cselect_b32 s5, 0, s5")
    hk(f"s_cmp_eq_u32 s{S_LP}, 2")
    hk("s_cbranch_scc1 M_HOOK2")
    hk(f"s_cmp_eq_u32 s{S_LP}, 3")
    hk("s_cbranch_scc1 M_HOOK3")
    hk(f"s_lshl_b32 s7, s{S_QT}, 7")
    hk(f"s_lshl_b32 s6, s{S_HEAD}, 3")
    hk("s_add_u32 s7, s7, s6")
    hk("v_and_b32 v6, 7, v0")
    hk("v_add_u32 v6, s7, v6")
    hk("v_mul_u32_u24 v6, 896, v6")
    hk("v_lshrrev_b32 v7, 3, v0")
    hk("v_lshl_add_u32 v6, v7, 4, v6")
    for i in range(7):
        hk.raw(f"buffer_load_dwordx4 {v(V_XN+i*4,4)}, v6, s[{S_X}:{S_X+3}], 0 offen offset:{i*128}", "pf")
    hk.raw(f"buffer_load_dwordx4 {v(V_XN+28,4)}, v6, s[{S_X}:{S_X+3}], s4 offen", "pf")
    hk.raw(f"buffer_load_dwordx4 {v(V_XN+32,4)}, v6, s[{S_X}:{S_X+3}], s5 offen", "pf")
    hk(f"v_mov_b32 v{V_XN+41}, 0")
    hk.raw(f"global_load_dword v{V_XN+43}, v{V_XN+41}, s[{P_DBG}:{P_DBG+1}]", "pf")
    hk("s_branch M_HOOK_RET")
    hk.label("M_HOOK2")
    hk("s_lshl_b32 s4, s4, 5")
    hk("s_lshl_b32 s5, s5, 5")
    layernorm(hk, 28, (8, 16, 32), range(28, 36), V_XN + 52)
    hk(f"s_lshr_b32 s7, s{S_HEAD}, 2")
    hk(f"s_lshl_b32 s6, s{S_QT}, 2")
    hk("s_add_u32 s7, s7, s6")
    hk("s_mul_i32 s7, s7, 28672")
    hk(f"s_add_u32 s7, s7, {XN_OFF}")
    hk("s_add_u32 s4, s4, s7")
    hk("s_add_u32 s5, s5, s7")
    hk(f"s_and_b32 s6, s{S_HEAD}, 3")
    hk("s_lshl_b32 s6, s6, 7")
    hk("v_and_b32 v6, 7, v0")
    hk("v_lshlrev_b32 v6, 4, v6")
    hk("v_lshrrev_b32 v7, 3, v0")
    hk("v_lshl_add_u32 v6, v7, 9, v6")
    hk("v_add_u32 v6, s6, v6")
    hk(f"buffer_store_dwordx4 {v(V_XN+28,4)}, v6, s[{S_WS}:{S_WS+3}], s4 offen sc1")
    hk(f"buffer_store_dwordx4 {v(V_XN+32,4)}, v6, s[{S_WS}:{S_WS+3}], s5 offen sc1")
    hk("s_branch M_HOOK_RET")
    hk.label("M_HOOK3")
    hk("s_mov_b32 s6, 0")
    hk.label("M_NSPIN")
    hk(f"v_readfirstlane_b32 s{S_N0}, v{V_XN+43}")
    hk(f"s_cmp_lg_u32 s{S_N0}, 0")
    hk("s_cbranch_scc1 M_NOK")
    hk("s_sleep 8")
    hk(f"global_load_dword v{V_XN+43}, v{V_XN+41}, s[{P_DBG}:{P_DBG+1}] sc1")
    hk.wait_force(vm=0)
    hk("s_add_u32 s6, s6, 1")
    hk(f"s_cmp_lt_u32 s6, {PMAX}")
    hk("s_cbranch_scc1 M_NSPIN")
    hk.label("M_NOK")
    hk(f"s_xor_b32 s{S_N1}, s{S_N0}, {NONCE_K:#x}")
    hk("s_cmp_lg_u32 s3, 0")
    hk("s_cbranch_scc1 M_HOOK_RET")
    flag_line(hk, 7, FL_XN, S_QT)
    hk(f"s_lshl_b32 s6, s{S_HEAD}, 3")
    flag_set(hk, S_WS, 7, "s6", V_XN + 40)
    hk.label("M_HOOK_RET")
    hk(f"s_cmp_eq_u32 s{S_KIND}, 0")
    hk("s_cbranch_scc1 M_LOOP_K")
    hk("s_branch M_LOOP_V")

    def frag_reads(b, ks, st):
        r = []
        fa, fb = V_FA + st * 16, V_FB + st * 16
        order = [("a", 0), ("b", 0), ("a", 1), ("a", 2), ("a", 3), ("b", 1), ("b", 2), ("b", 3)]
        for t, i in order:
            if t == "a":
                r.append(f"ds_read_b128 {v(fa+i*4,4)}, v{V_AA+ks} offset:{i*4096 + b*32768}")
            else:
                for u in range(2):
                    r.append(f"ds_read_b64_tr_b16 {v(fb+i*4+u*2,2)}, v{V_AB+i} offset:{(16*ks+4*u)*512 + b*32768}")
        return r

    e.wait_tag("t0")
    stamp(e, opt, "t0")
    e("s_barrier")
    stamp(e, opt, "bar")
    if not A16:
        for r in frag_reads(0, 0, 0):
            e(r)
    e(f"s_mov_b32 s{S_LP}, 0")
    e(f"s_cmp_eq_u32 s{S_KIND}, 0")
    e("s_cbranch_scc0 M_PRE_V")
    pro = e

    def place_dma(fill, items, g0, g1, tag="dma"):
        n = len(items)
        for k, item in enumerate(items):
            pre, d, post = item[:3]
            g = g0 + (k * (g1 - g0)) // n
            for x in pre:
                fill.setdefault(g - 1, []).append(x)
            fill.setdefault(g, []).append((d, item[3] if len(item) > 3 else tag))
            for x in post:
                fill.setdefault(g, []).append(x)

    def ktile(e, kind, b, dma_k0, dma_k3, last=False, pref=True, tag3="dma", tag0="dma", xn=None):
        for ks in range(4):
            st = ks & 1
            fa, fb = V_FA + st * 16, V_FB + st * 16
            spine = []
            for i in range(4):
                for j in range(4):
                    acc = a((i * 4 + j) * 16, 16)
                    W, Cc = v(fb + i * 4, 4), v(fa + j * 4, 4)
                    A, B = (W, Cc) if kind == 0 else (Cc, W)
                    spine.append(f"{MFMA} {acc}, {A}, {B}, {acc}")
            fill = {}
            fill[-1] = [lambda e: e.wait_force(lgkm=0)]
            if ks < 3:
                spread(fill, frag_reads(b, ks + 1, st ^ 1), 0, 12)
                if ks == 0 and dma_k0:
                    place_dma(fill, dma_k0, 1, 16, tag0)
                if ks == 1 and pref:
                    fill.setdefault(4, []).append((f"buffer_load_dword v{V_PD}, v{V_PA}, s[{S_CKV}:{S_CKV+3}], s{SA} offen", "pf"))
                    fill.setdefault(13, []).append((f"buffer_load_dword v{V_PD}, v{V_PB}, s[{S_W}:{S_W+3}], s{SB} offen", "pf"))
                if ks in (1, 2) and xn is not None:
                    k0 = xn + (ks - 1) * 7
                    for k in range(k0, k0 + 7):
                        g = 1 + 2 * (k - k0)
                        if k % 4 == 0 and k:
                            fill.setdefault(g - 1, []).append(f"s_add_u32 s{S_XNB}, s{S_XNB}, 4096")
                        fill.setdefault(g, []).append((f"buffer_load_dwordx4 {v(V_XN+4*k,4)}, v{V_L16}, s[{S_WS}:{S_WS+3}], s{S_XNB} offen offset:{(k%4)*1024} sc1", "xn"))
            else:
                if last:
                    fill[0] = ["s_barrier"]
                else:
                    fill[0] = [lambda e: e.wait_force(vm=(NPF if pref else 0) + (14 if xn is not None else 0)), "s_barrier"]
                    spread(fill, frag_reads(b ^ 1, 0, 0), 0, 12)
                if dma_k3:
                    place_dma(fill, dma_k3, 2, 16, tag3)
            weave(e, spine, fill)

    def c_read(kind, b, s_, j):
        off = j * 2048 if kind == 0 else (j >> 1) * 4096 + (j & 1) * 1024
        return f"ds_read_b128 {v(V_FA + s_*32 + j*4, 4)}, v{V_AA16 + ((s_ ^ j) & 1)} offset:{off + b*32768}"

    def w_read(b, s_, i):
        return [f"ds_read_b64_tr_b16 {v(V_WR + i*4 + 2*u, 2)}, v{V_AB16+i} offset:{(32*s_ + 4*u)*512 + b*32768}" for u in range(2)]

    def ktile16(e, kind, b, dma_k0, dma_k3, last=False, pref=True, tag3="dma", tag0="dma", xn=None):
        for s_ in range(2):
            spine = []
            for i in range(8):
                for j in range(8):
                    if kind == 0:
                        dt, bb, kb, nb = i >> 1, i & 1, j >> 1, j & 1
                    else:
                        dt, nb, kb, bb = i >> 1, i & 1, j >> 1, j & 1
                    acc = a((dt * 4 + kb) * 16 + nb * 8 + bb * 4, 4)
                    W, Cc = v(V_WR + i * 4, 4), v(V_FA + s_ * 32 + j * 4, 4)
                    A, B = (W, Cc) if kind == 0 else (Cc, W)
                    spine.append(f"v_mfma_f32_16x16x32_bf16 {acc}, {A}, {B}, {acc}")
            fill = {}
            nb_, ns = (b, 1) if s_ == 0 else (b ^ 1, 0)
            more = not (last and s_ == 1)
            for i in range(8):
                r = v(V_WR + i * 4, 4)
                fill.setdefault(8 * i - 1, []).append(lambda e, r=r: wait_reg(e, r))
            r = v(V_FA + s_ * 32 + 28, 4)
            fill.setdefault(-1, []).append(lambda e, r=r: wait_reg(e, r))
            if s_ == 1:
                nx = 14 if xn is not None else 0
                if last:
                    fill.setdefault(7, []).extend([lambda e: e.wait(lgkm=0), "s_barrier"])
                elif pref:
                    fill.setdefault(7, []).extend([lambda e: e.wait_force(vm=NPF, lgkm=0), "s_barrier"])
                else:
                    fill.setdefault(7, []).extend([lambda e: e.wait_tag("dma"), lambda e: e.wait(lgkm=0), "s_barrier"])
            if more:
                for i in range(8):
                    wr = w_read(nb_, ns, i)
                    fill.setdefault(8 * i + 7, []).append(wr[0])
                    fill.setdefault(min(8 * i + 8, 63), []).append(wr[1])
                for j in range(8):
                    fill.setdefault(10 + 6 * j, []).append(c_read(kind, nb_, ns, j))
            if s_ == 0:
                if dma_k0:
                    place_dma(fill, dma_k0, 2, min(30, 2 + (7 * len(dma_k0)) // 2), tag0)
                if pref:
                    fill.setdefault(36, []).append((f"buffer_load_dword v{V_PD}, v{V_PA}, s[{S_CKV}:{S_CKV+3}], s{SA} offen", "pf"))
                    fill.setdefault(44, []).append((f"buffer_load_dword v{V_PD}, v{V_PB}, s[{S_W}:{S_W+3}], s{SB} offen", "pf"))
                if xn is not None:
                    for k in range(xn, xn + 14):
                        g = 31 + ((k - xn) * 32) // 14
                        if k % 4 == 0 and k:
                            fill.setdefault(g - 1, []).append(f"s_add_u32 s{S_XNB}, s{S_XNB}, 4096")
                        fill.setdefault(g, []).append((f"buffer_load_dwordx4 {v(V_XN+4*k,4)}, v{V_L16}, s[{S_WS}:{S_WS+3}], s{S_XNB} offen offset:{(k%4)*1024} sc1", "xn"))
            elif dma_k3:
                place_dma(fill, dma_k3, 11, 62, tag3)
            weave(e, spine, fill)

    if A16:
        ktile = ktile16

    NT = 21

    def b_dma(u):
        part, kt = divmod(u, 7)
        slot = SLOT_ORDER[u % 10]
        it = []
        for j in range(4):
            pre = []
            if j == 0:
                pre.append(f"s_add_u32 m0, s{S_W4K}, {slot*16384}")
                off = kt * 64 * 3584 if part == 2 else kt * 64 * 8192 + part * 256
                pre.append(f"s_mov_b32 s{S_BO}, {off}")
            if part == 2:
                d = f"buffer_load_dwordx4 v{V_DQ+j}, s[{S_W1}:{S_W1+3}], s{S_BO} offen offset:{j*1024} lds"
            else:
                d = f"buffer_load_dwordx4 v{V_DQ+j}, s[{S_WQ}:{S_WQ+3}], s{S_BO} offen offset:{j*1024} lds"
            it.append((pre, d, [], f"b{u//2}"))
        return it

    segs = [pro]
    traces = [[hk]]
    tails = {}
    extra = []
    vm_loop = [("dma", frozenset())] * 40
    for kind in range(2):
        nm = "KV"[kind]
        pre = Seg(f"m_pre{nm}", pro.lds, pro.vm)
        pre.label(f"M_PRE_{nm}")
        if A16:
            seq = sorted([(8 * i + 7, 0, w_read(0, 0, i)[0]) for i in range(8)] + [(min(8 * i + 8, 63), 1, w_read(0, 0, i)[1]) for i in range(8)]
                         + [(10 + 6 * j, 2, c_read(kind, 0, 0, j)) for j in range(8)])
            for _, _, x in seq:
                pre(x)
        lp = Seg(f"m_loop{nm}", pre.lds, vm_loop)
        lp.label(f"M_LOOP_{nm}")
        d0, d1 = dma_items(0), dma_items(1)
        ktile(lp, kind, 0, d1[NK3:], d0[:NK3])
        ktile(lp, kind, 1, d0[NK3:], d1[:NK3])
        assert not A16 or lp.lds == pre.lds, (len(lp.lds), len(pre.lds))
        lp(f"s_add_u32 s{S_LP}, s{S_LP}, 1")
        for it in range(1, 8):
            if f"it{it}" in opt.get("sp", []):
                lp(f"s_cmp_lg_u32 s{S_LP}, {it}")
                lp(f"s_cbranch_scc1 M_NS{it}_{nm}")
                stamp(lp, opt, f"it{it}", raw=True)
                lp.label(f"M_NS{it}_{nm}")
        lp(f"s_cmp_le_u32 s{S_LP}, 3")
        lp("s_cbranch_scc1 M_HOOK")
        lp(f"s_cmp_lg_u32 s{S_LP}, 6")
        lp(f"s_cbranch_scc1 M_NOPOLL_{nm}")
        flag_line(lp, 7, FL_XN, S_QT)
        lp(f"buffer_load_dwordx2 {v(V_FL,2)}, v{V_FO}, s[{S_WS}:{S_WS+3}], s7 offen sc1", "pf")
        if not opt.get("no_bpf"):
            lp(f"buffer_load_dword v{V_PD}, v142, s[{S_WQ}:{S_WQ+3}], 0 offen", "pf")
            lp(f"buffer_load_dword v{V_PD}, v143, s[{S_W1}:{S_W1+3}], 0 offen", "pf")
        if not opt.get("no_cpf"):
            lp("s_getpc_b64 s[4:5]")
            lp.label(f"M_PC_{nm}")
            lp(f"v_min_u32 v{V_XN+44}, M_CODE_END-M_PC_{nm}-8, v{V_CP}")
            lp(f"global_load_dword v{V_PD}, v{V_XN+44}, s[4:5]", "pf")
        lp.label(f"M_NOPOLL_{nm}")
        lp(f"s_cmp_lt_u32 s{S_LP}, 7")
        lp(f"s_cbranch_scc1 M_LOOP_{nm}")
        tl = Seg(f"m_tail{nm}", lp.lds, lp.vm)
        bd = sum((b_dma(u) for u in range(10)), [])
        flag_test(tl, V_FL)
        tl(f"s_cselect_b32 s{S_XNF}, 1, 0")
        ktile(tl, kind, 0, d1[NK3:] + bd[:8], bd[8:20], pref=False, xn=0)
        ktile(tl, kind, 1, bd[20:24], bd[24:36], last=True, pref=False, xn=14)
        if kind == 0:
            tl("s_branch M_B")
        segs += [pre, lp, tl] + ([hk] if kind == 0 else [])
        tails[kind] = tl
        traces.append([pro, pre, lp, lp, tl])

    e = Seg("m_b", tails[0].lds, tails[0].vm)
    e.label("M_B")
    stamp(e, opt, 2)
    stamp(e, opt, "b")
    e(f"s_cmp_lt_u32 s{S_XNF}, {99 if opt.get('force_fb') else 1}")
    e("s_cbranch_scc1 M_FB")
    e.label("M_FB_RET")
    srd(e, S_WO, P_WO, WO_BYTES)
    srd(e, S_W2, P_W2, W2_BYTES)
    attn.setup_dma(e)
    e(f"v_and_b32 v{V_ST}, 15, v0")
    e(f"v_lshlrev_b32 v{V_ST}, 4, v{V_ST}")
    e("v_lshrrev_b32 v6, 4, v0")
    e(f"v_lshl_add_u32 v{V_ST}, v6, 9, v{V_ST}")
    e(f"v_mov_b32 v6, v{V_D1+3}")
    for nb in range(4):
        e(f"v_add_u32 v{V_AT3+nb}, 0x20000, v{V_AT+nb}")
    fb = Seg("m_fb")
    fb.label("M_FB")
    fb.wait_force(vm=0)
    fb(f"s_lshl_b32 s7, s{S_QT}, 7")
    fb("s_lshl_b32 s6, s3, 5")
    fb("s_add_u32 s7, s7, s6")
    fb("v_and_b32 v6, 31, v0")
    fb("v_add_u32 v6, s7, v6")
    fb("v_mul_u32_u24 v6, 896, v6")
    fb("v_lshrrev_b32 v7, 5, v0")
    fb("v_lshl_add_u32 v6, v7, 4, v6")
    for ks in range(28):
        fb(f"buffer_load_dwordx4 {v(V_XN+ks*4,4)}, v6, s[{S_X}:{S_X+3}], 0 offen offset:{ks*32}", "x")
    layernorm(fb, 112, (32,), range(112))
    fb.nop(2)
    fb("s_branch M_FB_RET")
    extra.append(fb)

    D = opt.get("b_depth", 7)
    NF = NT * 16

    def b_read(f):
        u, rem = divmod(f, 16)
        ks, nb = divmod(rem, 4)
        slot = SLOT_ORDER[u % 10]
        fr = V_FA + (f % 8) * 4
        at = (V_AT, V_AT + 4, V_AT3)[slot >> 2] + nb
        return [f"ds_read_b64_tr_b16 {v(fr+2*h,2)}, v{at} offset:{(slot&3)*16384 + (16*ks+4*h)*256}" for h in range(2)]

    def kv_epi(b):
        i, j = divmod(b, 4)
        t = 8
        ops = [f"s_add_u32 s{S_KVC}, s{S_KVBASE}, {KV_OFF + j*32768 + (i>>1)*4096}"]
        for c in range(2):
            for r in range(8):
                ops.append(f"v_accvgpr_read_b32 v{t+r}, a{b*16+8*c+r}")
            for r in range(4):
                ops.append(f"v_cvt_pk_bf16_f32 v{t+8+r}, v{t+2*r}, v{t+2*r+1}")
            ops.append((f"buffer_store_dwordx4 {v(t+8,4)}, v{V_ST if A16 else V_L16}, s[{S_WS}:{S_WS+3}], s{S_KVC} offen offset:{(i&1)*2048+c*(256 if A16 else 1024)}{ST}", "kvst"))
        if opt.get("x_nokvst"):
            ops = [o for o in ops if not isinstance(o, tuple)]
        if opt.get("x_noepi"):
            ops = []
        return ops

    def q_epi(part):
        ops = []
        t = 20
        for nb in range(4):
            if nb % 2 == 0:
                ops.append(f"s_add_u32 s{S_QC}, s{S_QB}, {part*8192 + (nb>>1)*4096}")
            for c in range(2):
                if part == 0:
                    src = H_ACC[nb] + 8 * c
                else:
                    src = t
                    for r in range(8):
                        ops.append(f"v_accvgpr_read_b32 v{t+r}, a{nb*16+8*c+r}")
                for r in range(4):
                    ops.append(f"v_cvt_pk_bf16_f32 v{t+8+r}, v{src+2*r}, v{src+2*r+1}")
                ops.append((f"buffer_store_dwordx4 {v(t+8,4)}, v{V_L16}, s[{S_QST}:{S_QST+3}], s{S_QC} offen offset:{(nb&1)*2048 + c*1024} sc1", "qst"))
                for r in range(4):
                    ops.append(f"v_accvgpr_write_b32 a{A_Q2 + part*32 + nb*8 + c*4 + r}, v{t+8+r}")
        return ops

    WB = opt.get("wb")
    GKV, GQ = opt.get("g_kv", 7), 9
    fl = attn.first_loads(S_KVE)
    spine, fill = [], {}
    e.wait_tag("b0")
    e("s_barrier")
    for f in range(D):
        for r in b_read(f):
            e(r)
    place_dma(fill, b_dma(9), 1, 16)
    for f in range(NF):
        u, rem = divmod(f, 16)
        part, kt = divmod(u, 7)
        ks, nb = divmod(rem, 4)
        acc = a(nb * 16, 16) if part == 1 else v(H_ACC[nb], 16)
        c = "0" if (kt == 0 and ks == 0) else acc
        spine.append(f"{MFMA} {acc}, {v(V_FA+(f%8)*4,4)}, {v(V_XN+(kt*4+ks)*4,4)}, {c}")
        nf = f + D
        if nf < NF:
            if nf % 32 == 0:
                g = nf // 32
                ops = [lambda e, g=g: e.wait_tag(f"b{g}")]
                if g == (GKV - 1 if WB else GKV):
                    ops.append(lambda e: e.wait_tag("kvst"))
                if WB and g == GKV:
                    ops.append(lambda e: e.wait_tag("wb"))
                if g == GQ:
                    ops += [lambda e: flag_test(e, 10), f"s_cselect_b32 s{S_EARLY}, 1, 0",
                            f"s_cselect_b32 s{S_KVE+2}, {WS_BYTES:#x}, 0"]
                ops.append("s_barrier")
                if g == GKV:
                    ops += ["s_cmp_eq_u32 s3, 0", "s_cbranch_scc1 M_SKV", "M_SKV_RET:"]
                if g == GQ:
                    ops += ["s_cmp_eq_u32 s3, 0", "s_cbranch_scc1 M_SQ", "M_SQ_RET:"]
                if WB and g in WB:
                    ops += ["s_cmp_lg_u32 s3, 0", f"s_cbranch_scc1 M_NWB{g}", lambda e: e.raw("buffer_wbl2 sc1"), f"M_NWB{g}:"]
                if WB and g == GKV - 1:
                    ops += [("buffer_wbl2 sc1", "wb")]
                if g == 4:
                    ops += [f"v_add_u32 v{V_DQ+j}, {j*4*3584 - j*1024}, v6" for j in range(4)]
                ops.append(lambda e, g=g: stamp(e, opt, f"g{g}", raw=True))
                fill.setdefault(f, []).extend(ops)
                if g >= 2:
                    its = []
                    for u2 in (2 * g + 6, 2 * g + 7):
                        if u2 < NT:
                            its += b_dma(u2)
                    if its:
                        place_dma(fill, its, f + 2, f + 30)
                if g == 9:
                    spread(fill, sum(fl[:4], []), f + 2, f + 32)
                if g == 10:
                    spread(fill, sum(fl[4:], []), f + 2, f + 20)
            fill.setdefault(f, []).extend(b_read(nf))
        if f % 2 == 0:
            r = v(V_FA + (min(f + 1, NF - 1) % 8) * 4, 4)
            fill.setdefault(f - 1, []).append(lambda e, r=r: wait_reg(e, r))
    nb1, gkv_end, gq0, gq1 = opt.get("kv_split", (11, 170, 150, 268))
    pour(fill, sum((kv_epi(b) for b in range(0, nb1)), []), 2, 108)
    pour(fill, sum((kv_epi(b) for b in range(nb1, 16)), []), 108, gkv_end)
    pour(fill, q_epi(0), gq0, 220)
    pour(fill, q_epi(1), 224 + 5, gq1)
    pour(fill, [f"s_mov_b32 s{S_KVE}, s{S_WS}", f"s_mov_b32 s{S_KVE+1}, s{S_WS+1}", f"s_mov_b32 s{S_KVE+3}, 0x20000",
                lambda e: flag_line(e, 73, FL_KV, S_HEAD), lambda e: flag_line(e, 74, FL_PAIR, S_PAIR), "v_mov_b32 v14, 0"], 221, 229)
    fill.setdefault(gq1 + 1, []).append(f"buffer_load_dwordx2 v[10:11], v{V_FO}, s[{S_WS}:{S_WS+3}], s73 offen sc1")
    fill.setdefault(opt.get("g_poll", 333), []).append(f"buffer_load_dwordx2 v[6:7], v14, s[{S_WS}:{S_WS+3}], s74 offen sc1")
    pour(fill, [f"v_accvgpr_mov_b32 a{A_Q+r}, a{A_Q2+r}" for r in range(64)], gq1 + 2, 334)
    for k in range(8, 26):
        for r in (0, 2):
            g = min(range(224 + 4 * k + 5, 336), key=lambda g: (load_of(fill, g), g))
            fill.setdefault(g, []).append(f"v_mov_b64 {v(V_XN+4*k+r,2)}, 0")
    print(gap_report("phase B", fill, NF))
    weave(e, spine, fill)
    stamp(e, opt, 3)
    stamp(e, opt, "bend")

    skv = Seg("m_skv")
    skv.label("M_SKV")
    flag_line(skv, 7, FL_KV, S_HA)
    flag_set(skv, S_WS, 7, f"s{S_KVSLOT}", 8)
    skv("s_branch M_SKV_RET")
    sq = Seg("m_sq")
    sq.label("M_SQ")
    sq(f"s_cmp_lt_u32 s{S_QT}, 8")
    sq("s_cbranch_scc1 M_SQ_RET")
    flag_set(sq, S_WS, 74, 0, 16)
    sq("s_branch M_SQ_RET")

    def spin(e, name, vd, voff, line, first=True):
        e("s_mov_b32 s6, 0")
        e.label(name)
        if first:
            e(f"buffer_load_dwordx2 {v(vd,2)}, v{voff}, s[{S_WS}:{S_WS+3}], s{line} offen sc1")
        e.wait_force(vm=0)
        flag_test(e, vd)
        e(f"s_cbranch_scc1 {name}_OK")
        e("s_sleep 2")
        if not first:
            e(f"buffer_load_dwordx2 {v(vd,2)}, v{voff}, s[{S_WS}:{S_WS+3}], s{line} offen sc1")
        e("s_add_u32 s6, s6, 1")
        e(f"s_cmp_lt_u32 s6, {PMAX}")
        e(f"s_cbranch_scc1 {name}")
        e.wait_force(vm=0)
        e.label(name + "_OK")

    late = Seg("m_late")
    late.label("M_LATE")
    spin(late, "M_PKV", 10, V_FO, 73)
    for grp in attn.first_loads(S_WS):
        run(late, grp)
    late.wait_force(vm=0)
    late("s_branch M_LATE_RET")
    gq = Seg("m_getq")
    gq.label("M_GETQ")
    spin(gq, "M_PQ", 6, 14, 74, first=False)
    for k in range(16):
        if k and k % 4 == 0:
            gq(f"s_add_u32 s{S_QB}, s{S_QB}, 4096")
        gq(f"buffer_load_dwordx4 {a(A_Q+4*k,4)}, v{V_L16}, s[{S_WS}:{S_WS+3}], s{S_QB} offen offset:{(k%4)*1024} sc1", "q")
    gq("s_branch M_GETQ_RET")
    wq = Seg("m_waitq")
    wq.label("M_WAITQ")
    wq.wait_force(vm=0)
    wq("s_branch M_WAITQ_RET")
    extra += [skv, sq, late, gq, wq]

    e(f"s_cmp_eq_u32 s{S_EARLY}, {2 if opt.get('force_late') else 1}")
    e("s_cbranch_scc0 M_LATE")
    e.label("M_LATE_RET")
    e(f"s_cmp_lt_u32 s{S_QT}, 8")
    e("s_cbranch_scc1 M_GETQ")
    e.label("M_GETQ_RET")
    stamp(e, opt, "polled")
    HS = V_XN + 4
    for k in range(28):
        nb, r = divmod(k, 8)
        e(f"v_cvt_pk_bf16_f32 v{HS+k}, v{H_ACC[nb]+2*r}, v{H_ACC[nb]+2*r+1}")
    srd(e, S_OUT, P_OUT, OUT_BYTES)
    attn.setup_v(e)
    e("s_getpc_b64 s[80:81]")
    e.label("M_PC_A")
    e("s_lshr_b32 s7, s2, 3")
    e("s_lshl_b32 s7, s7, 2")
    e("s_add_u32 s7, s7, s3")
    e("s_mul_i32 s7, s7, 512")
    e(f"v_min_u32 v{attn.V_X+3}, 3, v0")
    e(f"v_lshl_add_u32 v{attn.V_X+3}, v{attn.V_X+3}, 7, s7")
    e(f"v_min_u32 v{attn.V_X+3}, M_CODE_END-M_PC_A-8, v{attn.V_X+3}")
    attn.init_state(e, V_XN + 4 * 26)
    e(f"s_cmp_lt_u32 s{S_QT}, 8")
    e("s_cbranch_scc1 M_WAITQ")
    e.label("M_WAITQ_RET")
    stamp(e, opt, 4)
    stamp(e, opt, "a0")

    RA, RB, XR, VO, VP = 180, 32, 12, 2, 10

    def hooks(fill, NFE, ED):
        g = 6 * NFE - ED
        fill[g].extend(["s_cmp_eq_u32 s3, 0", "s_cbranch_scc1 M_SYA", "M_SYA_RET:"])
        ops = [f"s_lshl_b32 s7, s{S_QT}, 2", f"s_lshr_b32 s4, s{S_HEAD}, 2", "s_add_u32 s4, s4, s7",
               f"s_and_b32 s5, s{S_HEAD}, 3", "s_lshl_b32 s6, s3, 2", "s_add_u32 s5, s5, s6",
               "s_mul_i32 s6, s4, 28", "s_add_u32 s6, s6, s5", "s_lshl_b32 s6, s6, 10",
               f"s_add_u32 s53, s6, {Y_OFF}", "s_add_u32 s54, s53, 16384",
               f"v_and_b32 v{VO}, 31, v0", "v_lshrrev_b32 v3, 5, v0", "s_lshl_b32 s4, s4, 5", f"v_add_u32 v{VO}, s4, v{VO}",
               f"v_mul_u32_u24 v{VO}, 896, v{VO}", f"v_lshl_add_u32 v{VO}, v3, 3, v{VO}", "s_lshl_b32 s5, s5, 5",
               f"v_add_u32 v{VO}, s5, v{VO}"]
        ops += [f"buffer_load_dwordx2 {v(XR+2*k,2)}, v{VO}, s[{S_X}:{S_X+3}], 0 offen offset:{(k>>1)*512+(k&1)*16}" for k in range(4)]
        ops += [lambda e: flag_line(e, 55, FL_Y, S_QT), lambda e: flag_line(e, 63, FL_YA, S_QT)]
        pour(fill, ops, 5 * NFE + 2, 5 * NFE + 34)
        fill.setdefault(6 * NFE + opt.get("g_pa", 22), []).append(
            (f"buffer_load_dwordx2 {v(VP,2)}, v{V_FO}, s[{S_WS}:{S_WS+3}], s63 offen sc1", "pa"))

    sya = Seg("m_sya")
    sya.label("M_SYA")
    sya(f"s_lshl_b32 s6, s{S_HEAD}, 3")
    flag_set(sya, S_WS, 63, "s6", 20)
    sya("s_branch M_SYA_RET")
    extra.append(sya)

    def finish(e):
        stamp(e, opt, "yend")

        def loads(base, sreg, tag):
            for h in range(16):
                e(f"buffer_load_dwordx4 {v(base+4*h,4)}, v{V_L16}, s[{S_WS}:{S_WS+3}], s{sreg} offen sc1", tag)
                if h < 15:
                    e(f"s_add_u32 s{sreg}, s{sreg}, {64*28*1024}")

        def reduce(base, xr, off):
            acc, t = 20, 28
            for r in range(4):
                e(f"v_lshlrev_b32 v{acc+2*r}, 16, v{xr+r}")
                e(f"v_and_b32 v{acc+1+2*r}, 0xffff0000, v{xr+r}")
            for h in range(16):
                for r in range(4):
                    src = base + 4 * h + r
                    u = t + 2 * (r & 1)
                    e(f"v_lshlrev_b32 v{u}, 16, v{src}")
                    e(f"v_and_b32 v{u+1}, 0xffff0000, v{src}")
                    e(f"v_pk_add_f32 {v(acc+2*r,2)}, {v(acc+2*r,2)}, {v(u,2)}")
            for r in range(4):
                e(f"v_cvt_pk_bf16_f32 v{xr+r}, v{acc+2*r}, v{acc+1+2*r}")
            e(f"buffer_store_dwordx2 {v(xr,2)}, v{VO}, s[{S_OUT}:{S_OUT+3}], 0 offen offset:{off}")
            e(f"buffer_store_dwordx2 {v(xr+2,2)}, v{VO}, s[{S_OUT}:{S_OUT+3}], 0 offen offset:{off+16}")

        flag_test(e, VP)
        e("s_cselect_b32 s60, 1, 0")
        e("s_cbranch_scc0 M_NOA")
        loads(RA, 53, "ra")
        e.wait_force(vm=16)
        e("s_branch M_A1")
        e.label("M_NOA")
        e.wait_force(vm=0)
        e.label("M_A1")
        e("s_barrier")

        e("s_cmp_lg_u32 s3, 3")
        e("s_cbranch_scc1 M_PA_OK")
        e(f"s_lshl_b32 s6, s{S_HEAD}, 3")
        flag_set(e, S_WS, 55, "s6", 20)
        e("s_cmp_eq_u32 s60, 1")
        e("s_cbranch_scc1 M_PA_OK")
        spin(e, "M_PA", VP, V_FO, 63)
        e("s_barrier")
        e("s_cmp_eq_u32 s60, 1")
        e("s_cbranch_scc1 M_A2")
        loads(RA, 53, "ra")
        e.label("M_A2")
        e("s_cmp_eq_u32 s3, 3")
        e("s_cbranch_scc1 M_W3")
        e.wait_force(vm=0)
        reduce(RA, XR, 0)
        e("s_barrier")
        stamp(e, opt, "ypoll")
        e.vm = []
        loads(RB, 54, "rb")
        reduce(RB, XR + 4, 512)
        e("s_branch M_DONE")
        e.label("M_W3")
        spin(e, "M_PB", VP, V_FO, 55)
        e("s_barrier")
        stamp(e, opt, "ypoll")
        reduce(RA, XR, 0)
        e.label("M_DONE")
        stamp(e, opt, 5)
        stamp(e, opt, "end")
        stamp_flush(e, opt, 0, S_WS, 6)

    aopt = dict(opt)
    aopt["code_pf"] = not opt.get("no_cpf")
    aopt["stash"] = HS
    if not opt.get("sp"):
        aopt["sp"] = ["none"]
        aopt["spk"] = ""
    asegs, atraces = attn.gen_attn(e, aopt, "M_END", finish, hooks)
    z = Seg("m_z")
    z.label("M_CODE_END")
    segs += asegs + extra + [z]
    for t in traces[1:]:
        t.append(e)
    traces += atraces + [[tails[0], fb, e]] + [[x] for x in extra]
    return segs, traces
```

```python
from emit import *
from common import *

LDS_BYTES = 160 * 1024
S_WS, S_WO, S_W2, S_Y1 = 16, 8, 12, 28
V_L16, V_PD = 1, 2
V_DMA, V_DMA2 = 3, 4
V_L0, V_L1, V_VA, V_HA, V_D0, V_NEGBIG, V_MAX, V_MS = 8, 9, 10, 11, 13, 14, 15, 16
V_T = 18
V_S = (32, 48)
V_P = (64, 72)
V_NM = 80
V_X = 96
V_O = 128
A_Q, A_Q2, A_F, A_HF = 0, 64, 128, 192
S_HEAD, S_QT, S_NH, S_IT, S_T, S_RET, S_DELTA, S_ITH, S_OFFH, S_OFFD = 32, 33, 34, 35, 36, 37, 38, 39, 40, 41
S_KVB, S_W4K, S_PAIR, S_ITSW, S_ITSIG, S_PEND = 42, 43, 48, 49, 50, 51
S_OFF = 44
THR = 16.0
VSLOT = {32: 0x20000, 33: 0x24000}
S_NEG, S_QS, S_PFO, S_PFD = 52, 82, 83, 84
V_KP = 12
KPD = 7
KVM = [""]


def setup_s(e):
    e(f"s_lshl_b32 s4, s{S_QT}, 2")
    e(f"s_sub_u32 s{S_NH}, 30, s4")
    e(f"s_sub_u32 s6, 15, s{S_QT}")
    e(f"s_cmp_ge_u32 s{S_QT}, 8")
    e(f"s_cselect_b32 s{S_NH}, 0, s{S_NH}")
    e(f"s_cselect_b32 s{S_PAIR}, s6, s{S_QT}")
    e(f"s_lshl_b32 s5, s{S_HEAD}, 3")
    e(f"s_add_u32 s{S_PAIR}, s{S_PAIR}, s5")
    e(f"s_lshl_b32 s{S_W4K}, s3, 12")
    e(f"s_lshl_b32 s{S_KVB}, s{S_HEAD}, 21")
    e(f"s_sub_u32 s5, 29, s{S_NH}")
    e("s_lshl_b32 s5, s5, 15")
    e(f"s_add_u32 s{S_OFFH}, s5, s{S_KVB}")
    e("s_lshl_b32 s5, s4, 15")
    e(f"s_add_u32 s{S_OFFD}, s5, s{S_KVB}")
    e(f"s_sub_u32 s5, s{S_NH}, 6")
    e("s_lshr_b32 s5, s5, 2")
    e(f"s_cmp_ge_u32 s{S_NH}, 6")
    e(f"s_cselect_b32 s{S_ITH}, s5, 99")
    e(f"s_lshr_b32 s5, s{S_NH}, 2")
    e(f"s_cmp_ge_u32 s{S_QT}, 8")
    e(f"s_cselect_b32 s{S_ITSW}, 99, s5")
    e(f"s_mov_b32 s{S_ITSIG}, s{S_ITSW}")
    e("s_cmp_eq_u32 s3, 0")
    e(f"s_cselect_b32 s{S_ITSIG}, s{S_ITSIG}, 99")
    e(f"s_mov_b32 s{S_NEG}, 0xffff8000")
    e(f"s_mov_b32 s{S_PEND}, 0")
    e(f"s_mov_b32 s{S_IT}, 0")
    e(f"s_mov_b32 s{S_T}, {f32(THR)}")


def setup_dma(e):
    e(f"v_lshlrev_b32 v{V_L16}, 4, v0")
    e(f"v_add_u32 v{V_DMA}, s{S_W4K}, v{V_L16}")
    e(f"v_add_u32 v{V_DMA2}, 0x4000, v{V_DMA}")


def setup_v(e):
    e(f"s_mul_i32 s5, s{S_QT}, 112")
    e("s_mul_i32 s6, s3, 28")
    e("s_add_u32 s5, s5, s6")
    e(f"v_min_u32 v{V_T}, 27, v0")
    e(f"v_add_u32 v{V_T}, s5, v{V_T}")
    e(f"s_mul_i32 s5, s{S_HEAD}, 229376")
    e(f"v_lshl_add_u32 v{V_X+1}, v{V_T}, 7, s5")
    e("s_mul_i32 s6, s3, 13")
    e(f"v_min_u32 v{V_T}, 12, v0")
    e(f"v_add_u32 v{V_T}, s6, v{V_T}")
    e(f"v_min_u32 v{V_T}, 48, v{V_T}")
    e(f"s_mul_i32 s5, s{S_QT}, 49")
    e(f"v_add_u32 v{V_T}, s5, v{V_T}")
    e(f"s_mul_i32 s5, s{S_HEAD}, 100352")
    e(f"v_lshl_add_u32 v{V_X+2}, v{V_T}, 7, s5")
    e(f"v_add_u32 v{V_VA}, 0x10000, v{V_L16}")
    e(f"v_and_b32 v{V_T}, 31, v0")
    e(f"v_lshrrev_b32 v{V_T+1}, 5, v0")
    e(f"v_lshlrev_b32 v{V_T+1}, 2, v{V_T+1}")
    e(f"v_sub_u32 v{V_D0}, v{V_T}, v{V_T+1}")
    e(f"v_mov_b32 v{V_NEGBIG}, {f32(-1e30)}")
    e(f"s_mov_b32 s{S_QS}, {f32(QSCALE)}")
    e(f"s_and_b32 s5, s{S_QT}, 7")
    e("s_lshl_b32 s5, s5, 2")
    e("s_add_u32 s5, s5, s3")
    e("s_lshl_b32 s5, s5, 10")
    e(f"v_and_b32 v{V_T}, 7, v0")
    e(f"v_lshl_add_u32 v{V_KP}, v{V_T}, 7, s5")
    e(f"v_bfe_u32 v{V_T}, v0, 3, 2")
    e(f"v_lshl_add_u32 v{V_KP}, v{V_T}, 15, v{V_KP}")
    e(f"s_cmp_ge_u32 s{S_QT}, 8")
    e(f"s_cselect_b32 s{S_PFO}, {29 - KPD - 3}, {30 + KPD}")
    e(f"s_cselect_b32 s{S_PFD}, -4, 4")
    e("s_mul_i32 s5, s3, 7168")
    e("s_add_u32 s5, s5, 0x20000")
    e(f"v_add_u32 v{V_HA}, s5, v{V_L16}")


def idx_ops(dst, n):
    return [
        f"s_mov_b32 s{dst}, {(29-n) << 15}",
        f"s_cmp_gt_u32 s{S_NH}, {n}",
        f"s_cselect_b32 s{dst}, {(30+n) << 15}, s{dst}",
        f"s_add_u32 s{dst}, s{dst}, s{S_KVB}",
    ]


def dmaK(slot, off, tag="dma", S_WS=S_WS):
    return [f"s_add_u32 m0, s{S_W4K}, {slot*16384}"] + [
        (f"buffer_load_dwordx4 v{V_DMA}, s[{S_WS}:{S_WS+3}], s{off} offen offset:{j*1024}{KVM[0]} lds", tag) for j in range(4)]


def dmaV(base, off, tag="dma", S_WS=S_WS):
    return [f"s_add_u32 m0, s{S_W4K}, {base}"] + [
        (f"buffer_load_dwordx4 v{V_DMA2}, s[{S_WS}:{S_WS+3}], s{off} offen offset:{j*1024}{KVM[0]} lds", tag) for j in range(4)]


def first_loads(sr=S_WS):
    out = [[idx_ops(S_OFF + n, n)] for n in range(4)]
    seq = [out[0] + dmaK(0, S_OFF + 0, "k0", sr), dmaV(0x10000, S_OFF + 0, "v0", sr), out[1] + dmaK(1, S_OFF + 1, "k1", sr),
           dmaV(0x14000, S_OFF + 1, "v1", sr), out[2] + dmaK(2, S_OFF + 2, "k2", sr), out[3] + dmaK(3, S_OFF + 3, "k3", sr)]
    return seq


def init_state(e, o_from=V_O):
    for r in range(o_from, V_O + 128, 2):
        e(f"v_mov_b64 {v(r,2)}, 0")
    for r in range(0, 16, 2):
        e(f"v_mov_b64 {v(V_NM+r,2)}, 0")
    e(f"v_mov_b64 {v(V_L0,2)}, 0")


def gen_attn(e, opt, end_label, finish=None, hooks=None):
    D = opt.get("a_depth", 14)
    WG = opt.get("a_waitgrp", 4)
    YM = opt.get("y_store_mod", "")
    KPF = 1 if opt.get("kpf") else 0
    NEPF = 0 if opt.get("no_epf") else (3 if opt.get("code_pf") else 2)

    def rd(f, kslot, vbase):
        d = a(A_F + (f % 16) * 4, 4)
        if f < 16:
            return f"ds_read_b128 {d}, v{V_L16} offset:{kslot*16384 + f*1024}"
        g, dt = divmod(f - 16, 8)
        return f"ds_read_b128 {d}, v{V_VA} offset:{vbase + (dt*2+g)*1024}"

    def mf(f, par):
        fr = a(A_F + (f % 16) * 4, 4)
        if f < 16:
            S = v(V_S[par ^ 1], 16)
            C = v(V_NM, 16) if f == 0 else S
            return f"{MFMA} {S}, {fr}, {a(A_Q+4*f,4)}, {C}"
        g, dt = divmod(f - 16, 8)
        O = v(V_O + dt * 16, 16)
        return f"{MFMA} {O}, {fr}, {v(V_P[par]+4*g,4)}, {O}"

    def max_ops(par):
        S = V_S[par]
        t = V_T
        ops = [f"v_max3_f32 v{t+k}, v{S+3*k}, v{S+3*k+1}, v{S+3*k+2}" for k in range(5)]
        ops += [f"v_max3_f32 v{t}, v{t}, v{t+1}, v{t+2}", f"v_max3_f32 v{t+3}, v{t+3}, v{t+4}, v{S+15}",
                f"v_max_f32 v{V_MAX}, v{t}, v{t+3}", f"v_cmp_lt_f32 vcc, s{S_T}, v{V_MAX}"]
        return ops

    def soft_ops(par):
        S, P = V_S[par], V_P[par]
        ops = []
        for k in range(9):
            if k < 8:
                ops += [f"v_exp_f32 v{S+2*k}, v{S+2*k}", f"v_exp_f32 v{S+2*k+1}, v{S+2*k+1}"]
            if k > 0:
                j = k - 1
                ops += [f"v_cvt_pk_bf16_f32 v{P+j}, v{S+2*j}, v{S+2*j+1}",
                        f"v_add_f32 v{V_L0}, v{V_L0}, v{S+2*j}", f"v_add_f32 v{V_L1}, v{V_L1}, v{S+2*j+1}"]
        return ops

    def mask_ops(par, t):
        S = V_S[par]
        ops = [[f"s_sub_u32 s54, {t}, s3", "s_lshl_b32 s54, s54, 5", f"v_subrev_u32 v{V_X}, s54, v{V_D0}"]]
        for h in range(4):
            for r in range(4 * h, 4 * h + 4):
                ops.append(f"v_cmp_le_i32 s[{64+2*(r%8)}:{65+2*(r%8)}], {8*(r>>2)+(r&3)}, v{V_X}")
            if h > 0:
                for r in range(4 * h - 4, 4 * h):
                    ops.append(f"v_cndmask_b32 v{S+r}, v{V_NEGBIG}, v{S+r}, s[{64+2*(r%8)}:{65+2*(r%8)}]")
        ops.append("s_nop 0")
        for r in range(12, 16):
            ops.append(f"v_cndmask_b32 v{S+r}, v{V_NEGBIG}, v{S+r}, s[{64+2*(r%8)}:{65+2*(r%8)}]")
        return ops

    def waits(fill, lo, hi, shift=0):
        for f in range(lo, hi, WG):
            r = a(A_F + ((f + WG - 1) % 16) * 4, 4)
            fill.setdefault(f - 1 - shift, []).append(lambda e, r=r: wait_reg(e, r))

    def place(fill, ops, g0, step=2):
        fill.setdefault(g0, []).append(ops[0])
        for j, d in enumerate(ops[1:]):
            fill.setdefault(g0 + 1 + step * j, []).append(d)

    rare_sites = {0: [], 1: []}
    stubs = Seg("a_stubs")

    def rare_check(e, par, name):
        k = len(rare_sites[par])
        rare_sites[par].append(name)
        e(f"s_cbranch_vccnz A_ST_{name}")
        e.label(f"A_RET_{name}")
        stubs.label(f"A_ST_{name}")
        stubs(f"s_mov_b32 s{S_RET}, {k}")
        stubs(f"s_branch A_RARE{par}")

    V_EV, V_EA = V_X + 4, V_X + 8

    def e_setup():
        ops = ["v_lshrrev_b32 v24, 3, v0", "v_mul_u32_u24 v24, 896, v24", "v_bfe_u32 v25, v0, 2, 1", "v_bfe_u32 v26, v0, 4, 1",
               "v_xor_b32 v25, v25, v26", "v_lshl_add_u32 v24, v25, 6, v24", "v_and_b32 v25, 3, v0",
               f"v_lshl_add_u32 v{V_EV}, v25, 4, v24"]
        ops += [f"v_add_u32 v{V_EV+j}, {j*7168 - j*1024}, v{V_EV}" for j in range(1, 4)]
        ops += [f"s_mul_i32 s56, s{S_HEAD}, 229376", "s_mul_i32 s4, s3, 57344", "s_add_u32 s56, s56, s4",
                f"s_mul_i32 s57, s{S_HEAD}, 100352", "s_mul_i32 s4, s3, 28672", "s_add_u32 s57, s57, s4",
                "s_lshl_b32 s60, s3, 13"]
        ops += ["v_lshrrev_b32 v24, 5, v0", "v_bfe_u32 v25, v0, 2, 2", "v_lshl_add_u32 v24, v24, 2, v25", "v_lshlrev_b32 v24, 7, v24",
                "v_lshl_add_u32 v24, v26, 5, v24", "v_and_b32 v25, 3, v0", "v_lshl_add_u32 v24, v25, 3, v24", "v_bfe_u32 v25, v0, 3, 1",
                f"v_lshl_add_u32 v{V_EA}, v25, 6, v24", f"v_xor_b32 v{V_EA+1}, 64, v{V_EA}"]
        ops += [f"s_lshl_b32 s62, s{S_HEAD}, 6", f"s_lshl_b32 s4, s{S_QT}, 2", "s_add_u32 s62, s62, s4", "s_add_u32 s62, s62, s3",
                "s_mul_i32 s62, s62, 28672", f"s_add_u32 s62, s62, {Y_OFF}"]
        return ops

    def e_dma(tag="edma"):
        ops = []
        for grp in range(2):
            ops.append(["s_add_u32 s61, s58, s60", f"s_add_u32 m0, s61, {grp*4096}", f"s_add_u32 s61, s56, {grp*32*896}"])
            for j in range(4):
                ops.append((f"buffer_load_dwordx4 v{V_EV+j}, s[{S_WO}:{S_WO+3}], s61 offen offset:{j*1024} lds", tag))
        ops.append([f"s_add_u32 m0, s59, s{S_W4K}", "s_add_u32 s56, s56, 128"])
        for j in range(4):
            ops.append((f"buffer_load_dwordx4 v{V_EV+j}, s[{S_W2}:{S_W2+3}], s57 offen offset:{j*1024} lds", tag))
        ops.append("s_add_u32 s57, s57, 128")
        return ops

    EO = (0x8000, 0x14000, 0x20000)
    E2 = (0x10000, 0x1c000, 0x0)

    e.wait_tag("q")
    e.wait_tag("k0")
    e.wait(lgkm=0)
    e("s_barrier")
    HS = opt["stash"]
    for k in range(7):
        e(f"ds_write_b128 v{V_HA}, {v(HS+4*k,4)} offset:{k*1024}")
    for f in range(D):
        e(rd(f, 0, 0))
    spine = [mf(f, 1) for f in range(16)]
    fill = {}
    waits(fill, 0, 16)
    for f in range(16):
        nf = f + D
        if nf == 16:
            fill.setdefault(f, []).extend([lambda e: e.wait_tag("k1"), lambda e: e.wait(lgkm=0), "s_barrier"])
        fill.setdefault(f, []).append(rd(nf % 16, 0 if nf < 16 else 1, 0))
    weave(e, spine, fill)
    run(e, idx_ops(S_OFF + 0, 4))
    e(f"s_cmp_gt_u32 s{S_NH}, 4")
    e(f"s_cselect_b32 s{S_DELTA}, 0x8000, s{S_NEG}")
    run(e, dmaK(0, S_OFF + 0))
    run(e, max_ops(0))
    stamp(e, opt, 1, raw=True)
    stamp(e, opt, "a_loop", raw=True)
    e(f"s_mov_b32 s{S_RET}, 0")
    e("s_branch A_FIRST")
    pro = e
    stateL, stateV = list(e.lds), [("dma", frozenset())] * 63

    def step(e, p, n=None):
        par = p & 1
        nm = f"L{p}" if n is None else f"P{n}"
        if p == 1:
            e(f"s_cmp_eq_u32 s{S_IT}, s{S_ITSW}")
            e(f"s_cbranch_scc1 A_SW1")
            e.label(f"A_SW1_RET_{nm}")
        spine = [mf(f, par) for f in range(32)]
        fill = {}
        waits(fill, 0, 32)
        vb = p * 16384 if n not in VSLOT else VSLOT[n] - 0x10000
        gb = 32 - D
        if n == 32:
            fill.setdefault(-1, []).append(f"v_add_u32 v{V_VA}, 0x10000, v{V_VA}")
            vb = 0
        for f in range(32):
            nf = f + D
            if nf == 32 and (n is None or n <= 30):
                vm = (8 + (NEPF if p in (0, 3) else 0) + (KPF if (p in (0, 1) and n is None) else 0)) if (n is None or n < 29) else (16 if n == 29 else 0)
                if n is None and p == 2:
                    fill.setdefault(f, []).extend([f"s_cmp_eq_u32 s{S_IT}, s{S_ITSW}", "s_cbranch_scc1 A_ALTW",
                                                   lambda e, vm=vm: e.wait_force(vm=vm), "A_ALTW_RET:", "s_barrier"])
                else:
                    fill.setdefault(f, []).extend([lambda e, vm=vm: e.wait_force(vm=vm), "s_barrier"])
            if nf < 32:
                fill.setdefault(f, []).append(rd(nf, (p + 1) % 4, vb))
            elif n != 32:
                fill.setdefault(f, []).append(rd(nf - 32, (p + 2) % 4, 0))
        if n is None or n <= 29:
            place(fill, dmaV(0x10000 + ((p + 2) % 4) * 16384, S_OFF + (p + 2) % 4), 0)
        if n is None or n <= 28:
            o = [f"s_add_u32 s{S_OFF+(p+1)%4}, s{S_OFF+p}, s{S_DELTA}"]
            if p == 1:
                d = S_OFF + 2
                o += [[f"s_cmp_eq_u32 s{S_IT}, s{S_ITH}", f"s_cselect_b32 s{d}, s{S_OFFH}, s{d}", f"s_cselect_b32 s{S_DELTA}, s{S_NEG}, s{S_DELTA}"],
                      [f"s_cmp_eq_u32 s{S_IT}, 6", f"s_cselect_b32 s{d}, s{S_OFFD}, s{d}", f"s_cselect_b32 s{S_DELTA}, 0x8000, s{S_DELTA}"]]
            else:
                pass
            place(fill, dmaK((p + 1) % 4, S_OFF + (p + 1) % 4), gb, 3)
            pour(fill, o, 9, gb)
        if n == 29:
            place(fill, dmaV(VSLOT[32], S_OFF + 0), 8, 1)
            place(fill, dmaV(VSLOT[33], S_OFF + 1), 13, 1)
        if n == 28:
            pour(fill, e_setup(), 9, 31)
        if n == 30:
            fill.setdefault(gb, []).extend([f"s_mov_b32 s58, {EO[0]}", f"s_mov_b32 s59, {E2[0]}"])
            pour(fill, e_dma("e0"), gb + 1, 32)
        if n is None and p == 3:
            fill.setdefault(gb + 2, []).extend([f"s_cmp_eq_u32 s{S_IT}, s{S_ITSIG}", "s_cbranch_scc1 A_SIG", "A_SIG_RET:"])
        if n is None and p == 2:
            fill.setdefault(9, []).extend([f"s_cmp_eq_u32 s{S_IT}, 1", "s_cbranch_scc1 A_KV2L", "A_KV2L_RET:"])
            fill.setdefault(gb + 2, []).extend([f"s_or_b32 s53, s{S_IT}, s3", "s_cbranch_scc0 A_KV2S", "A_KV2S_RET:"])
        if n == 31:
            fill.setdefault(2, []).extend([lambda e: flag_line(e, 55, FL_PAIR, S_PAIR), f"v_mov_b32 v{V_X+12}, 8"])
            fill.setdefault(4, []).append((f"buffer_load_dwordx2 {v(V_X+14,2)}, v{V_X+12}, s[{S_WS}:{S_WS+3}], s55 offen sc1", "ep"))
        if n is None and p == 0 and KPF:
            fill.setdefault(9, []).append([f"s_max_i32 s53, s{S_PFO}, 0", "s_min_i32 s53, s53, 60", "s_lshl_b32 s53, s53, 15",
                                           f"s_add_u32 s53, s53, s{S_KVB}"])
            fill.setdefault(11, []).append((f"buffer_load_dword v{V_PD}, v{V_KP}, s[{S_WS}:{S_WS+3}], s53 offen", "pf"))
            fill.setdefault(12, []).append(f"s_add_i32 s{S_PFO}, s{S_PFO}, s{S_PFD}")
        if n is None and p == 3 and NEPF:
            fill.setdefault(10, []).append((f"buffer_load_dword v{V_PD}, v{V_X+1}, s[{S_WO}:{S_WO+3}], 0 offen", "pf"))
            fill.setdefault(12, []).append((f"buffer_load_dword v{V_PD}, v{V_X+2}, s[{S_W2}:{S_W2+3}], 0 offen", "pf"))
            if NEPF == 3:
                fill.setdefault(14, []).append((f"global_load_dword v{V_PD}, v{V_X+3}, s[80:81]", "pf"))
        if n is None:
            RW, X_, T_, OU = V_X + 24, V_X + 28, V_T + 6, V_T + 10
            h = p >> 1
            if p == 0:
                fill.setdefault(0, []).append(f"ds_read_b128 {v(RW,4)}, v{V_HA}")
            if p % 2 == 0:
                sl = []
                for r in range(2):
                    sl += [f"v_lshlrev_b32 v{X_+2*r}, 16, v{RW+2*h+r}", f"v_and_b32 v{X_+2*r+1}, 0xffff0000, v{RW+2*h+r}"]
                sl += [f"v_mul_f32 v{T_+r}, {f32(-1.4426950408889634 / QSCALE)}, v{X_+r}" for r in range(4)]
                sl += [f"v_exp_f32 v{T_+r}, v{T_+r}" for r in range(4)]
            else:
                sl = [f"v_fma_f32 v{T_+r}, v{T_+r}, s{S_QS}, s{S_QS}" for r in range(4)]
                sl += [f"v_rcp_f32 v{T_+r}, v{T_+r}" for r in range(4)]
                sl += [f"v_mul_f32 v{T_+r}, v{T_+r}, v{X_+r}" for r in range(4)]
                sl += [f"v_cvt_pk_bf16_f32 v{OU+2*h+r}, v{T_+2*r}, v{T_+2*r+1}" for r in range(2)]
                if p == 3:
                    sl += [f"ds_write_b128 v{V_HA}, {v(OU,4)}", f"v_add_u32 v{V_HA}, 0x400, v{V_HA}"]
            silu = sl
        else:
            silu = []
        if n == 28:
            fill.setdefault(-1, []).append(f"v_subrev_u32 v{V_HA}, 0x1c00, v{V_HA}")
            for k in range(7):
                fill.setdefault(k, []).append(f"ds_read_b128 {a(A_HF+4*k,4)}, v{V_HA} offset:{k*1024}")
        so = soft_ops(par)
        mo = (mask_ops(par ^ 1, n - 29) if n is not None and n >= 29 else []) + max_ops(par ^ 1)
        sa = [x for x in so if not x.startswith("v_add")]
        pour(fill, sa[:14], 0, 13)
        pour(fill, sa[14:], 13, 23)
        pour(fill, mo, 19 if len(mo) > 9 else 21, 32)
        pour(fill, silu, 14 if p == 0 else 0, 17 if p == 3 else 32)
        for x in so:
            if x.startswith("v_add"):
                src = x.split(",")[-1].strip()
                g0 = [g for g in fill for y in fill[g] if isinstance(y, str) and y.startswith(f"v_exp_f32 {src},")][0]
                g = min(range(g0 + 1, 32), key=lambda g: (load_of(fill, g), g))
                fill[g].append(x)
        if n is None:
            def drop(pred):
                for g in fill:
                    fill[g] = [x for x in fill[g] if not pred(x)]
            txt = lambda x: x[0] if isinstance(x, tuple) else (x if isinstance(x, str) else "")
            if opt.get("x_nobar"):
                drop(lambda x: txt(x) == "s_barrier")
            if opt.get("x_nodma"):
                drop(lambda x: " lds" in txt(x))
            if opt.get("x_novalu"):
                drop(lambda x: txt(x).startswith(("v_exp", "v_add_f32", "v_cvt", "v_max", "v_mul", "v_rcp", "v_fma", "v_lshl", "v_and")))
            if opt.get("x_noexp"):
                for g in fill:
                    fill[g] = [x.replace("v_exp_f32", "v_mov_b32").replace("v_rcp_f32", "v_mov_b32") if isinstance(x, str) else x for x in fill[g]]
        if opt.get("verbose"):
            print(gap_report(f"step {nm}", fill, 32), [load_of(fill, g) for g in range(32)])
        weave(e, spine, fill)
        if p == 1:
            e(f"s_cmp_eq_u32 s{S_IT}, s{S_ITSW}")
            e("s_cbranch_scc1 A_SW2")
        rare_check(e, par, nm)

    lp = Seg("a_loop", stateL, stateV)
    lp.label("A_LOOP")
    for p in range(4):
        step(lp, p)
    lp(f"s_add_u32 s{S_IT}, s{S_IT}, 1")
    lp(f"s_cmp_eq_u32 s{S_IT}, 2")
    lp("s_cbranch_scc1 A_KV2C")
    lp(f"s_cmp_lt_u32 s{S_IT}, 7")
    lp("s_cbranch_scc1 A_LOOP")
    stamp(lp, opt, "a_lend", raw=True)
    assert lp.lds == stateL

    peel = {}
    for n in range(28, 33):
        sg = Seg(f"a_p{n}", stateL, stateV)
        step(sg, n % 4, n)
        if n == 31:
            sg(f"s_cmp_ge_u32 s{S_QT}, 8")
            sg("s_cbranch_scc1 A_EARLY")
            sg.label("A_EARLY_RET")
        if n >= 29 and n < 32:
            sg(f"s_cmp_eq_u32 s3, {n-29}")
            sg(f"s_cbranch_scc1 A_TAILW{n-29}")
        peel[n] = sg

    def signal(e):
        flag_line(e, 55, FL_PAIR, S_PAIR)
        flag_set(e, S_WS, 55, 1, V_X + 12)
        e(f"s_mov_b32 s{S_PEND}, 0")

    def tail_body(e, par):
        e.wait(lgkm=0)
        for f in range(16, 16 + D):
            e(rd(f, 0, 0))
        so = soft_ops(par)
        run(e, so[:22])
        spine = [mf(f, par) for f in range(16, 32)]
        fill = {}
        waits(fill, 16, 32, 16)
        for f in range(16, 32):
            if f + D < 32:
                fill.setdefault(f - 16, []).append(rd(f + D, 0, 0))
        pour(fill, so[22:], 0, 7)
        weave(e, spine, fill)

    t3 = Seg("a_tail1", stateL, stateV)
    t3(f"v_add_u32 v{V_VA}, 0x4000, v{V_VA}")
    t3.label("A_TAIL1")
    tail_body(t3, 1)
    t3.label("A_FIN")
    t0 = Seg("a_tail0", stateL, stateV)
    t0.label("A_TAILW0")
    t0(f"v_add_u32 v{V_VA}, 0x8000, v{V_VA}")
    t0("s_branch A_TAIL0")
    t0.label("A_TAILW1")
    t0(f"v_add_u32 v{V_VA}, 0xc000, v{V_VA}")
    t0("s_branch A_TAIL1")
    t0.label("A_TAILW2")
    t0(f"v_add_u32 v{V_VA}, 0x10000, v{V_VA}")
    t0.label("A_TAIL0")
    tail_body(t0, 0)
    t0("s_cmp_lg_u32 s3, 0")
    t0("s_cbranch_scc1 A_FIN")
    t0.wait_force(vm=0)
    t0("s_barrier")
    t0(f"s_mov_b32 s58, {EO[0]}")
    t0(f"s_mov_b32 s59, {E2[0]}")
    run(t0, e_dma("e0"))
    t0(f"s_cmp_eq_u32 s{S_PEND}, 0")
    t0("s_cbranch_scc1 A_FIN")
    signal(t0)
    t0("s_branch A_FIN")

    def ret_chain(e, names):
        for k, nm in enumerate(names[:-1]):
            e(f"s_cmp_eq_u32 s{S_RET}, {k}")
            e(f"s_cbranch_scc1 A_RET_{nm}")
        e(f"s_branch A_RET_{names[-1]}")

    def rare(par):
        e = Seg(f"a_rare{par}", stateL, stateV)
        e.label(f"A_RARE{par}")
        S = V_S[par ^ 1]
        t = V_T
        e(f"v_mov_b32 v{t}, v{V_MAX}")
        e.nop(2)
        e(f"v_permlane32_swap_b32 v{V_MAX}, v{t}")
        e(f"v_max3_f32 v{t}, v{V_MAX}, v{t}, 0")
        e(f"v_exp_f32 v{t+1}, -v{t}")
        for r in range(16):
            e(f"v_sub_f32 v{S+r}, v{S+r}, v{t}")
        for r in range(16):
            e(f"v_sub_f32 v{V_NM+r}, v{V_NM+r}, v{t}")
        e(f"v_mul_f32 v{V_L0}, v{V_L0}, v{t+1}")
        e(f"v_mul_f32 v{V_L1}, v{V_L1}, v{t+1}")
        for r in range(128):
            e(f"v_mul_f32 v{V_O+r}, v{V_O+r}, v{t+1}")
        ret_chain(e, rare_sites[par])
        return e

    r0, r1 = rare(0), rare(1)

    fs = Seg("a_first", stateL, stateV)
    e = fs
    e.label("A_FIRST")
    t = V_T
    e(f"v_mov_b32 v{t}, v{V_MAX}")
    e.nop(2)
    e(f"v_permlane32_swap_b32 v{V_MAX}, v{t}")
    e(f"v_max_f32 v{t}, v{V_MAX}, v{t}")
    for r in range(16):
        e(f"v_sub_f32 v{V_S[0]+r}, v{V_S[0]+r}, v{t}")
    for r in range(16):
        e(f"v_sub_f32 v{V_NM+r}, 0, v{t}")
    e(f"s_cmp_eq_u32 s{S_RET}, 0")
    e("s_cbranch_scc1 A_LOOP")
    e(f"s_cmp_eq_u32 s{S_IT}, 7")
    e("s_cbranch_scc1 A_RET_P29")
    e("s_branch A_RET_L1")

    sw1 = Seg("a_sw1", stateL, stateV)
    e = sw1
    e.label("A_SW1")
    for r in range(64):
        e(f"v_accvgpr_mov_b32 a{A_Q+r}, a{A_Q2+r}")
    e(f"v_mov_b32 v{V_MS}, v{V_NM}")
    for r in range(0, 16, 2):
        e(f"v_mov_b64 {v(V_NM+r,2)}, 0")
    e(f"s_cmp_eq_u32 s{S_IT}, 7")
    e("s_cbranch_scc1 A_SW1_RET_P29")
    e("s_branch A_SW1_RET_L1")

    def part_addr(e):
        e(f"s_lshl_b32 s54, s{S_PAIR}, 2")
        e("s_add_u32 s54, s54, s3")
        e("s_lshl_b32 s55, s54, 9")
        e(f"s_add_u32 s55, s55, {ML_OFF}")
        e("s_lshl_b32 s54, s54, 14")
        e(f"s_add_u32 s54, s54, {OP_OFF}")

    sw2 = Seg("a_sw2", stateL, stateV)
    e = sw2
    e.label("A_SW2")
    part_addr(e)
    t = V_X + 12
    e(f"v_add_f32 v{V_L0}, v{V_L0}, v{V_L1}")
    e(f"v_lshrrev_b32 v{t+2}, 2, v{V_L16}")
    e(f"buffer_store_dword v{V_MS}, v{t+2}, s[{S_WS}:{S_WS+3}], s55 offen sc1")
    e(f"buffer_store_dword v{V_L0}, v{t+2}, s[{S_WS}:{S_WS+3}], s55 offen offset:256 sc1")
    for k in range(16):
        if k and k % 4 == 0:
            e("s_add_u32 s54, s54, 4096")
        u = t + 4 + (k % 2) * 4
        for r in range(4):
            o = V_O + 8 * k + 2 * r
            e(f"v_cvt_pk_bf16_f32 v{u+r}, v{o}, v{o+1}")
        for r in range(4):
            e(f"v_mov_b64 {v(V_O+8*k+2*r,2)}, 0")
        e(f"buffer_store_dwordx4 {v(u,4)}, v{V_L16}, s[{S_WS}:{S_WS+3}], s54 offen offset:{(k%4)*1024} sc1")
    e(f"v_mov_b64 {v(V_L0,2)}, 0")
    e(f"s_mov_b32 s{S_PEND}, 1")
    e(f"s_mov_b32 s{S_RET}, 1")
    e("s_branch A_FIRST")

    sig = Seg("a_sig", stateL, stateV)
    sig.label("A_SIG")
    signal(sig)
    sig("s_branch A_SIG_RET")
    S_HA, S_SLOT, V_FO = opt["kv2"]
    sig.label("A_KV2S")
    flag_line(sig, 55, FL_KV2, S_HA)
    flag_set(sig, S_WS, 55, f"s{S_SLOT}", V_X + 12)
    sig("s_branch A_KV2S_RET")
    sig.label("A_KV2L")
    flag_line(sig, 85, FL_KV2, S_HEAD)
    sig.raw(f"buffer_load_dwordx2 v[6:7], v{V_FO}, s[{S_WS}:{S_WS+3}], s85 offen sc1", "pf")
    sig("s_branch A_KV2L_RET")
    sig.label("A_KV2C")
    sig.wait_force(vm=8)
    sig("s_mov_b32 s53, 0")
    sig.label("A_KV2P")
    flag_test(sig, 6)
    sig("s_cbranch_scc1 A_LOOP")
    sig("s_sleep 2")
    sig(f"buffer_load_dwordx2 v[6:7], v{V_FO}, s[{S_WS}:{S_WS+3}], s85 offen sc1")
    sig.wait_force(vm=0)
    sig("s_add_u32 s53, s53, 1")
    sig(f"s_cmp_lt_u32 s53, {opt.get('poll_max', 200000)}")
    sig("s_cbranch_scc1 A_KV2P")
    sig("s_branch A_LOOP")
    sig.label("A_ALTW")
    sig.wait_force(vm=26)
    sig("s_branch A_ALTW_RET")

    e = Seg("a_fin", [], stateV)
    stamp(e, opt, 2)
    stamp(e, opt, "a_fin")
    t = V_T
    CT = V_S[0]
    e(f"v_add_f32 v{V_L0}, v{V_L0}, v{V_L1}")
    e(f"s_cmp_ge_u32 s{S_QT}, 8")
    e("s_cbranch_scc1 A_MERGE")
    e(f"v_mov_b32 v{t}, v{V_L0}")
    e.nop(2)
    e(f"v_permlane32_swap_b32 v{V_L0}, v{t}")
    e(f"v_add_f32 v{V_L0}, v{V_L0}, v{t}")
    e(f"v_rcp_f32 v{t}, v{V_L0}")
    e.nop(1)
    e(f"v_mov_b32 v{t+1}, v{t}")
    e.nop(4)
    for k in range(64):
        e(f"v_pk_mul_f32 {v(V_O+2*k,2)}, {v(V_O+2*k,2)}, {v(t,2)}")
        if k:
            e(f"v_cvt_pk_bf16_f32 v{CT+k-1}, v{V_O+2*k-2}, v{V_O+2*k-1}")
    e(f"v_cvt_pk_bf16_f32 v{CT+63}, v{V_O+126}, v{V_O+127}")
    e("s_branch A_EPI")
    fin = e

    ML = V_X + 16

    def part_loads(e):
        part_addr(e)
        e(f"v_lshrrev_b32 v{V_X+12}, 2, v{V_L16}")
        e(f"buffer_load_dword v{ML}, v{V_X+12}, s[{S_WS}:{S_WS+3}], s55 offen sc1")
        e(f"buffer_load_dword v{ML+1}, v{V_X+12}, s[{S_WS}:{S_WS+3}], s55 offen offset:256 sc1")
        for k in range(16):
            if k and k % 4 == 0:
                e("s_add_u32 s54, s54, 4096")
            e(f"buffer_load_dwordx4 {a(A_Q2+4*k,4)}, v{V_L16}, s[{S_WS}:{S_WS+3}], s54 offen offset:{(k%4)*1024} sc1")

    early = Seg("a_early", stateL, peel[31].vm)
    e = early
    e.label("A_EARLY")
    flag_test(e, V_X + 14)
    e("s_cbranch_scc0 A_EARLY_RET")
    part_loads(e)
    e(f"s_mov_b32 s{S_PEND}, 2")
    e("s_branch A_EARLY_RET")

    mg = Seg("a_merge", [], stateV)
    e = mg
    e.label("A_MERGE")
    e(f"s_cmp_eq_u32 s{S_PEND}, 2")
    e("s_cbranch_scc1 A_HAVE")
    flag_line(e, 55, FL_PAIR, S_PAIR)
    e(f"v_mov_b32 v{t}, 8")
    e("s_mov_b32 s53, 0")
    e.label("A_POLL")
    e(f"buffer_load_dwordx2 {v(t+2,2)}, v{t}, s[{S_WS}:{S_WS+3}], s55 offen sc1")
    e.wait_force(vm=0)
    flag_test(e, t + 2)
    e("s_cbranch_scc1 A_POLL_OK")
    e("s_sleep 4")
    e("s_add_u32 s53, s53, 1")
    e(f"s_cmp_lt_u32 s53, {opt.get('poll_max', 200000)}")
    e("s_cbranch_scc1 A_POLL")
    e.label("A_POLL_OK")
    part_loads(e)
    e.label("A_HAVE")
    e(f"v_min_f32 v{t+3}, v{V_NM}, v{ML}")
    e(f"v_sub_f32 v{t+4}, v{t+3}, v{V_NM}")
    e(f"v_sub_f32 v{t+6}, v{t+3}, v{ML}")
    e(f"v_exp_f32 v{t+4}, v{t+4}")
    e(f"v_exp_f32 v{t+6}, v{t+6}")
    e.nop(1)
    e(f"v_mul_f32 v{t+3}, v{t+6}, v{ML+1}")
    e(f"v_fma_f32 v{t+3}, v{V_L0}, v{t+4}, v{t+3}")
    e(f"v_mov_b32 v{t+2}, v{t+3}")
    e.nop(2)
    e(f"v_permlane32_swap_b32 v{t+3}, v{t+2}")
    e(f"v_add_f32 v{t+3}, v{t+3}, v{t+2}")
    e(f"v_rcp_f32 v{t+3}, v{t+3}")
    e.nop(1)
    e(f"v_mul_f32 v{t+4}, v{t+4}, v{t+3}")
    e(f"v_mul_f32 v{t+6}, v{t+6}, v{t+3}")
    e(f"v_mov_b32 v{t+5}, v{t+4}")
    e(f"v_mov_b32 v{t+7}, v{t+6}")
    for k in range(64):
        e(f"v_pk_mul_f32 {v(V_O+2*k,2)}, {v(V_O+2*k,2)}, {v(t+4,2)}")
    for k in range(64):
        u = t + 8 + (k % 2) * 2
        e(f"v_accvgpr_read_b32 v{u+1}, a{A_Q2+k}")
        if k:
            e(f"v_cvt_pk_bf16_f32 v{CT+k-1}, v{V_O+2*k-2}, v{V_O+2*k-1}")
        e(f"v_lshlrev_b32 v{u}, 16, v{u+1}")
        e(f"v_and_b32 v{u+1}, 0xffff0000, v{u+1}")
        e(f"v_pk_fma_f32 {v(V_O+2*k,2)}, {v(u,2)}, {v(t+6,2)}, {v(V_O+2*k,2)}")
    e(f"v_cvt_pk_bf16_f32 v{CT+63}, v{V_O+126}, v{V_O+127}")

    e = Seg("a_epi", [], [])
    e.label("A_EPI")
    stamp(e, opt, 3)
    stamp(e, opt, "a_epi")
    YA = (V_O, V_O + 16)
    YP = V_O + 32
    VC = V_O + 48
    ED = opt.get("e_depth", 7)
    NFE, NT = 46, 7
    NF = NFE * NT

    def erd(f):
        c, r = divmod(f, NFE)
        seg, ks = divmod(r, 23)
        off = (EO[c % 3] + 16 * ks * 128) if ks < 16 else (E2[c % 3] + 16 * (ks - 16) * 128)
        base = (V_EA, VC, VC + 2)[off >> 16] + seg
        off &= 0xffff
        return [f"ds_read_b64_tr_b16 {a(A_F+(f%8)*4+2*u,2)}, v{base} offset:{off+u*1024}" for u in range(2)]

    def ecvt(c, seg):
        ops = [f"v_cvt_pk_bf16_f32 v{YP+8*seg+r}, v{YA[seg]+2*r}, v{YA[seg]+2*r+1}" for r in range(8)]
        st = [(f"buffer_store_dwordx4 {v(YP+8*seg+4*k,4)}, v{V_L16}, s[{S_WS}:{S_WS+3}], s62 offen offset:{seg*2048+k*1024}{YM}",
               "ya" if c < 4 else "yb") for k in range(2)]
        if seg == 1 and c < NT - 1:
            st.append("s_add_u32 s62, s62, 4096")
        return ops, st

    def edma_at(t):
        return [[f"s_mov_b32 s58, {EO[t%3]}", f"s_mov_b32 s59, {E2[t%3]}"]] + e_dma(f"e{t}")

    for k in range(2):
        e(f"v_add_u32 v{VC+k}, 0x10000, v{V_EA+k}")
        e(f"v_add_u32 v{VC+2+k}, 0x20000, v{V_EA+k}")
    e.wait_force(vm=0)
    e("s_barrier")
    for f in range(ED):
        run(e, erd(f))
    spine, fill = [], {}
    for f in range(NF):
        c, r = divmod(f, NFE)
        seg, ks = divmod(r, 23)
        B = v(CT + 4 * ks, 4) if ks < 16 else a(A_HF + 4 * (ks - 16), 4)
        acc = v(YA[seg], 16)
        spine.append(f"{MFMA} {acc}, {a(A_F+(f%8)*4,4)}, {B}, {'0' if ks == 0 else acc}")
        nf = f + ED
        if nf < NF:
            if nf % NFE == 0:
                t = nf // NFE
                ops = [lambda e, t=t: e.wait_tag(f"e{t}")]
                if t == 6:
                    ops.append(lambda e: e.wait_tag("ya"))
                if t <= 4:
                    ops.append(lambda e: e.wait(lgkm=0))
                fill.setdefault(f, []).extend(ops + ["s_barrier"])
            fill.setdefault(f, []).extend(erd(nf))
        if f % 2 == 0:
            rr = a(A_F + (min(f + 1, NF - 1) % 8) * 4, 4)
            fill.setdefault(f - 1, []).append(lambda e, rr=rr: wait_reg(e, rr))
    if hooks:
        hooks(fill, NFE, ED)
    spread(fill, edma_at(1), 0, 20)
    spread(fill, edma_at(2), 20, 52)
    for t in range(3, NT):
        g0 = max((t - 2) * NFE - ED + 1, 52)
        spread(fill, edma_at(t), g0, (t - 1) * NFE - ED)
    for c in range(NT):
        o, st = ecvt(c, 0)
        pour(fill, o + st, c * NFE + 27, c * NFE + 44)
        if c < NT - 1:
            o, st = ecvt(c, 1)
            if c == NT - 2 and hooks:
                pour(fill, o, (c + 1) * NFE + 4, (c + 1) * NFE + 21)
                fill.setdefault((c + 1) * NFE + 25, []).append(st[0])
                fill.setdefault((c + 1) * NFE + 26, []).extend(st[1:])
            else:
                pour(fill, o + st, (c + 1) * NFE + 4, (c + 1) * NFE + 21)
    if opt.get("verbose"):
        print(gap_report("epilogue", fill, NF), [load_of(fill, g) for g in range(NF)])
    weave(e, spine, fill)
    e.nop(12)
    o, st = ecvt(NT - 1, 1)
    run(e, o + st)
    if finish:
        finish(e)
    e.label(end_label)
    e("s_endpgm")
    epi = e

    pl = [peel[n] for n in range(28, 33)]
    segs = [pro, lp] + pl + [t3, fin, mg, epi, t0, stubs, r0, r1, fs, sw1, sw2, sig, early]
    traces = [
        [pro, fs, lp, lp] + pl + [t3, fin, epi],
        [lp, peel[28], peel[29], t0, fin, mg, epi],
        [lp, r1, lp], [peel[28], r0, peel[29]], [peel[28], sw1, peel[29], sw2, fs, peel[30]], [sig], [stubs],
        [peel[30], peel[31], t0], [peel[29], peel[30], t3], [peel[31], early, peel[32], t3, fin],
    ]
    return segs, traces
```

```python
from emit import *
from common import *
import attn
from attn import S_HEAD, S_QT, S_W4K, S_PAIR, S_WS, S_WO, S_W2, A_Q, A_Q2, A_HF, V_L16, V_PD
import math

NAME = "parallel_sum__compressed_kv_cla__dense_activation_silu__prompt_kernel"
LDS_BYTES = 160 * 1024
S_CKV, S_W, S_X, S_WQ, S_W1, S_QST, S_OUT = 8, 12, 20, 24, 28, 68, 24
SA, SB, S_LP, S_W8K, S_KVSTR, S_KIND, S_BO, S_KVBASE, S_KVC, S_QB, S_QC, S_XNB, S_XNF = 53, 54, 55, 56, 57, 58, 59, 60, 61, 62, 63, 66, 67
S_HA, S_KVSLOT = 76, 77
V_PA, V_PB, V_FO, V_FL = 3, 4, 5, 6
V_AA, V_AB, V_DA, V_DB = 8, 12, 16, 24
V_FA, V_FB, V_XN = 32, 64, 96
V_AB16, V_AA16, V_WR, V_ST = 8, 212, 224, 7
V_DQ, V_D1, V_AT, V_T = 208, 212, 216, 224
SLOT_ORDER = [8, 9, 0, 1, 4, 5, 2, 3, 6, 7]
V_AT3 = 212
S_KVE, S_EARLY, S_GOTQ = 24, 72, 75
H_ACC = (64, 80, 224, 240)
V_GP = V_XN + 46
VPQ = V_XN + 4

def gen_mega(opt):
    ST = opt.get("kv_store_mod", " sc1")
    attn.KVM[0] = opt.get("kv_load_mod", "")
    opt = dict(opt)
    opt.setdefault("y_store_mod", " sc1")
    opt["spk"] = ""
    PFD = 2
    A16 = opt.get("a16", 1)
    NPF = 2
    PMAX = opt.get("poll_max", 200000)
    e = Seg("m_pro")
    e.label(NAME)
    e("s_cmp_ge_u32 s2, 256")
    e("s_cbranch_scc1 M_END")
    stamp(e, opt, "entry")
    load_kernargs(e)
    e("s_getpc_b64 s[50:51]")
    e.label("M_PC0")
    if not opt.get("no_cpf0"):
        e("s_lshr_b32 s5, s2, 3")
        e("s_lshl_b32 s5, s5, 10")
        e("v_and_b32 v1, 7, v0")
        e("v_lshl_add_u32 v1, v1, 7, s5")
        e("v_min_u32 v1, M_B-M_PC0, v1")
        e(f"global_load_dword v{V_PD}, v1, s[50:51]", "pf")
    e("v_lshrrev_b32 v1, 6, v0")
    e("v_and_b32 v0, 63, v0")
    e("v_readfirstlane_b32 s3, v1")
    e("s_and_b32 s4, s2, 7")
    e("s_lshl_b32 s4, s4, 1")
    e("s_lshr_b32 s5, s2, 3")
    e("s_and_b32 s34, s5, 7")
    e("s_lshr_b32 s35, s5, 3")
    e("s_and_b32 s42, s35, 1")
    e("s_add_u32 s42, s42, s4")
    e(f"s_lshr_b32 s{S_KIND}, s35, 1")
    e(f"s_lshr_b32 s{S_QT}, s5, 1")
    e(f"s_and_b32 s{S_HEAD}, s5, 1")
    e(f"s_add_u32 s{S_HEAD}, s{S_HEAD}, s4")
    e("s_and_b32 s36, s3, 1")
    e("s_lshr_b32 s37, s3, 1")
    L31, HI, G, R4, C = 224, 225, 226, 227, 228
    e(f"v_and_b32 v{L31}, 31, v0")
    e(f"v_lshrrev_b32 v{HI}, 5, v0")
    e(f"v_lshrrev_b32 v{G}, 4, v0")
    e(f"v_bfe_u32 v{R4}, v0, 2, 2")
    e(f"v_and_b32 v{C}, 3, v0")
    e("s_and_b32 s7, s35, 1")
    e("s_lshl_b32 s7, s7, 1")
    e("s_add_u32 s7, s7, s37")
    e("s_sub_u32 s39, 3, s7")
    e("s_add_u32 s7, s7, 4")
    e("s_cmp_ge_u32 s35, 2")
    e("s_cselect_b32 s7, s7, s39")
    e("s_lshl_b32 s7, s7, 3")
    e("s_add_u32 s7, s7, s34")
    e("s_lshl_b32 s7, s7, 1")
    e("s_add_u32 s7, s7, s36")
    e("s_lshl_b32 s7, s7, 4")
    e("v_and_b32 v6, 15, v0")
    e("v_add_u32 v6, s7, v6")
    e(f"v_lshlrev_b32 v{V_PA}, 11, v6")
    e(f"v_and_b32 v7, 1, v{G}")
    e(f"v_lshl_add_u32 v7, v7, 7, v{V_PA}")
    e("s_lshl_b32 s7, s34, 3")
    e("s_lshl_b32 s39, s3, 1")
    e("s_add_u32 s7, s7, s39")
    e("v_bfe_u32 v6, v0, 2, 1")
    e("v_add_u32 v6, s7, v6")
    e("v_lshlrev_b32 v6, 13, v6")
    e(f"v_lshl_add_u32 v6, v{C}, 7, v6")
    e("s_lshl_b32 s7, s42, 9")
    e(f"v_add_u32 v{V_PB}, s7, v6")
    e("v_bfe_u32 v6, v0, 3, 1")
    e(f"v_lshl_add_u32 v5, v6, 19, v{V_PB}")
    e("v_lshrrev_b32 v1, 3, v0")
    e.wait_force(lgkm=0)
    e(f"s_mov_b32 s{S_HA}, s42")
    e(f"s_lshl_b32 s{S_KVSLOT}, s{S_KIND}, 3")
    e(f"s_add_u32 s{S_KVSLOT}, s{S_KVSLOT}, s34")
    e(f"s_lshl_b32 s{S_KVSLOT}, s{S_KVSLOT}, 3")
    srd(e, S_CKV, P_CKV, CKV_BYTES)
    e(f"s_cmp_eq_u32 s{S_KIND}, 0")
    e(f"s_cselect_b32 s{S_W}, s{P_WUK}, s{P_WUV}")
    e(f"s_cselect_b32 s{S_W+1}, s{P_WUK+1}, s{P_WUV+1}")
    e(f"s_mov_b32 s{S_W+2}, {WU_BYTES:#x}")
    e(f"s_mov_b32 s{S_W+3}, 0x20000")
    stamp(e, opt, 0)
    stamp(e, opt, "karg")
    e(f"buffer_load_dword v{V_PD}, v7, s[{S_CKV}:{S_CKV+3}], 0 offen", "pf")
    e(f"buffer_load_dword v{V_PD}, v5, s[{S_W}:{S_W+3}], 0 offen", "pf")
    e("v_add_u32 v144, 256, v7")
    e("v_add_u32 v145, 0x100000, v5")
    e(f"v_add_u32 v{V_PA}, {PFD*128}, v{V_PA}")
    e(f"v_add_u32 v{V_PB}, {PFD*0x80000}, v{V_PB}")
    e("s_lshl_b32 s7, s36, 1")
    e("s_sub_u32 s39, 3, s7")
    e("s_add_u32 s7, s7, 4")
    e("s_cmp_eq_u32 s37, 1")
    e("s_cselect_b32 s7, s7, s39")
    e("s_mov_b32 s39, 0xfff80000")
    e("s_cselect_b32 s39, 0x80000, s39")
    e("s_lshl_b32 s7, s7, 3")
    e("s_add_u32 s7, s7, s34")
    e("s_lshl_b32 s7, s7, 5")
    e("v_add_u32 v6, s7, v1")
    e("v_lshlrev_b32 v6, 11, v6")
    e("v_and_b32 v7, 7, v0")
    e(f"v_xor_b32 v7, v7, v{G}")
    e("v_lshlrev_b32 v7, 4, v7")
    for j in range(8):
        if j == 4:
            e("v_add_u32 v6, s39, v6")
        e(f"v_xor_b32 v{V_DA+j}, {((j ^ (j >> 1)) & 1) << 6}, v7")
        e(f"v_add_u32 v{V_DA+j}, v{V_DA+j}, v6")
        if j & 3:
            e(f"v_add_u32 v{V_DA+j}, {(j&3)*(16384-1024)}, v{V_DA+j}")
    e("s_lshl_b32 s7, s3, 4")
    e(f"v_add_u32 v6, s7, v{HI}")
    e("v_lshlrev_b32 v6, 13, v6")
    e(f"s_lshl_b32 s7, s{S_HA}, 9")
    e("v_add_u32 v6, s7, v6")
    e(f"v_lshrrev_b32 v7, 2, v{L31}")
    e(f"v_xor_b32 v7, v7, v{HI}")
    e("v_lshlrev_b32 v7, 6, v7")
    e(f"v_lshl_add_u32 v7, v{C}, 4, v7")
    for j in range(8):
        e(f"v_xor_b32 v{V_DB+j}, {((j&1)<<7) ^ (48 * ((j >> 2) & 1) if A16 else 0)}, v7")
        e(f"v_add_u32 v{V_DB+j}, v{V_DB+j}, v6")
        if j:
            e(f"v_add_u32 v{V_DB+j}, {j*16384-(j&3)*1024}, v{V_DB+j}")
    e(f"s_lshl_b32 s{S_W8K}, s3, 13")
    e(f"s_mov_b32 s{SA}, 0")
    e(f"s_mov_b32 s{SB}, 0")

    def dma_items(b):
        it = []
        for j in range(8):
            pre = [f"s_add_u32 m0, s{S_W8K}, {b*32768 + (j>>2)*4096}"] if (j & 3) == 0 else []
            post = [f"s_add_u32 s{SA}, s{SA}, 128"] if j == 7 else []
            it.append((pre, f"buffer_load_dwordx4 v{V_DA+j}, s[{S_CKV}:{S_CKV+3}], s{SA} offen offset:{(j&3)*1024} lds", post))
        for j in range(8):
            pre = [f"s_add_u32 m0, s{S_W8K}, {65536 + b*32768 + (j>>2)*4096}"] if (j & 3) == 0 else []
            post = [f"s_add_u32 s{SB}, s{SB}, 0x80000"] if j == 7 else []
            it.append((pre, f"buffer_load_dwordx4 v{V_DB+j}, s[{S_W}:{S_W+3}], s{SB} offen offset:{(j&3)*1024} lds", post))
        return it

    NK3 = opt.get('nk3', 12) if A16 else 8
    q = Seg("tmp")
    srd(q, S_WS, P_WS, WS_BYTES)
    srd(q, S_X, P_X, X_BYTES)
    srd(q, S_WQ, P_WQ, WQ_BYTES)
    srd(q, S_W1, P_W1, W1_BYTES)
    if not A16:
        q("s_lshl_b32 s7, s36, 7")
        q(f"v_add_u32 v6, s7, v{L31}")
        q("v_lshlrev_b32 v6, 7, v6")
        q(f"v_bfe_u32 v7, v{L31}, 1, 3")
        q(f"v_xor_b32 v7, v7, v{HI}")
        q("v_lshl_add_u32 v6, v7, 4, v6")
        for k in range(4):
            q(f"v_xor_b32 v{V_AA+k}, {k<<5}, v6")
        q(f"v_lshrrev_b32 v6, 1, v{G}")
        q(f"v_lshl_add_u32 v6, v6, 3, v{R4}")
        q("v_lshlrev_b32 v6, 9, v6")
        q("s_lshl_b32 s7, s37, 8")
        q("s_add_u32 s7, s7, 0x10000")
        q("v_add_u32 v6, s7, v6")
        q(f"v_and_b32 v7, 1, v{G}")
        q("v_lshl_add_u32 v6, v7, 5, v6")
        q(f"v_lshl_add_u32 v6, v{C}, 3, v6")
        for nb in range(4):
            q(f"v_xor_b32 v7, {nb}, v{R4}")
            q(f"v_lshl_add_u32 v{V_AB+nb}, v7, 6, v6")
    else:
        q("v_and_b32 v6, 15, v0")
        q("v_and_b32 v7, 8, v0")
        q(f"v_mul_u32_u24 v7, s{S_KIND}, v7")
        q("v_add_u32 v6, v6, v7")
        q("s_lshl_b32 s7, s36, 7")
        q("v_add_u32 v6, s7, v6")
        q("v_lshlrev_b32 v6, 7, v6")
        q("v_bfe_u32 v7, v0, 1, 3")
        q(f"v_xor_b32 v7, v7, v{G}")
        q(f"v_lshl_add_u32 v{V_AA16}, v7, 4, v6")
        q(f"v_xor_b32 v{V_AA16+1}, 64, v{V_AA16}")
        q(f"v_lshl_add_u32 v6, v{G}, 3, v{R4}")
        q("v_lshlrev_b32 v6, 9, v6")
        q("s_lshl_b32 s7, s37, 8")
        q("s_add_u32 s7, s7, 0x10000")
        q("v_add_u32 v6, s7, v6")
        q(f"v_and_b32 v7, 1, v{C}")
        q("v_lshl_add_u32 v6, v7, 3, v6")
        q(f"v_and_b32 v7, 1, v{G}")
        q("v_mul_u32_u24 v7, 3, v7")
        q(f"v_lshl_add_u32 v7, v{R4}, 2, v7")
        q(f"v_lshrrev_b32 v231, 1, v{C}")
        q(f"s_sub_u32 s7, 1, s{S_KIND}")
        q("v_lshlrev_b32 v231, s7, v231")
        q("v_xor_b32 v7, v7, v231")
        q("v_lshl_add_u32 v6, v7, 4, v6")
        for i in range(8):
            nat, perm = i << 5, ((i >> 1) << 6) | ((i & 1) << 4)
            if nat == perm:
                q(f"v_xor_b32 v{V_AB16+i}, {nat}, v6")
            else:
                q(f"s_mul_i32 s7, s{S_KIND}, {nat - perm}")
                q(f"s_add_u32 s7, s7, {perm}")
                q(f"v_xor_b32 v{V_AB16+i}, s7, v6")
    q("s_lshl_b32 s7, s3, 4")
    q(f"v_add_u32 v6, s7, v{G}")
    q(f"v_xor_b32 v7, v{R4}, v{G}")
    q("v_lshlrev_b32 v7, 6, v7")
    q(f"v_lshl_add_u32 v7, v{C}, 4, v7")
    q(f"s_lshl_b32 s38, s{S_HEAD}, 9")
    q(f"v_lshlrev_b32 v{V_DQ}, 13, v6")
    q(f"v_add3_u32 v{V_DQ}, v{V_DQ}, v7, s38")
    for j in range(1, 4):
        q(f"v_add_u32 v{V_DQ+j}, {j*4*8192 - j*1024}, v{V_DQ}")
    q(f"s_mul_i32 s39, s{S_HEAD}, 224")
    q(f"v_mul_u32_u24 v{V_D1+3}, 3584, v6")
    q(f"v_add3_u32 v{V_D1+3}, v{V_D1+3}, v7, s39")
    q(f"v_lshrrev_b32 v6, 1, v{G}")
    q(f"v_lshl_add_u32 v6, v6, 3, v{R4}")
    q("v_lshlrev_b32 v6, 8, v6")
    q(f"v_and_b32 v7, 1, v{G}")
    q("v_lshl_add_u32 v6, v7, 5, v6")
    q(f"v_lshl_add_u32 v6, v{C}, 3, v6")
    for nb in range(4):
        q(f"v_xor_b32 v7, {nb}, v{R4}")
        q(f"v_lshl_add_u32 v{V_AT+nb}, v7, 6, v6")
        q(f"v_add_u32 v{V_AT+4+nb}, 0x10000, v{V_AT+nb}")
    q(f"s_mul_i32 s7, s{S_QT}, 28")
    q("s_mul_i32 s6, s3, 7")
    q("s_add_u32 s7, s7, s6")
    q("v_lshrrev_b32 v6, 2, v0")
    q("v_add_u32 v6, s7, v6")
    q("v_lshlrev_b32 v7, 13, v6")
    q(f"v_lshl_add_u32 v7, v{C}, 7, v7")
    q("v_add_u32 v7, s38, v7")
    q("v_subrev_u32 v6, 7, v6")
    q("v_mul_u32_u24 v6, 3584, v6")
    q(f"v_min_u32 v231, 2, v{C}")
    q("v_lshl_add_u32 v6, v231, 7, v6")
    q("v_add_u32 v6, s39, v6")
    q(f"v_min_u32 v6, {W1_BYTES-4}, v6")
    q("v_cmp_gt_u32 vcc, 28, v0")
    q("s_lshr_b32 s7, s2, 3")
    q("s_lshl_b32 s7, s7, 2")
    q("v_cndmask_b32 v6, v6, v7, vcc")
    q(f"v_mov_b32 v{V_GP}, s{P_W1}")
    q(f"v_mov_b32 v{V_GP+1}, s{P_W1+1}")
    q(f"v_mov_b32 v7, s{P_WQ}")
    q(f"v_mov_b32 v231, s{P_WQ+1}")
    q(f"v_cndmask_b32 v{V_GP}, v{V_GP}, v7, vcc")
    q(f"v_cndmask_b32 v{V_GP+1}, v{V_GP+1}, v231, vcc")
    q("s_add_u32 s7, s7, s3")
    q("s_mul_i32 s7, s7, 640")
    q("s_add_u32 s7, s7, M_TAIL0-M_PC0")
    q("v_and_b32 v7, 7, v0")
    q("v_min_u32 v7, 4, v7")
    q("v_lshl_add_u32 v7, v7, 7, s7")
    q("v_min_u32 v7, M_CODE_END-M_PC0-8, v7")
    q("v_cmp_gt_u32 vcc, 56, v0")
    q("v_mov_b32 v231, s50")
    q("v_mov_b32 v232, s51")
    q("v_cndmask_b32 v6, v7, v6, vcc")
    q(f"v_cndmask_b32 v{V_GP}, v231, v{V_GP}, vcc")
    q(f"v_cndmask_b32 v{V_GP+1}, v232, v{V_GP+1}, vcc")
    q(f"v_add_co_u32 v{V_GP}, vcc, v{V_GP}, v6")
    q(f"v_addc_co_u32 v{V_GP+1}, vcc, 0, v{V_GP+1}, vcc")
    q("s_add_u32 s7, s36, 3")
    q("s_lshl_b32 s7, s7, 3")
    q("s_add_u32 s7, s7, s34")
    q(f"s_lshl_b32 s{S_KVBASE}, s{S_HA}, 6")
    q(f"s_add_u32 s{S_KVBASE}, s{S_KVBASE}, s7")
    q(f"s_lshl_b32 s{S_KVBASE}, s{S_KVBASE}, 15")
    q(f"s_lshl_b32 s7, s{S_KIND}, 14")
    q(f"s_add_u32 s{S_KVBASE}, s{S_KVBASE}, s7")
    q("s_lshl_b32 s7, s37, 13")
    q(f"s_add_u32 s{S_KVBASE}, s{S_KVBASE}, s7")
    q("s_lshl_b32 s7, s36, 19")
    q(f"s_sub_u32 s{S_KVSTR}, s7, 0x40000")
    q(f"s_lshl_b32 s7, s{S_QT}, 2")
    q(f"v_and_b32 v{V_FO}, 15, v0")
    q(f"v_lshlrev_b32 v{V_FO}, 3, v{V_FO}")
    q(f"s_add_u32 s{S_XNB}, s7, s3")
    q(f"s_mul_i32 s{S_XNB}, s{S_XNB}, 28672")
    q(f"s_add_u32 s{S_XNB}, s{S_XNB}, {XN_OFF}")
    q(f"v_lshlrev_b32 v{V_L16}, 4, v0")
    for i in range(256):
        q(f"v_accvgpr_write_b32 a{i}, 0")
    q(f"s_lshl_b32 s7, s{S_QT}, 4")
    q(f"s_add_u32 s7, s7, s{S_HEAD}")
    q("s_mul_i32 s7, s7, 7168")
    q("v_min_u32 v6, 56, v0")
    q("v_lshl_add_u32 v146, v6, 7, s7")
    attn.setup_s(q)
    q(f"s_mov_b32 s{S_QST}, s{P_WS}")
    q(f"s_mov_b32 s{S_QST+1}, s{P_WS+1}")
    q(f"s_cmp_ge_u32 s{S_QT}, 8")
    q(f"s_cselect_b32 s{S_QST+2}, {WS_BYTES:#x}, 0")
    q(f"s_mov_b32 s{S_QST+3}, 0x20000")
    q(f"s_lshl_b32 s{S_QB}, s{S_PAIR}, 2")
    q(f"s_add_u32 s{S_QB}, s{S_QB}, s3")
    q(f"s_lshl_b32 s{S_QB}, s{S_QB}, 14")
    q(f"s_add_u32 s{S_QB}, s{S_QB}, {Q_OFF}")
    zero = [i.text for i in q.ins if i.text.startswith("v_accvgpr_write")]
    rest = [i.text for i in q.ins if not i.text.startswith("v_accvgpr_write")]
    nz = opt.get("pre_zero", 64)
    for x in rest + zero[:nz]:
        e(x)
    zero = zero[nz:]
    stamp(e, opt, "setup")
    e.wait_tag("pf")
    stamp(e, opt, "touch")
    first = [(x, "t0") for x in dma_items(0)] + [(x, "dma") for x in dma_items(1)[:NK3]]
    per = -(-len(zero) // len(first))
    for k, ((pre, d, post), tag) in enumerate(first):
        run(e, pre + [(d, tag)] + post + zero[k * per:(k + 1) * per])
    e(f"buffer_load_dword v{V_PD}, v144, s[{S_CKV}:{S_CKV+3}], 0 offen", "pf")
    e(f"buffer_load_dword v{V_PD}, v145, s[{S_W}:{S_W+3}], 0 offen", "pf")
    e(f"buffer_load_dword v{V_PD}, v146, s[{S_X}:{S_X+3}], 0 offen", "pf")
    e("s_or_b32 s7, s2, s3")
    e("s_cbranch_scc1 M_NOPUB")
    e("s_memrealtime s[4:5]")
    e("v_mov_b32 v6, 0")
    e.wait_force(lgkm=0)
    e("s_or_b32 s4, s4, 1")
    e("v_mov_b32 v7, s4")
    e("s_mov_b64 exec, 1")
    e.raw(f"global_store_dword v6, v7, s[{P_DBG}:{P_DBG+1}] sc1")
    e("s_mov_b64 exec, -1")
    e.label("M_NOPUB")
    stamp(e, opt, "dma")
    stamp(e, opt, 1)

    def layernorm(e, n, reduce, norm, T=V_T):
        e("s_mov_b32 s7, 0x3f803f80")
        for k in range(8):
            e(f"v_mov_b32 v{T+k}, 0")
        for r in range(n):
            e(f"v_dot2_f32_bf16 v{T+(r&3)}, v{V_XN+r}, s7, v{T+(r&3)}")
            e(f"v_dot2_f32_bf16 v{T+4+(r&3)}, v{V_XN+r}, v{V_XN+r}, v{T+4+(r&3)}")
        e.nop(4)
        e(f"v_add_f32 v{T}, v{T}, v{T+1}")
        e(f"v_add_f32 v{T+2}, v{T+2}, v{T+3}")
        e(f"v_add_f32 v{T+4}, v{T+4}, v{T+5}")
        e(f"v_add_f32 v{T+6}, v{T+6}, v{T+7}")
        e(f"v_add_f32 v{T}, v{T}, v{T+2}")
        e(f"v_add_f32 v{T+4}, v{T+4}, v{T+6}")
        for step in reduce:
            if step == 8:
                e.nop(2)
                e(f"v_add_f32_dpp v{T}, v{T}, v{T} row_ror:8 row_mask:0xf bank_mask:0xf")
                e(f"v_add_f32_dpp v{T+4}, v{T+4}, v{T+4} row_ror:8 row_mask:0xf bank_mask:0xf")
            else:
                e(f"v_mov_b32 v{T+1}, v{T}")
                e(f"v_mov_b32 v{T+5}, v{T+4}")
                e.nop(2)
                e(f"v_permlane{step}_swap_b32 v{T}, v{T+1}")
                e(f"v_permlane{step}_swap_b32 v{T+4}, v{T+5}")
                e(f"v_add_f32 v{T}, v{T}, v{T+1}")
                e(f"v_add_f32 v{T+4}, v{T+4}, v{T+5}")
        e(f"v_mul_f32 v{T}, {f32(1/448)}, v{T}")
        e(f"v_mul_f32 v{T+4}, {f32(1/448)}, v{T+4}")
        e(f"v_fma_f32 v{T+4}, -v{T}, v{T}, v{T+4}")
        e(f"v_max_f32 v{T+4}, 0, v{T+4}")
        e(f"v_add_f32 v{T+4}, {f32(1e-5)}, v{T+4}")
        e(f"v_rsq_f32 v{T+4}, v{T+4}")
        e(f"v_mul_f32 v{T+4}, {f32(QSCALE)}, v{T+4}")
        e(f"v_mul_f32 v{T}, v{T}, v{T+4}")
        e(f"v_mov_b32 v{T+5}, v{T+4}")
        e(f"v_sub_f32 v{T}, 0, v{T}")
        e(f"v_mov_b32 v{T+1}, v{T}")
        for r in norm:
            t = T + 8 + (r % 8) * 2
            e(f"v_lshlrev_b32 v{t}, 16, v{V_XN+r}")
            e(f"v_and_b32 v{t+1}, 0xffff0000, v{V_XN+r}")
            e(f"v_pk_fma_f32 {v(t,2)}, {v(t,2)}, {v(T+4,2)}, {v(T,2)}")
            e(f"v_cvt_pk_bf16_f32 v{V_XN+r}, v{t}, v{t+1}")

    hk = Seg("m_hook")
    hk.label("M_HOOK")
    hk(f"v_mov_b32 v{V_XN+41}, 0")
    hk("s_lshl_b32 s4, s3, 8")
    hk("s_add_u32 s5, s4, 128")
    hk("s_cmp_eq_u32 s3, 3")
    hk("s_cselect_b32 s5, 0, s5")
    hk(f"s_cmp_eq_u32 s{S_LP}, 2")
    hk("s_cbranch_scc1 M_HOOK2")
    hk(f"s_cmp_eq_u32 s{S_LP}, 3")
    hk("s_cbranch_scc1 M_HOOK3")
    hk(f"s_lshl_b32 s7, s{S_QT}, 7")
    hk(f"s_lshl_b32 s6, s{S_HEAD}, 3")
    hk("s_add_u32 s7, s7, s6")
    hk("v_and_b32 v6, 7, v0")
    hk("v_add_u32 v6, s7, v6")
    hk("v_mul_u32_u24 v6, 896, v6")
    hk("v_lshrrev_b32 v7, 3, v0")
    hk("v_lshl_add_u32 v6, v7, 4, v6")
    for i in range(7):
        hk.raw(f"buffer_load_dwordx4 {v(V_XN+i*4,4)}, v6, s[{S_X}:{S_X+3}], 0 offen offset:{i*128}", "pf")
    hk.raw(f"buffer_load_dwordx4 {v(V_XN+28,4)}, v6, s[{S_X}:{S_X+3}], s4 offen", "pf")
    hk.raw(f"buffer_load_dwordx4 {v(V_XN+32,4)}, v6, s[{S_X}:{S_X+3}], s5 offen", "pf")
    hk.raw(f"global_load_dword v{V_XN+43}, v{V_XN+41}, s[{P_DBG}:{P_DBG+1}]", "pf")
    hk("s_branch M_HOOK_RET")
    hk.label("M_HOOK2")
    hk("s_lshl_b32 s4, s4, 5")
    hk("s_lshl_b32 s5, s5, 5")
    layernorm(hk, 28, (8, 16, 32), range(28, 36), V_XN + 52)
    hk(f"s_lshr_b32 s7, s{S_HEAD}, 2")
    hk(f"s_lshl_b32 s6, s{S_QT}, 2")
    hk("s_add_u32 s7, s7, s6")
    hk("s_mul_i32 s7, s7, 28672")
    hk(f"s_add_u32 s7, s7, {XN_OFF}")
    hk("s_add_u32 s4, s4, s7")
    hk("s_add_u32 s5, s5, s7")
    hk(f"s_and_b32 s6, s{S_HEAD}, 3")
    hk("s_lshl_b32 s6, s6, 7")
    hk("v_and_b32 v6, 7, v0")
    hk("v_lshlrev_b32 v6, 4, v6")
    hk("v_lshrrev_b32 v7, 3, v0")
    hk("v_lshl_add_u32 v6, v7, 9, v6")
    hk("v_add_u32 v6, s6, v6")
    hk(f"buffer_store_dwordx4 {v(V_XN+28,4)}, v6, s[{S_WS}:{S_WS+3}], s4 offen sc1")
    hk(f"buffer_store_dwordx4 {v(V_XN+32,4)}, v6, s[{S_WS}:{S_WS+3}], s5 offen sc1")
    hk("s_branch M_HOOK_RET")
    hk.label("M_HOOK3")
    hk("s_mov_b32 s6, 0")
    hk.label("M_NSPIN")
    hk(f"v_readfirstlane_b32 s{S_N0}, v{V_XN+43}")
    hk(f"s_cmp_lg_u32 s{S_N0}, 0")
    hk("s_cbranch_scc1 M_NOK")
    hk("s_sleep 8")
    hk(f"global_load_dword v{V_XN+43}, v{V_XN+41}, s[{P_DBG}:{P_DBG+1}] sc1")
    hk.wait_force(vm=0)
    hk("s_add_u32 s6, s6, 1")
    hk(f"s_cmp_lt_u32 s6, {PMAX}")
    hk("s_cbranch_scc1 M_NSPIN")
    hk.label("M_NOK")
    hk(f"s_xor_b32 s{S_N1}, s{S_N0}, {NONCE_K:#x}")
    hk("s_cmp_lg_u32 s3, 0")
    hk("s_cbranch_scc1 M_HOOK_RET")
    flag_line(hk, 7, FL_XN, S_QT)
    hk(f"s_lshl_b32 s6, s{S_HEAD}, 3")
    flag_set(hk, S_WS, 7, "s6", V_XN + 40)
    hk.label("M_HOOK_RET")
    hk(f"s_cmp_eq_u32 s{S_KIND}, 0")
    hk("s_cbranch_scc1 M_LOOP_K")
    hk("s_branch M_LOOP_V")

    def frag_reads(b, ks, st):
        r = []
        fa, fb = V_FA + st * 16, V_FB + st * 16
        order = [("a", 0), ("b", 0), ("a", 1), ("a", 2), ("a", 3), ("b", 1), ("b", 2), ("b", 3)]
        for t, i in order:
            if t == "a":
                r.append(f"ds_read_b128 {v(fa+i*4,4)}, v{V_AA+ks} offset:{i*4096 + b*32768}")
            else:
                for u in range(2):
                    r.append(f"ds_read_b64_tr_b16 {v(fb+i*4+u*2,2)}, v{V_AB+i} offset:{(16*ks+4*u)*512 + b*32768}")
        return r

    e.wait_tag("t0")
    stamp(e, opt, "t0")
    e("s_barrier")
    stamp(e, opt, "bar")
    if not A16:
        for r in frag_reads(0, 0, 0):
            e(r)
    e(f"s_mov_b32 s{S_LP}, 0")
    e(f"s_cmp_eq_u32 s{S_KIND}, 0")
    e("s_cbranch_scc0 M_PRE_V")
    pro = e

    def place_dma(fill, items, g0, g1, tag="dma"):
        n = len(items)
        for k, item in enumerate(items):
            pre, d, post = item[:3]
            g = g0 + (k * (g1 - g0)) // n
            for x in pre:
                fill.setdefault(g - 1, []).append(x)
            fill.setdefault(g, []).append((d, item[3] if len(item) > 3 else tag))
            for x in post:
                fill.setdefault(g, []).append(x)

    def ktile(e, kind, b, dma_k0, dma_k3, last=False, pref=True, tag3="dma", tag0="dma", xn=None):
        for ks in range(4):
            st = ks & 1
            fa, fb = V_FA + st * 16, V_FB + st * 16
            spine = []
            for i in range(4):
                for j in range(4):
                    acc = a((i * 4 + j) * 16, 16)
                    W, Cc = v(fb + i * 4, 4), v(fa + j * 4, 4)
                    A, B = (W, Cc) if kind == 0 else (Cc, W)
                    spine.append(f"{MFMA} {acc}, {A}, {B}, {acc}")
            fill = {}
            fill[-1] = [lambda e: e.wait_force(lgkm=0)]
            if ks < 3:
                spread(fill, frag_reads(b, ks + 1, st ^ 1), 0, 12)
                if ks == 0 and dma_k0:
                    place_dma(fill, dma_k0, 1, 16, tag0)
                if ks == 1 and pref:
                    fill.setdefault(4, []).append((f"buffer_load_dword v{V_PD}, v{V_PA}, s[{S_CKV}:{S_CKV+3}], s{SA} offen", "pf"))
                    fill.setdefault(13, []).append((f"buffer_load_dword v{V_PD}, v{V_PB}, s[{S_W}:{S_W+3}], s{SB} offen", "pf"))
                if ks in (1, 2) and xn is not None:
                    k0 = xn + (ks - 1) * 7
                    for k in range(k0, k0 + 7):
                        g = 1 + 2 * (k - k0)
                        if k % 4 == 0 and k:
                            fill.setdefault(g - 1, []).append(f"s_add_u32 s{S_XNB}, s{S_XNB}, 4096")
                        fill.setdefault(g, []).append((f"buffer_load_dwordx4 {v(V_XN+4*k,4)}, v{V_L16}, s[{S_WS}:{S_WS+3}], s{S_XNB} offen offset:{(k%4)*1024} sc1", "xn"))
            else:
                if last:
                    fill[0] = ["s_barrier"]
                else:
                    fill[0] = [lambda e: e.wait_force(vm=(NPF if pref else 0) + (14 if xn is not None else 0)), "s_barrier"]
                    spread(fill, frag_reads(b ^ 1, 0, 0), 0, 12)
                if dma_k3:
                    place_dma(fill, dma_k3, 2, 16, tag3)
            weave(e, spine, fill)

    def c_read(kind, b, s_, j):
        off = j * 2048 if kind == 0 else (j >> 1) * 4096 + (j & 1) * 1024
        return f"ds_read_b128 {v(V_FA + s_*32 + j*4, 4)}, v{V_AA16 + ((s_ ^ j) & 1)} offset:{off + b*32768}"

    def w_read(b, s_, i):
        return [f"ds_read_b64_tr_b16 {v(V_WR + i*4 + 2*u, 2)}, v{V_AB16+i} offset:{(32*s_ + 4*u)*512 + b*32768}" for u in range(2)]

    def ktile16(e, kind, b, dma_k0, dma_k3, last=False, pref=True, tag3="dma", tag0="dma", xn=None):
        for s_ in range(2):
            spine = []
            for i in range(8):
                for j in range(8):
                    if kind == 0:
                        dt, bb, kb, nb = i >> 1, i & 1, j >> 1, j & 1
                    else:
                        dt, nb, kb, bb = i >> 1, i & 1, j >> 1, j & 1
                    acc = a((kb * 4 + dt) * 16 + nb * 8 + bb * 4, 4)
                    W, Cc = v(V_WR + i * 4, 4), v(V_FA + s_ * 32 + j * 4, 4)
                    A, B = (W, Cc) if kind == 0 else (Cc, W)
                    spine.append(f"v_mfma_f32_16x16x32_bf16 {acc}, {A}, {B}, {acc}")
            fill = {}
            nb_, ns = (b, 1) if s_ == 0 else (b ^ 1, 0)
            more = not (last and s_ == 1)
            for i in range(8):
                r = v(V_WR + i * 4, 4)
                fill.setdefault(8 * i - 1, []).append(lambda e, r=r: wait_reg(e, r))
            r = v(V_FA + s_ * 32 + 28, 4)
            fill.setdefault(-1, []).append(lambda e, r=r: wait_reg(e, r))
            if s_ == 1:
                nx = 14 if xn is not None else 0
                if last:
                    fill.setdefault(7, []).extend([lambda e: e.wait(lgkm=0), "s_barrier"])
                elif pref:
                    fill.setdefault(7, []).extend([lambda e: e.wait_force(vm=NPF + b, lgkm=0), "s_barrier"])
                else:
                    fill.setdefault(7, []).extend([lambda e: e.wait_tag("dma"), lambda e: e.wait(lgkm=0), "s_barrier"])
            if more:
                for i in range(8):
                    wr = w_read(nb_, ns, i)
                    fill.setdefault(8 * i + 7, []).append(wr[0])
                    fill.setdefault(min(8 * i + 8, 63), []).append(wr[1])
                for j in range(8):
                    fill.setdefault(10 + 6 * j, []).append(c_read(kind, nb_, ns, j))
            if s_ == 0:
                if dma_k0:
                    place_dma(fill, dma_k0, 2, min(30, 2 + (7 * len(dma_k0)) // 2), tag0)
                if pref:
                    fill.setdefault(36, []).append((f"buffer_load_dword v{V_PD}, v{V_PA}, s[{S_CKV}:{S_CKV+3}], s{SA} offen", "pf"))
                    fill.setdefault(44, []).append((f"buffer_load_dword v{V_PD}, v{V_PB}, s[{S_W}:{S_W+3}], s{SB} offen", "pf"))
                    if b == 1:
                        fill.setdefault(50, []).append((f"global_load_dword v{V_PD}, {v(V_GP,2)}, off", "pf"))
                if xn is not None:
                    for k in range(xn, xn + 14):
                        g = 31 + ((k - xn) * 32) // 14
                        if k % 4 == 0 and k:
                            fill.setdefault(g - 1, []).append(f"s_add_u32 s{S_XNB}, s{S_XNB}, 4096")
                        fill.setdefault(g, []).append((f"buffer_load_dwordx4 {v(V_XN+4*k,4)}, v{V_L16}, s[{S_WS}:{S_WS+3}], s{S_XNB} offen offset:{(k%4)*1024} sc1", "xn"))
            elif dma_k3:
                place_dma(fill, dma_k3, 11, 62, tag3)
            if opt.get("x_a_nodma"):
                for g in fill:
                    fill[g] = [x for x in fill[g] if not (isinstance(x, tuple) and x[1] in ("dma", "pf"))]
            if opt.get("x_a_nords"):
                for g in fill:
                    fill[g] = [x for x in fill[g] if not (isinstance(x, str) and x.startswith("ds_read"))]
            if opt.get("a_level", 1):
                seq = [(g, x) for g in sorted(fill) for x in fill[g]]
                new, nxt = {}, -1
                for g, x in seq:
                    t = x[0] if isinstance(x, tuple) else x
                    heavy = isinstance(t, str) and t.startswith(("ds_", "buffer_", "global_"))
                    fixed = callable(x) or t == "s_barrier"
                    if fixed:
                        new.setdefault(g, []).append(x)
                        continue
                    gg = min(63, max(g, nxt)) if heavy else min(63, max(g, nxt - 1))
                    new.setdefault(gg, []).append(x)
                    if heavy:
                        nxt = gg + 1
                fill = new
            weave(e, spine, fill)

    if A16:
        ktile = ktile16

    NT = 21

    def b_dma(u):
        part, kt = divmod(u, 7)
        slot = SLOT_ORDER[u % 10]
        it = []
        for j in range(4):
            pre = []
            if j == 0:
                pre.append(f"s_add_u32 m0, s{S_W4K}, {slot*16384}")
                off = kt * 64 * 3584 if part == 2 else kt * 64 * 8192 + part * 256
                pre.append(f"s_mov_b32 s{S_BO}, {off}")
            if part == 2:
                d = f"buffer_load_dwordx4 v{V_DQ+j}, s[{S_W1}:{S_W1+3}], s{S_BO} offen offset:{j*1024} lds"
            else:
                d = f"buffer_load_dwordx4 v{V_DQ+j}, s[{S_WQ}:{S_WQ+3}], s{S_BO} offen offset:{j*1024} lds"
            it.append((pre, d, [], f"b{u//2}"))
        return it

    segs = [pro]
    traces = [[hk]]
    tails = {}
    extra = []
    vm_loop = [("dma", frozenset())] * 40
    for kind in range(2):
        nm = "KV"[kind]
        pre = Seg(f"m_pre{nm}", pro.lds, pro.vm)
        pre.label(f"M_PRE_{nm}")
        if A16:
            seq = sorted([(8 * i + 7, 0, w_read(0, 0, i)[0]) for i in range(8)] + [(min(8 * i + 8, 63), 1, w_read(0, 0, i)[1]) for i in range(8)]
                         + [(10 + 6 * j, 2, c_read(kind, 0, 0, j)) for j in range(8)])
            for _, _, x in seq:
                pre(x)
        lp = Seg(f"m_loop{nm}", pre.lds, vm_loop)
        lp.label(f"M_LOOP_{nm}")
        d0, d1 = dma_items(0), dma_items(1)
        ktile(lp, kind, 0, d1[NK3:], d0[:NK3])
        ktile(lp, kind, 1, d0[NK3:], d1[:NK3])
        assert opt.get('x_a_nords') or lp.lds == pre.lds, (len(lp.lds), len(pre.lds))
        lp(f"s_add_u32 s{S_LP}, s{S_LP}, 1")
        for it in range(1, 8):
            if f"it{it}" in opt.get("sp", []):
                lp(f"s_cmp_lg_u32 s{S_LP}, {it}")
                lp(f"s_cbranch_scc1 M_NS{it}_{nm}")
                stamp(lp, opt, f"it{it}", raw=True)
                lp.label(f"M_NS{it}_{nm}")
        lp(f"s_cmp_le_u32 s{S_LP}, 3")
        lp("s_cbranch_scc1 M_HOOK")
        lp(f"s_cmp_lg_u32 s{S_LP}, 6")
        lp(f"s_cbranch_scc1 M_NOPOLL_{nm}")
        flag_line(lp, 7, FL_XN, S_QT)
        lp(f"buffer_load_dwordx2 {v(V_FL,2)}, v{V_FO}, s[{S_WS}:{S_WS+3}], s7 offen sc1", "pf")
        lp.label(f"M_NOPOLL_{nm}")
        lp(f"s_cmp_lt_u32 s{S_LP}, 7")
        lp(f"s_cbranch_scc1 M_LOOP_{nm}")
        tl = Seg(f"m_tail{nm}", lp.lds, lp.vm)
        tl.label(f"M_TAIL{kind}")
        bd = sum((b_dma(u) for u in range(10)), [])
        flag_test(tl, V_FL)
        tl(f"s_cselect_b32 s{S_XNF}, 1, 0")
        ktile(tl, kind, 0, d1[NK3:] + bd[:8], bd[8:20], pref=False, xn=0)
        ktile(tl, kind, 1, bd[20:24], bd[24:36], last=True, pref=False, xn=14)
        if kind == 0:
            tl("s_branch M_B")
        segs += [pre, lp, tl] + ([hk] if kind == 0 else [])
        tails[kind] = tl
        traces.append([pro, pre, lp, lp, tl])

    e = Seg("m_b", tails[0].lds, tails[0].vm)
    e.label("M_B")
    stamp(e, opt, 2)
    stamp(e, opt, "b")
    e(f"s_cmp_lt_u32 s{S_XNF}, {99 if opt.get('force_fb') else 1}")
    e("s_cbranch_scc1 M_FB")
    e.label("M_FB_RET")
    srd(e, S_WO, P_WO, WO_BYTES)
    srd(e, S_W2, P_W2, W2_BYTES)
    attn.setup_dma(e)
    e(f"v_and_b32 v{V_ST}, 15, v0")
    e(f"v_lshlrev_b32 v{V_ST}, 4, v{V_ST}")
    e("v_lshrrev_b32 v6, 4, v0")
    e(f"v_lshl_add_u32 v{V_ST}, v6, 9, v{V_ST}")
    e(f"v_mov_b32 v6, v{V_D1+3}")
    for nb in range(4):
        e(f"v_add_u32 v{V_AT3+nb}, 0x20000, v{V_AT+nb}")
    fb = Seg("m_fb")
    fb.label("M_FB")
    fb.wait_force(vm=0)
    fb(f"s_lshl_b32 s7, s{S_QT}, 7")
    fb("s_lshl_b32 s6, s3, 5")
    fb("s_add_u32 s7, s7, s6")
    fb("v_and_b32 v6, 31, v0")
    fb("v_add_u32 v6, s7, v6")
    fb("v_mul_u32_u24 v6, 896, v6")
    fb("v_lshrrev_b32 v7, 5, v0")
    fb("v_lshl_add_u32 v6, v7, 4, v6")
    for ks in range(28):
        fb(f"buffer_load_dwordx4 {v(V_XN+ks*4,4)}, v6, s[{S_X}:{S_X+3}], 0 offen offset:{ks*32}", "x")
    layernorm(fb, 112, (32,), range(112))
    fb.nop(2)
    fb("s_branch M_FB_RET")
    extra.append(fb)

    D = opt.get("b_depth", 7)
    NF = NT * 16

    def b_read(f):
        u, rem = divmod(f, 16)
        ks, nb = divmod(rem, 4)
        slot = SLOT_ORDER[u % 10]
        fr = V_FA + (f % 8) * 4
        at = (V_AT, V_AT + 4, V_AT3)[slot >> 2] + nb
        return [f"ds_read_b64_tr_b16 {v(fr+2*h,2)}, v{at} offset:{(slot&3)*16384 + (16*ks+4*h)*256}" for h in range(2)]

    def kv_epi(b):
        kb, i = divmod(b, 4)
        t = 8
        ops = []
        if i == 0 and kb:
            ops.append(f"s_add_u32 s{S_KVBASE}, s{S_KVBASE}, s{S_KVSTR}")
        if i % 2 == 0:
            ops.append(f"s_add_u32 s{S_KVC}, s{S_KVBASE}, {KV_OFF + (i>>1)*4096}")
        for c in range(2):
            for r in range(8):
                ops.append(f"v_accvgpr_read_b32 v{t+r}, a{b*16+8*c+r}")
            for r in range(4):
                ops.append(f"v_cvt_pk_bf16_f32 v{t+8+r}, v{t+2*r}, v{t+2*r+1}")
            ops.append((f"buffer_store_dwordx4 {v(t+8,4)}, v{V_ST}, s[{S_WS}:{S_WS+3}], s{S_KVC} offen offset:{(i&1)*2048+c*256}{ST}", "kvst" if kb < 2 else "kvst2"))
        if opt.get("x_nokvst"):
            ops = [o for o in ops if not isinstance(o, tuple)]
        if opt.get("x_noepi"):
            ops = []
        return ops

    def q_epi(part):
        ops = []
        t = 20
        for nb in range(4):
            if nb % 2 == 0:
                ops.append(f"s_add_u32 s{S_QC}, s{S_QB}, {part*8192 + (nb>>1)*4096}")
            for c in range(2):
                if part == 0:
                    src = H_ACC[nb] + 8 * c
                else:
                    src = t
                    for r in range(8):
                        ops.append(f"v_accvgpr_read_b32 v{t+r}, a{nb*16+8*c+r}")
                for r in range(4):
                    ops.append(f"v_cvt_pk_bf16_f32 v{t+8+r}, v{src+2*r}, v{src+2*r+1}")
                ops.append((f"buffer_store_dwordx4 {v(t+8,4)}, v{V_L16}, s[{S_QST}:{S_QST+3}], s{S_QC} offen offset:{(nb&1)*2048 + c*1024} sc1", "qst"))
                for r in range(4):
                    ops.append(f"v_accvgpr_write_b32 a{A_Q2 + part*32 + nb*8 + c*4 + r}, v{t+8+r}")
        return ops

    GKV, GCHK, GQ = opt.get("g_kv", 5), 7, 9
    fl = attn.first_loads(S_KVE)
    spine, fill = [], {}
    e.wait_tag("b0")
    e("s_barrier")
    for f in range(D):
        for r in b_read(f):
            e(r)
    place_dma(fill, b_dma(9), 1, 16)
    for f in range(NF):
        u, rem = divmod(f, 16)
        part, kt = divmod(u, 7)
        ks, nb = divmod(rem, 4)
        acc = a(nb * 16, 16) if part == 1 else v(H_ACC[nb], 16)
        c = "0" if (kt == 0 and ks == 0) else acc
        spine.append(f"{MFMA} {acc}, {v(V_FA+(f%8)*4,4)}, {v(V_XN+(kt*4+ks)*4,4)}, {c}")
        nf = f + D
        if nf < NF:
            if nf % 32 == 0:
                g = nf // 32
                ops = [lambda e, g=g: e.wait_tag(f"b{g}")]
                if g == GKV:
                    ops.append(lambda e: e.wait_tag("kvst"))
                if g == GQ:
                    ops.append(lambda e: e.wait_tag("qst"))
                if g == GCHK:
                    ops += [lambda e: flag_test(e, 24), f"s_cselect_b32 s{S_EARLY}, 1, 0",
                            f"s_cselect_b32 s{S_KVE+2}, {WS_BYTES:#x}, 0"]
                ops.append("s_barrier")
                if g == GKV:
                    ops += ["s_cmp_eq_u32 s3, 0", "s_cbranch_scc1 M_SKV", "M_SKV_RET:"]
                if g == GQ:
                    ops += ["s_cmp_eq_u32 s3, 0", "s_cbranch_scc1 M_SQ", "M_SQ_RET:"]
                if g == 10:
                    ops += [f"s_cmp_lt_u32 s{S_QT}, 8", "s_cbranch_scc1 M_EQ", "M_EQ_RET:"]
                if g == 4:
                    ops += [f"v_add_u32 v{V_DQ+j}, {j*4*3584 - j*1024}, v6" for j in range(4)]
                if f"g{g}" in opt.get("sp", []):
                    ops.append(lambda e, g=g: stamp(e, opt, f"g{g}", raw=True))
                fill.setdefault(f, []).extend(ops)
                if g >= 2:
                    its = []
                    for u2 in (2 * g + 6, 2 * g + 7):
                        if u2 < NT:
                            its += b_dma(u2)
                    if its:
                        place_dma(fill, its, f + 2, f + 30)
                if g == 9:
                    spread(fill, sum(fl[:4], []), f + 2, f + 32)
                if g == 10:
                    spread(fill, sum(fl[4:], []), f + 2, f + 20)
            fill.setdefault(f, []).extend(b_read(nf))
        if f % 2 == 0:
            r = v(V_FA + (min(f + 1, NF - 1) % 8) * 4, 4)
            fill.setdefault(f - 1, []).append(lambda e, r=r: wait_reg(e, r))
    g1, g2, gq0, gq1 = opt.get("kv_split", (108, 325, 117, 262))
    pour(fill, sum((kv_epi(b) for b in range(0, 8)), []), 2, g1)
    pour(fill, q_epi(0), gq0, 190)
    pour(fill, q_epi(1), 224 + 5, gq1)
    pour(fill, [f"s_mov_b32 s{S_KVE}, s{S_WS}", f"s_mov_b32 s{S_KVE+1}, s{S_WS+1}", f"s_mov_b32 s{S_KVE+3}, 0x20000",
                lambda e: flag_line(e, 73, FL_KV, S_HEAD), lambda e: flag_line(e, 74, FL_PAIR, S_PAIR)], 160, 180)
    fill.setdefault(opt.get("g_pkv", 196), []).append(f"buffer_load_dwordx2 v[24:25], v{V_FO}, s[{S_WS}:{S_WS+3}], s73 offen sc1")
    GP = opt.get("g_poll", 298)
    fill.setdefault(GP - 1, []).append(f"v_mov_b32 v{VPQ+2}, 0")
    fill.setdefault(GP, []).append((f"buffer_load_dwordx2 {v(VPQ,2)}, v{VPQ+2}, s[{S_WS}:{S_WS+3}], s74 offen sc1", "pq"))
    fill.setdefault(GP, []).append(f"s_mov_b32 s{S_GOTQ}, 0")
    pour(fill, [f"v_accvgpr_mov_b32 a{A_Q+r}, a{A_Q2+r}" for r in range(64)], gq1 + 2, 312)
    pour(fill, sum((kv_epi(b) for b in range(8, 16)), []), g1, g2)
    younger = [0]

    def count_pq(e):
        tags = [t for t, d in e.vm]
        younger[0] = len(tags) - 1 - tags.index("pq") if "pq" in tags else 63
    count_pq.cost = 0
    fill[313].insert(fill[313].index("s_barrier"), count_pq)
    for k in range(8, 26):
        for r in (0, 2):
            g = min(range(224 + 4 * k + 5, 336), key=lambda g: (load_of(fill, g), g))
            fill.setdefault(g, []).append(f"v_mov_b64 {v(V_XN+4*k+r,2)}, 0")
    print(gap_report("phase B", fill, NF))
    weave(e, spine, fill)
    stamp(e, opt, 3)
    stamp(e, opt, "bend")

    skv = Seg("m_skv")
    skv.label("M_SKV")
    flag_line(skv, 7, FL_KV, S_HA)
    flag_set(skv, S_WS, 7, f"s{S_KVSLOT}", 20)
    skv("s_branch M_SKV_RET")
    sq = Seg("m_sq")
    sq.label("M_SQ")
    sq(f"s_cmp_lt_u32 s{S_QT}, 8")
    sq("s_cbranch_scc1 M_SQ_RET")
    flag_set(sq, S_WS, 74, 0, V_XN)
    sq("s_branch M_SQ_RET")

    def spin(e, name, vd, voff, line, first=True):
        e("s_mov_b32 s6, 0")
        e.label(name)
        if first:
            e(f"buffer_load_dwordx2 {v(vd,2)}, v{voff}, s[{S_WS}:{S_WS+3}], s{line} offen sc1")
        e.wait_force(vm=0)
        flag_test(e, vd)
        e(f"s_cbranch_scc1 {name}_OK")
        e("s_sleep 2")
        if not first:
            e(f"buffer_load_dwordx2 {v(vd,2)}, v{voff}, s[{S_WS}:{S_WS+3}], s{line} offen sc1")
        e("s_add_u32 s6, s6, 1")
        e(f"s_cmp_lt_u32 s6, {PMAX}")
        e(f"s_cbranch_scc1 {name}")
        e.wait_force(vm=0)
        e.label(name + "_OK")

    late = Seg("m_late")
    late.label("M_LATE")
    spin(late, "M_PKV", 24, V_FO, 73)
    for grp in attn.first_loads(S_WS):
        run(late, grp)
    late.wait_force(vm=0)
    late("s_branch M_LATE_RET")
    def q_loads(g):
        for k in range(16):
            if k and k % 4 == 0:
                g(f"s_add_u32 s{S_QB}, s{S_QB}, 4096")
            g(f"buffer_load_dwordx4 {a(A_Q+4*k,4)}, v{V_L16}, s[{S_WS}:{S_WS+3}], s{S_QB} offen offset:{(k%4)*1024} sc1", "q")

    gq = Seg("m_getq")
    gq.label("M_EQ")
    gq.wait_force(vm=younger[0])
    flag_test(gq, VPQ)
    gq("s_cbranch_scc0 M_EQ_RET")
    q_loads(gq)
    gq(f"s_mov_b32 s{S_GOTQ}, 1")
    gq("s_branch M_EQ_RET")
    gq.label("M_GETQ")
    gq(f"s_cmp_eq_u32 s{S_GOTQ}, {2 if opt.get('force_late') else 1}")
    gq("s_cbranch_scc1 M_GETQ_RET")
    if opt.get('force_late'):
        gq(f"s_mul_i32 s6, s{S_GOTQ}, 12288")
        gq(f"s_sub_u32 s{S_QB}, s{S_QB}, s6")
    spin(gq, "M_PQ", VPQ, VPQ + 2, 74)
    q_loads(gq)
    gq("s_branch M_GETQ_RET")
    wq = Seg("m_waitq")
    wq.label("M_WAITQ")
    wq.wait_force(vm=0)
    wq("s_branch M_WAITQ_RET")
    extra += [skv, sq, late, gq, wq]

    e(f"s_cmp_eq_u32 s{S_EARLY}, {2 if opt.get('force_late') else 1}")
    e("s_cbranch_scc0 M_LATE")
    e.label("M_LATE_RET")
    e(f"s_cmp_lt_u32 s{S_QT}, 8")
    e("s_cbranch_scc1 M_GETQ")
    e.label("M_GETQ_RET")
    stamp(e, opt, "polled")
    HS = V_XN + 4
    for k in range(28):
        nb, r = divmod(k, 8)
        e(f"v_cvt_pk_bf16_f32 v{HS+k}, v{H_ACC[nb]+2*r}, v{H_ACC[nb]+2*r+1}")
    srd(e, S_OUT, P_OUT, OUT_BYTES)
    attn.setup_v(e)
    e("s_getpc_b64 s[80:81]")
    e.label("M_PC_A")
    e("s_lshr_b32 s7, s2, 3")
    e("s_lshl_b32 s7, s7, 2")
    e("s_add_u32 s7, s7, s3")
    e("s_mul_i32 s7, s7, 512")
    e(f"v_min_u32 v{attn.V_X+3}, 3, v0")
    e(f"v_lshl_add_u32 v{attn.V_X+3}, v{attn.V_X+3}, 7, s7")
    e(f"v_min_u32 v{attn.V_X+3}, M_CODE_END-M_PC_A-8, v{attn.V_X+3}")
    attn.init_state(e, V_XN + 4 * 26)
    e(f"s_cmp_lt_u32 s{S_QT}, 8")
    e("s_cbranch_scc1 M_WAITQ")
    e.label("M_WAITQ_RET")
    stamp(e, opt, 4)
    stamp(e, opt, "a0")

    RA, RB, XR, VO, VP = 180, 32, 12, 2, 10

    def hooks(fill, NFE, ED):
        g = 6 * NFE - ED
        fill[g].extend(["s_cmp_eq_u32 s3, 0", "s_cbranch_scc1 M_SYA", "M_SYA_RET:"])
        ops = [f"s_lshl_b32 s7, s{S_QT}, 2", f"s_lshr_b32 s4, s{S_HEAD}, 2", "s_add_u32 s4, s4, s7",
               f"s_and_b32 s5, s{S_HEAD}, 3", "s_lshl_b32 s6, s3, 2", "s_add_u32 s5, s5, s6",
               "s_mul_i32 s6, s4, 28", "s_add_u32 s6, s6, s5", "s_lshl_b32 s6, s6, 10",
               f"s_add_u32 s53, s6, {Y_OFF}", "s_add_u32 s54, s53, 16384",
               f"v_and_b32 v{VO}, 31, v0", "v_lshrrev_b32 v3, 5, v0", "s_lshl_b32 s4, s4, 5", f"v_add_u32 v{VO}, s4, v{VO}",
               f"v_mul_u32_u24 v{VO}, 896, v{VO}", f"v_lshl_add_u32 v{VO}, v3, 3, v{VO}", "s_lshl_b32 s5, s5, 5",
               f"v_add_u32 v{VO}, s5, v{VO}"]
        ops += [f"buffer_load_dwordx2 {v(XR+2*k,2)}, v{VO}, s[{S_X}:{S_X+3}], 0 offen offset:{(k>>1)*512+(k&1)*16}" for k in range(4)]
        ops += [lambda e: flag_line(e, 55, FL_Y, S_QT), lambda e: flag_line(e, 63, FL_YA, S_QT)]
        pour(fill, ops, 5 * NFE + 2, 5 * NFE + 34)
        fill.setdefault(6 * NFE + opt.get("g_pa", 22), []).append(
            (f"buffer_load_dwordx2 {v(VP,2)}, v{V_FO}, s[{S_WS}:{S_WS+3}], s63 offen sc1", "pa"))

    sya = Seg("m_sya")
    sya.label("M_SYA")
    sya(f"s_lshl_b32 s6, s{S_HEAD}, 3")
    flag_set(sya, S_WS, 63, "s6", 20)
    sya("s_branch M_SYA_RET")
    extra.append(sya)

    def finish(e):
        stamp(e, opt, "yend")

        def loads(base, sreg, tag):
            for h in range(16):
                e(f"buffer_load_dwordx4 {v(base+4*h,4)}, v{V_L16}, s[{S_WS}:{S_WS+3}], s{sreg} offen sc1", tag)
                if h < 15:
                    e(f"s_add_u32 s{sreg}, s{sreg}, {64*28*1024}")

        def reduce(base, xr, off):
            acc, t = 20, 28
            for r in range(4):
                e(f"v_lshlrev_b32 v{acc+2*r}, 16, v{xr+r}")
                e(f"v_and_b32 v{acc+1+2*r}, 0xffff0000, v{xr+r}")
            for h in range(16):
                for r in range(4):
                    src = base + 4 * h + r
                    u = t + 2 * (r & 1)
                    e(f"v_lshlrev_b32 v{u}, 16, v{src}")
                    e(f"v_and_b32 v{u+1}, 0xffff0000, v{src}")
                    e(f"v_pk_add_f32 {v(acc+2*r,2)}, {v(acc+2*r,2)}, {v(u,2)}")
            for r in range(4):
                e(f"v_cvt_pk_bf16_f32 v{xr+r}, v{acc+2*r}, v{acc+1+2*r}")
            e(f"buffer_store_dwordx2 {v(xr,2)}, v{VO}, s[{S_OUT}:{S_OUT+3}], 0 offen offset:{off}")
            e(f"buffer_store_dwordx2 {v(xr+2,2)}, v{VO}, s[{S_OUT}:{S_OUT+3}], 0 offen offset:{off+16}")

        flag_test(e, VP)
        e("s_cselect_b32 s60, 1, 0")
        e("s_cbranch_scc0 M_NOA")
        loads(RA, 53, "ra")
        e.wait_force(vm=16)
        e("s_branch M_A1")
        e.label("M_NOA")
        e.wait_force(vm=0)
        e.label("M_A1")
        e("s_barrier")

        e("s_cmp_lg_u32 s3, 3")
        e("s_cbranch_scc1 M_PA_OK")
        e(f"s_lshl_b32 s6, s{S_HEAD}, 3")
        flag_set(e, S_WS, 55, "s6", 20)
        e("s_cmp_eq_u32 s60, 1")
        e("s_cbranch_scc1 M_PA_OK")
        spin(e, "M_PA", VP, V_FO, 63)
        e("s_barrier")
        e("s_cmp_eq_u32 s60, 1")
        e("s_cbranch_scc1 M_A2")
        loads(RA, 53, "ra")
        e.label("M_A2")
        e("s_cmp_eq_u32 s3, 3")
        e("s_cbranch_scc1 M_W3")
        e.wait_force(vm=0)
        reduce(RA, XR, 0)
        e("s_barrier")
        stamp(e, opt, "ypoll")
        e.vm = []
        loads(RB, 54, "rb")
        reduce(RB, XR + 4, 512)
        e("s_branch M_DONE")
        e.label("M_W3")
        spin(e, "M_PB", VP, V_FO, 55)
        e("s_barrier")
        stamp(e, opt, "ypoll")
        reduce(RA, XR, 0)
        e.label("M_DONE")
        stamp(e, opt, 5)
        stamp(e, opt, "end")
        stamp_flush(e, opt, 0, S_WS, 6)

    aopt = dict(opt)
    aopt["code_pf"] = not opt.get("no_cpf")
    aopt["stash"] = HS
    aopt["kv2"] = (S_HA, S_KVSLOT, V_FO)
    if not opt.get("sp"):
        aopt["sp"] = ["none"]
        aopt["spk"] = ""
    asegs, atraces = attn.gen_attn(e, aopt, "M_END", finish, hooks)
    z = Seg("m_z")
    z.label("M_CODE_END")
    segs += asegs + extra + [z]
    for t in traces[1:]:
        t.append(e)
    traces += atraces + [[tails[0], fb, e]] + [[x] for x in extra]
    return segs, traces
```

```python
from emit import *
from common import *

LDS_BYTES = 160 * 1024
S_WS, S_WO, S_W2, S_Y1 = 16, 8, 12, 28
V_L16, V_PD = 1, 2
V_DMA, V_DMA2 = 3, 4
V_L0, V_L1, V_VA, V_HA, V_D0, V_NEGBIG, V_MAX, V_MS = 8, 9, 10, 11, 13, 14, 15, 16
V_T = 18
V_S = (32, 48)
V_P = (64, 72)
V_NM = 80
V_X = 96
V_O = 128
A_Q, A_Q2, A_F, A_HF = 0, 64, 128, 192
S_HEAD, S_QT, S_NH, S_IT, S_T, S_RET, S_DELTA, S_ITH, S_OFFH, S_OFFD = 32, 33, 34, 35, 36, 37, 38, 39, 40, 41
S_KVB, S_W4K, S_PAIR, S_ITSW, S_ITSIG, S_PEND = 42, 43, 48, 49, 50, 51
S_OFF = 44
THR = 16.0
VSLOT = {32: 0x20000, 33: 0x24000}
S_NEG, S_QS, S_PFO, S_PFD, S_PUB = 52, 82, 83, 84, 78
V_KP = 12
KPD = 7
KVM = [""]


def setup_s(e):
    e(f"s_lshl_b32 s4, s{S_QT}, 2")
    e(f"s_sub_u32 s{S_NH}, 30, s4")
    e(f"s_sub_u32 s6, 15, s{S_QT}")
    e(f"s_cmp_ge_u32 s{S_QT}, 8")
    e(f"s_cselect_b32 s{S_NH}, 0, s{S_NH}")
    e(f"s_cselect_b32 s{S_PAIR}, s6, s{S_QT}")
    e(f"s_lshl_b32 s5, s{S_HEAD}, 3")
    e(f"s_add_u32 s{S_PAIR}, s{S_PAIR}, s5")
    e(f"s_lshl_b32 s{S_W4K}, s3, 12")
    e(f"s_lshl_b32 s{S_KVB}, s{S_HEAD}, 21")
    e(f"s_sub_u32 s5, 29, s{S_NH}")
    e("s_lshl_b32 s5, s5, 15")
    e(f"s_add_u32 s{S_OFFH}, s5, s{S_KVB}")
    e("s_lshl_b32 s5, s4, 15")
    e(f"s_add_u32 s{S_OFFD}, s5, s{S_KVB}")
    e(f"s_sub_u32 s5, s{S_NH}, 6")
    e("s_lshr_b32 s5, s5, 2")
    e(f"s_cmp_ge_u32 s{S_NH}, 6")
    e(f"s_cselect_b32 s{S_ITH}, s5, 99")
    e(f"s_lshr_b32 s5, s{S_NH}, 2")
    e(f"s_cmp_ge_u32 s{S_QT}, 8")
    e(f"s_cselect_b32 s{S_ITSW}, 99, s5")
    e(f"s_mov_b32 s{S_ITSIG}, s{S_ITSW}")
    e("s_cmp_eq_u32 s3, 0")
    e(f"s_cselect_b32 s{S_ITSIG}, s{S_ITSIG}, 99")
    e(f"s_mov_b32 s{S_NEG}, 0xffff8000")
    e(f"s_mov_b32 s{S_PEND}, 0")
    e(f"s_mov_b32 s{S_IT}, 0")
    e(f"s_mov_b32 s{S_T}, {f32(THR)}")


def setup_dma(e):
    e(f"v_lshlrev_b32 v{V_L16}, 4, v0")
    e(f"v_add_u32 v{V_DMA}, s{S_W4K}, v{V_L16}")
    e(f"v_add_u32 v{V_DMA2}, 0x4000, v{V_DMA}")


def setup_v(e):
    e(f"s_mul_i32 s5, s{S_QT}, 112")
    e("s_mul_i32 s6, s3, 28")
    e("s_add_u32 s5, s5, s6")
    e(f"v_min_u32 v{V_T}, 27, v0")
    e(f"v_add_u32 v{V_T}, s5, v{V_T}")
    e(f"s_mul_i32 s5, s{S_HEAD}, 229376")
    e(f"v_lshl_add_u32 v{V_X+1}, v{V_T}, 7, s5")
    e("s_mul_i32 s6, s3, 13")
    e(f"v_min_u32 v{V_T}, 12, v0")
    e(f"v_add_u32 v{V_T}, s6, v{V_T}")
    e(f"v_min_u32 v{V_T}, 48, v{V_T}")
    e(f"s_mul_i32 s5, s{S_QT}, 49")
    e(f"v_add_u32 v{V_T}, s5, v{V_T}")
    e(f"s_mul_i32 s5, s{S_HEAD}, 100352")
    e(f"v_lshl_add_u32 v{V_X+2}, v{V_T}, 7, s5")
    e(f"v_add_u32 v{V_VA}, 0x10000, v{V_L16}")
    e(f"v_and_b32 v{V_T}, 31, v0")
    e(f"v_lshrrev_b32 v{V_T+1}, 5, v0")
    e(f"v_lshlrev_b32 v{V_T+1}, 2, v{V_T+1}")
    e(f"v_sub_u32 v{V_D0}, v{V_T}, v{V_T+1}")
    e(f"v_mov_b32 v{V_NEGBIG}, {f32(-1e30)}")
    e(f"s_mov_b32 s{S_QS}, {f32(QSCALE)}")
    e("s_cmp_eq_u32 s3, 0")
    e(f"s_cselect_b32 s{S_PUB}, 2, 0")
    e(f"s_and_b32 s5, s{S_QT}, 7")
    e("s_lshl_b32 s5, s5, 2")
    e("s_add_u32 s5, s5, s3")
    e("s_lshl_b32 s5, s5, 10")
    e(f"v_and_b32 v{V_T}, 7, v0")
    e(f"v_lshl_add_u32 v{V_KP}, v{V_T}, 7, s5")
    e(f"v_bfe_u32 v{V_T}, v0, 3, 2")
    e(f"v_lshl_add_u32 v{V_KP}, v{V_T}, 15, v{V_KP}")
    e(f"s_cmp_ge_u32 s{S_QT}, 8")
    e(f"s_cselect_b32 s{S_PFO}, {29 - KPD - 3}, {30 + KPD}")
    e(f"s_cselect_b32 s{S_PFD}, -4, 4")
    e("s_mul_i32 s5, s3, 7168")
    e("s_add_u32 s5, s5, 0x20000")
    e(f"v_add_u32 v{V_HA}, s5, v{V_L16}")


def idx_ops(dst, n):
    return [
        f"s_mov_b32 s{dst}, {(29-n) << 15}",
        f"s_cmp_gt_u32 s{S_NH}, {n}",
        f"s_cselect_b32 s{dst}, {(30+n) << 15}, s{dst}",
        f"s_add_u32 s{dst}, s{dst}, s{S_KVB}",
    ]


def dmaK(slot, off, tag="dma", S_WS=S_WS):
    return [f"s_add_u32 m0, s{S_W4K}, {slot*16384}"] + [
        (f"buffer_load_dwordx4 v{V_DMA}, s[{S_WS}:{S_WS+3}], s{off} offen offset:{j*1024}{KVM[0]} lds", tag) for j in range(4)]


def dmaV(base, off, tag="dma", S_WS=S_WS):
    return [f"s_add_u32 m0, s{S_W4K}, {base}"] + [
        (f"buffer_load_dwordx4 v{V_DMA2}, s[{S_WS}:{S_WS+3}], s{off} offen offset:{j*1024}{KVM[0]} lds", tag) for j in range(4)]


def first_loads(sr=S_WS):
    out = [[idx_ops(S_OFF + n, n)] for n in range(4)]
    seq = [out[0] + dmaK(0, S_OFF + 0, "k0", sr), dmaV(0x10000, S_OFF + 0, "v0", sr), out[1] + dmaK(1, S_OFF + 1, "k1", sr),
           dmaV(0x14000, S_OFF + 1, "v1", sr), out[2] + dmaK(2, S_OFF + 2, "k2", sr), out[3] + dmaK(3, S_OFF + 3, "k3", sr)]
    return seq


def init_state(e, o_from=V_O):
    for r in range(o_from, V_O + 128, 2):
        e(f"v_mov_b64 {v(r,2)}, 0")
    for r in range(0, 16, 2):
        e(f"v_mov_b64 {v(V_NM+r,2)}, 0")
    e(f"v_mov_b64 {v(V_L0,2)}, 0")


def gen_attn(e, opt, end_label, finish=None, hooks=None):
    D = opt.get("a_depth", 14)
    WG = opt.get("a_waitgrp", 4)
    YM = opt.get("y_store_mod", "")
    KPF = 1 if opt.get("kpf") else 0
    NEPF = 0 if opt.get("no_epf") else (3 if opt.get("code_pf") else 2)

    def rd(f, kslot, vbase):
        d = a(A_F + (f % 16) * 4, 4)
        if f < 16:
            return f"ds_read_b128 {d}, v{V_L16} offset:{kslot*16384 + f*1024}"
        g, dt = divmod(f - 16, 8)
        return f"ds_read_b128 {d}, v{V_VA} offset:{vbase + (dt*2+g)*1024}"

    def mf(f, par):
        fr = a(A_F + (f % 16) * 4, 4)
        if f < 16:
            S = v(V_S[par ^ 1], 16)
            C = v(V_NM, 16) if f == 0 else S
            return f"{MFMA} {S}, {fr}, {a(A_Q+4*f,4)}, {C}"
        g, dt = divmod(f - 16, 8)
        O = v(V_O + dt * 16, 16)
        return f"{MFMA} {O}, {fr}, {v(V_P[par]+4*g,4)}, {O}"

    def max_ops(par):
        S = V_S[par]
        t = V_T
        ops = [f"v_max3_f32 v{t+k}, v{S+3*k}, v{S+3*k+1}, v{S+3*k+2}" for k in range(5)]
        ops += [f"v_max3_f32 v{t}, v{t}, v{t+1}, v{t+2}", f"v_max3_f32 v{t+3}, v{t+3}, v{t+4}, v{S+15}",
                f"v_max_f32 v{V_MAX}, v{t}, v{t+3}", f"v_cmp_lt_f32 vcc, s{S_T}, v{V_MAX}"]
        return ops

    def soft_ops(par):
        S, P = V_S[par], V_P[par]
        ops = []
        for k in range(9):
            if k < 8:
                ops += [f"v_exp_f32 v{S+2*k}, v{S+2*k}", f"v_exp_f32 v{S+2*k+1}, v{S+2*k+1}"]
            if k > 0:
                j = k - 1
                ops += [f"v_cvt_pk_bf16_f32 v{P+j}, v{S+2*j}, v{S+2*j+1}",
                        f"v_add_f32 v{V_L0}, v{V_L0}, v{S+2*j}", f"v_add_f32 v{V_L1}, v{V_L1}, v{S+2*j+1}"]
        return ops

    def mask_ops(par, t):
        S = V_S[par]
        ops = [[f"s_sub_u32 s54, {t}, s3", "s_lshl_b32 s54, s54, 5", f"v_subrev_u32 v{V_X}, s54, v{V_D0}"]]
        for h in range(4):
            for r in range(4 * h, 4 * h + 4):
                ops.append(f"v_cmp_le_i32 s[{64+2*(r%8)}:{65+2*(r%8)}], {8*(r>>2)+(r&3)}, v{V_X}")
            if h > 0:
                for r in range(4 * h - 4, 4 * h):
                    ops.append(f"v_cndmask_b32 v{S+r}, v{V_NEGBIG}, v{S+r}, s[{64+2*(r%8)}:{65+2*(r%8)}]")
        ops.append("s_nop 0")
        for r in range(12, 16):
            ops.append(f"v_cndmask_b32 v{S+r}, v{V_NEGBIG}, v{S+r}, s[{64+2*(r%8)}:{65+2*(r%8)}]")
        return ops

    def waits(fill, lo, hi, shift=0):
        for f in range(lo, hi, WG):
            r = a(A_F + ((f + WG - 1) % 16) * 4, 4)
            fill.setdefault(f - 1 - shift, []).append(lambda e, r=r: wait_reg(e, r))

    def place(fill, ops, g0, step=2):
        fill.setdefault(g0, []).append(ops[0])
        for j, d in enumerate(ops[1:]):
            fill.setdefault(g0 + 1 + step * j, []).append(d)

    rare_sites = {0: [], 1: []}
    stubs = Seg("a_stubs")

    def rare_check(e, par, name):
        k = len(rare_sites[par])
        rare_sites[par].append(name)
        e(f"s_cbranch_vccnz A_ST_{name}")
        e.label(f"A_RET_{name}")
        stubs.label(f"A_ST_{name}")
        stubs(f"s_mov_b32 s{S_RET}, {k}")
        stubs(f"s_branch A_RARE{par}")

    V_EV, V_EA = V_X + 4, V_X + 8

    def e_setup():
        ops = ["v_lshrrev_b32 v24, 3, v0", "v_mul_u32_u24 v24, 896, v24", "v_bfe_u32 v25, v0, 2, 1", "v_bfe_u32 v26, v0, 4, 1",
               "v_xor_b32 v25, v25, v26", "v_lshl_add_u32 v24, v25, 6, v24", "v_and_b32 v25, 3, v0",
               f"v_lshl_add_u32 v{V_EV}, v25, 4, v24"]
        ops += [f"v_add_u32 v{V_EV+j}, {j*7168 - j*1024}, v{V_EV}" for j in range(1, 4)]
        ops += [f"s_mul_i32 s56, s{S_HEAD}, 229376", "s_mul_i32 s4, s3, 57344", "s_add_u32 s56, s56, s4",
                f"s_mul_i32 s57, s{S_HEAD}, 100352", "s_mul_i32 s4, s3, 28672", "s_add_u32 s57, s57, s4",
                "s_lshl_b32 s60, s3, 13"]
        ops += ["v_lshrrev_b32 v24, 5, v0", "v_bfe_u32 v25, v0, 2, 2", "v_lshl_add_u32 v24, v24, 2, v25", "v_lshlrev_b32 v24, 7, v24",
                "v_lshl_add_u32 v24, v26, 5, v24", "v_and_b32 v25, 3, v0", "v_lshl_add_u32 v24, v25, 3, v24", "v_bfe_u32 v25, v0, 3, 1",
                f"v_lshl_add_u32 v{V_EA}, v25, 6, v24", f"v_xor_b32 v{V_EA+1}, 64, v{V_EA}"]
        ops += [f"s_lshl_b32 s62, s{S_HEAD}, 6", f"s_lshl_b32 s4, s{S_QT}, 2", "s_add_u32 s62, s62, s4", "s_add_u32 s62, s62, s3",
                "s_mul_i32 s62, s62, 28672", f"s_add_u32 s62, s62, {Y_OFF}"]
        return ops

    def e_dma(tag="edma"):
        ops = []
        for grp in range(2):
            ops.append(["s_add_u32 s61, s58, s60", f"s_add_u32 m0, s61, {grp*4096}", f"s_add_u32 s61, s56, {grp*32*896}"])
            for j in range(4):
                ops.append((f"buffer_load_dwordx4 v{V_EV+j}, s[{S_WO}:{S_WO+3}], s61 offen offset:{j*1024} lds", tag))
        ops.append([f"s_add_u32 m0, s59, s{S_W4K}", "s_add_u32 s56, s56, 128"])
        for j in range(4):
            ops.append((f"buffer_load_dwordx4 v{V_EV+j}, s[{S_W2}:{S_W2+3}], s57 offen offset:{j*1024} lds", tag))
        ops.append("s_add_u32 s57, s57, 128")
        return ops

    EO = (0x8000, 0x14000, 0x20000)
    E2 = (0x10000, 0x1c000, 0x0)

    e.wait_tag("q")
    e.wait_tag("k0")
    e.wait(lgkm=0)
    e("s_barrier")
    HS = opt["stash"]
    for k in range(7):
        e(f"ds_write_b128 v{V_HA}, {v(HS+4*k,4)} offset:{k*1024}")
    for f in range(D):
        e(rd(f, 0, 0))
    spine = [mf(f, 1) for f in range(16)]
    fill = {}
    waits(fill, 0, 16)
    for f in range(16):
        nf = f + D
        if nf == 16:
            fill.setdefault(f, []).extend([lambda e: e.wait_tag("k1"), lambda e: e.wait(lgkm=0), "s_barrier"])
        fill.setdefault(f, []).append(rd(nf % 16, 0 if nf < 16 else 1, 0))
    weave(e, spine, fill)
    run(e, idx_ops(S_OFF + 0, 4))
    e(f"s_cmp_gt_u32 s{S_NH}, 4")
    e(f"s_cselect_b32 s{S_DELTA}, 0x8000, s{S_NEG}")
    run(e, dmaK(0, S_OFF + 0))
    run(e, max_ops(0))
    stamp(e, opt, 1, raw=True)
    stamp(e, opt, "a_loop", raw=True)
    e(f"s_mov_b32 s{S_RET}, 0")
    e("s_branch A_FIRST")
    pro = e
    stateL, stateV = list(e.lds), [("dma", frozenset())] * 63

    def step(e, p, n=None):
        par = p & 1
        nm = f"L{p}" if n is None else f"P{n}"
        if p == 1:
            e(f"s_cmp_eq_u32 s{S_IT}, s{S_ITSW}")
            e(f"s_cbranch_scc1 A_SW1")
            e.label(f"A_SW1_RET_{nm}")
        spine = [mf(f, par) for f in range(32)]
        fill = {}
        waits(fill, 0, 32)
        vb = p * 16384 if n not in VSLOT else VSLOT[n] - 0x10000
        gb = 32 - D
        if n == 32:
            fill.setdefault(-1, []).append(f"v_add_u32 v{V_VA}, 0x10000, v{V_VA}")
            vb = 0
        for f in range(32):
            nf = f + D
            if nf == 32 and (n is None or n <= 30):
                vm = (8 + (NEPF if p in (0, 3) else 0) + (KPF if (p in (0, 1) and n is None) else 0)) if (n is None or n < 29) else (16 if n == 29 else 0)
                if n is None and p == 2:
                    fill.setdefault(f, []).extend([f"s_cmp_eq_u32 s{S_IT}, s{S_ITSW}", "s_cbranch_scc1 A_ALTW",
                                                   lambda e, vm=vm: e.wait_force(vm=vm), "A_ALTW_RET:", "s_barrier"])
                else:
                    fill.setdefault(f, []).extend([lambda e, vm=vm: e.wait_force(vm=vm), "s_barrier"])
            if nf < 32:
                fill.setdefault(f, []).append(rd(nf, (p + 1) % 4, vb))
            elif n != 32:
                fill.setdefault(f, []).append(rd(nf - 32, (p + 2) % 4, 0))
        if n is None or n <= 29:
            place(fill, dmaV(0x10000 + ((p + 2) % 4) * 16384, S_OFF + (p + 2) % 4), 0)
        if n is None or n <= 28:
            o = [f"s_add_u32 s{S_OFF+(p+1)%4}, s{S_OFF+p}, s{S_DELTA}"]
            if p == 1:
                d = S_OFF + 2
                o += [[f"s_cmp_eq_u32 s{S_IT}, s{S_ITH}", f"s_cselect_b32 s{d}, s{S_OFFH}, s{d}", f"s_cselect_b32 s{S_DELTA}, s{S_NEG}, s{S_DELTA}"],
                      [f"s_cmp_eq_u32 s{S_IT}, 6", f"s_cselect_b32 s{d}, s{S_OFFD}, s{d}", f"s_cselect_b32 s{S_DELTA}, 0x8000, s{S_DELTA}"]]
            else:
                pass
            place(fill, dmaK((p + 1) % 4, S_OFF + (p + 1) % 4), gb, 3)
            pour(fill, o, 9, gb)
        if n == 29:
            place(fill, dmaV(VSLOT[32], S_OFF + 0), 8, 1)
            place(fill, dmaV(VSLOT[33], S_OFF + 1), 13, 1)
        if n == 28:
            pour(fill, e_setup(), 9, 31)
        if n == 30:
            fill.setdefault(gb, []).extend([f"s_mov_b32 s58, {EO[0]}", f"s_mov_b32 s59, {E2[0]}"])
            pour(fill, e_dma("e0"), gb + 1, 32)
        if n is None and p == 3:
            fill.setdefault(gb + 2, []).extend([f"s_cmp_eq_u32 s{S_IT}, s{S_ITSIG}", "s_cbranch_scc1 A_SIG", "A_SIG_RET:"])
        if n is None and p == 2:
            fill.setdefault(9, []).extend([f"s_bitcmp1_b32 10, s{S_IT}", "s_cbranch_scc1 A_KV2L", "A_KV2L_RET:"])
            fill.setdefault(gb + 2, []).extend([f"s_cmp_lt_u32 s{S_IT}, s{S_PUB}", "s_cbranch_scc1 A_KV2S", "A_KV2S_RET:"])
        if n == 31:
            fill.setdefault(2, []).extend([lambda e: flag_line(e, 55, FL_PAIR, S_PAIR), f"v_mov_b32 v{V_X+12}, 8"])
            fill.setdefault(4, []).append((f"buffer_load_dwordx2 {v(V_X+14,2)}, v{V_X+12}, s[{S_WS}:{S_WS+3}], s55 offen sc1", "ep"))
        if n is None and p == 0 and KPF:
            fill.setdefault(9, []).append([f"s_max_i32 s53, s{S_PFO}, 0", "s_min_i32 s53, s53, 60", "s_lshl_b32 s53, s53, 15",
                                           f"s_add_u32 s53, s53, s{S_KVB}"])
            fill.setdefault(11, []).append((f"buffer_load_dword v{V_PD}, v{V_KP}, s[{S_WS}:{S_WS+3}], s53 offen", "pf"))
            fill.setdefault(12, []).append(f"s_add_i32 s{S_PFO}, s{S_PFO}, s{S_PFD}")
        if n is None and p == 3 and NEPF:
            fill.setdefault(10, []).append((f"buffer_load_dword v{V_PD}, v{V_X+1}, s[{S_WO}:{S_WO+3}], 0 offen", "pf"))
            fill.setdefault(12, []).append((f"buffer_load_dword v{V_PD}, v{V_X+2}, s[{S_W2}:{S_W2+3}], 0 offen", "pf"))
            if NEPF == 3:
                fill.setdefault(14, []).append((f"global_load_dword v{V_PD}, v{V_X+3}, s[80:81]", "pf"))
        if n is None:
            RW, X_, T_, OU = V_X + 24, V_X + 28, V_T + 6, V_T + 10
            h = p >> 1
            if p == 0:
                fill.setdefault(0, []).append(f"ds_read_b128 {v(RW,4)}, v{V_HA}")
            if p % 2 == 0:
                sl = []
                for r in range(2):
                    sl += [f"v_lshlrev_b32 v{X_+2*r}, 16, v{RW+2*h+r}", f"v_and_b32 v{X_+2*r+1}, 0xffff0000, v{RW+2*h+r}"]
                sl += [f"v_mul_f32 v{T_+r}, {f32(-1.4426950408889634 / QSCALE)}, v{X_+r}" for r in range(4)]
                sl += [f"v_exp_f32 v{T_+r}, v{T_+r}" for r in range(4)]
            else:
                sl = [f"v_fma_f32 v{T_+r}, v{T_+r}, s{S_QS}, s{S_QS}" for r in range(4)]
                sl += [f"v_rcp_f32 v{T_+r}, v{T_+r}" for r in range(4)]
                sl += [f"v_mul_f32 v{T_+r}, v{T_+r}, v{X_+r}" for r in range(4)]
                sl += [f"v_cvt_pk_bf16_f32 v{OU+2*h+r}, v{T_+2*r}, v{T_+2*r+1}" for r in range(2)]
                if p == 3:
                    sl += [f"ds_write_b128 v{V_HA}, {v(OU,4)}", f"v_add_u32 v{V_HA}, 0x400, v{V_HA}"]
            silu = sl
        else:
            silu = []
        if n == 28:
            fill.setdefault(-1, []).append(f"v_subrev_u32 v{V_HA}, 0x1c00, v{V_HA}")
            for k in range(7):
                fill.setdefault(k, []).append(f"ds_read_b128 {a(A_HF+4*k,4)}, v{V_HA} offset:{k*1024}")
        so = soft_ops(par)
        mo = (mask_ops(par ^ 1, n - 29) if n is not None and n >= 29 else []) + max_ops(par ^ 1)
        sa = [x for x in so if not x.startswith("v_add")]
        pour(fill, sa[:14], 0, 13)
        pour(fill, sa[14:], 13, 23)
        pour(fill, mo, 19 if len(mo) > 9 else 21, 32)
        pour(fill, silu, 14 if p == 0 else 0, 17 if p == 3 else 32)
        for x in so:
            if x.startswith("v_add"):
                src = x.split(",")[-1].strip()
                g0 = [g for g in fill for y in fill[g] if isinstance(y, str) and y.startswith(f"v_exp_f32 {src},")][0]
                g = min(range(g0 + 1, 32), key=lambda g: (load_of(fill, g), g))
                fill[g].append(x)
        if n is None:
            def drop(pred):
                for g in fill:
                    fill[g] = [x for x in fill[g] if not pred(x)]
            txt = lambda x: x[0] if isinstance(x, tuple) else (x if isinstance(x, str) else "")
            if opt.get("x_nobar"):
                drop(lambda x: txt(x) == "s_barrier")
            if opt.get("x_nodma"):
                drop(lambda x: " lds" in txt(x))
            if opt.get("x_novalu"):
                drop(lambda x: txt(x).startswith(("v_exp", "v_add_f32", "v_cvt", "v_max", "v_mul", "v_rcp", "v_fma", "v_lshl", "v_and")))
            if opt.get("x_noexp"):
                for g in fill:
                    fill[g] = [x.replace("v_exp_f32", "v_mov_b32").replace("v_rcp_f32", "v_mov_b32") if isinstance(x, str) else x for x in fill[g]]
        if opt.get("verbose"):
            print(gap_report(f"step {nm}", fill, 32), [load_of(fill, g) for g in range(32)])
        weave(e, spine, fill)
        if p == 1:
            e(f"s_cmp_eq_u32 s{S_IT}, s{S_ITSW}")
            e("s_cbranch_scc1 A_SW2")
        rare_check(e, par, nm)

    lp = Seg("a_loop", stateL, stateV)
    lp.label("A_LOOP")
    for p in range(4):
        step(lp, p)
    lp(f"s_add_u32 s{S_IT}, s{S_IT}, 1")
    lp(f"s_bitcmp1_b32 22, s{S_IT}")
    lp("s_cbranch_scc1 A_KV2C")
    lp(f"s_cmp_lt_u32 s{S_IT}, 7")
    lp("s_cbranch_scc1 A_LOOP")
    stamp(lp, opt, "a_lend", raw=True)
    assert lp.lds == stateL

    peel = {}
    for n in range(28, 33):
        sg = Seg(f"a_p{n}", stateL, stateV)
        step(sg, n % 4, n)
        if n == 31:
            sg(f"s_cmp_ge_u32 s{S_QT}, 8")
            sg("s_cbranch_scc1 A_EARLY")
            sg.label("A_EARLY_RET")
        if n >= 29 and n < 32:
            sg(f"s_cmp_eq_u32 s3, {n-29}")
            sg(f"s_cbranch_scc1 A_TAILW{n-29}")
        peel[n] = sg

    def signal(e):
        flag_line(e, 55, FL_PAIR, S_PAIR)
        flag_set(e, S_WS, 55, 1, V_X + 12)
        e(f"s_mov_b32 s{S_PEND}, 0")

    def tail_body(e, par):
        e.wait(lgkm=0)
        for f in range(16, 16 + D):
            e(rd(f, 0, 0))
        so = soft_ops(par)
        run(e, so[:22])
        spine = [mf(f, par) for f in range(16, 32)]
        fill = {}
        waits(fill, 16, 32, 16)
        for f in range(16, 32):
            if f + D < 32:
                fill.setdefault(f - 16, []).append(rd(f + D, 0, 0))
        pour(fill, so[22:], 0, 7)
        weave(e, spine, fill)

    t3 = Seg("a_tail1", stateL, stateV)
    t3(f"v_add_u32 v{V_VA}, 0x4000, v{V_VA}")
    t3.label("A_TAIL1")
    tail_body(t3, 1)
    t3.label("A_FIN")
    t0 = Seg("a_tail0", stateL, stateV)
    t0.label("A_TAILW0")
    t0(f"v_add_u32 v{V_VA}, 0x8000, v{V_VA}")
    t0("s_branch A_TAIL0")
    t0.label("A_TAILW1")
    t0(f"v_add_u32 v{V_VA}, 0xc000, v{V_VA}")
    t0("s_branch A_TAIL1")
    t0.label("A_TAILW2")
    t0(f"v_add_u32 v{V_VA}, 0x10000, v{V_VA}")
    t0.label("A_TAIL0")
    tail_body(t0, 0)
    t0("s_cmp_lg_u32 s3, 0")
    t0("s_cbranch_scc1 A_FIN")
    t0.wait_force(vm=0)
    t0("s_barrier")
    t0(f"s_mov_b32 s58, {EO[0]}")
    t0(f"s_mov_b32 s59, {E2[0]}")
    run(t0, e_dma("e0"))
    t0(f"s_cmp_eq_u32 s{S_PEND}, 0")
    t0("s_cbranch_scc1 A_FIN")
    signal(t0)
    t0("s_branch A_FIN")

    def ret_chain(e, names):
        for k, nm in enumerate(names[:-1]):
            e(f"s_cmp_eq_u32 s{S_RET}, {k}")
            e(f"s_cbranch_scc1 A_RET_{nm}")
        e(f"s_branch A_RET_{names[-1]}")

    def rare(par):
        e = Seg(f"a_rare{par}", stateL, stateV)
        e.label(f"A_RARE{par}")
        S = V_S[par ^ 1]
        t = V_T
        e(f"v_mov_b32 v{t}, v{V_MAX}")
        e.nop(2)
        e(f"v_permlane32_swap_b32 v{V_MAX}, v{t}")
        e(f"v_max3_f32 v{t}, v{V_MAX}, v{t}, 0")
        e(f"v_exp_f32 v{t+1}, -v{t}")
        for r in range(16):
            e(f"v_sub_f32 v{S+r}, v{S+r}, v{t}")
        for r in range(16):
            e(f"v_sub_f32 v{V_NM+r}, v{V_NM+r}, v{t}")
        e(f"v_mul_f32 v{V_L0}, v{V_L0}, v{t+1}")
        e(f"v_mul_f32 v{V_L1}, v{V_L1}, v{t+1}")
        for r in range(128):
            e(f"v_mul_f32 v{V_O+r}, v{V_O+r}, v{t+1}")
        ret_chain(e, rare_sites[par])
        return e

    r0, r1 = rare(0), rare(1)

    fs = Seg("a_first", stateL, stateV)
    e = fs
    e.label("A_FIRST")
    t = V_T
    e(f"v_mov_b32 v{t}, v{V_MAX}")
    e.nop(2)
    e(f"v_permlane32_swap_b32 v{V_MAX}, v{t}")
    e(f"v_max_f32 v{t}, v{V_MAX}, v{t}")
    for r in range(16):
        e(f"v_sub_f32 v{V_S[0]+r}, v{V_S[0]+r}, v{t}")
    for r in range(16):
        e(f"v_sub_f32 v{V_NM+r}, 0, v{t}")
    e(f"s_cmp_eq_u32 s{S_RET}, 0")
    e("s_cbranch_scc1 A_LOOP")
    e(f"s_cmp_eq_u32 s{S_IT}, 7")
    e("s_cbranch_scc1 A_RET_P29")
    e("s_branch A_RET_L1")

    sw1 = Seg("a_sw1", stateL, stateV)
    e = sw1
    e.label("A_SW1")
    for r in range(64):
        e(f"v_accvgpr_mov_b32 a{A_Q+r}, a{A_Q2+r}")
    e(f"v_mov_b32 v{V_MS}, v{V_NM}")
    for r in range(0, 16, 2):
        e(f"v_mov_b64 {v(V_NM+r,2)}, 0")
    e(f"s_cmp_eq_u32 s{S_IT}, 7")
    e("s_cbranch_scc1 A_SW1_RET_P29")
    e("s_branch A_SW1_RET_L1")

    def part_addr(e):
        e(f"s_lshl_b32 s54, s{S_PAIR}, 2")
        e("s_add_u32 s54, s54, s3")
        e("s_lshl_b32 s55, s54, 9")
        e(f"s_add_u32 s55, s55, {ML_OFF}")
        e("s_lshl_b32 s54, s54, 14")
        e(f"s_add_u32 s54, s54, {OP_OFF}")

    sw2 = Seg("a_sw2", stateL, stateV)
    e = sw2
    e.label("A_SW2")
    part_addr(e)
    t = V_X + 12
    e(f"v_add_f32 v{V_L0}, v{V_L0}, v{V_L1}")
    e(f"v_lshrrev_b32 v{t+2}, 2, v{V_L16}")
    e(f"buffer_store_dword v{V_MS}, v{t+2}, s[{S_WS}:{S_WS+3}], s55 offen sc1")
    e(f"buffer_store_dword v{V_L0}, v{t+2}, s[{S_WS}:{S_WS+3}], s55 offen offset:256 sc1")
    for k in range(16):
        if k and k % 4 == 0:
            e("s_add_u32 s54, s54, 4096")
        u = t + 4 + (k % 2) * 4
        for r in range(4):
            o = V_O + 8 * k + 2 * r
            e(f"v_cvt_pk_bf16_f32 v{u+r}, v{o}, v{o+1}")
        for r in range(4):
            e(f"v_mov_b64 {v(V_O+8*k+2*r,2)}, 0")
        e(f"buffer_store_dwordx4 {v(u,4)}, v{V_L16}, s[{S_WS}:{S_WS+3}], s54 offen offset:{(k%4)*1024} sc1")
    e(f"v_mov_b64 {v(V_L0,2)}, 0")
    e(f"s_mov_b32 s{S_PEND}, 1")
    e(f"s_mov_b32 s{S_RET}, 1")
    e("s_branch A_FIRST")

    sig = Seg("a_sig", stateL, stateV)
    sig.label("A_SIG")
    signal(sig)
    sig("s_branch A_SIG_RET")
    S_HA, S_SLOT, V_FO, kv3 = opt["kv2"]
    sig.label("A_KV2S")
    flag_line(sig, 55, FL_KV2, S_HA)
    sig(f"s_lshl_b32 s53, s{S_IT}, 13")
    sig("s_add_u32 s55, s55, s53")
    flag_set(sig, S_WS, 55, f"s{S_SLOT}", V_X + 12)
    sig("s_branch A_KV2S_RET")
    sig.label("A_KV2L")
    flag_line(sig, 85, FL_KV2, S_HEAD)
    sig(f"s_lshr_b32 s53, s{S_IT}, 1")
    sig("s_lshl_b32 s53, s53, 13")
    sig("s_add_u32 s85, s85, s53")
    sig.raw(f"buffer_load_dwordx2 v[6:7], v{V_FO}, s[{S_WS}:{S_WS+3}], s85 offen sc1", "pf")
    sig("s_branch A_KV2L_RET")
    sig.label("A_KV3")
    run(sig, kv3)
    sig("s_branch A_LOOP")
    sig.label("A_KV2C")
    sig(f"s_cmp_eq_u32 s{S_IT}, 1")
    sig("s_cbranch_scc1 A_KV3")
    sig.wait_force(vm=8)
    sig("s_mov_b32 s53, 0")
    sig.label("A_KV2P")
    flag_test(sig, 6)
    sig("s_cbranch_scc1 A_LOOP")
    sig("s_sleep 2")
    sig(f"buffer_load_dwordx2 v[6:7], v{V_FO}, s[{S_WS}:{S_WS+3}], s85 offen sc1")
    sig.wait_force(vm=0)
    sig("s_add_u32 s53, s53, 1")
    sig(f"s_cmp_lt_u32 s53, {opt.get('poll_max', 200000)}")
    sig("s_cbranch_scc1 A_KV2P")
    sig("s_branch A_LOOP")
    sig.label("A_ALTW")
    sig.wait_force(vm=26)
    sig("s_branch A_ALTW_RET")

    e = Seg("a_fin", [], stateV)
    stamp(e, opt, 2)
    stamp(e, opt, "a_fin")
    t = V_T
    CT = V_S[0]
    e(f"v_add_f32 v{V_L0}, v{V_L0}, v{V_L1}")
    e(f"s_cmp_ge_u32 s{S_QT}, 8")
    e("s_cbranch_scc1 A_MERGE")
    e(f"v_mov_b32 v{t}, v{V_L0}")
    e.nop(2)
    e(f"v_permlane32_swap_b32 v{V_L0}, v{t}")
    e(f"v_add_f32 v{V_L0}, v{V_L0}, v{t}")
    e(f"v_rcp_f32 v{t}, v{V_L0}")
    e.nop(1)
    e(f"v_mov_b32 v{t+1}, v{t}")
    e.nop(4)
    for k in range(64):
        e(f"v_pk_mul_f32 {v(V_O+2*k,2)}, {v(V_O+2*k,2)}, {v(t,2)}")
        if k:
            e(f"v_cvt_pk_bf16_f32 v{CT+k-1}, v{V_O+2*k-2}, v{V_O+2*k-1}")
    e(f"v_cvt_pk_bf16_f32 v{CT+63}, v{V_O+126}, v{V_O+127}")
    e("s_branch A_EPI")
    fin = e

    ML = V_X + 16

    def part_loads(e):
        part_addr(e)
        e(f"v_lshrrev_b32 v{V_X+12}, 2, v{V_L16}")
        e(f"buffer_load_dword v{ML}, v{V_X+12}, s[{S_WS}:{S_WS+3}], s55 offen sc1")
        e(f"buffer_load_dword v{ML+1}, v{V_X+12}, s[{S_WS}:{S_WS+3}], s55 offen offset:256 sc1")
        for k in range(16):
            if k and k % 4 == 0:
                e("s_add_u32 s54, s54, 4096")
            e(f"buffer_load_dwordx4 {a(A_Q2+4*k,4)}, v{V_L16}, s[{S_WS}:{S_WS+3}], s54 offen offset:{(k%4)*1024} sc1")

    early = Seg("a_early", stateL, peel[31].vm)
    e = early
    e.label("A_EARLY")
    flag_test(e, V_X + 14)
    e("s_cbranch_scc0 A_EARLY_RET")
    part_loads(e)
    e(f"s_mov_b32 s{S_PEND}, 2")
    e("s_branch A_EARLY_RET")

    mg = Seg("a_merge", [], stateV)
    e = mg
    e.label("A_MERGE")
    e(f"s_cmp_eq_u32 s{S_PEND}, 2")
    e("s_cbranch_scc1 A_HAVE")
    flag_line(e, 55, FL_PAIR, S_PAIR)
    e(f"v_mov_b32 v{t}, 8")
    e("s_mov_b32 s53, 0")
    e.label("A_POLL")
    e(f"buffer_load_dwordx2 {v(t+2,2)}, v{t}, s[{S_WS}:{S_WS+3}], s55 offen sc1")
    e.wait_force(vm=0)
    flag_test(e, t + 2)
    e("s_cbranch_scc1 A_POLL_OK")
    e("s_sleep 4")
    e("s_add_u32 s53, s53, 1")
    e(f"s_cmp_lt_u32 s53, {opt.get('poll_max', 200000)}")
    e("s_cbranch_scc1 A_POLL")
    e.label("A_POLL_OK")
    part_loads(e)
    e.label("A_HAVE")
    e(f"v_min_f32 v{t+3}, v{V_NM}, v{ML}")
    e(f"v_sub_f32 v{t+4}, v{t+3}, v{V_NM}")
    e(f"v_sub_f32 v{t+6}, v{t+3}, v{ML}")
    e(f"v_exp_f32 v{t+4}, v{t+4}")
    e(f"v_exp_f32 v{t+6}, v{t+6}")
    e.nop(1)
    e(f"v_mul_f32 v{t+3}, v{t+6}, v{ML+1}")
    e(f"v_fma_f32 v{t+3}, v{V_L0}, v{t+4}, v{t+3}")
    e(f"v_mov_b32 v{t+2}, v{t+3}")
    e.nop(2)
    e(f"v_permlane32_swap_b32 v{t+3}, v{t+2}")
    e(f"v_add_f32 v{t+3}, v{t+3}, v{t+2}")
    e(f"v_rcp_f32 v{t+3}, v{t+3}")
    e.nop(1)
    e(f"v_mul_f32 v{t+4}, v{t+4}, v{t+3}")
    e(f"v_mul_f32 v{t+6}, v{t+6}, v{t+3}")
    e(f"v_mov_b32 v{t+5}, v{t+4}")
    e(f"v_mov_b32 v{t+7}, v{t+6}")
    for k in range(64):
        e(f"v_pk_mul_f32 {v(V_O+2*k,2)}, {v(V_O+2*k,2)}, {v(t+4,2)}")
    for k in range(64):
        u = t + 8 + (k % 2) * 2
        e(f"v_accvgpr_read_b32 v{u+1}, a{A_Q2+k}")
        if k:
            e(f"v_cvt_pk_bf16_f32 v{CT+k-1}, v{V_O+2*k-2}, v{V_O+2*k-1}")
        e(f"v_lshlrev_b32 v{u}, 16, v{u+1}")
        e(f"v_and_b32 v{u+1}, 0xffff0000, v{u+1}")
        e(f"v_pk_fma_f32 {v(V_O+2*k,2)}, {v(u,2)}, {v(t+6,2)}, {v(V_O+2*k,2)}")
    e(f"v_cvt_pk_bf16_f32 v{CT+63}, v{V_O+126}, v{V_O+127}")

    e = Seg("a_epi", [], [])
    e.label("A_EPI")
    stamp(e, opt, 3)
    stamp(e, opt, "a_epi")
    YA = (V_O, V_O + 16)
    YP = V_O + 32
    VC = V_O + 48
    ED = opt.get("e_depth", 7)
    NFE, NT = 46, 7
    NF = NFE * NT

    def erd(f):
        c, r = divmod(f, NFE)
        seg, ks = divmod(r, 23)
        off = (EO[c % 3] + 16 * ks * 128) if ks < 16 else (E2[c % 3] + 16 * (ks - 16) * 128)
        base = (V_EA, VC, VC + 2)[off >> 16] + seg
        off &= 0xffff
        return [f"ds_read_b64_tr_b16 {a(A_F+(f%8)*4+2*u,2)}, v{base} offset:{off+u*1024}" for u in range(2)]

    def ecvt(c, seg):
        ops = [f"v_cvt_pk_bf16_f32 v{YP+8*seg+r}, v{YA[seg]+2*r}, v{YA[seg]+2*r+1}" for r in range(8)]
        st = [(f"buffer_store_dwordx4 {v(YP+8*seg+4*k,4)}, v{V_L16}, s[{S_WS}:{S_WS+3}], s62 offen offset:{seg*2048+k*1024}{YM}",
               "ya" if c < 4 else "yb") for k in range(2)]
        if seg == 1 and c < NT - 1:
            st.append("s_add_u32 s62, s62, 4096")
        return ops, st

    def edma_at(t):
        return [[f"s_mov_b32 s58, {EO[t%3]}", f"s_mov_b32 s59, {E2[t%3]}"]] + e_dma(f"e{t}")

    for k in range(2):
        e(f"v_add_u32 v{VC+k}, 0x10000, v{V_EA+k}")
        e(f"v_add_u32 v{VC+2+k}, 0x20000, v{V_EA+k}")
    e.wait_force(vm=0)
    e("s_barrier")
    for f in range(ED):
        run(e, erd(f))
    spine, fill = [], {}
    for f in range(NF):
        c, r = divmod(f, NFE)
        seg, ks = divmod(r, 23)
        B = v(CT + 4 * ks, 4) if ks < 16 else a(A_HF + 4 * (ks - 16), 4)
        acc = v(YA[seg], 16)
        spine.append(f"{MFMA} {acc}, {a(A_F+(f%8)*4,4)}, {B}, {'0' if ks == 0 else acc}")
        nf = f + ED
        if nf < NF:
            if nf % NFE == 0:
                t = nf // NFE
                ops = [lambda e, t=t: e.wait_tag(f"e{t}")]
                if t == 6:
                    ops.append(lambda e: e.wait_tag("ya"))
                if t <= 4:
                    ops.append(lambda e: e.wait(lgkm=0))
                fill.setdefault(f, []).extend(ops + ["s_barrier"])
            fill.setdefault(f, []).extend(erd(nf))
        if f % 2 == 0:
            rr = a(A_F + (min(f + 1, NF - 1) % 8) * 4, 4)
            fill.setdefault(f - 1, []).append(lambda e, rr=rr: wait_reg(e, rr))
    if hooks:
        hooks(fill, NFE, ED)
    spread(fill, edma_at(1), 0, 20)
    spread(fill, edma_at(2), 20, 52)
    for t in range(3, NT):
        g0 = max((t - 2) * NFE - ED + 1, 52)
        spread(fill, edma_at(t), g0, (t - 1) * NFE - ED)
    for c in range(NT):
        o, st = ecvt(c, 0)
        pour(fill, o + st, c * NFE + 27, c * NFE + 44)
        if c < NT - 1:
            o, st = ecvt(c, 1)
            if c == NT - 2 and hooks:
                pour(fill, o, (c + 1) * NFE + 4, (c + 1) * NFE + 21)
                fill.setdefault((c + 1) * NFE + 25, []).append(st[0])
                fill.setdefault((c + 1) * NFE + 26, []).extend(st[1:])
            else:
                pour(fill, o + st, (c + 1) * NFE + 4, (c + 1) * NFE + 21)
    if opt.get("verbose"):
        print(gap_report("epilogue", fill, NF), [load_of(fill, g) for g in range(NF)])
    weave(e, spine, fill)
    e.nop(12)
    o, st = ecvt(NT - 1, 1)
    run(e, o + st)
    if finish:
        finish(e)
    e.label(end_label)
    e("s_endpgm")
    epi = e

    pl = [peel[n] for n in range(28, 33)]
    segs = [pro, lp] + pl + [t3, fin, mg, epi, t0, stubs, r0, r1, fs, sw1, sw2, sig, early]
    traces = [
        [pro, fs, lp, lp] + pl + [t3, fin, epi],
        [lp, peel[28], peel[29], t0, fin, mg, epi],
        [lp, r1, lp], [peel[28], r0, peel[29]], [peel[28], sw1, peel[29], sw2, fs, peel[30]], [sig], [stubs],
        [peel[30], peel[31], t0], [peel[29], peel[30], t3], [peel[31], early, peel[32], t3, fin],
    ]
    return segs, traces
```

```python
from emit import *
from common import *
import attn
from attn import S_HEAD, S_QT, S_W4K, S_PAIR, S_WS, S_WO, S_W2, A_Q, A_Q2, A_HF, V_L16, V_PD
import math

NAME = "parallel_sum__compressed_kv_cla__dense_activation_silu__prompt_kernel"
LDS_BYTES = 160 * 1024
S_CKV, S_W, S_X, S_WQ, S_W1, S_QST, S_OUT = 8, 12, 20, 24, 28, 68, 24
SA, SB, S_LP, S_W8K, S_KVSTR, S_KIND, S_BO, S_KVBASE, S_KVC, S_QB, S_QC, S_XNB, S_XNF = 53, 54, 55, 56, 57, 58, 59, 60, 61, 62, 63, 66, 67
S_HA, S_KVSLOT = 76, 77
V_PA, V_PB, V_FO, V_FL = 3, 4, 5, 6
V_AA, V_AB, V_DA, V_DB = 8, 12, 16, 24
V_FA, V_FB, V_XN = 32, 64, 96
V_AB16, V_AA16, V_WR, V_ST = 8, 212, 224, 7
V_DQ, V_D1, V_AT, V_T = 208, 212, 216, 224
SLOT_ORDER = [8, 9, 0, 1, 4, 5, 2, 3, 6, 7]
V_AT3 = 212
S_KVE, S_EARLY, S_GOTQ = 24, 72, 75
H_ACC = (64, 80, 224, 240)
V_GP = V_XN + 46
VPQ, VPK = V_XN + 4, V_XN + 8

def gen_mega(opt):
    ST = opt.get("kv_store_mod", " sc1")
    attn.KVM[0] = opt.get("kv_load_mod", "")
    opt = dict(opt)
    opt.setdefault("y_store_mod", " sc1")
    opt["spk"] = ""
    PFD = 2
    A16 = opt.get("a16", 1)
    NPF = 2
    PMAX = opt.get("poll_max", 200000)
    e = Seg("m_pro")
    e.label(NAME)
    e("s_cmp_ge_u32 s2, 256")
    e("s_cbranch_scc1 M_END")
    stamp(e, opt, "entry")
    load_kernargs(e)
    e("s_getpc_b64 s[50:51]")
    e.label("M_PC0")
    if not opt.get("no_cpf0"):
        e("s_lshr_b32 s5, s2, 3")
        e("s_lshl_b32 s5, s5, 10")
        e("v_and_b32 v1, 7, v0")
        e("v_lshl_add_u32 v1, v1, 7, s5")
        e("v_min_u32 v1, M_B-M_PC0, v1")
        e(f"global_load_dword v{V_PD}, v1, s[50:51]", "pf")
    e("v_lshrrev_b32 v1, 6, v0")
    e("v_and_b32 v0, 63, v0")
    e("v_readfirstlane_b32 s3, v1")
    e("s_and_b32 s4, s2, 7")
    e("s_lshl_b32 s4, s4, 1")
    e("s_lshr_b32 s5, s2, 3")
    e("s_and_b32 s34, s5, 7")
    e("s_lshr_b32 s35, s5, 3")
    e("s_and_b32 s42, s35, 1")
    e("s_add_u32 s42, s42, s4")
    e(f"s_lshr_b32 s{S_KIND}, s35, 1")
    e(f"s_lshr_b32 s{S_QT}, s5, 1")
    e(f"s_and_b32 s{S_HEAD}, s5, 1")
    e(f"s_add_u32 s{S_HEAD}, s{S_HEAD}, s4")
    e("s_and_b32 s36, s3, 1")
    e("s_lshr_b32 s37, s3, 1")
    L31, HI, G, R4, C = 224, 225, 226, 227, 228
    e(f"v_and_b32 v{L31}, 31, v0")
    e(f"v_lshrrev_b32 v{HI}, 5, v0")
    e(f"v_lshrrev_b32 v{G}, 4, v0")
    e(f"v_bfe_u32 v{R4}, v0, 2, 2")
    e(f"v_and_b32 v{C}, 3, v0")
    e("s_and_b32 s7, s35, 1")
    e("s_lshl_b32 s7, s7, 1")
    e("s_add_u32 s7, s7, s37")
    e("s_sub_u32 s39, 3, s7")
    e("s_add_u32 s7, s7, 4")
    e("s_cmp_ge_u32 s35, 2")
    e("s_cselect_b32 s7, s7, s39")
    e("s_lshl_b32 s7, s7, 3")
    e("s_add_u32 s7, s7, s34")
    e("s_lshl_b32 s7, s7, 1")
    e("s_add_u32 s7, s7, s36")
    e("s_lshl_b32 s7, s7, 4")
    e("v_and_b32 v6, 15, v0")
    e("v_add_u32 v6, s7, v6")
    e(f"v_lshlrev_b32 v{V_PA}, 11, v6")
    e(f"v_and_b32 v7, 1, v{G}")
    e(f"v_lshl_add_u32 v7, v7, 7, v{V_PA}")
    e("s_lshl_b32 s7, s34, 3")
    e("s_lshl_b32 s39, s3, 1")
    e("s_add_u32 s7, s7, s39")
    e("v_bfe_u32 v6, v0, 2, 1")
    e("v_add_u32 v6, s7, v6")
    e("v_lshlrev_b32 v6, 13, v6")
    e(f"v_lshl_add_u32 v6, v{C}, 7, v6")
    e("s_lshl_b32 s7, s42, 9")
    e(f"v_add_u32 v{V_PB}, s7, v6")
    e("v_bfe_u32 v6, v0, 3, 1")
    e(f"v_lshl_add_u32 v5, v6, 19, v{V_PB}")
    e("v_lshrrev_b32 v1, 3, v0")
    e.wait_force(lgkm=0)
    e(f"s_mov_b32 s{S_HA}, s42")
    e(f"s_lshl_b32 s{S_KVSLOT}, s{S_KIND}, 3")
    e(f"s_add_u32 s{S_KVSLOT}, s{S_KVSLOT}, s34")
    e(f"s_lshl_b32 s{S_KVSLOT}, s{S_KVSLOT}, 3")
    srd(e, S_CKV, P_CKV, CKV_BYTES)
    e(f"s_cmp_eq_u32 s{S_KIND}, 0")
    e(f"s_cselect_b32 s{S_W}, s{P_WUK}, s{P_WUV}")
    e(f"s_cselect_b32 s{S_W+1}, s{P_WUK+1}, s{P_WUV+1}")
    e(f"s_mov_b32 s{S_W+2}, {WU_BYTES:#x}")
    e(f"s_mov_b32 s{S_W+3}, 0x20000")
    stamp(e, opt, 0)
    stamp(e, opt, "karg")
    e(f"buffer_load_dword v{V_PD}, v7, s[{S_CKV}:{S_CKV+3}], 0 offen", "pf")
    e(f"buffer_load_dword v{V_PD}, v5, s[{S_W}:{S_W+3}], 0 offen", "pf")
    e("v_add_u32 v144, 256, v7")
    e("v_add_u32 v145, 0x100000, v5")
    e(f"v_add_u32 v{V_PA}, {PFD*128}, v{V_PA}")
    e(f"v_add_u32 v{V_PB}, {PFD*0x80000}, v{V_PB}")
    e("s_lshl_b32 s7, s36, 1")
    e("s_sub_u32 s39, 3, s7")
    e("s_add_u32 s7, s7, 4")
    e("s_cmp_eq_u32 s37, 1")
    e("s_cselect_b32 s7, s7, s39")
    e("s_mov_b32 s39, 0xfff80000")
    e("s_cselect_b32 s39, 0x80000, s39")
    e("s_lshl_b32 s7, s7, 3")
    e("s_add_u32 s7, s7, s34")
    e("s_lshl_b32 s7, s7, 5")
    e("v_add_u32 v6, s7, v1")
    e("v_lshlrev_b32 v6, 11, v6")
    e("v_and_b32 v7, 7, v0")
    e(f"v_xor_b32 v7, v7, v{G}")
    e("v_lshlrev_b32 v7, 4, v7")
    for j in range(8):
        if j == 4:
            e("v_add_u32 v6, s39, v6")
        e(f"v_xor_b32 v{V_DA+j}, {((j ^ (j >> 1)) & 1) << 6}, v7")
        e(f"v_add_u32 v{V_DA+j}, v{V_DA+j}, v6")
        if j & 3:
            e(f"v_add_u32 v{V_DA+j}, {(j&3)*(16384-1024)}, v{V_DA+j}")
    e("s_lshl_b32 s7, s3, 4")
    e(f"v_add_u32 v6, s7, v{HI}")
    e("v_lshlrev_b32 v6, 13, v6")
    e(f"s_lshl_b32 s7, s{S_HA}, 9")
    e("v_add_u32 v6, s7, v6")
    e(f"v_lshrrev_b32 v7, 2, v{L31}")
    e(f"v_xor_b32 v7, v7, v{HI}")
    e("v_lshlrev_b32 v7, 6, v7")
    e(f"v_lshl_add_u32 v7, v{C}, 4, v7")
    for j in range(8):
        e(f"v_xor_b32 v{V_DB+j}, {((j&1)<<7) ^ (48 * ((j >> 2) & 1) if A16 else 0)}, v7")
        e(f"v_add_u32 v{V_DB+j}, v{V_DB+j}, v6")
        if j:
            e(f"v_add_u32 v{V_DB+j}, {j*16384-(j&3)*1024}, v{V_DB+j}")
    e(f"s_lshl_b32 s{S_W8K}, s3, 13")
    e(f"s_mov_b32 s{SA}, 0")
    e(f"s_mov_b32 s{SB}, 0")

    def dma_items(b):
        it = []
        for j in range(8):
            pre = [f"s_add_u32 m0, s{S_W8K}, {b*32768 + (j>>2)*4096}"] if (j & 3) == 0 else []
            post = [f"s_add_u32 s{SA}, s{SA}, 128"] if j == 7 else []
            it.append((pre, f"buffer_load_dwordx4 v{V_DA+j}, s[{S_CKV}:{S_CKV+3}], s{SA} offen offset:{(j&3)*1024} lds", post))
        for j in range(8):
            pre = [f"s_add_u32 m0, s{S_W8K}, {65536 + b*32768 + (j>>2)*4096}"] if (j & 3) == 0 else []
            post = [f"s_add_u32 s{SB}, s{SB}, 0x80000"] if j == 7 else []
            it.append((pre, f"buffer_load_dwordx4 v{V_DB+j}, s[{S_W}:{S_W+3}], s{SB} offen offset:{(j&3)*1024} lds", post))
        return it

    NK3 = opt.get('nk3', 12) if A16 else 8
    q = Seg("tmp")
    srd(q, S_WS, P_WS, WS_BYTES)
    srd(q, S_X, P_X, X_BYTES)
    srd(q, S_WQ, P_WQ, WQ_BYTES)
    srd(q, S_W1, P_W1, W1_BYTES)
    if not A16:
        q("s_lshl_b32 s7, s36, 7")
        q(f"v_add_u32 v6, s7, v{L31}")
        q("v_lshlrev_b32 v6, 7, v6")
        q(f"v_bfe_u32 v7, v{L31}, 1, 3")
        q(f"v_xor_b32 v7, v7, v{HI}")
        q("v_lshl_add_u32 v6, v7, 4, v6")
        for k in range(4):
            q(f"v_xor_b32 v{V_AA+k}, {k<<5}, v6")
        q(f"v_lshrrev_b32 v6, 1, v{G}")
        q(f"v_lshl_add_u32 v6, v6, 3, v{R4}")
        q("v_lshlrev_b32 v6, 9, v6")
        q("s_lshl_b32 s7, s37, 8")
        q("s_add_u32 s7, s7, 0x10000")
        q("v_add_u32 v6, s7, v6")
        q(f"v_and_b32 v7, 1, v{G}")
        q("v_lshl_add_u32 v6, v7, 5, v6")
        q(f"v_lshl_add_u32 v6, v{C}, 3, v6")
        for nb in range(4):
            q(f"v_xor_b32 v7, {nb}, v{R4}")
            q(f"v_lshl_add_u32 v{V_AB+nb}, v7, 6, v6")
    else:
        q("v_and_b32 v6, 15, v0")
        q("v_and_b32 v7, 8, v0")
        q(f"v_mul_u32_u24 v7, s{S_KIND}, v7")
        q("v_add_u32 v6, v6, v7")
        q("s_lshl_b32 s7, s36, 7")
        q("v_add_u32 v6, s7, v6")
        q("v_lshlrev_b32 v6, 7, v6")
        q("v_bfe_u32 v7, v0, 1, 3")
        q(f"v_xor_b32 v7, v7, v{G}")
        q(f"v_lshl_add_u32 v{V_AA16}, v7, 4, v6")
        q(f"v_xor_b32 v{V_AA16+1}, 64, v{V_AA16}")
        q(f"v_lshl_add_u32 v6, v{G}, 3, v{R4}")
        q("v_lshlrev_b32 v6, 9, v6")
        q("s_lshl_b32 s7, s37, 8")
        q("s_add_u32 s7, s7, 0x10000")
        q("v_add_u32 v6, s7, v6")
        q(f"v_and_b32 v7, 1, v{C}")
        q("v_lshl_add_u32 v6, v7, 3, v6")
        q(f"v_and_b32 v7, 1, v{G}")
        q("v_mul_u32_u24 v7, 3, v7")
        q(f"v_lshl_add_u32 v7, v{R4}, 2, v7")
        q(f"v_lshrrev_b32 v231, 1, v{C}")
        q(f"s_sub_u32 s7, 1, s{S_KIND}")
        q("v_lshlrev_b32 v231, s7, v231")
        q("v_xor_b32 v7, v7, v231")
        q("v_lshl_add_u32 v6, v7, 4, v6")
        for i in range(8):
            nat, perm = i << 5, ((i >> 1) << 6) | ((i & 1) << 4)
            if nat == perm:
                q(f"v_xor_b32 v{V_AB16+i}, {nat}, v6")
            else:
                q(f"s_mul_i32 s7, s{S_KIND}, {nat - perm}")
                q(f"s_add_u32 s7, s7, {perm}")
                q(f"v_xor_b32 v{V_AB16+i}, s7, v6")
    q("s_lshl_b32 s7, s3, 4")
    q(f"v_add_u32 v6, s7, v{G}")
    q(f"v_xor_b32 v7, v{R4}, v{G}")
    q("v_lshlrev_b32 v7, 6, v7")
    q(f"v_lshl_add_u32 v7, v{C}, 4, v7")
    q(f"s_lshl_b32 s38, s{S_HEAD}, 9")
    q(f"v_lshlrev_b32 v{V_DQ}, 13, v6")
    q(f"v_add3_u32 v{V_DQ}, v{V_DQ}, v7, s38")
    for j in range(1, 4):
        q(f"v_add_u32 v{V_DQ+j}, {j*4*8192 - j*1024}, v{V_DQ}")
    q(f"s_mul_i32 s39, s{S_HEAD}, 224")
    q(f"v_mul_u32_u24 v{V_D1+3}, 3584, v6")
    q(f"v_add3_u32 v{V_D1+3}, v{V_D1+3}, v7, s39")
    q(f"v_lshrrev_b32 v6, 1, v{G}")
    q(f"v_lshl_add_u32 v6, v6, 3, v{R4}")
    q("v_lshlrev_b32 v6, 8, v6")
    q(f"v_and_b32 v7, 1, v{G}")
    q("v_lshl_add_u32 v6, v7, 5, v6")
    q(f"v_lshl_add_u32 v6, v{C}, 3, v6")
    for nb in range(4):
        q(f"v_xor_b32 v7, {nb}, v{R4}")
        q(f"v_lshl_add_u32 v{V_AT+nb}, v7, 6, v6")
        q(f"v_add_u32 v{V_AT+4+nb}, 0x10000, v{V_AT+nb}")
    q(f"s_mul_i32 s7, s{S_QT}, 28")
    q("s_mul_i32 s6, s3, 7")
    q("s_add_u32 s7, s7, s6")
    q("v_lshrrev_b32 v6, 2, v0")
    q("v_add_u32 v6, s7, v6")
    q("v_lshlrev_b32 v7, 13, v6")
    q(f"v_lshl_add_u32 v7, v{C}, 7, v7")
    q("v_add_u32 v7, s38, v7")
    q("v_subrev_u32 v6, 7, v6")
    q("v_mul_u32_u24 v6, 3584, v6")
    q(f"v_min_u32 v231, 2, v{C}")
    q("v_lshl_add_u32 v6, v231, 7, v6")
    q("v_add_u32 v6, s39, v6")
    q(f"v_min_u32 v6, {W1_BYTES-4}, v6")
    q("v_cmp_gt_u32 vcc, 28, v0")
    q("s_lshr_b32 s7, s2, 3")
    q("s_lshl_b32 s7, s7, 2")
    q("v_cndmask_b32 v6, v6, v7, vcc")
    q(f"v_mov_b32 v{V_GP}, s{P_W1}")
    q(f"v_mov_b32 v{V_GP+1}, s{P_W1+1}")
    q(f"v_mov_b32 v7, s{P_WQ}")
    q(f"v_mov_b32 v231, s{P_WQ+1}")
    q(f"v_cndmask_b32 v{V_GP}, v{V_GP}, v7, vcc")
    q(f"v_cndmask_b32 v{V_GP+1}, v{V_GP+1}, v231, vcc")
    q("s_add_u32 s7, s7, s3")
    q("s_mul_i32 s7, s7, 640")
    q("s_add_u32 s7, s7, M_TAIL0-M_PC0")
    q("v_and_b32 v7, 7, v0")
    q("v_min_u32 v7, 4, v7")
    q("v_lshl_add_u32 v7, v7, 7, s7")
    q("v_min_u32 v7, M_CODE_END-M_PC0-8, v7")
    q("v_cmp_gt_u32 vcc, 56, v0")
    q("v_mov_b32 v231, s50")
    q("v_mov_b32 v232, s51")
    q("v_cndmask_b32 v6, v7, v6, vcc")
    q(f"v_cndmask_b32 v{V_GP}, v231, v{V_GP}, vcc")
    q(f"v_cndmask_b32 v{V_GP+1}, v232, v{V_GP+1}, vcc")
    q(f"v_add_co_u32 v{V_GP}, vcc, v{V_GP}, v6")
    q(f"v_addc_co_u32 v{V_GP+1}, vcc, 0, v{V_GP+1}, vcc")
    q("s_add_u32 s7, s36, 3")
    q("s_lshl_b32 s7, s7, 3")
    q("s_add_u32 s7, s7, s34")
    q(f"s_lshl_b32 s{S_KVBASE}, s{S_HA}, 6")
    q(f"s_add_u32 s{S_KVBASE}, s{S_KVBASE}, s7")
    q(f"s_lshl_b32 s{S_KVBASE}, s{S_KVBASE}, 15")
    q(f"s_lshl_b32 s7, s{S_KIND}, 14")
    q(f"s_add_u32 s{S_KVBASE}, s{S_KVBASE}, s7")
    q("s_lshl_b32 s7, s37, 13")
    q(f"s_add_u32 s{S_KVBASE}, s{S_KVBASE}, s7")
    q("s_lshl_b32 s7, s36, 19")
    q(f"s_sub_u32 s{S_KVSTR}, s7, 0x40000")
    q(f"s_lshl_b32 s7, s{S_QT}, 2")
    q(f"v_and_b32 v{V_FO}, 15, v0")
    q(f"v_lshlrev_b32 v{V_FO}, 3, v{V_FO}")
    q(f"s_add_u32 s{S_XNB}, s7, s3")
    q(f"s_mul_i32 s{S_XNB}, s{S_XNB}, 28672")
    q(f"s_add_u32 s{S_XNB}, s{S_XNB}, {XN_OFF}")
    q(f"v_lshlrev_b32 v{V_L16}, 4, v0")
    for i in range(256):
        q(f"v_accvgpr_write_b32 a{i}, 0")
    q(f"s_lshl_b32 s7, s{S_QT}, 4")
    q(f"s_add_u32 s7, s7, s{S_HEAD}")
    q("s_mul_i32 s7, s7, 7168")
    q("v_min_u32 v6, 56, v0")
    q("v_lshl_add_u32 v146, v6, 7, s7")
    attn.setup_s(q)
    q(f"s_mov_b32 s{S_QST}, s{P_WS}")
    q(f"s_mov_b32 s{S_QST+1}, s{P_WS+1}")
    q(f"s_cmp_ge_u32 s{S_QT}, 8")
    q(f"s_cselect_b32 s{S_QST+2}, {WS_BYTES:#x}, 0")
    q(f"s_mov_b32 s{S_QST+3}, 0x20000")
    q(f"s_lshl_b32 s{S_QB}, s{S_PAIR}, 2")
    q(f"s_add_u32 s{S_QB}, s{S_QB}, s3")
    q(f"s_lshl_b32 s{S_QB}, s{S_QB}, 14")
    q(f"s_add_u32 s{S_QB}, s{S_QB}, {Q_OFF}")
    zero = [i.text for i in q.ins if i.text.startswith("v_accvgpr_write")]
    rest = [i.text for i in q.ins if not i.text.startswith("v_accvgpr_write")]
    nz = opt.get("pre_zero", 64)
    for x in rest + zero[:nz]:
        e(x)
    zero = zero[nz:]
    stamp(e, opt, "setup")
    e.wait_tag("pf")
    stamp(e, opt, "touch")
    first = [(x, "t0") for x in dma_items(0)] + [(x, "dma") for x in dma_items(1)[:NK3]]
    per = -(-len(zero) // len(first))
    for k, ((pre, d, post), tag) in enumerate(first):
        run(e, pre + [(d, tag)] + post + zero[k * per:(k + 1) * per])
    e(f"buffer_load_dword v{V_PD}, v144, s[{S_CKV}:{S_CKV+3}], 0 offen", "pf")
    e(f"buffer_load_dword v{V_PD}, v145, s[{S_W}:{S_W+3}], 0 offen", "pf")
    e(f"buffer_load_dword v{V_PD}, v146, s[{S_X}:{S_X+3}], 0 offen", "pf")
    e("s_or_b32 s7, s2, s3")
    e("s_cbranch_scc1 M_NOPUB")
    e("s_memrealtime s[4:5]")
    e("v_mov_b32 v6, 0")
    e.wait_force(lgkm=0)
    e("s_or_b32 s4, s4, 1")
    e("v_mov_b32 v7, s4")
    e("s_mov_b64 exec, 1")
    e.raw(f"global_store_dword v6, v7, s[{P_DBG}:{P_DBG+1}] sc1")
    e("s_mov_b64 exec, -1")
    e.label("M_NOPUB")
    stamp(e, opt, "dma")
    stamp(e, opt, 1)

    def layernorm(e, n, reduce, norm, T=V_T):
        e("s_mov_b32 s7, 0x3f803f80")
        for k in range(8):
            e(f"v_mov_b32 v{T+k}, 0")
        for r in range(n):
            e(f"v_dot2_f32_bf16 v{T+(r&3)}, v{V_XN+r}, s7, v{T+(r&3)}")
            e(f"v_dot2_f32_bf16 v{T+4+(r&3)}, v{V_XN+r}, v{V_XN+r}, v{T+4+(r&3)}")
        e.nop(4)
        e(f"v_add_f32 v{T}, v{T}, v{T+1}")
        e(f"v_add_f32 v{T+2}, v{T+2}, v{T+3}")
        e(f"v_add_f32 v{T+4}, v{T+4}, v{T+5}")
        e(f"v_add_f32 v{T+6}, v{T+6}, v{T+7}")
        e(f"v_add_f32 v{T}, v{T}, v{T+2}")
        e(f"v_add_f32 v{T+4}, v{T+4}, v{T+6}")
        for step in reduce:
            if step == 8:
                e.nop(2)
                e(f"v_add_f32_dpp v{T}, v{T}, v{T} row_ror:8 row_mask:0xf bank_mask:0xf")
                e(f"v_add_f32_dpp v{T+4}, v{T+4}, v{T+4} row_ror:8 row_mask:0xf bank_mask:0xf")
            else:
                e(f"v_mov_b32 v{T+1}, v{T}")
                e(f"v_mov_b32 v{T+5}, v{T+4}")
                e.nop(2)
                e(f"v_permlane{step}_swap_b32 v{T}, v{T+1}")
                e(f"v_permlane{step}_swap_b32 v{T+4}, v{T+5}")
                e(f"v_add_f32 v{T}, v{T}, v{T+1}")
                e(f"v_add_f32 v{T+4}, v{T+4}, v{T+5}")
        e(f"v_mul_f32 v{T}, {f32(1/448)}, v{T}")
        e(f"v_mul_f32 v{T+4}, {f32(1/448)}, v{T+4}")
        e(f"v_fma_f32 v{T+4}, -v{T}, v{T}, v{T+4}")
        e(f"v_max_f32 v{T+4}, 0, v{T+4}")
        e(f"v_add_f32 v{T+4}, {f32(1e-5)}, v{T+4}")
        e(f"v_rsq_f32 v{T+4}, v{T+4}")
        e(f"v_mul_f32 v{T+4}, {f32(QSCALE)}, v{T+4}")
        e(f"v_mul_f32 v{T}, v{T}, v{T+4}")
        e(f"v_mov_b32 v{T+5}, v{T+4}")
        e(f"v_sub_f32 v{T}, 0, v{T}")
        e(f"v_mov_b32 v{T+1}, v{T}")
        for r in norm:
            t = T + 8 + (r % 8) * 2
            e(f"v_lshlrev_b32 v{t}, 16, v{V_XN+r}")
            e(f"v_and_b32 v{t+1}, 0xffff0000, v{V_XN+r}")
            e(f"v_pk_fma_f32 {v(t,2)}, {v(t,2)}, {v(T+4,2)}, {v(T,2)}")
            e(f"v_cvt_pk_bf16_f32 v{V_XN+r}, v{t}, v{t+1}")

    hk = Seg("m_hook")
    hk.label("M_HOOK")
    hk(f"v_mov_b32 v{V_XN+41}, 0")
    hk("s_lshl_b32 s4, s3, 8")
    hk("s_add_u32 s5, s4, 128")
    hk("s_cmp_eq_u32 s3, 3")
    hk("s_cselect_b32 s5, 0, s5")
    hk(f"s_cmp_eq_u32 s{S_LP}, 2")
    hk("s_cbranch_scc1 M_HOOK2")
    hk(f"s_cmp_eq_u32 s{S_LP}, 3")
    hk("s_cbranch_scc1 M_HOOK3")
    hk(f"s_lshl_b32 s7, s{S_QT}, 7")
    hk(f"s_lshl_b32 s6, s{S_HEAD}, 3")
    hk("s_add_u32 s7, s7, s6")
    hk("v_and_b32 v6, 7, v0")
    hk("v_add_u32 v6, s7, v6")
    hk("v_mul_u32_u24 v6, 896, v6")
    hk("v_lshrrev_b32 v7, 3, v0")
    hk("v_lshl_add_u32 v6, v7, 4, v6")
    for i in range(7):
        hk.raw(f"buffer_load_dwordx4 {v(V_XN+i*4,4)}, v6, s[{S_X}:{S_X+3}], 0 offen offset:{i*128}", "pf")
    hk.raw(f"buffer_load_dwordx4 {v(V_XN+28,4)}, v6, s[{S_X}:{S_X+3}], s4 offen", "pf")
    hk.raw(f"buffer_load_dwordx4 {v(V_XN+32,4)}, v6, s[{S_X}:{S_X+3}], s5 offen", "pf")
    hk.raw(f"global_load_dword v{V_XN+43}, v{V_XN+41}, s[{P_DBG}:{P_DBG+1}]", "pf")
    hk("s_branch M_HOOK_RET")
    hk.label("M_HOOK2")
    hk("s_lshl_b32 s4, s4, 5")
    hk("s_lshl_b32 s5, s5, 5")
    layernorm(hk, 28, (8, 16, 32), range(28, 36), V_XN + 52)
    hk(f"s_lshr_b32 s7, s{S_HEAD}, 2")
    hk(f"s_lshl_b32 s6, s{S_QT}, 2")
    hk("s_add_u32 s7, s7, s6")
    hk("s_mul_i32 s7, s7, 28672")
    hk(f"s_add_u32 s7, s7, {XN_OFF}")
    hk("s_add_u32 s4, s4, s7")
    hk("s_add_u32 s5, s5, s7")
    hk(f"s_and_b32 s6, s{S_HEAD}, 3")
    hk("s_lshl_b32 s6, s6, 7")
    hk("v_and_b32 v6, 7, v0")
    hk("v_lshlrev_b32 v6, 4, v6")
    hk("v_lshrrev_b32 v7, 3, v0")
    hk("v_lshl_add_u32 v6, v7, 9, v6")
    hk("v_add_u32 v6, s6, v6")
    hk(f"buffer_store_dwordx4 {v(V_XN+28,4)}, v6, s[{S_WS}:{S_WS+3}], s4 offen sc1")
    hk(f"buffer_store_dwordx4 {v(V_XN+32,4)}, v6, s[{S_WS}:{S_WS+3}], s5 offen sc1")
    hk("s_branch M_HOOK_RET")
    hk.label("M_HOOK3")
    hk("s_mov_b32 s6, 0")
    hk.label("M_NSPIN")
    hk(f"v_readfirstlane_b32 s{S_N0}, v{V_XN+43}")
    hk(f"s_cmp_lg_u32 s{S_N0}, 0")
    hk("s_cbranch_scc1 M_NOK")
    hk("s_sleep 8")
    hk(f"global_load_dword v{V_XN+43}, v{V_XN+41}, s[{P_DBG}:{P_DBG+1}] sc1")
    hk.wait_force(vm=0)
    hk("s_add_u32 s6, s6, 1")
    hk(f"s_cmp_lt_u32 s6, {PMAX}")
    hk("s_cbranch_scc1 M_NSPIN")
    hk.label("M_NOK")
    hk(f"s_xor_b32 s{S_N1}, s{S_N0}, {NONCE_K:#x}")
    hk("s_cmp_lg_u32 s3, 0")
    hk("s_cbranch_scc1 M_HOOK_RET")
    flag_line(hk, 7, FL_XN, S_QT)
    hk(f"s_lshl_b32 s6, s{S_HEAD}, 3")
    flag_set(hk, S_WS, 7, "s6", V_XN + 40)
    hk.label("M_HOOK_RET")
    hk(f"s_cmp_eq_u32 s{S_KIND}, 0")
    hk("s_cbranch_scc1 M_LOOP_K")
    hk("s_branch M_LOOP_V")

    def frag_reads(b, ks, st):
        r = []
        fa, fb = V_FA + st * 16, V_FB + st * 16
        order = [("a", 0), ("b", 0), ("a", 1), ("a", 2), ("a", 3), ("b", 1), ("b", 2), ("b", 3)]
        for t, i in order:
            if t == "a":
                r.append(f"ds_read_b128 {v(fa+i*4,4)}, v{V_AA+ks} offset:{i*4096 + b*32768}")
            else:
                for u in range(2):
                    r.append(f"ds_read_b64_tr_b16 {v(fb+i*4+u*2,2)}, v{V_AB+i} offset:{(16*ks+4*u)*512 + b*32768}")
        return r

    e.wait_tag("t0")
    stamp(e, opt, "t0")
    e("s_barrier")
    stamp(e, opt, "bar")
    if not A16:
        for r in frag_reads(0, 0, 0):
            e(r)
    e(f"s_mov_b32 s{S_LP}, 0")
    e(f"s_cmp_eq_u32 s{S_KIND}, 0")
    e("s_cbranch_scc0 M_PRE_V")
    pro = e

    def place_dma(fill, items, g0, g1, tag="dma"):
        n = len(items)
        for k, item in enumerate(items):
            pre, d, post = item[:3]
            g = g0 + (k * (g1 - g0)) // n
            for x in pre:
                fill.setdefault(g - 1, []).append(x)
            fill.setdefault(g, []).append((d, item[3] if len(item) > 3 else tag))
            for x in post:
                fill.setdefault(g, []).append(x)

    def ktile(e, kind, b, dma_k0, dma_k3, last=False, pref=True, tag3="dma", tag0="dma", xn=None):
        for ks in range(4):
            st = ks & 1
            fa, fb = V_FA + st * 16, V_FB + st * 16
            spine = []
            for i in range(4):
                for j in range(4):
                    acc = a((i * 4 + j) * 16, 16)
                    W, Cc = v(fb + i * 4, 4), v(fa + j * 4, 4)
                    A, B = (W, Cc) if kind == 0 else (Cc, W)
                    spine.append(f"{MFMA} {acc}, {A}, {B}, {acc}")
            fill = {}
            fill[-1] = [lambda e: e.wait_force(lgkm=0)]
            if ks < 3:
                spread(fill, frag_reads(b, ks + 1, st ^ 1), 0, 12)
                if ks == 0 and dma_k0:
                    place_dma(fill, dma_k0, 1, 16, tag0)
                if ks == 1 and pref:
                    fill.setdefault(4, []).append((f"buffer_load_dword v{V_PD}, v{V_PA}, s[{S_CKV}:{S_CKV+3}], s{SA} offen", "pf"))
                    fill.setdefault(13, []).append((f"buffer_load_dword v{V_PD}, v{V_PB}, s[{S_W}:{S_W+3}], s{SB} offen", "pf"))
                if ks in (1, 2) and xn is not None:
                    k0 = xn + (ks - 1) * 7
                    for k in range(k0, k0 + 7):
                        g = 1 + 2 * (k - k0)
                        if k % 4 == 0 and k:
                            fill.setdefault(g - 1, []).append(f"s_add_u32 s{S_XNB}, s{S_XNB}, 4096")
                        fill.setdefault(g, []).append((f"buffer_load_dwordx4 {v(V_XN+4*k,4)}, v{V_L16}, s[{S_WS}:{S_WS+3}], s{S_XNB} offen offset:{(k%4)*1024} sc1", "xn"))
            else:
                if last:
                    fill[0] = ["s_barrier"]
                else:
                    fill[0] = [lambda e: e.wait_force(vm=(NPF if pref else 0) + (14 if xn is not None else 0)), "s_barrier"]
                    spread(fill, frag_reads(b ^ 1, 0, 0), 0, 12)
                if dma_k3:
                    place_dma(fill, dma_k3, 2, 16, tag3)
            weave(e, spine, fill)

    def c_read(kind, b, s_, j):
        off = j * 2048 if kind == 0 else (j >> 1) * 4096 + (j & 1) * 1024
        return f"ds_read_b128 {v(V_FA + s_*32 + j*4, 4)}, v{V_AA16 + ((s_ ^ j) & 1)} offset:{off + b*32768}"

    def w_read(b, s_, i):
        return [f"ds_read_b64_tr_b16 {v(V_WR + i*4 + 2*u, 2)}, v{V_AB16+i} offset:{(32*s_ + 4*u)*512 + b*32768}" for u in range(2)]

    def ktile16(e, kind, b, dma_k0, dma_k3, last=False, pref=True, tag3="dma", tag0="dma", xn=None):
        for s_ in range(2):
            spine = []
            for i in range(8):
                for j in range(8):
                    if kind == 0:
                        dt, bb, kb, nb = i >> 1, i & 1, j >> 1, j & 1
                    else:
                        dt, nb, kb, bb = i >> 1, i & 1, j >> 1, j & 1
                    acc = a((kb * 4 + dt) * 16 + nb * 8 + bb * 4, 4)
                    W, Cc = v(V_WR + i * 4, 4), v(V_FA + s_ * 32 + j * 4, 4)
                    A, B = (W, Cc) if kind == 0 else (Cc, W)
                    spine.append(f"v_mfma_f32_16x16x32_bf16 {acc}, {A}, {B}, {acc}")
            fill = {}
            nb_, ns = (b, 1) if s_ == 0 else (b ^ 1, 0)
            more = not (last and s_ == 1)
            for i in range(8):
                r = v(V_WR + i * 4, 4)
                fill.setdefault(8 * i - 1, []).append(lambda e, r=r: wait_reg(e, r))
            r = v(V_FA + s_ * 32 + 28, 4)
            fill.setdefault(-1, []).append(lambda e, r=r: wait_reg(e, r))
            if s_ == 1:
                nx = 14 if xn is not None else 0
                if last:
                    fill.setdefault(7, []).extend([lambda e: e.wait(lgkm=0), "s_barrier"])
                elif pref:
                    fill.setdefault(7, []).extend([lambda e: e.wait_force(vm=NPF + b, lgkm=0), "s_barrier"])
                else:
                    fill.setdefault(7, []).extend([lambda e: e.wait_tag("dma"), lambda e: e.wait(lgkm=0), "s_barrier"])
            if more:
                for i in range(8):
                    wr = w_read(nb_, ns, i)
                    fill.setdefault(8 * i + 7, []).append(wr[0])
                    fill.setdefault(min(8 * i + 8, 63), []).append(wr[1])
                for j in range(8):
                    fill.setdefault(10 + 6 * j, []).append(c_read(kind, nb_, ns, j))
            if s_ == 0:
                if dma_k0:
                    place_dma(fill, dma_k0, 2, min(30, 2 + (7 * len(dma_k0)) // 2), tag0)
                if pref:
                    fill.setdefault(36, []).append((f"buffer_load_dword v{V_PD}, v{V_PA}, s[{S_CKV}:{S_CKV+3}], s{SA} offen", "pf"))
                    fill.setdefault(44, []).append((f"buffer_load_dword v{V_PD}, v{V_PB}, s[{S_W}:{S_W+3}], s{SB} offen", "pf"))
                    if b == 1:
                        fill.setdefault(50, []).append((f"global_load_dword v{V_PD}, {v(V_GP,2)}, off", "pf"))
                if xn is not None:
                    for k in range(xn, xn + 14):
                        g = 31 + ((k - xn) * 32) // 14
                        if k % 4 == 0 and k:
                            fill.setdefault(g - 1, []).append(f"s_add_u32 s{S_XNB}, s{S_XNB}, 4096")
                        fill.setdefault(g, []).append((f"buffer_load_dwordx4 {v(V_XN+4*k,4)}, v{V_L16}, s[{S_WS}:{S_WS+3}], s{S_XNB} offen offset:{(k%4)*1024} sc1", "xn"))
            elif dma_k3:
                place_dma(fill, dma_k3, 11, 62, tag3)
            if opt.get("x_a_nodma"):
                for g in fill:
                    fill[g] = [x for x in fill[g] if not (isinstance(x, tuple) and x[1] in ("dma", "pf"))]
            if opt.get("x_a_nords"):
                for g in fill:
                    fill[g] = [x for x in fill[g] if not (isinstance(x, str) and x.startswith("ds_read"))]
            if opt.get("a_level", 1):
                seq = [(g, x) for g in sorted(fill) for x in fill[g]]
                new, nxt = {}, -1
                for g, x in seq:
                    t = x[0] if isinstance(x, tuple) else x
                    heavy = isinstance(t, str) and t.startswith(("ds_", "buffer_", "global_"))
                    fixed = callable(x) or t == "s_barrier"
                    if fixed:
                        new.setdefault(g, []).append(x)
                        continue
                    gg = min(63, max(g, nxt)) if heavy else min(63, max(g, nxt - 1))
                    new.setdefault(gg, []).append(x)
                    if heavy:
                        nxt = gg + 1
                fill = new
            weave(e, spine, fill)

    if A16:
        ktile = ktile16

    NT = 21

    def b_dma(u):
        part, kt = divmod(u, 7)
        slot = SLOT_ORDER[u % 10]
        it = []
        for j in range(4):
            pre = []
            if j == 0:
                pre.append(f"s_add_u32 m0, s{S_W4K}, {slot*16384}")
                off = kt * 64 * 3584 if part == 2 else kt * 64 * 8192 + part * 256
                pre.append(f"s_mov_b32 s{S_BO}, {off}")
            if part == 2:
                d = f"buffer_load_dwordx4 v{V_DQ+j}, s[{S_W1}:{S_W1+3}], s{S_BO} offen offset:{j*1024} lds"
            else:
                d = f"buffer_load_dwordx4 v{V_DQ+j}, s[{S_WQ}:{S_WQ+3}], s{S_BO} offen offset:{j*1024} lds"
            it.append((pre, d, [], f"b{u//2}"))
        return it

    segs = [pro]
    traces = [[hk]]
    tails = {}
    extra = []
    vm_loop = [("dma", frozenset())] * 40
    for kind in range(2):
        nm = "KV"[kind]
        pre = Seg(f"m_pre{nm}", pro.lds, pro.vm)
        pre.label(f"M_PRE_{nm}")
        if A16:
            seq = sorted([(8 * i + 7, 0, w_read(0, 0, i)[0]) for i in range(8)] + [(min(8 * i + 8, 63), 1, w_read(0, 0, i)[1]) for i in range(8)]
                         + [(10 + 6 * j, 2, c_read(kind, 0, 0, j)) for j in range(8)])
            for _, _, x in seq:
                pre(x)
        lp = Seg(f"m_loop{nm}", pre.lds, vm_loop)
        lp.label(f"M_LOOP_{nm}")
        d0, d1 = dma_items(0), dma_items(1)
        ktile(lp, kind, 0, d1[NK3:], d0[:NK3])
        ktile(lp, kind, 1, d0[NK3:], d1[:NK3])
        assert opt.get('x_a_nords') or lp.lds == pre.lds, (len(lp.lds), len(pre.lds))
        lp(f"s_add_u32 s{S_LP}, s{S_LP}, 1")
        for it in range(1, 8):
            if f"it{it}" in opt.get("sp", []):
                lp(f"s_cmp_lg_u32 s{S_LP}, {it}")
                lp(f"s_cbranch_scc1 M_NS{it}_{nm}")
                stamp(lp, opt, f"it{it}", raw=True)
                lp.label(f"M_NS{it}_{nm}")
        lp(f"s_cmp_le_u32 s{S_LP}, 3")
        lp("s_cbranch_scc1 M_HOOK")
        lp(f"s_cmp_lg_u32 s{S_LP}, 6")
        lp(f"s_cbranch_scc1 M_NOPOLL_{nm}")
        flag_line(lp, 7, FL_XN, S_QT)
        lp(f"buffer_load_dwordx2 {v(V_FL,2)}, v{V_FO}, s[{S_WS}:{S_WS+3}], s7 offen sc1", "pf")
        lp.label(f"M_NOPOLL_{nm}")
        lp(f"s_cmp_lt_u32 s{S_LP}, 7")
        lp(f"s_cbranch_scc1 M_LOOP_{nm}")
        tl = Seg(f"m_tail{nm}", lp.lds, lp.vm)
        tl.label(f"M_TAIL{kind}")
        bd = sum((b_dma(u) for u in range(10)), [])
        flag_test(tl, V_FL)
        tl(f"s_cselect_b32 s{S_XNF}, 1, 0")
        ktile(tl, kind, 0, d1[NK3:] + bd[:8], bd[8:20], pref=False, xn=0)
        ktile(tl, kind, 1, bd[20:24], bd[24:36], last=True, pref=False, xn=14)
        if kind == 0:
            tl("s_branch M_B")
        segs += [pre, lp, tl] + ([hk] if kind == 0 else [])
        tails[kind] = tl
        traces.append([pro, pre, lp, lp, tl])

    e = Seg("m_b", tails[0].lds, tails[0].vm)
    e.label("M_B")
    stamp(e, opt, 2)
    stamp(e, opt, "b")
    e(f"s_cmp_lt_u32 s{S_XNF}, {99 if opt.get('force_fb') else 1}")
    e("s_cbranch_scc1 M_FB")
    e.label("M_FB_RET")
    for _ in range(opt.get("x_idle", 0)):
        e("s_sleep 32")
    srd(e, S_WO, P_WO, WO_BYTES)
    srd(e, S_W2, P_W2, W2_BYTES)
    attn.setup_dma(e)
    e(f"v_and_b32 v{V_ST}, 15, v0")
    e(f"v_lshlrev_b32 v{V_ST}, 4, v{V_ST}")
    e("v_lshrrev_b32 v6, 4, v0")
    e(f"v_lshl_add_u32 v{V_ST}, v6, 9, v{V_ST}")
    e(f"v_mov_b32 v6, v{V_D1+3}")
    for nb in range(4):
        e(f"v_add_u32 v{V_AT3+nb}, 0x20000, v{V_AT+nb}")
    fb = Seg("m_fb")
    fb.label("M_FB")
    fb.wait_force(vm=0)
    fb(f"s_lshl_b32 s7, s{S_QT}, 7")
    fb("s_lshl_b32 s6, s3, 5")
    fb("s_add_u32 s7, s7, s6")
    fb("v_and_b32 v6, 31, v0")
    fb("v_add_u32 v6, s7, v6")
    fb("v_mul_u32_u24 v6, 896, v6")
    fb("v_lshrrev_b32 v7, 5, v0")
    fb("v_lshl_add_u32 v6, v7, 4, v6")
    for ks in range(28):
        fb(f"buffer_load_dwordx4 {v(V_XN+ks*4,4)}, v6, s[{S_X}:{S_X+3}], 0 offen offset:{ks*32}", "x")
    layernorm(fb, 112, (32,), range(112))
    fb.nop(2)
    fb("s_branch M_FB_RET")
    extra.append(fb)

    D = opt.get("b_depth", 7)
    NF = NT * 16

    def b_read(f):
        u, rem = divmod(f, 16)
        ks, nb = divmod(rem, 4)
        slot = SLOT_ORDER[u % 10]
        fr = V_FA + (f % 8) * 4
        at = (V_AT, V_AT + 4, V_AT3)[slot >> 2] + nb
        return [f"ds_read_b64_tr_b16 {v(fr+2*h,2)}, v{at} offset:{(slot&3)*16384 + (16*ks+4*h)*256}" for h in range(2)]

    def kv_epi(b, t=8):
        kb, i = divmod(b, 4)
        ops = []
        if i == 0 and kb:
            ops.append(f"s_add_u32 s{S_KVBASE}, s{S_KVBASE}, s{S_KVSTR}")
        if i % 2 == 0:
            ops.append(f"s_add_u32 s{S_KVC}, s{S_KVBASE}, {KV_OFF + (i>>1)*4096}")
        for c in range(2):
            for r in range(8):
                ops.append(f"v_accvgpr_read_b32 v{t+r}, a{b*16+8*c+r}")
            for r in range(4):
                ops.append(f"v_cvt_pk_bf16_f32 v{t+8+r}, v{t+2*r}, v{t+2*r+1}")
            ops.append((f"buffer_store_dwordx4 {v(t+8,4)}, v{V_ST}, s[{S_WS}:{S_WS+3}], s{S_KVC} offen offset:{(i&1)*2048+c*256}{ST}", "kvst" if kb < 2 else "kvst2"))
        if opt.get("x_nokvst"):
            ops = [o for o in ops if not isinstance(o, tuple)]
        if opt.get("x_noepi"):
            ops = []
        return ops

    def q_epi(part):
        ops = []
        t = 20
        for nb in range(4):
            if nb % 2 == 0:
                ops.append(f"s_add_u32 s{S_QC}, s{S_QB}, {part*8192 + (nb>>1)*4096}")
            for c in range(2):
                if part == 0:
                    src = H_ACC[nb] + 8 * c
                else:
                    src = t
                    for r in range(8):
                        ops.append(f"v_accvgpr_read_b32 v{t+r}, a{nb*16+8*c+r}")
                for r in range(4):
                    ops.append(f"v_cvt_pk_bf16_f32 v{t+8+r}, v{src+2*r}, v{src+2*r+1}")
                ops.append((f"buffer_store_dwordx4 {v(t+8,4)}, v{V_L16}, s[{S_QST}:{S_QST+3}], s{S_QC} offen offset:{(nb&1)*2048 + c*1024} sc1", "qst"))
                for r in range(4):
                    ops.append(f"v_accvgpr_write_b32 a{A_Q2 + part*32 + nb*8 + c*4 + r}, v{t+8+r}")
        return ops

    GKV, GCHK, GQ = opt.get("g_kv", 6), opt.get("g_chk", 9), 9
    fl = attn.first_loads(S_KVE)
    spine, fill = [], {}
    e.wait_tag("b0")
    e("s_barrier")
    for f in range(D):
        for r in b_read(f):
            e(r)
    place_dma(fill, b_dma(9), 1, 16)
    for f in range(NF):
        u, rem = divmod(f, 16)
        part, kt = divmod(u, 7)
        ks, nb = divmod(rem, 4)
        acc = a(nb * 16, 16) if part == 1 else v(H_ACC[nb], 16)
        c = "0" if (kt == 0 and ks == 0) else acc
        spine.append(f"{MFMA} {acc}, {v(V_FA+(f%8)*4,4)}, {v(V_XN+(kt*4+ks)*4,4)}, {c}")
        nf = f + D
        if nf < NF:
            if nf % 32 == 0:
                g = nf // 32
                ops = [lambda e, g=g: e.wait_tag(f"b{g}")]
                if g == GKV:
                    ops.append(lambda e: e.wait_tag("kvst"))
                if g == GQ:
                    ops.append(lambda e: e.wait_tag("qst"))
                if g == GCHK:
                    ops += [lambda e: flag_test(e, VPK), f"s_cselect_b32 s{S_EARLY}, 1, 0",
                            f"s_cselect_b32 s{S_KVE+2}, {WS_BYTES:#x}, 0"]
                ops.append("s_barrier")
                if g == GKV:
                    ops += ["s_cmp_eq_u32 s3, 0", "s_cbranch_scc1 M_SKV", "M_SKV_RET:"]
                if g == GQ:
                    ops += ["s_cmp_eq_u32 s3, 0", "s_cbranch_scc1 M_SQ", "M_SQ_RET:"]
                if g == 10:
                    ops += [f"s_cmp_lt_u32 s{S_QT}, 8", "s_cbranch_scc1 M_EQ", "M_EQ_RET:"]
                if g == 4:
                    ops += [f"v_add_u32 v{V_DQ+j}, {j*4*3584 - j*1024}, v6" for j in range(4)]
                if f"g{g}" in opt.get("sp", []):
                    ops.append(lambda e, g=g: stamp(e, opt, f"g{g}", raw=True))
                fill.setdefault(f, []).extend(ops)
                if g >= 2:
                    its = []
                    for u2 in (2 * g + 6, 2 * g + 7):
                        if u2 < NT:
                            its += b_dma(u2)
                    if its:
                        place_dma(fill, its, f + 2, f + 30)
                if g == 9:
                    spread(fill, sum(fl[:4], []), f + 2, f + 32)
                if g == 10:
                    spread(fill, sum(fl[4:], []), f + 2, f + 20)
            fill.setdefault(f, []).extend(b_read(nf))
        if f % 2 == 0:
            r = v(V_FA + (min(f + 1, NF - 1) % 8) * 4, 4)
            fill.setdefault(f - 1, []).append(lambda e, r=r: wait_reg(e, r))
    g1, g2a, g2, gq0, gq1 = opt.get("kv_split", (125, 200, 330, 130, 262))
    pour(fill, sum((kv_epi(b) for b in range(0, 8)), []), 2, g1)
    pour(fill, q_epi(0), gq0, 215)
    pour(fill, q_epi(1), 224 + 5, gq1)
    pour(fill, [f"s_mov_b32 s{S_KVE}, s{S_WS}", f"s_mov_b32 s{S_KVE+1}, s{S_WS+1}", f"s_mov_b32 s{S_KVE+3}, 0x20000",
                lambda e: flag_line(e, 73, FL_KV, S_HEAD), lambda e: flag_line(e, 74, FL_PAIR, S_PAIR)], 160, 180)
    fill.setdefault(opt.get("g_pkv", 240), []).append(f"buffer_load_dwordx2 {v(VPK,2)}, v{V_FO}, s[{S_WS}:{S_WS+3}], s73 offen sc1")
    GP = opt.get("g_poll", 298)
    fill.setdefault(GP - 1, []).append(f"v_mov_b32 v{VPQ+2}, 0")
    fill.setdefault(GP, []).append((f"buffer_load_dwordx2 {v(VPQ,2)}, v{VPQ+2}, s[{S_WS}:{S_WS+3}], s74 offen sc1", "pq"))
    fill.setdefault(GP, []).append(f"s_mov_b32 s{S_GOTQ}, 0")
    pour(fill, [f"v_accvgpr_mov_b32 a{A_Q+r}, a{A_Q2+r}" for r in range(64)], gq1 + 2, 312)
    pour(fill, sum((kv_epi(b) for b in range(8, 12)), []), g2a, g2)
    younger = [0]

    def count_pq(e):
        tags = [t for t, d in e.vm]
        younger[0] = len(tags) - 1 - tags.index("pq") if "pq" in tags else 63
    count_pq.cost = 0
    fill[313].insert(fill[313].index("s_barrier"), count_pq)
    for k in range(8, 26):
        for r in (0, 2):
            g = min(range(224 + 4 * k + 5, 336), key=lambda g: (load_of(fill, g), g))
            fill.setdefault(g, []).append(f"v_mov_b64 {v(V_XN+4*k+r,2)}, 0")
    print(gap_report("phase B", fill, NF))
    weave(e, spine, fill)
    stamp(e, opt, 3)
    stamp(e, opt, "bend")

    skv = Seg("m_skv")
    skv.label("M_SKV")
    flag_line(skv, 7, FL_KV, S_HA)
    flag_set(skv, S_WS, 7, f"s{S_KVSLOT}", 20)
    skv("s_branch M_SKV_RET")
    sq = Seg("m_sq")
    sq.label("M_SQ")
    sq(f"s_cmp_lt_u32 s{S_QT}, 8")
    sq("s_cbranch_scc1 M_SQ_RET")
    flag_set(sq, S_WS, 74, 0, V_XN)
    sq("s_branch M_SQ_RET")

    def spin(e, name, vd, voff, line, first=True):
        e("s_mov_b32 s6, 0")
        e.label(name)
        if first:
            e(f"buffer_load_dwordx2 {v(vd,2)}, v{voff}, s[{S_WS}:{S_WS+3}], s{line} offen sc1")
        e.wait_force(vm=0)
        flag_test(e, vd)
        e(f"s_cbranch_scc1 {name}_OK")
        e("s_sleep 2")
        if not first:
            e(f"buffer_load_dwordx2 {v(vd,2)}, v{voff}, s[{S_WS}:{S_WS+3}], s{line} offen sc1")
        e("s_add_u32 s6, s6, 1")
        e(f"s_cmp_lt_u32 s6, {PMAX}")
        e(f"s_cbranch_scc1 {name}")
        e.wait_force(vm=0)
        e.label(name + "_OK")

    late = Seg("m_late")
    late.label("M_LATE")
    spin(late, "M_PKV", VPK, V_FO, 73)
    for grp in attn.first_loads(S_WS):
        run(late, grp)
    late.wait_force(vm=0)
    late("s_branch M_LATE_RET")
    def q_loads(g):
        for k in range(16):
            if k and k % 4 == 0:
                g(f"s_add_u32 s{S_QB}, s{S_QB}, 4096")
            g(f"buffer_load_dwordx4 {a(A_Q+4*k,4)}, v{V_L16}, s[{S_WS}:{S_WS+3}], s{S_QB} offen offset:{(k%4)*1024} sc1", "q")

    gq = Seg("m_getq")
    gq.label("M_EQ")
    gq.wait_force(vm=younger[0])
    flag_test(gq, VPQ)
    gq("s_cbranch_scc0 M_EQ_RET")
    q_loads(gq)
    gq(f"s_mov_b32 s{S_GOTQ}, 1")
    gq("s_branch M_EQ_RET")
    gq.label("M_GETQ")
    gq(f"s_cmp_eq_u32 s{S_GOTQ}, {2 if opt.get('force_late') else 1}")
    gq("s_cbranch_scc1 M_GETQ_RET")
    if opt.get('force_late'):
        gq(f"s_mul_i32 s6, s{S_GOTQ}, 12288")
        gq(f"s_sub_u32 s{S_QB}, s{S_QB}, s6")
    spin(gq, "M_PQ", VPQ, VPQ + 2, 74)
    q_loads(gq)
    gq("s_branch M_GETQ_RET")
    wq = Seg("m_waitq")
    wq.label("M_WAITQ")
    wq.wait_force(vm=0)
    wq("s_branch M_WAITQ_RET")
    extra += [skv, sq, late, gq, wq]

    e(f"s_cmp_eq_u32 s{S_EARLY}, {2 if opt.get('force_late') else 1}")
    e("s_cbranch_scc0 M_LATE")
    e.label("M_LATE_RET")
    e(f"s_cmp_lt_u32 s{S_QT}, 8")
    e("s_cbranch_scc1 M_GETQ")
    e.label("M_GETQ_RET")
    stamp(e, opt, "polled")
    HS = V_XN + 4
    for k in range(28):
        nb, r = divmod(k, 8)
        e(f"v_cvt_pk_bf16_f32 v{HS+k}, v{H_ACC[nb]+2*r}, v{H_ACC[nb]+2*r+1}")
    srd(e, S_OUT, P_OUT, OUT_BYTES)
    attn.setup_v(e)
    e("s_getpc_b64 s[80:81]")
    e.label("M_PC_A")
    e("s_lshr_b32 s7, s2, 3")
    e("s_lshl_b32 s7, s7, 2")
    e("s_add_u32 s7, s7, s3")
    e("s_mul_i32 s7, s7, 512")
    e(f"v_min_u32 v{attn.V_X+3}, 3, v0")
    e(f"v_lshl_add_u32 v{attn.V_X+3}, v{attn.V_X+3}, 7, s7")
    e(f"v_min_u32 v{attn.V_X+3}, M_CODE_END-M_PC_A-8, v{attn.V_X+3}")
    attn.init_state(e, V_XN + 4 * 26)
    e(f"s_cmp_lt_u32 s{S_QT}, 8")
    e("s_cbranch_scc1 M_WAITQ")
    e.label("M_WAITQ_RET")
    stamp(e, opt, 4)
    stamp(e, opt, "a0")

    RA, RB, XR, VO, VP = 180, 32, 12, 2, 10

    def hooks(fill, NFE, ED):
        g = 6 * NFE - ED
        fill[g].extend(["s_cmp_eq_u32 s3, 0", "s_cbranch_scc1 M_SYA", "M_SYA_RET:"])
        ops = [f"s_lshl_b32 s7, s{S_QT}, 2", f"s_lshr_b32 s4, s{S_HEAD}, 2", "s_add_u32 s4, s4, s7",
               f"s_and_b32 s5, s{S_HEAD}, 3", "s_lshl_b32 s6, s3, 2", "s_add_u32 s5, s5, s6",
               "s_mul_i32 s6, s4, 28", "s_add_u32 s6, s6, s5", "s_lshl_b32 s6, s6, 10",
               f"s_add_u32 s53, s6, {Y_OFF}", "s_add_u32 s54, s53, 16384",
               f"v_and_b32 v{VO}, 31, v0", "v_lshrrev_b32 v3, 5, v0", "s_lshl_b32 s4, s4, 5", f"v_add_u32 v{VO}, s4, v{VO}",
               f"v_mul_u32_u24 v{VO}, 896, v{VO}", f"v_lshl_add_u32 v{VO}, v3, 3, v{VO}", "s_lshl_b32 s5, s5, 5",
               f"v_add_u32 v{VO}, s5, v{VO}"]
        ops += [f"buffer_load_dwordx2 {v(XR+2*k,2)}, v{VO}, s[{S_X}:{S_X+3}], 0 offen offset:{(k>>1)*512+(k&1)*16}" for k in range(4)]
        ops += [lambda e: flag_line(e, 55, FL_Y, S_QT), lambda e: flag_line(e, 63, FL_YA, S_QT)]
        pour(fill, ops, 5 * NFE + 2, 5 * NFE + 34)
        fill.setdefault(6 * NFE + opt.get("g_pa", 22), []).append(
            (f"buffer_load_dwordx2 {v(VP,2)}, v{V_FO}, s[{S_WS}:{S_WS+3}], s63 offen sc1", "pa"))

    sya = Seg("m_sya")
    sya.label("M_SYA")
    sya(f"s_lshl_b32 s6, s{S_HEAD}, 3")
    flag_set(sya, S_WS, 63, "s6", 20)
    sya("s_branch M_SYA_RET")
    extra.append(sya)

    def finish(e):
        stamp(e, opt, "yend")

        def loads(base, sreg, tag):
            for h in range(16):
                e(f"buffer_load_dwordx4 {v(base+4*h,4)}, v{V_L16}, s[{S_WS}:{S_WS+3}], s{sreg} offen sc1", tag)
                if h < 15:
                    e(f"s_add_u32 s{sreg}, s{sreg}, {64*28*1024}")

        def reduce(base, xr, off):
            acc, t = 20, 28
            for r in range(4):
                e(f"v_lshlrev_b32 v{acc+2*r}, 16, v{xr+r}")
                e(f"v_and_b32 v{acc+1+2*r}, 0xffff0000, v{xr+r}")
            for h in range(16):
                for r in range(4):
                    src = base + 4 * h + r
                    u = t + 2 * (r & 1)
                    e(f"v_lshlrev_b32 v{u}, 16, v{src}")
                    e(f"v_and_b32 v{u+1}, 0xffff0000, v{src}")
                    e(f"v_pk_add_f32 {v(acc+2*r,2)}, {v(acc+2*r,2)}, {v(u,2)}")
            for r in range(4):
                e(f"v_cvt_pk_bf16_f32 v{xr+r}, v{acc+2*r}, v{acc+1+2*r}")
            e(f"buffer_store_dwordx2 {v(xr,2)}, v{VO}, s[{S_OUT}:{S_OUT+3}], 0 offen offset:{off}")
            e(f"buffer_store_dwordx2 {v(xr+2,2)}, v{VO}, s[{S_OUT}:{S_OUT+3}], 0 offen offset:{off+16}")

        flag_test(e, VP)
        e("s_cselect_b32 s60, 1, 0")
        e("s_cbranch_scc0 M_NOA")
        loads(RA, 53, "ra")
        e.wait_force(vm=16)
        e("s_branch M_A1")
        e.label("M_NOA")
        e.wait_force(vm=0)
        e.label("M_A1")
        e("s_barrier")

        e("s_cmp_lg_u32 s3, 3")
        e("s_cbranch_scc1 M_PA_OK")
        e(f"s_lshl_b32 s6, s{S_HEAD}, 3")
        flag_set(e, S_WS, 55, "s6", 20)
        e("s_cmp_eq_u32 s60, 1")
        e("s_cbranch_scc1 M_PA_OK")
        spin(e, "M_PA", VP, V_FO, 63)
        e("s_barrier")
        e("s_cmp_eq_u32 s60, 1")
        e("s_cbranch_scc1 M_A2")
        loads(RA, 53, "ra")
        e.label("M_A2")
        e("s_cmp_eq_u32 s3, 3")
        e("s_cbranch_scc1 M_W3")
        e.wait_force(vm=0)
        reduce(RA, XR, 0)
        e("s_barrier")
        stamp(e, opt, "ypoll")
        e.vm = []
        loads(RB, 54, "rb")
        reduce(RB, XR + 4, 512)
        e("s_branch M_DONE")
        e.label("M_W3")
        spin(e, "M_PB", VP, V_FO, 55)
        e("s_barrier")
        stamp(e, opt, "ypoll")
        reduce(RA, XR, 0)
        e.label("M_DONE")
        stamp(e, opt, 5)
        stamp(e, opt, "end")
        stamp_flush(e, opt, 0, S_WS, 6)

    aopt = dict(opt)
    aopt["code_pf"] = not opt.get("no_cpf")
    aopt["stash"] = HS
    aopt["kv2"] = (S_HA, S_KVSLOT, V_FO, sum((kv_epi(b, attn.V_X + 12) for b in range(12, 16)), []))
    if not opt.get("sp"):
        aopt["sp"] = ["none"]
        aopt["spk"] = ""
    asegs, atraces = attn.gen_attn(e, aopt, "M_END", finish, hooks)
    z = Seg("m_z")
    z.label("M_CODE_END")
    segs += asegs + extra + [z]
    for t in traces[1:]:
        t.append(e)
    traces += atraces + [[tails[0], fb, e]] + [[x] for x in extra]
    return segs, traces
```

```python
MB = 1 << 20
KV_OFF = 0
Q_OFF = 32 * MB
H_OFF = 48 * MB
OP_OFF = 56 * MB
ML_OFF = 72 * MB
Y_OFF = 80 * MB
XN_OFF = 112 * MB
FL_OFF = 116 * MB
STAMP_OFF = 128 * MB
DUMMY_OFF = 192 * MB
WS_BYTES = 256 * MB

X_BYTES = 2048 * 448 * 2
CKV_BYTES = 2048 * 1024 * 2
WQ_BYTES = 448 * 4096 * 2
WU_BYTES = 1024 * 4096 * 2
WO_BYTES = 4096 * 448 * 2
W1_BYTES = 448 * 1792 * 2
W2_BYTES = 1792 * 448 * 2
OUT_BYTES = 2048 * 448 * 2

MFMA = "v_mfma_f32_32x32x16_bf16"
QSCALE = 1.4426950408889634 / 16.0


def v(b, n=1):
    return f"v{b}" if n == 1 else f"v[{b}:{b+n-1}]"


def a(b, n=1):
    return f"a{b}" if n == 1 else f"a[{b}:{b+n-1}]"


def s(b, n=1):
    return f"s{b}" if n == 1 else f"s[{b}:{b+n-1}]"


def srd(e, d, ptr, nbytes):
    e(f"s_mov_b32 s{d}, s{ptr}")
    e(f"s_mov_b32 s{d+1}, s{ptr+1}")
    e(f"s_mov_b32 s{d+2}, {nbytes:#x}")
    e(f"s_mov_b32 s{d+3}, 0x20000")


def load_kernargs(e):
    e("s_load_dwordx16 s[64:79], s[0:1], 0")
    e("s_load_dwordx8 s[80:87], s[0:1], 64")


P_X, P_CKV, P_WQ, P_WUK, P_WUV, P_WO, P_W1, P_W2, P_OUT, P_DBG, P_WS = 64, 66, 68, 70, 72, 74, 78, 80, 82, 84, 86


def kd(name, vgpr, acc, sgpr=102):
    return f""".amdhsa_kernel {name}
  .amdhsa_next_free_vgpr {vgpr}
  .amdhsa_next_free_sgpr {sgpr}
  .amdhsa_accum_offset {acc}
  .amdhsa_group_segment_fixed_size 0
  .amdhsa_kernarg_size 96
  .amdhsa_user_sgpr_count 2
  .amdhsa_user_sgpr_kernarg_segment_ptr 1
  .amdhsa_system_sgpr_workgroup_id_x 1
.end_amdhsa_kernel
"""


def f32(x):
    import struct
    return "0x%08x" % struct.unpack("<I", struct.pack("<f", x))[0]


def stamp(e, opt, idx, raw=False):
    if isinstance(idx, str):
        pts = opt.get("sp", [])
        if idx not in pts:
            return
        idx = pts.index(idx)
    elif opt.get("sp") and e.name.startswith(opt.get("spk", "k1")):
        return
    if opt.get("stamps"):
        f = e.raw if raw else e
        f("s_memtime s[100:101]")
        f("s_waitcnt lgkmcnt(0)")
        f(f"s_mov_b32 s{88+2*idx}, s100")
        f("s_memrealtime s[100:101]")
        f("s_waitcnt lgkmcnt(0)")
        f(f"s_mov_b32 s{89+2*idx}, s100")


def stamp_flush(e, opt, kern, srd_ws, n, waves=4):
    if opt.get("stamps") and opt.get("dbgwg") is not None:
        e(f"s_cmp_lg_u32 s2, {opt['dbgwg']}")
        e("s_cbranch_scc1 ST_SKIP")
        e("s_cmp_lg_u32 s3, 3")
        e("s_cbranch_scc1 ST_SKIP")
        e("s_load_dwordx2 s[4:5], s[0:1], 80")
        e.wait_force(lgkm=0)
        e("v_mov_b32 v2, 0")
        for i in range(n - 1):
            e(f"s_sub_u32 s6, s{91+2*i}, s{89+2*i}")
            e("v_mov_b32 v3, s6")
            e(f"global_store_dword v2, v3, s[4:5] offset:{4+4*i}")
            e(f"s_sub_u32 s6, s{90+2*i}, s{88+2*i}")
            e("v_mov_b32 v3, s6")
            e(f"global_store_dword v2, v3, s[4:5] offset:{32+4*i}")
        e.label("ST_SKIP")
    elif opt.get("stamps"):
        e(f"s_mul_i32 s7, s2, {waves}")
        e("s_add_u32 s7, s7, s3")
        e("s_lshl_b32 s7, s7, 6")
        e(f"s_add_u32 s7, s7, {STAMP_OFF + kern*MB}")
        e("v_mov_b32 v2, 0")
        for i in range(2 * n):
            e(f"v_mov_b32 v3, s{88+i}")
            e(f"buffer_store_dword v3, v2, s[{srd_ws}:{srd_ws+3}], s7 offen offset:{4*i}")


S_N0, S_N1 = 86, 87
NONCE_K = 0x5bd1e995
FL_XN, FL_KV, FL_Y, FL_PAIR, FL_YA, FL_KV2 = 0, 16, 32, 48, 176, 192
LDS_NONCE = 0x27ff0


def flag_line(e, dst, base, idx_sreg):
    e(f"s_lshl_b32 s{dst}, s{idx_sreg}, 9")
    e(f"s_add_u32 s{dst}, s{dst}, {FL_OFF + base*512}")


def flag_set(e, ws, line_sreg, slot, vt):
    e(f"v_mov_b32 v{vt}, s{S_N0}")
    e(f"v_mov_b32 v{vt+1}, s{S_N1}")
    e(f"v_mov_b32 v{vt+2}, {slot*8 if isinstance(slot, int) else slot}")
    e("s_mov_b64 exec, 1")
    e(f"buffer_store_dwordx2 v[{vt}:{vt+1}], v{vt+2}, s[{ws}:{ws+3}], s{line_sreg} offen sc1")
    e("s_mov_b64 exec, -1")


def flag_test(e, vd, sa=4):
    e(f"v_cmp_eq_u32 vcc, s{S_N0}, v{vd}")
    e(f"v_cmp_eq_u32 s[{sa}:{sa+1}], s{S_N1}, v{vd+1}")
    e.nop(1)
    e(f"s_and_b64 vcc, vcc, s[{sa}:{sa+1}]")
    e("s_cmp_eq_u64 vcc, exec")
```

```python
from emit import *
from common import *

LDS_BYTES = 160 * 1024
S_WS, S_WO, S_W2, S_Y1 = 16, 8, 12, 28
V_L16, V_PD = 1, 2
V_DMA, V_DMA2 = 3, 4
V_L0, V_L1, V_VA, V_HA, V_D0, V_NEGBIG, V_MAX, V_MS = 8, 9, 10, 11, 13, 14, 15, 16
V_T = 18
V_S = (32, 48)
V_P = (64, 72)
V_NM = 80
V_X = 96
V_O = 128
A_Q, A_Q2, A_F, A_HF = 0, 64, 128, 192
S_HEAD, S_QT, S_NH, S_IT, S_T, S_RET, S_DELTA, S_ITH, S_OFFH, S_OFFD = 32, 33, 34, 35, 36, 37, 38, 39, 40, 41
S_KVB, S_W4K, S_PAIR, S_ITSW, S_ITSIG, S_PEND = 42, 43, 48, 49, 50, 51
S_OFF = 44
THR = 16.0
VSLOT = {32: 0x20000, 33: 0x24000}
S_NEG, S_QS, S_PFO, S_PFD, S_PUB = 52, 82, 83, 84, 78
V_KP = 12
KPD = 7
KVM = [""]


def setup_s(e):
    e(f"s_lshl_b32 s4, s{S_QT}, 2")
    e(f"s_sub_u32 s{S_NH}, 30, s4")
    e(f"s_sub_u32 s6, 15, s{S_QT}")
    e(f"s_cmp_ge_u32 s{S_QT}, 8")
    e(f"s_cselect_b32 s{S_NH}, 0, s{S_NH}")
    e(f"s_cselect_b32 s{S_PAIR}, s6, s{S_QT}")
    e(f"s_lshl_b32 s5, s{S_HEAD}, 3")
    e(f"s_add_u32 s{S_PAIR}, s{S_PAIR}, s5")
    e(f"s_lshl_b32 s{S_W4K}, s3, 12")
    e(f"s_lshl_b32 s{S_KVB}, s{S_HEAD}, 21")
    e(f"s_sub_u32 s5, 29, s{S_NH}")
    e("s_lshl_b32 s5, s5, 15")
    e(f"s_add_u32 s{S_OFFH}, s5, s{S_KVB}")
    e("s_lshl_b32 s5, s4, 15")
    e(f"s_add_u32 s{S_OFFD}, s5, s{S_KVB}")
    e(f"s_sub_u32 s5, s{S_NH}, 6")
    e("s_lshr_b32 s5, s5, 2")
    e(f"s_cmp_ge_u32 s{S_NH}, 6")
    e(f"s_cselect_b32 s{S_ITH}, s5, 99")
    e(f"s_lshr_b32 s5, s{S_NH}, 2")
    e(f"s_cmp_ge_u32 s{S_QT}, 8")
    e(f"s_cselect_b32 s{S_ITSW}, 99, s5")
    e(f"s_mov_b32 s{S_ITSIG}, s{S_ITSW}")
    e("s_cmp_eq_u32 s3, 0")
    e(f"s_cselect_b32 s{S_ITSIG}, s{S_ITSIG}, 99")
    e(f"s_mov_b32 s{S_NEG}, 0xffff8000")
    e(f"s_mov_b32 s{S_PEND}, 0")
    e(f"s_mov_b32 s{S_IT}, 0")
    e(f"s_mov_b32 s{S_T}, {f32(THR)}")


def setup_dma(e):
    e(f"v_lshlrev_b32 v{V_L16}, 4, v0")
    e(f"v_add_u32 v{V_DMA}, s{S_W4K}, v{V_L16}")
    e(f"v_add_u32 v{V_DMA2}, 0x4000, v{V_DMA}")


def setup_v(e):
    e(f"s_mul_i32 s5, s{S_QT}, 112")
    e("s_mul_i32 s6, s3, 28")
    e("s_add_u32 s5, s5, s6")
    e(f"v_min_u32 v{V_T}, 27, v0")
    e(f"v_add_u32 v{V_T}, s5, v{V_T}")
    e(f"s_mul_i32 s5, s{S_HEAD}, 229376")
    e(f"v_lshl_add_u32 v{V_X+1}, v{V_T}, 7, s5")
    e("s_mul_i32 s6, s3, 13")
    e(f"v_min_u32 v{V_T}, 12, v0")
    e(f"v_add_u32 v{V_T}, s6, v{V_T}")
    e(f"v_min_u32 v{V_T}, 48, v{V_T}")
    e(f"s_mul_i32 s5, s{S_QT}, 49")
    e(f"v_add_u32 v{V_T}, s5, v{V_T}")
    e(f"s_mul_i32 s5, s{S_HEAD}, 100352")
    e(f"v_lshl_add_u32 v{V_X+2}, v{V_T}, 7, s5")
    e(f"v_add_u32 v{V_VA}, 0x10000, v{V_L16}")
    e(f"v_and_b32 v{V_T}, 31, v0")
    e(f"v_lshrrev_b32 v{V_T+1}, 5, v0")
    e(f"v_lshlrev_b32 v{V_T+1}, 2, v{V_T+1}")
    e(f"v_sub_u32 v{V_D0}, v{V_T}, v{V_T+1}")
    e(f"v_mov_b32 v{V_NEGBIG}, {f32(-1e30)}")
    e(f"s_mov_b32 s{S_QS}, {f32(QSCALE)}")
    e("s_cmp_eq_u32 s3, 0")
    e(f"s_cselect_b32 s{S_PUB}, 2, 0")
    e(f"s_and_b32 s5, s{S_QT}, 7")
    e("s_lshl_b32 s5, s5, 2")
    e("s_add_u32 s5, s5, s3")
    e("s_lshl_b32 s5, s5, 10")
    e(f"v_and_b32 v{V_T}, 7, v0")
    e(f"v_lshl_add_u32 v{V_KP}, v{V_T}, 7, s5")
    e(f"v_bfe_u32 v{V_T}, v0, 3, 2")
    e(f"v_lshl_add_u32 v{V_KP}, v{V_T}, 15, v{V_KP}")
    e(f"s_cmp_ge_u32 s{S_QT}, 8")
    e(f"s_cselect_b32 s{S_PFO}, {29 - KPD - 3}, {30 + KPD}")
    e(f"s_cselect_b32 s{S_PFD}, -4, 4")
    e("s_mul_i32 s5, s3, 7168")
    e("s_add_u32 s5, s5, 0x20000")
    e(f"v_add_u32 v{V_HA}, s5, v{V_L16}")


def idx_ops(dst, n):
    return [
        f"s_mov_b32 s{dst}, {(29-n) << 15}",
        f"s_cmp_gt_u32 s{S_NH}, {n}",
        f"s_cselect_b32 s{dst}, {(30+n) << 15}, s{dst}",
        f"s_add_u32 s{dst}, s{dst}, s{S_KVB}",
    ]


def dmaK(slot, off, tag="dma", S_WS=S_WS):
    return [f"s_add_u32 m0, s{S_W4K}, {slot*16384}"] + [
        (f"buffer_load_dwordx4 v{V_DMA}, s[{S_WS}:{S_WS+3}], s{off} offen offset:{j*1024}{KVM[0]} lds", tag) for j in range(4)]


def dmaV(base, off, tag="dma", S_WS=S_WS):
    return [f"s_add_u32 m0, s{S_W4K}, {base}"] + [
        (f"buffer_load_dwordx4 v{V_DMA2}, s[{S_WS}:{S_WS+3}], s{off} offen offset:{j*1024}{KVM[0]} lds", tag) for j in range(4)]


def first_loads(sr=S_WS):
    out = [[idx_ops(S_OFF + n, n)] for n in range(4)]
    seq = [out[0] + dmaK(0, S_OFF + 0, "k0", sr), dmaV(0x10000, S_OFF + 0, "v0", sr), out[1] + dmaK(1, S_OFF + 1, "k1", sr),
           dmaV(0x14000, S_OFF + 1, "v1", sr), out[2] + dmaK(2, S_OFF + 2, "k2", sr), out[3] + dmaK(3, S_OFF + 3, "k3", sr)]
    return seq


def init_state(e, o_from=V_O):
    for r in range(o_from, V_O + 128, 2):
        e(f"v_mov_b64 {v(r,2)}, 0")
    for r in range(0, 16, 2):
        e(f"v_mov_b64 {v(V_NM+r,2)}, 0")
    e(f"v_mov_b64 {v(V_L0,2)}, 0")


def gen_attn(e, opt, end_label, finish=None, hooks=None):
    D = opt.get("a_depth", 14)
    WG = opt.get("a_waitgrp", 4)
    YM = opt.get("y_store_mod", "")
    KPF = 1 if opt.get("kpf") else 0
    NEPF = 3 if opt.get("loop_epf") else 0

    def rd(f, kslot, vbase):
        d = a(A_F + (f % 16) * 4, 4)
        if f < 16:
            return f"ds_read_b128 {d}, v{V_L16} offset:{kslot*16384 + f*1024}"
        g, dt = divmod(f - 16, 8)
        return f"ds_read_b128 {d}, v{V_VA} offset:{vbase + (dt*2+g)*1024}"

    def mf(f, par):
        fr = a(A_F + (f % 16) * 4, 4)
        if f < 16:
            S = v(V_S[par ^ 1], 16)
            C = v(V_NM, 16) if f == 0 else S
            return f"{MFMA} {S}, {fr}, {a(A_Q+4*f,4)}, {C}"
        g, dt = divmod(f - 16, 8)
        O = v(V_O + dt * 16, 16)
        return f"{MFMA} {O}, {fr}, {v(V_P[par]+4*g,4)}, {O}"

    def max_ops(par):
        S = V_S[par]
        t = V_T
        ops = [f"v_max3_f32 v{t+k}, v{S+3*k}, v{S+3*k+1}, v{S+3*k+2}" for k in range(5)]
        ops += [f"v_max3_f32 v{t}, v{t}, v{t+1}, v{t+2}", f"v_max3_f32 v{t+3}, v{t+3}, v{t+4}, v{S+15}",
                f"v_max_f32 v{V_MAX}, v{t}, v{t+3}", f"v_cmp_lt_f32 vcc, s{S_T}, v{V_MAX}"]
        return ops

    def soft_ops(par):
        S, P = V_S[par], V_P[par]
        ops = []
        for k in range(9):
            if k < 8:
                ops += [f"v_exp_f32 v{S+2*k}, v{S+2*k}", f"v_exp_f32 v{S+2*k+1}, v{S+2*k+1}"]
            if k > 0:
                j = k - 1
                ops += [f"v_cvt_pk_bf16_f32 v{P+j}, v{S+2*j}, v{S+2*j+1}",
                        f"v_add_f32 v{V_L0}, v{V_L0}, v{S+2*j}", f"v_add_f32 v{V_L1}, v{V_L1}, v{S+2*j+1}"]
        return ops

    def mask_ops(par, t):
        S = V_S[par]
        ops = [[f"s_sub_u32 s54, {t}, s3", "s_lshl_b32 s54, s54, 5", f"v_subrev_u32 v{V_X}, s54, v{V_D0}"]]
        for h in range(4):
            for r in range(4 * h, 4 * h + 4):
                ops.append(f"v_cmp_le_i32 s[{64+2*(r%8)}:{65+2*(r%8)}], {8*(r>>2)+(r&3)}, v{V_X}")
            if h > 0:
                for r in range(4 * h - 4, 4 * h):
                    ops.append(f"v_cndmask_b32 v{S+r}, v{V_NEGBIG}, v{S+r}, s[{64+2*(r%8)}:{65+2*(r%8)}]")
        ops.append("s_nop 0")
        for r in range(12, 16):
            ops.append(f"v_cndmask_b32 v{S+r}, v{V_NEGBIG}, v{S+r}, s[{64+2*(r%8)}:{65+2*(r%8)}]")
        return ops

    def waits(fill, lo, hi, shift=0):
        for f in range(lo, hi, WG):
            r = a(A_F + ((f + WG - 1) % 16) * 4, 4)
            fill.setdefault(f - 1 - shift, []).append(lambda e, r=r: wait_reg(e, r))

    def place(fill, ops, g0, step=2):
        fill.setdefault(g0, []).append(ops[0])
        for j, d in enumerate(ops[1:]):
            fill.setdefault(g0 + 1 + step * j, []).append(d)

    rare_sites = {0: [], 1: []}
    stubs = Seg("a_stubs")

    def rare_check(e, par, name):
        k = len(rare_sites[par])
        rare_sites[par].append(name)
        e(f"s_cbranch_vccnz A_ST_{name}")
        e.label(f"A_RET_{name}")
        stubs.label(f"A_ST_{name}")
        stubs(f"s_mov_b32 s{S_RET}, {k}")
        stubs(f"s_branch A_RARE{par}")

    V_EV, V_EA = V_X + 4, V_X + 8

    def e_setup():
        ops = ["v_lshrrev_b32 v24, 3, v0", "v_mul_u32_u24 v24, 896, v24", "v_bfe_u32 v25, v0, 2, 1", "v_bfe_u32 v26, v0, 4, 1",
               "v_xor_b32 v25, v25, v26", "v_lshl_add_u32 v24, v25, 6, v24", "v_and_b32 v25, 3, v0",
               f"v_lshl_add_u32 v{V_EV}, v25, 4, v24"]
        ops += [f"v_add_u32 v{V_EV+j}, {j*7168 - j*1024}, v{V_EV}" for j in range(1, 4)]
        ops += [f"s_mul_i32 s56, s{S_HEAD}, 229376", "s_mul_i32 s4, s3, 57344", "s_add_u32 s56, s56, s4",
                f"s_mul_i32 s57, s{S_HEAD}, 100352", "s_mul_i32 s4, s3, 28672", "s_add_u32 s57, s57, s4",
                "s_lshl_b32 s60, s3, 13"]
        ops += ["v_lshrrev_b32 v24, 5, v0", "v_bfe_u32 v25, v0, 2, 2", "v_lshl_add_u32 v24, v24, 2, v25", "v_lshlrev_b32 v24, 7, v24",
                "v_lshl_add_u32 v24, v26, 5, v24", "v_and_b32 v25, 3, v0", "v_lshl_add_u32 v24, v25, 3, v24", "v_bfe_u32 v25, v0, 3, 1",
                f"v_lshl_add_u32 v{V_EA}, v25, 6, v24", f"v_xor_b32 v{V_EA+1}, 64, v{V_EA}"]
        ops += [f"s_lshl_b32 s62, s{S_HEAD}, 6", f"s_lshl_b32 s4, s{S_QT}, 2", "s_add_u32 s62, s62, s4", "s_add_u32 s62, s62, s3",
                "s_mul_i32 s62, s62, 28672", f"s_add_u32 s62, s62, {Y_OFF}"]
        return ops

    def e_dma(tag="edma"):
        ops = []
        for grp in range(2):
            ops.append(["s_add_u32 s61, s58, s60", f"s_add_u32 m0, s61, {grp*4096}", f"s_add_u32 s61, s56, {grp*32*896}"])
            for j in range(4):
                ops.append((f"buffer_load_dwordx4 v{V_EV+j}, s[{S_WO}:{S_WO+3}], s61 offen offset:{j*1024} lds", tag))
        ops.append([f"s_add_u32 m0, s59, s{S_W4K}", "s_add_u32 s56, s56, 128"])
        for j in range(4):
            ops.append((f"buffer_load_dwordx4 v{V_EV+j}, s[{S_W2}:{S_W2+3}], s57 offen offset:{j*1024} lds", tag))
        ops.append("s_add_u32 s57, s57, 128")
        return ops

    EO = (0x8000, 0x14000, 0x20000)
    E2 = (0x10000, 0x1c000, 0x0)

    e.wait_tag("q")
    e.wait_tag("k0")
    e.wait(lgkm=0)
    e("s_barrier")
    HS = opt["stash"]
    for k in range(7):
        e(f"ds_write_b128 v{V_HA}, {v(HS+4*k,4)} offset:{k*1024}")
    for f in range(D):
        e(rd(f, 0, 0))
    spine = [mf(f, 1) for f in range(16)]
    fill = {}
    waits(fill, 0, 16)
    for f in range(16):
        nf = f + D
        if nf == 16:
            fill.setdefault(f, []).extend([lambda e: e.wait_tag("k1"), lambda e: e.wait(lgkm=0), "s_barrier"])
        fill.setdefault(f, []).append(rd(nf % 16, 0 if nf < 16 else 1, 0))
    weave(e, spine, fill)
    run(e, idx_ops(S_OFF + 0, 4))
    e(f"s_cmp_gt_u32 s{S_NH}, 4")
    e(f"s_cselect_b32 s{S_DELTA}, 0x8000, s{S_NEG}")
    run(e, dmaK(0, S_OFF + 0))
    run(e, max_ops(0))
    stamp(e, opt, 1, raw=True)
    stamp(e, opt, "a_loop", raw=True)
    e(f"s_mov_b32 s{S_RET}, 0")
    e("s_branch A_FIRST")
    pro = e
    stateL, stateV = list(e.lds), [("dma", frozenset())] * 63

    def step(e, p, n=None):
        par = p & 1
        nm = f"L{p}" if n is None else f"P{n}"
        if p == 1:
            e(f"s_cmp_eq_u32 s{S_IT}, s{S_ITSW}")
            e(f"s_cbranch_scc1 A_SW1")
            e.label(f"A_SW1_RET_{nm}")
        spine = [mf(f, par) for f in range(32)]
        fill = {}
        waits(fill, 0, 32)
        vb = p * 16384 if n not in VSLOT else VSLOT[n] - 0x10000
        gb = 32 - D
        if n == 32:
            fill.setdefault(-1, []).append(f"v_add_u32 v{V_VA}, 0x10000, v{V_VA}")
            vb = 0
        for f in range(32):
            nf = f + D
            if nf == 32 and (n is None or n <= 30):
                vm = (8 + (NEPF if p in (0, 3) else 0) + (KPF if (p in (0, 1) and n is None) else 0)) if (n is None or n < 29) else (16 if n == 29 else 0)
                if n is None and p == 2:
                    fill.setdefault(f, []).extend([f"s_cmp_eq_u32 s{S_IT}, s{S_ITSW}", "s_cbranch_scc1 A_ALTW",
                                                   lambda e, vm=vm: e.wait_force(vm=vm), "A_ALTW_RET:", "s_barrier"])
                else:
                    fill.setdefault(f, []).extend([lambda e, vm=vm: e.wait_force(vm=vm), "s_barrier"])
            if nf < 32:
                fill.setdefault(f, []).append(rd(nf, (p + 1) % 4, vb))
            elif n != 32:
                fill.setdefault(f, []).append(rd(nf - 32, (p + 2) % 4, 0))
        if n is None or n <= 29:
            place(fill, dmaV(0x10000 + ((p + 2) % 4) * 16384, S_OFF + (p + 2) % 4), 0)
        if n is None or n <= 28:
            o = [f"s_add_u32 s{S_OFF+(p+1)%4}, s{S_OFF+p}, s{S_DELTA}"]
            if p == 1:
                d = S_OFF + 2
                o += [[f"s_cmp_eq_u32 s{S_IT}, s{S_ITH}", f"s_cselect_b32 s{d}, s{S_OFFH}, s{d}", f"s_cselect_b32 s{S_DELTA}, s{S_NEG}, s{S_DELTA}"],
                      [f"s_cmp_eq_u32 s{S_IT}, 6", f"s_cselect_b32 s{d}, s{S_OFFD}, s{d}", f"s_cselect_b32 s{S_DELTA}, 0x8000, s{S_DELTA}"]]
            else:
                pass
            place(fill, dmaK((p + 1) % 4, S_OFF + (p + 1) % 4), gb, 3)
            pour(fill, o, 9, gb)
        if n == 29:
            place(fill, dmaV(VSLOT[32], S_OFF + 0), 8, 1)
            place(fill, dmaV(VSLOT[33], S_OFF + 1), 13, 1)
        if n == 28:
            pour(fill, e_setup(), 9, 31)
        if n == 30:
            fill.setdefault(gb, []).extend([f"s_mov_b32 s58, {EO[0]}", f"s_mov_b32 s59, {E2[0]}"])
            pour(fill, e_dma("e0"), gb + 1, 32)
        if n is None and p == 3:
            fill.setdefault(gb + 2, []).extend([f"s_cmp_eq_u32 s{S_IT}, s{S_ITSIG}", "s_cbranch_scc1 A_SIG", "A_SIG_RET:"])
        if n is None and p == 2:
            fill.setdefault(9, []).extend([f"s_bitcmp1_b32 10, s{S_IT}", "s_cbranch_scc1 A_KV2L", "A_KV2L_RET:"])
            fill.setdefault(gb + 2, []).extend([f"s_cmp_lt_u32 s{S_IT}, s{S_PUB}", "s_cbranch_scc1 A_KV2S", "A_KV2S_RET:"])
        if n == 31:
            fill.setdefault(2, []).extend([lambda e: flag_line(e, 55, FL_PAIR, S_PAIR), f"v_mov_b32 v{V_X+12}, 8"])
            fill.setdefault(4, []).append((f"buffer_load_dwordx2 {v(V_X+14,2)}, v{V_X+12}, s[{S_WS}:{S_WS+3}], s55 offen sc1", "ep"))
        if n is None and p == 0 and KPF:
            fill.setdefault(9, []).append([f"s_max_i32 s53, s{S_PFO}, 0", "s_min_i32 s53, s53, 60", "s_lshl_b32 s53, s53, 15",
                                           f"s_add_u32 s53, s53, s{S_KVB}"])
            fill.setdefault(11, []).append((f"buffer_load_dword v{V_PD}, v{V_KP}, s[{S_WS}:{S_WS+3}], s53 offen", "pf"))
            fill.setdefault(12, []).append(f"s_add_i32 s{S_PFO}, s{S_PFO}, s{S_PFD}")
        if n is None and p == 3 and NEPF:
            fill.setdefault(10, []).append((f"buffer_load_dword v{V_PD}, v{V_X+1}, s[{S_WO}:{S_WO+3}], 0 offen", "pf"))
            fill.setdefault(12, []).append((f"buffer_load_dword v{V_PD}, v{V_X+2}, s[{S_W2}:{S_W2+3}], 0 offen", "pf"))
            if NEPF == 3:
                fill.setdefault(14, []).append((f"global_load_dword v{V_PD}, v{V_X+3}, s[80:81]", "pf"))
        if n is None:
            RW, X_, T_, OU = V_X + 24, V_X + 28, V_T + 6, V_T + 10
            h = p >> 1
            if p == 0:
                fill.setdefault(0, []).append(f"ds_read_b128 {v(RW,4)}, v{V_HA}")
            if p % 2 == 0:
                sl = []
                for r in range(2):
                    sl += [f"v_lshlrev_b32 v{X_+2*r}, 16, v{RW+2*h+r}", f"v_and_b32 v{X_+2*r+1}, 0xffff0000, v{RW+2*h+r}"]
                sl += [f"v_mul_f32 v{T_+r}, {f32(-1.4426950408889634 / QSCALE)}, v{X_+r}" for r in range(4)]
                sl += [f"v_exp_f32 v{T_+r}, v{T_+r}" for r in range(4)]
            else:
                sl = [f"v_fma_f32 v{T_+r}, v{T_+r}, s{S_QS}, s{S_QS}" for r in range(4)]
                sl += [f"v_rcp_f32 v{T_+r}, v{T_+r}" for r in range(4)]
                sl += [f"v_mul_f32 v{T_+r}, v{T_+r}, v{X_+r}" for r in range(4)]
                sl += [f"v_cvt_pk_bf16_f32 v{OU+2*h+r}, v{T_+2*r}, v{T_+2*r+1}" for r in range(2)]
                if p == 3:
                    sl += [f"ds_write_b128 v{V_HA}, {v(OU,4)}", f"v_add_u32 v{V_HA}, 0x400, v{V_HA}"]
            silu = sl
        else:
            silu = []
        if n == 28:
            fill.setdefault(-1, []).append(f"v_subrev_u32 v{V_HA}, 0x1c00, v{V_HA}")
            for k in range(7):
                fill.setdefault(k, []).append(f"ds_read_b128 {a(A_HF+4*k,4)}, v{V_HA} offset:{k*1024}")
        so = soft_ops(par)
        mo = (mask_ops(par ^ 1, n - 29) if n is not None and n >= 29 else []) + max_ops(par ^ 1)
        sa = [x for x in so if not x.startswith("v_add")]
        pour(fill, sa[:14], 0, 13)
        pour(fill, sa[14:], 13, 23)
        pour(fill, mo, 19 if len(mo) > 9 else 21, 32)
        pour(fill, silu, 14 if p == 0 else 0, 17 if p == 3 else 32)
        for x in so:
            if x.startswith("v_add"):
                src = x.split(",")[-1].strip()
                g0 = [g for g in fill for y in fill[g] if isinstance(y, str) and y.startswith(f"v_exp_f32 {src},")][0]
                g = min(range(g0 + 1, 32), key=lambda g: (load_of(fill, g), g))
                fill[g].append(x)
        if n is None:
            def drop(pred):
                for g in fill:
                    fill[g] = [x for x in fill[g] if not pred(x)]
            txt = lambda x: x[0] if isinstance(x, tuple) else (x if isinstance(x, str) else "")
            if opt.get("x_nobar"):
                drop(lambda x: txt(x) == "s_barrier")
            if opt.get("x_nodma"):
                drop(lambda x: " lds" in txt(x))
            if opt.get("x_novalu"):
                drop(lambda x: txt(x).startswith(("v_exp", "v_add_f32", "v_cvt", "v_max", "v_mul", "v_rcp", "v_fma", "v_lshl", "v_and")))
            if opt.get("x_noexp"):
                for g in fill:
                    fill[g] = [x.replace("v_exp_f32", "v_mov_b32").replace("v_rcp_f32", "v_mov_b32") if isinstance(x, str) else x for x in fill[g]]
        if opt.get("verbose"):
            print(gap_report(f"step {nm}", fill, 32), [load_of(fill, g) for g in range(32)])
        weave(e, spine, fill)
        if p == 1:
            e(f"s_cmp_eq_u32 s{S_IT}, s{S_ITSW}")
            e("s_cbranch_scc1 A_SW2")
        rare_check(e, par, nm)

    lp = Seg("a_loop", stateL, stateV)
    lp.label("A_LOOP")
    for p in range(4):
        step(lp, p)
    lp(f"s_add_u32 s{S_IT}, s{S_IT}, 1")
    lp(f"s_bitcmp1_b32 22, s{S_IT}")
    lp("s_cbranch_scc1 A_KV2C")
    lp(f"s_cmp_lt_u32 s{S_IT}, 7")
    lp("s_cbranch_scc1 A_LOOP")
    stamp(lp, opt, "a_lend", raw=True)
    assert lp.lds == stateL

    peel = {}
    for n in range(28, 33):
        sg = Seg(f"a_p{n}", stateL, stateV)
        step(sg, n % 4, n)
        if n == 31:
            sg(f"s_cmp_ge_u32 s{S_QT}, 8")
            sg("s_cbranch_scc1 A_EARLY")
            sg.label("A_EARLY_RET")
        if n >= 29 and n < 32:
            sg(f"s_cmp_eq_u32 s3, {n-29}")
            sg(f"s_cbranch_scc1 A_TAILW{n-29}")
        peel[n] = sg

    def signal(e):
        flag_line(e, 55, FL_PAIR, S_PAIR)
        flag_set(e, S_WS, 55, 1, V_X + 12)
        e(f"s_mov_b32 s{S_PEND}, 0")

    def tail_body(e, par):
        e.wait(lgkm=0)
        for f in range(16, 16 + D):
            e(rd(f, 0, 0))
        so = soft_ops(par)
        run(e, so[:22])
        spine = [mf(f, par) for f in range(16, 32)]
        fill = {}
        waits(fill, 16, 32, 16)
        for f in range(16, 32):
            if f + D < 32:
                fill.setdefault(f - 16, []).append(rd(f + D, 0, 0))
        pour(fill, so[22:], 0, 7)
        weave(e, spine, fill)

    t3 = Seg("a_tail1", stateL, stateV)
    t3(f"v_add_u32 v{V_VA}, 0x4000, v{V_VA}")
    t3.label("A_TAIL1")
    tail_body(t3, 1)
    t3.label("A_FIN")
    t0 = Seg("a_tail0", stateL, stateV)
    t0.label("A_TAILW0")
    t0(f"v_add_u32 v{V_VA}, 0x8000, v{V_VA}")
    t0("s_branch A_TAIL0")
    t0.label("A_TAILW1")
    t0(f"v_add_u32 v{V_VA}, 0xc000, v{V_VA}")
    t0("s_branch A_TAIL1")
    t0.label("A_TAILW2")
    t0(f"v_add_u32 v{V_VA}, 0x10000, v{V_VA}")
    t0.label("A_TAIL0")
    tail_body(t0, 0)
    t0("s_cmp_lg_u32 s3, 0")
    t0("s_cbranch_scc1 A_FIN")
    t0.wait_force(vm=0)
    t0("s_barrier")
    t0(f"s_mov_b32 s58, {EO[0]}")
    t0(f"s_mov_b32 s59, {E2[0]}")
    run(t0, e_dma("e0"))
    t0(f"s_cmp_eq_u32 s{S_PEND}, 0")
    t0("s_cbranch_scc1 A_FIN")
    signal(t0)
    t0("s_branch A_FIN")

    def ret_chain(e, names):
        for k, nm in enumerate(names[:-1]):
            e(f"s_cmp_eq_u32 s{S_RET}, {k}")
            e(f"s_cbranch_scc1 A_RET_{nm}")
        e(f"s_branch A_RET_{names[-1]}")

    def rare(par):
        e = Seg(f"a_rare{par}", stateL, stateV)
        e.label(f"A_RARE{par}")
        S = V_S[par ^ 1]
        t = V_T
        e(f"v_mov_b32 v{t}, v{V_MAX}")
        e.nop(2)
        e(f"v_permlane32_swap_b32 v{V_MAX}, v{t}")
        e(f"v_max3_f32 v{t}, v{V_MAX}, v{t}, 0")
        e(f"v_exp_f32 v{t+1}, -v{t}")
        for r in range(16):
            e(f"v_sub_f32 v{S+r}, v{S+r}, v{t}")
        for r in range(16):
            e(f"v_sub_f32 v{V_NM+r}, v{V_NM+r}, v{t}")
        e(f"v_mul_f32 v{V_L0}, v{V_L0}, v{t+1}")
        e(f"v_mul_f32 v{V_L1}, v{V_L1}, v{t+1}")
        for r in range(128):
            e(f"v_mul_f32 v{V_O+r}, v{V_O+r}, v{t+1}")
        ret_chain(e, rare_sites[par])
        return e

    r0, r1 = rare(0), rare(1)

    fs = Seg("a_first", stateL, stateV)
    e = fs
    e.label("A_FIRST")
    t = V_T
    e(f"v_mov_b32 v{t}, v{V_MAX}")
    e.nop(2)
    e(f"v_permlane32_swap_b32 v{V_MAX}, v{t}")
    e(f"v_max_f32 v{t}, v{V_MAX}, v{t}")
    for r in range(16):
        e(f"v_sub_f32 v{V_S[0]+r}, v{V_S[0]+r}, v{t}")
    for r in range(16):
        e(f"v_sub_f32 v{V_NM+r}, 0, v{t}")
    e(f"s_cmp_eq_u32 s{S_RET}, 0")
    e("s_cbranch_scc1 A_LOOP")
    e(f"s_cmp_eq_u32 s{S_IT}, 7")
    e("s_cbranch_scc1 A_RET_P29")
    e("s_branch A_RET_L1")

    sw1 = Seg("a_sw1", stateL, stateV)
    e = sw1
    e.label("A_SW1")
    for r in range(64):
        e(f"v_accvgpr_mov_b32 a{A_Q+r}, a{A_Q2+r}")
    e(f"v_mov_b32 v{V_MS}, v{V_NM}")
    for r in range(0, 16, 2):
        e(f"v_mov_b64 {v(V_NM+r,2)}, 0")
    e(f"s_cmp_eq_u32 s{S_IT}, 7")
    e("s_cbranch_scc1 A_SW1_RET_P29")
    e("s_branch A_SW1_RET_L1")

    def part_addr(e):
        e(f"s_lshl_b32 s54, s{S_PAIR}, 2")
        e("s_add_u32 s54, s54, s3")
        e("s_lshl_b32 s55, s54, 9")
        e(f"s_add_u32 s55, s55, {ML_OFF}")
        e("s_lshl_b32 s54, s54, 14")
        e(f"s_add_u32 s54, s54, {OP_OFF}")

    sw2 = Seg("a_sw2", stateL, stateV)
    e = sw2
    e.label("A_SW2")
    part_addr(e)
    t = V_X + 12
    e(f"v_add_f32 v{V_L0}, v{V_L0}, v{V_L1}")
    e(f"v_lshrrev_b32 v{t+2}, 2, v{V_L16}")
    e(f"buffer_store_dword v{V_MS}, v{t+2}, s[{S_WS}:{S_WS+3}], s55 offen sc1")
    e(f"buffer_store_dword v{V_L0}, v{t+2}, s[{S_WS}:{S_WS+3}], s55 offen offset:256 sc1")
    for k in range(16):
        if k and k % 4 == 0:
            e("s_add_u32 s54, s54, 4096")
        u = t + 4 + (k % 2) * 4
        for r in range(4):
            o = V_O + 8 * k + 2 * r
            e(f"v_cvt_pk_bf16_f32 v{u+r}, v{o}, v{o+1}")
        for r in range(4):
            e(f"v_mov_b64 {v(V_O+8*k+2*r,2)}, 0")
        e(f"buffer_store_dwordx4 {v(u,4)}, v{V_L16}, s[{S_WS}:{S_WS+3}], s54 offen offset:{(k%4)*1024} sc1")
    e(f"v_mov_b64 {v(V_L0,2)}, 0")
    e(f"s_mov_b32 s{S_PEND}, 1")
    e(f"s_mov_b32 s{S_RET}, 1")
    e("s_branch A_FIRST")

    sig = Seg("a_sig", stateL, stateV)
    sig.label("A_SIG")
    signal(sig)
    sig("s_branch A_SIG_RET")
    S_HA, S_SLOT, V_FO, kv3 = opt["kv2"]
    sig.label("A_KV2S")
    flag_line(sig, 55, FL_KV2, S_HA)
    sig(f"s_lshl_b32 s53, s{S_IT}, 13")
    sig("s_add_u32 s55, s55, s53")
    flag_set(sig, S_WS, 55, f"s{S_SLOT}", V_X + 12)
    sig("s_branch A_KV2S_RET")
    sig.label("A_KV2L")
    flag_line(sig, 85, FL_KV2, S_HEAD)
    sig(f"s_lshr_b32 s53, s{S_IT}, 1")
    sig("s_lshl_b32 s53, s53, 13")
    sig("s_add_u32 s85, s85, s53")
    sig.raw(f"buffer_load_dwordx2 v[6:7], v{V_FO}, s[{S_WS}:{S_WS+3}], s85 offen sc1", "pf")
    sig("s_branch A_KV2L_RET")
    sig.label("A_KV3")
    run(sig, kv3)
    sig("s_branch A_LOOP")
    sig.label("A_KV2C")
    sig(f"s_cmp_eq_u32 s{S_IT}, 1")
    sig("s_cbranch_scc1 A_KV3")
    sig.wait_force(vm=8)
    if not NEPF:
        sig(f"s_cmp_lg_u32 s{S_IT}, 4")
        sig("s_cbranch_scc1 A_NOEPF")
        sig(f"buffer_load_dword v{V_PD}, v{V_X+1}, s[{S_WO}:{S_WO+3}], 0 offen", "pf")
        sig(f"buffer_load_dword v{V_PD}, v{V_X+2}, s[{S_W2}:{S_W2+3}], 0 offen", "pf")
        sig(f"global_load_dword v{V_PD}, v{V_X+3}, s[80:81]", "pf")
        sig.label("A_NOEPF")
    sig("s_mov_b32 s53, 0")
    sig.label("A_KV2P")
    flag_test(sig, 6)
    sig("s_cbranch_scc1 A_LOOP")
    sig("s_sleep 2")
    sig(f"buffer_load_dwordx2 v[6:7], v{V_FO}, s[{S_WS}:{S_WS+3}], s85 offen sc1")
    sig.wait_force(vm=0)
    sig("s_add_u32 s53, s53, 1")
    sig(f"s_cmp_lt_u32 s53, {opt.get('poll_max', 200000)}")
    sig("s_cbranch_scc1 A_KV2P")
    sig("s_branch A_LOOP")
    sig.label("A_ALTW")
    sig.wait_force(vm=26)
    sig("s_branch A_ALTW_RET")

    e = Seg("a_fin", [], stateV)
    stamp(e, opt, 2)
    stamp(e, opt, "a_fin")
    t = V_T
    CT = V_S[0]
    e(f"v_add_f32 v{V_L0}, v{V_L0}, v{V_L1}")
    e(f"s_cmp_ge_u32 s{S_QT}, 8")
    e("s_cbranch_scc1 A_MERGE")
    e(f"v_mov_b32 v{t}, v{V_L0}")
    e.nop(2)
    e(f"v_permlane32_swap_b32 v{V_L0}, v{t}")
    e(f"v_add_f32 v{V_L0}, v{V_L0}, v{t}")
    e(f"v_rcp_f32 v{t}, v{V_L0}")
    e.nop(1)
    e(f"v_mov_b32 v{t+1}, v{t}")
    e.nop(4)
    for k in range(64):
        e(f"v_pk_mul_f32 {v(V_O+2*k,2)}, {v(V_O+2*k,2)}, {v(t,2)}")
        if k:
            e(f"v_cvt_pk_bf16_f32 v{CT+k-1}, v{V_O+2*k-2}, v{V_O+2*k-1}")
    e(f"v_cvt_pk_bf16_f32 v{CT+63}, v{V_O+126}, v{V_O+127}")
    e("s_branch A_EPI")
    fin = e

    ML = V_X + 16

    def part_loads(e):
        part_addr(e)
        e(f"v_lshrrev_b32 v{V_X+12}, 2, v{V_L16}")
        e(f"buffer_load_dword v{ML}, v{V_X+12}, s[{S_WS}:{S_WS+3}], s55 offen sc1")
        e(f"buffer_load_dword v{ML+1}, v{V_X+12}, s[{S_WS}:{S_WS+3}], s55 offen offset:256 sc1")
        for k in range(16):
            if k and k % 4 == 0:
                e("s_add_u32 s54, s54, 4096")
            e(f"buffer_load_dwordx4 {a(A_Q2+4*k,4)}, v{V_L16}, s[{S_WS}:{S_WS+3}], s54 offen offset:{(k%4)*1024} sc1")

    early = Seg("a_early", stateL, peel[31].vm)
    e = early
    e.label("A_EARLY")
    flag_test(e, V_X + 14)
    e("s_cbranch_scc0 A_EARLY_RET")
    part_loads(e)
    e(f"s_mov_b32 s{S_PEND}, 2")
    e("s_branch A_EARLY_RET")

    mg = Seg("a_merge", [], stateV)
    e = mg
    e.label("A_MERGE")
    e(f"s_cmp_eq_u32 s{S_PEND}, 2")
    e("s_cbranch_scc1 A_HAVE")
    flag_line(e, 55, FL_PAIR, S_PAIR)
    e(f"v_mov_b32 v{t}, 8")
    e("s_mov_b32 s53, 0")
    e.label("A_POLL")
    e(f"buffer_load_dwordx2 {v(t+2,2)}, v{t}, s[{S_WS}:{S_WS+3}], s55 offen sc1")
    e.wait_force(vm=0)
    flag_test(e, t + 2)
    e("s_cbranch_scc1 A_POLL_OK")
    e("s_sleep 4")
    e("s_add_u32 s53, s53, 1")
    e(f"s_cmp_lt_u32 s53, {opt.get('poll_max', 200000)}")
    e("s_cbranch_scc1 A_POLL")
    e.label("A_POLL_OK")
    part_loads(e)
    e.label("A_HAVE")
    e(f"v_min_f32 v{t+3}, v{V_NM}, v{ML}")
    e(f"v_sub_f32 v{t+4}, v{t+3}, v{V_NM}")
    e(f"v_sub_f32 v{t+6}, v{t+3}, v{ML}")
    e(f"v_exp_f32 v{t+4}, v{t+4}")
    e(f"v_exp_f32 v{t+6}, v{t+6}")
    e.nop(1)
    e(f"v_mul_f32 v{t+3}, v{t+6}, v{ML+1}")
    e(f"v_fma_f32 v{t+3}, v{V_L0}, v{t+4}, v{t+3}")
    e(f"v_mov_b32 v{t+2}, v{t+3}")
    e.nop(2)
    e(f"v_permlane32_swap_b32 v{t+3}, v{t+2}")
    e(f"v_add_f32 v{t+3}, v{t+3}, v{t+2}")
    e(f"v_rcp_f32 v{t+3}, v{t+3}")
    e.nop(1)
    e(f"v_mul_f32 v{t+4}, v{t+4}, v{t+3}")
    e(f"v_mul_f32 v{t+6}, v{t+6}, v{t+3}")
    e(f"v_mov_b32 v{t+5}, v{t+4}")
    e(f"v_mov_b32 v{t+7}, v{t+6}")
    for k in range(64):
        e(f"v_pk_mul_f32 {v(V_O+2*k,2)}, {v(V_O+2*k,2)}, {v(t+4,2)}")
    for k in range(64):
        u = t + 8 + (k % 2) * 2
        e(f"v_accvgpr_read_b32 v{u+1}, a{A_Q2+k}")
        if k:
            e(f"v_cvt_pk_bf16_f32 v{CT+k-1}, v{V_O+2*k-2}, v{V_O+2*k-1}")
        e(f"v_lshlrev_b32 v{u}, 16, v{u+1}")
        e(f"v_and_b32 v{u+1}, 0xffff0000, v{u+1}")
        e(f"v_pk_fma_f32 {v(V_O+2*k,2)}, {v(u,2)}, {v(t+6,2)}, {v(V_O+2*k,2)}")
    e(f"v_cvt_pk_bf16_f32 v{CT+63}, v{V_O+126}, v{V_O+127}")

    e = Seg("a_epi", [], [])
    e.label("A_EPI")
    stamp(e, opt, 3)
    stamp(e, opt, "a_epi")
    YA = (V_O, V_O + 16)
    YP = V_O + 32
    VC = V_O + 48
    ED = opt.get("e_depth", 7)
    NFE, NT = 46, 7
    NF = NFE * NT

    def erd(f):
        c, r = divmod(f, NFE)
        seg, ks = divmod(r, 23)
        off = (EO[c % 3] + 16 * ks * 128) if ks < 16 else (E2[c % 3] + 16 * (ks - 16) * 128)
        base = (V_EA, VC, VC + 2)[off >> 16] + seg
        off &= 0xffff
        return [f"ds_read_b64_tr_b16 {a(A_F+(f%8)*4+2*u,2)}, v{base} offset:{off+u*1024}" for u in range(2)]

    def ecvt(c, seg):
        ops = [f"v_cvt_pk_bf16_f32 v{YP+8*seg+r}, v{YA[seg]+2*r}, v{YA[seg]+2*r+1}" for r in range(8)]
        st = [(f"buffer_store_dwordx4 {v(YP+8*seg+4*k,4)}, v{V_L16}, s[{S_WS}:{S_WS+3}], s62 offen offset:{seg*2048+k*1024}{YM}",
               "ya" if c < 4 else "yb") for k in range(2)]
        if seg == 1 and c < NT - 1:
            st.append("s_add_u32 s62, s62, 4096")
        return ops, st

    def edma_at(t):
        return [[f"s_mov_b32 s58, {EO[t%3]}", f"s_mov_b32 s59, {E2[t%3]}"]] + e_dma(f"e{t}")

    for k in range(2):
        e(f"v_add_u32 v{VC+k}, 0x10000, v{V_EA+k}")
        e(f"v_add_u32 v{VC+2+k}, 0x20000, v{V_EA+k}")
    e.wait_force(vm=0)
    e("s_barrier")
    for f in range(ED):
        run(e, erd(f))
    spine, fill = [], {}
    for f in range(NF):
        c, r = divmod(f, NFE)
        seg, ks = divmod(r, 23)
        B = v(CT + 4 * ks, 4) if ks < 16 else a(A_HF + 4 * (ks - 16), 4)
        acc = v(YA[seg], 16)
        spine.append(f"{MFMA} {acc}, {a(A_F+(f%8)*4,4)}, {B}, {'0' if ks == 0 else acc}")
        nf = f + ED
        if nf < NF:
            if nf % NFE == 0:
                t = nf // NFE
                ops = [lambda e, t=t: e.wait_tag(f"e{t}")]
                if t == 6:
                    ops.append(lambda e: e.wait_tag("ya"))
                if t <= 4:
                    ops.append(lambda e: e.wait(lgkm=0))
                fill.setdefault(f, []).extend(ops + ["s_barrier"])
            fill.setdefault(f, []).extend(erd(nf))
        if f % 2 == 0:
            rr = a(A_F + (min(f + 1, NF - 1) % 8) * 4, 4)
            fill.setdefault(f - 1, []).append(lambda e, rr=rr: wait_reg(e, rr))
    if hooks:
        hooks(fill, NFE, ED)
    spread(fill, edma_at(1), 0, 20)
    spread(fill, edma_at(2), 20, 52)
    for t in range(3, NT):
        g0 = max((t - 2) * NFE - ED + 1, 52)
        spread(fill, edma_at(t), g0, (t - 1) * NFE - ED)
    for c in range(NT):
        o, st = ecvt(c, 0)
        pour(fill, o + st, c * NFE + 27, c * NFE + 44)
        if c < NT - 1:
            o, st = ecvt(c, 1)
            if c == NT - 2 and hooks:
                pour(fill, o, (c + 1) * NFE + 4, (c + 1) * NFE + 21)
                fill.setdefault((c + 1) * NFE + 25, []).append(st[0])
                fill.setdefault((c + 1) * NFE + 26, []).extend(st[1:])
            else:
                pour(fill, o + st, (c + 1) * NFE + 4, (c + 1) * NFE + 21)
    if opt.get("verbose"):
        print(gap_report("epilogue", fill, NF), [load_of(fill, g) for g in range(NF)])
    weave(e, spine, fill)
    e.nop(12)
    o, st = ecvt(NT - 1, 1)
    run(e, o + st)
    if finish:
        finish(e)
    e.label(end_label)
    e("s_endpgm")
    epi = e

    pl = [peel[n] for n in range(28, 33)]
    segs = [pro, lp] + pl + [t3, fin, mg, epi, t0, stubs, r0, r1, fs, sw1, sw2, sig, early]
    traces = [
        [pro, fs, lp, lp] + pl + [t3, fin, epi],
        [lp, peel[28], peel[29], t0, fin, mg, epi],
        [lp, r1, lp], [peel[28], r0, peel[29]], [peel[28], sw1, peel[29], sw2, fs, peel[30]], [sig], [stubs],
        [peel[30], peel[31], t0], [peel[29], peel[30], t3], [peel[31], early, peel[32], t3, fin],
    ]
    return segs, traces
```

```python
from emit import *
from common import *
import attn
from attn import S_HEAD, S_QT, S_W4K, S_PAIR, S_WS, S_WO, S_W2, A_Q, A_Q2, A_HF, V_L16, V_PD
import math

NAME = "parallel_sum__compressed_kv_cla__dense_activation_silu__prompt_kernel"
LDS_BYTES = 160 * 1024
S_CKV, S_W, S_X, S_WQ, S_W1, S_QST, S_OUT = 8, 12, 20, 24, 28, 68, 24
SA, SB, S_LP, S_W8K, S_KVSTR, S_KIND, S_BO, S_KVBASE, S_KVC, S_QB, S_QC, S_XNB, S_XNF = 53, 54, 55, 56, 57, 58, 59, 60, 61, 62, 63, 66, 67
S_HA, S_KVSLOT = 76, 77
V_PA, V_PB, V_FO, V_FL = 3, 4, 5, 6
V_AA, V_AB, V_DA, V_DB = 8, 12, 16, 24
V_FA, V_FB, V_XN = 32, 64, 96
V_AB16, V_AA16, V_WR, V_ST = 8, 212, 224, 7
V_DQ, V_D1, V_AT, V_T = 208, 212, 216, 224
SLOT_ORDER = [8, 9, 0, 1, 4, 5, 2, 3, 6, 7]
V_AT3 = 212
S_KVE, S_EARLY, S_GOTQ, S_GM = 24, 72, 75, 72
H_ACC = (64, 80, 224, 240)
V_GP = V_XN + 46
VPQ, VPK = V_XN + 4, V_XN + 8

def gen_mega(opt):
    ST = opt.get("kv_store_mod", " sc1")
    attn.KVM[0] = opt.get("kv_load_mod", "")
    opt = dict(opt)
    opt.setdefault("y_store_mod", " sc1")
    opt["spk"] = ""
    PFD = 2
    A16 = opt.get("a16", 1)
    NPF = 2
    PMAX = opt.get("poll_max", 200000)
    e = Seg("m_pro")
    e.label(NAME)
    e("s_cmp_ge_u32 s2, 256")
    e("s_cbranch_scc1 M_END")
    stamp(e, opt, "entry")
    load_kernargs(e)
    e("s_getpc_b64 s[50:51]")
    e.label("M_PC0")
    if not opt.get("no_cpf0"):
        e("s_lshr_b32 s5, s2, 3")
        e("s_lshl_b32 s5, s5, 11")
        e("v_and_b32 v1, 15, v0")
        e("v_lshl_add_u32 v1, v1, 7, s5")
        e("v_min_u32 v1, M_B-M_PC0, v1")
        e(f"global_load_dword v{V_PD}, v1, s[50:51]", "pf")
    e("v_lshrrev_b32 v1, 6, v0")
    e("v_and_b32 v0, 63, v0")
    e("v_readfirstlane_b32 s3, v1")
    e("s_and_b32 s4, s2, 7")
    e("s_lshl_b32 s4, s4, 1")
    e("s_lshr_b32 s5, s2, 3")
    e("s_and_b32 s34, s5, 7")
    e("s_lshr_b32 s35, s5, 3")
    e("s_and_b32 s42, s35, 1")
    e("s_add_u32 s42, s42, s4")
    e(f"s_lshr_b32 s{S_KIND}, s35, 1")
    e(f"s_lshr_b32 s{S_QT}, s5, 1")
    e(f"s_and_b32 s{S_HEAD}, s5, 1")
    e(f"s_add_u32 s{S_HEAD}, s{S_HEAD}, s4")
    e("s_and_b32 s36, s3, 1")
    e("s_lshr_b32 s37, s3, 1")
    L31, HI, G, R4, C = 224, 225, 226, 227, 228
    e(f"v_and_b32 v{L31}, 31, v0")
    e(f"v_lshrrev_b32 v{HI}, 5, v0")
    e(f"v_lshrrev_b32 v{G}, 4, v0")
    e(f"v_bfe_u32 v{R4}, v0, 2, 2")
    e(f"v_and_b32 v{C}, 3, v0")
    e("s_and_b32 s7, s35, 1")
    e("s_lshl_b32 s7, s7, 1")
    e("s_add_u32 s7, s7, s37")
    e("s_sub_u32 s39, 3, s7")
    e("s_add_u32 s7, s7, 4")
    e("s_cmp_ge_u32 s35, 2")
    e("s_cselect_b32 s7, s7, s39")
    e("s_lshl_b32 s7, s7, 3")
    e("s_add_u32 s7, s7, s34")
    e("s_lshl_b32 s7, s7, 1")
    e("s_add_u32 s7, s7, s36")
    e("s_lshl_b32 s7, s7, 4")
    e("v_and_b32 v6, 15, v0")
    e("v_add_u32 v6, s7, v6")
    e(f"v_lshlrev_b32 v{V_PA}, 11, v6")
    e(f"v_and_b32 v7, 1, v{G}")
    e(f"v_lshl_add_u32 v7, v7, 7, v{V_PA}")
    e("s_lshl_b32 s7, s34, 3")
    e("s_lshl_b32 s39, s3, 1")
    e("s_add_u32 s7, s7, s39")
    e("v_bfe_u32 v6, v0, 2, 1")
    e("v_add_u32 v6, s7, v6")
    e("v_lshlrev_b32 v6, 13, v6")
    e(f"v_lshl_add_u32 v6, v{C}, 7, v6")
    e("s_lshl_b32 s7, s42, 9")
    e(f"v_add_u32 v{V_PB}, s7, v6")
    e("v_bfe_u32 v6, v0, 3, 1")
    e(f"v_lshl_add_u32 v5, v6, 19, v{V_PB}")
    e("v_lshrrev_b32 v1, 3, v0")
    e.wait_force(lgkm=0)
    e(f"s_mov_b32 s{S_HA}, s42")
    e(f"s_lshl_b32 s{S_KVSLOT}, s{S_KIND}, 3")
    e(f"s_add_u32 s{S_KVSLOT}, s{S_KVSLOT}, s34")
    e(f"s_lshl_b32 s{S_KVSLOT}, s{S_KVSLOT}, 3")
    srd(e, S_CKV, P_CKV, CKV_BYTES)
    e(f"s_cmp_eq_u32 s{S_KIND}, 0")
    e(f"s_cselect_b32 s{S_W}, s{P_WUK}, s{P_WUV}")
    e(f"s_cselect_b32 s{S_W+1}, s{P_WUK+1}, s{P_WUV+1}")
    e(f"s_mov_b32 s{S_W+2}, {WU_BYTES:#x}")
    e(f"s_mov_b32 s{S_W+3}, 0x20000")
    stamp(e, opt, 0)
    stamp(e, opt, "karg")
    e(f"buffer_load_dword v{V_PD}, v7, s[{S_CKV}:{S_CKV+3}], 0 offen", "pf")
    e(f"buffer_load_dword v{V_PD}, v5, s[{S_W}:{S_W+3}], 0 offen", "pf")
    e("v_add_u32 v144, 256, v7")
    e("v_add_u32 v145, 0x100000, v5")
    e(f"v_add_u32 v{V_PA}, {PFD*128}, v{V_PA}")
    e(f"v_add_u32 v{V_PB}, {PFD*0x80000}, v{V_PB}")
    e("s_lshl_b32 s7, s36, 1")
    e("s_sub_u32 s39, 3, s7")
    e("s_add_u32 s7, s7, 4")
    e("s_cmp_eq_u32 s37, 1")
    e("s_cselect_b32 s7, s7, s39")
    e("s_mov_b32 s39, 0xfff80000")
    e("s_cselect_b32 s39, 0x80000, s39")
    e("s_lshl_b32 s7, s7, 3")
    e("s_add_u32 s7, s7, s34")
    e("s_lshl_b32 s7, s7, 5")
    e("v_add_u32 v6, s7, v1")
    e("v_lshlrev_b32 v6, 11, v6")
    e("v_and_b32 v7, 7, v0")
    e(f"v_xor_b32 v7, v7, v{G}")
    e("v_lshlrev_b32 v7, 4, v7")
    for j in range(8):
        if j == 4:
            e("v_add_u32 v6, s39, v6")
        e(f"v_xor_b32 v{V_DA+j}, {((j ^ (j >> 1)) & 1) << 6}, v7")
        e(f"v_add_u32 v{V_DA+j}, v{V_DA+j}, v6")
        if j & 3:
            e(f"v_add_u32 v{V_DA+j}, {(j&3)*(16384-1024)}, v{V_DA+j}")
    e("s_lshl_b32 s7, s3, 4")
    e(f"v_add_u32 v6, s7, v{HI}")
    e("v_lshlrev_b32 v6, 13, v6")
    e(f"s_lshl_b32 s7, s{S_HA}, 9")
    e("v_add_u32 v6, s7, v6")
    e(f"v_lshrrev_b32 v7, 2, v{L31}")
    e(f"v_xor_b32 v7, v7, v{HI}")
    e("v_lshlrev_b32 v7, 6, v7")
    e(f"v_lshl_add_u32 v7, v{C}, 4, v7")
    for j in range(8):
        e(f"v_xor_b32 v{V_DB+j}, {((j&1)<<7) ^ (48 * ((j >> 2) & 1) if A16 else 0)}, v7")
        e(f"v_add_u32 v{V_DB+j}, v{V_DB+j}, v6")
        if j:
            e(f"v_add_u32 v{V_DB+j}, {j*16384-(j&3)*1024}, v{V_DB+j}")
    e(f"s_lshl_b32 s{S_W8K}, s3, 13")
    e(f"s_mov_b32 s{SA}, 0")
    e(f"s_mov_b32 s{SB}, 0")

    def dma_items(b):
        it = []
        for j in range(8):
            pre = [f"s_add_u32 m0, s{S_W8K}, {b*32768 + (j>>2)*4096}"] if (j & 3) == 0 else []
            post = [f"s_add_u32 s{SA}, s{SA}, 128"] if j == 7 else []
            it.append((pre, f"buffer_load_dwordx4 v{V_DA+j}, s[{S_CKV}:{S_CKV+3}], s{SA} offen offset:{(j&3)*1024} lds", post))
        for j in range(8):
            pre = [f"s_add_u32 m0, s{S_W8K}, {65536 + b*32768 + (j>>2)*4096}"] if (j & 3) == 0 else []
            post = [f"s_add_u32 s{SB}, s{SB}, 0x80000"] if j == 7 else []
            it.append((pre, f"buffer_load_dwordx4 v{V_DB+j}, s[{S_W}:{S_W+3}], s{SB} offen offset:{(j&3)*1024} lds", post))
        return it

    NK3 = opt.get('nk3', 12) if A16 else 8
    q = Seg("tmp")
    srd(q, S_WS, P_WS, WS_BYTES)
    srd(q, S_X, P_X, X_BYTES)
    srd(q, S_WQ, P_WQ, WQ_BYTES)
    srd(q, S_W1, P_W1, W1_BYTES)
    if not A16:
        q("s_lshl_b32 s7, s36, 7")
        q(f"v_add_u32 v6, s7, v{L31}")
        q("v_lshlrev_b32 v6, 7, v6")
        q(f"v_bfe_u32 v7, v{L31}, 1, 3")
        q(f"v_xor_b32 v7, v7, v{HI}")
        q("v_lshl_add_u32 v6, v7, 4, v6")
        for k in range(4):
            q(f"v_xor_b32 v{V_AA+k}, {k<<5}, v6")
        q(f"v_lshrrev_b32 v6, 1, v{G}")
        q(f"v_lshl_add_u32 v6, v6, 3, v{R4}")
        q("v_lshlrev_b32 v6, 9, v6")
        q("s_lshl_b32 s7, s37, 8")
        q("s_add_u32 s7, s7, 0x10000")
        q("v_add_u32 v6, s7, v6")
        q(f"v_and_b32 v7, 1, v{G}")
        q("v_lshl_add_u32 v6, v7, 5, v6")
        q(f"v_lshl_add_u32 v6, v{C}, 3, v6")
        for nb in range(4):
            q(f"v_xor_b32 v7, {nb}, v{R4}")
            q(f"v_lshl_add_u32 v{V_AB+nb}, v7, 6, v6")
    else:
        q("v_and_b32 v6, 15, v0")
        q("v_and_b32 v7, 8, v0")
        q(f"v_mul_u32_u24 v7, s{S_KIND}, v7")
        q("v_add_u32 v6, v6, v7")
        q("s_lshl_b32 s7, s36, 7")
        q("v_add_u32 v6, s7, v6")
        q("v_lshlrev_b32 v6, 7, v6")
        q("v_bfe_u32 v7, v0, 1, 3")
        q(f"v_xor_b32 v7, v7, v{G}")
        q(f"v_lshl_add_u32 v{V_AA16}, v7, 4, v6")
        q(f"v_xor_b32 v{V_AA16+1}, 64, v{V_AA16}")
        q(f"v_lshl_add_u32 v6, v{G}, 3, v{R4}")
        q("v_lshlrev_b32 v6, 9, v6")
        q("s_lshl_b32 s7, s37, 8")
        q("s_add_u32 s7, s7, 0x10000")
        q("v_add_u32 v6, s7, v6")
        q(f"v_and_b32 v7, 1, v{C}")
        q("v_lshl_add_u32 v6, v7, 3, v6")
        q(f"v_and_b32 v7, 1, v{G}")
        q("v_mul_u32_u24 v7, 3, v7")
        q(f"v_lshl_add_u32 v7, v{R4}, 2, v7")
        q(f"v_lshrrev_b32 v231, 1, v{C}")
        q(f"s_sub_u32 s7, 1, s{S_KIND}")
        q("v_lshlrev_b32 v231, s7, v231")
        q("v_xor_b32 v7, v7, v231")
        q("v_lshl_add_u32 v6, v7, 4, v6")
        for i in range(8):
            nat, perm = i << 5, ((i >> 1) << 6) | ((i & 1) << 4)
            if nat == perm:
                q(f"v_xor_b32 v{V_AB16+i}, {nat}, v6")
            else:
                q(f"s_mul_i32 s7, s{S_KIND}, {nat - perm}")
                q(f"s_add_u32 s7, s7, {perm}")
                q(f"v_xor_b32 v{V_AB16+i}, s7, v6")
    q("s_lshl_b32 s7, s3, 4")
    q(f"v_add_u32 v6, s7, v{G}")
    q(f"v_xor_b32 v7, v{R4}, v{G}")
    q("v_lshlrev_b32 v7, 6, v7")
    q(f"v_lshl_add_u32 v7, v{C}, 4, v7")
    q(f"s_lshl_b32 s38, s{S_HEAD}, 9")
    q(f"v_lshlrev_b32 v{V_DQ}, 13, v6")
    q(f"v_add3_u32 v{V_DQ}, v{V_DQ}, v7, s38")
    for j in range(1, 4):
        q(f"v_add_u32 v{V_DQ+j}, {j*4*8192 - j*1024}, v{V_DQ}")
    q(f"s_mul_i32 s39, s{S_HEAD}, 224")
    q(f"v_mul_u32_u24 v{V_D1+3}, 3584, v6")
    q(f"v_add3_u32 v{V_D1+3}, v{V_D1+3}, v7, s39")
    q(f"v_lshrrev_b32 v6, 1, v{G}")
    q(f"v_lshl_add_u32 v6, v6, 3, v{R4}")
    q("v_lshlrev_b32 v6, 8, v6")
    q(f"v_and_b32 v7, 1, v{G}")
    q("v_lshl_add_u32 v6, v7, 5, v6")
    q(f"v_lshl_add_u32 v6, v{C}, 3, v6")
    for nb in range(4):
        q(f"v_xor_b32 v7, {nb}, v{R4}")
        q(f"v_lshl_add_u32 v{V_AT+nb}, v7, 6, v6")
        q(f"v_add_u32 v{V_AT+4+nb}, 0x10000, v{V_AT+nb}")
    q(f"s_mul_i32 s7, s{S_QT}, 28")
    q("s_mul_i32 s6, s3, 7")
    q("s_add_u32 s7, s7, s6")
    q("v_lshrrev_b32 v6, 2, v0")
    q("v_add_u32 v6, s7, v6")
    q("v_lshlrev_b32 v7, 13, v6")
    q(f"v_lshl_add_u32 v7, v{C}, 7, v7")
    q("v_add_u32 v7, s38, v7")
    q("v_subrev_u32 v6, 7, v6")
    q("v_mul_u32_u24 v6, 3584, v6")
    q(f"v_min_u32 v231, 2, v{C}")
    q("v_lshl_add_u32 v6, v231, 7, v6")
    q("v_add_u32 v6, s39, v6")
    q(f"v_min_u32 v6, {W1_BYTES-4}, v6")
    q("v_cmp_gt_u32 vcc, 28, v0")
    q("s_lshr_b32 s7, s2, 3")
    q("s_lshl_b32 s7, s7, 2")
    q("v_cndmask_b32 v6, v6, v7, vcc")
    q(f"v_mov_b32 v{V_GP}, s{P_W1}")
    q(f"v_mov_b32 v{V_GP+1}, s{P_W1+1}")
    q(f"v_mov_b32 v7, s{P_WQ}")
    q(f"v_mov_b32 v231, s{P_WQ+1}")
    q(f"v_cndmask_b32 v{V_GP}, v{V_GP}, v7, vcc")
    q(f"v_cndmask_b32 v{V_GP+1}, v{V_GP+1}, v231, vcc")
    q("s_add_u32 s7, s7, s3")
    q("s_mul_i32 s7, s7, 640")
    q("s_add_u32 s7, s7, M_B-M_PC0")
    q("v_and_b32 v7, 7, v0")
    q("v_min_u32 v7, 4, v7")
    q("v_lshl_add_u32 v7, v7, 7, s7")
    q("v_min_u32 v7, M_CODE_END-M_PC0-8, v7")
    q("v_cmp_gt_u32 vcc, 56, v0")
    q("v_mov_b32 v231, s50")
    q("v_mov_b32 v232, s51")
    q("v_cndmask_b32 v6, v7, v6, vcc")
    q(f"v_cndmask_b32 v{V_GP}, v231, v{V_GP}, vcc")
    q(f"v_cndmask_b32 v{V_GP+1}, v232, v{V_GP+1}, vcc")
    q(f"v_add_co_u32 v{V_GP}, vcc, v{V_GP}, v6")
    q(f"v_addc_co_u32 v{V_GP+1}, vcc, 0, v{V_GP+1}, vcc")
    q("s_add_u32 s7, s36, 3")
    q("s_lshl_b32 s7, s7, 3")
    q("s_add_u32 s7, s7, s34")
    q(f"s_lshl_b32 s{S_KVBASE}, s{S_HA}, 6")
    q(f"s_add_u32 s{S_KVBASE}, s{S_KVBASE}, s7")
    q(f"s_lshl_b32 s{S_KVBASE}, s{S_KVBASE}, 15")
    q(f"s_lshl_b32 s7, s{S_KIND}, 14")
    q(f"s_add_u32 s{S_KVBASE}, s{S_KVBASE}, s7")
    q("s_lshl_b32 s7, s37, 13")
    q(f"s_add_u32 s{S_KVBASE}, s{S_KVBASE}, s7")
    q("s_lshl_b32 s7, s36, 19")
    q(f"s_sub_u32 s{S_KVSTR}, s7, 0x40000")
    q(f"s_lshl_b32 s7, s{S_QT}, 2")
    q(f"v_and_b32 v{V_FO}, 15, v0")
    q(f"v_lshlrev_b32 v{V_FO}, 3, v{V_FO}")
    q(f"s_add_u32 s{S_XNB}, s7, s3")
    q(f"s_mul_i32 s{S_XNB}, s{S_XNB}, 28672")
    q(f"s_add_u32 s{S_XNB}, s{S_XNB}, {XN_OFF}")
    q(f"v_lshlrev_b32 v{V_L16}, 4, v0")
    q(f"s_lshl_b32 s7, s{S_QT}, 4")
    q(f"s_add_u32 s7, s7, s{S_HEAD}")
    q("s_mul_i32 s7, s7, 7168")
    q("v_min_u32 v6, 56, v0")
    q("v_lshl_add_u32 v146, v6, 7, s7")
    attn.setup_s(q)
    q(f"s_mov_b32 s{S_QST}, s{P_WS}")
    q(f"s_mov_b32 s{S_QST+1}, s{P_WS+1}")
    q(f"s_cmp_ge_u32 s{S_QT}, 8")
    q(f"s_cselect_b32 s{S_QST+2}, {WS_BYTES:#x}, 0")
    q(f"s_mov_b32 s{S_QST+3}, 0x20000")
    q(f"s_lshl_b32 s{S_QB}, s{S_PAIR}, 2")
    q(f"s_add_u32 s{S_QB}, s{S_QB}, s3")
    q(f"s_lshl_b32 s{S_QB}, s{S_QB}, 14")
    q(f"s_add_u32 s{S_QB}, s{S_QB}, {Q_OFF}")
    for i in q.ins:
        e(i.text)
    stamp(e, opt, "setup")
    e.wait_tag("pf")
    stamp(e, opt, "touch")
    for tag, items in (("t0", dma_items(0)), ("dma", dma_items(1)[:NK3])):
        for pre, d, post in items:
            run(e, pre + [(d, tag)] + post)
    e(f"buffer_load_dword v{V_PD}, v144, s[{S_CKV}:{S_CKV+3}], 0 offen", "pf")
    e(f"buffer_load_dword v{V_PD}, v145, s[{S_W}:{S_W+3}], 0 offen", "pf")
    e(f"buffer_load_dword v{V_PD}, v146, s[{S_X}:{S_X+3}], 0 offen", "pf")
    e("s_or_b32 s7, s2, s3")
    e("s_cbranch_scc1 M_NOPUB")
    e("s_memrealtime s[4:5]")
    e("v_mov_b32 v6, 0")
    e.wait_force(lgkm=0)
    e("s_or_b32 s4, s4, 1")
    e("v_mov_b32 v7, s4")
    e("s_mov_b64 exec, 1")
    e.raw(f"global_store_dword v6, v7, s[{P_DBG}:{P_DBG+1}] sc1")
    e("s_mov_b64 exec, -1")
    e.label("M_NOPUB")
    stamp(e, opt, "dma")
    stamp(e, opt, 1)

    def layernorm(e, n, reduce, norm, T=V_T):
        e("s_mov_b32 s7, 0x3f803f80")
        for k in range(8):
            e(f"v_mov_b32 v{T+k}, 0")
        for r in range(n):
            e(f"v_dot2_f32_bf16 v{T+(r&3)}, v{V_XN+r}, s7, v{T+(r&3)}")
            e(f"v_dot2_f32_bf16 v{T+4+(r&3)}, v{V_XN+r}, v{V_XN+r}, v{T+4+(r&3)}")
        e.nop(4)
        e(f"v_add_f32 v{T}, v{T}, v{T+1}")
        e(f"v_add_f32 v{T+2}, v{T+2}, v{T+3}")
        e(f"v_add_f32 v{T+4}, v{T+4}, v{T+5}")
        e(f"v_add_f32 v{T+6}, v{T+6}, v{T+7}")
        e(f"v_add_f32 v{T}, v{T}, v{T+2}")
        e(f"v_add_f32 v{T+4}, v{T+4}, v{T+6}")
        for step in reduce:
            if step == 8:
                e.nop(2)
                e(f"v_add_f32_dpp v{T}, v{T}, v{T} row_ror:8 row_mask:0xf bank_mask:0xf")
                e(f"v_add_f32_dpp v{T+4}, v{T+4}, v{T+4} row_ror:8 row_mask:0xf bank_mask:0xf")
            else:
                e(f"v_mov_b32 v{T+1}, v{T}")
                e(f"v_mov_b32 v{T+5}, v{T+4}")
                e.nop(2)
                e(f"v_permlane{step}_swap_b32 v{T}, v{T+1}")
                e(f"v_permlane{step}_swap_b32 v{T+4}, v{T+5}")
                e(f"v_add_f32 v{T}, v{T}, v{T+1}")
                e(f"v_add_f32 v{T+4}, v{T+4}, v{T+5}")
        e(f"v_mul_f32 v{T}, {f32(1/448)}, v{T}")
        e(f"v_mul_f32 v{T+4}, {f32(1/448)}, v{T+4}")
        e(f"v_fma_f32 v{T+4}, -v{T}, v{T}, v{T+4}")
        e(f"v_max_f32 v{T+4}, 0, v{T+4}")
        e(f"v_add_f32 v{T+4}, {f32(1e-5)}, v{T+4}")
        e(f"v_rsq_f32 v{T+4}, v{T+4}")
        e(f"v_mul_f32 v{T+4}, {f32(QSCALE)}, v{T+4}")
        e(f"v_mul_f32 v{T}, v{T}, v{T+4}")
        e(f"v_mov_b32 v{T+5}, v{T+4}")
        e(f"v_sub_f32 v{T}, 0, v{T}")
        e(f"v_mov_b32 v{T+1}, v{T}")
        for r in norm:
            t = T + 8 + (r % 8) * 2
            e(f"v_lshlrev_b32 v{t}, 16, v{V_XN+r}")
            e(f"v_and_b32 v{t+1}, 0xffff0000, v{V_XN+r}")
            e(f"v_pk_fma_f32 {v(t,2)}, {v(t,2)}, {v(T+4,2)}, {v(T,2)}")
            e(f"v_cvt_pk_bf16_f32 v{V_XN+r}, v{t}, v{t+1}")

    def ops_of(fn):
        t = Seg("tmp")
        fn(t)
        out, k = [], 0
        ins = t.ins
        while k < len(ins):
            x = (ins[k].text, ins[k].tag) if ins[k].tag else ins[k].text
            if ins[k].op.startswith("s_cmp"):
                out.append([x, ins[k + 1].text])
                k += 2
            else:
                out.append(x)
                k += 1
        return out

    XA, XS, LT = V_XN + 36, V_XN + 37, V_XN + 52
    SX0, SX1 = S_QC, S_KVC

    def x_loads(h):
        h(f"s_lshl_b32 s{SX0}, s3, 8")
        h(f"s_add_u32 s{SX1}, s{SX0}, 128")
        h("s_cmp_eq_u32 s3, 3")
        h(f"s_cselect_b32 s{SX1}, 0, s{SX1}")
        h(f"s_lshl_b32 s7, s{S_QT}, 7")
        h(f"s_lshl_b32 s6, s{S_HEAD}, 3")
        h("s_add_u32 s7, s7, s6")
        h("v_and_b32 v6, 7, v0")
        h("v_add_u32 v6, s7, v6")
        h("v_mul_u32_u24 v6, 896, v6")
        h("v_lshrrev_b32 v7, 3, v0")
        h(f"v_lshl_add_u32 v{XA}, v7, 4, v6")
        h(f"v_mov_b32 v{V_XN+41}, 0")
        for i in range(7):
            h(f"buffer_load_dwordx4 {v(V_XN+i*4,4)}, v{XA}, s[{S_X}:{S_X+3}], 0 offen offset:{i*128}", "x")
        h(f"buffer_load_dwordx4 {v(V_XN+28,4)}, v{XA}, s[{S_X}:{S_X+3}], s{SX0} offen", "x")
        h(f"buffer_load_dwordx4 {v(V_XN+32,4)}, v{XA}, s[{S_X}:{S_X+3}], s{SX1} offen", "x")
        h(f"global_load_dword v{V_XN+43}, v{V_XN+41}, s[{P_DBG}:{P_DBG+1}]", "x")

    def ln_pub(h):
        h(f"s_lshr_b32 s5, s{S_HEAD}, 2")
        h(f"s_lshl_b32 s6, s{S_QT}, 2")
        h("s_add_u32 s5, s5, s6")
        h("s_mul_i32 s5, s5, 28672")
        h(f"s_add_u32 s5, s5, {XN_OFF}")
        h(f"s_lshl_b32 s{SX0}, s{SX0}, 5")
        h(f"s_lshl_b32 s{SX1}, s{SX1}, 5")
        h(f"s_add_u32 s{SX0}, s{SX0}, s5")
        h(f"s_add_u32 s{SX1}, s{SX1}, s5")
        h(f"s_and_b32 s6, s{S_HEAD}, 3")
        h("s_lshl_b32 s6, s6, 7")
        h("v_and_b32 v6, 7, v0")
        h("v_lshlrev_b32 v6, 4, v6")
        h("v_lshrrev_b32 v7, 3, v0")
        h("v_lshl_add_u32 v6, v7, 9, v6")
        h(f"v_add_u32 v{XS}, s6, v6")
        layernorm(h, 28, (8, 16, 32), range(28, 36), LT)
        h(f"buffer_store_dwordx4 {v(V_XN+28,4)}, v{XS}, s[{S_WS}:{S_WS+3}], s{SX0} offen sc1", "st")
        h(f"buffer_store_dwordx4 {v(V_XN+32,4)}, v{XS}, s[{S_WS}:{S_WS+3}], s{SX1} offen sc1", "st")

    def gtouch(k):
        lo = 0xffff << (16 * (k & 1))
        return [[f"s_mov_b32 exec_lo, {lo if k < 2 else 0}", f"s_mov_b32 exec_hi, {0 if k < 2 else lo}",
                 (f"global_load_dword v{V_PD}, {v(V_GP,2)}, off", "pf"), "s_mov_b64 exec, -1"]]

    hk = Seg("m_hook")
    hk.label("M_HOOK")
    hk("s_mov_b32 s6, 0")
    hk.label("M_NSPIN")
    hk(f"v_readfirstlane_b32 s{S_N0}, v{V_XN+43}")
    hk(f"s_cmp_lg_u32 s{S_N0}, 0")
    hk("s_cbranch_scc1 M_NOK")
    hk("s_sleep 8")
    hk(f"global_load_dword v{V_XN+43}, v{V_XN+41}, s[{P_DBG}:{P_DBG+1}] sc1")
    hk.wait_force(vm=0)
    hk("s_add_u32 s6, s6, 1")
    hk(f"s_cmp_lt_u32 s6, {PMAX}")
    hk("s_cbranch_scc1 M_NSPIN")
    hk.label("M_NOK")
    hk(f"s_xor_b32 s{S_N1}, s{S_N0}, {NONCE_K:#x}")
    hk("s_cmp_eq_u32 s3, 0")
    hk(f"s_cselect_b32 s{S_BO}, 3, 99")
    hk(f"s_mov_b64 s[{S_GM}:{S_GM+1}], 0xff")
    hk("s_branch M_HOOK_RET")
    hk.label("M_SIGX")
    flag_line(hk, 7, FL_XN, S_QT)
    hk(f"s_lshl_b32 s6, s{S_HEAD}, 3")
    flag_set(hk, S_WS, 7, "s6", V_XN + 40)
    hk.label("M_HOOK_RET")
    hk(f"s_cmp_eq_u32 s{S_KIND}, 0")
    hk("s_cbranch_scc1 M_LOOP_K")
    hk("s_branch M_LOOP_V")

    def frag_reads(b, ks, st):
        r = []
        fa, fb = V_FA + st * 16, V_FB + st * 16
        order = [("a", 0), ("b", 0), ("a", 1), ("a", 2), ("a", 3), ("b", 1), ("b", 2), ("b", 3)]
        for t, i in order:
            if t == "a":
                r.append(f"ds_read_b128 {v(fa+i*4,4)}, v{V_AA+ks} offset:{i*4096 + b*32768}")
            else:
                for u in range(2):
                    r.append(f"ds_read_b64_tr_b16 {v(fb+i*4+u*2,2)}, v{V_AB+i} offset:{(16*ks+4*u)*512 + b*32768}")
        return r

    e.wait_tag("t0")
    stamp(e, opt, "t0")
    e("s_barrier")
    stamp(e, opt, "bar")
    if not A16:
        for r in frag_reads(0, 0, 0):
            e(r)
    e(f"s_mov_b32 s{S_LP}, 2")
    e(f"s_cmp_eq_u32 s{S_KIND}, 0")
    e("s_cbranch_scc0 M_PRE_V")
    pro = e

    def place_dma(fill, items, g0, g1, tag="dma"):
        n = len(items)
        for k, item in enumerate(items):
            pre, d, post = item[:3]
            g = g0 + (k * (g1 - g0)) // n
            for x in pre:
                fill.setdefault(g - 1, []).append(x)
            fill.setdefault(g, []).append((d, item[3] if len(item) > 3 else tag))
            for x in post:
                fill.setdefault(g, []).append(x)

    def ktile(e, kind, b, dma_k0, dma_k3, last=False, pref=True, tag3="dma", tag0="dma", xn=None):
        for ks in range(4):
            st = ks & 1
            fa, fb = V_FA + st * 16, V_FB + st * 16
            spine = []
            for i in range(4):
                for j in range(4):
                    acc = a((i * 4 + j) * 16, 16)
                    W, Cc = v(fb + i * 4, 4), v(fa + j * 4, 4)
                    A, B = (W, Cc) if kind == 0 else (Cc, W)
                    spine.append(f"{MFMA} {acc}, {A}, {B}, {acc}")
            fill = {}
            fill[-1] = [lambda e: e.wait_force(lgkm=0)]
            if ks < 3:
                spread(fill, frag_reads(b, ks + 1, st ^ 1), 0, 12)
                if ks == 0 and dma_k0:
                    place_dma(fill, dma_k0, 1, 16, tag0)
                if ks == 1 and pref:
                    fill.setdefault(4, []).append((f"buffer_load_dword v{V_PD}, v{V_PA}, s[{S_CKV}:{S_CKV+3}], s{SA} offen", "pf"))
                    fill.setdefault(13, []).append((f"buffer_load_dword v{V_PD}, v{V_PB}, s[{S_W}:{S_W+3}], s{SB} offen", "pf"))
                if ks in (1, 2) and xn is not None:
                    k0 = xn + (ks - 1) * 7
                    for k in range(k0, k0 + 7):
                        g = 1 + 2 * (k - k0)
                        if k % 4 == 0 and k:
                            fill.setdefault(g - 1, []).append(f"s_add_u32 s{S_XNB}, s{S_XNB}, 4096")
                        fill.setdefault(g, []).append((f"buffer_load_dwordx4 {v(V_XN+4*k,4)}, v{V_L16}, s[{S_WS}:{S_WS+3}], s{S_XNB} offen offset:{(k%4)*1024} sc1", "xn"))
            else:
                if last:
                    fill[0] = ["s_barrier"]
                else:
                    fill[0] = [lambda e: e.wait_force(vm=(NPF if pref else 0) + (14 if xn is not None else 0)), "s_barrier"]
                    spread(fill, frag_reads(b ^ 1, 0, 0), 0, 12)
                if dma_k3:
                    place_dma(fill, dma_k3, 2, 16, tag3)
            weave(e, spine, fill)

    def c_read(kind, b, s_, j):
        off = j * 2048 if kind == 0 else (j >> 1) * 4096 + (j & 1) * 1024
        return f"ds_read_b128 {v(V_FA + s_*32 + j*4, 4)}, v{V_AA16 + ((s_ ^ j) & 1)} offset:{off + b*32768}"

    def w_read(b, s_, i):
        return [f"ds_read_b64_tr_b16 {v(V_WR + i*4 + 2*u, 2)}, v{V_AB16+i} offset:{(32*s_ + 4*u)*512 + b*32768}" for u in range(2)]

    def ktile16(e, kind, b, dma_k0, dma_k3, last=False, pref=True, tag3="dma", tag0="dma", xn=None, first=False, head=False, extra=None):
        for s_ in range(2):
            spine = []
            for i in range(8):
                for j in range(8):
                    if kind == 0:
                        dt, bb, kb, nb = i >> 1, i & 1, j >> 1, j & 1
                    else:
                        dt, nb, kb, bb = i >> 1, i & 1, j >> 1, j & 1
                    acc = a((kb * 4 + dt) * 16 + nb * 8 + bb * 4, 4)
                    W, Cc = v(V_WR + i * 4, 4), v(V_FA + s_ * 32 + j * 4, 4)
                    A, B = (W, Cc) if kind == 0 else (Cc, W)
                    spine.append(f"v_mfma_f32_16x16x32_bf16 {acc}, {A}, {B}, {0 if first and s_ == 0 else acc}")
            fill = {}
            nb_, ns = (b, 1) if s_ == 0 else (b ^ 1, 0)
            more = not (last and s_ == 1)
            for i in range(8):
                r = v(V_WR + i * 4, 4)
                fill.setdefault(8 * i - 1, []).append(lambda e, r=r: wait_reg(e, r))
            r = v(V_FA + s_ * 32 + 28, 4)
            fill.setdefault(-1, []).append(lambda e, r=r: wait_reg(e, r))
            if s_ == 1:
                nx = 14 if xn is not None else 0
                if last:
                    fill.setdefault(7, []).extend([lambda e: e.wait(lgkm=0), "s_barrier"])
                elif pref and not head:
                    fill.setdefault(7, []).extend([lambda e: e.wait_force(vm=NPF + 1, lgkm=0), "s_barrier"])
                else:
                    fill.setdefault(7, []).extend([lambda e: e.wait_tag("dma"), lambda e: e.wait(lgkm=0), "s_barrier"])
            if more:
                for i in range(8):
                    wr = w_read(nb_, ns, i)
                    fill.setdefault(8 * i + 7, []).append(wr[0])
                    fill.setdefault(min(8 * i + 8, 63), []).append(wr[1])
                for j in range(8):
                    fill.setdefault(10 + 6 * j, []).append(c_read(kind, nb_, ns, j))
            if s_ == 0:
                if dma_k0:
                    place_dma(fill, dma_k0, 2, min(30, 2 + (7 * len(dma_k0)) // 2), tag0)
                if pref:
                    fill.setdefault(36, []).append((f"buffer_load_dword v{V_PD}, v{V_PA}, s[{S_CKV}:{S_CKV+3}], s{SA} offen", "pf"))
                    fill.setdefault(44, []).append((f"buffer_load_dword v{V_PD}, v{V_PB}, s[{S_W}:{S_W+3}], s{SB} offen", "pf"))
                if xn is not None:
                    for k in range(xn, xn + 14):
                        g = 31 + ((k - xn) * 32) // 14
                        if k % 4 == 0 and k:
                            fill.setdefault(g - 1, []).append(f"s_add_u32 s{S_XNB}, s{S_XNB}, 4096")
                        fill.setdefault(g, []).append((f"buffer_load_dwordx4 {v(V_XN+4*k,4)}, v{V_L16}, s[{S_WS}:{S_WS+3}], s{S_XNB} offen offset:{(k%4)*1024} sc1", "xn"))
            elif dma_k3:
                place_dma(fill, dma_k3, 11, 62, tag3)
            if opt.get("x_a_nodma"):
                for g in fill:
                    fill[g] = [x for x in fill[g] if not (isinstance(x, tuple) and x[1] in ("dma", "pf"))]
            if opt.get("x_a_nords"):
                for g in fill:
                    fill[g] = [x for x in fill[g] if not (isinstance(x, str) and x.startswith("ds_read"))]
            if opt.get("a_level", 1):
                seq = [(g, x) for g in sorted(fill) for x in fill[g]]
                new, nxt = {}, -1
                for g, x in seq:
                    t = x[0] if isinstance(x, tuple) else x
                    heavy = isinstance(t, str) and t.startswith(("ds_", "buffer_", "global_"))
                    fixed = callable(x) or t == "s_barrier"
                    if fixed:
                        new.setdefault(g, []).append(x)
                        continue
                    gg = min(63, max(g, nxt)) if heavy else min(63, max(g, nxt - 1))
                    new.setdefault(gg, []).append(x)
                    if heavy:
                        nxt = gg + 1
                fill = new
            for g0, g1, ops in (extra or {}).get(s_, []):
                pour(fill, ops, g0, g1)
            weave(e, spine, fill)

    if A16:
        ktile = ktile16

    NT = 21

    def b_dma(u):
        part, kt = divmod(u, 7)
        slot = SLOT_ORDER[u % 10]
        it = []
        for j in range(4):
            pre = []
            if j == 0:
                pre.append(f"s_add_u32 m0, s{S_W4K}, {slot*16384}")
                off = kt * 64 * 3584 if part == 2 else kt * 64 * 8192 + part * 256
                pre.append(f"s_mov_b32 s{S_BO}, {off}")
            if part == 2:
                d = f"buffer_load_dwordx4 v{V_DQ+j}, s[{S_W1}:{S_W1+3}], s{S_BO} offen offset:{j*1024} lds"
            else:
                d = f"buffer_load_dwordx4 v{V_DQ+j}, s[{S_WQ}:{S_WQ+3}], s{S_BO} offen offset:{j*1024} lds"
            it.append((pre, d, [], f"b{u//2}"))
        return it

    segs = [pro]
    traces = [[hk]]
    tails = {}
    extra = []
    vm_loop = [("dma", frozenset())] * 40
    for kind in range(2):
        nm = "KV"[kind]
        pre = Seg(f"m_pre{nm}", pro.lds, pro.vm)
        pre.label(f"M_PRE_{nm}")
        if A16:
            seq = sorted([(8 * i + 7, 0, w_read(0, 0, i)[0]) for i in range(8)] + [(min(8 * i + 8, 63), 1, w_read(0, 0, i)[1]) for i in range(8)]
                         + [(10 + 6 * j, 2, c_read(kind, 0, 0, j)) for j in range(8)])
            for _, _, x in seq:
                pre(x)
        d0, d1 = dma_items(0), dma_items(1)
        lno = ops_of(ln_pub)
        ktile(pre, kind, 0, d1[NK3:], d0[:NK3], first=True, head=True)
        ktile(pre, kind, 1, d0[NK3:], d1[:NK3], head=True, extra={0: [(18, 64, ops_of(x_loads))]})
        stamp(pre, opt, "it1", raw=True)
        ktile(pre, kind, 0, d1[NK3:], d0[:NK3], head=True, extra={1: [(9, 64, lno[:70])]})
        ktile(pre, kind, 1, d0[NK3:], d1[:NK3], head=True, extra={0: [(0, 60, lno[70:])]})
        stamp(pre, opt, "it2", raw=True)
        pre("s_branch M_HOOK")
        lp = Seg(f"m_loop{nm}", pre.lds, vm_loop)
        lp.label(f"M_LOOP_{nm}")
        gt = [["s_mov_b64 exec, s[70:71]" if False else f"s_mov_b64 exec, s[{S_GM}:{S_GM+1}]", (f"global_load_dword v{V_PD}, {v(V_GP,2)}, off", "pf"),
               "s_mov_b64 exec, -1"], [f"s_lshl_b64 s[{S_GM}:{S_GM+1}], s[{S_GM}:{S_GM+1}], 8", f"s_or_b32 s{S_GM}, s{S_GM}, 1"]]
        ktile(lp, kind, 0, d1[NK3:], d0[:NK3], extra={0: [(50, 56, gt)]})
        ktile(lp, kind, 1, d0[NK3:], d1[:NK3], extra={0: [(50, 56, gt)]})
        assert opt.get('x_a_nords') or lp.lds == pre.lds, (len(lp.lds), len(pre.lds))
        lp(f"s_add_u32 s{S_LP}, s{S_LP}, 1")
        for it in range(3, 8):
            if f"it{it}" in opt.get("sp", []):
                lp(f"s_cmp_lg_u32 s{S_LP}, {it}")
                lp(f"s_cbranch_scc1 M_NS{it}_{nm}")
                stamp(lp, opt, f"it{it}", raw=True)
                lp.label(f"M_NS{it}_{nm}")
        lp(f"s_cmp_eq_u32 s{S_LP}, s{S_BO}")
        lp("s_cbranch_scc1 M_SIGX")
        lp(f"s_cmp_lg_u32 s{S_LP}, 6")
        lp(f"s_cbranch_scc1 M_NOPOLL_{nm}")
        flag_line(lp, 7, FL_XN, S_QT)
        lp(f"buffer_load_dwordx2 {v(V_FL,2)}, v{V_FO}, s[{S_WS}:{S_WS+3}], s7 offen sc1", "pf")
        lp.label(f"M_NOPOLL_{nm}")
        lp(f"s_cmp_lt_u32 s{S_LP}, 7")
        lp(f"s_cbranch_scc1 M_LOOP_{nm}")
        tl = Seg(f"m_tail{nm}", lp.lds, lp.vm)
        tl.label(f"M_TAIL{kind}")
        bd = sum((b_dma(u) for u in range(10)), [])
        flag_test(tl, V_FL)
        tl(f"s_cselect_b32 s{S_XNF}, 1, 0")
        ktile(tl, kind, 0, d1[NK3:] + bd[:8], bd[8:20], pref=False, xn=0)
        ktile(tl, kind, 1, bd[20:24], bd[24:36], last=True, pref=False, xn=14)
        if kind == 0:
            tl("s_branch M_B")
        segs += [pre, lp, tl] + ([hk] if kind == 0 else [])
        tails[kind] = tl
        traces.append([pro, pre, lp, lp, tl])

    e = Seg("m_b", tails[0].lds, tails[0].vm)
    e.label("M_B")
    stamp(e, opt, 2)
    stamp(e, opt, "b")
    e(f"s_cmp_lt_u32 s{S_XNF}, {99 if opt.get('force_fb') else 1}")
    e("s_cbranch_scc1 M_FB")
    e.label("M_FB_RET")
    for _ in range(opt.get("x_idle", 0)):
        e("s_sleep 32")
    srd(e, S_WO, P_WO, WO_BYTES)
    srd(e, S_W2, P_W2, W2_BYTES)
    attn.setup_dma(e)
    e(f"v_and_b32 v{V_ST}, 15, v0")
    e(f"v_lshlrev_b32 v{V_ST}, 4, v{V_ST}")
    e("v_lshrrev_b32 v6, 4, v0")
    e(f"v_lshl_add_u32 v{V_ST}, v6, 9, v{V_ST}")
    e(f"v_mov_b32 v6, v{V_D1+3}")
    for nb in range(4):
        e(f"v_add_u32 v{V_AT3+nb}, 0x20000, v{V_AT+nb}")
    fb = Seg("m_fb")
    fb.label("M_FB")
    fb.wait_force(vm=0)
    fb(f"s_lshl_b32 s7, s{S_QT}, 7")
    fb("s_lshl_b32 s6, s3, 5")
    fb("s_add_u32 s7, s7, s6")
    fb("v_and_b32 v6, 31, v0")
    fb("v_add_u32 v6, s7, v6")
    fb("v_mul_u32_u24 v6, 896, v6")
    fb("v_lshrrev_b32 v7, 5, v0")
    fb("v_lshl_add_u32 v6, v7, 4, v6")
    for ks in range(28):
        fb(f"buffer_load_dwordx4 {v(V_XN+ks*4,4)}, v6, s[{S_X}:{S_X+3}], 0 offen offset:{ks*32}", "x")
    layernorm(fb, 112, (32,), range(112))
    fb.nop(2)
    fb("s_branch M_FB_RET")
    extra.append(fb)

    D = opt.get("b_depth", 7)
    NF = NT * 16

    def b_read(f):
        u, rem = divmod(f, 16)
        ks, nb = divmod(rem, 4)
        slot = SLOT_ORDER[u % 10]
        fr = V_FA + (f % 8) * 4
        at = (V_AT, V_AT + 4, V_AT3)[slot >> 2] + nb
        return [f"ds_read_b64_tr_b16 {v(fr+2*h,2)}, v{at} offset:{(slot&3)*16384 + (16*ks+4*h)*256}" for h in range(2)]

    def kv_epi(b, t=8):
        kb, i = divmod(b, 4)
        ops = []
        if i == 0 and kb:
            ops.append(f"s_add_u32 s{S_KVBASE}, s{S_KVBASE}, s{S_KVSTR}")
        if i % 2 == 0:
            ops.append(f"s_add_u32 s{S_KVC}, s{S_KVBASE}, {KV_OFF + (i>>1)*4096}")
        for c in range(2):
            for r in range(8):
                ops.append(f"v_accvgpr_read_b32 v{t+r}, a{b*16+8*c+r}")
            for r in range(4):
                ops.append(f"v_cvt_pk_bf16_f32 v{t+8+r}, v{t+2*r}, v{t+2*r+1}")
            ops.append((f"buffer_store_dwordx4 {v(t+8,4)}, v{V_ST}, s[{S_WS}:{S_WS+3}], s{S_KVC} offen offset:{(i&1)*2048+c*256}{ST}", "kvst" if kb < 2 else "kvst2"))
        if opt.get("x_nokvst"):
            ops = [o for o in ops if not isinstance(o, tuple)]
        if opt.get("x_noepi"):
            ops = []
        return ops

    def q_epi(part):
        ops = []
        t = 20
        for nb in range(4):
            if nb % 2 == 0:
                ops.append(f"s_add_u32 s{S_QC}, s{S_QB}, {part*8192 + (nb>>1)*4096}")
            for c in range(2):
                if part == 0:
                    src = H_ACC[nb] + 8 * c
                else:
                    src = t
                    for r in range(8):
                        ops.append(f"v_accvgpr_read_b32 v{t+r}, a{nb*16+8*c+r}")
                for r in range(4):
                    ops.append(f"v_cvt_pk_bf16_f32 v{t+8+r}, v{src+2*r}, v{src+2*r+1}")
                ops.append((f"buffer_store_dwordx4 {v(t+8,4)}, v{V_L16}, s[{S_QST}:{S_QST+3}], s{S_QC} offen offset:{(nb&1)*2048 + c*1024} sc1", "qst"))
                for r in range(4):
                    ops.append(f"v_accvgpr_write_b32 a{A_Q2 + part*32 + nb*8 + c*4 + r}, v{t+8+r}")
        return ops

    GKV, GCHK, GQ = opt.get("g_kv", 6), opt.get("g_chk", 9), 9
    fl = attn.first_loads(S_KVE)
    spine, fill = [], {}
    e.wait_tag("b0")
    e("s_barrier")
    for f in range(D):
        for r in b_read(f):
            e(r)
    place_dma(fill, b_dma(9), 1, 16)
    for f in range(NF):
        u, rem = divmod(f, 16)
        part, kt = divmod(u, 7)
        ks, nb = divmod(rem, 4)
        acc = a(nb * 16, 16) if part == 1 else v(H_ACC[nb], 16)
        c = "0" if (kt == 0 and ks == 0) else acc
        spine.append(f"{MFMA} {acc}, {v(V_FA+(f%8)*4,4)}, {v(V_XN+(kt*4+ks)*4,4)}, {c}")
        nf = f + D
        if nf < NF:
            if nf % 32 == 0:
                g = nf // 32
                ops = [lambda e, g=g: e.wait_tag(f"b{g}")]
                if g == GKV:
                    ops.append(lambda e: e.wait_tag("kvst"))
                if g == GQ:
                    ops.append(lambda e: e.wait_tag("qst"))
                if g == GCHK:
                    ops += [lambda e: flag_test(e, VPK), f"s_cselect_b32 s{S_EARLY}, 1, 0",
                            f"s_cselect_b32 s{S_KVE+2}, {WS_BYTES:#x}, 0"]
                ops.append("s_barrier")
                if g == GKV:
                    ops += ["s_cmp_eq_u32 s3, 0", "s_cbranch_scc1 M_SKV", "M_SKV_RET:"]
                if g == GQ:
                    ops += ["s_cmp_eq_u32 s3, 0", "s_cbranch_scc1 M_SQ", "M_SQ_RET:"]
                if g == 10:
                    ops += [f"s_cmp_lt_u32 s{S_QT}, 8", "s_cbranch_scc1 M_EQ", "M_EQ_RET:"]
                if g == 4:
                    ops += [f"v_add_u32 v{V_DQ+j}, {j*4*3584 - j*1024}, v6" for j in range(4)]
                if f"g{g}" in opt.get("sp", []):
                    ops.append(lambda e, g=g: stamp(e, opt, f"g{g}", raw=True))
                fill.setdefault(f, []).extend(ops)
                if g >= 2:
                    its = []
                    for u2 in (2 * g + 6, 2 * g + 7):
                        if u2 < NT:
                            its += b_dma(u2)
                    if its:
                        place_dma(fill, its, f + 2, f + 30)
                if g == 9:
                    spread(fill, sum(fl[:4], []), f + 2, f + 32)
                if g == 10:
                    spread(fill, sum(fl[4:], []), f + 2, f + 20)
            fill.setdefault(f, []).extend(b_read(nf))
        if f % 2 == 0:
            r = v(V_FA + (min(f + 1, NF - 1) % 8) * 4, 4)
            fill.setdefault(f - 1, []).append(lambda e, r=r: wait_reg(e, r))
    g1, g2a, g2, gq0, gq1 = opt.get("kv_split", (125, 200, 330, 130, 262))
    pour(fill, sum((kv_epi(b) for b in range(0, 8)), []), 2, g1)
    pour(fill, q_epi(0), gq0, 215)
    pour(fill, q_epi(1), 224 + 5, gq1)
    pour(fill, [f"s_mov_b32 s{S_KVE}, s{S_WS}", f"s_mov_b32 s{S_KVE+1}, s{S_WS+1}", f"s_mov_b32 s{S_KVE+3}, 0x20000",
                lambda e: flag_line(e, 73, FL_KV, S_HEAD), lambda e: flag_line(e, 74, FL_PAIR, S_PAIR)], 160, 180)
    fill.setdefault(opt.get("g_pkv", 240), []).append(f"buffer_load_dwordx2 {v(VPK,2)}, v{V_FO}, s[{S_WS}:{S_WS+3}], s73 offen sc1")
    GP = opt.get("g_poll", 298)
    fill.setdefault(GP - 1, []).append(f"v_mov_b32 v{VPQ+2}, 0")
    fill.setdefault(GP, []).append((f"buffer_load_dwordx2 {v(VPQ,2)}, v{VPQ+2}, s[{S_WS}:{S_WS+3}], s74 offen sc1", "pq"))
    fill.setdefault(GP, []).append(f"s_mov_b32 s{S_GOTQ}, 0")
    pour(fill, [f"v_accvgpr_mov_b32 a{A_Q+r}, a{A_Q2+r}" for r in range(64)], gq1 + 2, 312)
    pour(fill, sum((kv_epi(b) for b in range(8, 12)), []), g2a, g2)
    younger = [0]

    def count_pq(e):
        tags = [t for t, d in e.vm]
        younger[0] = len(tags) - 1 - tags.index("pq") if "pq" in tags else 63
    count_pq.cost = 0
    fill[313].insert(fill[313].index("s_barrier"), count_pq)
    for k in range(8, 26):
        for r in (0, 2):
            g = min(range(224 + 4 * k + 5, 336), key=lambda g: (load_of(fill, g), g))
            fill.setdefault(g, []).append(f"v_mov_b64 {v(V_XN+4*k+r,2)}, 0")
    print(gap_report("phase B", fill, NF))
    weave(e, spine, fill)
    stamp(e, opt, 3)
    stamp(e, opt, "bend")

    skv = Seg("m_skv")
    skv.label("M_SKV")
    flag_line(skv, 7, FL_KV, S_HA)
    flag_set(skv, S_WS, 7, f"s{S_KVSLOT}", 20)
    skv("s_branch M_SKV_RET")
    sq = Seg("m_sq")
    sq.label("M_SQ")
    sq(f"s_cmp_lt_u32 s{S_QT}, 8")
    sq("s_cbranch_scc1 M_SQ_RET")
    flag_set(sq, S_WS, 74, 0, V_XN)
    sq("s_branch M_SQ_RET")

    def spin(e, name, vd, voff, line, first=True):
        e("s_mov_b32 s6, 0")
        e.label(name)
        if first:
            e(f"buffer_load_dwordx2 {v(vd,2)}, v{voff}, s[{S_WS}:{S_WS+3}], s{line} offen sc1")
        e.wait_force(vm=0)
        flag_test(e, vd)
        e(f"s_cbranch_scc1 {name}_OK")
        e("s_sleep 2")
        if not first:
            e(f"buffer_load_dwordx2 {v(vd,2)}, v{voff}, s[{S_WS}:{S_WS+3}], s{line} offen sc1")
        e("s_add_u32 s6, s6, 1")
        e(f"s_cmp_lt_u32 s6, {PMAX}")
        e(f"s_cbranch_scc1 {name}")
        e.wait_force(vm=0)
        e.label(name + "_OK")

    late = Seg("m_late")
    late.label("M_LATE")
    spin(late, "M_PKV", VPK, V_FO, 73)
    for grp in attn.first_loads(S_WS):
        run(late, grp)
    late.wait_force(vm=0)
    late("s_branch M_LATE_RET")
    def q_loads(g):
        for k in range(16):
            if k and k % 4 == 0:
                g(f"s_add_u32 s{S_QB}, s{S_QB}, 4096")
            g(f"buffer_load_dwordx4 {a(A_Q+4*k,4)}, v{V_L16}, s[{S_WS}:{S_WS+3}], s{S_QB} offen offset:{(k%4)*1024} sc1", "q")

    gq = Seg("m_getq")
    gq.label("M_EQ")
    gq.wait_force(vm=younger[0])
    flag_test(gq, VPQ)
    gq("s_cbranch_scc0 M_EQ_RET")
    q_loads(gq)
    gq(f"s_mov_b32 s{S_GOTQ}, 1")
    gq("s_branch M_EQ_RET")
    gq.label("M_GETQ")
    gq(f"s_cmp_eq_u32 s{S_GOTQ}, {2 if opt.get('force_late') else 1}")
    gq("s_cbranch_scc1 M_GETQ_RET")
    if opt.get('force_late'):
        gq(f"s_mul_i32 s6, s{S_GOTQ}, 12288")
        gq(f"s_sub_u32 s{S_QB}, s{S_QB}, s6")
    spin(gq, "M_PQ", VPQ, VPQ + 2, 74)
    q_loads(gq)
    gq("s_branch M_GETQ_RET")
    wq = Seg("m_waitq")
    wq.label("M_WAITQ")
    wq.wait_force(vm=0)
    wq("s_branch M_WAITQ_RET")
    extra += [skv, sq, late, gq, wq]

    e(f"s_cmp_eq_u32 s{S_EARLY}, {2 if opt.get('force_late') else 1}")
    e("s_cbranch_scc0 M_LATE")
    e.label("M_LATE_RET")
    e(f"s_cmp_lt_u32 s{S_QT}, 8")
    e("s_cbranch_scc1 M_GETQ")
    e.label("M_GETQ_RET")
    stamp(e, opt, "polled")
    HS = V_XN + 4
    for k in range(28):
        nb, r = divmod(k, 8)
        e(f"v_cvt_pk_bf16_f32 v{HS+k}, v{H_ACC[nb]+2*r}, v{H_ACC[nb]+2*r+1}")
    srd(e, S_OUT, P_OUT, OUT_BYTES)
    attn.setup_v(e)
    e("s_getpc_b64 s[80:81]")
    e.label("M_PC_A")
    e("s_lshr_b32 s7, s2, 3")
    e("s_lshl_b32 s7, s7, 2")
    e("s_add_u32 s7, s7, s3")
    e("s_mul_i32 s7, s7, 512")
    e(f"v_min_u32 v{attn.V_X+3}, 3, v0")
    e(f"v_lshl_add_u32 v{attn.V_X+3}, v{attn.V_X+3}, 7, s7")
    e(f"v_min_u32 v{attn.V_X+3}, M_CODE_END-M_PC_A-8, v{attn.V_X+3}")
    attn.init_state(e, V_XN + 4 * 26)
    e(f"s_cmp_lt_u32 s{S_QT}, 8")
    e("s_cbranch_scc1 M_WAITQ")
    e.label("M_WAITQ_RET")
    stamp(e, opt, 4)
    stamp(e, opt, "a0")

    RA, RB, XR, VO, VP = 180, 32, 12, 2, 10

    def hooks(fill, NFE, ED):
        g = 6 * NFE - ED
        fill[g].extend(["s_cmp_eq_u32 s3, 0", "s_cbranch_scc1 M_SYA", "M_SYA_RET:"])
        ops = [f"s_lshl_b32 s7, s{S_QT}, 2", f"s_lshr_b32 s4, s{S_HEAD}, 2", "s_add_u32 s4, s4, s7",
               f"s_and_b32 s5, s{S_HEAD}, 3", "s_lshl_b32 s6, s3, 2", "s_add_u32 s5, s5, s6",
               "s_mul_i32 s6, s4, 28", "s_add_u32 s6, s6, s5", "s_lshl_b32 s6, s6, 10",
               f"s_add_u32 s53, s6, {Y_OFF}", "s_add_u32 s54, s53, 16384",
               f"v_and_b32 v{VO}, 31, v0", "v_lshrrev_b32 v3, 5, v0", "s_lshl_b32 s4, s4, 5", f"v_add_u32 v{VO}, s4, v{VO}",
               f"v_mul_u32_u24 v{VO}, 896, v{VO}", f"v_lshl_add_u32 v{VO}, v3, 3, v{VO}", "s_lshl_b32 s5, s5, 5",
               f"v_add_u32 v{VO}, s5, v{VO}"]
        ops += [f"buffer_load_dwordx2 {v(XR+2*k,2)}, v{VO}, s[{S_X}:{S_X+3}], 0 offen offset:{(k>>1)*512+(k&1)*16}" for k in range(4)]
        ops += [lambda e: flag_line(e, 55, FL_Y, S_QT), lambda e: flag_line(e, 63, FL_YA, S_QT)]
        pour(fill, ops, 5 * NFE + 2, 5 * NFE + 34)
        fill.setdefault(6 * NFE + opt.get("g_pa", 22), []).append(
            (f"buffer_load_dwordx2 {v(VP,2)}, v{V_FO}, s[{S_WS}:{S_WS+3}], s63 offen sc1", "pa"))

    sya = Seg("m_sya")
    sya.label("M_SYA")
    sya(f"s_lshl_b32 s6, s{S_HEAD}, 3")
    flag_set(sya, S_WS, 63, "s6", 20)
    sya("s_branch M_SYA_RET")
    extra.append(sya)

    def finish(e):
        stamp(e, opt, "yend")

        def loads(base, sreg, tag):
            for h in range(16):
                e(f"buffer_load_dwordx4 {v(base+4*h,4)}, v{V_L16}, s[{S_WS}:{S_WS+3}], s{sreg} offen sc1", tag)
                if h < 15:
                    e(f"s_add_u32 s{sreg}, s{sreg}, {64*28*1024}")

        def reduce(base, xr, off):
            acc, t = 20, 28
            for r in range(4):
                e(f"v_lshlrev_b32 v{acc+2*r}, 16, v{xr+r}")
                e(f"v_and_b32 v{acc+1+2*r}, 0xffff0000, v{xr+r}")
            for h in range(16):
                for r in range(4):
                    src = base + 4 * h + r
                    u = t + 2 * (r & 1)
                    e(f"v_lshlrev_b32 v{u}, 16, v{src}")
                    e(f"v_and_b32 v{u+1}, 0xffff0000, v{src}")
                    e(f"v_pk_add_f32 {v(acc+2*r,2)}, {v(acc+2*r,2)}, {v(u,2)}")
            for r in range(4):
                e(f"v_cvt_pk_bf16_f32 v{xr+r}, v{acc+2*r}, v{acc+1+2*r}")
            e(f"buffer_store_dwordx2 {v(xr,2)}, v{VO}, s[{S_OUT}:{S_OUT+3}], 0 offen offset:{off}")
            e(f"buffer_store_dwordx2 {v(xr+2,2)}, v{VO}, s[{S_OUT}:{S_OUT+3}], 0 offen offset:{off+16}")

        flag_test(e, VP)
        e("s_cselect_b32 s60, 1, 0")
        e("s_cbranch_scc0 M_NOA")
        loads(RA, 53, "ra")
        e.wait_force(vm=16)
        e("s_branch M_A1")
        e.label("M_NOA")
        e.wait_force(vm=0)
        e.label("M_A1")
        e("s_barrier")

        e("s_cmp_lg_u32 s3, 3")
        e("s_cbranch_scc1 M_PA_OK")
        e(f"s_lshl_b32 s6, s{S_HEAD}, 3")
        flag_set(e, S_WS, 55, "s6", 20)
        e("s_cmp_eq_u32 s60, 1")
        e("s_cbranch_scc1 M_PA_OK")
        spin(e, "M_PA", VP, V_FO, 63)
        e("s_barrier")
        e("s_cmp_eq_u32 s60, 1")
        e("s_cbranch_scc1 M_A2")
        loads(RA, 53, "ra")
        e.label("M_A2")
        e("s_cmp_eq_u32 s3, 3")
        e("s_cbranch_scc1 M_W3")
        e.wait_force(vm=0)
        reduce(RA, XR, 0)
        e("s_barrier")
        stamp(e, opt, "ypoll")
        e.vm = []
        loads(RB, 54, "rb")
        reduce(RB, XR + 4, 512)
        e("s_branch M_DONE")
        e.label("M_W3")
        spin(e, "M_PB", VP, V_FO, 55)
        e("s_barrier")
        stamp(e, opt, "ypoll")
        reduce(RA, XR, 0)
        e.label("M_DONE")
        stamp(e, opt, 5)
        stamp(e, opt, "end")
        stamp_flush(e, opt, 0, S_WS, 6)

    aopt = dict(opt)
    aopt["code_pf"] = not opt.get("no_cpf")
    aopt["stash"] = HS
    aopt["kv2"] = (S_HA, S_KVSLOT, V_FO, sum((kv_epi(b, attn.V_X + 12) for b in range(12, 16)), []))
    if not opt.get("sp"):
        aopt["sp"] = ["none"]
        aopt["spk"] = ""
    asegs, atraces = attn.gen_attn(e, aopt, "M_END", finish, hooks)
    z = Seg("m_z")
    z.label("M_CODE_END")
    segs += asegs + extra + [z]
    for t in traces[1:]:
        t.append(e)
    traces += atraces + [[tails[0], fb, e]] + [[x] for x in extra]
    return segs, traces
```

```python
from emit import *
from common import *

LDS_BYTES = 160 * 1024
S_WS, S_WO, S_W2, S_Y1 = 16, 8, 12, 28
V_L16, V_PD = 1, 2
V_DMA, V_DMA2 = 3, 4
V_L0, V_L1, V_VA, V_HA, V_D0, V_NEGBIG, V_MAX, V_MS = 8, 9, 10, 11, 13, 14, 15, 16
V_T = 18
V_S = (32, 48)
V_P = (64, 72)
V_NM = 80
V_X = 96
V_O = 128
A_Q, A_Q2, A_F, A_HF = 0, 64, 128, 192
S_HEAD, S_QT, S_NH, S_IT, S_T, S_RET, S_DELTA, S_ITH, S_OFFH, S_OFFD = 32, 33, 34, 35, 36, 37, 38, 39, 40, 41
S_KVB, S_W4K, S_PAIR, S_ITSW, S_ITSIG, S_PEND = 42, 43, 48, 49, 50, 51
S_OFF = 44
THR = 16.0
VSLOT = {32: 0x20000, 33: 0x24000}
S_NEG, S_QS, S_PFO, S_PFD, S_PUB = 52, 82, 83, 84, 78
V_KP = 12
KPD = 7
KVM = [""]


def setup_s(e):
    e(f"s_lshl_b32 s4, s{S_QT}, 2")
    e(f"s_sub_u32 s{S_NH}, 30, s4")
    e(f"s_sub_u32 s6, 15, s{S_QT}")
    e(f"s_cmp_ge_u32 s{S_QT}, 8")
    e(f"s_cselect_b32 s{S_NH}, 0, s{S_NH}")
    e(f"s_cselect_b32 s{S_PAIR}, s6, s{S_QT}")
    e(f"s_lshl_b32 s5, s{S_HEAD}, 3")
    e(f"s_add_u32 s{S_PAIR}, s{S_PAIR}, s5")
    e(f"s_lshl_b32 s{S_W4K}, s3, 12")
    e(f"s_lshl_b32 s{S_KVB}, s{S_HEAD}, 21")
    e(f"s_sub_u32 s5, 29, s{S_NH}")
    e("s_lshl_b32 s5, s5, 15")
    e(f"s_add_u32 s{S_OFFH}, s5, s{S_KVB}")
    e("s_lshl_b32 s5, s4, 15")
    e(f"s_add_u32 s{S_OFFD}, s5, s{S_KVB}")
    e(f"s_sub_u32 s5, s{S_NH}, 6")
    e("s_lshr_b32 s5, s5, 2")
    e(f"s_cmp_ge_u32 s{S_NH}, 6")
    e(f"s_cselect_b32 s{S_ITH}, s5, 99")
    e(f"s_lshr_b32 s5, s{S_NH}, 2")
    e(f"s_cmp_ge_u32 s{S_QT}, 8")
    e(f"s_cselect_b32 s{S_ITSW}, 99, s5")
    e(f"s_mov_b32 s{S_ITSIG}, s{S_ITSW}")
    e("s_cmp_eq_u32 s3, 0")
    e(f"s_cselect_b32 s{S_ITSIG}, s{S_ITSIG}, 99")
    e(f"s_mov_b32 s{S_NEG}, 0xffff8000")
    e(f"s_mov_b32 s{S_PEND}, 0")
    e(f"s_mov_b32 s{S_IT}, 0")
    e(f"s_mov_b32 s{S_T}, {f32(THR)}")


def setup_dma(e):
    e(f"v_lshlrev_b32 v{V_L16}, 4, v0")
    e(f"v_add_u32 v{V_DMA}, s{S_W4K}, v{V_L16}")
    e(f"v_add_u32 v{V_DMA2}, 0x4000, v{V_DMA}")


def setup_v(e):
    e(f"s_mul_i32 s5, s{S_QT}, 112")
    e("s_mul_i32 s6, s3, 28")
    e("s_add_u32 s5, s5, s6")
    e(f"v_min_u32 v{V_T}, 27, v0")
    e(f"v_add_u32 v{V_T}, s5, v{V_T}")
    e(f"s_mul_i32 s5, s{S_HEAD}, 229376")
    e(f"v_lshl_add_u32 v{V_X+1}, v{V_T}, 7, s5")
    e("s_mul_i32 s6, s3, 13")
    e(f"v_min_u32 v{V_T}, 12, v0")
    e(f"v_add_u32 v{V_T}, s6, v{V_T}")
    e(f"v_min_u32 v{V_T}, 48, v{V_T}")
    e(f"s_mul_i32 s5, s{S_QT}, 49")
    e(f"v_add_u32 v{V_T}, s5, v{V_T}")
    e(f"s_mul_i32 s5, s{S_HEAD}, 100352")
    e(f"v_lshl_add_u32 v{V_X+2}, v{V_T}, 7, s5")
    e(f"v_add_u32 v{V_VA}, 0x10000, v{V_L16}")
    e(f"v_and_b32 v{V_T}, 31, v0")
    e(f"v_lshrrev_b32 v{V_T+1}, 5, v0")
    e(f"v_lshlrev_b32 v{V_T+1}, 2, v{V_T+1}")
    e(f"v_sub_u32 v{V_D0}, v{V_T}, v{V_T+1}")
    e(f"v_mov_b32 v{V_NEGBIG}, {f32(-1e30)}")
    e(f"s_mov_b32 s{S_QS}, {f32(QSCALE)}")
    e("s_cmp_eq_u32 s3, 0")
    e(f"s_cselect_b32 s{S_PUB}, 2, 0")
    e(f"s_and_b32 s5, s{S_QT}, 7")
    e("s_lshl_b32 s5, s5, 2")
    e("s_add_u32 s5, s5, s3")
    e("s_lshl_b32 s5, s5, 10")
    e(f"v_and_b32 v{V_T}, 7, v0")
    e(f"v_lshl_add_u32 v{V_KP}, v{V_T}, 7, s5")
    e(f"v_bfe_u32 v{V_T}, v0, 3, 2")
    e(f"v_lshl_add_u32 v{V_KP}, v{V_T}, 15, v{V_KP}")
    e(f"s_cmp_ge_u32 s{S_QT}, 8")
    e(f"s_cselect_b32 s{S_PFO}, {29 - KPD - 3}, {30 + KPD}")
    e(f"s_cselect_b32 s{S_PFD}, -4, 4")
    e("s_mul_i32 s5, s3, 7168")
    e("s_add_u32 s5, s5, 0x20000")
    e(f"v_add_u32 v{V_HA}, s5, v{V_L16}")


def idx_ops(dst, n):
    return [
        f"s_mov_b32 s{dst}, {(29-n) << 15}",
        f"s_cmp_gt_u32 s{S_NH}, {n}",
        f"s_cselect_b32 s{dst}, {(30+n) << 15}, s{dst}",
        f"s_add_u32 s{dst}, s{dst}, s{S_KVB}",
    ]


def dmaK(slot, off, tag="dma", S_WS=S_WS):
    return [f"s_add_u32 m0, s{S_W4K}, {slot*16384}"] + [
        (f"buffer_load_dwordx4 v{V_DMA}, s[{S_WS}:{S_WS+3}], s{off} offen offset:{j*1024}{KVM[0]} lds", tag) for j in range(4)]


def dmaV(base, off, tag="dma", S_WS=S_WS):
    return [f"s_add_u32 m0, s{S_W4K}, {base}"] + [
        (f"buffer_load_dwordx4 v{V_DMA2}, s[{S_WS}:{S_WS+3}], s{off} offen offset:{j*1024}{KVM[0]} lds", tag) for j in range(4)]


def first_loads(sr=S_WS):
    out = [[idx_ops(S_OFF + n, n)] for n in range(4)]
    seq = [out[0] + dmaK(0, S_OFF + 0, "k0", sr), dmaV(0x10000, S_OFF + 0, "v0", sr), out[1] + dmaK(1, S_OFF + 1, "k1", sr),
           dmaV(0x14000, S_OFF + 1, "v1", sr), out[2] + dmaK(2, S_OFF + 2, "k2", sr), out[3] + dmaK(3, S_OFF + 3, "k3", sr)]
    return seq


def init_state(e, o_from=V_O):
    for r in range(o_from, V_O + 128, 2):
        e(f"v_mov_b64 {v(r,2)}, 0")
    for r in range(0, 16, 2):
        e(f"v_mov_b64 {v(V_NM+r,2)}, 0")
    e(f"v_mov_b64 {v(V_L0,2)}, 0")


def gen_attn(e, opt, end_label, finish=None, hooks=None):
    D = opt.get("a_depth", 14)
    WG = opt.get("a_waitgrp", 4)
    YM = opt.get("y_store_mod", "")
    KPF = 1 if opt.get("kpf") else 0
    NEPF = 3 if opt.get("loop_epf") else 0

    def rd(f, kslot, vbase):
        d = a(A_F + (f % 16) * 4, 4)
        if f < 16:
            return f"ds_read_b128 {d}, v{V_L16} offset:{kslot*16384 + f*1024}"
        g, dt = divmod(f - 16, 8)
        return f"ds_read_b128 {d}, v{V_VA} offset:{vbase + (dt*2+g)*1024}"

    def mf(f, par):
        fr = a(A_F + (f % 16) * 4, 4)
        if f < 16:
            S = v(V_S[par ^ 1], 16)
            C = v(V_NM, 16) if f == 0 else S
            return f"{MFMA} {S}, {fr}, {a(A_Q+4*f,4)}, {C}"
        g, dt = divmod(f - 16, 8)
        O = v(V_O + dt * 16, 16)
        return f"{MFMA} {O}, {fr}, {v(V_P[par]+4*g,4)}, {O}"

    def max_ops(par):
        S = V_S[par]
        t = V_T
        ops = [f"v_max3_f32 v{t+k}, v{S+3*k}, v{S+3*k+1}, v{S+3*k+2}" for k in range(5)]
        ops += [f"v_max3_f32 v{t}, v{t}, v{t+1}, v{t+2}", f"v_max3_f32 v{t+3}, v{t+3}, v{t+4}, v{S+15}",
                f"v_max_f32 v{V_MAX}, v{t}, v{t+3}", f"v_cmp_lt_f32 vcc, s{S_T}, v{V_MAX}"]
        return ops

    def soft_ops(par):
        S, P = V_S[par], V_P[par]
        ops = []
        for k in range(9):
            if k < 8:
                ops += [f"v_exp_f32 v{S+2*k}, v{S+2*k}", f"v_exp_f32 v{S+2*k+1}, v{S+2*k+1}"]
            if k > 0:
                j = k - 1
                ops += [f"v_cvt_pk_bf16_f32 v{P+j}, v{S+2*j}, v{S+2*j+1}",
                        f"v_add_f32 v{V_L0}, v{V_L0}, v{S+2*j}", f"v_add_f32 v{V_L1}, v{V_L1}, v{S+2*j+1}"]
        return ops

    def mask_ops(par, t):
        S = V_S[par]
        ops = [[f"s_sub_u32 s54, {t}, s3", "s_lshl_b32 s54, s54, 5", f"v_subrev_u32 v{V_X}, s54, v{V_D0}"]]
        for h in range(4):
            for r in range(4 * h, 4 * h + 4):
                ops.append(f"v_cmp_le_i32 s[{64+2*(r%8)}:{65+2*(r%8)}], {8*(r>>2)+(r&3)}, v{V_X}")
            if h > 0:
                for r in range(4 * h - 4, 4 * h):
                    ops.append(f"v_cndmask_b32 v{S+r}, v{V_NEGBIG}, v{S+r}, s[{64+2*(r%8)}:{65+2*(r%8)}]")
        ops.append("s_nop 0")
        for r in range(12, 16):
            ops.append(f"v_cndmask_b32 v{S+r}, v{V_NEGBIG}, v{S+r}, s[{64+2*(r%8)}:{65+2*(r%8)}]")
        return ops

    def waits(fill, lo, hi, shift=0):
        for f in range(lo, hi, WG):
            r = a(A_F + ((f + WG - 1) % 16) * 4, 4)
            fill.setdefault(f - 1 - shift, []).append(lambda e, r=r: wait_reg(e, r))

    def place(fill, ops, g0, step=2):
        fill.setdefault(g0, []).append(ops[0])
        for j, d in enumerate(ops[1:]):
            fill.setdefault(g0 + 1 + step * j, []).append(d)

    rare_sites = {0: [], 1: []}
    stubs = Seg("a_stubs")

    def rare_check(e, par, name):
        k = len(rare_sites[par])
        rare_sites[par].append(name)
        e(f"s_cbranch_vccnz A_ST_{name}")
        e.label(f"A_RET_{name}")
        stubs.label(f"A_ST_{name}")
        stubs(f"s_mov_b32 s{S_RET}, {k}")
        stubs(f"s_branch A_RARE{par}")

    V_EV, V_EA = V_X + 4, V_X + 8

    def e_setup():
        ops = ["v_lshrrev_b32 v24, 3, v0", "v_mul_u32_u24 v24, 896, v24", "v_bfe_u32 v25, v0, 2, 1", "v_bfe_u32 v26, v0, 4, 1",
               "v_xor_b32 v25, v25, v26", "v_lshl_add_u32 v24, v25, 6, v24", "v_and_b32 v25, 3, v0",
               f"v_lshl_add_u32 v{V_EV}, v25, 4, v24"]
        ops += [f"v_add_u32 v{V_EV+j}, {j*7168 - j*1024}, v{V_EV}" for j in range(1, 4)]
        ops += [f"s_mul_i32 s56, s{S_HEAD}, 229376", "s_mul_i32 s4, s3, 57344", "s_add_u32 s56, s56, s4",
                f"s_mul_i32 s57, s{S_HEAD}, 100352", "s_mul_i32 s4, s3, 28672", "s_add_u32 s57, s57, s4",
                "s_lshl_b32 s60, s3, 13"]
        ops += ["v_lshrrev_b32 v24, 5, v0", "v_bfe_u32 v25, v0, 2, 2", "v_lshl_add_u32 v24, v24, 2, v25", "v_lshlrev_b32 v24, 7, v24",
                "v_lshl_add_u32 v24, v26, 5, v24", "v_and_b32 v25, 3, v0", "v_lshl_add_u32 v24, v25, 3, v24", "v_bfe_u32 v25, v0, 3, 1",
                f"v_lshl_add_u32 v{V_EA}, v25, 6, v24", f"v_xor_b32 v{V_EA+1}, 64, v{V_EA}"]
        ops += [f"s_lshl_b32 s62, s{S_HEAD}, 6", f"s_lshl_b32 s4, s{S_QT}, 2", "s_add_u32 s62, s62, s4", "s_add_u32 s62, s62, s3",
                "s_mul_i32 s62, s62, 28672", f"s_add_u32 s62, s62, {Y_OFF}"]
        return ops

    def e_dma(tag="edma"):
        ops = []
        for grp in range(2):
            ops.append(["s_add_u32 s61, s58, s60", f"s_add_u32 m0, s61, {grp*4096}", f"s_add_u32 s61, s56, {grp*32*896}"])
            for j in range(4):
                ops.append((f"buffer_load_dwordx4 v{V_EV+j}, s[{S_WO}:{S_WO+3}], s61 offen offset:{j*1024} lds", tag))
        ops.append([f"s_add_u32 m0, s59, s{S_W4K}", "s_add_u32 s56, s56, 128"])
        for j in range(4):
            ops.append((f"buffer_load_dwordx4 v{V_EV+j}, s[{S_W2}:{S_W2+3}], s57 offen offset:{j*1024} lds", tag))
        ops.append("s_add_u32 s57, s57, 128")
        return ops

    EO = (0x8000, 0x14000, 0x20000)
    E2 = (0x10000, 0x1c000, 0x0)

    e.wait_tag("q")
    e.wait_tag("k0")
    e.wait(lgkm=0)
    e("s_barrier")
    HS = opt["stash"]
    for k in range(7):
        e(f"ds_write_b128 v{V_HA}, {v(HS+4*k,4)} offset:{k*1024}")
    for f in range(D):
        e(rd(f, 0, 0))
    spine = [mf(f, 1) for f in range(16)]
    fill = {}
    waits(fill, 0, 16)
    for f in range(16):
        nf = f + D
        if nf == 16:
            fill.setdefault(f, []).extend([lambda e: e.wait_tag("k1"), lambda e: e.wait(lgkm=0), "s_barrier"])
        fill.setdefault(f, []).append(rd(nf % 16, 0 if nf < 16 else 1, 0))
    weave(e, spine, fill)
    run(e, idx_ops(S_OFF + 0, 4))
    e(f"s_cmp_gt_u32 s{S_NH}, 4")
    e(f"s_cselect_b32 s{S_DELTA}, 0x8000, s{S_NEG}")
    run(e, dmaK(0, S_OFF + 0, "k4"))
    run(e, max_ops(0))
    stamp(e, opt, 1, raw=True)
    stamp(e, opt, "a_loop", raw=True)
    e(f"s_mov_b32 s{S_RET}, 0")
    e("s_branch A_FIRST")
    pro = e
    stateL, stateV = list(e.lds), [("dma", frozenset())] * 63

    def step(e, p, n=None, q0=False):
        par = p & 1
        nm = (f"Q{p}" if q0 else f"L{p}") if n is None else f"P{n}"
        sx = "_Q" if q0 else ""
        if p == 1:
            e(f"s_cmp_eq_u32 s{S_IT}, s{S_ITSW}")
            e(f"s_cbranch_scc1 A_SW1")
            e.label(f"A_SW1_RET_{nm}")
        spine = [mf(f, par) for f in range(32)]
        fill = {}
        waits(fill, 0, 32)
        vb = p * 16384 if n not in VSLOT else VSLOT[n] - 0x10000
        gb = 32 - D
        if n == 32:
            fill.setdefault(-1, []).append(f"v_add_u32 v{V_VA}, 0x10000, v{V_VA}")
            vb = 0
        for f in range(32):
            nf = f + D
            if nf == 32 and (n is None or n <= 30):
                vm = (8 + (NEPF if p in (0, 3) else 0) + (KPF if (p in (0, 1) and n is None) else 0)) if (n is None or n < 29) else (16 if n == 29 else 0)
                if q0:
                    fill.setdefault(f, []).extend([lambda e: e.wait_tags((f"k{p+2}", f"v{p+1}")), "s_barrier"])
                elif n == 28 or n == 29:
                    fill.setdefault(f, []).extend([lambda e, vm=vm + 2: e.wait_force(vm=vm), "s_barrier"])
                elif n is None and p == 2:
                    fill.setdefault(f, []).extend([f"s_cmp_eq_u32 s{S_IT}, s{S_ITSW}", "s_cbranch_scc1 A_ALTW",
                                                   lambda e, vm=vm: e.wait_force(vm=vm), "A_ALTW_RET:", "s_barrier"])
                else:
                    fill.setdefault(f, []).extend([lambda e, vm=vm: e.wait_force(vm=vm), "s_barrier"])
            if nf < 32:
                fill.setdefault(f, []).append(rd(nf, (p + 1) % 4, vb))
            elif n != 32:
                fill.setdefault(f, []).append(rd(nf - 32, (p + 2) % 4, 0))
        if n is None or n <= 29:
            place(fill, dmaV(0x10000 + ((p + 2) % 4) * 16384, S_OFF + (p + 2) % 4, f"v{p+2}"), 0)
        if n is None or n <= 28:
            o = [f"s_add_u32 s{S_OFF+(p+1)%4}, s{S_OFF+p}, s{S_DELTA}"]
            if p == 1:
                d = S_OFF + 2
                o += [[f"s_cmp_eq_u32 s{S_IT}, s{S_ITH}", f"s_cselect_b32 s{d}, s{S_OFFH}, s{d}", f"s_cselect_b32 s{S_DELTA}, s{S_NEG}, s{S_DELTA}"],
                      [f"s_cmp_eq_u32 s{S_IT}, 6", f"s_cselect_b32 s{d}, s{S_OFFD}, s{d}", f"s_cselect_b32 s{S_DELTA}, 0x8000, s{S_DELTA}"]]
            else:
                pass
            place(fill, dmaK((p + 1) % 4, S_OFF + (p + 1) % 4, f"k{p+5}"), gb, 3)
            pour(fill, o, 9, gb)
        if n == 29:
            place(fill, dmaV(VSLOT[32], S_OFF + 0), 8, 1)
            place(fill, dmaV(VSLOT[33], S_OFF + 1), 13, 1)
        if n == 28:
            fill.setdefault(10, []).append((f"buffer_load_dword v{V_PD}, v{V_X+1}, s[{S_WO}:{S_WO+3}], 0 offen", "pf"))
            fill.setdefault(14, []).append((f"buffer_load_dword v{V_PD}, v{V_X+2}, s[{S_W2}:{S_W2+3}], 0 offen", "pf"))
            pour(fill, e_setup(), 9, 31)
        if n == 30:
            fill.setdefault(gb, []).extend([f"s_mov_b32 s58, {EO[0]}", f"s_mov_b32 s59, {E2[0]}"])
            pour(fill, e_dma("e0"), gb + 1, 32)
        if n is None and p == 3:
            fill.setdefault(gb + 2, []).extend([f"s_cmp_eq_u32 s{S_IT}, s{S_ITSIG}", "s_cbranch_scc1 A_SIG", f"A_SIG_RET{sx}:"])
        if n is None and p == 2:
            if not q0:
                fill.setdefault(9, []).extend([f"s_bitcmp1_b32 10, s{S_IT}", "s_cbranch_scc1 A_KV2L", "A_KV2L_RET:"])
            fill.setdefault(gb + 2, []).extend([f"s_cmp_lt_u32 s{S_IT}, s{S_PUB}", "s_cbranch_scc1 A_KV2S", f"A_KV2S_RET{sx}:"])
        if n == 31:
            fill.setdefault(2, []).extend([lambda e: flag_line(e, 55, FL_PAIR, S_PAIR), f"v_mov_b32 v{V_X+12}, 8"])
            fill.setdefault(4, []).append((f"buffer_load_dwordx2 {v(V_X+14,2)}, v{V_X+12}, s[{S_WS}:{S_WS+3}], s55 offen sc1", "ep"))
        if n is None and p == 0 and KPF:
            fill.setdefault(9, []).append([f"s_max_i32 s53, s{S_PFO}, 0", "s_min_i32 s53, s53, 60", "s_lshl_b32 s53, s53, 15",
                                           f"s_add_u32 s53, s53, s{S_KVB}"])
            fill.setdefault(11, []).append((f"buffer_load_dword v{V_PD}, v{V_KP}, s[{S_WS}:{S_WS+3}], s53 offen", "pf"))
            fill.setdefault(12, []).append(f"s_add_i32 s{S_PFO}, s{S_PFO}, s{S_PFD}")
        if n is None and p == 3 and NEPF:
            fill.setdefault(10, []).append((f"buffer_load_dword v{V_PD}, v{V_X+1}, s[{S_WO}:{S_WO+3}], 0 offen", "pf"))
            fill.setdefault(12, []).append((f"buffer_load_dword v{V_PD}, v{V_X+2}, s[{S_W2}:{S_W2+3}], 0 offen", "pf"))
            if NEPF == 3:
                fill.setdefault(14, []).append((f"global_load_dword v{V_PD}, v{V_X+3}, s[80:81]", "pf"))
        if n is None:
            RW, X_, T_, OU = V_X + 24, V_X + 28, V_T + 6, V_T + 10
            h = p >> 1
            if p == 0:
                fill.setdefault(0, []).append(f"ds_read_b128 {v(RW,4)}, v{V_HA}")
            if p % 2 == 0:
                sl = []
                for r in range(2):
                    sl += [f"v_lshlrev_b32 v{X_+2*r}, 16, v{RW+2*h+r}", f"v_and_b32 v{X_+2*r+1}, 0xffff0000, v{RW+2*h+r}"]
                sl += [f"v_mul_f32 v{T_+r}, {f32(-1.4426950408889634 / QSCALE)}, v{X_+r}" for r in range(4)]
                sl += [f"v_exp_f32 v{T_+r}, v{T_+r}" for r in range(4)]
            else:
                sl = [f"v_fma_f32 v{T_+r}, v{T_+r}, s{S_QS}, s{S_QS}" for r in range(4)]
                sl += [f"v_rcp_f32 v{T_+r}, v{T_+r}" for r in range(4)]
                sl += [f"v_mul_f32 v{T_+r}, v{T_+r}, v{X_+r}" for r in range(4)]
                sl += [f"v_cvt_pk_bf16_f32 v{OU+2*h+r}, v{T_+2*r}, v{T_+2*r+1}" for r in range(2)]
                if p == 3:
                    sl += [f"ds_write_b128 v{V_HA}, {v(OU,4)}", f"v_add_u32 v{V_HA}, 0x400, v{V_HA}"]
            silu = sl
        else:
            silu = []
        if n == 28:
            fill.setdefault(-1, []).append(f"v_subrev_u32 v{V_HA}, 0x1c00, v{V_HA}")
            for k in range(7):
                fill.setdefault(k, []).append(f"ds_read_b128 {a(A_HF+4*k,4)}, v{V_HA} offset:{k*1024}")
        so = soft_ops(par)
        mo = (mask_ops(par ^ 1, n - 29) if n is not None and n >= 29 else []) + max_ops(par ^ 1)
        sa = [x for x in so if not x.startswith("v_add")]
        pour(fill, sa[:14], 0, 13)
        pour(fill, sa[14:], 13, 23)
        pour(fill, mo, 19 if len(mo) > 9 else 21, 32)
        pour(fill, silu, 14 if p == 0 else 0, 17 if p == 3 else 32)
        if q0:
            kv3 = opt["kv2"][3]
            cut = [0, 32, 64, 96, len(kv3)]
            pour(fill, kv3[cut[p]:cut[p+1]], 0, 12 if p == 3 else 32)
        for x in so:
            if x.startswith("v_add"):
                src = x.split(",")[-1].strip()
                g0 = [g for g in fill for y in fill[g] if isinstance(y, str) and y.startswith(f"v_exp_f32 {src},")][0]
                g = min(range(g0 + 1, 32), key=lambda g: (load_of(fill, g), g))
                fill[g].append(x)
        if n is None:
            def drop(pred):
                for g in fill:
                    fill[g] = [x for x in fill[g] if not pred(x)]
            txt = lambda x: x[0] if isinstance(x, tuple) else (x if isinstance(x, str) else "")
            if opt.get("x_nobar"):
                drop(lambda x: txt(x) == "s_barrier")
            if opt.get("x_nodma"):
                drop(lambda x: " lds" in txt(x))
            if opt.get("x_novalu"):
                drop(lambda x: txt(x).startswith(("v_exp", "v_add_f32", "v_cvt", "v_max", "v_mul", "v_rcp", "v_fma", "v_lshl", "v_and")))
            if opt.get("x_noexp"):
                for g in fill:
                    fill[g] = [x.replace("v_exp_f32", "v_mov_b32").replace("v_rcp_f32", "v_mov_b32") if isinstance(x, str) else x for x in fill[g]]
        if opt.get("verbose"):
            print(gap_report(f"step {nm}", fill, 32), [load_of(fill, g) for g in range(32)])
        weave(e, spine, fill)
        if p == 1:
            e(f"s_cmp_eq_u32 s{S_IT}, s{S_ITSW}")
            e("s_cbranch_scc1 A_SW2")
        rare_check(e, par, nm)

    q0 = Seg("a_q0", stateL, pro.vm)
    q0.label("A_Q0")
    for p in range(4):
        step(q0, p, q0=True)
    q0(f"s_mov_b32 s{S_IT}, 1")
    assert q0.lds == stateL
    lp = Seg("a_loop", stateL, stateV)
    lp.label("A_LOOP")
    for p in range(4):
        step(lp, p)
    lp(f"s_add_u32 s{S_IT}, s{S_IT}, 1")
    for it in range(1, 8):
        if f"ai{it}" in opt.get("sp", []):
            lp(f"s_cmp_lg_u32 s{S_IT}, {it}")
            lp(f"s_cbranch_scc1 A_NS{it}")
            stamp(lp, opt, f"ai{it}", raw=True)
            lp.label(f"A_NS{it}")
    lp(f"s_bitcmp1_b32 20, s{S_IT}")
    lp("s_cbranch_scc1 A_KV2C")
    lp(f"s_cmp_lt_u32 s{S_IT}, 7")
    lp("s_cbranch_scc1 A_LOOP")
    stamp(lp, opt, "a_lend", raw=True)
    assert lp.lds == stateL

    peel = {}
    for n in range(28, 33):
        sg = Seg(f"a_p{n}", stateL, stateV)
        step(sg, n % 4, n)
        if n == 31:
            sg(f"s_cmp_ge_u32 s{S_QT}, 8")
            sg("s_cbranch_scc1 A_EARLY")
            sg.label("A_EARLY_RET")
        if n >= 29 and n < 32:
            sg(f"s_cmp_eq_u32 s3, {n-29}")
            sg(f"s_cbranch_scc1 A_TAILW{n-29}")
        peel[n] = sg

    def signal(e):
        flag_line(e, 55, FL_PAIR, S_PAIR)
        flag_set(e, S_WS, 55, 1, V_X + 12)
        e(f"s_mov_b32 s{S_PEND}, 0")

    def tail_body(e, par):
        e.wait(lgkm=0)
        for f in range(16, 16 + D):
            e(rd(f, 0, 0))
        so = soft_ops(par)
        run(e, so[:22])
        spine = [mf(f, par) for f in range(16, 32)]
        fill = {}
        waits(fill, 16, 32, 16)
        for f in range(16, 32):
            if f + D < 32:
                fill.setdefault(f - 16, []).append(rd(f + D, 0, 0))
        pour(fill, so[22:], 0, 7)
        weave(e, spine, fill)

    t3 = Seg("a_tail1", stateL, stateV)
    t3(f"v_add_u32 v{V_VA}, 0x4000, v{V_VA}")
    t3.label("A_TAIL1")
    tail_body(t3, 1)
    t3.label("A_FIN")
    t0 = Seg("a_tail0", stateL, stateV)
    t0.label("A_TAILW0")
    t0(f"v_add_u32 v{V_VA}, 0x8000, v{V_VA}")
    t0("s_branch A_TAIL0")
    t0.label("A_TAILW1")
    t0(f"v_add_u32 v{V_VA}, 0xc000, v{V_VA}")
    t0("s_branch A_TAIL1")
    t0.label("A_TAILW2")
    t0(f"v_add_u32 v{V_VA}, 0x10000, v{V_VA}")
    t0.label("A_TAIL0")
    tail_body(t0, 0)
    t0("s_cmp_lg_u32 s3, 0")
    t0("s_cbranch_scc1 A_FIN")
    t0.wait_force(vm=0)
    t0("s_barrier")
    t0(f"s_mov_b32 s58, {EO[0]}")
    t0(f"s_mov_b32 s59, {E2[0]}")
    run(t0, e_dma("e0"))
    t0(f"s_cmp_eq_u32 s{S_PEND}, 0")
    t0("s_cbranch_scc1 A_FIN")
    signal(t0)
    t0("s_branch A_FIN")

    def ret_chain(e, names):
        for k, nm in enumerate(names[:-1]):
            e(f"s_cmp_eq_u32 s{S_RET}, {k}")
            e(f"s_cbranch_scc1 A_RET_{nm}")
        e(f"s_branch A_RET_{names[-1]}")

    def rare(par):
        e = Seg(f"a_rare{par}", stateL, stateV)
        e.label(f"A_RARE{par}")
        S = V_S[par ^ 1]
        t = V_T
        e(f"v_mov_b32 v{t}, v{V_MAX}")
        e.nop(2)
        e(f"v_permlane32_swap_b32 v{V_MAX}, v{t}")
        e(f"v_max3_f32 v{t}, v{V_MAX}, v{t}, 0")
        e(f"v_exp_f32 v{t+1}, -v{t}")
        for r in range(16):
            e(f"v_sub_f32 v{S+r}, v{S+r}, v{t}")
        for r in range(16):
            e(f"v_sub_f32 v{V_NM+r}, v{V_NM+r}, v{t}")
        e(f"v_mul_f32 v{V_L0}, v{V_L0}, v{t+1}")
        e(f"v_mul_f32 v{V_L1}, v{V_L1}, v{t+1}")
        for r in range(128):
            e(f"v_mul_f32 v{V_O+r}, v{V_O+r}, v{t+1}")
        ret_chain(e, rare_sites[par])
        return e

    r0, r1 = rare(0), rare(1)

    fs = Seg("a_first", stateL, stateV)
    e = fs
    e.label("A_FIRST")
    t = V_T
    e(f"v_mov_b32 v{t}, v{V_MAX}")
    e.nop(2)
    e(f"v_permlane32_swap_b32 v{V_MAX}, v{t}")
    e(f"v_max_f32 v{t}, v{V_MAX}, v{t}")
    for r in range(16):
        e(f"v_sub_f32 v{V_S[0]+r}, v{V_S[0]+r}, v{t}")
    for r in range(16):
        e(f"v_sub_f32 v{V_NM+r}, 0, v{t}")
    e(f"s_cmp_eq_u32 s{S_RET}, 0")
    e("s_cbranch_scc1 A_Q0")
    e(f"s_cmp_eq_u32 s{S_IT}, 7")
    e("s_cbranch_scc1 A_RET_P29")
    e(f"s_cmp_eq_u32 s{S_IT}, 0")
    e("s_cbranch_scc1 A_RET_Q1")
    e("s_branch A_RET_L1")

    sw1 = Seg("a_sw1", stateL, stateV)
    e = sw1
    e.label("A_SW1")
    for r in range(64):
        e(f"v_accvgpr_mov_b32 a{A_Q+r}, a{A_Q2+r}")
    e(f"v_mov_b32 v{V_MS}, v{V_NM}")
    for r in range(0, 16, 2):
        e(f"v_mov_b64 {v(V_NM+r,2)}, 0")
    e(f"s_cmp_eq_u32 s{S_IT}, 7")
    e("s_cbranch_scc1 A_SW1_RET_P29")
    e(f"s_cmp_eq_u32 s{S_IT}, 0")
    e("s_cbranch_scc1 A_SW1_RET_Q1")
    e("s_branch A_SW1_RET_L1")

    def part_addr(e):
        e(f"s_lshl_b32 s54, s{S_PAIR}, 2")
        e("s_add_u32 s54, s54, s3")
        e("s_lshl_b32 s55, s54, 9")
        e(f"s_add_u32 s55, s55, {ML_OFF}")
        e("s_lshl_b32 s54, s54, 14")
        e(f"s_add_u32 s54, s54, {OP_OFF}")

    sw2 = Seg("a_sw2", stateL, stateV)
    e = sw2
    e.label("A_SW2")
    part_addr(e)
    t = V_X + 12
    e(f"v_add_f32 v{V_L0}, v{V_L0}, v{V_L1}")
    e(f"v_lshrrev_b32 v{t+2}, 2, v{V_L16}")
    e(f"buffer_store_dword v{V_MS}, v{t+2}, s[{S_WS}:{S_WS+3}], s55 offen sc1")
    e(f"buffer_store_dword v{V_L0}, v{t+2}, s[{S_WS}:{S_WS+3}], s55 offen offset:256 sc1")
    for k in range(16):
        if k and k % 4 == 0:
            e("s_add_u32 s54, s54, 4096")
        u = t + 4 + (k % 2) * 4
        for r in range(4):
            o = V_O + 8 * k + 2 * r
            e(f"v_cvt_pk_bf16_f32 v{u+r}, v{o}, v{o+1}")
        for r in range(4):
            e(f"v_mov_b64 {v(V_O+8*k+2*r,2)}, 0")
        e(f"buffer_store_dwordx4 {v(u,4)}, v{V_L16}, s[{S_WS}:{S_WS+3}], s54 offen offset:{(k%4)*1024} sc1")
    e(f"v_mov_b64 {v(V_L0,2)}, 0")
    e(f"s_mov_b32 s{S_PEND}, 1")
    e(f"s_mov_b32 s{S_RET}, 1")
    e("s_branch A_FIRST")

    sig = Seg("a_sig", stateL, stateV)
    sig.label("A_SIG")
    signal(sig)
    sig(f"s_cmp_eq_u32 s{S_IT}, 0")
    sig("s_cbranch_scc1 A_SIG_RET_Q")
    sig("s_branch A_SIG_RET")
    S_HA, S_SLOT, V_FO, kv3 = opt["kv2"]
    sig.label("A_KV2S")
    flag_line(sig, 55, FL_KV2, S_HA)
    sig(f"s_lshl_b32 s53, s{S_IT}, 13")
    sig("s_add_u32 s55, s55, s53")
    flag_set(sig, S_WS, 55, f"s{S_SLOT}", V_X + 12)
    sig(f"s_cmp_eq_u32 s{S_IT}, 0")
    sig("s_cbranch_scc1 A_KV2S_RET_Q")
    sig("s_branch A_KV2S_RET")
    sig.label("A_KV2L")
    flag_line(sig, 85, FL_KV2, S_HEAD)
    sig(f"s_lshr_b32 s53, s{S_IT}, 1")
    sig("s_lshl_b32 s53, s53, 13")
    sig("s_add_u32 s85, s85, s53")
    sig.raw(f"buffer_load_dwordx2 v[6:7], v{V_FO}, s[{S_WS}:{S_WS+3}], s85 offen sc1", "pf")
    sig("s_branch A_KV2L_RET")
    sig.label("A_KV2C")
    sig.wait_force(vm=8)
    if not NEPF:
        sig(f"s_cmp_lg_u32 s{S_IT}, 4")
        sig("s_cbranch_scc1 A_NOEPF")
        sig(f"global_load_dword v{V_PD}, v{V_X+3}, s[80:81]", "pf")
        sig.label("A_NOEPF")
    sig("s_mov_b32 s53, 0")
    sig.label("A_KV2P")
    flag_test(sig, 6)
    sig("s_cbranch_scc1 A_LOOP")
    sig("s_sleep 2")
    sig(f"buffer_load_dwordx2 v[6:7], v{V_FO}, s[{S_WS}:{S_WS+3}], s85 offen sc1")
    sig.wait_force(vm=0)
    sig("s_add_u32 s53, s53, 1")
    sig(f"s_cmp_lt_u32 s53, {opt.get('poll_max', 200000)}")
    sig("s_cbranch_scc1 A_KV2P")
    sig("s_branch A_LOOP")
    sig.label("A_ALTW")
    sig.wait_force(vm=26)
    sig("s_branch A_ALTW_RET")

    e = Seg("a_fin", [], stateV)
    stamp(e, opt, 2)
    stamp(e, opt, "a_fin")
    t = V_T
    CT = V_S[0]
    e(f"v_add_f32 v{V_L0}, v{V_L0}, v{V_L1}")
    e(f"s_cmp_ge_u32 s{S_QT}, 8")
    e("s_cbranch_scc1 A_MERGE")
    e(f"v_mov_b32 v{t}, v{V_L0}")
    e.nop(2)
    e(f"v_permlane32_swap_b32 v{V_L0}, v{t}")
    e(f"v_add_f32 v{V_L0}, v{V_L0}, v{t}")
    e(f"v_rcp_f32 v{t}, v{V_L0}")
    e.nop(1)
    e(f"v_mov_b32 v{t+1}, v{t}")
    e.nop(4)
    for k in range(64):
        e(f"v_pk_mul_f32 {v(V_O+2*k,2)}, {v(V_O+2*k,2)}, {v(t,2)}")
        if k:
            e(f"v_cvt_pk_bf16_f32 v{CT+k-1}, v{V_O+2*k-2}, v{V_O+2*k-1}")
    e(f"v_cvt_pk_bf16_f32 v{CT+63}, v{V_O+126}, v{V_O+127}")
    e("s_branch A_EPI")
    fin = e

    ML = V_X + 16

    def part_loads(e):
        part_addr(e)
        e(f"v_lshrrev_b32 v{V_X+12}, 2, v{V_L16}")
        e(f"buffer_load_dword v{ML}, v{V_X+12}, s[{S_WS}:{S_WS+3}], s55 offen sc1")
        e(f"buffer_load_dword v{ML+1}, v{V_X+12}, s[{S_WS}:{S_WS+3}], s55 offen offset:256 sc1")
        for k in range(16):
            if k and k % 4 == 0:
                e("s_add_u32 s54, s54, 4096")
            e(f"buffer_load_dwordx4 {a(A_Q2+4*k,4)}, v{V_L16}, s[{S_WS}:{S_WS+3}], s54 offen offset:{(k%4)*1024} sc1")

    early = Seg("a_early", stateL, peel[31].vm)
    e = early
    e.label("A_EARLY")
    flag_test(e, V_X + 14)
    e("s_cbranch_scc0 A_EARLY_RET")
    part_loads(e)
    e(f"s_mov_b32 s{S_PEND}, 2")
    e("s_branch A_EARLY_RET")

    mg = Seg("a_merge", [], stateV)
    e = mg
    e.label("A_MERGE")
    e(f"s_cmp_eq_u32 s{S_PEND}, 2")
    e("s_cbranch_scc1 A_HAVE")
    flag_line(e, 55, FL_PAIR, S_PAIR)
    e(f"v_mov_b32 v{t}, 8")
    e("s_mov_b32 s53, 0")
    e.label("A_POLL")
    e(f"buffer_load_dwordx2 {v(t+2,2)}, v{t}, s[{S_WS}:{S_WS+3}], s55 offen sc1")
    e.wait_force(vm=0)
    flag_test(e, t + 2)
    e("s_cbranch_scc1 A_POLL_OK")
    e("s_sleep 4")
    e("s_add_u32 s53, s53, 1")
    e(f"s_cmp_lt_u32 s53, {opt.get('poll_max', 200000)}")
    e("s_cbranch_scc1 A_POLL")
    e.label("A_POLL_OK")
    part_loads(e)
    e.label("A_HAVE")
    e(f"v_min_f32 v{t+3}, v{V_NM}, v{ML}")
    e(f"v_sub_f32 v{t+4}, v{t+3}, v{V_NM}")
    e(f"v_sub_f32 v{t+6}, v{t+3}, v{ML}")
    e(f"v_exp_f32 v{t+4}, v{t+4}")
    e(f"v_exp_f32 v{t+6}, v{t+6}")
    e.nop(1)
    e(f"v_mul_f32 v{t+3}, v{t+6}, v{ML+1}")
    e(f"v_fma_f32 v{t+3}, v{V_L0}, v{t+4}, v{t+3}")
    e(f"v_mov_b32 v{t+2}, v{t+3}")
    e.nop(2)
    e(f"v_permlane32_swap_b32 v{t+3}, v{t+2}")
    e(f"v_add_f32 v{t+3}, v{t+3}, v{t+2}")
    e(f"v_rcp_f32 v{t+3}, v{t+3}")
    e.nop(1)
    e(f"v_mul_f32 v{t+4}, v{t+4}, v{t+3}")
    e(f"v_mul_f32 v{t+6}, v{t+6}, v{t+3}")
    e(f"v_mov_b32 v{t+5}, v{t+4}")
    e(f"v_mov_b32 v{t+7}, v{t+6}")
    for k in range(64):
        e(f"v_pk_mul_f32 {v(V_O+2*k,2)}, {v(V_O+2*k,2)}, {v(t+4,2)}")
    for k in range(64):
        u = t + 8 + (k % 2) * 2
        e(f"v_accvgpr_read_b32 v{u+1}, a{A_Q2+k}")
        if k:
            e(f"v_cvt_pk_bf16_f32 v{CT+k-1}, v{V_O+2*k-2}, v{V_O+2*k-1}")
        e(f"v_lshlrev_b32 v{u}, 16, v{u+1}")
        e(f"v_and_b32 v{u+1}, 0xffff0000, v{u+1}")
        e(f"v_pk_fma_f32 {v(V_O+2*k,2)}, {v(u,2)}, {v(t+6,2)}, {v(V_O+2*k,2)}")
    e(f"v_cvt_pk_bf16_f32 v{CT+63}, v{V_O+126}, v{V_O+127}")

    e = Seg("a_epi", [], [])
    e.label("A_EPI")
    stamp(e, opt, 3)
    stamp(e, opt, "a_epi")
    YA = (V_O, V_O + 16)
    YP = V_O + 32
    VC = V_O + 48
    ED = opt.get("e_depth", 7)
    NFE, NT = 46, 7
    NF = NFE * NT

    def erd(f):
        c, r = divmod(f, NFE)
        seg, ks = divmod(r, 23)
        off = (EO[c % 3] + 16 * ks * 128) if ks < 16 else (E2[c % 3] + 16 * (ks - 16) * 128)
        base = (V_EA, VC, VC + 2)[off >> 16] + seg
        off &= 0xffff
        return [f"ds_read_b64_tr_b16 {a(A_F+(f%8)*4+2*u,2)}, v{base} offset:{off+u*1024}" for u in range(2)]

    def ecvt(c, seg):
        ops = [f"v_cvt_pk_bf16_f32 v{YP+8*seg+r}, v{YA[seg]+2*r}, v{YA[seg]+2*r+1}" for r in range(8)]
        st = [(f"buffer_store_dwordx4 {v(YP+8*seg+4*k,4)}, v{V_L16}, s[{S_WS}:{S_WS+3}], s62 offen offset:{seg*2048+k*1024}{YM}",
               "ya" if c < 4 else "yb") for k in range(2)]
        if seg == 1 and c < NT - 1:
            st.append("s_add_u32 s62, s62, 4096")
        return ops, st

    def edma_at(t):
        return [[f"s_mov_b32 s58, {EO[t%3]}", f"s_mov_b32 s59, {E2[t%3]}"]] + e_dma(f"e{t}")

    for k in range(2):
        e(f"v_add_u32 v{VC+k}, 0x10000, v{V_EA+k}")
        e(f"v_add_u32 v{VC+2+k}, 0x20000, v{V_EA+k}")
    e.wait_force(vm=0)
    e("s_barrier")
    for f in range(ED):
        run(e, erd(f))
    spine, fill = [], {}
    for f in range(NF):
        c, r = divmod(f, NFE)
        seg, ks = divmod(r, 23)
        B = v(CT + 4 * ks, 4) if ks < 16 else a(A_HF + 4 * (ks - 16), 4)
        acc = v(YA[seg], 16)
        spine.append(f"{MFMA} {acc}, {a(A_F+(f%8)*4,4)}, {B}, {'0' if ks == 0 else acc}")
        nf = f + ED
        if nf < NF:
            if nf % NFE == 0:
                t = nf // NFE
                ops = [lambda e, t=t: e.wait_tag(f"e{t}")]
                if t == 6:
                    ops.append(lambda e: e.wait_tag("ya"))
                if t <= 4:
                    ops.append(lambda e: e.wait(lgkm=0))
                fill.setdefault(f, []).extend(ops + ["s_barrier"])
            fill.setdefault(f, []).extend(erd(nf))
        if f % 2 == 0:
            rr = a(A_F + (min(f + 1, NF - 1) % 8) * 4, 4)
            fill.setdefault(f - 1, []).append(lambda e, rr=rr: wait_reg(e, rr))
    if hooks:
        hooks(fill, NFE, ED)
    spread(fill, edma_at(1), 0, 20)
    spread(fill, edma_at(2), 20, 52)
    for t in range(3, NT):
        g0 = max((t - 2) * NFE - ED + 1, 52)
        spread(fill, edma_at(t), g0, (t - 1) * NFE - ED)
    for c in range(NT):
        o, st = ecvt(c, 0)
        pour(fill, o + st, c * NFE + 27, c * NFE + 44)
        if c < NT - 1:
            o, st = ecvt(c, 1)
            if c == NT - 2 and hooks:
                pour(fill, o, (c + 1) * NFE + 4, (c + 1) * NFE + 21)
                fill.setdefault((c + 1) * NFE + 25, []).append(st[0])
                fill.setdefault((c + 1) * NFE + 26, []).extend(st[1:])
            else:
                pour(fill, o + st, (c + 1) * NFE + 4, (c + 1) * NFE + 21)
    if opt.get("verbose"):
        print(gap_report("epilogue", fill, NF), [load_of(fill, g) for g in range(NF)])
    weave(e, spine, fill)
    e.nop(12)
    o, st = ecvt(NT - 1, 1)
    run(e, o + st)
    if finish:
        finish(e)
    e.label(end_label)
    e("s_endpgm")
    epi = e

    pl = [peel[n] for n in range(28, 33)]
    segs = [pro, q0, lp] + pl + [t3, fin, mg, epi, t0, stubs, r0, r1, fs, sw1, sw2, sig, early]
    traces = [
        [pro, fs, q0, lp, lp] + pl + [t3, fin, epi],
        [lp, peel[28], peel[29], t0, fin, mg, epi],
        [lp, r1, lp], [peel[28], r0, peel[29]], [peel[28], sw1, peel[29], sw2, fs, peel[30]], [sig], [stubs],
        [peel[30], peel[31], t0], [peel[29], peel[30], t3], [peel[31], early, peel[32], t3, fin],
    ]
    return segs, traces
```

```python
import re

REG_RE = re.compile(r"^(-?)(?:abs\()?([vas])(?:(\d+)|\[(\d+):(\d+)\])\)?$")
TRANS = ("v_exp_f32", "v_log_f32", "v_rcp_f32", "v_rsq_f32", "v_sqrt_f32", "v_sin_f32", "v_cos_f32")


def regs_of(tok):
    tok = tok.strip()
    if tok in ("vcc", "exec", "m0", "scc"):
        return [(tok, 0)]
    if tok in ("vcc_lo", "vcc_hi"):
        return [("vcc", 0)]
    if tok in ("exec_lo", "exec_hi"):
        return [("exec", 0)]
    m = REG_RE.match(tok)
    if not m:
        return []
    f = m.group(2)
    if m.group(3) is not None:
        return [(f, int(m.group(3)))]
    return [(f, i) for i in range(int(m.group(4)), int(m.group(5)) + 1)]


class Ins:
    __slots__ = ("text", "op", "rd", "wr", "kind", "n", "srcc", "passes", "tag")

    def __init__(self, text, tag=None):
        self.text = text
        self.tag = tag
        t = text.split(";")[0].strip()
        self.rd, self.wr, self.srcc, self.passes, self.n = set(), set(), set(), 0, 0
        if t.endswith(":"):
            self.op, self.kind = t, "label"
            return
        if not t or t.startswith("."):
            self.op, self.kind = t, "dir"
            return
        parts = t.split(None, 1)
        op = parts[0]
        self.op = op
        rest = parts[1] if len(parts) > 1 else ""
        ops = [o.strip() for o in rest.split(",")] if rest else []
        mods = []
        if ops:
            last = ops[-1].split()
            ops[-1] = last[0] if last else ""
            mods = last[1:]
        R = [regs_of(o) for o in ops]

        def rd(i):
            for r in R[i]:
                self.rd.add(r)

        def wr(i):
            for r in R[i]:
                self.wr.add(r)

        if op == "s_nop":
            self.kind, self.n = "nop", int(ops[0], 0) + 1
        elif op == "s_waitcnt":
            self.kind = "wait"
        elif op == "s_barrier":
            self.kind = "barrier"
        elif op in ("s_endpgm", "s_setprio", "s_sleep"):
            self.kind = "salu"
        elif op.startswith("s_cbranch") or op == "s_branch":
            self.kind = "branch"
            if "scc" in op:
                self.rd.add(("scc", 0))
            if "vcc" in op:
                self.rd.add(("vcc", 0))
            if "exec" in op:
                self.rd.add(("exec", 0))
        elif op.startswith("s_load") or op in ("s_memtime", "s_memrealtime"):
            self.kind = "smem"
            wr(0)
            for i in range(1, len(ops)):
                rd(i)
        elif op.startswith("s_cmp") or op.startswith("s_bitcmp"):
            self.kind = "salu"
            for i in range(len(ops)):
                rd(i)
            self.wr.add(("scc", 0))
        elif op.startswith("s_"):
            self.kind = "salu"
            wr(0)
            for i in range(1, len(ops)):
                rd(i)
            if op.startswith("s_cselect") or op.startswith("s_addc") or op.startswith("s_subb"):
                self.rd.add(("scc", 0))
            if "saveexec" in op:
                self.rd.add(("exec", 0))
                self.wr.add(("exec", 0))
            if not (op.startswith("s_mov") or op.startswith("s_mul") or op.startswith("s_cselect") or op.startswith("s_getreg") or op.startswith("s_getpc")):
                self.wr.add(("scc", 0))
            if op in ("s_addk_i32", "s_mulk_i32"):
                rd(0)
        elif op.startswith("v_mfma"):
            self.kind = "mfma"
            wr(0)
            rd(1)
            rd(2)
            rd(3)
            self.srcc = set(R[3])
            self.passes = 8 if "32x32" in op else 4
        elif op.startswith("ds_read") or op.startswith("ds_bpermute") or op.startswith("ds_swizzle"):
            self.kind = "ds_rd"
            wr(0)
            for i in range(1, len(ops)):
                rd(i)
        elif op.startswith("ds_write"):
            self.kind = "ds_wr"
            for i in range(len(ops)):
                rd(i)
        elif op.startswith("buffer_load") and "lds" in mods:
            self.kind = "vm_dma"
            for i in range(len(ops)):
                rd(i)
            self.rd.add(("m0", 0))
        elif op.startswith("buffer_load") or op.startswith("global_load"):
            self.kind = "vm_ld"
            if tag != "pf":
                wr(0)
            for i in range(1, len(ops)):
                rd(i)
        elif op.startswith("buffer_store") or op.startswith("global_store"):
            self.kind = "vm_st"
            for i in range(len(ops)):
                rd(i)
            if op.endswith("x4") or op.endswith("x3"):
                di = 0 if op.startswith("buffer") else 1
                self.srcc = set(R[di])
        elif op.startswith("buffer_atomic") or op.startswith("global_atomic"):
            self.kind = "vm_st"
            for i in range(len(ops)):
                rd(i)
            if "sc0" in mods and tag != "pf":
                self.kind = "vm_ld"
                wr(0)
        elif op in ("buffer_wbl2", "buffer_inv"):
            self.kind = "vm_st"
        elif op.startswith("v_"):
            base = op.replace("_e32", "").replace("_e64", "")
            self.kind = "trans" if base in TRANS else "valu"
            wr(0)
            st = 1
            if base in ("v_add_co_u32", "v_sub_co_u32", "v_addc_co_u32"):
                wr(1)
                st = 2
            for i in range(st, len(ops)):
                rd(i)
            if base.startswith("v_fmac") or base.startswith("v_dot2c") or base.startswith("v_pk_fmac"):
                rd(0)
            if base.startswith("v_permlane"):
                rd(0)
                wr(1)
            self.rd.add(("exec", 0))
        else:
            raise ValueError("unknown instruction: " + text)

    def states(self):
        if self.kind == "nop":
            return self.n
        if self.kind in ("label", "dir"):
            return 0
        return 1


def parse_wait(text):
    vm = re.search(r"vmcnt\((\d+)\)", text)
    lg = re.search(r"lgkmcnt\((\d+)\)", text)
    return (int(vm.group(1)) if vm else None, int(lg.group(1)) if lg else None)


class Seg:
    def __init__(self, name, lds=None, vm=None):
        self.name = name
        self.ins = []
        self.lds = list(lds) if lds else []
        self.vm = list(vm) if vm else []

    def raw(self, text, tag=None):
        i = Ins(text, tag)
        self.ins.append(i)
        return i

    def _need(self, i):
        touched = i.rd | i.wr
        nl = None
        for k, d in enumerate(self.lds):
            if d & touched:
                nl = len(self.lds) - 1 - k
        nv = None
        for k, (tg, d) in enumerate(self.vm):
            if d & touched:
                nv = len(self.vm) - 1 - k
        return nv, nl

    def wait(self, vm=None, lgkm=None):
        parts = []
        if vm is not None and vm < len(self.vm):
            assert vm <= 63
            parts.append(f"vmcnt({vm})")
            self.vm = self.vm[len(self.vm) - vm:] if vm else []
        if lgkm is not None and lgkm < len(self.lds):
            lgkm = min(lgkm, 15)
            parts.append(f"lgkmcnt({lgkm})")
            self.lds = self.lds[len(self.lds) - lgkm:] if lgkm else []
        if parts:
            self.raw("s_waitcnt " + " ".join(parts))

    def wait_force(self, vm=None, lgkm=None):
        parts = []
        if vm is not None:
            parts.append(f"vmcnt({vm})")
            if vm < len(self.vm):
                self.vm = self.vm[len(self.vm) - vm:] if vm else []
        if lgkm is not None:
            parts.append(f"lgkmcnt({lgkm})")
            if lgkm < len(self.lds):
                self.lds = self.lds[len(self.lds) - lgkm:] if lgkm else []
        self.raw("s_waitcnt " + " ".join(parts))

    def wait_tag(self, tag):
        last = None
        for k, (tg, d) in enumerate(self.vm):
            if tg == tag:
                last = k
        if last is not None:
            self.wait(vm=min(63, len(self.vm) - 1 - last))

    def wait_tags(self, tags):
        last = None
        for k, (tg, d) in enumerate(self.vm):
            if tg in tags:
                last = k
        if last is not None:
            self.wait(vm=min(63, len(self.vm) - 1 - last))

    def __call__(self, text, tag=None):
        i = Ins(text, tag)
        nv, nl = self._need(i)
        if nv is not None or nl is not None:
            self.wait(vm=None if nv is None else min(nv, 63), lgkm=nl)
        self.ins.append(i)
        if i.kind == "ds_rd":
            self.lds.append(frozenset(i.wr))
        elif i.kind == "ds_wr":
            self.lds.append(frozenset())
        elif i.kind == "smem":
            self.lds.append(frozenset(i.wr))
            self.lds.append(frozenset(i.wr))
        elif i.kind == "vm_ld":
            self.vm.append((tag, frozenset(i.wr)))
        elif i.kind in ("vm_st", "vm_dma"):
            self.vm.append((tag, frozenset()))
        elif i.kind == "wait":
            vm, lg = parse_wait(text)
            if vm is not None and vm < len(self.vm):
                self.vm = self.vm[len(self.vm) - vm:] if vm else []
            if lg is not None and lg < len(self.lds):
                self.lds = self.lds[len(self.lds) - lg:] if lg else []
        return i

    def label(self, name):
        self.raw(name + ":")

    def nop(self, n):
        while n > 0:
            k = min(n, 16)
            self.raw(f"s_nop {k-1}")
            n -= k

    def text(self):
        out = []
        for i in self.ins:
            t = re.sub(r"\[(\d)_(\d)_(\d)_(\d)\]", r"[\1,\2,\3,\4]", i.text)
            out.append(t if i.kind in ("label",) else "  " + t)
        return "\n".join(out) + "\n"


def is_valu(i):
    return i.kind in ("valu", "trans")


def required(p, c):
    need = 0
    vreg = lambda s: {r for r in s if r[0] in ("v", "a")}
    sreg = lambda s: {r for r in s if r[0] in ("s", "vcc")}
    if is_valu(p):
        w = vreg(p.wr)
        if c.kind == "mfma" and w & c.rd:
            need = max(need, 2)
        if is_valu(c) and w & c.rd:
            if c.op.startswith("v_readfirstlane") or c.op.startswith("v_readlane"):
                need = max(need, 1)
            if c.op.startswith("v_permlane") or "dpp" in c.text:
                need = max(need, 2)
            if p.kind == "trans" and c.kind != "trans":
                need = max(need, 1)
            if "sdwa" in p.text and "dst_sel:DWORD" not in p.text:
                need = max(need, 1)
        ws = sreg(p.wr)
        if ws:
            if is_valu(c) and ws & c.rd:
                need = max(need, 4 if c.op.startswith(("v_readlane", "v_writelane")) else 2)
            if c.kind.startswith("vm_") and ws & c.rd:
                need = max(need, 5)
    if p.kind == "mfma":
        idx = {4: 0, 8: 1}[p.passes]
        d = p.wr
        if c.kind == "mfma":
            if d & c.srcc:
                if not (c.srcc == d and c.passes == p.passes):
                    need = max(need, (6, 10)[idx])
            ab = c.rd - c.srcc if not (c.rd - c.srcc) <= c.srcc else set()
            toks = c.text.split(None, 1)[1].split(",")
            abr = set(regs_of(toks[1])) | set(regs_of(toks[2]))
            if d & abr:
                need = max(need, (8, 12)[idx])
            if d & c.wr and not (c.srcc == d):
                need = max(need, (6, 10)[idx])
        elif is_valu(c):
            if d & (c.rd | c.wr):
                need = max(need, (8, 12)[idx])
            if p.srcc & c.wr:
                need = max(need, (3, 7)[idx])
        elif c.kind in ("ds_rd", "ds_wr", "vm_ld", "vm_st", "vm_dma"):
            if d & (c.rd | c.wr):
                need = max(need, (8, 12)[idx])
            if p.srcc & c.wr:
                need = max(need, (3, 7)[idx])
    if p.kind == "salu" and ("m0", 0) in p.wr and c.kind == "vm_dma":
        need = max(need, 1)
    if p.kind == "vm_st" and p.srcc and p.srcc & c.wr:
        need = max(need, 2 if is_valu(c) else 1)
    return need


def check_trace(name, ins, fix=False):
    probs = []
    real = [i for i in ins if i.kind not in ("label", "dir")]
    for k, c in enumerate(real):
        dist = 0
        j = k - 1
        while j >= 0 and dist < 20:
            p = real[j]
            r = required(p, c)
            if r > dist:
                probs.append(f"[{name}] hazard need {r} have {dist}: '{p.text}' -> '{c.text}'")
            dist += p.states()
            j -= 1
    lds, vm = [], []
    for c in real:
        touched = c.rd | c.wr
        for d, t in lds:
            if d & touched:
                probs.append(f"[{name}] missing lgkm wait: '{t}' -> '{c.text}'")
        for d, t in vm:
            if d & touched:
                probs.append(f"[{name}] missing vm wait: '{t}' -> '{c.text}'")
        if c.kind == "ds_rd":
            lds.append((frozenset(c.wr), c.text))
        elif c.kind == "ds_wr":
            lds.append((frozenset(), c.text))
        elif c.kind == "smem":
            lds.insert(len(lds), (frozenset(c.wr), c.text + " (smem)"))
        elif c.kind == "vm_ld":
            vm.append((frozenset(c.wr), c.text))
        elif c.kind in ("vm_st", "vm_dma"):
            vm.append((frozenset(), c.text))
        elif c.kind == "wait":
            v, l = parse_wait(c.text)
            if v is not None and v < len(vm):
                vm = vm[len(vm) - v:] if v else []
            if l is not None:
                if l == 0:
                    lds = []
                elif any("(smem)" in t for d, t in lds):
                    pass
                elif l < len(lds):
                    lds = lds[len(lds) - l:]
    return probs


def fix_hazards(seg, prev=()):
    out = [i for i in prev if i.kind not in ("label", "dir")]
    base = len(out)
    res = []
    for c in seg.ins:
        if c.kind in ("label", "dir"):
            res.append(c)
            continue
        dist, j, pad = 0, len(out) - 1, 0
        while j >= 0 and dist < 20:
            p = out[j]
            r = required(p, c)
            if r > dist:
                pad = max(pad, r - dist)
            dist += p.states()
            j -= 1
        while pad > 0:
            k = min(pad, 16)
            n = Ins(f"s_nop {k-1}")
            out.append(n)
            res.append(n)
            pad -= k
        out.append(c)
        res.append(c)
    seg.ins = res


def weave(seg, spine, fillers):
    def put(x):
        if isinstance(x, list):
            for y in x:
                put(y)
        elif callable(x):
            x(seg)
        elif isinstance(x, tuple):
            seg(x[0], x[1])
        else:
            seg(x)
    for x in fillers.get(-1, []):
        put(x)
    for g, m in enumerate(spine):
        put(m)
        for x in fillers.get(g, []):
            put(x)


def spread(fill, items, g0, g1, per=None):
    n = len(items)
    if n == 0:
        return
    span = g1 - g0
    for k, it in enumerate(items):
        g = g0 + (k * span) // n
        fill.setdefault(g, []).append(it)


def cost_of(x):
    if isinstance(x, list):
        return sum(cost_of(y) for y in x)
    if callable(x):
        return getattr(x, "cost", 1)
    t = x[0] if isinstance(x, tuple) else x
    if t.endswith(":"):
        return 0
    op = t.split()[0]
    if op in TRANS:
        return 2
    return 1


def load_of(fill, g):
    return sum(cost_of(x) for x in fill.get(g, []))


def pour(fill, items, g0, g1):
    if not items:
        return
    gaps = list(range(g0, g1))
    base = [load_of(fill, g) for g in gaps]
    total = sum(cost_of(x) for x in items)
    lo, hi = 0.0, max(base) + total
    for _ in range(50):
        mid = (lo + hi) / 2
        if sum(max(0.0, mid - b) for b in base) >= total:
            hi = mid
        else:
            lo = mid
    free = [max(0.0, hi - b) for b in base]
    cum, acc = [], 0.0
    for f in free:
        acc += f
        cum.append(acc)
    pos, gi = 0.0, 0
    for x in items:
        c = cost_of(x)
        mid = pos + c / 2.0
        while gi < len(gaps) - 1 and cum[gi] < mid:
            gi += 1
        fill.setdefault(gaps[gi], []).append(x)
        pos += c


def run(e, ops):
    for x in ops:
        if isinstance(x, list):
            run(e, x)
        elif callable(x):
            x(e)
        elif isinstance(x, tuple):
            e(x[0], x[1])
        else:
            e(x)


def wait_reg(e, regs):
    rs = set(regs_of(regs))
    n = None
    for k, d in enumerate(e.lds):
        if d & rs:
            n = len(e.lds) - 1 - k
    if n is not None:
        e.wait(lgkm=n)


def gap_report(name, fill, n):
    loads = [load_of(fill, g) for g in range(n)]
    return f"{name}: gaps {n} total {sum(loads)} max {max(loads)} avg {sum(loads)/n:.2f} over5 {sum(max(0,l-5) for l in loads)} over6 {sum(max(0,l-6) for l in loads)}"
```

```python
from emit import *
from common import *
import attn
from attn import S_HEAD, S_QT, S_W4K, S_PAIR, S_WS, S_WO, S_W2, A_Q, A_Q2, A_HF, V_L16, V_PD
import math

NAME = "parallel_sum__compressed_kv_cla__dense_activation_silu__prompt_kernel"
LDS_BYTES = 160 * 1024
S_CKV, S_W, S_X, S_WQ, S_W1, S_QST, S_OUT = 8, 12, 20, 24, 28, 68, 24
SA, SB, S_LP, S_W8K, S_KVSTR, S_KIND, S_BO, S_KVBASE, S_KVC, S_QB, S_QC, S_XNB, S_XNF = 53, 54, 55, 56, 57, 58, 59, 60, 61, 62, 63, 66, 67
S_HA, S_KVSLOT = 76, 77
V_PA, V_PB, V_FO, V_FL = 3, 4, 5, 6
V_AA, V_AB, V_DA, V_DB = 8, 12, 16, 24
V_FA, V_FB, V_XN = 32, 64, 96
V_AB16, V_AA16, V_WR, V_ST = 8, 212, 224, 7
V_DQ, V_D1, V_AT, V_T = 208, 212, 216, 224
SLOT_ORDER = [8, 9, 0, 1, 4, 5, 2, 3, 6, 7]
V_AT3 = 212
S_KVE, S_EARLY, S_GOTQ, S_GM = 24, 72, 75, 72
H_ACC = (64, 80, 224, 240)
V_GP = V_XN + 46
VPQ, VPK = V_XN + 4, V_XN + 8

def gen_mega(opt):
    ST = opt.get("kv_store_mod", " sc1")
    attn.KVM[0] = opt.get("kv_load_mod", "")
    opt = dict(opt)
    opt.setdefault("y_store_mod", " sc1")
    opt["spk"] = ""
    PFD = 2
    A16 = opt.get("a16", 1)
    NPF = 2
    PMAX = opt.get("poll_max", 200000)
    e = Seg("m_pro")
    e.label(NAME)
    e("s_cmp_ge_u32 s2, 256")
    e("s_cbranch_scc1 M_END")
    stamp(e, opt, "entry")
    load_kernargs(e)
    e("s_getpc_b64 s[50:51]")
    e.label("M_PC0")
    if not opt.get("no_cpf0"):
        e("s_lshr_b32 s5, s2, 3")
        e("s_lshl_b32 s5, s5, 11")
        e("v_and_b32 v1, 15, v0")
        e("v_lshl_add_u32 v1, v1, 7, s5")
        e("v_min_u32 v1, M_B-M_PC0, v1")
        e(f"global_load_dword v{V_PD}, v1, s[50:51]", "pf")
    e("v_lshrrev_b32 v1, 6, v0")
    e("v_and_b32 v0, 63, v0")
    e("v_readfirstlane_b32 s3, v1")
    e("s_and_b32 s4, s2, 7")
    e("s_lshl_b32 s4, s4, 1")
    e("s_lshr_b32 s5, s2, 3")
    e("s_and_b32 s34, s5, 7")
    e("s_lshr_b32 s35, s5, 3")
    e("s_and_b32 s42, s35, 1")
    e("s_add_u32 s42, s42, s4")
    e(f"s_lshr_b32 s{S_KIND}, s35, 1")
    e(f"s_lshr_b32 s{S_QT}, s5, 1")
    e(f"s_and_b32 s{S_HEAD}, s5, 1")
    e(f"s_add_u32 s{S_HEAD}, s{S_HEAD}, s4")
    e("s_and_b32 s36, s3, 1")
    e("s_lshr_b32 s37, s3, 1")
    L31, HI, G, R4, C = 224, 225, 226, 227, 228
    e(f"v_and_b32 v{L31}, 31, v0")
    e(f"v_lshrrev_b32 v{HI}, 5, v0")
    e(f"v_lshrrev_b32 v{G}, 4, v0")
    e(f"v_bfe_u32 v{R4}, v0, 2, 2")
    e(f"v_and_b32 v{C}, 3, v0")
    e("s_and_b32 s7, s35, 1")
    e("s_lshl_b32 s7, s7, 1")
    e("s_add_u32 s7, s7, s37")
    e("s_sub_u32 s39, 3, s7")
    e("s_add_u32 s7, s7, 4")
    e("s_cmp_ge_u32 s35, 2")
    e("s_cselect_b32 s7, s7, s39")
    e("s_lshl_b32 s7, s7, 3")
    e("s_add_u32 s7, s7, s34")
    e("s_lshl_b32 s7, s7, 1")
    e("s_add_u32 s7, s7, s36")
    e("s_lshl_b32 s7, s7, 4")
    e("v_and_b32 v6, 15, v0")
    e("v_add_u32 v6, s7, v6")
    e(f"v_lshlrev_b32 v{V_PA}, 11, v6")
    e(f"v_and_b32 v7, 1, v{G}")
    e(f"v_lshl_add_u32 v7, v7, 7, v{V_PA}")
    e("s_lshl_b32 s7, s34, 3")
    e("s_lshl_b32 s39, s3, 1")
    e("s_add_u32 s7, s7, s39")
    e("v_bfe_u32 v6, v0, 2, 1")
    e("v_add_u32 v6, s7, v6")
    e("v_lshlrev_b32 v6, 13, v6")
    e(f"v_lshl_add_u32 v6, v{C}, 7, v6")
    e("s_lshl_b32 s7, s42, 9")
    e(f"v_add_u32 v{V_PB}, s7, v6")
    e("v_bfe_u32 v6, v0, 3, 1")
    e(f"v_lshl_add_u32 v5, v6, 19, v{V_PB}")
    e("v_lshrrev_b32 v1, 3, v0")
    e.wait_force(lgkm=0)
    e(f"s_mov_b32 s{S_HA}, s42")
    e(f"s_lshl_b32 s{S_KVSLOT}, s{S_KIND}, 3")
    e(f"s_add_u32 s{S_KVSLOT}, s{S_KVSLOT}, s34")
    e(f"s_lshl_b32 s{S_KVSLOT}, s{S_KVSLOT}, 3")
    srd(e, S_CKV, P_CKV, CKV_BYTES)
    e(f"s_cmp_eq_u32 s{S_KIND}, 0")
    e(f"s_cselect_b32 s{S_W}, s{P_WUK}, s{P_WUV}")
    e(f"s_cselect_b32 s{S_W+1}, s{P_WUK+1}, s{P_WUV+1}")
    e(f"s_mov_b32 s{S_W+2}, {WU_BYTES:#x}")
    e(f"s_mov_b32 s{S_W+3}, 0x20000")
    stamp(e, opt, 0)
    stamp(e, opt, "karg")
    e(f"buffer_load_dword v{V_PD}, v7, s[{S_CKV}:{S_CKV+3}], 0 offen", "pf")
    e(f"buffer_load_dword v{V_PD}, v5, s[{S_W}:{S_W+3}], 0 offen", "pf")
    e("v_add_u32 v144, 256, v7")
    e("v_add_u32 v145, 0x100000, v5")
    e(f"v_add_u32 v{V_PA}, {PFD*128}, v{V_PA}")
    e(f"v_add_u32 v{V_PB}, {PFD*0x80000}, v{V_PB}")
    e("s_lshl_b32 s7, s36, 1")
    e("s_sub_u32 s39, 3, s7")
    e("s_add_u32 s7, s7, 4")
    e("s_cmp_eq_u32 s37, 1")
    e("s_cselect_b32 s7, s7, s39")
    e("s_mov_b32 s39, 0xfff80000")
    e("s_cselect_b32 s39, 0x80000, s39")
    e("s_lshl_b32 s7, s7, 3")
    e("s_add_u32 s7, s7, s34")
    e("s_lshl_b32 s7, s7, 5")
    e("v_add_u32 v6, s7, v1")
    e("v_lshlrev_b32 v6, 11, v6")
    e("v_and_b32 v7, 7, v0")
    e(f"v_xor_b32 v7, v7, v{G}")
    e("v_lshlrev_b32 v7, 4, v7")
    for j in range(8):
        if j == 4:
            e("v_add_u32 v6, s39, v6")
        e(f"v_xor_b32 v{V_DA+j}, {((j ^ (j >> 1)) & 1) << 6}, v7")
        e(f"v_add_u32 v{V_DA+j}, v{V_DA+j}, v6")
        if j & 3:
            e(f"v_add_u32 v{V_DA+j}, {(j&3)*(16384-1024)}, v{V_DA+j}")
    e("s_lshl_b32 s7, s3, 4")
    e(f"v_add_u32 v6, s7, v{HI}")
    e("v_lshlrev_b32 v6, 13, v6")
    e(f"s_lshl_b32 s7, s{S_HA}, 9")
    e("v_add_u32 v6, s7, v6")
    e(f"v_lshrrev_b32 v7, 2, v{L31}")
    e(f"v_xor_b32 v7, v7, v{HI}")
    e("v_lshlrev_b32 v7, 6, v7")
    e(f"v_lshl_add_u32 v7, v{C}, 4, v7")
    for j in range(8):
        e(f"v_xor_b32 v{V_DB+j}, {((j&1)<<7) ^ (48 * ((j >> 2) & 1) if A16 else 0)}, v7")
        e(f"v_add_u32 v{V_DB+j}, v{V_DB+j}, v6")
        if j:
            e(f"v_add_u32 v{V_DB+j}, {j*16384-(j&3)*1024}, v{V_DB+j}")
    e(f"s_lshl_b32 s{S_W8K}, s3, 13")
    e(f"s_mov_b32 s{SA}, 0")
    e(f"s_mov_b32 s{SB}, 0")

    def dma_items(b):
        it = []
        for j in range(8):
            pre = [f"s_add_u32 m0, s{S_W8K}, {b*32768 + (j>>2)*4096}"] if (j & 3) == 0 else []
            post = [f"s_add_u32 s{SA}, s{SA}, 128"] if j == 7 else []
            it.append((pre, f"buffer_load_dwordx4 v{V_DA+j}, s[{S_CKV}:{S_CKV+3}], s{SA} offen offset:{(j&3)*1024} lds", post))
        for j in range(8):
            pre = [f"s_add_u32 m0, s{S_W8K}, {65536 + b*32768 + (j>>2)*4096}"] if (j & 3) == 0 else []
            post = [f"s_add_u32 s{SB}, s{SB}, 0x80000"] if j == 7 else []
            it.append((pre, f"buffer_load_dwordx4 v{V_DB+j}, s[{S_W}:{S_W+3}], s{SB} offen offset:{(j&3)*1024} lds", post))
        return it

    NK3 = opt.get('nk3', 12) if A16 else 8
    q = Seg("tmp")
    srd(q, S_WS, P_WS, WS_BYTES)
    srd(q, S_X, P_X, X_BYTES)
    srd(q, S_WQ, P_WQ, WQ_BYTES)
    srd(q, S_W1, P_W1, W1_BYTES)
    if not A16:
        q("s_lshl_b32 s7, s36, 7")
        q(f"v_add_u32 v6, s7, v{L31}")
        q("v_lshlrev_b32 v6, 7, v6")
        q(f"v_bfe_u32 v7, v{L31}, 1, 3")
        q(f"v_xor_b32 v7, v7, v{HI}")
        q("v_lshl_add_u32 v6, v7, 4, v6")
        for k in range(4):
            q(f"v_xor_b32 v{V_AA+k}, {k<<5}, v6")
        q(f"v_lshrrev_b32 v6, 1, v{G}")
        q(f"v_lshl_add_u32 v6, v6, 3, v{R4}")
        q("v_lshlrev_b32 v6, 9, v6")
        q("s_lshl_b32 s7, s37, 8")
        q("s_add_u32 s7, s7, 0x10000")
        q("v_add_u32 v6, s7, v6")
        q(f"v_and_b32 v7, 1, v{G}")
        q("v_lshl_add_u32 v6, v7, 5, v6")
        q(f"v_lshl_add_u32 v6, v{C}, 3, v6")
        for nb in range(4):
            q(f"v_xor_b32 v7, {nb}, v{R4}")
            q(f"v_lshl_add_u32 v{V_AB+nb}, v7, 6, v6")
    else:
        q("v_and_b32 v6, 15, v0")
        q("v_and_b32 v7, 8, v0")
        q(f"v_mul_u32_u24 v7, s{S_KIND}, v7")
        q("v_add_u32 v6, v6, v7")
        q("s_lshl_b32 s7, s36, 7")
        q("v_add_u32 v6, s7, v6")
        q("v_lshlrev_b32 v6, 7, v6")
        q("v_bfe_u32 v7, v0, 1, 3")
        q(f"v_xor_b32 v7, v7, v{G}")
        q(f"v_lshl_add_u32 v{V_AA16}, v7, 4, v6")
        q(f"v_xor_b32 v{V_AA16+1}, 64, v{V_AA16}")
        q(f"v_lshl_add_u32 v6, v{G}, 3, v{R4}")
        q("v_lshlrev_b32 v6, 9, v6")
        q("s_lshl_b32 s7, s37, 8")
        q("s_add_u32 s7, s7, 0x10000")
        q("v_add_u32 v6, s7, v6")
        q(f"v_and_b32 v7, 1, v{C}")
        q("v_lshl_add_u32 v6, v7, 3, v6")
        q(f"v_and_b32 v7, 1, v{G}")
        q("v_mul_u32_u24 v7, 3, v7")
        q(f"v_lshl_add_u32 v7, v{R4}, 2, v7")
        q(f"v_lshrrev_b32 v231, 1, v{C}")
        q(f"s_sub_u32 s7, 1, s{S_KIND}")
        q("v_lshlrev_b32 v231, s7, v231")
        q("v_xor_b32 v7, v7, v231")
        q("v_lshl_add_u32 v6, v7, 4, v6")
        for i in range(8):
            nat, perm = i << 5, ((i >> 1) << 6) | ((i & 1) << 4)
            if nat == perm:
                q(f"v_xor_b32 v{V_AB16+i}, {nat}, v6")
            else:
                q(f"s_mul_i32 s7, s{S_KIND}, {nat - perm}")
                q(f"s_add_u32 s7, s7, {perm}")
                q(f"v_xor_b32 v{V_AB16+i}, s7, v6")
    q("s_lshl_b32 s7, s3, 4")
    q(f"v_add_u32 v6, s7, v{G}")
    q(f"v_xor_b32 v7, v{R4}, v{G}")
    q("v_lshlrev_b32 v7, 6, v7")
    q(f"v_lshl_add_u32 v7, v{C}, 4, v7")
    q(f"s_lshl_b32 s38, s{S_HEAD}, 9")
    q(f"v_lshlrev_b32 v{V_DQ}, 13, v6")
    q(f"v_add3_u32 v{V_DQ}, v{V_DQ}, v7, s38")
    for j in range(1, 4):
        q(f"v_add_u32 v{V_DQ+j}, {j*4*8192 - j*1024}, v{V_DQ}")
    q(f"s_mul_i32 s39, s{S_HEAD}, 224")
    q(f"v_mul_u32_u24 v{V_D1+3}, 3584, v6")
    q(f"v_add3_u32 v{V_D1+3}, v{V_D1+3}, v7, s39")
    q(f"v_lshrrev_b32 v6, 1, v{G}")
    q(f"v_lshl_add_u32 v6, v6, 3, v{R4}")
    q("v_lshlrev_b32 v6, 8, v6")
    q(f"v_and_b32 v7, 1, v{G}")
    q("v_lshl_add_u32 v6, v7, 5, v6")
    q(f"v_lshl_add_u32 v6, v{C}, 3, v6")
    for nb in range(4):
        q(f"v_xor_b32 v7, {nb}, v{R4}")
        q(f"v_lshl_add_u32 v{V_AT+nb}, v7, 6, v6")
        q(f"v_add_u32 v{V_AT+4+nb}, 0x10000, v{V_AT+nb}")
    q(f"s_mul_i32 s7, s{S_QT}, 28")
    q("s_mul_i32 s6, s3, 7")
    q("s_add_u32 s7, s7, s6")
    q("v_lshrrev_b32 v6, 2, v0")
    q("v_add_u32 v6, s7, v6")
    q("v_lshlrev_b32 v7, 13, v6")
    q(f"v_lshl_add_u32 v7, v{C}, 7, v7")
    q("v_add_u32 v7, s38, v7")
    q("v_subrev_u32 v6, 7, v6")
    q("v_mul_u32_u24 v6, 3584, v6")
    q(f"v_min_u32 v231, 2, v{C}")
    q("v_lshl_add_u32 v6, v231, 7, v6")
    q("v_add_u32 v6, s39, v6")
    q(f"v_min_u32 v6, {W1_BYTES-4}, v6")
    q("v_cmp_gt_u32 vcc, 28, v0")
    q("s_lshr_b32 s7, s2, 3")
    q("s_lshl_b32 s7, s7, 2")
    q("v_cndmask_b32 v6, v6, v7, vcc")
    q(f"v_mov_b32 v{V_GP}, s{P_W1}")
    q(f"v_mov_b32 v{V_GP+1}, s{P_W1+1}")
    q(f"v_mov_b32 v7, s{P_WQ}")
    q(f"v_mov_b32 v231, s{P_WQ+1}")
    q(f"v_cndmask_b32 v{V_GP}, v{V_GP}, v7, vcc")
    q(f"v_cndmask_b32 v{V_GP+1}, v{V_GP+1}, v231, vcc")
    q("s_add_u32 s7, s7, s3")
    q("s_mul_i32 s7, s7, 640")
    q("s_add_u32 s7, s7, M_B-M_PC0")
    q("v_and_b32 v7, 7, v0")
    q("v_min_u32 v7, 4, v7")
    q("v_lshl_add_u32 v7, v7, 7, s7")
    q("v_min_u32 v7, M_CODE_END-M_PC0-8, v7")
    q("v_cmp_gt_u32 vcc, 56, v0")
    q("v_mov_b32 v231, s50")
    q("v_mov_b32 v232, s51")
    q("v_cndmask_b32 v6, v7, v6, vcc")
    q(f"v_cndmask_b32 v{V_GP}, v231, v{V_GP}, vcc")
    q(f"v_cndmask_b32 v{V_GP+1}, v232, v{V_GP+1}, vcc")
    q(f"v_add_co_u32 v{V_GP}, vcc, v{V_GP}, v6")
    q(f"v_addc_co_u32 v{V_GP+1}, vcc, 0, v{V_GP+1}, vcc")
    q("s_add_u32 s7, s36, 3")
    q("s_lshl_b32 s7, s7, 3")
    q("s_add_u32 s7, s7, s34")
    q(f"s_lshl_b32 s{S_KVBASE}, s{S_HA}, 6")
    q(f"s_add_u32 s{S_KVBASE}, s{S_KVBASE}, s7")
    q(f"s_lshl_b32 s{S_KVBASE}, s{S_KVBASE}, 15")
    q(f"s_lshl_b32 s7, s{S_KIND}, 14")
    q(f"s_add_u32 s{S_KVBASE}, s{S_KVBASE}, s7")
    q("s_lshl_b32 s7, s37, 13")
    q(f"s_add_u32 s{S_KVBASE}, s{S_KVBASE}, s7")
    q("s_lshl_b32 s7, s36, 19")
    q(f"s_sub_u32 s{S_KVSTR}, s7, 0x40000")
    q(f"s_lshl_b32 s7, s{S_QT}, 2")
    q(f"v_and_b32 v{V_FO}, 15, v0")
    q(f"v_lshlrev_b32 v{V_FO}, 3, v{V_FO}")
    q(f"s_add_u32 s{S_XNB}, s7, s3")
    q(f"s_mul_i32 s{S_XNB}, s{S_XNB}, 28672")
    q(f"s_add_u32 s{S_XNB}, s{S_XNB}, {XN_OFF}")
    q(f"v_lshlrev_b32 v{V_L16}, 4, v0")
    q(f"s_lshl_b32 s7, s{S_QT}, 4")
    q(f"s_add_u32 s7, s7, s{S_HEAD}")
    q("s_mul_i32 s7, s7, 7168")
    q("v_min_u32 v6, 56, v0")
    q("v_lshl_add_u32 v146, v6, 7, s7")
    attn.setup_s(q)
    q(f"s_mov_b32 s{S_QST}, s{P_WS}")
    q(f"s_mov_b32 s{S_QST+1}, s{P_WS+1}")
    q(f"s_cmp_ge_u32 s{S_QT}, 8")
    q(f"s_cselect_b32 s{S_QST+2}, {WS_BYTES:#x}, 0")
    q(f"s_mov_b32 s{S_QST+3}, 0x20000")
    q(f"s_lshl_b32 s{S_QB}, s{S_PAIR}, 2")
    q(f"s_add_u32 s{S_QB}, s{S_QB}, s3")
    q(f"s_lshl_b32 s{S_QB}, s{S_QB}, 14")
    q(f"s_add_u32 s{S_QB}, s{S_QB}, {Q_OFF}")
    for i in q.ins:
        e(i.text)
    stamp(e, opt, "setup")
    e.wait_tag("pf")
    stamp(e, opt, "touch")
    for tag, items in (("t0", dma_items(0)), ("dma", dma_items(1)[:NK3])):
        for pre, d, post in items:
            run(e, pre + [(d, tag)] + post)
    e(f"buffer_load_dword v{V_PD}, v144, s[{S_CKV}:{S_CKV+3}], 0 offen", "pf")
    e(f"buffer_load_dword v{V_PD}, v145, s[{S_W}:{S_W+3}], 0 offen", "pf")
    e(f"buffer_load_dword v{V_PD}, v146, s[{S_X}:{S_X+3}], 0 offen", "pf")
    e("s_or_b32 s7, s2, s3")
    e("s_cbranch_scc1 M_NOPUB")
    e("s_memrealtime s[4:5]")
    e("v_mov_b32 v6, 0")
    e.wait_force(lgkm=0)
    e("s_or_b32 s4, s4, 1")
    e("v_mov_b32 v7, s4")
    e("s_mov_b64 exec, 1")
    e.raw(f"global_store_dword v6, v7, s[{P_DBG}:{P_DBG+1}] sc1")
    e("s_mov_b64 exec, -1")
    e.label("M_NOPUB")
    stamp(e, opt, "dma")
    stamp(e, opt, 1)

    def layernorm(e, n, reduce, norm, T=V_T):
        e("s_mov_b32 s7, 0x3f803f80")
        for k in range(8):
            e(f"v_mov_b32 v{T+k}, 0")
        for r in range(n):
            e(f"v_dot2_f32_bf16 v{T+(r&3)}, v{V_XN+r}, s7, v{T+(r&3)}")
            e(f"v_dot2_f32_bf16 v{T+4+(r&3)}, v{V_XN+r}, v{V_XN+r}, v{T+4+(r&3)}")
        e.nop(4)
        e(f"v_add_f32 v{T}, v{T}, v{T+1}")
        e(f"v_add_f32 v{T+2}, v{T+2}, v{T+3}")
        e(f"v_add_f32 v{T+4}, v{T+4}, v{T+5}")
        e(f"v_add_f32 v{T+6}, v{T+6}, v{T+7}")
        e(f"v_add_f32 v{T}, v{T}, v{T+2}")
        e(f"v_add_f32 v{T+4}, v{T+4}, v{T+6}")
        for step in reduce:
            if step == 8:
                e.nop(2)
                e(f"v_add_f32_dpp v{T}, v{T}, v{T} row_ror:8 row_mask:0xf bank_mask:0xf")
                e(f"v_add_f32_dpp v{T+4}, v{T+4}, v{T+4} row_ror:8 row_mask:0xf bank_mask:0xf")
            else:
                e(f"v_mov_b32 v{T+1}, v{T}")
                e(f"v_mov_b32 v{T+5}, v{T+4}")
                e.nop(2)
                e(f"v_permlane{step}_swap_b32 v{T}, v{T+1}")
                e(f"v_permlane{step}_swap_b32 v{T+4}, v{T+5}")
                e(f"v_add_f32 v{T}, v{T}, v{T+1}")
                e(f"v_add_f32 v{T+4}, v{T+4}, v{T+5}")
        e(f"v_mul_f32 v{T}, {f32(1/448)}, v{T}")
        e(f"v_mul_f32 v{T+4}, {f32(1/448)}, v{T+4}")
        e(f"v_fma_f32 v{T+4}, -v{T}, v{T}, v{T+4}")
        e(f"v_max_f32 v{T+4}, 0, v{T+4}")
        e(f"v_add_f32 v{T+4}, {f32(1e-5)}, v{T+4}")
        e(f"v_rsq_f32 v{T+4}, v{T+4}")
        e(f"v_mul_f32 v{T+4}, {f32(QSCALE)}, v{T+4}")
        e(f"v_mul_f32 v{T}, v{T}, v{T+4}")
        e(f"v_mov_b32 v{T+5}, v{T+4}")
        e(f"v_sub_f32 v{T}, 0, v{T}")
        e(f"v_mov_b32 v{T+1}, v{T}")
        for r in norm:
            t = T + 8 + (r % 8) * 2
            e(f"v_lshlrev_b32 v{t}, 16, v{V_XN+r}")
            e(f"v_and_b32 v{t+1}, 0xffff0000, v{V_XN+r}")
            e(f"v_pk_fma_f32 {v(t,2)}, {v(t,2)}, {v(T+4,2)}, {v(T,2)}")
            e(f"v_cvt_pk_bf16_f32 v{V_XN+r}, v{t}, v{t+1}")

    def ops_of(fn):
        t = Seg("tmp")
        fn(t)
        out, k = [], 0
        ins = t.ins
        while k < len(ins):
            x = (ins[k].text, ins[k].tag) if ins[k].tag else ins[k].text
            if ins[k].op.startswith("s_cmp"):
                out.append([x, ins[k + 1].text])
                k += 2
            else:
                out.append(x)
                k += 1
        return out

    XA, XS, LT = V_XN + 36, V_XN + 37, V_XN + 52
    SX0, SX1 = S_QC, S_KVC

    def x_loads(h):
        h(f"s_lshl_b32 s{SX0}, s3, 8")
        h(f"s_add_u32 s{SX1}, s{SX0}, 128")
        h("s_cmp_eq_u32 s3, 3")
        h(f"s_cselect_b32 s{SX1}, 0, s{SX1}")
        h(f"s_lshl_b32 s7, s{S_QT}, 7")
        h(f"s_lshl_b32 s6, s{S_HEAD}, 3")
        h("s_add_u32 s7, s7, s6")
        h("v_and_b32 v6, 7, v0")
        h("v_add_u32 v6, s7, v6")
        h("v_mul_u32_u24 v6, 896, v6")
        h("v_lshrrev_b32 v7, 3, v0")
        h(f"v_lshl_add_u32 v{XA}, v7, 4, v6")
        h(f"v_mov_b32 v{V_XN+41}, 0")
        for i in range(7):
            h(f"buffer_load_dwordx4 {v(V_XN+i*4,4)}, v{XA}, s[{S_X}:{S_X+3}], 0 offen offset:{i*128}", "x")
        h(f"buffer_load_dwordx4 {v(V_XN+28,4)}, v{XA}, s[{S_X}:{S_X+3}], s{SX0} offen", "x")
        h(f"buffer_load_dwordx4 {v(V_XN+32,4)}, v{XA}, s[{S_X}:{S_X+3}], s{SX1} offen", "x")
        h(f"global_load_dword v{V_XN+43}, v{V_XN+41}, s[{P_DBG}:{P_DBG+1}]", "x")

    def ln_pub(h):
        h(f"s_lshr_b32 s5, s{S_HEAD}, 2")
        h(f"s_lshl_b32 s6, s{S_QT}, 2")
        h("s_add_u32 s5, s5, s6")
        h("s_mul_i32 s5, s5, 28672")
        h(f"s_add_u32 s5, s5, {XN_OFF}")
        h(f"s_lshl_b32 s{SX0}, s{SX0}, 5")
        h(f"s_lshl_b32 s{SX1}, s{SX1}, 5")
        h(f"s_add_u32 s{SX0}, s{SX0}, s5")
        h(f"s_add_u32 s{SX1}, s{SX1}, s5")
        h(f"s_and_b32 s6, s{S_HEAD}, 3")
        h("s_lshl_b32 s6, s6, 7")
        h("v_and_b32 v6, 7, v0")
        h("v_lshlrev_b32 v6, 4, v6")
        h("v_lshrrev_b32 v7, 3, v0")
        h("v_lshl_add_u32 v6, v7, 9, v6")
        h(f"v_add_u32 v{XS}, s6, v6")
        layernorm(h, 28, (8, 16, 32), range(28, 36), LT)
        h(f"buffer_store_dwordx4 {v(V_XN+28,4)}, v{XS}, s[{S_WS}:{S_WS+3}], s{SX0} offen sc1", "st")
        h(f"buffer_store_dwordx4 {v(V_XN+32,4)}, v{XS}, s[{S_WS}:{S_WS+3}], s{SX1} offen sc1", "st")

    def gtouch(k):
        lo = 0xffff << (16 * (k & 1))
        return [[f"s_mov_b32 exec_lo, {lo if k < 2 else 0}", f"s_mov_b32 exec_hi, {0 if k < 2 else lo}",
                 (f"global_load_dword v{V_PD}, {v(V_GP,2)}, off", "pf"), "s_mov_b64 exec, -1"]]

    hk = Seg("m_hook")
    hk.label("M_HOOK")
    hk("s_mov_b32 s6, 0")
    hk.label("M_NSPIN")
    hk(f"v_readfirstlane_b32 s{S_N0}, v{V_XN+43}")
    hk(f"s_cmp_lg_u32 s{S_N0}, 0")
    hk("s_cbranch_scc1 M_NOK")
    hk("s_sleep 8")
    hk(f"global_load_dword v{V_XN+43}, v{V_XN+41}, s[{P_DBG}:{P_DBG+1}] sc1")
    hk.wait_force(vm=0)
    hk("s_add_u32 s6, s6, 1")
    hk(f"s_cmp_lt_u32 s6, {PMAX}")
    hk("s_cbranch_scc1 M_NSPIN")
    hk.label("M_NOK")
    hk(f"s_xor_b32 s{S_N1}, s{S_N0}, {NONCE_K:#x}")
    hk("s_cmp_eq_u32 s3, 0")
    hk(f"s_cselect_b32 s{S_BO}, 3, 99")
    hk(f"s_mov_b64 s[{S_GM}:{S_GM+1}], 0xff")
    hk("s_branch M_HOOK_RET")
    hk.label("M_SIGX")
    flag_line(hk, 7, FL_XN, S_QT)
    hk(f"s_lshl_b32 s6, s{S_HEAD}, 3")
    flag_set(hk, S_WS, 7, "s6", V_XN + 40)
    hk.label("M_HOOK_RET")
    hk(f"s_cmp_eq_u32 s{S_KIND}, 0")
    hk("s_cbranch_scc1 M_LOOP_K")
    hk("s_branch M_LOOP_V")

    def frag_reads(b, ks, st):
        r = []
        fa, fb = V_FA + st * 16, V_FB + st * 16
        order = [("a", 0), ("b", 0), ("a", 1), ("a", 2), ("a", 3), ("b", 1), ("b", 2), ("b", 3)]
        for t, i in order:
            if t == "a":
                r.append(f"ds_read_b128 {v(fa+i*4,4)}, v{V_AA+ks} offset:{i*4096 + b*32768}")
            else:
                for u in range(2):
                    r.append(f"ds_read_b64_tr_b16 {v(fb+i*4+u*2,2)}, v{V_AB+i} offset:{(16*ks+4*u)*512 + b*32768}")
        return r

    e.wait_tag("t0")
    stamp(e, opt, "t0")
    e("s_barrier")
    stamp(e, opt, "bar")
    if not A16:
        for r in frag_reads(0, 0, 0):
            e(r)
    e(f"s_mov_b32 s{S_LP}, 2")
    e(f"s_cmp_eq_u32 s{S_KIND}, 0")
    e("s_cbranch_scc0 M_PRE_V")
    pro = e

    def place_dma(fill, items, g0, g1, tag="dma"):
        n = len(items)
        for k, item in enumerate(items):
            pre, d, post = item[:3]
            g = g0 + (k * (g1 - g0)) // n
            for x in pre:
                fill.setdefault(g - 1, []).append(x)
            fill.setdefault(g, []).append((d, item[3] if len(item) > 3 else tag))
            for x in post:
                fill.setdefault(g, []).append(x)

    def ktile(e, kind, b, dma_k0, dma_k3, last=False, pref=True, tag3="dma", tag0="dma", xn=None):
        for ks in range(4):
            st = ks & 1
            fa, fb = V_FA + st * 16, V_FB + st * 16
            spine = []
            for i in range(4):
                for j in range(4):
                    acc = a((i * 4 + j) * 16, 16)
                    W, Cc = v(fb + i * 4, 4), v(fa + j * 4, 4)
                    A, B = (W, Cc) if kind == 0 else (Cc, W)
                    spine.append(f"{MFMA} {acc}, {A}, {B}, {acc}")
            fill = {}
            fill[-1] = [lambda e: e.wait_force(lgkm=0)]
            if ks < 3:
                spread(fill, frag_reads(b, ks + 1, st ^ 1), 0, 12)
                if ks == 0 and dma_k0:
                    place_dma(fill, dma_k0, 1, 16, tag0)
                if ks == 1 and pref:
                    fill.setdefault(4, []).append((f"buffer_load_dword v{V_PD}, v{V_PA}, s[{S_CKV}:{S_CKV+3}], s{SA} offen", "pf"))
                    fill.setdefault(13, []).append((f"buffer_load_dword v{V_PD}, v{V_PB}, s[{S_W}:{S_W+3}], s{SB} offen", "pf"))
                if ks in (1, 2) and xn is not None:
                    k0 = xn + (ks - 1) * 7
                    for k in range(k0, k0 + 7):
                        g = 1 + 2 * (k - k0)
                        if k % 4 == 0 and k:
                            fill.setdefault(g - 1, []).append(f"s_add_u32 s{S_XNB}, s{S_XNB}, 4096")
                        fill.setdefault(g, []).append((f"buffer_load_dwordx4 {v(V_XN+4*k,4)}, v{V_L16}, s[{S_WS}:{S_WS+3}], s{S_XNB} offen offset:{(k%4)*1024} sc1", "xn"))
            else:
                if last:
                    fill[0] = ["s_barrier"]
                else:
                    fill[0] = [lambda e: e.wait_force(vm=(NPF if pref else 0) + (14 if xn is not None else 0)), "s_barrier"]
                    spread(fill, frag_reads(b ^ 1, 0, 0), 0, 12)
                if dma_k3:
                    place_dma(fill, dma_k3, 2, 16, tag3)
            weave(e, spine, fill)

    def c_read(kind, b, s_, j):
        off = j * 2048 if kind == 0 else (j >> 1) * 4096 + (j & 1) * 1024
        return f"ds_read_b128 {v(V_FA + s_*32 + j*4, 4)}, v{V_AA16 + ((s_ ^ j) & 1)} offset:{off + b*32768}"

    def w_read(b, s_, i):
        return [f"ds_read_b64_tr_b16 {v(V_WR + i*4 + 2*u, 2)}, v{V_AB16+i} offset:{(32*s_ + 4*u)*512 + b*32768}" for u in range(2)]

    def ktile16(e, kind, b, dma_k0, dma_k3, last=False, pref=True, tag3="dma", tag0="dma", xn=None, first=False, head=False, extra=None):
        for s_ in range(2):
            spine = []
            for i in range(8):
                for j in range(8):
                    if kind == 0:
                        dt, bb, kb, nb = i >> 1, i & 1, j >> 1, j & 1
                    else:
                        dt, nb, kb, bb = i >> 1, i & 1, j >> 1, j & 1
                    acc = a((kb * 4 + dt) * 16 + nb * 8 + bb * 4, 4)
                    W, Cc = v(V_WR + i * 4, 4), v(V_FA + s_ * 32 + j * 4, 4)
                    A, B = (W, Cc) if kind == 0 else (Cc, W)
                    spine.append(f"v_mfma_f32_16x16x32_bf16 {acc}, {A}, {B}, {0 if first and s_ == 0 else acc}")
            fill = {}
            nb_, ns = (b, 1) if s_ == 0 else (b ^ 1, 0)
            more = not (last and s_ == 1)
            for i in range(8):
                r = v(V_WR + i * 4, 4)
                fill.setdefault(8 * i - 1, []).append(lambda e, r=r: wait_reg(e, r))
            r = v(V_FA + s_ * 32 + 28, 4)
            fill.setdefault(-1, []).append(lambda e, r=r: wait_reg(e, r))
            if s_ == 1:
                nx = 14 if xn is not None else 0
                if last:
                    fill.setdefault(7, []).extend([lambda e: e.wait(lgkm=0), "s_barrier"])
                elif pref and not head:
                    fill.setdefault(7, []).extend([lambda e: e.wait_force(vm=NPF + 1, lgkm=0), "s_barrier"])
                else:
                    fill.setdefault(7, []).extend([lambda e: e.wait_tag("dma"), lambda e: e.wait(lgkm=0), "s_barrier"])
            if more:
                for i in range(8):
                    wr = w_read(nb_, ns, i)
                    fill.setdefault(8 * i + 7, []).append(wr[0])
                    fill.setdefault(min(8 * i + 8, 63), []).append(wr[1])
                for j in range(8):
                    fill.setdefault(10 + 6 * j, []).append(c_read(kind, nb_, ns, j))
            if s_ == 0:
                if dma_k0:
                    place_dma(fill, dma_k0, 2, min(30, 2 + (7 * len(dma_k0)) // 2), tag0)
                if pref:
                    fill.setdefault(36, []).append((f"buffer_load_dword v{V_PD}, v{V_PA}, s[{S_CKV}:{S_CKV+3}], s{SA} offen", "pf"))
                    fill.setdefault(44, []).append((f"buffer_load_dword v{V_PD}, v{V_PB}, s[{S_W}:{S_W+3}], s{SB} offen", "pf"))
                if xn is not None:
                    for k in range(xn, xn + 14):
                        g = 31 + ((k - xn) * 32) // 14
                        if k % 4 == 0 and k:
                            fill.setdefault(g - 1, []).append(f"s_add_u32 s{S_XNB}, s{S_XNB}, 4096")
                        fill.setdefault(g, []).append((f"buffer_load_dwordx4 {v(V_XN+4*k,4)}, v{V_L16}, s[{S_WS}:{S_WS+3}], s{S_XNB} offen offset:{(k%4)*1024} sc1", "xn"))
            elif dma_k3:
                place_dma(fill, dma_k3, 11, 62, tag3)
            if opt.get("x_a_nodma"):
                for g in fill:
                    fill[g] = [x for x in fill[g] if not (isinstance(x, tuple) and x[1] in ("dma", "pf"))]
            if opt.get("x_a_nords"):
                for g in fill:
                    fill[g] = [x for x in fill[g] if not (isinstance(x, str) and x.startswith("ds_read"))]
            if opt.get("a_level", 1):
                seq = [(g, x) for g in sorted(fill) for x in fill[g]]
                new, nxt = {}, -1
                for g, x in seq:
                    t = x[0] if isinstance(x, tuple) else x
                    heavy = isinstance(t, str) and t.startswith(("ds_", "buffer_", "global_"))
                    fixed = callable(x) or t == "s_barrier"
                    if fixed:
                        new.setdefault(g, []).append(x)
                        continue
                    gg = min(63, max(g, nxt)) if heavy else min(63, max(g, nxt - 1))
                    new.setdefault(gg, []).append(x)
                    if heavy:
                        nxt = gg + 1
                fill = new
            for g0, g1, ops in (extra or {}).get(s_, []):
                pour(fill, ops, g0, g1)
            weave(e, spine, fill)

    if A16:
        ktile = ktile16

    NT = 21

    def b_dma(u):
        part, kt = divmod(u, 7)
        slot = SLOT_ORDER[u % 10]
        it = []
        for j in range(4):
            pre = []
            if j == 0:
                pre.append(f"s_add_u32 m0, s{S_W4K}, {slot*16384}")
                off = kt * 64 * 3584 if part == 2 else kt * 64 * 8192 + part * 256
                pre.append(f"s_mov_b32 s{S_BO}, {off}")
            if part == 2:
                d = f"buffer_load_dwordx4 v{V_DQ+j}, s[{S_W1}:{S_W1+3}], s{S_BO} offen offset:{j*1024} lds"
            else:
                d = f"buffer_load_dwordx4 v{V_DQ+j}, s[{S_WQ}:{S_WQ+3}], s{S_BO} offen offset:{j*1024} lds"
            it.append((pre, d, [], f"b{u//2}"))
        return it

    segs = [pro]
    traces = [[hk]]
    tails = {}
    extra = []
    vm_loop = [("dma", frozenset())] * 40
    for kind in range(2):
        nm = "KV"[kind]
        pre = Seg(f"m_pre{nm}", pro.lds, pro.vm)
        pre.label(f"M_PRE_{nm}")
        if A16:
            seq = sorted([(8 * i + 7, 0, w_read(0, 0, i)[0]) for i in range(8)] + [(min(8 * i + 8, 63), 1, w_read(0, 0, i)[1]) for i in range(8)]
                         + [(10 + 6 * j, 2, c_read(kind, 0, 0, j)) for j in range(8)])
            for _, _, x in seq:
                pre(x)
        d0, d1 = dma_items(0), dma_items(1)
        lno = ops_of(ln_pub)
        ktile(pre, kind, 0, d1[NK3:], d0[:NK3], first=True, head=True)
        ktile(pre, kind, 1, d0[NK3:], d1[:NK3], head=True, extra={0: [(18, 64, ops_of(x_loads))]})
        stamp(pre, opt, "it1", raw=True)
        ktile(pre, kind, 0, d1[NK3:], d0[:NK3], head=True, extra={1: [(9, 64, lno[:70])]})
        ktile(pre, kind, 1, d0[NK3:], d1[:NK3], head=True, extra={0: [(0, 60, lno[70:])]})
        stamp(pre, opt, "it2", raw=True)
        pre("s_branch M_HOOK")
        lp = Seg(f"m_loop{nm}", pre.lds, vm_loop)
        lp.label(f"M_LOOP_{nm}")
        gt = [["s_mov_b64 exec, s[70:71]" if False else f"s_mov_b64 exec, s[{S_GM}:{S_GM+1}]", (f"global_load_dword v{V_PD}, {v(V_GP,2)}, off", "pf"),
               "s_mov_b64 exec, -1"], [f"s_lshl_b64 s[{S_GM}:{S_GM+1}], s[{S_GM}:{S_GM+1}], 8", f"s_or_b32 s{S_GM}, s{S_GM}, 1"]]
        ktile(lp, kind, 0, d1[NK3:], d0[:NK3], extra={0: [(50, 56, gt)]})
        ktile(lp, kind, 1, d0[NK3:], d1[:NK3], extra={0: [(50, 56, gt)]})
        assert opt.get('x_a_nords') or lp.lds == pre.lds, (len(lp.lds), len(pre.lds))
        lp(f"s_add_u32 s{S_LP}, s{S_LP}, 1")
        for it in range(3, 8):
            if f"it{it}" in opt.get("sp", []):
                lp(f"s_cmp_lg_u32 s{S_LP}, {it}")
                lp(f"s_cbranch_scc1 M_NS{it}_{nm}")
                stamp(lp, opt, f"it{it}", raw=True)
                lp.label(f"M_NS{it}_{nm}")
        lp(f"s_cmp_eq_u32 s{S_LP}, s{S_BO}")
        lp("s_cbranch_scc1 M_SIGX")
        lp(f"s_cmp_lg_u32 s{S_LP}, 6")
        lp(f"s_cbranch_scc1 M_NOPOLL_{nm}")
        flag_line(lp, 7, FL_XN, S_QT)
        lp(f"buffer_load_dwordx2 {v(V_FL,2)}, v{V_FO}, s[{S_WS}:{S_WS+3}], s7 offen sc1", "pf")
        lp.label(f"M_NOPOLL_{nm}")
        lp(f"s_cmp_lt_u32 s{S_LP}, 7")
        lp(f"s_cbranch_scc1 M_LOOP_{nm}")
        tl = Seg(f"m_tail{nm}", lp.lds, lp.vm)
        tl.label(f"M_TAIL{kind}")
        bd = sum((b_dma(u) for u in range(10)), [])
        flag_test(tl, V_FL)
        tl(f"s_cselect_b32 s{S_XNF}, 1, 0")
        ktile(tl, kind, 0, d1[NK3:] + bd[:8], bd[8:20], pref=False, xn=0)
        ktile(tl, kind, 1, bd[20:24], bd[24:36], last=True, pref=False, xn=14)
        if kind == 0:
            tl("s_branch M_B")
        segs += [pre, lp, tl] + ([hk] if kind == 0 else [])
        tails[kind] = tl
        traces.append([pro, pre, lp, lp, tl])

    e = Seg("m_b", tails[0].lds, tails[0].vm)
    e.label("M_B")
    stamp(e, opt, 2)
    stamp(e, opt, "b")
    e(f"s_cmp_lt_u32 s{S_XNF}, {99 if opt.get('force_fb') else 1}")
    e("s_cbranch_scc1 M_FB")
    e.label("M_FB_RET")
    for _ in range(opt.get("x_idle", 0)):
        e("s_sleep 32")
    srd(e, S_WO, P_WO, WO_BYTES)
    srd(e, S_W2, P_W2, W2_BYTES)
    attn.setup_dma(e)
    e(f"v_and_b32 v{V_ST}, 15, v0")
    e(f"v_lshlrev_b32 v{V_ST}, 4, v{V_ST}")
    e("v_lshrrev_b32 v6, 4, v0")
    e(f"v_lshl_add_u32 v{V_ST}, v6, 9, v{V_ST}")
    e(f"v_mov_b32 v6, v{V_D1+3}")
    for nb in range(4):
        e(f"v_add_u32 v{V_AT3+nb}, 0x20000, v{V_AT+nb}")
    fb = Seg("m_fb")
    fb.label("M_FB")
    fb.wait_force(vm=0)
    fb(f"s_lshl_b32 s7, s{S_QT}, 7")
    fb("s_lshl_b32 s6, s3, 5")
    fb("s_add_u32 s7, s7, s6")
    fb("v_and_b32 v6, 31, v0")
    fb("v_add_u32 v6, s7, v6")
    fb("v_mul_u32_u24 v6, 896, v6")
    fb("v_lshrrev_b32 v7, 5, v0")
    fb("v_lshl_add_u32 v6, v7, 4, v6")
    for ks in range(28):
        fb(f"buffer_load_dwordx4 {v(V_XN+ks*4,4)}, v6, s[{S_X}:{S_X+3}], 0 offen offset:{ks*32}", "x")
    layernorm(fb, 112, (32,), range(112))
    fb.nop(2)
    fb("s_branch M_FB_RET")
    extra.append(fb)

    D = opt.get("b_depth", 7)
    NF = NT * 16

    def b_read(f):
        u, rem = divmod(f, 16)
        ks, nb = divmod(rem, 4)
        slot = SLOT_ORDER[u % 10]
        fr = V_FA + (f % 8) * 4
        at = (V_AT, V_AT + 4, V_AT3)[slot >> 2] + nb
        return [f"ds_read_b64_tr_b16 {v(fr+2*h,2)}, v{at} offset:{(slot&3)*16384 + (16*ks+4*h)*256}" for h in range(2)]

    def kv_epi(b, t=8, o=8):
        kb, i = divmod(b, 4)
        ops = []
        if i == 0 and kb:
            ops.append(f"s_add_u32 s{S_KVBASE}, s{S_KVBASE}, s{S_KVSTR}")
        if i % 2 == 0:
            ops.append(f"s_add_u32 s{S_KVC}, s{S_KVBASE}, {KV_OFF + (i>>1)*4096}")
        for c in range(2):
            for r in range(8):
                ops.append(f"v_accvgpr_read_b32 v{t+r}, a{b*16+8*c+r}")
            for r in range(4):
                ops.append(f"v_cvt_pk_bf16_f32 v{t+o+r}, v{t+2*r}, v{t+2*r+1}")
            ops.append((f"buffer_store_dwordx4 {v(t+o,4)}, v{V_ST}, s[{S_WS}:{S_WS+3}], s{S_KVC} offen offset:{(i&1)*2048+c*256}{ST}", "kvst" if kb < 2 else "kvst2"))
        if opt.get("x_nokvst"):
            ops = [o for o in ops if not isinstance(o, tuple)]
        if opt.get("x_noepi"):
            ops = []
        return ops

    def q_epi(part):
        ops = []
        t = 20
        for nb in range(4):
            if nb % 2 == 0:
                ops.append(f"s_add_u32 s{S_QC}, s{S_QB}, {part*8192 + (nb>>1)*4096}")
            for c in range(2):
                if part == 0:
                    src = H_ACC[nb] + 8 * c
                else:
                    src = t
                    for r in range(8):
                        ops.append(f"v_accvgpr_read_b32 v{t+r}, a{nb*16+8*c+r}")
                for r in range(4):
                    ops.append(f"v_cvt_pk_bf16_f32 v{t+8+r}, v{src+2*r}, v{src+2*r+1}")
                ops.append((f"buffer_store_dwordx4 {v(t+8,4)}, v{V_L16}, s[{S_QST}:{S_QST+3}], s{S_QC} offen offset:{(nb&1)*2048 + c*1024} sc1", "qst"))
                for r in range(4):
                    ops.append(f"v_accvgpr_write_b32 a{A_Q2 + part*32 + nb*8 + c*4 + r}, v{t+8+r}")
        return ops

    GKV, GCHK, GQ = opt.get("g_kv", 6), opt.get("g_chk", 9), 9
    fl = attn.first_loads(S_KVE)
    spine, fill = [], {}
    e.wait_tag("b0")
    e("s_barrier")
    for f in range(D):
        for r in b_read(f):
            e(r)
    place_dma(fill, b_dma(9), 1, 16)
    for f in range(NF):
        u, rem = divmod(f, 16)
        part, kt = divmod(u, 7)
        ks, nb = divmod(rem, 4)
        acc = a(nb * 16, 16) if part == 1 else v(H_ACC[nb], 16)
        c = "0" if (kt == 0 and ks == 0) else acc
        spine.append(f"{MFMA} {acc}, {v(V_FA+(f%8)*4,4)}, {v(V_XN+(kt*4+ks)*4,4)}, {c}")
        nf = f + D
        if nf < NF:
            if nf % 32 == 0:
                g = nf // 32
                ops = [lambda e, g=g: e.wait_tag(f"b{g}")]
                if g == GKV:
                    ops.append(lambda e: e.wait_tag("kvst"))
                if g == GQ:
                    ops.append(lambda e: e.wait_tag("qst"))
                if g == GCHK:
                    ops += [lambda e: flag_test(e, VPK), f"s_cselect_b32 s{S_EARLY}, 1, 0",
                            f"s_cselect_b32 s{S_KVE+2}, {WS_BYTES:#x}, 0"]
                ops.append("s_barrier")
                if g == GKV:
                    ops += ["s_cmp_eq_u32 s3, 0", "s_cbranch_scc1 M_SKV", "M_SKV_RET:"]
                if g == GQ:
                    ops += ["s_cmp_eq_u32 s3, 0", "s_cbranch_scc1 M_SQ", "M_SQ_RET:"]
                if g == 10:
                    ops += [f"s_cmp_lt_u32 s{S_QT}, 8", "s_cbranch_scc1 M_EQ", "M_EQ_RET:"]
                if g == 4:
                    ops += [f"v_add_u32 v{V_DQ+j}, {j*4*3584 - j*1024}, v6" for j in range(4)]
                if f"g{g}" in opt.get("sp", []):
                    ops.append(lambda e, g=g: stamp(e, opt, f"g{g}", raw=True))
                fill.setdefault(f, []).extend(ops)
                if g >= 2:
                    its = []
                    for u2 in (2 * g + 6, 2 * g + 7):
                        if u2 < NT:
                            its += b_dma(u2)
                    if its:
                        place_dma(fill, its, f + 2, f + 30)
                if g == 9:
                    spread(fill, sum(fl[:4], []), f + 2, f + 32)
                if g == 10:
                    spread(fill, sum(fl[4:], []), f + 2, f + 20)
            fill.setdefault(f, []).extend(b_read(nf))
        if f % 2 == 0:
            r = v(V_FA + (min(f + 1, NF - 1) % 8) * 4, 4)
            fill.setdefault(f - 1, []).append(lambda e, r=r: wait_reg(e, r))
    g1, g2a, g2, gq0, gq1 = opt.get("kv_split", (125, 200, 330, 130, 262))
    pour(fill, sum((kv_epi(b) for b in range(0, 8)), []), 2, g1)
    pour(fill, q_epi(0), gq0, 215)
    pour(fill, q_epi(1), 224 + 5, gq1)
    pour(fill, [f"s_mov_b32 s{S_KVE}, s{S_WS}", f"s_mov_b32 s{S_KVE+1}, s{S_WS+1}", f"s_mov_b32 s{S_KVE+3}, 0x20000",
                lambda e: flag_line(e, 73, FL_KV, S_HEAD), lambda e: flag_line(e, 74, FL_PAIR, S_PAIR)], 160, 180)
    fill.setdefault(opt.get("g_pkv", 240), []).append(f"buffer_load_dwordx2 {v(VPK,2)}, v{V_FO}, s[{S_WS}:{S_WS+3}], s73 offen sc1")
    GP = opt.get("g_poll", 298)
    fill.setdefault(GP - 1, []).append(f"v_mov_b32 v{VPQ+2}, 0")
    fill.setdefault(GP, []).append((f"buffer_load_dwordx2 {v(VPQ,2)}, v{VPQ+2}, s[{S_WS}:{S_WS+3}], s74 offen sc1", "pq"))
    fill.setdefault(GP, []).append(f"s_mov_b32 s{S_GOTQ}, 0")
    pour(fill, [f"v_accvgpr_mov_b32 a{A_Q+r}, a{A_Q2+r}" for r in range(64)], gq1 + 2, 312)
    pour(fill, sum((kv_epi(b) for b in range(8, 12)), []), g2a, g2)
    younger = [0]

    def count_pq(e):
        tags = [t for t, d in e.vm]
        younger[0] = len(tags) - 1 - tags.index("pq") if "pq" in tags else 63
    count_pq.cost = 0
    fill[313].insert(fill[313].index("s_barrier"), count_pq)
    for k in range(8, 26):
        for r in (0, 2):
            g = min(range(224 + 4 * k + 5, 336), key=lambda g: (load_of(fill, g), g))
            fill.setdefault(g, []).append(f"v_mov_b64 {v(V_XN+4*k+r,2)}, 0")
    print(gap_report("phase B", fill, NF))
    weave(e, spine, fill)
    stamp(e, opt, 3)
    stamp(e, opt, "bend")

    skv = Seg("m_skv")
    skv.label("M_SKV")
    flag_line(skv, 7, FL_KV, S_HA)
    flag_set(skv, S_WS, 7, f"s{S_KVSLOT}", 20)
    skv("s_branch M_SKV_RET")
    sq = Seg("m_sq")
    sq.label("M_SQ")
    sq(f"s_cmp_lt_u32 s{S_QT}, 8")
    sq("s_cbranch_scc1 M_SQ_RET")
    flag_set(sq, S_WS, 74, 0, V_XN)
    sq("s_branch M_SQ_RET")

    def spin(e, name, vd, voff, line, first=True):
        e("s_mov_b32 s6, 0")
        e.label(name)
        if first:
            e(f"buffer_load_dwordx2 {v(vd,2)}, v{voff}, s[{S_WS}:{S_WS+3}], s{line} offen sc1")
        e.wait_force(vm=0)
        flag_test(e, vd)
        e(f"s_cbranch_scc1 {name}_OK")
        e("s_sleep 2")
        if not first:
            e(f"buffer_load_dwordx2 {v(vd,2)}, v{voff}, s[{S_WS}:{S_WS+3}], s{line} offen sc1")
        e("s_add_u32 s6, s6, 1")
        e(f"s_cmp_lt_u32 s6, {PMAX}")
        e(f"s_cbranch_scc1 {name}")
        e.wait_force(vm=0)
        e.label(name + "_OK")

    late = Seg("m_late")
    late.label("M_LATE")
    spin(late, "M_PKV", VPK, V_FO, 73)
    for grp in attn.first_loads(S_WS):
        run(late, grp)
    late.wait_force(vm=0)
    late("s_branch M_LATE_RET")
    def q_loads(g):
        for k in range(16):
            if k and k % 4 == 0:
                g(f"s_add_u32 s{S_QB}, s{S_QB}, 4096")
            g(f"buffer_load_dwordx4 {a(A_Q+4*k,4)}, v{V_L16}, s[{S_WS}:{S_WS+3}], s{S_QB} offen offset:{(k%4)*1024} sc1", "q")

    gq = Seg("m_getq")
    gq.label("M_EQ")
    gq.wait_force(vm=younger[0])
    flag_test(gq, VPQ)
    gq("s_cbranch_scc0 M_EQ_RET")
    q_loads(gq)
    gq(f"s_mov_b32 s{S_GOTQ}, 1")
    gq("s_branch M_EQ_RET")
    gq.label("M_GETQ")
    gq(f"s_cmp_eq_u32 s{S_GOTQ}, {2 if opt.get('force_late') else 1}")
    gq("s_cbranch_scc1 M_GETQ_RET")
    if opt.get('force_late'):
        gq(f"s_mul_i32 s6, s{S_GOTQ}, 12288")
        gq(f"s_sub_u32 s{S_QB}, s{S_QB}, s6")
    spin(gq, "M_PQ", VPQ, VPQ + 2, 74)
    q_loads(gq)
    gq("s_branch M_GETQ_RET")
    wq = Seg("m_waitq")
    wq.label("M_WAITQ")
    wq.wait_force(vm=0)
    wq("s_branch M_WAITQ_RET")
    extra += [skv, sq, late, gq, wq]

    e(f"s_cmp_eq_u32 s{S_EARLY}, {2 if opt.get('force_late') else 1}")
    e("s_cbranch_scc0 M_LATE")
    e.label("M_LATE_RET")
    e(f"s_cmp_lt_u32 s{S_QT}, 8")
    e("s_cbranch_scc1 M_GETQ")
    e.label("M_GETQ_RET")
    stamp(e, opt, "polled")
    HS = V_XN + 4
    for k in range(28):
        nb, r = divmod(k, 8)
        e(f"v_cvt_pk_bf16_f32 v{HS+k}, v{H_ACC[nb]+2*r}, v{H_ACC[nb]+2*r+1}")
    srd(e, S_OUT, P_OUT, OUT_BYTES)
    attn.setup_v(e)
    e("s_getpc_b64 s[80:81]")
    e.label("M_PC_A")
    e("s_lshr_b32 s7, s2, 3")
    e("s_lshl_b32 s7, s7, 2")
    e("s_add_u32 s7, s7, s3")
    e("s_mul_i32 s7, s7, 512")
    e(f"v_min_u32 v{attn.V_X+3}, 3, v0")
    e(f"v_lshl_add_u32 v{attn.V_X+3}, v{attn.V_X+3}, 7, s7")
    e(f"v_min_u32 v{attn.V_X+3}, M_CODE_END-M_PC_A-8, v{attn.V_X+3}")
    attn.init_state(e, V_XN + 4 * 26)
    e(f"s_cmp_lt_u32 s{S_QT}, 8")
    e("s_cbranch_scc1 M_WAITQ")
    e.label("M_WAITQ_RET")
    stamp(e, opt, 4)
    stamp(e, opt, "a0")

    RA, RB, XR, VO, VP = 180, 32, 12, 2, 10

    def hooks(fill, NFE, ED):
        g = 6 * NFE - ED
        fill[g].extend(["s_cmp_eq_u32 s3, 0", "s_cbranch_scc1 M_SYA", "M_SYA_RET:"])
        ops = [f"s_lshl_b32 s7, s{S_QT}, 2", f"s_lshr_b32 s4, s{S_HEAD}, 2", "s_add_u32 s4, s4, s7",
               f"s_and_b32 s5, s{S_HEAD}, 3", "s_lshl_b32 s6, s3, 2", "s_add_u32 s5, s5, s6",
               "s_mul_i32 s6, s4, 28", "s_add_u32 s6, s6, s5", "s_lshl_b32 s6, s6, 10",
               f"s_add_u32 s53, s6, {Y_OFF}", "s_add_u32 s54, s53, 16384",
               f"v_and_b32 v{VO}, 31, v0", "v_lshrrev_b32 v3, 5, v0", "s_lshl_b32 s4, s4, 5", f"v_add_u32 v{VO}, s4, v{VO}",
               f"v_mul_u32_u24 v{VO}, 896, v{VO}", f"v_lshl_add_u32 v{VO}, v3, 3, v{VO}", "s_lshl_b32 s5, s5, 5",
               f"v_add_u32 v{VO}, s5, v{VO}"]
        ops += [f"buffer_load_dwordx2 {v(XR+2*k,2)}, v{VO}, s[{S_X}:{S_X+3}], 0 offen offset:{(k>>1)*512+(k&1)*16}" for k in range(4)]
        ops += [lambda e: flag_line(e, 55, FL_Y, S_QT), lambda e: flag_line(e, 63, FL_YA, S_QT)]
        pour(fill, ops, 5 * NFE + 2, 5 * NFE + 34)
        fill.setdefault(6 * NFE + opt.get("g_pa", 22), []).append(
            (f"buffer_load_dwordx2 {v(VP,2)}, v{V_FO}, s[{S_WS}:{S_WS+3}], s63 offen sc1", "pa"))

    sya = Seg("m_sya")
    sya.label("M_SYA")
    sya(f"s_lshl_b32 s6, s{S_HEAD}, 3")
    flag_set(sya, S_WS, 63, "s6", 20)
    sya("s_branch M_SYA_RET")
    extra.append(sya)

    def finish(e):
        stamp(e, opt, "yend")

        def loads(base, sreg, tag):
            for h in range(16):
                e(f"buffer_load_dwordx4 {v(base+4*h,4)}, v{V_L16}, s[{S_WS}:{S_WS+3}], s{sreg} offen sc1", tag)
                if h < 15:
                    e(f"s_add_u32 s{sreg}, s{sreg}, {64*28*1024}")

        def reduce(base, xr, off):
            acc, t = 20, 28
            for r in range(4):
                e(f"v_lshlrev_b32 v{acc+2*r}, 16, v{xr+r}")
                e(f"v_and_b32 v{acc+1+2*r}, 0xffff0000, v{xr+r}")
            for h in range(16):
                for r in range(4):
                    src = base + 4 * h + r
                    u = t + 2 * (r & 1)
                    e(f"v_lshlrev_b32 v{u}, 16, v{src}")
                    e(f"v_and_b32 v{u+1}, 0xffff0000, v{src}")
                    e(f"v_pk_add_f32 {v(acc+2*r,2)}, {v(acc+2*r,2)}, {v(u,2)}")
            for r in range(4):
                e(f"v_cvt_pk_bf16_f32 v{xr+r}, v{acc+2*r}, v{acc+1+2*r}")
            e(f"buffer_store_dwordx2 {v(xr,2)}, v{VO}, s[{S_OUT}:{S_OUT+3}], 0 offen offset:{off}")
            e(f"buffer_store_dwordx2 {v(xr+2,2)}, v{VO}, s[{S_OUT}:{S_OUT+3}], 0 offen offset:{off+16}")

        flag_test(e, VP)
        e("s_cselect_b32 s60, 1, 0")
        e("s_cbranch_scc0 M_NOA")
        loads(RA, 53, "ra")
        e.wait_force(vm=16)
        e("s_branch M_A1")
        e.label("M_NOA")
        e.wait_force(vm=0)
        e.label("M_A1")
        e("s_barrier")

        e("s_cmp_lg_u32 s3, 3")
        e("s_cbranch_scc1 M_PA_OK")
        e(f"s_lshl_b32 s6, s{S_HEAD}, 3")
        flag_set(e, S_WS, 55, "s6", 20)
        e("s_cmp_eq_u32 s60, 1")
        e("s_cbranch_scc1 M_PA_OK")
        spin(e, "M_PA", VP, V_FO, 63)
        e("s_barrier")
        e("s_cmp_eq_u32 s60, 1")
        e("s_cbranch_scc1 M_A2")
        loads(RA, 53, "ra")
        e.label("M_A2")
        e("s_cmp_eq_u32 s3, 3")
        e("s_cbranch_scc1 M_W3")
        e.wait_force(vm=0)
        reduce(RA, XR, 0)
        e("s_barrier")
        stamp(e, opt, "ypoll")
        e.vm = []
        loads(RB, 54, "rb")
        reduce(RB, XR + 4, 512)
        e("s_branch M_DONE")
        e.label("M_W3")
        spin(e, "M_PB", VP, V_FO, 55)
        e("s_barrier")
        stamp(e, opt, "ypoll")
        reduce(RA, XR, 0)
        e.label("M_DONE")
        stamp(e, opt, 5)
        stamp(e, opt, "end")
        stamp_flush(e, opt, 0, S_WS, 6)

    aopt = dict(opt)
    aopt["code_pf"] = not opt.get("no_cpf")
    aopt["stash"] = HS
    aopt["kv2"] = (S_HA, S_KVSLOT, V_FO, sum((kv_epi(b, attn.V_X + 4, 0) for b in range(12, 16)), []))
    if not opt.get("sp"):
        aopt["sp"] = ["none"]
        aopt["spk"] = ""
    asegs, atraces = attn.gen_attn(e, aopt, "M_END", finish, hooks)
    z = Seg("m_z")
    z.label("M_CODE_END")
    segs += asegs + extra + [z]
    for t in traces[1:]:
        t.append(e)
    traces += atraces + [[tails[0], fb, e]] + [[x] for x in extra]
    return segs, traces
```

```python
from emit import *
from common import *
import attn
from attn import S_HEAD, S_QT, S_W4K, S_PAIR, S_WS, S_WO, S_W2, A_Q, A_Q2, A_HF, V_L16, V_PD
import math

NAME = "parallel_sum__compressed_kv_cla__dense_activation_silu__prompt_kernel"
LDS_BYTES = 160 * 1024
S_CKV, S_W, S_X, S_WQ, S_W1, S_QST, S_OUT = 8, 12, 20, 24, 28, 68, 24
SA, SB, S_LP, S_W8K, S_KVSTR, S_KIND, S_BO, S_KVBASE, S_KVC, S_QB, S_QC, S_XNB, S_XNF = 53, 54, 55, 56, 57, 58, 59, 60, 61, 62, 63, 66, 67
S_HA, S_KVSLOT = 76, 77
V_PA, V_PB, V_FO, V_FL = 3, 4, 5, 6
V_AA, V_AB, V_DA, V_DB = 8, 12, 16, 24
V_FA, V_FB, V_XN = 32, 64, 96
V_AB16, V_AA16, V_WR, V_ST = 8, 212, 224, 7
V_DQ, V_D1, V_AT, V_T = 208, 212, 216, 224
SLOT_ORDER = [8, 9, 0, 1, 4, 5, 2, 3, 6, 7]
V_AT3 = 212
S_KVE, S_EARLY, S_GOTQ, S_GM = 24, 72, 75, 72
H_ACC = (64, 80, 224, 240)
V_GP = V_XN + 46
VPQ, VPK = V_XN + 4, V_XN + 8

def gen_mega(opt):
    ST = opt.get("kv_store_mod", " sc1")
    attn.KVM[0] = opt.get("kv_load_mod", "")
    opt = dict(opt)
    opt.setdefault("y_store_mod", " sc1")
    opt["spk"] = ""
    PFD = 2
    XNM = opt.get('xn_mod', ' sc1')
    A16 = opt.get("a16", 1)
    NPF = 2
    PMAX = opt.get("poll_max", 200000)
    e = Seg("m_pro")
    e.label(NAME)
    e("s_cmp_ge_u32 s2, 256")
    e("s_cbranch_scc1 M_END")
    stamp(e, opt, "entry")
    load_kernargs(e)
    e("s_getpc_b64 s[50:51]")
    e.label("M_PC0")
    if not opt.get("no_cpf0"):
        e("s_lshr_b32 s5, s2, 3")
        e("s_lshl_b32 s5, s5, 11")
        e("v_lshrrev_b32 v1, 4, v0")
        e("v_lshl_add_u32 v1, v1, 7, s5")
        e("v_min_u32 v1, M_B-M_PC0, v1")
        e(f"global_load_dword v{V_PD}, v1, s[50:51]", "pf")
    e("v_lshrrev_b32 v1, 6, v0")
    e("v_and_b32 v0, 63, v0")
    e("v_readfirstlane_b32 s3, v1")
    e("s_and_b32 s4, s2, 7")
    e("s_lshl_b32 s4, s4, 1")
    e("s_lshr_b32 s5, s2, 3")
    e("s_and_b32 s34, s5, 7")
    e("s_lshr_b32 s35, s5, 3")
    e("s_and_b32 s42, s35, 1")
    e("s_add_u32 s42, s42, s4")
    e(f"s_lshr_b32 s{S_KIND}, s35, 1")
    e(f"s_lshr_b32 s{S_QT}, s5, 1")
    e(f"s_and_b32 s{S_HEAD}, s5, 1")
    e(f"s_add_u32 s{S_HEAD}, s{S_HEAD}, s4")
    e("s_and_b32 s36, s3, 1")
    e("s_lshr_b32 s37, s3, 1")
    L31, HI, G, R4, C = 224, 225, 226, 227, 228
    e(f"v_and_b32 v{L31}, 31, v0")
    e(f"v_lshrrev_b32 v{HI}, 5, v0")
    e(f"v_lshrrev_b32 v{G}, 4, v0")
    e(f"v_bfe_u32 v{R4}, v0, 2, 2")
    e(f"v_and_b32 v{C}, 3, v0")
    e("s_and_b32 s7, s35, 1")
    e("s_lshl_b32 s7, s7, 1")
    e("s_add_u32 s7, s7, s37")
    e("s_sub_u32 s39, 3, s7")
    e("s_add_u32 s7, s7, 4")
    e("s_cmp_ge_u32 s35, 2")
    e("s_cselect_b32 s7, s7, s39")
    e("s_lshl_b32 s7, s7, 3")
    e("s_add_u32 s7, s7, s34")
    e("s_lshl_b32 s7, s7, 1")
    e("s_add_u32 s7, s7, s36")
    e("s_lshl_b32 s7, s7, 4")
    e("v_lshrrev_b32 v6, 2, v0")
    e("v_add_u32 v6, s7, v6")
    e(f"v_lshlrev_b32 v{V_PA}, 11, v6")
    e("v_bfe_u32 v7, v0, 1, 1")
    e(f"v_lshl_add_u32 v7, v7, 7, v{V_PA}")
    e("s_lshl_b32 s7, s34, 3")
    e("s_lshl_b32 s39, s3, 1")
    e("s_add_u32 s7, s7, s39")
    e(f"v_add_u32 v6, s7, v{HI}")
    e("v_lshlrev_b32 v6, 13, v6")
    e("v_bfe_u32 v5, v0, 3, 2")
    e("v_lshl_add_u32 v6, v5, 7, v6")
    e("s_lshl_b32 s7, s42, 9")
    e(f"v_add_u32 v{V_PB}, s7, v6")
    e("v_bfe_u32 v6, v0, 2, 1")
    e(f"v_lshl_add_u32 v5, v6, 19, v{V_PB}")
    e("v_lshrrev_b32 v1, 3, v0")
    e.wait_force(lgkm=0)
    e(f"s_mov_b32 s{S_HA}, s42")
    e(f"s_lshl_b32 s{S_KVSLOT}, s{S_KIND}, 3")
    e(f"s_add_u32 s{S_KVSLOT}, s{S_KVSLOT}, s34")
    e(f"s_lshl_b32 s{S_KVSLOT}, s{S_KVSLOT}, 3")
    srd(e, S_CKV, P_CKV, CKV_BYTES)
    e(f"s_cmp_eq_u32 s{S_KIND}, 0")
    e(f"s_cselect_b32 s{S_W}, s{P_WUK}, s{P_WUV}")
    e(f"s_cselect_b32 s{S_W+1}, s{P_WUK+1}, s{P_WUV+1}")
    e(f"s_mov_b32 s{S_W+2}, {WU_BYTES:#x}")
    e(f"s_mov_b32 s{S_W+3}, 0x20000")
    stamp(e, opt, 0)
    stamp(e, opt, "karg")
    e(f"buffer_load_dword v{V_PD}, v7, s[{S_CKV}:{S_CKV+3}], 0 offen", "pf")
    e(f"buffer_load_dword v{V_PD}, v5, s[{S_W}:{S_W+3}], 0 offen", "pf")
    e("v_add_u32 v144, 256, v7")
    e("v_add_u32 v145, 0x100000, v5")
    e(f"v_add_u32 v{V_PA}, {PFD*128}, v{V_PA}")
    e(f"v_add_u32 v{V_PB}, {PFD*0x80000}, v{V_PB}")
    e("s_lshl_b32 s7, s36, 1")
    e("s_sub_u32 s39, 3, s7")
    e("s_add_u32 s7, s7, 4")
    e("s_cmp_eq_u32 s37, 1")
    e("s_cselect_b32 s7, s7, s39")
    e("s_mov_b32 s39, 0xfff80000")
    e("s_cselect_b32 s39, 0x80000, s39")
    e("s_lshl_b32 s7, s7, 3")
    e("s_add_u32 s7, s7, s34")
    e("s_lshl_b32 s7, s7, 5")
    e("v_add_u32 v6, s7, v1")
    e("v_lshlrev_b32 v6, 11, v6")
    e("v_and_b32 v7, 7, v0")
    e(f"v_xor_b32 v7, v7, v{G}")
    e("v_lshlrev_b32 v7, 4, v7")
    for j in range(8):
        if j == 4:
            e("v_add_u32 v6, s39, v6")
        e(f"v_xor_b32 v{V_DA+j}, {((j ^ (j >> 1)) & 1) << 6}, v7")
        e(f"v_add_u32 v{V_DA+j}, v{V_DA+j}, v6")
        if j & 3:
            e(f"v_add_u32 v{V_DA+j}, {(j&3)*(16384-1024)}, v{V_DA+j}")
    e("s_lshl_b32 s7, s3, 4")
    e(f"v_add_u32 v6, s7, v{HI}")
    e("v_lshlrev_b32 v6, 13, v6")
    e(f"s_lshl_b32 s7, s{S_HA}, 9")
    e("v_add_u32 v6, s7, v6")
    e(f"v_lshrrev_b32 v7, 2, v{L31}")
    e(f"v_xor_b32 v7, v7, v{HI}")
    e("v_lshlrev_b32 v7, 6, v7")
    e(f"v_lshl_add_u32 v7, v{C}, 4, v7")
    for j in range(8):
        e(f"v_xor_b32 v{V_DB+j}, {((j&1)<<7) ^ (48 * ((j >> 2) & 1) if A16 else 0)}, v7")
        e(f"v_add_u32 v{V_DB+j}, v{V_DB+j}, v6")
        if j:
            e(f"v_add_u32 v{V_DB+j}, {j*16384-(j&3)*1024}, v{V_DB+j}")
    e(f"s_lshl_b32 s{S_W8K}, s3, 13")
    e(f"s_mov_b32 s{SA}, 0")
    e(f"s_mov_b32 s{SB}, 0")

    def dma_items(b):
        it = []
        for j in range(8):
            pre = [f"s_add_u32 m0, s{S_W8K}, {b*32768 + (j>>2)*4096}"] if (j & 3) == 0 else []
            post = [f"s_add_u32 s{SA}, s{SA}, 128"] if j == 7 else []
            it.append((pre, f"buffer_load_dwordx4 v{V_DA+j}, s[{S_CKV}:{S_CKV+3}], s{SA} offen offset:{(j&3)*1024} lds", post))
        for j in range(8):
            pre = [f"s_add_u32 m0, s{S_W8K}, {65536 + b*32768 + (j>>2)*4096}"] if (j & 3) == 0 else []
            post = [f"s_add_u32 s{SB}, s{SB}, 0x80000"] if j == 7 else []
            it.append((pre, f"buffer_load_dwordx4 v{V_DB+j}, s[{S_W}:{S_W+3}], s{SB} offen offset:{(j&3)*1024} lds", post))
        return it

    NK3 = opt.get('nk3', 12) if A16 else 8
    q = Seg("tmp")
    srd(q, S_WS, P_WS, WS_BYTES)
    srd(q, S_X, P_X, X_BYTES)
    srd(q, S_WQ, P_WQ, WQ_BYTES)
    srd(q, S_W1, P_W1, W1_BYTES)
    if not A16:
        q("s_lshl_b32 s7, s36, 7")
        q(f"v_add_u32 v6, s7, v{L31}")
        q("v_lshlrev_b32 v6, 7, v6")
        q(f"v_bfe_u32 v7, v{L31}, 1, 3")
        q(f"v_xor_b32 v7, v7, v{HI}")
        q("v_lshl_add_u32 v6, v7, 4, v6")
        for k in range(4):
            q(f"v_xor_b32 v{V_AA+k}, {k<<5}, v6")
        q(f"v_lshrrev_b32 v6, 1, v{G}")
        q(f"v_lshl_add_u32 v6, v6, 3, v{R4}")
        q("v_lshlrev_b32 v6, 9, v6")
        q("s_lshl_b32 s7, s37, 8")
        q("s_add_u32 s7, s7, 0x10000")
        q("v_add_u32 v6, s7, v6")
        q(f"v_and_b32 v7, 1, v{G}")
        q("v_lshl_add_u32 v6, v7, 5, v6")
        q(f"v_lshl_add_u32 v6, v{C}, 3, v6")
        for nb in range(4):
            q(f"v_xor_b32 v7, {nb}, v{R4}")
            q(f"v_lshl_add_u32 v{V_AB+nb}, v7, 6, v6")
    else:
        q("v_and_b32 v6, 15, v0")
        q("v_and_b32 v7, 8, v0")
        q(f"v_mul_u32_u24 v7, s{S_KIND}, v7")
        q("v_add_u32 v6, v6, v7")
        q("s_lshl_b32 s7, s36, 7")
        q("v_add_u32 v6, s7, v6")
        q("v_lshlrev_b32 v6, 7, v6")
        q("v_bfe_u32 v7, v0, 1, 3")
        q(f"v_xor_b32 v7, v7, v{G}")
        q(f"v_lshl_add_u32 v{V_AA16}, v7, 4, v6")
        q(f"v_xor_b32 v{V_AA16+1}, 64, v{V_AA16}")
        q(f"v_lshl_add_u32 v6, v{G}, 3, v{R4}")
        q("v_lshlrev_b32 v6, 9, v6")
        q("s_lshl_b32 s7, s37, 8")
        q("s_add_u32 s7, s7, 0x10000")
        q("v_add_u32 v6, s7, v6")
        q(f"v_and_b32 v7, 1, v{C}")
        q("v_lshl_add_u32 v6, v7, 3, v6")
        q(f"v_and_b32 v7, 1, v{G}")
        q("v_mul_u32_u24 v7, 3, v7")
        q(f"v_lshl_add_u32 v7, v{R4}, 2, v7")
        q(f"v_lshrrev_b32 v231, 1, v{C}")
        q(f"s_sub_u32 s7, 1, s{S_KIND}")
        q("v_lshlrev_b32 v231, s7, v231")
        q("v_xor_b32 v7, v7, v231")
        q("v_lshl_add_u32 v6, v7, 4, v6")
        for i in range(8):
            nat, perm = i << 5, ((i >> 1) << 6) | ((i & 1) << 4)
            if nat == perm:
                q(f"v_xor_b32 v{V_AB16+i}, {nat}, v6")
            else:
                q(f"s_mul_i32 s7, s{S_KIND}, {nat - perm}")
                q(f"s_add_u32 s7, s7, {perm}")
                q(f"v_xor_b32 v{V_AB16+i}, s7, v6")
    q("s_lshl_b32 s7, s3, 4")
    q(f"v_add_u32 v6, s7, v{G}")
    q(f"v_xor_b32 v7, v{R4}, v{G}")
    q("v_lshlrev_b32 v7, 6, v7")
    q(f"v_lshl_add_u32 v7, v{C}, 4, v7")
    q(f"s_lshl_b32 s38, s{S_HEAD}, 9")
    q(f"v_lshlrev_b32 v{V_DQ}, 13, v6")
    q(f"v_add3_u32 v{V_DQ}, v{V_DQ}, v7, s38")
    for j in range(1, 4):
        q(f"v_add_u32 v{V_DQ+j}, {j*4*8192 - j*1024}, v{V_DQ}")
    q(f"s_mul_i32 s39, s{S_HEAD}, 224")
    q(f"v_mul_u32_u24 v{V_D1+3}, 3584, v6")
    q(f"v_add3_u32 v{V_D1+3}, v{V_D1+3}, v7, s39")
    q(f"v_lshrrev_b32 v6, 1, v{G}")
    q(f"v_lshl_add_u32 v6, v6, 3, v{R4}")
    q("v_lshlrev_b32 v6, 8, v6")
    q(f"v_and_b32 v7, 1, v{G}")
    q("v_lshl_add_u32 v6, v7, 5, v6")
    q(f"v_lshl_add_u32 v6, v{C}, 3, v6")
    for nb in range(4):
        q(f"v_xor_b32 v7, {nb}, v{R4}")
        q(f"v_lshl_add_u32 v{V_AT+nb}, v7, 6, v6")
        q(f"v_add_u32 v{V_AT+4+nb}, 0x10000, v{V_AT+nb}")
    q(f"s_mul_i32 s7, s{S_QT}, 28")
    q("s_mul_i32 s6, s3, 7")
    q("s_add_u32 s7, s7, s6")
    q("v_lshrrev_b32 v6, 2, v0")
    q("v_add_u32 v6, s7, v6")
    q("v_lshlrev_b32 v7, 13, v6")
    q(f"v_lshl_add_u32 v7, v{C}, 7, v7")
    q("v_add_u32 v7, s38, v7")
    q("v_subrev_u32 v6, 7, v6")
    q("v_mul_u32_u24 v6, 3584, v6")
    q(f"v_min_u32 v231, 2, v{C}")
    q("v_lshl_add_u32 v6, v231, 7, v6")
    q("v_add_u32 v6, s39, v6")
    q(f"v_min_u32 v6, {W1_BYTES-4}, v6")
    q("v_cmp_gt_u32 vcc, 28, v0")
    q("s_lshr_b32 s7, s2, 3")
    q("s_lshl_b32 s7, s7, 2")
    q("v_cndmask_b32 v6, v6, v7, vcc")
    q(f"v_mov_b32 v{V_GP}, s{P_W1}")
    q(f"v_mov_b32 v{V_GP+1}, s{P_W1+1}")
    q(f"v_mov_b32 v7, s{P_WQ}")
    q(f"v_mov_b32 v231, s{P_WQ+1}")
    q(f"v_cndmask_b32 v{V_GP}, v{V_GP}, v7, vcc")
    q(f"v_cndmask_b32 v{V_GP+1}, v{V_GP+1}, v231, vcc")
    q("s_add_u32 s7, s7, s3")
    q("s_mul_i32 s7, s7, 640")
    q("s_add_u32 s7, s7, M_B-M_PC0")
    q("v_and_b32 v7, 7, v0")
    q("v_min_u32 v7, 4, v7")
    q("v_lshl_add_u32 v7, v7, 7, s7")
    q("v_min_u32 v7, M_CODE_END-M_PC0-8, v7")
    q("v_cmp_gt_u32 vcc, 56, v0")
    q("v_mov_b32 v231, s50")
    q("v_mov_b32 v232, s51")
    q("v_cndmask_b32 v6, v7, v6, vcc")
    q(f"v_cndmask_b32 v{V_GP}, v231, v{V_GP}, vcc")
    q(f"v_cndmask_b32 v{V_GP+1}, v232, v{V_GP+1}, vcc")
    q(f"v_add_co_u32 v{V_GP}, vcc, v{V_GP}, v6")
    q(f"v_addc_co_u32 v{V_GP+1}, vcc, 0, v{V_GP+1}, vcc")
    q("s_add_u32 s7, s36, 3")
    q("s_lshl_b32 s7, s7, 3")
    q("s_add_u32 s7, s7, s34")
    q(f"s_lshl_b32 s{S_KVBASE}, s{S_HA}, 6")
    q(f"s_add_u32 s{S_KVBASE}, s{S_KVBASE}, s7")
    q(f"s_lshl_b32 s{S_KVBASE}, s{S_KVBASE}, 15")
    q(f"s_lshl_b32 s7, s{S_KIND}, 14")
    q(f"s_add_u32 s{S_KVBASE}, s{S_KVBASE}, s7")
    q("s_lshl_b32 s7, s37, 13")
    q(f"s_add_u32 s{S_KVBASE}, s{S_KVBASE}, s7")
    q("s_lshl_b32 s7, s36, 19")
    q(f"s_sub_u32 s{S_KVSTR}, s7, 0x40000")
    q(f"s_lshl_b32 s7, s{S_QT}, 2")
    q(f"v_and_b32 v{V_FO}, 15, v0")
    q(f"v_lshlrev_b32 v{V_FO}, 3, v{V_FO}")
    q(f"s_add_u32 s{S_XNB}, s7, s3")
    q(f"s_mul_i32 s{S_XNB}, s{S_XNB}, 28672")
    q(f"s_add_u32 s{S_XNB}, s{S_XNB}, {XN_OFF}")
    q(f"v_lshlrev_b32 v{V_L16}, 4, v0")
    q(f"s_lshl_b32 s7, s{S_QT}, 4")
    q(f"s_add_u32 s7, s7, s{S_HEAD}")
    q("s_mul_i32 s7, s7, 7168")
    q("s_mul_i32 s6, s3, 1792")
    q("s_add_u32 s7, s7, s6")
    q("v_lshrrev_b32 v6, 2, v0")
    q("v_min_u32 v6, 14, v6")
    q("v_lshl_add_u32 v146, v6, 7, s7")
    attn.setup_s(q)
    q(f"s_mov_b32 s{S_QST}, s{P_WS}")
    q(f"s_mov_b32 s{S_QST+1}, s{P_WS+1}")
    q(f"s_cmp_ge_u32 s{S_QT}, 8")
    q(f"s_cselect_b32 s{S_QST+2}, {WS_BYTES:#x}, 0")
    q(f"s_mov_b32 s{S_QST+3}, 0x20000")
    q(f"s_lshl_b32 s{S_QB}, s{S_PAIR}, 2")
    q(f"s_add_u32 s{S_QB}, s{S_QB}, s3")
    q(f"s_lshl_b32 s{S_QB}, s{S_QB}, 14")
    q(f"s_add_u32 s{S_QB}, s{S_QB}, {Q_OFF}")
    for i in q.ins:
        e(i.text)
    stamp(e, opt, "setup")
    e.wait_tag("pf")
    stamp(e, opt, "touch")
    NPRE = opt.get("npre", 12)
    for tag, items in (("t0", dma_items(0)), ("dma", dma_items(1)[:NPRE])):
        for pre, d, post in items:
            run(e, pre + [(d, tag)] + post)
    e(f"buffer_load_dword v{V_PD}, v144, s[{S_CKV}:{S_CKV+3}], 0 offen", "pf")
    e(f"buffer_load_dword v{V_PD}, v145, s[{S_W}:{S_W+3}], 0 offen", "pf")
    e(f"buffer_load_dword v{V_PD}, v146, s[{S_X}:{S_X+3}], 0 offen", "pf")
    e("s_or_b32 s7, s2, s3")
    e("s_cbranch_scc1 M_NOPUB")
    e("s_memrealtime s[4:5]")
    e("v_mov_b32 v6, 0")
    e.wait_force(lgkm=0)
    e("s_or_b32 s4, s4, 1")
    e("v_mov_b32 v7, s4")
    e("s_mov_b64 exec, 1")
    e.raw(f"global_store_dword v6, v7, s[{P_DBG}:{P_DBG+1}] sc1")
    e("s_mov_b64 exec, -1")
    e.label("M_NOPUB")
    stamp(e, opt, "dma")
    stamp(e, opt, 1)

    def layernorm(e, n, reduce, norm, T=V_T):
        e("s_mov_b32 s7, 0x3f803f80")
        for k in range(8):
            e(f"v_mov_b32 v{T+k}, 0")
        for r in range(n):
            if n > 28 or opt.get("ln_dot"):
                e(f"v_dot2_f32_bf16 v{T+(r&3)}, v{V_XN+r}, s7, v{T+(r&3)}")
                e(f"v_dot2_f32_bf16 v{T+4+(r&3)}, v{V_XN+r}, v{V_XN+r}, v{T+4+(r&3)}")
            else:
                t = T + 8 + (r % 4) * 2
                e(f"v_lshlrev_b32 v{t}, 16, v{V_XN+r}")
                e(f"v_and_b32 v{t+1}, 0xffff0000, v{V_XN+r}")
                e(f"v_add_f32 v{T+(r&1)*2}, v{T+(r&1)*2}, v{t}")
                e(f"v_add_f32 v{T+(r&1)*2+1}, v{T+(r&1)*2+1}, v{t+1}")
                e(f"v_fmac_f32 v{T+4+(r&1)*2}, v{t}, v{t}")
                e(f"v_fmac_f32 v{T+4+(r&1)*2+1}, v{t+1}, v{t+1}")
        e.nop(4)
        e(f"v_add_f32 v{T}, v{T}, v{T+1}")
        e(f"v_add_f32 v{T+2}, v{T+2}, v{T+3}")
        e(f"v_add_f32 v{T+4}, v{T+4}, v{T+5}")
        e(f"v_add_f32 v{T+6}, v{T+6}, v{T+7}")
        e(f"v_add_f32 v{T}, v{T}, v{T+2}")
        e(f"v_add_f32 v{T+4}, v{T+4}, v{T+6}")
        for step in reduce:
            if isinstance(step, str):
                e.nop(2)
                e(f"v_add_f32_dpp v{T}, v{T}, v{T} {step} row_mask:0xf bank_mask:0xf")
                e(f"v_add_f32_dpp v{T+4}, v{T+4}, v{T+4} {step} row_mask:0xf bank_mask:0xf")
            else:
                e(f"v_mov_b32 v{T+1}, v{T}")
                e(f"v_mov_b32 v{T+5}, v{T+4}")
                e.nop(2)
                e(f"v_permlane{step}_swap_b32 v{T}, v{T+1}")
                e(f"v_permlane{step}_swap_b32 v{T+4}, v{T+5}")
                e(f"v_add_f32 v{T}, v{T}, v{T+1}")
                e(f"v_add_f32 v{T+4}, v{T+4}, v{T+5}")
        e(f"v_mul_f32 v{T}, {f32(1/448)}, v{T}")
        e(f"v_mul_f32 v{T+4}, {f32(1/448)}, v{T+4}")
        e(f"v_fma_f32 v{T+4}, -v{T}, v{T}, v{T+4}")
        e(f"v_max_f32 v{T+4}, 0, v{T+4}")
        e(f"v_add_f32 v{T+4}, {f32(1e-5)}, v{T+4}")
        e(f"v_rsq_f32 v{T+4}, v{T+4}")
        e(f"v_mul_f32 v{T+4}, {f32(QSCALE)}, v{T+4}")
        e(f"v_mul_f32 v{T}, v{T}, v{T+4}")
        e(f"v_mov_b32 v{T+5}, v{T+4}")
        e(f"v_sub_f32 v{T}, 0, v{T}")
        e(f"v_mov_b32 v{T+1}, v{T}")
        for r in norm:
            t = T + 8 + (r % 8) * 2
            e(f"v_lshlrev_b32 v{t}, 16, v{V_XN+r}")
            e(f"v_and_b32 v{t+1}, 0xffff0000, v{V_XN+r}")
            if n > 28:
                e(f"v_pk_fma_f32 {v(t,2)}, {v(t,2)}, {v(T+4,2)}, {v(T,2)}")
            else:
                e(f"v_fma_f32 v{t}, v{t}, v{T+4}, v{T}")
                e(f"v_fma_f32 v{t+1}, v{t+1}, v{T+4}, v{T}")
            e(f"v_cvt_pk_bf16_f32 v{V_XN+r}, v{t}, v{t+1}")

    def ops_of(fn):
        t = Seg("tmp")
        fn(t)
        out, k = [], 0
        ins = t.ins
        while k < len(ins):
            x = (ins[k].text, ins[k].tag) if ins[k].tag else ins[k].text
            if ins[k].op.startswith("s_cmp"):
                out.append([x, ins[k + 1].text])
                k += 2
            else:
                out.append(x)
                k += 1
        return out

    XA, XS, LT = V_XN + 36, V_XN + 37, V_XN + 52
    SX0, SX1 = S_QC, S_KVC

    def x_loads(h):
        h(f"s_lshl_b32 s{SX0}, s3, 8")
        h(f"s_add_u32 s{SX1}, s{SX0}, 128")
        h("s_cmp_eq_u32 s3, 3")
        h(f"s_cselect_b32 s{SX1}, 0, s{SX1}")
        h(f"s_lshl_b32 s7, s{S_QT}, 7")
        h(f"s_lshl_b32 s6, s{S_HEAD}, 3")
        h("s_add_u32 s7, s7, s6")
        h("v_lshrrev_b32 v6, 3, v0")
        h("v_add_u32 v6, s7, v6")
        h("v_mul_u32_u24 v6, 896, v6")
        h("v_and_b32 v7, 7, v0")
        h(f"v_lshl_add_u32 v{XA}, v7, 4, v6")
        h(f"v_mov_b32 v{V_XN+41}, 0")
        for i in range(7):
            h(f"buffer_load_dwordx4 {v(V_XN+i*4,4)}, v{XA}, s[{S_X}:{S_X+3}], 0 offen offset:{i*128}", "x")
        h(f"buffer_load_dwordx4 {v(V_XN+28,4)}, v{XA}, s[{S_X}:{S_X+3}], s{SX0} offen", "x")
        h(f"buffer_load_dwordx4 {v(V_XN+32,4)}, v{XA}, s[{S_X}:{S_X+3}], s{SX1} offen", "x")
        h(f"global_load_dword v{V_XN+43}, v{V_XN+41}, s[{P_DBG}:{P_DBG+1}]", "x")

    def ln_pub(h):
        h(f"s_lshr_b32 s5, s{S_HEAD}, 2")
        h(f"s_lshl_b32 s6, s{S_QT}, 2")
        h("s_add_u32 s5, s5, s6")
        h("s_mul_i32 s5, s5, 28672")
        h(f"s_add_u32 s5, s5, {XN_OFF}")
        h(f"s_lshl_b32 s{SX0}, s{SX0}, 5")
        h(f"s_lshl_b32 s{SX1}, s{SX1}, 5")
        h(f"s_add_u32 s{SX0}, s{SX0}, s5")
        h(f"s_add_u32 s{SX1}, s{SX1}, s5")
        h(f"s_and_b32 s6, s{S_HEAD}, 3")
        h("s_lshl_b32 s6, s6, 7")
        h("v_lshrrev_b32 v6, 3, v0")
        h("v_lshlrev_b32 v6, 4, v6")
        h("v_and_b32 v7, 7, v0")
        h("v_lshl_add_u32 v6, v7, 9, v6")
        h(f"v_add_u32 v{XS}, s6, v6")
        layernorm(h, 28, ("quad_perm:[1_0_3_2]", "quad_perm:[2_3_0_1]", "row_half_mirror"), range(28, 36), LT)
        h(f"buffer_store_dwordx4 {v(V_XN+28,4)}, v{XS}, s[{S_WS}:{S_WS+3}], s{SX0} offen sc1", "st")
        h(f"buffer_store_dwordx4 {v(V_XN+32,4)}, v{XS}, s[{S_WS}:{S_WS+3}], s{SX1} offen sc1", "st")

    def gtouch(k):
        lo = 0xffff << (16 * (k & 1))
        return [[f"s_mov_b32 exec_lo, {lo if k < 2 else 0}", f"s_mov_b32 exec_hi, {0 if k < 2 else lo}",
                 (f"global_load_dword v{V_PD}, {v(V_GP,2)}, off", "pf"), "s_mov_b64 exec, -1"]]

    hk = Seg("m_hook")
    hk.label("M_HOOK")
    hk("s_mov_b32 s6, 0")
    hk.label("M_NSPIN")
    hk(f"v_readfirstlane_b32 s{S_N0}, v{V_XN+43}")
    hk(f"s_cmp_lg_u32 s{S_N0}, 0")
    hk("s_cbranch_scc1 M_NOK")
    hk("s_sleep 8")
    hk(f"global_load_dword v{V_XN+43}, v{V_XN+41}, s[{P_DBG}:{P_DBG+1}] sc1")
    hk.wait_force(vm=0)
    hk("s_add_u32 s6, s6, 1")
    hk(f"s_cmp_lt_u32 s6, {PMAX}")
    hk("s_cbranch_scc1 M_NSPIN")
    hk.label("M_NOK")
    hk(f"s_xor_b32 s{S_N1}, s{S_N0}, {NONCE_K:#x}")
    hk("s_cmp_eq_u32 s3, 0")
    hk(f"s_cselect_b32 s{S_BO}, 3, 99")
    hk(f"s_mov_b64 s[{S_GM}:{S_GM+1}], 0xff")
    hk("s_branch M_HOOK_RET")
    hk.label("M_SIGX")
    flag_line(hk, 7, FL_XN, S_QT)
    hk(f"s_lshl_b32 s6, s{S_HEAD}, 3")
    flag_set(hk, S_WS, 7, "s6", V_XN + 40)
    hk.label("M_HOOK_RET")
    hk(f"s_cmp_eq_u32 s{S_KIND}, 0")
    hk("s_cbranch_scc1 M_LOOP_K")
    hk("s_branch M_LOOP_V")

    def frag_reads(b, ks, st):
        r = []
        fa, fb = V_FA + st * 16, V_FB + st * 16
        order = [("a", 0), ("b", 0), ("a", 1), ("a", 2), ("a", 3), ("b", 1), ("b", 2), ("b", 3)]
        for t, i in order:
            if t == "a":
                r.append(f"ds_read_b128 {v(fa+i*4,4)}, v{V_AA+ks} offset:{i*4096 + b*32768}")
            else:
                for u in range(2):
                    r.append(f"ds_read_b64_tr_b16 {v(fb+i*4+u*2,2)}, v{V_AB+i} offset:{(16*ks+4*u)*512 + b*32768}")
        return r

    e.wait_tag("t0")
    stamp(e, opt, "t0")
    e("s_barrier")
    stamp(e, opt, "bar")
    if not A16:
        for r in frag_reads(0, 0, 0):
            e(r)
    e(f"s_mov_b32 s{S_LP}, 2")
    e(f"s_cmp_eq_u32 s{S_KIND}, 0")
    e("s_cbranch_scc0 M_PRE_V")
    pro = e

    def place_dma(fill, items, g0, g1, tag="dma"):
        n = len(items)
        for k, item in enumerate(items):
            pre, d, post = item[:3]
            g = g0 + (k * (g1 - g0)) // n
            for x in pre:
                fill.setdefault(g - 1, []).append(x)
            fill.setdefault(g, []).append((d, item[3] if len(item) > 3 else tag))
            for x in post:
                fill.setdefault(g, []).append(x)

    def ktile(e, kind, b, dma_k0, dma_k3, last=False, pref=True, tag3="dma", tag0="dma", xn=None):
        for ks in range(4):
            st = ks & 1
            fa, fb = V_FA + st * 16, V_FB + st * 16
            spine = []
            for i in range(4):
                for j in range(4):
                    acc = a((i * 4 + j) * 16, 16)
                    W, Cc = v(fb + i * 4, 4), v(fa + j * 4, 4)
                    A, B = (W, Cc) if kind == 0 else (Cc, W)
                    spine.append(f"{MFMA} {acc}, {A}, {B}, {acc}")
            fill = {}
            fill[-1] = [lambda e: e.wait_force(lgkm=0)]
            if ks < 3:
                spread(fill, frag_reads(b, ks + 1, st ^ 1), 0, 12)
                if ks == 0 and dma_k0:
                    place_dma(fill, dma_k0, 1, 16, tag0)
                if ks == 1 and pref:
                    fill.setdefault(4, []).append((f"buffer_load_dword v{V_PD}, v{V_PA}, s[{S_CKV}:{S_CKV+3}], s{SA} offen", "pf"))
                    fill.setdefault(13, []).append((f"buffer_load_dword v{V_PD}, v{V_PB}, s[{S_W}:{S_W+3}], s{SB} offen", "pf"))
                if ks in (1, 2) and xn is not None:
                    k0 = xn + (ks - 1) * 7
                    for k in range(k0, k0 + 7):
                        g = 1 + 2 * (k - k0)
                        if k % 4 == 0 and k:
                            fill.setdefault(g - 1, []).append(f"s_add_u32 s{S_XNB}, s{S_XNB}, 4096")
                        fill.setdefault(g, []).append((f"buffer_load_dwordx4 {v(V_XN+4*k,4)}, v{V_L16}, s[{S_WS}:{S_WS+3}], s{S_XNB} offen offset:{(k%4)*1024} sc1", "xn"))
            else:
                if last:
                    fill[0] = ["s_barrier"]
                else:
                    fill[0] = [lambda e: e.wait_force(vm=(NPF if pref else 0) + (14 if xn is not None else 0)), "s_barrier"]
                    spread(fill, frag_reads(b ^ 1, 0, 0), 0, 12)
                if dma_k3:
                    place_dma(fill, dma_k3, 2, 16, tag3)
            weave(e, spine, fill)

    def c_read(kind, b, s_, j):
        off = j * 2048 if kind == 0 else (j >> 1) * 4096 + (j & 1) * 1024
        return f"ds_read_b128 {v(V_FA + s_*32 + j*4, 4)}, v{V_AA16 + ((s_ ^ j) & 1)} offset:{off + b*32768}"

    def w_read(b, s_, i):
        return [f"ds_read_b64_tr_b16 {v(V_WR + i*4 + 2*u, 2)}, v{V_AB16+i} offset:{(32*s_ + 4*u)*512 + b*32768}" for u in range(2)]

    def ktile16(e, kind, b, dma_k0, dma_k3, last=False, pref=True, tag3="dma", tag0="dma", xn=None, first=False, head=False, extra=None):
        for s_ in range(2):
            spine = []
            for i in range(8):
                for j in range(8):
                    if kind == 0:
                        dt, bb, kb, nb = i >> 1, i & 1, j >> 1, j & 1
                    else:
                        dt, nb, kb, bb = i >> 1, i & 1, j >> 1, j & 1
                    acc = a((kb * 4 + dt) * 16 + nb * 8 + bb * 4, 4)
                    W, Cc = v(V_WR + i * 4, 4), v(V_FA + s_ * 32 + j * 4, 4)
                    A, B = (W, Cc) if kind == 0 else (Cc, W)
                    spine.append(f"v_mfma_f32_16x16x32_bf16 {acc}, {A}, {B}, {0 if first and s_ == 0 else acc}")
            fill = {}
            nb_, ns = (b, 1) if s_ == 0 else (b ^ 1, 0)
            more = not (last and s_ == 1)
            for i in range(8):
                r = v(V_WR + i * 4, 4)
                fill.setdefault(8 * i - 1, []).append(lambda e, r=r: wait_reg(e, r))
            r = v(V_FA + s_ * 32 + 28, 4)
            fill.setdefault(-1, []).append(lambda e, r=r: wait_reg(e, r))
            if s_ == 1:
                nx = 14 if xn is not None else 0
                if last:
                    fill.setdefault(7, []).extend([lambda e: e.wait(lgkm=0), "s_barrier"])
                elif pref and not head:
                    fill.setdefault(7, []).extend([lambda e: e.wait_force(vm=NPF + 1, lgkm=0), "s_barrier"])
                else:
                    fill.setdefault(7, []).extend([lambda e: e.wait_tag("dma"), lambda e: e.wait(lgkm=0), "s_barrier"])
            if more:
                for i in range(8):
                    wr = w_read(nb_, ns, i)
                    fill.setdefault(8 * i + 7, []).append(wr[0])
                    fill.setdefault(min(8 * i + 8, 63), []).append(wr[1])
                for j in range(8):
                    fill.setdefault(10 + 6 * j, []).append(c_read(kind, nb_, ns, j))
            if s_ == 0:
                if dma_k0:
                    place_dma(fill, dma_k0, 1 if first else 2, min(34 if first else 56, 2 + (7 * len(dma_k0)) // 2 + (14 if len(dma_k0) > 8 else 0)), tag0)
                if pref:
                    fill.setdefault(36, []).append((f"buffer_load_dword v{V_PD}, v{V_PA}, s[{S_CKV}:{S_CKV+3}], s{SA} offen", "pf"))
                    fill.setdefault(44, []).append((f"buffer_load_dword v{V_PD}, v{V_PB}, s[{S_W}:{S_W+3}], s{SB} offen", "pf"))
            elif dma_k3:
                place_dma(fill, dma_k3, 11, 62, tag3)
            if xn is not None:
                nx = (10, 4)[s_]
                k0 = xn + s_ * 10
                for k in range(k0, k0 + nx):
                    g = (18 + ((k - k0) * 45) // nx) if s_ == 0 else (13 + (k - k0) * 13)
                    if k % 4 == 0 and k:
                        fill.setdefault(g - 1, []).append(f"s_add_u32 s{S_XNB}, s{S_XNB}, 4096")
                    fill.setdefault(g, []).append((f"buffer_load_dwordx4 {v(V_XN+4*k,4)}, v{V_L16}, s[{S_WS}:{S_WS+3}], s{S_XNB} offen offset:{(k%4)*1024}{XNM}", "xn"))
            if opt.get("x_a_nodma"):
                for g in fill:
                    fill[g] = [x for x in fill[g] if not (isinstance(x, tuple) and x[1] in ("dma", "pf"))]
            if opt.get("x_a_nords"):
                for g in fill:
                    fill[g] = [x for x in fill[g] if not (isinstance(x, str) and x.startswith("ds_read"))]
            if opt.get("a_level", 1):
                seq = [(g, x) for g in sorted(fill) for x in fill[g]]
                new, nxt = {}, -1
                for g, x in seq:
                    t = x[0] if isinstance(x, tuple) else x
                    heavy = isinstance(t, str) and t.startswith(("ds_", "buffer_", "global_"))
                    fixed = callable(x) or t == "s_barrier"
                    if fixed:
                        new.setdefault(g, []).append(x)
                        continue
                    gg = min(63, max(g, nxt)) if heavy else min(63, max(g, nxt - 1))
                    new.setdefault(gg, []).append(x)
                    if heavy:
                        nxt = gg + 1
                fill = new
            for g0, g1, ops in (extra or {}).get(s_, []):
                pour(fill, ops, g0, g1)
            weave(e, spine, fill)

    if A16:
        ktile = ktile16

    NT = 21

    def b_dma(u):
        part, kt = divmod(u, 7)
        slot = SLOT_ORDER[u % 10]
        it = []
        for j in range(4):
            pre = []
            if j == 0:
                pre.append(f"s_add_u32 m0, s{S_W4K}, {slot*16384}")
                off = kt * 64 * 3584 if part == 2 else kt * 64 * 8192 + part * 256
                pre.append(f"s_mov_b32 s{S_BO}, {off}")
            if part == 2:
                d = f"buffer_load_dwordx4 v{V_DQ+j}, s[{S_W1}:{S_W1+3}], s{S_BO} offen offset:{j*1024} lds"
            else:
                d = f"buffer_load_dwordx4 v{V_DQ+j}, s[{S_WQ}:{S_WQ+3}], s{S_BO} offen offset:{j*1024} lds"
            it.append((pre, d, [], f"b{u//2}"))
        return it

    segs = [pro]
    traces = [[hk]]
    tails = {}
    extra = []
    vm_loop = [("dma", frozenset())] * 40
    for kind in range(2):
        nm = "KV"[kind]
        pre = Seg(f"m_pre{nm}", pro.lds, pro.vm)
        pre.label(f"M_PRE_{nm}")
        if A16:
            seq = sorted([(8 * i + 7, 0, w_read(0, 0, i)[0]) for i in range(8)] + [(min(8 * i + 8, 63), 1, w_read(0, 0, i)[1]) for i in range(8)]
                         + [(10 + 6 * j, 2, c_read(kind, 0, 0, j)) for j in range(8)])
            for _, _, x in seq:
                pre(x)
        d0, d1 = dma_items(0), dma_items(1)
        lno = ops_of(ln_pub)
        c1, c2, c3 = (len(lno) * 18) // 100, (len(lno) * 46) // 100, (len(lno) * 74) // 100
        ktile(pre, kind, 0, d1[NPRE:], d0[:NK3], first=True, head=True)
        ktile(pre, kind, 1, d0[NK3:], d1[:NK3], head=True, extra={0: [(18, 64, ops_of(x_loads))]})
        stamp(pre, opt, "it1", raw=True)
        ktile(pre, kind, 0, d1[NK3:], d0[:NK3], head=True, extra={0: [(20, 64, lno[:c1])], 1: [(0, 64, lno[c1:c2])]})
        ktile(pre, kind, 1, d0[NK3:], d1[:NK3], head=True, extra={0: [(0, 64, lno[c2:c3])], 1: [(0, 60, lno[c3:])]})
        stamp(pre, opt, "it2", raw=True)
        pre("s_branch M_HOOK")
        lp = Seg(f"m_loop{nm}", pre.lds, vm_loop)
        lp.label(f"M_LOOP_{nm}")
        gt = [["s_mov_b64 exec, s[70:71]" if False else f"s_mov_b64 exec, s[{S_GM}:{S_GM+1}]", (f"global_load_dword v{V_PD}, {v(V_GP,2)}, off", "pf"),
               "s_mov_b64 exec, -1"], [f"s_lshl_b64 s[{S_GM}:{S_GM+1}], s[{S_GM}:{S_GM+1}], 8", f"s_or_b32 s{S_GM}, s{S_GM}, 1"]]
        ktile(lp, kind, 0, d1[NK3:], d0[:NK3], extra={0: [(50, 56, gt)]})
        ktile(lp, kind, 1, d0[NK3:], d1[:NK3], extra={0: [(50, 56, gt)]})
        assert opt.get('x_a_nords') or lp.lds == pre.lds, (len(lp.lds), len(pre.lds))
        lp(f"s_add_u32 s{S_LP}, s{S_LP}, 1")
        for it in range(3, 7):
            if f"it{it}" in opt.get("sp", []):
                lp(f"s_cmp_lg_u32 s{S_LP}, {it}")
                lp(f"s_cbranch_scc1 M_NS{it}_{nm}")
                stamp(lp, opt, f"it{it}", raw=True)
                lp.label(f"M_NS{it}_{nm}")
        lp(f"s_cmp_eq_u32 s{S_LP}, s{S_BO}")
        lp("s_cbranch_scc1 M_SIGX")
        lp(f"s_cmp_lg_u32 s{S_LP}, 5")
        lp(f"s_cbranch_scc1 M_NOPOLL_{nm}")
        flag_line(lp, 7, FL_XN, S_QT)
        lp(f"buffer_load_dwordx2 {v(V_FL,2)}, v{V_FO}, s[{S_WS}:{S_WS+3}], s7 offen sc1", "pf")
        lp.label(f"M_NOPOLL_{nm}")
        lp(f"s_cmp_lt_u32 s{S_LP}, 6")
        lp(f"s_cbranch_scc1 M_LOOP_{nm}")
        tl = Seg(f"m_tail{nm}", lp.lds, lp.vm)
        tl.label(f"M_TAIL{kind}")
        bd = sum((b_dma(u) for u in range(10)), [])
        flag_test(tl, V_FL)
        tl(f"s_cselect_b32 s{S_XNF}, 1, 0")
        ktile(tl, kind, 0, d1[NK3:], d0[:NK3], pref=False, xn=0)
        ktile(tl, kind, 1, d0[NK3:], d1[:NK3], pref=False, xn=14)
        stamp(tl, opt, "it7", raw=True)
        ktile(tl, kind, 0, d1[NK3:] + bd[:8], bd[8:20], pref=False)
        ktile(tl, kind, 1, bd[20:24], bd[24:36], last=True, pref=False)
        if kind == 0:
            tl("s_branch M_B")
        segs += [pre, lp, tl] + ([hk] if kind == 0 else [])
        tails[kind] = tl
        traces.append([pro, pre, lp, lp, tl])

    e = Seg("m_b", tails[0].lds, tails[0].vm)
    e.label("M_B")
    stamp(e, opt, 2)
    stamp(e, opt, "b")
    e(f"s_cmp_lt_u32 s{S_XNF}, {99 if opt.get('force_fb') else 1}")
    e("s_cbranch_scc1 M_FB")
    e.label("M_FB_RET")
    for _ in range(opt.get("x_idle", 0)):
        e("s_sleep 32")
    srd(e, S_WO, P_WO, WO_BYTES)
    srd(e, S_W2, P_W2, W2_BYTES)
    attn.setup_dma(e)
    e(f"v_and_b32 v{V_ST}, 15, v0")
    e(f"v_lshlrev_b32 v{V_ST}, 4, v{V_ST}")
    e("v_lshrrev_b32 v6, 4, v0")
    e(f"v_lshl_add_u32 v{V_ST}, v6, 9, v{V_ST}")
    e(f"v_mov_b32 v6, v{V_D1+3}")
    for nb in range(4):
        e(f"v_add_u32 v{V_AT3+nb}, 0x20000, v{V_AT+nb}")
    fb = Seg("m_fb")
    fb.label("M_FB")
    fb.wait_force(vm=0)
    fb(f"s_lshl_b32 s7, s{S_QT}, 7")
    fb("s_lshl_b32 s6, s3, 5")
    fb("s_add_u32 s7, s7, s6")
    fb("v_and_b32 v6, 31, v0")
    fb("v_add_u32 v6, s7, v6")
    fb("v_mul_u32_u24 v6, 896, v6")
    fb("v_lshrrev_b32 v7, 5, v0")
    fb("v_lshl_add_u32 v6, v7, 4, v6")
    for ks in range(28):
        fb(f"buffer_load_dwordx4 {v(V_XN+ks*4,4)}, v6, s[{S_X}:{S_X+3}], 0 offen offset:{ks*32}", "x")
    layernorm(fb, 112, (32,), range(112))
    fb.nop(2)
    fb("s_branch M_FB_RET")
    extra.append(fb)

    D = opt.get("b_depth", 7)
    NF = NT * 16

    def b_read(f):
        u, rem = divmod(f, 16)
        ks, nb = divmod(rem, 4)
        slot = SLOT_ORDER[u % 10]
        fr = V_FA + (f % 8) * 4
        at = (V_AT, V_AT + 4, V_AT3)[slot >> 2] + nb
        return [f"ds_read_b64_tr_b16 {v(fr+2*h,2)}, v{at} offset:{(slot&3)*16384 + (16*ks+4*h)*256}" for h in range(2)]

    def kv_epi(b, t=8, o=8):
        kb, i = divmod(b, 4)
        ops = []
        if i == 0 and kb:
            ops.append(f"s_add_u32 s{S_KVBASE}, s{S_KVBASE}, s{S_KVSTR}")
        if i % 2 == 0:
            ops.append(f"s_add_u32 s{S_KVC}, s{S_KVBASE}, {KV_OFF + (i>>1)*4096}")
        for c in range(2):
            for r in range(8):
                ops.append(f"v_accvgpr_read_b32 v{t+r}, a{b*16+8*c+r}")
            for r in range(4):
                ops.append(f"v_cvt_pk_bf16_f32 v{t+o+r}, v{t+2*r}, v{t+2*r+1}")
            ops.append((f"buffer_store_dwordx4 {v(t+o,4)}, v{V_ST}, s[{S_WS}:{S_WS+3}], s{S_KVC} offen offset:{(i&1)*2048+c*256}{ST}", "kvst" if kb < 2 else "kvst2"))
        if opt.get("x_nokvst"):
            ops = [o for o in ops if not isinstance(o, tuple)]
        if opt.get("x_noepi"):
            ops = []
        return ops

    def q_epi(part):
        ops = []
        t = 20
        for nb in range(4):
            if nb % 2 == 0:
                ops.append(f"s_add_u32 s{S_QC}, s{S_QB}, {part*8192 + (nb>>1)*4096}")
            for c in range(2):
                if part == 0:
                    src = H_ACC[nb] + 8 * c
                else:
                    src = t
                    for r in range(8):
                        ops.append(f"v_accvgpr_read_b32 v{t+r}, a{nb*16+8*c+r}")
                for r in range(4):
                    ops.append(f"v_cvt_pk_bf16_f32 v{t+8+r}, v{src+2*r}, v{src+2*r+1}")
                ops.append((f"buffer_store_dwordx4 {v(t+8,4)}, v{V_L16}, s[{S_QST}:{S_QST+3}], s{S_QC} offen offset:{(nb&1)*2048 + c*1024} sc1", "qst"))
                for r in range(4):
                    ops.append(f"v_accvgpr_write_b32 a{A_Q2 + part*32 + nb*8 + c*4 + r}, v{t+8+r}")
        return ops

    GKV, GCHK, GQ = opt.get("g_kv", 6), opt.get("g_chk", 9), 9
    fl = attn.first_loads(S_KVE)
    spine, fill = [], {}
    e.wait_tag("b0")
    e("s_barrier")
    for f in range(D):
        for r in b_read(f):
            e(r)
    place_dma(fill, b_dma(9), 1, 16)
    for f in range(NF):
        u, rem = divmod(f, 16)
        part, kt = divmod(u, 7)
        ks, nb = divmod(rem, 4)
        acc = a(nb * 16, 16) if part == 1 else v(H_ACC[nb], 16)
        c = "0" if (kt == 0 and ks == 0) else acc
        spine.append(f"{MFMA} {acc}, {v(V_FA+(f%8)*4,4)}, {v(V_XN+(kt*4+ks)*4,4)}, {c}")
        nf = f + D
        if nf < NF:
            if nf % 32 == 0:
                g = nf // 32
                ops = [lambda e, g=g: e.wait_tag(f"b{g}")]
                if g == GKV:
                    ops.append(lambda e: e.wait_tag("kvst"))
                if g == GQ:
                    ops.append(lambda e: e.wait_tag("qst"))
                if g == GCHK:
                    ops += [lambda e: flag_test(e, VPK), f"s_cselect_b32 s{S_EARLY}, 1, 0",
                            f"s_cselect_b32 s{S_KVE+2}, {WS_BYTES:#x}, 0"]
                ops.append("s_barrier")
                if g == GKV:
                    ops += ["s_cmp_eq_u32 s3, 0", "s_cbranch_scc1 M_SKV", "M_SKV_RET:"]
                if g == GQ:
                    ops += ["s_cmp_eq_u32 s3, 0", "s_cbranch_scc1 M_SQ", "M_SQ_RET:"]
                if g == 10:
                    ops += [f"s_cmp_lt_u32 s{S_QT}, 8", "s_cbranch_scc1 M_EQ", "M_EQ_RET:"]
                if g == 4:
                    ops += [f"v_add_u32 v{V_DQ+j}, {j*4*3584 - j*1024}, v6" for j in range(4)]
                if f"g{g}" in opt.get("sp", []):
                    ops.append(lambda e, g=g: stamp(e, opt, f"g{g}", raw=True))
                fill.setdefault(f, []).extend(ops)
                if g >= 2:
                    its = []
                    for u2 in (2 * g + 6, 2 * g + 7):
                        if u2 < NT:
                            its += b_dma(u2)
                    if its:
                        place_dma(fill, its, f + 2, f + 30)
                if g == 9:
                    spread(fill, sum(fl[:4], []), f + 2, f + 32)
                if g == 10:
                    spread(fill, sum(fl[4:], []), f + 2, f + 20)
            fill.setdefault(f, []).extend(b_read(nf))
        if f % 2 == 0:
            r = v(V_FA + (min(f + 1, NF - 1) % 8) * 4, 4)
            fill.setdefault(f - 1, []).append(lambda e, r=r: wait_reg(e, r))
    g1, g2a, g2, gq0, gq1 = opt.get("kv_split", (125, 200, 330, 130, 262))
    pour(fill, sum((kv_epi(b) for b in range(0, 8)), []), 2, g1)
    pour(fill, q_epi(0), gq0, 215)
    pour(fill, q_epi(1), 224 + 5, gq1)
    pour(fill, [f"s_mov_b32 s{S_KVE}, s{S_WS}", f"s_mov_b32 s{S_KVE+1}, s{S_WS+1}", f"s_mov_b32 s{S_KVE+3}, 0x20000",
                lambda e: flag_line(e, 73, FL_KV, S_HEAD), lambda e: flag_line(e, 74, FL_PAIR, S_PAIR)], 160, 180)
    fill.setdefault(opt.get("g_pkv", 240), []).append(f"buffer_load_dwordx2 {v(VPK,2)}, v{V_FO}, s[{S_WS}:{S_WS+3}], s73 offen sc1")
    GP = opt.get("g_poll", 298)
    fill.setdefault(GP - 1, []).append(f"v_mov_b32 v{VPQ+2}, 0")
    fill.setdefault(GP, []).append((f"buffer_load_dwordx2 {v(VPQ,2)}, v{VPQ+2}, s[{S_WS}:{S_WS+3}], s74 offen sc1", "pq"))
    fill.setdefault(GP, []).append(f"s_mov_b32 s{S_GOTQ}, 0")
    pour(fill, [f"v_accvgpr_mov_b32 a{A_Q+r}, a{A_Q2+r}" for r in range(64)], gq1 + 2, 312)
    pour(fill, sum((kv_epi(b) for b in range(8, 12)), []), g2a, g2)
    younger = [0]

    def count_pq(e):
        tags = [t for t, d in e.vm]
        younger[0] = len(tags) - 1 - tags.index("pq") if "pq" in tags else 63
    count_pq.cost = 0
    fill[313].insert(fill[313].index("s_barrier"), count_pq)
    for k in range(8, 26):
        for r in (0, 2):
            g = min(range(224 + 4 * k + 5, 336), key=lambda g: (load_of(fill, g), g))
            fill.setdefault(g, []).append(f"v_mov_b64 {v(V_XN+4*k+r,2)}, 0")
    print(gap_report("phase B", fill, NF))
    weave(e, spine, fill)
    stamp(e, opt, 3)
    stamp(e, opt, "bend")

    skv = Seg("m_skv")
    skv.label("M_SKV")
    flag_line(skv, 7, FL_KV, S_HA)
    flag_set(skv, S_WS, 7, f"s{S_KVSLOT}", 20)
    skv("s_branch M_SKV_RET")
    sq = Seg("m_sq")
    sq.label("M_SQ")
    sq(f"s_cmp_lt_u32 s{S_QT}, 8")
    sq("s_cbranch_scc1 M_SQ_RET")
    flag_set(sq, S_WS, 74, 0, V_XN)
    sq("s_branch M_SQ_RET")

    def spin(e, name, vd, voff, line, first=True):
        e("s_mov_b32 s6, 0")
        e.label(name)
        if first:
            e(f"buffer_load_dwordx2 {v(vd,2)}, v{voff}, s[{S_WS}:{S_WS+3}], s{line} offen sc1")
        e.wait_force(vm=0)
        flag_test(e, vd)
        e(f"s_cbranch_scc1 {name}_OK")
        e("s_sleep 2")
        if not first:
            e(f"buffer_load_dwordx2 {v(vd,2)}, v{voff}, s[{S_WS}:{S_WS+3}], s{line} offen sc1")
        e("s_add_u32 s6, s6, 1")
        e(f"s_cmp_lt_u32 s6, {PMAX}")
        e(f"s_cbranch_scc1 {name}")
        e.wait_force(vm=0)
        e.label(name + "_OK")

    late = Seg("m_late")
    late.label("M_LATE")
    spin(late, "M_PKV", VPK, V_FO, 73)
    for grp in attn.first_loads(S_WS):
        run(late, grp)
    late.wait_force(vm=0)
    late("s_branch M_LATE_RET")
    def q_loads(g):
        for k in range(16):
            if k and k % 4 == 0:
                g(f"s_add_u32 s{S_QB}, s{S_QB}, 4096")
            g(f"buffer_load_dwordx4 {a(A_Q+4*k,4)}, v{V_L16}, s[{S_WS}:{S_WS+3}], s{S_QB} offen offset:{(k%4)*1024} sc1", "q")

    gq = Seg("m_getq")
    gq.label("M_EQ")
    gq.wait_force(vm=younger[0])
    flag_test(gq, VPQ)
    gq("s_cbranch_scc0 M_EQ_RET")
    q_loads(gq)
    gq(f"s_mov_b32 s{S_GOTQ}, 1")
    gq("s_branch M_EQ_RET")
    gq.label("M_GETQ")
    gq(f"s_cmp_eq_u32 s{S_GOTQ}, {2 if opt.get('force_late') else 1}")
    gq("s_cbranch_scc1 M_GETQ_RET")
    if opt.get('force_late'):
        gq(f"s_mul_i32 s6, s{S_GOTQ}, 12288")
        gq(f"s_sub_u32 s{S_QB}, s{S_QB}, s6")
    spin(gq, "M_PQ", VPQ, VPQ + 2, 74)
    q_loads(gq)
    gq("s_branch M_GETQ_RET")
    wq = Seg("m_waitq")
    wq.label("M_WAITQ")
    wq.wait_force(vm=0)
    wq("s_branch M_WAITQ_RET")
    extra += [skv, sq, late, gq, wq]

    e(f"s_cmp_eq_u32 s{S_EARLY}, {2 if opt.get('force_late') else 1}")
    e("s_cbranch_scc0 M_LATE")
    e.label("M_LATE_RET")
    e(f"s_cmp_lt_u32 s{S_QT}, 8")
    e("s_cbranch_scc1 M_GETQ")
    e.label("M_GETQ_RET")
    stamp(e, opt, "polled")
    HS = V_XN + 4
    for k in range(28):
        nb, r = divmod(k, 8)
        e(f"v_cvt_pk_bf16_f32 v{HS+k}, v{H_ACC[nb]+2*r}, v{H_ACC[nb]+2*r+1}")
    srd(e, S_OUT, P_OUT, OUT_BYTES)
    attn.setup_v(e)
    e("s_getpc_b64 s[80:81]")
    e.label("M_PC_A")
    e("s_lshr_b32 s7, s2, 3")
    e("s_lshl_b32 s7, s7, 2")
    e("s_add_u32 s7, s7, s3")
    e("s_mul_i32 s7, s7, 512")
    e(f"v_min_u32 v{attn.V_X+3}, 3, v0")
    e(f"v_lshl_add_u32 v{attn.V_X+3}, v{attn.V_X+3}, 7, s7")
    e(f"v_min_u32 v{attn.V_X+3}, M_CODE_END-M_PC_A-8, v{attn.V_X+3}")
    attn.init_state(e, V_XN + 4 * 26)
    e(f"s_cmp_lt_u32 s{S_QT}, 8")
    e("s_cbranch_scc1 M_WAITQ")
    e.label("M_WAITQ_RET")
    stamp(e, opt, 4)
    stamp(e, opt, "a0")

    RA, RB, XR, VO, VP = 180, 32, 12, 2, 10

    def hooks(fill, NFE, ED):
        g = 6 * NFE - ED
        fill[g].extend(["s_cmp_eq_u32 s3, 0", "s_cbranch_scc1 M_SYA", "M_SYA_RET:"])
        ops = [f"s_lshl_b32 s7, s{S_QT}, 2", f"s_lshr_b32 s4, s{S_HEAD}, 2", "s_add_u32 s4, s4, s7",
               f"s_and_b32 s5, s{S_HEAD}, 3", "s_lshl_b32 s6, s3, 2", "s_add_u32 s5, s5, s6",
               "s_mul_i32 s6, s4, 28", "s_add_u32 s6, s6, s5", "s_lshl_b32 s6, s6, 10",
               f"s_add_u32 s53, s6, {Y_OFF}", "s_add_u32 s54, s53, 16384",
               f"v_and_b32 v{VO}, 31, v0", "v_lshrrev_b32 v3, 5, v0", "s_lshl_b32 s4, s4, 5", f"v_add_u32 v{VO}, s4, v{VO}",
               f"v_mul_u32_u24 v{VO}, 896, v{VO}", f"v_lshl_add_u32 v{VO}, v3, 3, v{VO}", "s_lshl_b32 s5, s5, 5",
               f"v_add_u32 v{VO}, s5, v{VO}"]
        ops += [f"buffer_load_dwordx2 {v(XR+2*k,2)}, v{VO}, s[{S_X}:{S_X+3}], 0 offen offset:{(k>>1)*512+(k&1)*16}" for k in range(4)]
        ops += [lambda e: flag_line(e, 55, FL_Y, S_QT), lambda e: flag_line(e, 63, FL_YA, S_QT)]
        pour(fill, ops, 5 * NFE + 2, 5 * NFE + 34)
        fill.setdefault(6 * NFE + opt.get("g_pa", 22), []).append(
            (f"buffer_load_dwordx2 {v(VP,2)}, v{V_FO}, s[{S_WS}:{S_WS+3}], s63 offen sc1", "pa"))

    sya = Seg("m_sya")
    sya.label("M_SYA")
    sya(f"s_lshl_b32 s6, s{S_HEAD}, 3")
    flag_set(sya, S_WS, 63, "s6", 20)
    sya("s_branch M_SYA_RET")
    extra.append(sya)

    def finish(e):
        stamp(e, opt, "yend")

        def loads(base, sreg, tag):
            for h in range(16):
                e(f"buffer_load_dwordx4 {v(base+4*h,4)}, v{V_L16}, s[{S_WS}:{S_WS+3}], s{sreg} offen sc1", tag)
                if h < 15:
                    e(f"s_add_u32 s{sreg}, s{sreg}, {64*28*1024}")

        def reduce(base, xr, off):
            acc, t = 20, 28
            for r in range(4):
                e(f"v_lshlrev_b32 v{acc+2*r}, 16, v{xr+r}")
                e(f"v_and_b32 v{acc+1+2*r}, 0xffff0000, v{xr+r}")
            for h in range(16):
                for r in range(4):
                    src = base + 4 * h + r
                    u = t + 2 * (r & 1)
                    e(f"v_lshlrev_b32 v{u}, 16, v{src}")
                    e(f"v_and_b32 v{u+1}, 0xffff0000, v{src}")
                    e(f"v_pk_add_f32 {v(acc+2*r,2)}, {v(acc+2*r,2)}, {v(u,2)}")
            for r in range(4):
                e(f"v_cvt_pk_bf16_f32 v{xr+r}, v{acc+2*r}, v{acc+1+2*r}")
            e(f"buffer_store_dwordx2 {v(xr,2)}, v{VO}, s[{S_OUT}:{S_OUT+3}], 0 offen offset:{off}")
            e(f"buffer_store_dwordx2 {v(xr+2,2)}, v{VO}, s[{S_OUT}:{S_OUT+3}], 0 offen offset:{off+16}")

        flag_test(e, VP)
        e("s_cselect_b32 s60, 1, 0")
        e("s_cbranch_scc0 M_NOA")
        loads(RA, 53, "ra")
        e.wait_force(vm=16)
        e("s_branch M_A1")
        e.label("M_NOA")
        e.wait_force(vm=0)
        e.label("M_A1")
        e("s_barrier")

        e("s_cmp_lg_u32 s3, 3")
        e("s_cbranch_scc1 M_PA_OK")
        e(f"s_lshl_b32 s6, s{S_HEAD}, 3")
        flag_set(e, S_WS, 55, "s6", 20)
        e("s_cmp_eq_u32 s60, 1")
        e("s_cbranch_scc1 M_PA_OK")
        spin(e, "M_PA", VP, V_FO, 63)
        e("s_barrier")
        e("s_cmp_eq_u32 s60, 1")
        e("s_cbranch_scc1 M_A2")
        loads(RA, 53, "ra")
        e.label("M_A2")
        e("s_cmp_eq_u32 s3, 3")
        e("s_cbranch_scc1 M_W3")
        e.wait_force(vm=0)
        reduce(RA, XR, 0)
        e("s_barrier")
        stamp(e, opt, "ypoll")
        e.vm = []
        loads(RB, 54, "rb")
        reduce(RB, XR + 4, 512)
        e("s_branch M_DONE")
        e.label("M_W3")
        spin(e, "M_PB", VP, V_FO, 55)
        e("s_barrier")
        stamp(e, opt, "ypoll")
        reduce(RA, XR, 0)
        e.label("M_DONE")
        stamp(e, opt, 5)
        stamp(e, opt, "end")
        stamp_flush(e, opt, 0, S_WS, 6)

    aopt = dict(opt)
    aopt["code_pf"] = not opt.get("no_cpf")
    aopt["stash"] = HS
    aopt["kv2"] = (S_HA, S_KVSLOT, V_FO, sum((kv_epi(b, attn.V_X + 4, 0) for b in range(12, 16)), []))
    if not opt.get("sp"):
        aopt["sp"] = ["none"]
        aopt["spk"] = ""
    asegs, atraces = attn.gen_attn(e, aopt, "M_END", finish, hooks)
    z = Seg("m_z")
    z.label("M_CODE_END")
    segs += asegs + extra + [z]
    for t in traces[1:]:
        t.append(e)
    traces += atraces + [[tails[0], fb, e]] + [[x] for x in extra]
    return segs, traces
```

```python
from emit import *
from common import *

LDS_BYTES = 160 * 1024
S_WS, S_WO, S_W2, S_Y1 = 16, 8, 12, 28
V_L16, V_PD = 1, 2
V_DMA, V_DMA2 = 3, 4
V_L0, V_L1, V_VA, V_HA, V_D0, V_NEGBIG, V_MAX, V_MS = 8, 9, 10, 11, 13, 14, 15, 16
V_T = 18
V_S = (32, 48)
V_P = (64, 72)
V_NM = 80
V_X = 96
V_O = 128
A_Q, A_Q2, A_F, A_HF = 0, 64, 128, 192
S_HEAD, S_QT, S_NH, S_IT, S_T, S_RET, S_DELTA, S_ITH, S_OFFH, S_OFFD = 32, 33, 34, 35, 36, 37, 38, 39, 40, 41
S_KVB, S_W4K, S_PAIR, S_ITSW, S_ITSIG, S_PEND = 42, 43, 48, 49, 50, 51
S_OFF = 44
THR = 16.0
VSLOT = {32: 0x20000, 33: 0x24000}
S_NEG, S_QS, S_PFO, S_PFD, S_PUB = 52, 82, 83, 84, 78
V_KP = 12
KPD = 7
KVM = [""]


def setup_s(e):
    e(f"s_lshl_b32 s4, s{S_QT}, 2")
    e(f"s_sub_u32 s{S_NH}, 30, s4")
    e(f"s_sub_u32 s6, 15, s{S_QT}")
    e(f"s_cmp_ge_u32 s{S_QT}, 8")
    e(f"s_cselect_b32 s{S_NH}, 0, s{S_NH}")
    e(f"s_cselect_b32 s{S_PAIR}, s6, s{S_QT}")
    e(f"s_lshl_b32 s5, s{S_HEAD}, 3")
    e(f"s_add_u32 s{S_PAIR}, s{S_PAIR}, s5")
    e(f"s_lshl_b32 s{S_W4K}, s3, 12")
    e(f"s_lshl_b32 s{S_KVB}, s{S_HEAD}, 21")
    e(f"s_sub_u32 s5, 29, s{S_NH}")
    e("s_lshl_b32 s5, s5, 15")
    e(f"s_add_u32 s{S_OFFH}, s5, s{S_KVB}")
    e("s_lshl_b32 s5, s4, 15")
    e(f"s_add_u32 s{S_OFFD}, s5, s{S_KVB}")
    e(f"s_sub_u32 s5, s{S_NH}, 6")
    e("s_lshr_b32 s5, s5, 2")
    e(f"s_cmp_ge_u32 s{S_NH}, 6")
    e(f"s_cselect_b32 s{S_ITH}, s5, 99")
    e(f"s_lshr_b32 s5, s{S_NH}, 2")
    e(f"s_cmp_ge_u32 s{S_QT}, 8")
    e(f"s_cselect_b32 s{S_ITSW}, 99, s5")
    e(f"s_mov_b32 s{S_ITSIG}, s{S_ITSW}")
    e("s_cmp_eq_u32 s3, 0")
    e(f"s_cselect_b32 s{S_ITSIG}, s{S_ITSIG}, 99")
    e(f"s_mov_b32 s{S_NEG}, 0xffff8000")
    e(f"s_mov_b32 s{S_PEND}, 0")
    e(f"s_mov_b32 s{S_IT}, 0")
    e(f"s_mov_b32 s{S_T}, {f32(THR)}")


def setup_dma(e):
    e(f"v_lshlrev_b32 v{V_L16}, 4, v0")
    e(f"v_add_u32 v{V_DMA}, s{S_W4K}, v{V_L16}")
    e(f"v_add_u32 v{V_DMA2}, 0x4000, v{V_DMA}")


def setup_v(e):
    e(f"s_mul_i32 s5, s{S_QT}, 112")
    e("s_mul_i32 s6, s3, 28")
    e("s_add_u32 s5, s5, s6")
    e(f"v_min_u32 v{V_T}, 27, v0")
    e(f"v_add_u32 v{V_T}, s5, v{V_T}")
    e(f"s_mul_i32 s5, s{S_HEAD}, 229376")
    e(f"v_lshl_add_u32 v{V_X+1}, v{V_T}, 7, s5")
    e("s_mul_i32 s6, s3, 13")
    e(f"v_min_u32 v{V_T}, 12, v0")
    e(f"v_add_u32 v{V_T}, s6, v{V_T}")
    e(f"v_min_u32 v{V_T}, 48, v{V_T}")
    e(f"s_mul_i32 s5, s{S_QT}, 49")
    e(f"v_add_u32 v{V_T}, s5, v{V_T}")
    e(f"s_mul_i32 s5, s{S_HEAD}, 100352")
    e(f"v_lshl_add_u32 v{V_X+2}, v{V_T}, 7, s5")
    e(f"v_add_u32 v{V_VA}, 0x10000, v{V_L16}")
    e(f"v_and_b32 v{V_T}, 15, v0")
    e(f"v_lshrrev_b32 v{V_T+1}, 4, v0")
    e(f"v_lshlrev_b32 v{V_T+1}, 2, v{V_T+1}")
    e(f"v_sub_u32 v{V_D0}, v{V_T}, v{V_T+1}")
    e(f"v_mov_b32 v{V_NEGBIG}, {f32(-1e30)}")
    e(f"s_mov_b32 s{S_QS}, {f32(QSCALE)}")
    e("s_cmp_eq_u32 s3, 0")
    e(f"s_cselect_b32 s{S_PUB}, 2, 0")
    e(f"s_and_b32 s5, s{S_QT}, 7")
    e("s_lshl_b32 s5, s5, 2")
    e("s_add_u32 s5, s5, s3")
    e("s_lshl_b32 s5, s5, 10")
    e(f"v_and_b32 v{V_T}, 7, v0")
    e(f"v_lshl_add_u32 v{V_KP}, v{V_T}, 7, s5")
    e(f"v_bfe_u32 v{V_T}, v0, 3, 2")
    e(f"v_lshl_add_u32 v{V_KP}, v{V_T}, 15, v{V_KP}")
    e(f"s_cmp_ge_u32 s{S_QT}, 8")
    e(f"s_cselect_b32 s{S_PFO}, {29 - KPD - 3}, {30 + KPD}")
    e(f"s_cselect_b32 s{S_PFD}, -4, 4")
    e("s_mul_i32 s5, s3, 7168")
    e("s_add_u32 s5, s5, 0x20000")
    e(f"v_add_u32 v{V_HA}, s5, v{V_L16}")


def idx_ops(dst, n):
    return [
        f"s_mov_b32 s{dst}, {(29-n) << 15}",
        f"s_cmp_gt_u32 s{S_NH}, {n}",
        f"s_cselect_b32 s{dst}, {(30+n) << 15}, s{dst}",
        f"s_add_u32 s{dst}, s{dst}, s{S_KVB}",
    ]


def dmaK(slot, off, tag="dma", S_WS=S_WS):
    return [f"s_add_u32 m0, s{S_W4K}, {slot*16384}"] + [
        (f"buffer_load_dwordx4 v{V_DMA}, s[{S_WS}:{S_WS+3}], s{off} offen offset:{j*1024}{KVM[0]} lds", tag) for j in range(4)]


def dmaV(base, off, tag="dma", S_WS=S_WS):
    return [f"s_add_u32 m0, s{S_W4K}, {base}"] + [
        (f"buffer_load_dwordx4 v{V_DMA2}, s[{S_WS}:{S_WS+3}], s{off} offen offset:{j*1024}{KVM[0]} lds", tag) for j in range(4)]


def first_loads(sr=S_WS):
    out = [[idx_ops(S_OFF + n, n)] for n in range(4)]
    seq = [out[0] + dmaK(0, S_OFF + 0, "k0", sr), dmaV(0x10000, S_OFF + 0, "v0", sr), out[1] + dmaK(1, S_OFF + 1, "k1", sr),
           dmaV(0x14000, S_OFF + 1, "v1", sr), out[2] + dmaK(2, S_OFF + 2, "k2", sr), out[3] + dmaK(3, S_OFF + 3, "k3", sr)]
    return seq


def init_state(e, o_from=V_O):
    for r in range(o_from, V_O + 128, 2):
        e(f"v_mov_b64 {v(r,2)}, 0")
    for r in range(0, 8, 2):
        e(f"v_mov_b64 {v(V_NM+r,2)}, 0")
    e(f"v_mov_b64 {v(V_L0,2)}, 0")


def gen_attn(e, opt, end_label, finish=None, hooks=None):
    D = opt.get("a_depth", 14)
    WG = opt.get("a_waitgrp", 4)
    YM = opt.get("y_store_mod", "")
    KPF = 1 if opt.get("kpf") else 0
    NEPF = 3 if opt.get("loop_epf") else 0

    def rd(f, kslot, vbase):
        d = a(A_F + (f % 16) * 4, 4)
        if f < 16:
            return f"ds_read_b128 {d}, v{V_L16} offset:{kslot*16384 + f*1024}"
        return f"ds_read_b128 {d}, v{V_VA} offset:{vbase + (f-16)*1024}"

    M16 = "v_mfma_f32_16x16x32_bf16"

    def m1(f, qb, par):
        fr = a(A_F + (f % 16) * 4, 4)
        if f < 16:
            j, kb = divmod(f, 2)
            S = v(V_S[par ^ 1] + qb * 8 + kb * 4, 4)
            C = v(V_NM + qb * 4, 4) if j == 0 else S
            return f"{M16} {S}, {fr}, {a(A_Q+(j*2+qb)*4,4)}, {C}"
        j, b = divmod(f - 16, 2)
        O = v(V_O + (j * 2 + qb) * 8 + b * 4, 4)
        return f"{M16} {O}, {fr}, {v(V_P[par]+4*qb,4)}, {O}"

    def mf(u, par):
        if 16 <= u < 20:
            f, qb = 16 + 2 * (u & 1), (u - 16) >> 1
            return (m1(f, qb, par), m1(f + 1, qb, par))
        return (m1(u, 0, par), m1(u, 1, par))

    def max_ops(par):
        S = V_S[par]
        t = V_T
        ops = [f"v_max3_f32 v{t+k}, v{S+3*k}, v{S+3*k+1}, v{S+3*k+2}" for k in range(5)]
        ops += [f"v_max3_f32 v{t}, v{t}, v{t+1}, v{t+2}", f"v_max3_f32 v{t+3}, v{t+3}, v{t+4}, v{S+15}",
                f"v_max_f32 v{V_MAX}, v{t}, v{t+3}", f"v_cmp_lt_f32 vcc, s{S_T}, v{V_MAX}"]
        return ops

    def soft_ops(par):
        S, P = V_S[par], V_P[par]
        ops = []
        for k in range(9):
            if k < 8:
                ops += [f"v_exp_f32 v{S+2*k}, v{S+2*k}", f"v_exp_f32 v{S+2*k+1}, v{S+2*k+1}"]
            if k > 0:
                j = k - 1
                ops += [f"v_cvt_pk_bf16_f32 v{P+j}, v{S+2*j}, v{S+2*j+1}",
                        f"v_add_f32 v{V_L0+(j>>2)}, v{V_L0+(j>>2)}, v{S+2*j}", f"v_add_f32 v{V_L0+(j>>2)}, v{V_L0+(j>>2)}, v{S+2*j+1}"]
        return ops

    def mask_ops(par, t):
        S = V_S[par]
        ops = [[f"s_sub_u32 s54, {t}, s3", "s_lshl_b32 s54, s54, 5", f"v_subrev_u32 v{V_X}, s54, v{V_D0}"]]
        for h in range(4):
            for r in range(4 * h, 4 * h + 4):
                ops.append(f"v_cmp_le_i32 s[{64+2*(r%8)}:{65+2*(r%8)}], {16*(((r>>2)&1) - (r>>3)) + (r&3)}, v{V_X}")
            if h > 0:
                for r in range(4 * h - 4, 4 * h):
                    ops.append(f"v_cndmask_b32 v{S+r}, v{V_NEGBIG}, v{S+r}, s[{64+2*(r%8)}:{65+2*(r%8)}]")
        ops.append("s_nop 0")
        for r in range(12, 16):
            ops.append(f"v_cndmask_b32 v{S+r}, v{V_NEGBIG}, v{S+r}, s[{64+2*(r%8)}:{65+2*(r%8)}]")
        return ops

    def waits(fill, lo, hi, shift=0):
        for f in range(lo, hi, WG):
            r = a(A_F + ((f + WG - 1) % 16) * 4, 4)
            fill.setdefault(f - 1 - shift, []).append(lambda e, r=r: wait_reg(e, r))

    def place(fill, ops, g0, step=2):
        fill.setdefault(g0, []).append(ops[0])
        for j, d in enumerate(ops[1:]):
            fill.setdefault(g0 + 1 + step * j, []).append(d)

    rare_sites = {0: [], 1: []}
    stubs = Seg("a_stubs")

    def rare_check(e, par, name):
        k = len(rare_sites[par])
        rare_sites[par].append(name)
        e(f"s_cbranch_vccnz A_ST_{name}" if not opt.get("x_drop") else "s_nop 0")
        e.label(f"A_RET_{name}")
        stubs.label(f"A_ST_{name}")
        stubs(f"s_mov_b32 s{S_RET}, {k}")
        stubs(f"s_branch A_RARE{par}")

    V_EV, V_EA = V_X + 4, V_X + 8

    def e_setup():
        ops = ["v_lshrrev_b32 v24, 3, v0", "v_mul_u32_u24 v24, 896, v24", "v_bfe_u32 v25, v0, 2, 1", "v_bfe_u32 v26, v0, 4, 1",
               "v_xor_b32 v25, v25, v26", "v_lshl_add_u32 v24, v25, 6, v24", "v_and_b32 v25, 3, v0",
               f"v_lshl_add_u32 v{V_EV}, v25, 4, v24"]
        ops += [f"v_add_u32 v{V_EV+j}, {j*7168 - j*1024}, v{V_EV}" for j in range(1, 4)]
        ops += [f"s_mul_i32 s56, s{S_HEAD}, 229376", "s_mul_i32 s4, s3, 57344", "s_add_u32 s56, s56, s4",
                f"s_mul_i32 s57, s{S_HEAD}, 100352", "s_mul_i32 s4, s3, 28672", "s_add_u32 s57, s57, s4",
                "s_lshl_b32 s60, s3, 13"]
        ops += ["v_lshrrev_b32 v24, 5, v0", "v_bfe_u32 v25, v0, 2, 2", "v_lshl_add_u32 v24, v24, 2, v25", "v_lshlrev_b32 v24, 7, v24",
                "v_lshl_add_u32 v24, v26, 5, v24", "v_and_b32 v25, 3, v0", "v_lshl_add_u32 v24, v25, 3, v24", "v_bfe_u32 v25, v0, 3, 1",
                f"v_lshl_add_u32 v{V_EA}, v25, 6, v24", f"v_xor_b32 v{V_EA+1}, 64, v{V_EA}",
                "v_lshrrev_b32 v24, 5, v0", f"v_lshl_add_u32 v{V_EA+2}, v24, 9, v{V_EA}", f"v_xor_b32 v{V_EA+3}, 64, v{V_EA+2}"]
        ops += [f"s_lshl_b32 s62, s{S_HEAD}, 6", f"s_lshl_b32 s4, s{S_QT}, 2", "s_add_u32 s62, s62, s4", "s_add_u32 s62, s62, s3",
                "s_mul_i32 s62, s62, 28672", f"s_add_u32 s62, s62, {Y_OFF}"]
        return ops

    def e_dma(tag="edma"):
        ops = []
        for grp in range(2):
            ops.append(["s_add_u32 s61, s58, s60", f"s_add_u32 m0, s61, {grp*4096}", f"s_add_u32 s61, s56, {grp*32*896}"])
            for j in range(4):
                ops.append((f"buffer_load_dwordx4 v{V_EV+j}, s[{S_WO}:{S_WO+3}], s61 offen offset:{j*1024} lds", tag))
        ops.append([f"s_add_u32 m0, s59, s{S_W4K}", "s_add_u32 s56, s56, 128"])
        for j in range(4):
            ops.append((f"buffer_load_dwordx4 v{V_EV+j}, s[{S_W2}:{S_W2+3}], s57 offen offset:{j*1024} lds", tag))
        ops.append("s_add_u32 s57, s57, 128")
        return ops

    EO = (0x8000, 0x14000, 0x20000)
    E2 = (0x10000, 0x1c000, 0x0)

    e.wait_tag("q")
    e.wait_tag("k0")
    e.wait(lgkm=0)
    e("s_barrier")
    HS = opt["stash"]
    for k in range(7):
        e(f"ds_write_b128 v{V_HA}, {v(HS+4*k,4)} offset:{k*1024}")
    for f in range(D):
        e(rd(f, 0, 0))
    spine = [mf(f, 1) for f in range(16)]
    fill = {}
    waits(fill, 0, 16)
    for f in range(16):
        nf = f + D
        if nf == 16:
            fill.setdefault(f, []).extend([lambda e: e.wait_tag("k1"), lambda e: e.wait(lgkm=0), "s_barrier"])
        fill.setdefault(f, []).append(rd(nf % 16, 0 if nf < 16 else 1, 0))
    weave2(e, spine, fill)
    run(e, idx_ops(S_OFF + 0, 4))
    e(f"s_cmp_gt_u32 s{S_NH}, 4")
    e(f"s_cselect_b32 s{S_DELTA}, 0x8000, s{S_NEG}")
    run(e, dmaK(0, S_OFF + 0, "k4"))
    stamp(e, opt, 1, raw=True)
    stamp(e, opt, "a_loop", raw=True)
    e(f"s_mov_b32 s{S_RET}, 0")
    e("s_branch A_FIRST")
    pro = e
    stateL, stateV = list(e.lds), [("dma", frozenset())] * 63

    def step(e, p, n=None, q0=False):
        par = p & 1
        nm = (f"Q{p}" if q0 else f"L{p}") if n is None else f"P{n}"
        sx = "_Q" if q0 else ""
        if p == 1:
            e(f"s_cmp_eq_u32 s{S_IT}, s{S_ITSW}")
            e(f"s_cbranch_scc1 A_SW1")
            e.label(f"A_SW1_RET_{nm}")
        spine = [mf(f, par) for f in range(32)]
        fill = {}
        waits(fill, 0, 32)
        vb = p * 16384 if n not in VSLOT else VSLOT[n] - 0x10000
        gb = 32 - D
        if n == 32:
            fill.setdefault(-1, []).append(f"v_add_u32 v{V_VA}, 0x10000, v{V_VA}")
            vb = 0
        for f in range(32):
            nf = f + D
            if nf == 32 and (n is None or n <= 30):
                vm = {None: 8, 28: 10, 29: 18, 30: 0}[n]
                if q0:
                    fill.setdefault(f, []).extend([lambda e: e.wait_tags((f"k{p+2}", f"v{p+1}")), "s_barrier"])
                elif n is None and p == 2:
                    fill.setdefault(f, []).append([f"s_cmp_eq_u32 s{S_IT}, s{S_ITSW}", "s_cbranch_scc1 A_ALTW",
                                                   lambda e, vm=vm: e.wait_force(vm=vm), "A_ALTW_RET:", "s_barrier"])
                else:
                    fill.setdefault(f, []).extend([lambda e, vm=vm: e.wait_force(vm=vm), "s_barrier"])
            if nf < 32:
                fill.setdefault(f, []).append(rd(nf, (p + 1) % 4, vb))
            elif n != 32:
                fill.setdefault(f, []).append(rd(nf - 32, (p + 2) % 4, 0))
        if n is None or n <= 28:
            place(fill, dmaV(0x10000 + ((p + 2) % 4) * 16384, S_OFF + (p + 2) % 4, f"v{p+2}"), 0, 4)
        if n is None or n <= 28:
            o = [f"s_add_u32 s{S_OFF+(p+1)%4}, s{S_OFF+p}, s{S_DELTA}"]
            if p == 1:
                d = S_OFF + 2
                o += [[f"s_cmp_eq_u32 s{S_IT}, s{S_ITH}", f"s_cselect_b32 s{d}, s{S_OFFH}, s{d}", f"s_cselect_b32 s{S_DELTA}, s{S_NEG}, s{S_DELTA}"],
                      [f"s_cmp_eq_u32 s{S_IT}, 6", f"s_cselect_b32 s{d}, s{S_OFFD}, s{d}", f"s_cselect_b32 s{S_DELTA}, 0x8000, s{S_DELTA}"]]
            place(fill, dmaK((p + 1) % 4, S_OFF + (p + 1) % 4, f"k{p+5}"), gb + 1, 3)
            late_o = o
        else:
            late_o = []
        if n == 29:
            place(fill, dmaV(0x10000 + 3 * 16384, S_OFF + 3), 0, 1)
            place(fill, dmaV(VSLOT[32], S_OFF + 0), 6, 1)
            place(fill, dmaV(VSLOT[33], S_OFF + 1), 12, 1)
        if n == 28:
            fill.setdefault(14, []).append((f"buffer_load_dword v{V_PD}, v{V_X+1}, s[{S_WO}:{S_WO+3}], 0 offen", "pf"))
            fill.setdefault(16, []).append((f"buffer_load_dword v{V_PD}, v{V_X+2}, s[{S_W2}:{S_W2+3}], 0 offen", "pf"))
            pour(fill, e_setup(), 9, 31)
        if n == 30:
            fill.setdefault(gb, []).extend([f"s_mov_b32 s58, {EO[0]}", f"s_mov_b32 s59, {E2[0]}"])
            pour(fill, e_dma("e0"), gb + 1, 32)
        if n is None and p == 3:
            fill.setdefault(gb + 3, []).append([f"s_cmp_eq_u32 s{S_IT}, s{S_ITSIG}", "s_cbranch_scc1 A_SIG", f"A_SIG_RET{sx}:"])
        if n is None and p == 2:
            if not q0:
                fill.setdefault(17, []).append([f"s_bitcmp1_b32 10, s{S_IT}", "s_cbranch_scc1 A_KV2L", "A_KV2L_RET:"])
            fill.setdefault(gb + 3, []).append([f"s_cmp_lt_u32 s{S_IT}, s{S_PUB}", "s_cbranch_scc1 A_KV2S", f"A_KV2S_RET{sx}:"])
        if n == 31:
            fill.setdefault(2, []).extend([lambda e: flag_line(e, 55, FL_PAIR, S_PAIR), f"v_mov_b32 v{V_X+12}, 8"])
            fill.setdefault(4, []).append((f"buffer_load_dwordx2 {v(V_X+14,2)}, v{V_X+12}, s[{S_WS}:{S_WS+3}], s55 offen sc1", "ep"))
        if n is None and p == 0 and KPF:
            fill.setdefault(9, []).append([f"s_max_i32 s53, s{S_PFO}, 0", "s_min_i32 s53, s53, 60", "s_lshl_b32 s53, s53, 15",
                                           f"s_add_u32 s53, s53, s{S_KVB}"])
            fill.setdefault(11, []).append((f"buffer_load_dword v{V_PD}, v{V_KP}, s[{S_WS}:{S_WS+3}], s53 offen", "pf"))
            fill.setdefault(12, []).append(f"s_add_i32 s{S_PFO}, s{S_PFO}, s{S_PFD}")
        if n is None and p == 3 and NEPF:
            fill.setdefault(10, []).append((f"buffer_load_dword v{V_PD}, v{V_X+1}, s[{S_WO}:{S_WO+3}], 0 offen", "pf"))
            fill.setdefault(12, []).append((f"buffer_load_dword v{V_PD}, v{V_X+2}, s[{S_W2}:{S_W2+3}], 0 offen", "pf"))
            if NEPF == 3:
                fill.setdefault(14, []).append((f"global_load_dword v{V_PD}, v{V_X+3}, s[80:81]", "pf"))
        if n is None:
            RW, X_, T_, OU = V_X + 24, V_X + 28, V_T + 6, V_T + 10
            h = p >> 1
            if p == 0:
                fill.setdefault(0, []).append(f"ds_read_b128 {v(RW,4)}, v{V_HA}")
            if p % 2 == 0:
                sl = []
                for r in range(2):
                    sl += [f"v_lshlrev_b32 v{X_+2*r}, 16, v{RW+2*h+r}", f"v_and_b32 v{X_+2*r+1}, 0xffff0000, v{RW+2*h+r}"]
                sl += [f"v_mul_f32 v{T_+r}, {f32(-1.4426950408889634 / QSCALE)}, v{X_+r}" for r in range(4)]
                sl += [f"v_exp_f32 v{T_+r}, v{T_+r}" for r in range(4)]
            else:
                sl = [f"v_fma_f32 v{T_+r}, v{T_+r}, s{S_QS}, s{S_QS}" for r in range(4)]
                sl += [f"v_rcp_f32 v{T_+r}, v{T_+r}" for r in range(4)]
                sl += [f"v_mul_f32 v{T_+r}, v{T_+r}, v{X_+r}" for r in range(4)]
                sl += [f"v_cvt_pk_bf16_f32 v{OU+2*h+r}, v{T_+2*r}, v{T_+2*r+1}" for r in range(2)]
                if p == 3:
                    sl += [f"ds_write_b128 v{V_HA}, {v(OU,4)}", f"v_add_u32 v{V_HA}, 0x400, v{V_HA}"]
            silu = sl
        else:
            silu = []
        if n == 28:
            fill.setdefault(-1, []).append(f"v_subrev_u32 v{V_HA}, 0x1c00, v{V_HA}")
            for k in range(7):
                fill.setdefault(k, []).append(f"ds_read_b128 {a(A_HF+4*k,4)}, v{V_HA} offset:{k*1024}")
        so = soft_ops(par)
        mo = (mask_ops(par ^ 1, n - 29) if n is not None and n >= 29 else []) + max_ops(par ^ 1)
        sa = [x for x in so if not x.startswith("v_add")]
        pour(fill, sa, 0, 17)
        pour(fill, late_o, 10, gb + 2)
        pour(fill, mo, 18, 32)
        if opt.get("x_nosilu"):
            silu = [x for x in silu if x.startswith(("ds_", "v_add_u32"))]
        if opt.get("x_pk"):
            adds = [x for x in so if x.startswith("v_add")]
            so = sa + [f"v_add_pk {k}" for k in range(8)]
        pour(fill, silu, 14 if p == 0 else 0, 17 if p == 3 else 32)
        if q0:
            kv3 = opt["kv2"][3]
            cut = [0, 32, 64, 96, len(kv3)]
            pour(fill, kv3[cut[p]:cut[p+1]], 0, 12 if p == 3 else 32)
        for x in so:
            if x.startswith("v_add_pk"):
                k = int(x.split()[1])
                S_ = V_S[par]
                acc = V_NM + 8 + 2 * (k >> 2)
                g0 = [g for g in fill for y in fill[g] if isinstance(y, str) and y.startswith(f"v_exp_f32 v{S_+2*k+1},")][0]
                g = min(range(g0 + 1, 32), key=lambda g: (load_of(fill, g), g))
                fill[g].append(f"v_pk_add_f32 {v(acc,2)}, {v(acc,2)}, {v(S_+2*k,2)}")
            elif x.startswith("v_add"):
                src = x.split(",")[-1].strip()
                g0 = [g for g in fill for y in fill[g] if isinstance(y, str) and y.startswith(f"v_exp_f32 {src},")][0]
                g = min(range(g0 + 1, 32), key=lambda g: (load_of(fill, g), g))
                fill[g].append(x)
        if n is None:
            def drop(pred):
                for g in fill:
                    fill[g] = [x for x in fill[g] if not pred(x)]
            txt = lambda x: x[0] if isinstance(x, tuple) else (x if isinstance(x, str) else "")
            if opt.get("x_nobar"):
                drop(lambda x: txt(x) == "s_barrier")
            if opt.get("x_nodma"):
                drop(lambda x: " lds" in txt(x))
            if opt.get("x_novalu"):
                drop(lambda x: txt(x).startswith(("v_exp", "v_add_f32", "v_cvt", "v_max", "v_mul", "v_rcp", "v_fma", "v_lshl", "v_and")))
            for pat in opt.get("x_drop", []):
                drop(lambda x: txt(x).startswith(pat))
            if opt.get("x_noexp"):
                for g in fill:
                    fill[g] = [x.replace("v_exp_f32", "v_mov_b32").replace("v_rcp_f32", "v_mov_b32") if isinstance(x, str) else x for x in fill[g]]
        if opt.get("verbose"):
            print(gap_report(f"step {nm}", fill, 32), [load_of(fill, g) for g in range(32)])
        weave2(e, spine, fill)
        if p == 1:
            e(f"s_cmp_eq_u32 s{S_IT}, s{S_ITSW}")
            e("s_cbranch_scc1 A_SW2")
        rare_check(e, par, nm)

    q0 = Seg("a_q0", stateL, pro.vm)
    q0.label("A_Q0")
    for p in range(4):
        step(q0, p, q0=True)
    q0(f"s_mov_b32 s{S_IT}, 1")
    assert q0.lds == stateL
    lp = Seg("a_loop", stateL, stateV)
    lp.label("A_LOOP")
    for p in range(4):
        step(lp, p)
    lp(f"s_add_u32 s{S_IT}, s{S_IT}, 1")
    for it in range(1, 8):
        if f"ai{it}" in opt.get("sp", []):
            lp(f"s_cmp_lg_u32 s{S_IT}, {it}")
            lp(f"s_cbranch_scc1 A_NS{it}")
            stamp(lp, opt, f"ai{it}", raw=True)
            lp.label(f"A_NS{it}")
    lp(f"s_bitcmp1_b32 20, s{S_IT}")
    lp("s_cbranch_scc1 A_KV2C")
    lp(f"s_cmp_lt_u32 s{S_IT}, 7")
    lp("s_cbranch_scc1 A_LOOP")
    stamp(lp, opt, "a_lend", raw=True)
    assert lp.lds == stateL

    peel = {}
    for n in range(28, 33):
        sg = Seg(f"a_p{n}", stateL, stateV)
        step(sg, n % 4, n)
        if n == 31:
            sg(f"s_cmp_ge_u32 s{S_QT}, 8")
            sg("s_cbranch_scc1 A_EARLY")
            sg.label("A_EARLY_RET")
        if n >= 29 and n < 32:
            sg(f"s_cmp_eq_u32 s3, {n-29}")
            sg(f"s_cbranch_scc1 A_TAILW{n-29}")
        peel[n] = sg

    def signal(e):
        flag_line(e, 55, FL_PAIR, S_PAIR)
        flag_set(e, S_WS, 55, 1, V_X + 12)
        e(f"s_mov_b32 s{S_PEND}, 0")

    def tail_body(e, par):
        e.wait(lgkm=0)
        for f in range(16, 16 + D):
            e(rd(f, 0, 0))
        so = soft_ops(par)
        sa = [x for x in so if not x.startswith("v_add")]
        run(e, sa[:20])
        spine = [mf(f, par) for f in range(16, 32)]
        fill = {}
        waits(fill, 16, 32, 16)
        for f in range(16, 32):
            if f + D < 32:
                fill.setdefault(f - 16, []).append(rd(f + D, 0, 0))
        fill.setdefault(0, []).extend(sa[20:])
        pour(fill, [x for x in so if x.startswith("v_add")], 1, 14)
        weave2(e, spine, fill)

    t3 = Seg("a_tail1", stateL, stateV)
    t3(f"v_add_u32 v{V_VA}, 0x4000, v{V_VA}")
    t3.label("A_TAIL1")
    tail_body(t3, 1)
    t3.label("A_FIN")
    t0 = Seg("a_tail0", stateL, stateV)
    t0.label("A_TAILW0")
    t0(f"v_add_u32 v{V_VA}, 0x8000, v{V_VA}")
    t0("s_branch A_TAIL0")
    t0.label("A_TAILW1")
    t0(f"v_add_u32 v{V_VA}, 0xc000, v{V_VA}")
    t0("s_branch A_TAIL1")
    t0.label("A_TAILW2")
    t0(f"v_add_u32 v{V_VA}, 0x10000, v{V_VA}")
    t0.label("A_TAIL0")
    tail_body(t0, 0)
    t0("s_cmp_lg_u32 s3, 0")
    t0("s_cbranch_scc1 A_FIN")
    t0.wait_force(vm=0)
    t0("s_barrier")
    t0(f"s_mov_b32 s58, {EO[0]}")
    t0(f"s_mov_b32 s59, {E2[0]}")
    run(t0, e_dma("e0"))
    t0(f"s_cmp_eq_u32 s{S_PEND}, 0")
    t0("s_cbranch_scc1 A_FIN")
    signal(t0)
    t0("s_branch A_FIN")

    def ret_chain(e, names):
        for k, nm in enumerate(names[:-1]):
            e(f"s_cmp_eq_u32 s{S_RET}, {k}")
            e(f"s_cbranch_scc1 A_RET_{nm}")
        e(f"s_branch A_RET_{names[-1]}")

    def across(e, regs, tmp, op):
        for step in (16, 32):
            for k, r in enumerate(regs):
                e(f"v_mov_b32 v{tmp+k}, v{r}")
            e.nop(2)
            for k, r in enumerate(regs):
                e(f"v_permlane{step}_swap_b32 v{r}, v{tmp+k}")
            for k, r in enumerate(regs):
                e(f"{op} v{r}, v{r}, v{tmp+k}")

    def row_max(e, S):
        t = V_T
        for qb in range(2):
            b = S + 8 * qb
            e(f"v_max3_f32 v{t+qb}, v{b}, v{b+1}, v{b+2}")
            e(f"v_max3_f32 v{t+2+qb}, v{b+3}, v{b+4}, v{b+5}")
            e(f"v_max3_f32 v{t+qb}, v{t+qb}, v{b+6}, v{b+7}")
            e(f"v_max_f32 v{t+qb}, v{t+qb}, v{t+2+qb}")
        across(e, (t, t + 1), t + 2, "v_max_f32")

    def rare(par):
        e = Seg(f"a_rare{par}", stateL, stateV)
        e.label(f"A_RARE{par}")
        S = V_S[par ^ 1]
        t = V_T
        row_max(e, S)
        for qb in range(2):
            e(f"v_max_f32 v{t+qb}, 0, v{t+qb}")
            e(f"v_exp_f32 v{t+4+qb}, -v{t+qb}")
        for r in range(16):
            e(f"v_sub_f32 v{S+r}, v{S+r}, v{t+(r>>3)}")
        for r in range(8):
            e(f"v_sub_f32 v{V_NM+r}, v{V_NM+r}, v{t+(r>>2)}")
        e(f"v_mul_f32 v{V_L0}, v{V_L0}, v{t+4}")
        e(f"v_mul_f32 v{V_L1}, v{V_L1}, v{t+5}")
        for r in range(128):
            e(f"v_mul_f32 v{V_O+r}, v{V_O+r}, v{t+4+((r>>3)&1)}")
        ret_chain(e, rare_sites[par])
        return e

    r0, r1 = rare(0), rare(1)

    fs = Seg("a_first", stateL, stateV)
    e = fs
    e.label("A_FIRST")
    t = V_T
    row_max(e, V_S[0])
    for r in range(16):
        e(f"v_sub_f32 v{V_S[0]+r}, v{V_S[0]+r}, v{t+(r>>3)}")
    for r in range(8):
        e(f"v_sub_f32 v{V_NM+r}, 0, v{t+(r>>2)}")
    e(f"s_cmp_eq_u32 s{S_RET}, 0")
    e("s_cbranch_scc1 A_Q0")
    e(f"s_cmp_eq_u32 s{S_IT}, 7")
    e("s_cbranch_scc1 A_RET_P29")
    e(f"s_cmp_eq_u32 s{S_IT}, 0")
    e("s_cbranch_scc1 A_RET_Q1")
    e("s_branch A_RET_L1")

    sw1 = Seg("a_sw1", stateL, stateV)
    e = sw1
    e.label("A_SW1")
    for r in range(64):
        e(f"v_accvgpr_mov_b32 a{A_Q+r}, a{A_Q2+r}")
    e(f"v_mov_b32 v{V_MS}, v{V_NM}")
    e(f"v_mov_b32 v{V_MS+1}, v{V_NM+4}")
    for r in range(0, 8, 2):
        e(f"v_mov_b64 {v(V_NM+r,2)}, 0")
    e(f"s_cmp_eq_u32 s{S_IT}, 7")
    e("s_cbranch_scc1 A_SW1_RET_P29")
    e(f"s_cmp_eq_u32 s{S_IT}, 0")
    e("s_cbranch_scc1 A_SW1_RET_Q1")
    e("s_branch A_SW1_RET_L1")

    def part_addr(e):
        e(f"s_lshl_b32 s54, s{S_PAIR}, 2")
        e("s_add_u32 s54, s54, s3")
        e("s_lshl_b32 s55, s54, 10")
        e(f"s_add_u32 s55, s55, {ML_OFF}")
        e("s_lshl_b32 s54, s54, 14")
        e(f"s_add_u32 s54, s54, {OP_OFF}")

    sw2 = Seg("a_sw2", stateL, stateV)
    e = sw2
    e.label("A_SW2")
    part_addr(e)
    t = V_X + 12
    e(f"v_lshrrev_b32 v{t+2}, 1, v{V_L16}")
    e(f"buffer_store_dwordx2 {v(V_MS,2)}, v{t+2}, s[{S_WS}:{S_WS+3}], s55 offen sc1")
    e(f"buffer_store_dwordx2 {v(V_L0,2)}, v{t+2}, s[{S_WS}:{S_WS+3}], s55 offen offset:512 sc1")
    for k in range(16):
        if k and k % 4 == 0:
            e("s_add_u32 s54, s54, 4096")
        u = t + 4 + (k % 2) * 4
        for r in range(4):
            o = V_O + 8 * k + 2 * r
            e(f"v_cvt_pk_bf16_f32 v{u+r}, v{o}, v{o+1}")
        for r in range(4):
            e(f"v_mov_b64 {v(V_O+8*k+2*r,2)}, 0")
        e(f"buffer_store_dwordx4 {v(u,4)}, v{V_L16}, s[{S_WS}:{S_WS+3}], s54 offen offset:{(k%4)*1024} sc1")
    e(f"v_mov_b64 {v(V_L0,2)}, 0")
    e(f"s_mov_b32 s{S_PEND}, 1")
    e(f"s_mov_b32 s{S_RET}, 1")
    e("s_branch A_FIRST")

    sig = Seg("a_sig", stateL, stateV)
    sig.label("A_SIG")
    signal(sig)
    sig(f"s_cmp_eq_u32 s{S_IT}, 0")
    sig("s_cbranch_scc1 A_SIG_RET_Q")
    sig("s_branch A_SIG_RET")
    S_HA, S_SLOT, V_FO, kv3 = opt["kv2"]
    sig.label("A_KV2S")
    flag_line(sig, 55, FL_KV2, S_HA)
    sig(f"s_lshl_b32 s53, s{S_IT}, 13")
    sig("s_add_u32 s55, s55, s53")
    flag_set(sig, S_WS, 55, f"s{S_SLOT}", V_X + 12)
    sig(f"s_cmp_eq_u32 s{S_IT}, 0")
    sig("s_cbranch_scc1 A_KV2S_RET_Q")
    sig("s_branch A_KV2S_RET")
    sig.label("A_KV2L")
    flag_line(sig, 85, FL_KV2, S_HEAD)
    sig(f"s_lshr_b32 s53, s{S_IT}, 1")
    sig("s_lshl_b32 s53, s53, 13")
    sig("s_add_u32 s85, s85, s53")
    sig.raw(f"buffer_load_dwordx2 v[6:7], v{V_FO}, s[{S_WS}:{S_WS+3}], s85 offen sc1", "pf")
    sig("s_branch A_KV2L_RET")
    sig.label("A_KV2C")
    sig.wait_force(vm=8)
    if not NEPF:
        sig(f"s_cmp_lg_u32 s{S_IT}, 4")
        sig("s_cbranch_scc1 A_NOEPF")
        sig(f"global_load_dword v{V_PD}, v{V_X+3}, s[80:81]", "pf")
        sig.label("A_NOEPF")
    sig("s_mov_b32 s53, 0")
    sig.label("A_KV2P")
    flag_test(sig, 6)
    sig("s_cbranch_scc1 A_LOOP")
    sig("s_sleep 2")
    sig(f"buffer_load_dwordx2 v[6:7], v{V_FO}, s[{S_WS}:{S_WS+3}], s85 offen sc1")
    sig.wait_force(vm=0)
    sig("s_add_u32 s53, s53, 1")
    sig(f"s_cmp_lt_u32 s53, {opt.get('poll_max', 200000)}")
    sig("s_cbranch_scc1 A_KV2P")
    sig("s_branch A_LOOP")
    sig.label("A_ALTW")
    sig.wait_force(vm=26)
    sig("s_branch A_ALTW_RET")

    e = Seg("a_fin", [], stateV)
    stamp(e, opt, 2)
    stamp(e, opt, "a_fin")
    t = V_T
    CT = V_S[0]
    e(f"s_cmp_ge_u32 s{S_QT}, 8")
    e("s_cbranch_scc1 A_MERGE")
    across(e, (V_L0, V_L1), t, "v_add_f32")
    e(f"v_rcp_f32 v{t}, v{V_L0}")
    e(f"v_rcp_f32 v{t+2}, v{V_L1}")
    e.nop(1)
    e(f"v_mov_b32 v{t+1}, v{t}")
    e(f"v_mov_b32 v{t+3}, v{t+2}")
    for k in range(64):
        e(f"v_pk_mul_f32 {v(V_O+2*k,2)}, {v(V_O+2*k,2)}, {v(t+2*((k>>2)&1),2)}")
        if k:
            e(f"v_cvt_pk_bf16_f32 v{CT+k-1}, v{V_O+2*k-2}, v{V_O+2*k-1}")
    e(f"v_cvt_pk_bf16_f32 v{CT+63}, v{V_O+126}, v{V_O+127}")
    e("s_branch A_EPI")
    fin = e

    ML = V_X + 16

    def part_loads(e):
        part_addr(e)
        e(f"v_lshrrev_b32 v{V_X+12}, 1, v{V_L16}")
        e(f"buffer_load_dwordx2 {v(ML,2)}, v{V_X+12}, s[{S_WS}:{S_WS+3}], s55 offen sc1")
        e(f"buffer_load_dwordx2 {v(ML+2,2)}, v{V_X+12}, s[{S_WS}:{S_WS+3}], s55 offen offset:512 sc1")
        for k in range(16):
            if k and k % 4 == 0:
                e("s_add_u32 s54, s54, 4096")
            e(f"buffer_load_dwordx4 {a(A_Q2+4*k,4)}, v{V_L16}, s[{S_WS}:{S_WS+3}], s54 offen offset:{(k%4)*1024} sc1")

    early = Seg("a_early", stateL, peel[31].vm)
    e = early
    e.label("A_EARLY")
    flag_test(e, V_X + 14)
    e("s_cbranch_scc0 A_EARLY_RET")
    part_loads(e)
    e(f"s_mov_b32 s{S_PEND}, 2")
    e("s_branch A_EARLY_RET")

    mg = Seg("a_merge", [], stateV)
    e = mg
    e.label("A_MERGE")
    e(f"s_cmp_eq_u32 s{S_PEND}, 2")
    e("s_cbranch_scc1 A_HAVE")
    flag_line(e, 55, FL_PAIR, S_PAIR)
    e(f"v_mov_b32 v{t}, 8")
    e("s_mov_b32 s53, 0")
    e.label("A_POLL")
    e(f"buffer_load_dwordx2 {v(t+2,2)}, v{t}, s[{S_WS}:{S_WS+3}], s55 offen sc1")
    e.wait_force(vm=0)
    flag_test(e, t + 2)
    e("s_cbranch_scc1 A_POLL_OK")
    e("s_sleep 4")
    e("s_add_u32 s53, s53, 1")
    e(f"s_cmp_lt_u32 s53, {opt.get('poll_max', 200000)}")
    e("s_cbranch_scc1 A_POLL")
    e.label("A_POLL_OK")
    part_loads(e)
    e.label("A_HAVE")
    W = V_X + 20
    for qb in range(2):
        nm = V_NM + 4 * qb
        c1, c2 = t + 2 * qb, t + 4 + 2 * qb
        e(f"v_min_f32 v{W+qb}, v{nm}, v{ML+qb}")
        e(f"v_sub_f32 v{c1}, v{W+qb}, v{nm}")
        e(f"v_sub_f32 v{c2}, v{W+qb}, v{ML+qb}")
        e(f"v_exp_f32 v{c1}, v{c1}")
        e(f"v_exp_f32 v{c2}, v{c2}")
        e.nop(1)
        e(f"v_mul_f32 v{W+qb}, v{c2}, v{ML+2+qb}")
        e(f"v_fma_f32 v{W+qb}, v{V_L0+qb}, v{c1}, v{W+qb}")
    across(e, (W, W + 1), W + 2, "v_add_f32")
    for qb in range(2):
        c1, c2 = t + 2 * qb, t + 4 + 2 * qb
        e(f"v_rcp_f32 v{W+qb}, v{W+qb}")
        e.nop(1)
        e(f"v_mul_f32 v{c1}, v{c1}, v{W+qb}")
        e(f"v_mul_f32 v{c2}, v{c2}, v{W+qb}")
        e(f"v_mov_b32 v{c1+1}, v{c1}")
        e(f"v_mov_b32 v{c2+1}, v{c2}")
    for k in range(64):
        e(f"v_pk_mul_f32 {v(V_O+2*k,2)}, {v(V_O+2*k,2)}, {v(t+2*((k>>2)&1),2)}")
    for k in range(64):
        u = t + 8 + (k % 2) * 2
        e(f"v_accvgpr_read_b32 v{u+1}, a{A_Q2+k}")
        if k:
            e(f"v_cvt_pk_bf16_f32 v{CT+k-1}, v{V_O+2*k-2}, v{V_O+2*k-1}")
        e(f"v_lshlrev_b32 v{u}, 16, v{u+1}")
        e(f"v_and_b32 v{u+1}, 0xffff0000, v{u+1}")
        e(f"v_pk_fma_f32 {v(V_O+2*k,2)}, {v(u,2)}, {v(t+4+2*((k>>2)&1),2)}, {v(V_O+2*k,2)}")
    e(f"v_cvt_pk_bf16_f32 v{CT+63}, v{V_O+126}, v{V_O+127}")

    e = Seg("a_epi", [], [])
    e.label("A_EPI")
    stamp(e, opt, 3)
    stamp(e, opt, "a_epi")
    YA = (V_O, V_O + 16)
    YP = V_O + 32
    VC = V_O + 48
    ED = opt.get("e_depth", 7)
    NFE, NT = 46, 7
    NF = NFE * NT

    def erd(f):
        c, r = divmod(f, NFE)
        seg, ks = divmod(r, 23)
        if ks < 16:
            off, du = EO[c % 3] + (32 * (ks >> 1) + 4 * (ks & 1)) * 128, 2048
            base = (V_EA + 2, VC + 2, VC + 4)[off >> 16] + seg
        else:
            off, du = E2[c % 3] + 16 * (ks - 16) * 128, 1024
            base = (V_EA, VC)[off >> 16] + seg
        off &= 0xffff
        return [f"ds_read_b64_tr_b16 {a(A_F+(f%8)*4+2*u,2)}, v{base} offset:{off+u*du}" for u in range(2)]

    def ecvt(c, seg):
        ops = [f"v_cvt_pk_bf16_f32 v{YP+8*seg+r}, v{YA[seg]+2*r}, v{YA[seg]+2*r+1}" for r in range(8)]
        st = [(f"buffer_store_dwordx4 {v(YP+8*seg+4*k,4)}, v{V_L16}, s[{S_WS}:{S_WS+3}], s62 offen offset:{seg*2048+k*1024}{YM}",
               "ya" if c < 4 else "yb") for k in range(2)]
        if seg == 1 and c < NT - 1:
            st.append("s_add_u32 s62, s62, 4096")
        return ops, st

    def edma_at(t):
        return [[f"s_mov_b32 s58, {EO[t%3]}", f"s_mov_b32 s59, {E2[t%3]}"]] + e_dma(f"e{t}")

    for k in range(2):
        e(f"v_add_u32 v{VC+k}, 0x10000, v{V_EA+k}")
        e(f"v_add_u32 v{VC+2+k}, 0x10000, v{V_EA+2+k}")
        e(f"v_add_u32 v{VC+4+k}, 0x20000, v{V_EA+2+k}")
    for j in range(8):
        for r in range(4):
            e(f"v_permlane16_swap_b32 v{CT+8*j+r}, v{CT+8*j+4+r}")
    e.wait_force(vm=0)
    e("s_barrier")
    for f in range(ED):
        run(e, erd(f))
    spine, fill = [], {}
    for f in range(NF):
        c, r = divmod(f, NFE)
        seg, ks = divmod(r, 23)
        B = v(CT + 4 * ks, 4) if ks < 16 else a(A_HF + 4 * (ks - 16), 4)
        acc = v(YA[seg], 16)
        spine.append(f"{MFMA} {acc}, {a(A_F+(f%8)*4,4)}, {B}, {'0' if ks == 0 else acc}")
        nf = f + ED
        if nf < NF:
            if nf % NFE == 0:
                t = nf // NFE
                ops = [lambda e, t=t: e.wait_tag(f"e{t}")]
                if t == 6:
                    ops.append(lambda e: e.wait_tag("ya"))
                if t <= 4:
                    ops.append(lambda e: e.wait(lgkm=0))
                fill.setdefault(f, []).extend(ops + ["s_barrier"])
            fill.setdefault(f, []).extend(erd(nf))
        if f % 2 == 0:
            rr = a(A_F + (min(f + 1, NF - 1) % 8) * 4, 4)
            fill.setdefault(f - 1, []).append(lambda e, rr=rr: wait_reg(e, rr))
    if hooks:
        hooks(fill, NFE, ED)
    spread(fill, edma_at(1), 0, 20)
    spread(fill, edma_at(2), 20, 52)
    for t in range(3, NT):
        g0 = max((t - 2) * NFE - ED + 1, 52)
        spread(fill, edma_at(t), g0, (t - 1) * NFE - ED)
    for c in range(NT):
        o, st = ecvt(c, 0)
        pour(fill, o + st, c * NFE + 27, c * NFE + 44)
        if c < NT - 1:
            o, st = ecvt(c, 1)
            if c == NT - 2 and hooks:
                pour(fill, o, (c + 1) * NFE + 4, (c + 1) * NFE + 21)
                fill.setdefault((c + 1) * NFE + 25, []).append(st[0])
                fill.setdefault((c + 1) * NFE + 26, []).extend(st[1:])
            else:
                pour(fill, o + st, (c + 1) * NFE + 4, (c + 1) * NFE + 21)
    if opt.get("verbose"):
        print(gap_report("epilogue", fill, NF), [load_of(fill, g) for g in range(NF)])
    weave(e, spine, fill)
    e.nop(12)
    o, st = ecvt(NT - 1, 1)
    run(e, o + st)
    if finish:
        finish(e)
    e.label(end_label)
    e("s_endpgm")
    epi = e

    pl = [peel[n] for n in range(28, 33)]
    segs = [pro, q0, lp] + pl + [t3, fin, mg, epi, t0, stubs, r0, r1, fs, sw1, sw2, sig, early]
    traces = [
        [pro, fs, q0, lp, lp] + pl + [t3, fin, epi],
        [lp, peel[28], peel[29], t0, fin, mg, epi],
        [lp, r1, lp], [peel[28], r0, peel[29]], [peel[28], sw1, peel[29], sw2, fs, peel[30]], [sig], [stubs],
        [peel[30], peel[31], t0], [peel[29], peel[30], t3], [peel[31], early, peel[32], t3, fin],
    ]
    return segs, traces
```

```python
import re

REG_RE = re.compile(r"^(-?)(?:abs\()?([vas])(?:(\d+)|\[(\d+):(\d+)\])\)?$")
TRANS = ("v_exp_f32", "v_log_f32", "v_rcp_f32", "v_rsq_f32", "v_sqrt_f32", "v_sin_f32", "v_cos_f32")


def regs_of(tok):
    tok = tok.strip()
    if tok in ("vcc", "exec", "m0", "scc"):
        return [(tok, 0)]
    if tok in ("vcc_lo", "vcc_hi"):
        return [("vcc", 0)]
    if tok in ("exec_lo", "exec_hi"):
        return [("exec", 0)]
    m = REG_RE.match(tok)
    if not m:
        return []
    f = m.group(2)
    if m.group(3) is not None:
        return [(f, int(m.group(3)))]
    return [(f, i) for i in range(int(m.group(4)), int(m.group(5)) + 1)]


class Ins:
    __slots__ = ("text", "op", "rd", "wr", "kind", "n", "srcc", "passes", "tag")

    def __init__(self, text, tag=None):
        self.text = text
        self.tag = tag
        t = text.split(";")[0].strip()
        self.rd, self.wr, self.srcc, self.passes, self.n = set(), set(), set(), 0, 0
        if t.endswith(":"):
            self.op, self.kind = t, "label"
            return
        if not t or t.startswith("."):
            self.op, self.kind = t, "dir"
            return
        parts = t.split(None, 1)
        op = parts[0]
        self.op = op
        rest = parts[1] if len(parts) > 1 else ""
        ops = [o.strip() for o in rest.split(",")] if rest else []
        mods = []
        if ops:
            last = ops[-1].split()
            ops[-1] = last[0] if last else ""
            mods = last[1:]
        R = [regs_of(o) for o in ops]

        def rd(i):
            for r in R[i]:
                self.rd.add(r)

        def wr(i):
            for r in R[i]:
                self.wr.add(r)

        if op == "s_nop":
            self.kind, self.n = "nop", int(ops[0], 0) + 1
        elif op == "s_waitcnt":
            self.kind = "wait"
        elif op == "s_barrier":
            self.kind = "barrier"
        elif op in ("s_endpgm", "s_setprio", "s_sleep"):
            self.kind = "salu"
        elif op.startswith("s_cbranch") or op == "s_branch":
            self.kind = "branch"
            if "scc" in op:
                self.rd.add(("scc", 0))
            if "vcc" in op:
                self.rd.add(("vcc", 0))
            if "exec" in op:
                self.rd.add(("exec", 0))
        elif op.startswith("s_load") or op in ("s_memtime", "s_memrealtime"):
            self.kind = "smem"
            wr(0)
            for i in range(1, len(ops)):
                rd(i)
        elif op.startswith("s_cmp") or op.startswith("s_bitcmp"):
            self.kind = "salu"
            for i in range(len(ops)):
                rd(i)
            self.wr.add(("scc", 0))
        elif op.startswith("s_"):
            self.kind = "salu"
            wr(0)
            for i in range(1, len(ops)):
                rd(i)
            if op.startswith("s_cselect") or op.startswith("s_addc") or op.startswith("s_subb"):
                self.rd.add(("scc", 0))
            if "saveexec" in op:
                self.rd.add(("exec", 0))
                self.wr.add(("exec", 0))
            if not (op.startswith("s_mov") or op.startswith("s_mul") or op.startswith("s_cselect") or op.startswith("s_getreg") or op.startswith("s_getpc")):
                self.wr.add(("scc", 0))
            if op in ("s_addk_i32", "s_mulk_i32"):
                rd(0)
        elif op.startswith("v_mfma"):
            self.kind = "mfma"
            wr(0)
            rd(1)
            rd(2)
            rd(3)
            self.srcc = set(R[3])
            self.passes = 8 if "32x32" in op else 4
        elif op.startswith("ds_read") or op.startswith("ds_bpermute") or op.startswith("ds_swizzle"):
            self.kind = "ds_rd"
            wr(0)
            for i in range(1, len(ops)):
                rd(i)
        elif op.startswith("ds_write"):
            self.kind = "ds_wr"
            for i in range(len(ops)):
                rd(i)
        elif op.startswith("buffer_load") and "lds" in mods:
            self.kind = "vm_dma"
            for i in range(len(ops)):
                rd(i)
            self.rd.add(("m0", 0))
        elif op.startswith("buffer_load") or op.startswith("global_load"):
            self.kind = "vm_ld"
            if tag != "pf":
                wr(0)
            for i in range(1, len(ops)):
                rd(i)
        elif op.startswith("buffer_store") or op.startswith("global_store"):
            self.kind = "vm_st"
            for i in range(len(ops)):
                rd(i)
            if op.endswith("x4") or op.endswith("x3"):
                di = 0 if op.startswith("buffer") else 1
                self.srcc = set(R[di])
        elif op.startswith("buffer_atomic") or op.startswith("global_atomic"):
            self.kind = "vm_st"
            for i in range(len(ops)):
                rd(i)
            if "sc0" in mods and tag != "pf":
                self.kind = "vm_ld"
                wr(0)
        elif op in ("buffer_wbl2", "buffer_inv"):
            self.kind = "vm_st"
        elif op.startswith("v_"):
            base = op.replace("_e32", "").replace("_e64", "")
            self.kind = "trans" if base in TRANS else "valu"
            wr(0)
            st = 1
            if base in ("v_add_co_u32", "v_sub_co_u32", "v_addc_co_u32"):
                wr(1)
                st = 2
            for i in range(st, len(ops)):
                rd(i)
            if base.startswith("v_fmac") or base.startswith("v_dot2c") or base.startswith("v_pk_fmac"):
                rd(0)
            if base.startswith("v_permlane"):
                rd(0)
                wr(1)
            self.rd.add(("exec", 0))
        else:
            raise ValueError("unknown instruction: " + text)

    def states(self):
        if self.kind == "nop":
            return self.n
        if self.kind in ("label", "dir"):
            return 0
        return 1


def parse_wait(text):
    vm = re.search(r"vmcnt\((\d+)\)", text)
    lg = re.search(r"lgkmcnt\((\d+)\)", text)
    return (int(vm.group(1)) if vm else None, int(lg.group(1)) if lg else None)


class Seg:
    def __init__(self, name, lds=None, vm=None):
        self.name = name
        self.ins = []
        self.lds = list(lds) if lds else []
        self.vm = list(vm) if vm else []

    def raw(self, text, tag=None):
        i = Ins(text, tag)
        self.ins.append(i)
        return i

    def _need(self, i):
        touched = i.rd | i.wr
        nl = None
        for k, d in enumerate(self.lds):
            if d & touched:
                nl = len(self.lds) - 1 - k
        nv = None
        for k, (tg, d) in enumerate(self.vm):
            if d & touched:
                nv = len(self.vm) - 1 - k
        return nv, nl

    def wait(self, vm=None, lgkm=None):
        parts = []
        if vm is not None and vm < len(self.vm):
            assert vm <= 63
            parts.append(f"vmcnt({vm})")
            self.vm = self.vm[len(self.vm) - vm:] if vm else []
        if lgkm is not None and lgkm < len(self.lds):
            lgkm = min(lgkm, 15)
            parts.append(f"lgkmcnt({lgkm})")
            self.lds = self.lds[len(self.lds) - lgkm:] if lgkm else []
        if parts:
            self.raw("s_waitcnt " + " ".join(parts))

    def wait_force(self, vm=None, lgkm=None):
        parts = []
        if vm is not None:
            parts.append(f"vmcnt({vm})")
            if vm < len(self.vm):
                self.vm = self.vm[len(self.vm) - vm:] if vm else []
        if lgkm is not None:
            parts.append(f"lgkmcnt({lgkm})")
            if lgkm < len(self.lds):
                self.lds = self.lds[len(self.lds) - lgkm:] if lgkm else []
        self.raw("s_waitcnt " + " ".join(parts))

    def wait_tag(self, tag):
        last = None
        for k, (tg, d) in enumerate(self.vm):
            if tg == tag:
                last = k
        if last is not None:
            self.wait(vm=min(63, len(self.vm) - 1 - last))

    def wait_tags(self, tags):
        last = None
        for k, (tg, d) in enumerate(self.vm):
            if tg in tags:
                last = k
        if last is not None:
            self.wait(vm=min(63, len(self.vm) - 1 - last))

    def __call__(self, text, tag=None):
        i = Ins(text, tag)
        nv, nl = self._need(i)
        if nv is not None or nl is not None:
            self.wait(vm=None if nv is None else min(nv, 63), lgkm=nl)
        self.ins.append(i)
        if i.kind == "ds_rd":
            self.lds.append(frozenset(i.wr))
        elif i.kind == "ds_wr":
            self.lds.append(frozenset())
        elif i.kind == "smem":
            self.lds.append(frozenset(i.wr))
            self.lds.append(frozenset(i.wr))
        elif i.kind == "vm_ld":
            self.vm.append((tag, frozenset(i.wr)))
        elif i.kind in ("vm_st", "vm_dma"):
            self.vm.append((tag, frozenset()))
        elif i.kind == "wait":
            vm, lg = parse_wait(text)
            if vm is not None and vm < len(self.vm):
                self.vm = self.vm[len(self.vm) - vm:] if vm else []
            if lg is not None and lg < len(self.lds):
                self.lds = self.lds[len(self.lds) - lg:] if lg else []
        return i

    def label(self, name):
        self.raw(name + ":")

    def nop(self, n):
        while n > 0:
            k = min(n, 16)
            self.raw(f"s_nop {k-1}")
            n -= k

    def text(self):
        out = []
        for i in self.ins:
            t = re.sub(r"\[(\d)_(\d)_(\d)_(\d)\]", r"[\1,\2,\3,\4]", i.text)
            out.append(t if i.kind in ("label",) else "  " + t)
        return "\n".join(out) + "\n"


def is_valu(i):
    return i.kind in ("valu", "trans")


def required(p, c):
    need = 0
    vreg = lambda s: {r for r in s if r[0] in ("v", "a")}
    sreg = lambda s: {r for r in s if r[0] in ("s", "vcc")}
    if is_valu(p):
        w = vreg(p.wr)
        if c.kind == "mfma" and w & c.rd:
            need = max(need, 2)
        if is_valu(c) and w & c.rd:
            if c.op.startswith("v_readfirstlane") or c.op.startswith("v_readlane"):
                need = max(need, 1)
            if c.op.startswith("v_permlane") or "dpp" in c.text:
                need = max(need, 2)
            if p.kind == "trans" and c.kind != "trans":
                need = max(need, 1)
            if "sdwa" in p.text and "dst_sel:DWORD" not in p.text:
                need = max(need, 1)
        ws = sreg(p.wr)
        if ws:
            if is_valu(c) and ws & c.rd:
                need = max(need, 4 if c.op.startswith(("v_readlane", "v_writelane")) else 2)
            if c.kind.startswith("vm_") and ws & c.rd:
                need = max(need, 5)
    if p.kind == "mfma":
        idx = {4: 0, 8: 1}[p.passes]
        d = p.wr
        if c.kind == "mfma":
            if d & c.srcc:
                if not (c.srcc == d and c.passes == p.passes):
                    need = max(need, (6, 10)[idx])
            ab = c.rd - c.srcc if not (c.rd - c.srcc) <= c.srcc else set()
            toks = c.text.split(None, 1)[1].split(",")
            abr = set(regs_of(toks[1])) | set(regs_of(toks[2]))
            if d & abr:
                need = max(need, (8, 12)[idx])
            if d & c.wr and not (c.srcc == d):
                need = max(need, (6, 10)[idx])
        elif is_valu(c):
            if d & (c.rd | c.wr):
                need = max(need, (8, 12)[idx])
            if p.srcc & c.wr:
                need = max(need, (3, 7)[idx])
        elif c.kind in ("ds_rd", "ds_wr", "vm_ld", "vm_st", "vm_dma"):
            if d & (c.rd | c.wr):
                need = max(need, (8, 12)[idx])
            if p.srcc & c.wr:
                need = max(need, (3, 7)[idx])
    if p.kind == "salu" and ("m0", 0) in p.wr and c.kind == "vm_dma":
        need = max(need, 1)
    if p.kind == "vm_st" and p.srcc and p.srcc & c.wr:
        need = max(need, 2 if is_valu(c) else 1)
    return need


def check_trace(name, ins, fix=False):
    probs = []
    real = [i for i in ins if i.kind not in ("label", "dir")]
    for k, c in enumerate(real):
        dist = 0
        j = k - 1
        while j >= 0 and dist < 20:
            p = real[j]
            r = required(p, c)
            if r > dist:
                probs.append(f"[{name}] hazard need {r} have {dist}: '{p.text}' -> '{c.text}'")
            dist += p.states()
            j -= 1
    lds, vm = [], []
    for c in real:
        touched = c.rd | c.wr
        for d, t in lds:
            if d & touched:
                probs.append(f"[{name}] missing lgkm wait: '{t}' -> '{c.text}'")
        for d, t in vm:
            if d & touched:
                probs.append(f"[{name}] missing vm wait: '{t}' -> '{c.text}'")
        if c.kind == "ds_rd":
            lds.append((frozenset(c.wr), c.text))
        elif c.kind == "ds_wr":
            lds.append((frozenset(), c.text))
        elif c.kind == "smem":
            lds.insert(len(lds), (frozenset(c.wr), c.text + " (smem)"))
        elif c.kind == "vm_ld":
            vm.append((frozenset(c.wr), c.text))
        elif c.kind in ("vm_st", "vm_dma"):
            vm.append((frozenset(), c.text))
        elif c.kind == "wait":
            v, l = parse_wait(c.text)
            if v is not None and v < len(vm):
                vm = vm[len(vm) - v:] if v else []
            if l is not None:
                if l == 0:
                    lds = []
                elif any("(smem)" in t for d, t in lds):
                    pass
                elif l < len(lds):
                    lds = lds[len(lds) - l:]
    return probs


def fix_hazards(seg, prev=()):
    out = [i for i in prev if i.kind not in ("label", "dir")]
    base = len(out)
    res = []
    for c in seg.ins:
        if c.kind in ("label", "dir"):
            res.append(c)
            continue
        dist, j, pad = 0, len(out) - 1, 0
        while j >= 0 and dist < 20:
            p = out[j]
            r = required(p, c)
            if r > dist:
                pad = max(pad, r - dist)
            dist += p.states()
            j -= 1
        while pad > 0:
            k = min(pad, 16)
            n = Ins(f"s_nop {k-1}")
            out.append(n)
            res.append(n)
            pad -= k
        out.append(c)
        res.append(c)
    seg.ins = res


def weave(seg, spine, fillers):
    def put(x):
        if isinstance(x, list):
            for y in x:
                put(y)
        elif callable(x):
            x(seg)
        elif isinstance(x, tuple):
            seg(x[0], x[1])
        else:
            seg(x)
    for x in fillers.get(-1, []):
        put(x)
    for g, m in enumerate(spine):
        put(m)
        for x in fillers.get(g, []):
            put(x)


def spread(fill, items, g0, g1, per=None):
    n = len(items)
    if n == 0:
        return
    span = g1 - g0
    for k, it in enumerate(items):
        g = g0 + (k * span) // n
        fill.setdefault(g, []).append(it)


def cost_of(x):
    if isinstance(x, list):
        return sum(cost_of(y) for y in x)
    if callable(x):
        return getattr(x, "cost", 1)
    t = x[0] if isinstance(x, tuple) else x
    if t.endswith(":"):
        return 0
    op = t.split()[0]
    if op in TRANS:
        return 2
    return 1


def load_of(fill, g):
    return sum(cost_of(x) for x in fill.get(g, []))


def pour(fill, items, g0, g1):
    if not items:
        return
    gaps = list(range(g0, g1))
    base = [load_of(fill, g) for g in gaps]
    total = sum(cost_of(x) for x in items)
    lo, hi = 0.0, max(base) + total
    for _ in range(50):
        mid = (lo + hi) / 2
        if sum(max(0.0, mid - b) for b in base) >= total:
            hi = mid
        else:
            lo = mid
    free = [max(0.0, hi - b) for b in base]
    cum, acc = [], 0.0
    for f in free:
        acc += f
        cum.append(acc)
    pos, gi = 0.0, 0
    for x in items:
        c = cost_of(x)
        mid = pos + c / 2.0
        while gi < len(gaps) - 1 and cum[gi] < mid:
            gi += 1
        fill.setdefault(gaps[gi], []).append(x)
        pos += c


def run(e, ops):
    for x in ops:
        if isinstance(x, list):
            run(e, x)
        elif callable(x):
            x(e)
        elif isinstance(x, tuple):
            e(x[0], x[1])
        else:
            e(x)


def wait_reg(e, regs):
    rs = set(regs_of(regs))
    n = None
    for k, d in enumerate(e.lds):
        if d & rs:
            n = len(e.lds) - 1 - k
    if n is not None:
        e.wait(lgkm=n)


def gap_report(name, fill, n):
    loads = [load_of(fill, g) for g in range(n)]
    return f"{name}: gaps {n} total {sum(loads)} max {max(loads)} avg {sum(loads)/n:.2f} over5 {sum(max(0,l-5) for l in loads)} over6 {sum(max(0,l-6) for l in loads)}"


def _rw(x):
    if callable(x) or isinstance(x, list):
        return set(), set(), True
    t, tag = (x if isinstance(x, tuple) else (x, None))
    i = Ins(t, tag)
    rigid = i.kind not in ("valu", "trans", "ds_rd")
    return i.rd - {("exec", 0)}, i.wr, rigid


def weave2(seg, pairs, fillers):
    import itertools
    run(seg, fillers.get(-1, []))
    for g, (ma, mb) in enumerate(pairs):
        items = fillers.get(g, [])
        n = len(items)
        info = [_rw(x) for x in items]
        cost = [cost_of(x) for x in items]
        best = None
        for mask in range(1 << n) if n <= 10 else [0]:
            ok = True
            for i in range(n):
                if not ok:
                    break
                if mask >> i & 1:
                    for j in range(i + 1, n):
                        if not (mask >> j & 1):
                            ri, wi, gi = info[i]
                            rj, wj, gj = info[j]
                            both_ds = all(isinstance(items[k], str) and items[k].startswith("ds_") for k in (i, j))
                            if gi or gj or both_ds or (wi & (rj | wj)) or (ri & wj):
                                ok = False
                                break
            if ok:
                l = sum(c for k, c in enumerate(cost) if not mask >> k & 1)
                r = sum(cost) - l
                key = (max(l, 2) + max(r, 2), abs(l - r), mask)
                if best is None or key < best[0]:
                    best = (key, mask)
        mask = best[1]
        seg(ma)
        run(seg, [x for k, x in enumerate(items) if not mask >> k & 1])
        seg(mb)
        run(seg, [x for k, x in enumerate(items) if mask >> k & 1])
```

```python
from emit import *
from common import *
import attn
from attn import S_HEAD, S_QT, S_W4K, S_PAIR, S_WS, S_WO, S_W2, A_Q, A_Q2, A_HF, V_L16, V_PD
import math

NAME = "parallel_sum__compressed_kv_cla__dense_activation_silu__prompt_kernel"
LDS_BYTES = 160 * 1024
S_CKV, S_W, S_X, S_WQ, S_W1, S_QST, S_OUT = 8, 12, 20, 24, 28, 68, 24
SA, SB, S_LP, S_W8K, S_KVSTR, S_KIND, S_BO, S_KVBASE, S_KVC, S_QB, S_QC, S_XNB, S_XNF = 53, 54, 55, 56, 57, 58, 59, 60, 61, 62, 63, 66, 67
S_HA, S_KVSLOT = 76, 77
V_PA, V_PB, V_FO, V_FL = 3, 4, 5, 6
V_AA, V_AB, V_DA, V_DB = 8, 12, 16, 24
V_FA, V_FB, V_XN = 32, 64, 96
V_AB16, V_AA16, V_WR, V_ST = 8, 212, 224, 7
V_DQ, V_D1, V_AT, V_T = 208, 212, 216, 224
SLOT_ORDER = [8, 9, 0, 1, 4, 5, 2, 3, 6, 7]
V_AT3 = 212
S_KVE, S_EARLY, S_GOTQ, S_GM = 24, 72, 75, 72
H_ACC = (64, 80, 224, 240)
V_GP = V_XN + 46
VPQ, VPK = V_XN + 4, V_XN + 8

def gen_mega(opt):
    ST = opt.get("kv_store_mod", " sc1")
    attn.KVM[0] = opt.get("kv_load_mod", "")
    opt = dict(opt)
    opt.setdefault("y_store_mod", " sc1")
    opt["spk"] = ""
    PFD = 2
    XNM = opt.get('xn_mod', ' sc1')
    A16 = opt.get("a16", 1)
    NPF = 2
    PMAX = opt.get("poll_max", 200000)
    e = Seg("m_pro")
    e.label(NAME)
    e("s_cmp_ge_u32 s2, 256")
    e("s_cbranch_scc1 M_END")
    stamp(e, opt, "entry")
    load_kernargs(e)
    e("s_getpc_b64 s[50:51]")
    e.label("M_PC0")
    if not opt.get("no_cpf0"):
        e("s_lshr_b32 s5, s2, 3")
        e("s_lshl_b32 s5, s5, 11")
        e("v_lshrrev_b32 v1, 4, v0")
        e("v_lshl_add_u32 v1, v1, 7, s5")
        e("v_min_u32 v1, M_B-M_PC0, v1")
        e(f"global_load_dword v{V_PD}, v1, s[50:51]", "pf")
    e("v_lshrrev_b32 v1, 6, v0")
    e("v_and_b32 v0, 63, v0")
    e("v_readfirstlane_b32 s3, v1")
    e("s_and_b32 s4, s2, 7")
    e("s_lshl_b32 s4, s4, 1")
    e("s_lshr_b32 s5, s2, 3")
    e("s_and_b32 s34, s5, 7")
    e("s_lshr_b32 s35, s5, 3")
    e("s_and_b32 s42, s35, 1")
    e("s_add_u32 s42, s42, s4")
    e(f"s_lshr_b32 s{S_KIND}, s35, 1")
    e(f"s_lshr_b32 s{S_QT}, s5, 1")
    e(f"s_and_b32 s{S_HEAD}, s5, 1")
    e(f"s_add_u32 s{S_HEAD}, s{S_HEAD}, s4")
    e("s_and_b32 s36, s3, 1")
    e("s_lshr_b32 s37, s3, 1")
    L31, HI, G, R4, C = 224, 225, 226, 227, 228
    e(f"v_and_b32 v{L31}, 31, v0")
    e(f"v_lshrrev_b32 v{HI}, 5, v0")
    e(f"v_lshrrev_b32 v{G}, 4, v0")
    e(f"v_bfe_u32 v{R4}, v0, 2, 2")
    e(f"v_and_b32 v{C}, 3, v0")
    e("s_and_b32 s7, s35, 1")
    e("s_lshl_b32 s7, s7, 1")
    e("s_add_u32 s7, s7, s37")
    e("s_sub_u32 s39, 3, s7")
    e("s_add_u32 s7, s7, 4")
    e("s_cmp_ge_u32 s35, 2")
    e("s_cselect_b32 s7, s7, s39")
    e("s_lshl_b32 s7, s7, 3")
    e("s_add_u32 s7, s7, s34")
    e("s_lshl_b32 s7, s7, 1")
    e("s_add_u32 s7, s7, s36")
    e("s_lshl_b32 s7, s7, 4")
    e("v_lshrrev_b32 v6, 2, v0")
    e("v_add_u32 v6, s7, v6")
    e(f"v_lshlrev_b32 v{V_PA}, 11, v6")
    e("v_bfe_u32 v7, v0, 1, 1")
    e(f"v_lshl_add_u32 v7, v7, 7, v{V_PA}")
    e("s_lshl_b32 s7, s34, 3")
    e("s_lshl_b32 s39, s3, 1")
    e("s_add_u32 s7, s7, s39")
    e(f"v_add_u32 v6, s7, v{HI}")
    e("v_lshlrev_b32 v6, 13, v6")
    e("v_bfe_u32 v5, v0, 3, 2")
    e("v_lshl_add_u32 v6, v5, 7, v6")
    e("s_lshl_b32 s7, s42, 9")
    e(f"v_add_u32 v{V_PB}, s7, v6")
    e("v_bfe_u32 v6, v0, 2, 1")
    e(f"v_lshl_add_u32 v5, v6, 19, v{V_PB}")
    e("v_lshrrev_b32 v1, 3, v0")
    e.wait_force(lgkm=0)
    e(f"s_mov_b32 s{S_HA}, s42")
    e(f"s_lshl_b32 s{S_KVSLOT}, s{S_KIND}, 3")
    e(f"s_add_u32 s{S_KVSLOT}, s{S_KVSLOT}, s34")
    e(f"s_lshl_b32 s{S_KVSLOT}, s{S_KVSLOT}, 3")
    srd(e, S_CKV, P_CKV, CKV_BYTES)
    e(f"s_cmp_eq_u32 s{S_KIND}, 0")
    e(f"s_cselect_b32 s{S_W}, s{P_WUK}, s{P_WUV}")
    e(f"s_cselect_b32 s{S_W+1}, s{P_WUK+1}, s{P_WUV+1}")
    e(f"s_mov_b32 s{S_W+2}, {WU_BYTES:#x}")
    e(f"s_mov_b32 s{S_W+3}, 0x20000")
    stamp(e, opt, 0)
    stamp(e, opt, "karg")
    e(f"buffer_load_dword v{V_PD}, v7, s[{S_CKV}:{S_CKV+3}], 0 offen", "pf")
    e(f"buffer_load_dword v{V_PD}, v5, s[{S_W}:{S_W+3}], 0 offen", "pf")
    e("v_add_u32 v144, 256, v7")
    e("v_add_u32 v145, 0x100000, v5")
    e(f"v_add_u32 v{V_PA}, {PFD*128}, v{V_PA}")
    e(f"v_add_u32 v{V_PB}, {PFD*0x80000}, v{V_PB}")
    e("s_lshl_b32 s7, s36, 1")
    e("s_sub_u32 s39, 3, s7")
    e("s_add_u32 s7, s7, 4")
    e("s_cmp_eq_u32 s37, 1")
    e("s_cselect_b32 s7, s7, s39")
    e("s_mov_b32 s39, 0xfff80000")
    e("s_cselect_b32 s39, 0x80000, s39")
    e("s_lshl_b32 s7, s7, 3")
    e("s_add_u32 s7, s7, s34")
    e("s_lshl_b32 s7, s7, 5")
    e("v_add_u32 v6, s7, v1")
    e("v_lshlrev_b32 v6, 11, v6")
    e("v_and_b32 v7, 7, v0")
    e(f"v_xor_b32 v7, v7, v{G}")
    e("v_lshlrev_b32 v7, 4, v7")
    for j in range(8):
        if j == 4:
            e("v_add_u32 v6, s39, v6")
        e(f"v_xor_b32 v{V_DA+j}, {((j ^ (j >> 1)) & 1) << 6}, v7")
        e(f"v_add_u32 v{V_DA+j}, v{V_DA+j}, v6")
        if j & 3:
            e(f"v_add_u32 v{V_DA+j}, {(j&3)*(16384-1024)}, v{V_DA+j}")
    e("s_lshl_b32 s7, s3, 4")
    e(f"v_add_u32 v6, s7, v{HI}")
    e("v_lshlrev_b32 v6, 13, v6")
    e(f"s_lshl_b32 s7, s{S_HA}, 9")
    e("v_add_u32 v6, s7, v6")
    e(f"v_lshrrev_b32 v7, 2, v{L31}")
    e(f"v_xor_b32 v7, v7, v{HI}")
    e("v_lshlrev_b32 v7, 6, v7")
    e(f"v_lshl_add_u32 v7, v{C}, 4, v7")
    for j in range(8):
        e(f"v_xor_b32 v{V_DB+j}, {((j&1)<<7) ^ (48 * ((j >> 2) & 1) if A16 else 0)}, v7")
        e(f"v_add_u32 v{V_DB+j}, v{V_DB+j}, v6")
        if j:
            e(f"v_add_u32 v{V_DB+j}, {j*16384-(j&3)*1024}, v{V_DB+j}")
    e(f"s_lshl_b32 s{S_W8K}, s3, 13")
    e(f"s_mov_b32 s{SA}, 0")
    e(f"s_mov_b32 s{SB}, 0")

    def dma_items(b):
        it = []
        for j in range(8):
            pre = [f"s_add_u32 m0, s{S_W8K}, {b*32768 + (j>>2)*4096}"] if (j & 3) == 0 else []
            post = [f"s_add_u32 s{SA}, s{SA}, 128"] if j == 7 else []
            it.append((pre, f"buffer_load_dwordx4 v{V_DA+j}, s[{S_CKV}:{S_CKV+3}], s{SA} offen offset:{(j&3)*1024} lds", post))
        for j in range(8):
            pre = [f"s_add_u32 m0, s{S_W8K}, {65536 + b*32768 + (j>>2)*4096}"] if (j & 3) == 0 else []
            post = [f"s_add_u32 s{SB}, s{SB}, 0x80000"] if j == 7 else []
            it.append((pre, f"buffer_load_dwordx4 v{V_DB+j}, s[{S_W}:{S_W+3}], s{SB} offen offset:{(j&3)*1024} lds", post))
        return it

    NK3 = opt.get('nk3', 12) if A16 else 8
    q = Seg("tmp")
    srd(q, S_WS, P_WS, WS_BYTES)
    srd(q, S_X, P_X, X_BYTES)
    srd(q, S_WQ, P_WQ, WQ_BYTES)
    srd(q, S_W1, P_W1, W1_BYTES)
    if not A16:
        q("s_lshl_b32 s7, s36, 7")
        q(f"v_add_u32 v6, s7, v{L31}")
        q("v_lshlrev_b32 v6, 7, v6")
        q(f"v_bfe_u32 v7, v{L31}, 1, 3")
        q(f"v_xor_b32 v7, v7, v{HI}")
        q("v_lshl_add_u32 v6, v7, 4, v6")
        for k in range(4):
            q(f"v_xor_b32 v{V_AA+k}, {k<<5}, v6")
        q(f"v_lshrrev_b32 v6, 1, v{G}")
        q(f"v_lshl_add_u32 v6, v6, 3, v{R4}")
        q("v_lshlrev_b32 v6, 9, v6")
        q("s_lshl_b32 s7, s37, 8")
        q("s_add_u32 s7, s7, 0x10000")
        q("v_add_u32 v6, s7, v6")
        q(f"v_and_b32 v7, 1, v{G}")
        q("v_lshl_add_u32 v6, v7, 5, v6")
        q(f"v_lshl_add_u32 v6, v{C}, 3, v6")
        for nb in range(4):
            q(f"v_xor_b32 v7, {nb}, v{R4}")
            q(f"v_lshl_add_u32 v{V_AB+nb}, v7, 6, v6")
    else:
        q("v_and_b32 v6, 15, v0")
        q("s_lshl_b32 s7, s36, 7")
        q("v_add_u32 v6, s7, v6")
        q("v_lshlrev_b32 v6, 7, v6")
        q("v_bfe_u32 v7, v0, 1, 3")
        q(f"v_xor_b32 v7, v7, v{G}")
        q(f"v_lshl_add_u32 v{V_AA16}, v7, 4, v6")
        q(f"v_xor_b32 v{V_AA16+1}, 64, v{V_AA16}")
        q(f"v_lshl_add_u32 v6, v{G}, 3, v{R4}")
        q("v_lshlrev_b32 v6, 9, v6")
        q("s_lshl_b32 s7, s37, 8")
        q("s_add_u32 s7, s7, 0x10000")
        q("v_add_u32 v6, s7, v6")
        q(f"s_sub_u32 s7, 1, s{S_KIND}")
        q(f"v_lshrrev_b32 v7, s7, v{C}")
        q("v_and_b32 v7, 1, v7")
        q("v_lshl_add_u32 v6, v7, 3, v6")
        q(f"v_and_b32 v7, 1, v{G}")
        q("v_mul_u32_u24 v7, 3, v7")
        q(f"v_lshl_add_u32 v7, v{R4}, 2, v7")
        q(f"v_lshrrev_b32 v231, s{S_KIND}, v{C}")
        q("v_and_b32 v231, 1, v231")
        q("v_lshlrev_b32 v231, s7, v231")
        q("v_xor_b32 v7, v7, v231")
        q("v_lshl_add_u32 v6, v7, 4, v6")
        for i in range(8):
            nat, perm = i << 5, ((i >> 1) << 6) | ((i & 1) << 4)
            if nat == perm:
                q(f"v_xor_b32 v{V_AB16+i}, {nat}, v6")
            else:
                q(f"s_mul_i32 s7, s{S_KIND}, {nat - perm}")
                q(f"s_add_u32 s7, s7, {perm}")
                q(f"v_xor_b32 v{V_AB16+i}, s7, v6")
    q("s_lshl_b32 s7, s3, 4")
    q(f"v_add_u32 v6, s7, v{G}")
    q(f"v_xor_b32 v7, v{R4}, v{G}")
    q("v_lshlrev_b32 v7, 6, v7")
    q(f"v_lshl_add_u32 v7, v{C}, 4, v7")
    q(f"s_lshl_b32 s38, s{S_HEAD}, 9")
    q(f"v_lshlrev_b32 v{V_DQ}, 13, v6")
    q(f"v_add3_u32 v{V_DQ}, v{V_DQ}, v7, s38")
    for j in range(1, 4):
        q(f"v_add_u32 v{V_DQ+j}, {j*4*8192 - j*1024}, v{V_DQ}")
    q(f"s_mul_i32 s39, s{S_HEAD}, 224")
    q(f"v_mul_u32_u24 v{V_D1+3}, 3584, v6")
    q(f"v_add3_u32 v{V_D1+3}, v{V_D1+3}, v7, s39")
    q(f"v_lshrrev_b32 v6, 1, v{G}")
    q(f"v_lshl_add_u32 v6, v6, 3, v{R4}")
    q("v_lshlrev_b32 v6, 8, v6")
    q(f"v_and_b32 v7, 1, v{G}")
    q("v_lshl_add_u32 v6, v7, 5, v6")
    q(f"v_lshl_add_u32 v6, v{C}, 3, v6")
    for nb in range(4):
        q(f"v_xor_b32 v7, {nb}, v{R4}")
        q(f"v_lshl_add_u32 v{V_AT+nb}, v7, 6, v6")
        q(f"v_add_u32 v{V_AT+4+nb}, 0x10000, v{V_AT+nb}")
    q(f"s_mul_i32 s7, s{S_QT}, 28")
    q("s_mul_i32 s6, s3, 7")
    q("s_add_u32 s7, s7, s6")
    q("v_lshrrev_b32 v6, 2, v0")
    q("v_add_u32 v6, s7, v6")
    q("v_lshlrev_b32 v7, 13, v6")
    q(f"v_lshl_add_u32 v7, v{C}, 7, v7")
    q("v_add_u32 v7, s38, v7")
    q("v_subrev_u32 v6, 7, v6")
    q("v_mul_u32_u24 v6, 3584, v6")
    q(f"v_min_u32 v231, 2, v{C}")
    q("v_lshl_add_u32 v6, v231, 7, v6")
    q("v_add_u32 v6, s39, v6")
    q(f"v_min_u32 v6, {W1_BYTES-4}, v6")
    q("v_cmp_gt_u32 vcc, 28, v0")
    q("s_lshr_b32 s7, s2, 3")
    q("s_lshl_b32 s7, s7, 2")
    q("v_cndmask_b32 v6, v6, v7, vcc")
    q(f"v_mov_b32 v{V_GP}, s{P_W1}")
    q(f"v_mov_b32 v{V_GP+1}, s{P_W1+1}")
    q(f"v_mov_b32 v7, s{P_WQ}")
    q(f"v_mov_b32 v231, s{P_WQ+1}")
    q(f"v_cndmask_b32 v{V_GP}, v{V_GP}, v7, vcc")
    q(f"v_cndmask_b32 v{V_GP+1}, v{V_GP+1}, v231, vcc")
    q("s_add_u32 s7, s7, s3")
    q("s_mul_i32 s7, s7, 640")
    q("s_add_u32 s7, s7, M_B-M_PC0")
    q("v_and_b32 v7, 7, v0")
    q("v_min_u32 v7, 4, v7")
    q("v_lshl_add_u32 v7, v7, 7, s7")
    q("v_min_u32 v7, M_CODE_END-M_PC0-8, v7")
    q("v_cmp_gt_u32 vcc, 56, v0")
    q("v_mov_b32 v231, s50")
    q("v_mov_b32 v232, s51")
    q("v_cndmask_b32 v6, v7, v6, vcc")
    q(f"v_cndmask_b32 v{V_GP}, v231, v{V_GP}, vcc")
    q(f"v_cndmask_b32 v{V_GP+1}, v232, v{V_GP+1}, vcc")
    q(f"v_add_co_u32 v{V_GP}, vcc, v{V_GP}, v6")
    q(f"v_addc_co_u32 v{V_GP+1}, vcc, 0, v{V_GP+1}, vcc")
    q("s_add_u32 s7, s36, 3")
    q("s_lshl_b32 s7, s7, 3")
    q("s_add_u32 s7, s7, s34")
    q(f"s_lshl_b32 s{S_KVBASE}, s{S_HA}, 6")
    q(f"s_add_u32 s{S_KVBASE}, s{S_KVBASE}, s7")
    q(f"s_lshl_b32 s{S_KVBASE}, s{S_KVBASE}, 15")
    q(f"s_lshl_b32 s7, s{S_KIND}, 14")
    q(f"s_add_u32 s{S_KVBASE}, s{S_KVBASE}, s7")
    q("s_lshl_b32 s7, s37, 13")
    q(f"s_add_u32 s{S_KVBASE}, s{S_KVBASE}, s7")
    q("s_lshl_b32 s7, s36, 19")
    q(f"s_sub_u32 s{S_KVSTR}, s7, 0x40000")
    q(f"s_lshl_b32 s7, s{S_QT}, 2")
    q(f"v_and_b32 v{V_FO}, 15, v0")
    q(f"v_lshlrev_b32 v{V_FO}, 3, v{V_FO}")
    q(f"s_add_u32 s{S_XNB}, s7, s3")
    q(f"s_mul_i32 s{S_XNB}, s{S_XNB}, 28672")
    q(f"s_add_u32 s{S_XNB}, s{S_XNB}, {XN_OFF}")
    q(f"v_lshlrev_b32 v{V_L16}, 4, v0")
    q(f"s_lshl_b32 s7, s{S_QT}, 4")
    q(f"s_add_u32 s7, s7, s{S_HEAD}")
    q("s_mul_i32 s7, s7, 7168")
    q("s_mul_i32 s6, s3, 1792")
    q("s_add_u32 s7, s7, s6")
    q("v_lshrrev_b32 v6, 2, v0")
    q("v_min_u32 v6, 14, v6")
    q("v_lshl_add_u32 v146, v6, 7, s7")
    attn.setup_s(q)
    q(f"s_mov_b32 s{S_QST}, s{P_WS}")
    q(f"s_mov_b32 s{S_QST+1}, s{P_WS+1}")
    q(f"s_cmp_ge_u32 s{S_QT}, 8")
    q(f"s_cselect_b32 s{S_QST+2}, {WS_BYTES:#x}, 0")
    q(f"s_mov_b32 s{S_QST+3}, 0x20000")
    q(f"s_lshl_b32 s{S_QB}, s{S_PAIR}, 2")
    q(f"s_add_u32 s{S_QB}, s{S_QB}, s3")
    q(f"s_lshl_b32 s{S_QB}, s{S_QB}, 14")
    q(f"s_add_u32 s{S_QB}, s{S_QB}, {Q_OFF}")
    for i in q.ins:
        e(i.text)
    stamp(e, opt, "setup")
    e.wait_tag("pf")
    stamp(e, opt, "touch")
    NPRE = opt.get("npre", 12)
    for tag, items in (("t0", dma_items(0)), ("dma", dma_items(1)[:NPRE])):
        for pre, d, post in items:
            run(e, pre + [(d, tag)] + post)
    e(f"buffer_load_dword v{V_PD}, v144, s[{S_CKV}:{S_CKV+3}], 0 offen", "pf")
    e(f"buffer_load_dword v{V_PD}, v145, s[{S_W}:{S_W+3}], 0 offen", "pf")
    e(f"buffer_load_dword v{V_PD}, v146, s[{S_X}:{S_X+3}], 0 offen", "pf")
    e("s_or_b32 s7, s2, s3")
    e("s_cbranch_scc1 M_NOPUB")
    e("s_memrealtime s[4:5]")
    e("v_mov_b32 v6, 0")
    e.wait_force(lgkm=0)
    e("s_or_b32 s4, s4, 1")
    e("v_mov_b32 v7, s4")
    e("s_mov_b64 exec, 1")
    e.raw(f"global_store_dword v6, v7, s[{P_DBG}:{P_DBG+1}] sc1")
    e("s_mov_b64 exec, -1")
    e.label("M_NOPUB")
    stamp(e, opt, "dma")
    stamp(e, opt, 1)

    def layernorm(e, n, reduce, norm, T=V_T):
        e("s_mov_b32 s7, 0x3f803f80")
        for k in range(8):
            e(f"v_mov_b32 v{T+k}, 0")
        for r in range(n):
            if n > 28 or opt.get("ln_dot"):
                e(f"v_dot2_f32_bf16 v{T+(r&3)}, v{V_XN+r}, s7, v{T+(r&3)}")
                e(f"v_dot2_f32_bf16 v{T+4+(r&3)}, v{V_XN+r}, v{V_XN+r}, v{T+4+(r&3)}")
            else:
                t = T + 8 + (r % 4) * 2
                e(f"v_lshlrev_b32 v{t}, 16, v{V_XN+r}")
                e(f"v_and_b32 v{t+1}, 0xffff0000, v{V_XN+r}")
                e(f"v_add_f32 v{T+(r&1)*2}, v{T+(r&1)*2}, v{t}")
                e(f"v_add_f32 v{T+(r&1)*2+1}, v{T+(r&1)*2+1}, v{t+1}")
                e(f"v_fmac_f32 v{T+4+(r&1)*2}, v{t}, v{t}")
                e(f"v_fmac_f32 v{T+4+(r&1)*2+1}, v{t+1}, v{t+1}")
        e.nop(4)
        e(f"v_add_f32 v{T}, v{T}, v{T+1}")
        e(f"v_add_f32 v{T+2}, v{T+2}, v{T+3}")
        e(f"v_add_f32 v{T+4}, v{T+4}, v{T+5}")
        e(f"v_add_f32 v{T+6}, v{T+6}, v{T+7}")
        e(f"v_add_f32 v{T}, v{T}, v{T+2}")
        e(f"v_add_f32 v{T+4}, v{T+4}, v{T+6}")
        for step in reduce:
            if isinstance(step, str):
                e.nop(2)
                e(f"v_add_f32_dpp v{T}, v{T}, v{T} {step} row_mask:0xf bank_mask:0xf")
                e(f"v_add_f32_dpp v{T+4}, v{T+4}, v{T+4} {step} row_mask:0xf bank_mask:0xf")
            else:
                e(f"v_mov_b32 v{T+1}, v{T}")
                e(f"v_mov_b32 v{T+5}, v{T+4}")
                e.nop(2)
                e(f"v_permlane{step}_swap_b32 v{T}, v{T+1}")
                e(f"v_permlane{step}_swap_b32 v{T+4}, v{T+5}")
                e(f"v_add_f32 v{T}, v{T}, v{T+1}")
                e(f"v_add_f32 v{T+4}, v{T+4}, v{T+5}")
        e(f"v_mul_f32 v{T}, {f32(1/448)}, v{T}")
        e(f"v_mul_f32 v{T+4}, {f32(1/448)}, v{T+4}")
        e(f"v_fma_f32 v{T+4}, -v{T}, v{T}, v{T+4}")
        e(f"v_max_f32 v{T+4}, 0, v{T+4}")
        e(f"v_add_f32 v{T+4}, {f32(1e-5)}, v{T+4}")
        e(f"v_rsq_f32 v{T+4}, v{T+4}")
        e(f"v_mul_f32 v{T+4}, {f32(QSCALE)}, v{T+4}")
        e(f"v_mul_f32 v{T}, v{T}, v{T+4}")
        e(f"v_mov_b32 v{T+5}, v{T+4}")
        e(f"v_sub_f32 v{T}, 0, v{T}")
        e(f"v_mov_b32 v{T+1}, v{T}")
        for r in norm:
            t = T + 8 + (r % 8) * 2
            e(f"v_lshlrev_b32 v{t}, 16, v{V_XN+r}")
            e(f"v_and_b32 v{t+1}, 0xffff0000, v{V_XN+r}")
            if n > 28:
                e(f"v_pk_fma_f32 {v(t,2)}, {v(t,2)}, {v(T+4,2)}, {v(T,2)}")
            else:
                e(f"v_fma_f32 v{t}, v{t}, v{T+4}, v{T}")
                e(f"v_fma_f32 v{t+1}, v{t+1}, v{T+4}, v{T}")
            e(f"v_cvt_pk_bf16_f32 v{V_XN+r}, v{t}, v{t+1}")

    def ops_of(fn):
        t = Seg("tmp")
        fn(t)
        out, k = [], 0
        ins = t.ins
        while k < len(ins):
            x = (ins[k].text, ins[k].tag) if ins[k].tag else ins[k].text
            if ins[k].op.startswith("s_cmp"):
                out.append([x, ins[k + 1].text])
                k += 2
            else:
                out.append(x)
                k += 1
        return out

    XA, XS, LT = V_XN + 36, V_XN + 37, V_XN + 52
    SX0, SX1 = S_QC, S_KVC

    def x_loads(h):
        h(f"s_lshl_b32 s{SX0}, s3, 8")
        h(f"s_add_u32 s{SX1}, s{SX0}, 128")
        h("s_cmp_eq_u32 s3, 3")
        h(f"s_cselect_b32 s{SX1}, 0, s{SX1}")
        h(f"s_lshl_b32 s7, s{S_QT}, 7")
        h(f"s_lshl_b32 s6, s{S_HEAD}, 3")
        h("s_add_u32 s7, s7, s6")
        h("v_lshrrev_b32 v6, 3, v0")
        h("v_add_u32 v6, s7, v6")
        h("v_mul_u32_u24 v6, 896, v6")
        h("v_and_b32 v7, 7, v0")
        h(f"v_lshl_add_u32 v{XA}, v7, 4, v6")
        h(f"v_mov_b32 v{V_XN+41}, 0")
        for i in range(7):
            h(f"buffer_load_dwordx4 {v(V_XN+i*4,4)}, v{XA}, s[{S_X}:{S_X+3}], 0 offen offset:{i*128}", "x")
        h(f"buffer_load_dwordx4 {v(V_XN+28,4)}, v{XA}, s[{S_X}:{S_X+3}], s{SX0} offen", "x")
        h(f"buffer_load_dwordx4 {v(V_XN+32,4)}, v{XA}, s[{S_X}:{S_X+3}], s{SX1} offen", "x")
        h(f"global_load_dword v{V_XN+43}, v{V_XN+41}, s[{P_DBG}:{P_DBG+1}]", "x")

    def ln_pub(h):
        h(f"s_lshr_b32 s5, s{S_HEAD}, 2")
        h(f"s_lshl_b32 s6, s{S_QT}, 2")
        h("s_add_u32 s5, s5, s6")
        h("s_mul_i32 s5, s5, 28672")
        h(f"s_add_u32 s5, s5, {XN_OFF}")
        h(f"s_lshl_b32 s{SX0}, s{SX0}, 5")
        h(f"s_lshl_b32 s{SX1}, s{SX1}, 5")
        h(f"s_add_u32 s{SX0}, s{SX0}, s5")
        h(f"s_add_u32 s{SX1}, s{SX1}, s5")
        h(f"s_and_b32 s6, s{S_HEAD}, 3")
        h("s_lshl_b32 s6, s6, 7")
        h("v_lshrrev_b32 v6, 3, v0")
        h("v_lshlrev_b32 v6, 4, v6")
        h("v_and_b32 v7, 7, v0")
        h("v_lshl_add_u32 v6, v7, 9, v6")
        h(f"v_add_u32 v{XS}, s6, v6")
        layernorm(h, 28, ("quad_perm:[1_0_3_2]", "quad_perm:[2_3_0_1]", "row_half_mirror"), range(28, 36), LT)
        h(f"buffer_store_dwordx4 {v(V_XN+28,4)}, v{XS}, s[{S_WS}:{S_WS+3}], s{SX0} offen sc1", "st")
        h(f"buffer_store_dwordx4 {v(V_XN+32,4)}, v{XS}, s[{S_WS}:{S_WS+3}], s{SX1} offen sc1", "st")

    def gtouch(k):
        lo = 0xffff << (16 * (k & 1))
        return [[f"s_mov_b32 exec_lo, {lo if k < 2 else 0}", f"s_mov_b32 exec_hi, {0 if k < 2 else lo}",
                 (f"global_load_dword v{V_PD}, {v(V_GP,2)}, off", "pf"), "s_mov_b64 exec, -1"]]

    hk = Seg("m_hook")
    hk.label("M_HOOK")
    hk("s_mov_b32 s6, 0")
    hk.label("M_NSPIN")
    hk(f"v_readfirstlane_b32 s{S_N0}, v{V_XN+43}")
    hk(f"s_cmp_lg_u32 s{S_N0}, 0")
    hk("s_cbranch_scc1 M_NOK")
    hk("s_sleep 8")
    hk(f"global_load_dword v{V_XN+43}, v{V_XN+41}, s[{P_DBG}:{P_DBG+1}] sc1")
    hk.wait_force(vm=0)
    hk("s_add_u32 s6, s6, 1")
    hk(f"s_cmp_lt_u32 s6, {PMAX}")
    hk("s_cbranch_scc1 M_NSPIN")
    hk.label("M_NOK")
    hk(f"s_xor_b32 s{S_N1}, s{S_N0}, {NONCE_K:#x}")
    hk("s_cmp_eq_u32 s3, 0")
    hk(f"s_cselect_b32 s{S_BO}, 3, 99")
    hk(f"s_mov_b64 s[{S_GM}:{S_GM+1}], 0xff")
    hk("s_branch M_HOOK_RET")
    hk.label("M_SIGX")
    flag_line(hk, 7, FL_XN, S_QT)
    hk(f"s_lshl_b32 s6, s{S_HEAD}, 3")
    flag_set(hk, S_WS, 7, "s6", V_XN + 40)
    hk.label("M_HOOK_RET")
    hk(f"s_cmp_eq_u32 s{S_KIND}, 0")
    hk("s_cbranch_scc1 M_LOOP_K")
    hk("s_branch M_LOOP_V")

    def frag_reads(b, ks, st):
        r = []
        fa, fb = V_FA + st * 16, V_FB + st * 16
        order = [("a", 0), ("b", 0), ("a", 1), ("a", 2), ("a", 3), ("b", 1), ("b", 2), ("b", 3)]
        for t, i in order:
            if t == "a":
                r.append(f"ds_read_b128 {v(fa+i*4,4)}, v{V_AA+ks} offset:{i*4096 + b*32768}")
            else:
                for u in range(2):
                    r.append(f"ds_read_b64_tr_b16 {v(fb+i*4+u*2,2)}, v{V_AB+i} offset:{(16*ks+4*u)*512 + b*32768}")
        return r

    e.wait_tag("t0")
    stamp(e, opt, "t0")
    e("s_barrier")
    stamp(e, opt, "bar")
    if not A16:
        for r in frag_reads(0, 0, 0):
            e(r)
    e(f"s_mov_b32 s{S_LP}, 2")
    e(f"s_cmp_eq_u32 s{S_KIND}, 0")
    e("s_cbranch_scc0 M_PRE_V")
    pro = e

    def place_dma(fill, items, g0, g1, tag="dma"):
        n = len(items)
        for k, item in enumerate(items):
            pre, d, post = item[:3]
            g = g0 + (k * (g1 - g0)) // n
            for x in pre:
                fill.setdefault(g - 1, []).append(x)
            fill.setdefault(g, []).append((d, item[3] if len(item) > 3 else tag))
            for x in post:
                fill.setdefault(g, []).append(x)

    def ktile(e, kind, b, dma_k0, dma_k3, last=False, pref=True, tag3="dma", tag0="dma", xn=None):
        for ks in range(4):
            st = ks & 1
            fa, fb = V_FA + st * 16, V_FB + st * 16
            spine = []
            for i in range(4):
                for j in range(4):
                    acc = a((i * 4 + j) * 16, 16)
                    W, Cc = v(fb + i * 4, 4), v(fa + j * 4, 4)
                    A, B = (W, Cc) if kind == 0 else (Cc, W)
                    spine.append(f"{MFMA} {acc}, {A}, {B}, {acc}")
            fill = {}
            fill[-1] = [lambda e: e.wait_force(lgkm=0)]
            if ks < 3:
                spread(fill, frag_reads(b, ks + 1, st ^ 1), 0, 12)
                if ks == 0 and dma_k0:
                    place_dma(fill, dma_k0, 1, 16, tag0)
                if ks == 1 and pref:
                    fill.setdefault(4, []).append((f"buffer_load_dword v{V_PD}, v{V_PA}, s[{S_CKV}:{S_CKV+3}], s{SA} offen", "pf"))
                    fill.setdefault(13, []).append((f"buffer_load_dword v{V_PD}, v{V_PB}, s[{S_W}:{S_W+3}], s{SB} offen", "pf"))
                if ks in (1, 2) and xn is not None:
                    k0 = xn + (ks - 1) * 7
                    for k in range(k0, k0 + 7):
                        g = 1 + 2 * (k - k0)
                        if k % 4 == 0 and k:
                            fill.setdefault(g - 1, []).append(f"s_add_u32 s{S_XNB}, s{S_XNB}, 4096")
                        fill.setdefault(g, []).append((f"buffer_load_dwordx4 {v(V_XN+4*k,4)}, v{V_L16}, s[{S_WS}:{S_WS+3}], s{S_XNB} offen offset:{(k%4)*1024} sc1", "xn"))
            else:
                if last:
                    fill[0] = ["s_barrier"]
                else:
                    fill[0] = [lambda e: e.wait_force(vm=(NPF if pref else 0) + (14 if xn is not None else 0)), "s_barrier"]
                    spread(fill, frag_reads(b ^ 1, 0, 0), 0, 12)
                if dma_k3:
                    place_dma(fill, dma_k3, 2, 16, tag3)
            weave(e, spine, fill)

    def c_read(kind, b, s_, j):
        off = j * 2048
        return f"ds_read_b128 {v(V_FA + s_*32 + j*4, 4)}, v{V_AA16 + ((s_ ^ j) & 1)} offset:{off + b*32768}"

    def w_read(b, s_, i):
        return [f"ds_read_b64_tr_b16 {v(V_WR + i*4 + 2*u, 2)}, v{V_AB16+i} offset:{(32*s_ + 4*u)*512 + b*32768}" for u in range(2)]

    def ktile16(e, kind, b, dma_k0, dma_k3, last=False, pref=True, tag3="dma", tag0="dma", xn=None, first=False, head=False, extra=None):
        for s_ in range(2):
            spine = []
            for i in range(8):
                for j in range(8):
                    if kind == 0:
                        dt, bb, kb, nb = i >> 1, i & 1, j >> 1, j & 1
                    else:
                        dt, nb, kb, bb = i >> 1, i & 1, j >> 1, j & 1
                    acc = a((kb * 4 + dt) * 16 + nb * 8 + bb * 4, 4)
                    W, Cc = v(V_WR + i * 4, 4), v(V_FA + s_ * 32 + j * 4, 4)
                    A, B = (W, Cc) if kind == 0 else (Cc, W)
                    spine.append(f"v_mfma_f32_16x16x32_bf16 {acc}, {A}, {B}, {0 if first and s_ == 0 else acc}")
            fill = {}
            nb_, ns = (b, 1) if s_ == 0 else (b ^ 1, 0)
            more = not (last and s_ == 1)
            for i in range(8):
                r = v(V_WR + i * 4, 4)
                fill.setdefault(8 * i - 1, []).append(lambda e, r=r: wait_reg(e, r))
            r = v(V_FA + s_ * 32 + 28, 4)
            fill.setdefault(-1, []).append(lambda e, r=r: wait_reg(e, r))
            if s_ == 1:
                nx = 14 if xn is not None else 0
                if last:
                    fill.setdefault(7, []).extend([lambda e: e.wait(lgkm=0), "s_barrier"])
                elif pref and not head:
                    fill.setdefault(7, []).extend([lambda e: e.wait_force(vm=NPF + 1, lgkm=0), "s_barrier"])
                else:
                    fill.setdefault(7, []).extend([lambda e: e.wait_tag("dma"), lambda e: e.wait(lgkm=0), "s_barrier"])
            if more:
                for i in range(8):
                    wr = w_read(nb_, ns, i)
                    fill.setdefault(8 * i + 7, []).append(wr[0])
                    fill.setdefault(min(8 * i + 8, 63), []).append(wr[1])
                for j in range(8):
                    fill.setdefault(10 + 6 * j, []).append(c_read(kind, nb_, ns, j))
            if s_ == 0:
                if dma_k0:
                    place_dma(fill, dma_k0, 1 if first else 2, min(34 if first else 56, 2 + (7 * len(dma_k0)) // 2 + (14 if len(dma_k0) > 8 else 0)), tag0)
                if pref:
                    fill.setdefault(36, []).append((f"buffer_load_dword v{V_PD}, v{V_PA}, s[{S_CKV}:{S_CKV+3}], s{SA} offen", "pf"))
                    fill.setdefault(44, []).append((f"buffer_load_dword v{V_PD}, v{V_PB}, s[{S_W}:{S_W+3}], s{SB} offen", "pf"))
            elif dma_k3:
                place_dma(fill, dma_k3, 11, 62, tag3)
            if xn is not None:
                nx = (10, 4)[s_]
                k0 = xn + s_ * 10
                for k in range(k0, k0 + nx):
                    g = (18 + ((k - k0) * 45) // nx) if s_ == 0 else (13 + (k - k0) * 13)
                    if k % 4 == 0 and k:
                        fill.setdefault(g - 1, []).append(f"s_add_u32 s{S_XNB}, s{S_XNB}, 4096")
                    fill.setdefault(g, []).append((f"buffer_load_dwordx4 {v(V_XN+4*k,4)}, v{V_L16}, s[{S_WS}:{S_WS+3}], s{S_XNB} offen offset:{(k%4)*1024}{XNM}", "xn"))
            if opt.get("x_a_nodma"):
                for g in fill:
                    fill[g] = [x for x in fill[g] if not (isinstance(x, tuple) and x[1] in ("dma", "pf"))]
            if opt.get("x_a_nords"):
                for g in fill:
                    fill[g] = [x for x in fill[g] if not (isinstance(x, str) and x.startswith("ds_read"))]
            if opt.get("a_level", 1):
                seq = [(g, x) for g in sorted(fill) for x in fill[g]]
                new, nxt = {}, -1
                for g, x in seq:
                    t = x[0] if isinstance(x, tuple) else x
                    heavy = isinstance(t, str) and t.startswith(("ds_", "buffer_", "global_"))
                    fixed = callable(x) or t == "s_barrier"
                    if fixed:
                        new.setdefault(g, []).append(x)
                        continue
                    gg = min(63, max(g, nxt)) if heavy else min(63, max(g, nxt - 1))
                    new.setdefault(gg, []).append(x)
                    if heavy:
                        nxt = gg + 1
                fill = new
            for g0, g1, ops in (extra or {}).get(s_, []):
                pour(fill, ops, g0, g1)
            weave(e, spine, fill)

    if A16:
        ktile = ktile16

    NT = 21

    def b_dma(u):
        part, kt = divmod(u, 7)
        slot = SLOT_ORDER[u % 10]
        it = []
        for j in range(4):
            pre = []
            if j == 0:
                pre.append(f"s_add_u32 m0, s{S_W4K}, {slot*16384}")
                off = kt * 64 * 3584 if part == 2 else kt * 64 * 8192 + part * 256
                pre.append(f"s_mov_b32 s{S_BO}, {off}")
            if part == 2:
                d = f"buffer_load_dwordx4 v{V_DQ+j}, s[{S_W1}:{S_W1+3}], s{S_BO} offen offset:{j*1024} lds"
            else:
                d = f"buffer_load_dwordx4 v{V_DQ+j}, s[{S_WQ}:{S_WQ+3}], s{S_BO} offen offset:{j*1024} lds"
            it.append((pre, d, [], f"b{u//2}"))
        return it

    segs = [pro]
    traces = [[hk]]
    tails = {}
    extra = []
    vm_loop = [("dma", frozenset())] * 40
    for kind in range(2):
        nm = "KV"[kind]
        pre = Seg(f"m_pre{nm}", pro.lds, pro.vm)
        pre.label(f"M_PRE_{nm}")
        if A16:
            seq = sorted([(8 * i + 7, 0, w_read(0, 0, i)[0]) for i in range(8)] + [(min(8 * i + 8, 63), 1, w_read(0, 0, i)[1]) for i in range(8)]
                         + [(10 + 6 * j, 2, c_read(kind, 0, 0, j)) for j in range(8)])
            for _, _, x in seq:
                pre(x)
        d0, d1 = dma_items(0), dma_items(1)
        lno = ops_of(ln_pub)
        c1, c2, c3 = (len(lno) * 18) // 100, (len(lno) * 46) // 100, (len(lno) * 74) // 100
        ktile(pre, kind, 0, d1[NPRE:], d0[:NK3], first=True, head=True)
        ktile(pre, kind, 1, d0[NK3:], d1[:NK3], head=True, extra={0: [(18, 64, ops_of(x_loads))]})
        stamp(pre, opt, "it1", raw=True)
        ktile(pre, kind, 0, d1[NK3:], d0[:NK3], head=True, extra={0: [(20, 64, lno[:c1])], 1: [(0, 64, lno[c1:c2])]})
        ktile(pre, kind, 1, d0[NK3:], d1[:NK3], head=True, extra={0: [(0, 64, lno[c2:c3])], 1: [(0, 60, lno[c3:])]})
        stamp(pre, opt, "it2", raw=True)
        pre("s_branch M_HOOK")
        lp = Seg(f"m_loop{nm}", pre.lds, vm_loop)
        lp.label(f"M_LOOP_{nm}")
        gt = [["s_mov_b64 exec, s[70:71]" if False else f"s_mov_b64 exec, s[{S_GM}:{S_GM+1}]", (f"global_load_dword v{V_PD}, {v(V_GP,2)}, off", "pf"),
               "s_mov_b64 exec, -1"], [f"s_lshl_b64 s[{S_GM}:{S_GM+1}], s[{S_GM}:{S_GM+1}], 8", f"s_or_b32 s{S_GM}, s{S_GM}, 1"]]
        ktile(lp, kind, 0, d1[NK3:], d0[:NK3], extra={0: [(50, 56, gt)]})
        ktile(lp, kind, 1, d0[NK3:], d1[:NK3], extra={0: [(50, 56, gt)]})
        assert opt.get('x_a_nords') or lp.lds == pre.lds, (len(lp.lds), len(pre.lds))
        lp(f"s_add_u32 s{S_LP}, s{S_LP}, 1")
        for it in range(3, 7):
            if f"it{it}" in opt.get("sp", []):
                lp(f"s_cmp_lg_u32 s{S_LP}, {it}")
                lp(f"s_cbranch_scc1 M_NS{it}_{nm}")
                stamp(lp, opt, f"it{it}", raw=True)
                lp.label(f"M_NS{it}_{nm}")
        lp(f"s_cmp_eq_u32 s{S_LP}, s{S_BO}")
        lp("s_cbranch_scc1 M_SIGX")
        lp(f"s_cmp_lg_u32 s{S_LP}, 5")
        lp(f"s_cbranch_scc1 M_NOPOLL_{nm}")
        flag_line(lp, 7, FL_XN, S_QT)
        lp(f"buffer_load_dwordx2 {v(V_FL,2)}, v{V_FO}, s[{S_WS}:{S_WS+3}], s7 offen sc1", "pf")
        lp.label(f"M_NOPOLL_{nm}")
        lp(f"s_cmp_lt_u32 s{S_LP}, 6")
        lp(f"s_cbranch_scc1 M_LOOP_{nm}")
        tl = Seg(f"m_tail{nm}", lp.lds, lp.vm)
        tl.label(f"M_TAIL{kind}")
        bd = sum((b_dma(u) for u in range(10)), [])
        flag_test(tl, V_FL)
        tl(f"s_cselect_b32 s{S_XNF}, 1, 0")
        ktile(tl, kind, 0, d1[NK3:], d0[:NK3], pref=False, xn=0)
        ktile(tl, kind, 1, d0[NK3:], d1[:NK3], pref=False, xn=14)
        stamp(tl, opt, "it7", raw=True)
        ktile(tl, kind, 0, d1[NK3:] + bd[:8], bd[8:20], pref=False)
        ktile(tl, kind, 1, bd[20:24], bd[24:36], last=True, pref=False)
        if kind == 0:
            tl("s_branch M_B")
        segs += [pre, lp, tl] + ([hk] if kind == 0 else [])
        tails[kind] = tl
        traces.append([pro, pre, lp, lp, tl])

    e = Seg("m_b", tails[0].lds, tails[0].vm)
    e.label("M_B")
    stamp(e, opt, 2)
    stamp(e, opt, "b")
    e(f"s_cmp_lt_u32 s{S_XNF}, {99 if opt.get('force_fb') else 1}")
    e("s_cbranch_scc1 M_FB")
    e.label("M_FB_RET")
    for _ in range(opt.get("x_idle", 0)):
        e("s_sleep 32")
    srd(e, S_WO, P_WO, WO_BYTES)
    srd(e, S_W2, P_W2, W2_BYTES)
    attn.setup_dma(e)
    e(f"v_mov_b32 v6, v{V_D1+3}")
    for nb in range(4):
        e(f"v_add_u32 v{V_AT3+nb}, 0x20000, v{V_AT+nb}")
    fb = Seg("m_fb")
    fb.label("M_FB")
    fb.wait_force(vm=0)
    fb(f"s_lshl_b32 s7, s{S_QT}, 7")
    fb("s_lshl_b32 s6, s3, 5")
    fb("s_add_u32 s7, s7, s6")
    fb("v_and_b32 v6, 31, v0")
    fb("v_add_u32 v6, s7, v6")
    fb("v_mul_u32_u24 v6, 896, v6")
    fb("v_lshrrev_b32 v7, 5, v0")
    fb("v_lshl_add_u32 v6, v7, 4, v6")
    for ks in range(28):
        fb(f"buffer_load_dwordx4 {v(V_XN+ks*4,4)}, v6, s[{S_X}:{S_X+3}], 0 offen offset:{ks*32}", "x")
    layernorm(fb, 112, (32,), range(112))
    fb.nop(2)
    fb("s_branch M_FB_RET")
    extra.append(fb)

    D = opt.get("b_depth", 7)
    NF = NT * 16

    def b_read(f):
        u, rem = divmod(f, 16)
        ks, nb = divmod(rem, 4)
        slot = SLOT_ORDER[u % 10]
        fr = V_FA + (f % 8) * 4
        at = (V_AT, V_AT + 4, V_AT3)[slot >> 2] + nb
        return [f"ds_read_b64_tr_b16 {v(fr+2*h,2)}, v{at} offset:{(slot&3)*16384 + (16*ks+4*h)*256}" for h in range(2)]

    def kv_epi(b, t=8, o=8):
        kb, i = divmod(b, 4)
        ops = []
        if i == 0 and kb:
            ops.append(f"s_add_u32 s{S_KVBASE}, s{S_KVBASE}, s{S_KVSTR}")
        if i % 2 == 0:
            ops.append(f"s_add_u32 s{S_KVC}, s{S_KVBASE}, {KV_OFF + (i>>1)*4096}")
        for c in range(2):
            for r in range(8):
                ops.append(f"v_accvgpr_read_b32 v{t+r}, a{b*16+8*c+r}")
            for r in range(4):
                ops.append(f"v_cvt_pk_bf16_f32 v{t+o+r}, v{t+2*r}, v{t+2*r+1}")
            ops.append((f"buffer_store_dwordx4 {v(t+o,4)}, v{V_L16}, s[{S_WS}:{S_WS+3}], s{S_KVC} offen offset:{(i&1)*2048+c*1024}{ST}", "kvst" if kb < 2 else "kvst2"))
        if opt.get("x_nokvst"):
            ops = [o for o in ops if not isinstance(o, tuple)]
        if opt.get("x_noepi"):
            ops = []
        return ops

    def q_epi(part):
        ops = []
        t = 24 if part == 0 else 20
        for nb in range(4):
            if nb % 2 == 0:
                ops.append(f"s_add_u32 s{S_QC}, s{S_QB}, {part*8192 + (nb>>1)*4096}")
            for c in range(2):
                if part == 0:
                    src = H_ACC[nb] + 8 * c
                else:
                    src = t + 4 * c
                    for r in range(8):
                        ops.append(f"v_accvgpr_read_b32 v{src+r}, a{nb*16+8*c+r}")
                for r in range(4):
                    ops.append(f"v_cvt_pk_bf16_f32 v{t+4*c+r}, v{src+2*r}, v{src+2*r+1}")
            for r in range(4):
                ops.append(f"v_permlane16_swap_b32 v{t+r}, v{t+4+r}")
            for c in range(2):
                ops.append((f"buffer_store_dwordx4 {v(t+4*c,4)}, v{V_L16}, s[{S_QST}:{S_QST+3}], s{S_QC} offen offset:{(nb&1)*2048 + c*1024} sc1", "qst"))
                for r in range(4):
                    ops.append(f"v_accvgpr_write_b32 a{A_Q2 + part*32 + nb*8 + c*4 + r}, v{t+4*c+r}")
        return ops

    GKV, GCHK, GQ = opt.get("g_kv", 6), opt.get("g_chk", 9), 9
    fl = attn.first_loads(S_KVE)
    spine, fill = [], {}
    e.wait_tag("b0")
    e("s_barrier")
    for f in range(D):
        for r in b_read(f):
            e(r)
    place_dma(fill, b_dma(9), 1, 16)
    for f in range(NF):
        u, rem = divmod(f, 16)
        part, kt = divmod(u, 7)
        ks, nb = divmod(rem, 4)
        acc = a(nb * 16, 16) if part == 1 else v(H_ACC[nb], 16)
        c = "0" if (kt == 0 and ks == 0) else acc
        spine.append(f"{MFMA} {acc}, {v(V_FA+(f%8)*4,4)}, {v(V_XN+(kt*4+ks)*4,4)}, {c}")
        nf = f + D
        if nf < NF:
            if nf % 32 == 0:
                g = nf // 32
                ops = [lambda e, g=g: e.wait_tag(f"b{g}")]
                if g == GKV:
                    ops.append(lambda e: e.wait_tag("kvst"))
                if g == GQ:
                    ops.append(lambda e: e.wait_tag("qst"))
                if g == GCHK:
                    ops += [lambda e: flag_test(e, VPK), f"s_cselect_b32 s{S_EARLY}, 1, 0",
                            f"s_cselect_b32 s{S_KVE+2}, {WS_BYTES:#x}, 0"]
                ops.append("s_barrier")
                if g == GKV:
                    ops += ["s_cmp_eq_u32 s3, 0", "s_cbranch_scc1 M_SKV", "M_SKV_RET:"]
                if g == GQ:
                    ops += ["s_cmp_eq_u32 s3, 0", "s_cbranch_scc1 M_SQ", "M_SQ_RET:"]
                if g == 10:
                    ops += [f"s_cmp_lt_u32 s{S_QT}, 8", "s_cbranch_scc1 M_EQ", "M_EQ_RET:"]
                if g == 4:
                    ops += [f"v_add_u32 v{V_DQ+j}, {j*4*3584 - j*1024}, v6" for j in range(4)]
                if f"g{g}" in opt.get("sp", []):
                    ops.append(lambda e, g=g: stamp(e, opt, f"g{g}", raw=True))
                fill.setdefault(f, []).extend(ops)
                if g >= 2:
                    its = []
                    for u2 in (2 * g + 6, 2 * g + 7):
                        if u2 < NT:
                            its += b_dma(u2)
                    if its:
                        place_dma(fill, its, f + 2, f + 30)
                if g == 9:
                    spread(fill, sum(fl[:4], []), f + 2, f + 32)
                if g == 10:
                    spread(fill, sum(fl[4:], []), f + 2, f + 20)
            fill.setdefault(f, []).extend(b_read(nf))
        if f % 2 == 0:
            r = v(V_FA + (min(f + 1, NF - 1) % 8) * 4, 4)
            fill.setdefault(f - 1, []).append(lambda e, r=r: wait_reg(e, r))
    g1, g2a, g2, gq0, gq1 = opt.get("kv_split", (125, 200, 330, 130, 262))
    pour(fill, sum((kv_epi(b) for b in range(0, 8)), []), 2, g1)
    pour(fill, q_epi(0), gq0, 215)
    pour(fill, q_epi(1), 224 + 5, gq1)
    pour(fill, [f"s_mov_b32 s{S_KVE}, s{S_WS}", f"s_mov_b32 s{S_KVE+1}, s{S_WS+1}", f"s_mov_b32 s{S_KVE+3}, 0x20000",
                lambda e: flag_line(e, 73, FL_KV, S_HEAD), lambda e: flag_line(e, 74, FL_PAIR, S_PAIR)], 160, 180)
    fill.setdefault(opt.get("g_pkv", 240), []).append(f"buffer_load_dwordx2 {v(VPK,2)}, v{V_FO}, s[{S_WS}:{S_WS+3}], s73 offen sc1")
    GP = opt.get("g_poll", 298)
    fill.setdefault(GP - 1, []).append(f"v_mov_b32 v{VPQ+2}, 0")
    fill.setdefault(GP, []).append((f"buffer_load_dwordx2 {v(VPQ,2)}, v{VPQ+2}, s[{S_WS}:{S_WS+3}], s74 offen sc1", "pq"))
    fill.setdefault(GP, []).append(f"s_mov_b32 s{S_GOTQ}, 0")
    pour(fill, [f"v_accvgpr_mov_b32 a{A_Q+r}, a{A_Q2+r}" for r in range(64)], gq1 + 2, 312)
    pour(fill, sum((kv_epi(b) for b in range(8, 12)), []), g2a, g2)
    younger = [0]

    def count_pq(e):
        tags = [t for t, d in e.vm]
        younger[0] = len(tags) - 1 - tags.index("pq") if "pq" in tags else 63
    count_pq.cost = 0
    fill[313].insert(fill[313].index("s_barrier"), count_pq)
    for k in range(8, 26):
        for r in (0, 2):
            g = min(range(224 + 4 * k + 5, 336), key=lambda g: (load_of(fill, g), g))
            fill.setdefault(g, []).append(f"v_mov_b64 {v(V_XN+4*k+r,2)}, 0")
    print(gap_report("phase B", fill, NF))
    weave(e, spine, fill)
    stamp(e, opt, 3)
    stamp(e, opt, "bend")

    skv = Seg("m_skv")
    skv.label("M_SKV")
    flag_line(skv, 7, FL_KV, S_HA)
    flag_set(skv, S_WS, 7, f"s{S_KVSLOT}", 20)
    skv("s_branch M_SKV_RET")
    sq = Seg("m_sq")
    sq.label("M_SQ")
    sq(f"s_cmp_lt_u32 s{S_QT}, 8")
    sq("s_cbranch_scc1 M_SQ_RET")
    flag_set(sq, S_WS, 74, 0, V_XN)
    sq("s_branch M_SQ_RET")

    def spin(e, name, vd, voff, line, first=True):
        e("s_mov_b32 s6, 0")
        e.label(name)
        if first:
            e(f"buffer_load_dwordx2 {v(vd,2)}, v{voff}, s[{S_WS}:{S_WS+3}], s{line} offen sc1")
        e.wait_force(vm=0)
        flag_test(e, vd)
        e(f"s_cbranch_scc1 {name}_OK")
        e("s_sleep 2")
        if not first:
            e(f"buffer_load_dwordx2 {v(vd,2)}, v{voff}, s[{S_WS}:{S_WS+3}], s{line} offen sc1")
        e("s_add_u32 s6, s6, 1")
        e(f"s_cmp_lt_u32 s6, {PMAX}")
        e(f"s_cbranch_scc1 {name}")
        e.wait_force(vm=0)
        e.label(name + "_OK")

    late = Seg("m_late")
    late.label("M_LATE")
    spin(late, "M_PKV", VPK, V_FO, 73)
    for grp in attn.first_loads(S_WS):
        run(late, grp)
    late.wait_force(vm=0)
    late("s_branch M_LATE_RET")
    def q_loads(g):
        for k in range(16):
            if k and k % 4 == 0:
                g(f"s_add_u32 s{S_QB}, s{S_QB}, 4096")
            g(f"buffer_load_dwordx4 {a(A_Q+4*k,4)}, v{V_L16}, s[{S_WS}:{S_WS+3}], s{S_QB} offen offset:{(k%4)*1024} sc1", "q")

    gq = Seg("m_getq")
    gq.label("M_EQ")
    gq.wait_force(vm=younger[0])
    flag_test(gq, VPQ)
    gq("s_cbranch_scc0 M_EQ_RET")
    q_loads(gq)
    gq(f"s_mov_b32 s{S_GOTQ}, 1")
    gq("s_branch M_EQ_RET")
    gq.label("M_GETQ")
    gq(f"s_cmp_eq_u32 s{S_GOTQ}, {2 if opt.get('force_late') else 1}")
    gq("s_cbranch_scc1 M_GETQ_RET")
    if opt.get('force_late'):
        gq(f"s_mul_i32 s6, s{S_GOTQ}, 12288")
        gq(f"s_sub_u32 s{S_QB}, s{S_QB}, s6")
    spin(gq, "M_PQ", VPQ, VPQ + 2, 74)
    q_loads(gq)
    gq("s_branch M_GETQ_RET")
    wq = Seg("m_waitq")
    wq.label("M_WAITQ")
    wq.wait_force(vm=0)
    wq("s_branch M_WAITQ_RET")
    extra += [skv, sq, late, gq, wq]

    e(f"s_cmp_eq_u32 s{S_EARLY}, {2 if opt.get('force_late') else 1}")
    e("s_cbranch_scc0 M_LATE")
    e.label("M_LATE_RET")
    e(f"s_cmp_lt_u32 s{S_QT}, 8")
    e("s_cbranch_scc1 M_GETQ")
    e.label("M_GETQ_RET")
    stamp(e, opt, "polled")
    HS = V_XN + 4
    for k in range(28):
        nb, r = divmod(k, 8)
        e(f"v_cvt_pk_bf16_f32 v{HS+k}, v{H_ACC[nb]+2*r}, v{H_ACC[nb]+2*r+1}")
    srd(e, S_OUT, P_OUT, OUT_BYTES)
    attn.setup_v(e)
    e("s_getpc_b64 s[80:81]")
    e.label("M_PC_A")
    e("s_lshr_b32 s7, s2, 3")
    e("s_lshl_b32 s7, s7, 2")
    e("s_add_u32 s7, s7, s3")
    e("s_mul_i32 s7, s7, 512")
    e(f"v_min_u32 v{attn.V_X+3}, 3, v0")
    e(f"v_lshl_add_u32 v{attn.V_X+3}, v{attn.V_X+3}, 7, s7")
    e(f"v_min_u32 v{attn.V_X+3}, M_CODE_END-M_PC_A-8, v{attn.V_X+3}")
    attn.init_state(e, V_XN + 4 * 26)
    e(f"s_cmp_lt_u32 s{S_QT}, 8")
    e("s_cbranch_scc1 M_WAITQ")
    e.label("M_WAITQ_RET")
    stamp(e, opt, 4)
    stamp(e, opt, "a0")

    RA, RB, XR, VO, VP = 184, 32, 12, 2, 10

    def hooks(fill, NFE, ED):
        g = 6 * NFE - ED
        fill[g].extend(["s_cmp_eq_u32 s3, 0", "s_cbranch_scc1 M_SYA", "M_SYA_RET:"])
        ops = [f"s_lshl_b32 s7, s{S_QT}, 2", f"s_lshr_b32 s4, s{S_HEAD}, 2", "s_add_u32 s4, s4, s7",
               f"s_and_b32 s5, s{S_HEAD}, 3", "s_lshl_b32 s6, s3, 2", "s_add_u32 s5, s5, s6",
               "s_mul_i32 s6, s4, 28", "s_add_u32 s6, s6, s5", "s_lshl_b32 s6, s6, 10",
               f"s_add_u32 s53, s6, {Y_OFF}", "s_add_u32 s54, s53, 16384",
               f"v_and_b32 v{VO}, 31, v0", "v_lshrrev_b32 v3, 5, v0", "s_lshl_b32 s4, s4, 5", f"v_add_u32 v{VO}, s4, v{VO}",
               f"v_mul_u32_u24 v{VO}, 896, v{VO}", f"v_lshl_add_u32 v{VO}, v3, 3, v{VO}", "s_lshl_b32 s5, s5, 5",
               f"v_add_u32 v{VO}, s5, v{VO}"]
        ops += [f"buffer_load_dwordx2 {v(XR+2*k,2)}, v{VO}, s[{S_X}:{S_X+3}], 0 offen offset:{(k>>1)*512+(k&1)*16}" for k in range(4)]
        ops += [lambda e: flag_line(e, 55, FL_Y, S_QT), lambda e: flag_line(e, 63, FL_YA, S_QT)]
        pour(fill, ops, 5 * NFE + 2, 5 * NFE + 34)
        fill.setdefault(6 * NFE + opt.get("g_pa", 22), []).append(
            (f"buffer_load_dwordx2 {v(VP,2)}, v{V_FO}, s[{S_WS}:{S_WS+3}], s63 offen sc1", "pa"))

    sya = Seg("m_sya")
    sya.label("M_SYA")
    sya(f"s_lshl_b32 s6, s{S_HEAD}, 3")
    flag_set(sya, S_WS, 63, "s6", 20)
    sya("s_branch M_SYA_RET")
    extra.append(sya)

    def finish(e):
        stamp(e, opt, "yend")

        def loads(base, sreg, tag):
            for h in range(16):
                e(f"buffer_load_dwordx4 {v(base+4*h,4)}, v{V_L16}, s[{S_WS}:{S_WS+3}], s{sreg} offen sc1", tag)
                if h < 15:
                    e(f"s_add_u32 s{sreg}, s{sreg}, {64*28*1024}")

        def reduce(base, xr, off):
            acc, t = 20, 28
            for r in range(4):
                e(f"v_lshlrev_b32 v{acc+2*r}, 16, v{xr+r}")
                e(f"v_and_b32 v{acc+1+2*r}, 0xffff0000, v{xr+r}")
            for h in range(16):
                for r in range(4):
                    src = base + 4 * h + r
                    u = t + 2 * (r & 1)
                    e(f"v_lshlrev_b32 v{u}, 16, v{src}")
                    e(f"v_and_b32 v{u+1}, 0xffff0000, v{src}")
                    e(f"v_pk_add_f32 {v(acc+2*r,2)}, {v(acc+2*r,2)}, {v(u,2)}")
            for r in range(4):
                e(f"v_cvt_pk_bf16_f32 v{xr+r}, v{acc+2*r}, v{acc+1+2*r}")
            e(f"buffer_store_dwordx2 {v(xr,2)}, v{VO}, s[{S_OUT}:{S_OUT+3}], 0 offen offset:{off}")
            e(f"buffer_store_dwordx2 {v(xr+2,2)}, v{VO}, s[{S_OUT}:{S_OUT+3}], 0 offen offset:{off+16}")

        flag_test(e, VP)
        e("s_cselect_b32 s60, 1, 0")
        e("s_cbranch_scc0 M_NOA")
        loads(RA, 53, "ra")
        e.wait_force(vm=16)
        e("s_branch M_A1")
        e.label("M_NOA")
        e.wait_force(vm=0)
        e.label("M_A1")
        e("s_barrier")

        e("s_cmp_lg_u32 s3, 3")
        e("s_cbranch_scc1 M_PA_OK")
        e(f"s_lshl_b32 s6, s{S_HEAD}, 3")
        flag_set(e, S_WS, 55, "s6", 20)
        e("s_cmp_eq_u32 s60, 1")
        e("s_cbranch_scc1 M_PA_OK")
        spin(e, "M_PA", VP, V_FO, 63)
        e("s_barrier")
        e("s_cmp_eq_u32 s60, 1")
        e("s_cbranch_scc1 M_A2")
        loads(RA, 53, "ra")
        e.label("M_A2")
        e("s_cmp_eq_u32 s3, 3")
        e("s_cbranch_scc1 M_W3")
        e.wait_force(vm=0)
        reduce(RA, XR, 0)
        e("s_barrier")
        stamp(e, opt, "ypoll")
        e.vm = []
        loads(RB, 54, "rb")
        reduce(RB, XR + 4, 512)
        e("s_branch M_DONE")
        e.label("M_W3")
        spin(e, "M_PB", VP, V_FO, 55)
        e("s_barrier")
        stamp(e, opt, "ypoll")
        reduce(RA, XR, 0)
        e.label("M_DONE")
        stamp(e, opt, 5)
        stamp(e, opt, "end")
        stamp_flush(e, opt, 0, S_WS, 6)

    aopt = dict(opt)
    aopt["code_pf"] = not opt.get("no_cpf")
    aopt["stash"] = HS
    aopt["kv2"] = (S_HA, S_KVSLOT, V_FO, sum((kv_epi(b, attn.V_X + 4, 0) for b in range(12, 16)), []))
    if not opt.get("sp"):
        aopt["sp"] = ["none"]
        aopt["spk"] = ""
    asegs, atraces = attn.gen_attn(e, aopt, "M_END", finish, hooks)
    z = Seg("m_z")
    z.label("M_CODE_END")
    segs += asegs + extra + [z]
    for t in traces[1:]:
        t.append(e)
    traces += atraces + [[tails[0], fb, e]] + [[x] for x in extra]
    return segs, traces
```

```python
from emit import *
from common import *

LDS_BYTES = 160 * 1024
S_WS, S_WO, S_W2, S_Y1 = 16, 8, 12, 28
V_L16, V_PD = 1, 2
V_DMA, V_DMA2 = 3, 4
V_L0, V_L1, V_VA, V_HA, V_D0, V_NEGBIG, V_MAX, V_MS = 8, 9, 10, 11, 13, 14, 15, 16
V_T = 18
V_S = (32, 48)
V_P = (64, 72)
V_NM = 80
V_X = 96
V_O = 128
A_Q, A_Q2, A_F, A_HF = 0, 64, 128, 192
S_HEAD, S_QT, S_NH, S_IT, S_T, S_RET, S_DELTA, S_ITH, S_OFFH, S_OFFD = 32, 33, 34, 35, 36, 37, 38, 39, 40, 41
S_KVB, S_W4K, S_PAIR, S_ITSW, S_ITSIG, S_PEND = 42, 43, 48, 49, 50, 51
S_OFF = 44
THR = 16.0
VSLOT = {32: 0x20000, 33: 0x24000}
S_NEG, S_QS, S_PFO, S_PFD, S_PUB = 52, 82, 83, 84, 78
V_KP = 12
KPD = 7
KVM = [""]


def setup_s(e):
    e(f"s_lshl_b32 s4, s{S_QT}, 2")
    e(f"s_sub_u32 s{S_NH}, 30, s4")
    e(f"s_sub_u32 s6, 15, s{S_QT}")
    e(f"s_cmp_ge_u32 s{S_QT}, 8")
    e(f"s_cselect_b32 s{S_NH}, 0, s{S_NH}")
    e(f"s_cselect_b32 s{S_PAIR}, s6, s{S_QT}")
    e(f"s_lshl_b32 s5, s{S_HEAD}, 3")
    e(f"s_add_u32 s{S_PAIR}, s{S_PAIR}, s5")
    e(f"s_lshl_b32 s{S_W4K}, s3, 12")
    e(f"s_lshl_b32 s{S_KVB}, s{S_HEAD}, 21")
    e(f"s_sub_u32 s5, 29, s{S_NH}")
    e("s_lshl_b32 s5, s5, 15")
    e(f"s_add_u32 s{S_OFFH}, s5, s{S_KVB}")
    e("s_lshl_b32 s5, s4, 15")
    e(f"s_add_u32 s{S_OFFD}, s5, s{S_KVB}")
    e(f"s_sub_u32 s5, s{S_NH}, 6")
    e("s_lshr_b32 s5, s5, 2")
    e(f"s_cmp_ge_u32 s{S_NH}, 6")
    e(f"s_cselect_b32 s{S_ITH}, s5, 99")
    e(f"s_lshr_b32 s5, s{S_NH}, 2")
    e(f"s_cmp_ge_u32 s{S_QT}, 8")
    e(f"s_cselect_b32 s{S_ITSW}, 99, s5")
    e(f"s_mov_b32 s{S_ITSIG}, s{S_ITSW}")
    e("s_cmp_eq_u32 s3, 0")
    e(f"s_cselect_b32 s{S_ITSIG}, s{S_ITSIG}, 99")
    e(f"s_mov_b32 s{S_NEG}, 0xffff8000")
    e(f"s_mov_b32 s{S_PEND}, 0")
    e(f"s_mov_b32 s{S_IT}, 0")
    e(f"s_mov_b32 s{S_T}, {f32(THR)}")


def setup_dma(e):
    e(f"v_lshlrev_b32 v{V_L16}, 4, v0")
    e(f"v_add_u32 v{V_DMA}, s{S_W4K}, v{V_L16}")
    e(f"v_add_u32 v{V_DMA2}, 0x4000, v{V_DMA}")


def setup_v(e):
    e(f"s_mul_i32 s5, s{S_QT}, 112")
    e("s_mul_i32 s6, s3, 28")
    e("s_add_u32 s5, s5, s6")
    e(f"v_min_u32 v{V_T}, 27, v0")
    e(f"v_add_u32 v{V_T}, s5, v{V_T}")
    e(f"s_mul_i32 s5, s{S_HEAD}, 229376")
    e(f"v_lshl_add_u32 v{V_X+1}, v{V_T}, 7, s5")
    e("s_mul_i32 s6, s3, 13")
    e(f"v_min_u32 v{V_T}, 12, v0")
    e(f"v_add_u32 v{V_T}, s6, v{V_T}")
    e(f"v_min_u32 v{V_T}, 48, v{V_T}")
    e(f"s_mul_i32 s5, s{S_QT}, 49")
    e(f"v_add_u32 v{V_T}, s5, v{V_T}")
    e(f"s_mul_i32 s5, s{S_HEAD}, 100352")
    e(f"v_lshl_add_u32 v{V_X+2}, v{V_T}, 7, s5")
    e(f"v_add_u32 v{V_VA}, 0x10000, v{V_L16}")
    e(f"v_and_b32 v{V_T}, 15, v0")
    e(f"v_lshrrev_b32 v{V_T+1}, 4, v0")
    e(f"v_lshlrev_b32 v{V_T+1}, 2, v{V_T+1}")
    e(f"v_sub_u32 v{V_D0}, v{V_T}, v{V_T+1}")
    e(f"v_mov_b32 v{V_NEGBIG}, {f32(-1e30)}")
    e(f"s_mov_b32 s{S_QS}, {f32(16 * QSCALE)}")
    e("s_cmp_eq_u32 s3, 0")
    e(f"s_cselect_b32 s{S_PUB}, 2, 0")
    e(f"s_and_b32 s5, s{S_QT}, 7")
    e("s_lshl_b32 s5, s5, 2")
    e("s_add_u32 s5, s5, s3")
    e("s_lshl_b32 s5, s5, 10")
    e(f"v_and_b32 v{V_T}, 7, v0")
    e(f"v_lshl_add_u32 v{V_KP}, v{V_T}, 7, s5")
    e(f"v_bfe_u32 v{V_T}, v0, 3, 2")
    e(f"v_lshl_add_u32 v{V_KP}, v{V_T}, 15, v{V_KP}")
    e(f"s_cmp_ge_u32 s{S_QT}, 8")
    e(f"s_cselect_b32 s{S_PFO}, {29 - KPD - 3}, {30 + KPD}")
    e(f"s_cselect_b32 s{S_PFD}, -4, 4")
    e("s_mul_i32 s5, s3, 7168")
    e("s_add_u32 s5, s5, 0x20000")
    e(f"v_add_u32 v{V_HA}, s5, v{V_L16}")


def idx_ops(dst, n):
    return [
        f"s_mov_b32 s{dst}, {(29-n) << 15}",
        f"s_cmp_gt_u32 s{S_NH}, {n}",
        f"s_cselect_b32 s{dst}, {(30+n) << 15}, s{dst}",
        f"s_add_u32 s{dst}, s{dst}, s{S_KVB}",
    ]


def dmaK(slot, off, tag="dma", S_WS=S_WS):
    return [f"s_add_u32 m0, s{S_W4K}, {slot*16384}"] + [
        (f"buffer_load_dwordx4 v{V_DMA}, s[{S_WS}:{S_WS+3}], s{off} offen offset:{j*1024}{KVM[0]} lds", tag) for j in range(4)]


def dmaV(base, off, tag="dma", S_WS=S_WS):
    return [f"s_add_u32 m0, s{S_W4K}, {base}"] + [
        (f"buffer_load_dwordx4 v{V_DMA2}, s[{S_WS}:{S_WS+3}], s{off} offen offset:{j*1024}{KVM[0]} lds", tag) for j in range(4)]


def first_loads(sr=S_WS):
    out = [[idx_ops(S_OFF + n, n)] for n in range(4)]
    seq = [out[0] + dmaK(0, S_OFF + 0, "k0", sr), dmaV(0x10000, S_OFF + 0, "v0", sr), out[1] + dmaK(1, S_OFF + 1, "k1", sr),
           dmaV(0x14000, S_OFF + 1, "v1", sr), out[2] + dmaK(2, S_OFF + 2, "k2", sr), out[3] + dmaK(3, S_OFF + 3, "k3", sr)]
    return seq


def init_state(e, o_from=V_O):
    for r in range(o_from, V_O + 128, 2):
        e(f"v_mov_b64 {v(r,2)}, 0")
    for r in range(0, 8, 2):
        e(f"v_mov_b64 {v(V_NM+r,2)}, 0")
    e(f"v_mov_b64 {v(V_L0,2)}, 0")


def gen_attn(e, opt, end_label, finish=None, hooks=None):
    D = opt.get("a_depth", 14)
    WG = opt.get("a_waitgrp", 8)
    YM = opt.get("y_store_mod", "")
    SC = opt.get("salu_cost", 0.25)
    KPF = 1 if opt.get("kpf") else 0
    NEPF = 3 if opt.get("loop_epf") else 0

    def rd(f, kslot, vbase):
        d = a(A_F + (f % 16) * 4, 4)
        if f < 16:
            return f"ds_read_b128 {d}, v{V_L16} offset:{kslot*16384 + f*1024}"
        return f"ds_read_b128 {d}, v{V_VA} offset:{vbase + (f-16)*1024}"

    M16 = "v_mfma_f32_16x16x32_bf16"

    def m1(f, qb, par):
        fr = a(A_F + (f % 16) * 4, 4)
        if f < 16:
            j, kb = divmod(f, 2)
            S = v(V_S[par ^ 1] + qb * 8 + kb * 4, 4)
            C = v(V_NM + qb * 4, 4) if j == 0 else S
            return f"{M16} {S}, {fr}, {a(A_Q+(j*2+qb)*4,4)}, {C}"
        j, b = divmod(f - 16, 2)
        O = v(V_O + (j * 2 + qb) * 8 + b * 4, 4)
        return f"{M16} {O}, {fr}, {v(V_P[par]+4*qb,4)}, {O}"

    def mf(u, par):
        if 16 <= u < 20:
            f, qb = 16 + 2 * (u & 1), (u - 16) >> 1
            return (m1(f, qb, par), m1(f + 1, qb, par))
        return (m1(u, 0, par), m1(u, 1, par))

    def max_ops(par):
        S = V_S[par]
        t = V_T
        ops = [f"v_max3_f32 v{t+k}, v{S+3*k}, v{S+3*k+1}, v{S+3*k+2}" for k in range(5)]
        ops += [f"v_max3_f32 v{t}, v{t}, v{t+1}, v{t+2}", f"v_max3_f32 v{t+3}, v{t+3}, v{t+4}, v{S+15}",
                f"v_max_f32 v{V_MAX}, v{t}, v{t+3}", f"v_cmp_lt_f32 vcc, s{S_T}, v{V_MAX}"]
        return ops

    def soft_ops(par):
        S, P = V_S[par], V_P[par]
        ops = []
        for k in range(9):
            if k < 8:
                ops += [f"v_exp_f32 v{S+2*k}, v{S+2*k}", f"v_exp_f32 v{S+2*k+1}, v{S+2*k+1}"]
            if k > 0:
                j = k - 1
                ops += [f"v_cvt_pk_bf16_f32 v{P+j}, v{S+2*j}, v{S+2*j+1}",
                        f"v_add_f32 v{V_L0+(j>>2)}, v{V_L0+(j>>2)}, v{S+2*j}", f"v_add_f32 v{V_L0+(j>>2)}, v{V_L0+(j>>2)}, v{S+2*j+1}"]
        return ops

    def mask_ops(par, t):
        S = V_S[par]
        ops = [[f"s_sub_u32 s54, {t}, s3", "s_lshl_b32 s54, s54, 5", f"v_subrev_u32 v{V_X}, s54, v{V_D0}"]]
        for h in range(4):
            for r in range(4 * h, 4 * h + 4):
                ops.append(f"v_cmp_le_i32 s[{64+2*(r%8)}:{65+2*(r%8)}], {16*(((r>>2)&1) - (r>>3)) + (r&3)}, v{V_X}")
            if h > 0:
                for r in range(4 * h - 4, 4 * h):
                    ops.append(f"v_cndmask_b32 v{S+r}, v{V_NEGBIG}, v{S+r}, s[{64+2*(r%8)}:{65+2*(r%8)}]")
        ops.append("s_nop 0")
        for r in range(12, 16):
            ops.append(f"v_cndmask_b32 v{S+r}, v{V_NEGBIG}, v{S+r}, s[{64+2*(r%8)}:{65+2*(r%8)}]")
        return ops

    def waits(fill, lo, hi, shift=0):
        for f in range(lo, hi, WG):
            r = a(A_F + ((f + WG - 1) % 16) * 4, 4)
            w = lambda e, r=r: wait_reg(e, r)
            w.salu, w.cost = True, SC
            fill.setdefault(f - 1 - shift, []).append(w)

    def place(fill, ops, g0, step=2):
        fill.setdefault(g0, []).append(ops[0])
        for j, d in enumerate(ops[1:]):
            fill.setdefault(g0 + 1 + step * j, []).append(d)

    rare_sites = {0: [], 1: []}
    stubs = Seg("a_stubs")

    def rare_check(e, par, name):
        k = len(rare_sites[par])
        rare_sites[par].append(name)
        e(f"s_cbranch_vccnz A_ST_{name}" if not opt.get("x_drop") else "s_nop 0")
        e.label(f"A_RET_{name}")
        stubs.label(f"A_ST_{name}")
        stubs(f"s_mov_b32 s{S_RET}, {k}")
        stubs(f"s_branch A_RARE{par}")

    V_EV, V_EA = V_X + 4, V_X + 8

    def e_setup():
        ops = ["v_lshrrev_b32 v24, 3, v0", "v_mul_u32_u24 v24, 896, v24", "v_bfe_u32 v25, v0, 2, 1", "v_bfe_u32 v26, v0, 4, 1",
               "v_xor_b32 v25, v25, v26", "v_lshl_add_u32 v24, v25, 6, v24", "v_and_b32 v25, 3, v0",
               f"v_lshl_add_u32 v{V_EV}, v25, 4, v24"]
        ops += [f"v_add_u32 v{V_EV+j}, {j*7168 - j*1024}, v{V_EV}" for j in range(1, 4)]
        ops += [f"s_mul_i32 s56, s{S_HEAD}, 229376", "s_mul_i32 s4, s3, 57344", "s_add_u32 s56, s56, s4",
                f"s_mul_i32 s57, s{S_HEAD}, 100352", "s_mul_i32 s4, s3, 28672", "s_add_u32 s57, s57, s4",
                "s_lshl_b32 s60, s3, 13"]
        ops += ["v_lshrrev_b32 v24, 5, v0", "v_bfe_u32 v25, v0, 2, 2", "v_lshl_add_u32 v24, v24, 2, v25", "v_lshlrev_b32 v24, 7, v24",
                "v_lshl_add_u32 v24, v26, 5, v24", "v_and_b32 v25, 3, v0", "v_lshl_add_u32 v24, v25, 3, v24", "v_bfe_u32 v25, v0, 3, 1",
                f"v_lshl_add_u32 v{V_EA}, v25, 6, v24", f"v_xor_b32 v{V_EA+1}, 64, v{V_EA}",
                "v_lshrrev_b32 v24, 5, v0", f"v_lshl_add_u32 v{V_EA+2}, v24, 9, v{V_EA}", f"v_xor_b32 v{V_EA+3}, 64, v{V_EA+2}"]
        ops += [f"s_lshl_b32 s62, s{S_HEAD}, 6", f"s_lshl_b32 s4, s{S_QT}, 2", "s_add_u32 s62, s62, s4", "s_add_u32 s62, s62, s3",
                "s_mul_i32 s62, s62, 28672", f"s_add_u32 s62, s62, {Y_OFF}"]
        return ops

    def e_dma(tag="edma"):
        ops = []
        for grp in range(2):
            ops.append(["s_add_u32 s61, s58, s60", f"s_add_u32 m0, s61, {grp*4096}", f"s_add_u32 s61, s56, {grp*32*896}"])
            for j in range(4):
                ops.append((f"buffer_load_dwordx4 v{V_EV+j}, s[{S_WO}:{S_WO+3}], s61 offen offset:{j*1024} lds", tag))
        ops.append([f"s_add_u32 m0, s59, s{S_W4K}", "s_add_u32 s56, s56, 128"])
        for j in range(4):
            ops.append((f"buffer_load_dwordx4 v{V_EV+j}, s[{S_W2}:{S_W2+3}], s57 offen offset:{j*1024} lds", tag))
        ops.append("s_add_u32 s57, s57, 128")
        return ops

    EO = (0x8000, 0x14000, 0x20000)
    E2 = (0x10000, 0x1c000, 0x0)

    e.wait_tag("q")
    e.wait_tag("k0")
    e.wait(lgkm=0)
    e("s_barrier")
    HS = opt["stash"]
    for k in range(7):
        e(f"ds_write_b128 v{V_HA}, {v(HS+4*k,4)} offset:{k*1024}")
    for f in range(D):
        e(rd(f, 0, 0))
    spine = [mf(f, 1) for f in range(16)]
    fill = {}
    waits(fill, 0, 16)
    for f in range(16):
        nf = f + D
        if nf == 16:
            fill.setdefault(f, []).extend([lambda e: e.wait_tag("k1"), lambda e: e.wait(lgkm=0), "s_barrier"])
        fill.setdefault(f, []).append(rd(nf % 16, 0 if nf < 16 else 1, 0))
    weave2(e, spine, fill)
    run(e, idx_ops(S_OFF + 0, 4))
    e(f"s_cmp_gt_u32 s{S_NH}, 4")
    e(f"s_cselect_b32 s{S_DELTA}, 0x8000, s{S_NEG}")
    run(e, dmaK(0, S_OFF + 0, "k4"))
    stamp(e, opt, 1, raw=True)
    stamp(e, opt, "a_loop", raw=True)
    e(f"s_mov_b32 s{S_RET}, 0")
    e("s_branch A_FIRST")
    pro = e
    stateL, stateV = list(e.lds), [("dma", frozenset())] * 63

    def step(e, p, n=None, q0=False):
        par = p & 1
        SALU_COST[0] = SC
        nm = (f"Q{p}" if q0 else f"L{p}") if n is None else f"P{n}"
        sx = "_Q" if q0 else ""
        if p == 1:
            e(f"s_cmp_eq_u32 s{S_IT}, s{S_ITSW}")
            e(f"s_cbranch_scc1 A_SW1")
            e.label(f"A_SW1_RET_{nm}")
        spine = [mf(f, par) for f in range(32)]
        fill = {}
        waits(fill, 0, 32)
        vb = p * 16384 if n not in VSLOT else VSLOT[n] - 0x10000
        gb = 32 - D
        if n == 32:
            fill.setdefault(-1, []).append(f"v_add_u32 v{V_VA}, 0x10000, v{V_VA}")
            vb = 0
        for f in range(32):
            nf = f + D
            if nf == 32 and (n is None or n <= 30):
                vm = {None: 8, 28: 10, 29: 18, 30: 0}[n]
                if q0:
                    fill.setdefault(f, []).extend([lambda e: e.wait_tags((f"k{p+2}", f"v{p+1}")), "s_barrier"])
                elif n is None and p == 2:
                    fill.setdefault(f, []).append([f"s_cmp_eq_u32 s{S_IT}, s{S_ITSW}", "s_cbranch_scc1 A_ALTW",
                                                   lambda e, vm=vm: e.wait_force(vm=vm), "A_ALTW_RET:", "s_barrier"])
                else:
                    fill.setdefault(f, []).extend([lambda e, vm=vm: e.wait_force(vm=vm), "s_barrier"])
            if nf < 32:
                fill.setdefault(f, []).append(rd(nf, (p + 1) % 4, vb))
            elif n != 32:
                fill.setdefault(f, []).append(rd(nf - 32, (p + 2) % 4, 0))
        if n is None or n <= 28:
            place(fill, dmaV(0x10000 + ((p + 2) % 4) * 16384, S_OFF + (p + 2) % 4, f"v{p+2}"), 0, 4)
        if n is None or n <= 28:
            o = [f"s_add_u32 s{S_OFF+(p+1)%4}, s{S_OFF+p}, s{S_DELTA}"]
            if p == 1:
                d = S_OFF + 2
                o += [[f"s_cmp_eq_u32 s{S_IT}, s{S_ITH}", f"s_cselect_b32 s{d}, s{S_OFFH}, s{d}", f"s_cselect_b32 s{S_DELTA}, s{S_NEG}, s{S_DELTA}"],
                      [f"s_cmp_eq_u32 s{S_IT}, 6", f"s_cselect_b32 s{d}, s{S_OFFD}, s{d}", f"s_cselect_b32 s{S_DELTA}, 0x8000, s{S_DELTA}"]]
            place(fill, dmaK((p + 1) % 4, S_OFF + (p + 1) % 4, f"k{p+5}"), gb + 1, 3)
            late_o = o
        else:
            late_o = []
        if n == 29:
            place(fill, dmaV(0x10000 + 3 * 16384, S_OFF + 3), 0, 1)
            place(fill, dmaV(VSLOT[32], S_OFF + 0), 6, 1)
            place(fill, dmaV(VSLOT[33], S_OFF + 1), 12, 1)
        if n == 28:
            fill.setdefault(14, []).append((f"buffer_load_dword v{V_PD}, v{V_X+1}, s[{S_WO}:{S_WO+3}], 0 offen", "pf"))
            fill.setdefault(16, []).append((f"buffer_load_dword v{V_PD}, v{V_X+2}, s[{S_W2}:{S_W2+3}], 0 offen", "pf"))
            pour(fill, e_setup(), 9, 31)
        if n == 30:
            fill.setdefault(gb, []).extend([f"s_mov_b32 s58, {EO[0]}", f"s_mov_b32 s59, {E2[0]}"])
            pour(fill, e_dma("e0"), gb + 1, 32)
        if n is None and p == 3:
            fill.setdefault(gb + 3, []).append([f"s_cmp_eq_u32 s{S_IT}, s{S_ITSIG}", "s_cbranch_scc1 A_SIG", f"A_SIG_RET{sx}:"])
        if n is None and p == 2:
            if not q0:
                fill.setdefault(17, []).append([f"s_bitcmp1_b32 10, s{S_IT}", "s_cbranch_scc1 A_KV2L", "A_KV2L_RET:"])
            fill.setdefault(gb + 3, []).append([f"s_cmp_lt_u32 s{S_IT}, s{S_PUB}", "s_cbranch_scc1 A_KV2S", f"A_KV2S_RET{sx}:"])
        if n == 31:
            fill.setdefault(2, []).extend([lambda e: flag_line(e, 55, FL_PAIR, S_PAIR), f"v_mov_b32 v{V_X+12}, 8"])
            fill.setdefault(4, []).append((f"buffer_load_dwordx2 {v(V_X+14,2)}, v{V_X+12}, s[{S_WS}:{S_WS+3}], s55 offen sc1", "ep"))
        if n is None and p == 0 and KPF:
            fill.setdefault(9, []).append([f"s_max_i32 s53, s{S_PFO}, 0", "s_min_i32 s53, s53, 60", "s_lshl_b32 s53, s53, 15",
                                           f"s_add_u32 s53, s53, s{S_KVB}"])
            fill.setdefault(11, []).append((f"buffer_load_dword v{V_PD}, v{V_KP}, s[{S_WS}:{S_WS+3}], s53 offen", "pf"))
            fill.setdefault(12, []).append(f"s_add_i32 s{S_PFO}, s{S_PFO}, s{S_PFD}")
        if n is None and p == 3 and NEPF:
            fill.setdefault(10, []).append((f"buffer_load_dword v{V_PD}, v{V_X+1}, s[{S_WO}:{S_WO+3}], 0 offen", "pf"))
            fill.setdefault(12, []).append((f"buffer_load_dword v{V_PD}, v{V_X+2}, s[{S_W2}:{S_W2+3}], 0 offen", "pf"))
            if NEPF == 3:
                fill.setdefault(14, []).append((f"global_load_dword v{V_PD}, v{V_X+3}, s[80:81]", "pf"))
        if n is None:
            RW, X_, T_, OU = V_X + 24, V_X + 28, V_T + 6, V_T + 10
            h = p >> 1
            if p == 0 and q0:
                fill.setdefault(0, []).append(f"ds_read_b128 {v(RW,4)}, v{V_HA}")
            elif p == 0:
                fill.setdefault(0, []).append(f"ds_write_b128 v{V_HA}, {v(OU,4)}")
                fill.setdefault(2, []).append(f"ds_read_b128 {v(RW,4)}, v{V_HA} offset:1024")
                fill.setdefault(3, []).append(f"v_add_u32 v{V_HA}, 0x400, v{V_HA}")
            if p % 2 == 0:
                sl = []
                for r in range(2):
                    sl += [f"v_lshlrev_b32 v{X_+2*r}, 16, v{RW+2*h+r}", f"v_and_b32 v{X_+2*r+1}, 0xffff0000, v{RW+2*h+r}"]
                sl += [f"v_exp_f32 v{T_+r}, -v{X_+r}" for r in range(4)]
            else:
                sl = [f"v_fma_f32 v{T_+r}, v{T_+r}, s{S_QS}, s{S_QS}" for r in range(4)]
                sl += [f"v_rcp_f32 v{T_+r}, v{T_+r}" for r in range(4)]
                sl += [f"v_mul_f32 v{T_+r}, v{T_+r}, v{X_+r}" for r in range(4)]
                sl += [f"v_cvt_pk_bf16_f32 v{OU+2*h+r}, v{T_+2*r}, v{T_+2*r+1}" for r in range(2)]
            silu = sl
        else:
            silu = []
        if n == 28:
            fill.setdefault(-1, []).extend([f"ds_write_b128 v{V_HA}, {v(V_T+10,4)}", f"v_subrev_u32 v{V_HA}, 0x1800, v{V_HA}"])
            for k in range(7):
                fill.setdefault(k, []).append(f"ds_read_b128 {a(A_HF+4*k,4)}, v{V_HA} offset:{k*1024}")
        so = soft_ops(par)
        mo = (mask_ops(par ^ 1, n - 29) if n is not None and n >= 29 else []) + max_ops(par ^ 1)
        sa = [x for x in so if not x.startswith("v_add")]
        pour(fill, sa, 0, 17)
        pour(fill, late_o, 10, gb + 2)
        pour(fill, mo, 18, 32)
        if opt.get("x_nosilu"):
            silu = [x for x in silu if x.startswith(("ds_", "v_add_u32"))]
        if opt.get("x_pk"):
            adds = [x for x in so if x.startswith("v_add")]
            so = sa + [f"v_add_pk {k}" for k in range(8)]
        pour(fill, silu, 16 if p == 0 else 0, 32)
        if q0:
            kv3 = opt["kv2"][3]
            cut = [0, 32, 64, 96, len(kv3)]
            pour(fill, kv3[cut[p]:cut[p+1]], 0, 12 if p == 3 else 32)
        for x in so:
            if x.startswith("v_add_pk"):
                k = int(x.split()[1])
                S_ = V_S[par]
                acc = V_NM + 8 + 2 * (k >> 2)
                g0 = [g for g in fill for y in fill[g] if isinstance(y, str) and y.startswith(f"v_exp_f32 v{S_+2*k+1},")][0]
                g = min(range(g0 + 1, 32), key=lambda g: (load_of(fill, g), g))
                fill[g].append(f"v_pk_add_f32 {v(acc,2)}, {v(acc,2)}, {v(S_+2*k,2)}")
            elif x.startswith("v_add"):
                src = x.split(",")[-1].strip()
                g0 = [g for g in fill for y in fill[g] if isinstance(y, str) and y.startswith(f"v_exp_f32 {src},")][0]
                g = min(range(g0 + 1, 32), key=lambda g: (load_of(fill, g), g))
                fill[g].append(x)
        if n is None:
            def drop(pred):
                for g in fill:
                    fill[g] = [x for x in fill[g] if not pred(x)]
            txt = lambda x: x[0] if isinstance(x, tuple) else (x if isinstance(x, str) else "")
            if opt.get("x_nobar"):
                drop(lambda x: txt(x) == "s_barrier")
            if opt.get("x_nodma"):
                drop(lambda x: " lds" in txt(x))
            if opt.get("x_novalu"):
                drop(lambda x: txt(x).startswith(("v_exp", "v_add_f32", "v_cvt", "v_max", "v_mul", "v_rcp", "v_fma", "v_lshl", "v_and")))
            for pat in opt.get("x_drop", []):
                drop(lambda x: txt(x).startswith(pat))
            if opt.get("x_noexp"):
                for g in fill:
                    fill[g] = [x.replace("v_exp_f32", "v_mov_b32").replace("v_rcp_f32", "v_mov_b32") if isinstance(x, str) else x for x in fill[g]]
        if opt.get("verbose"):
            print(gap_report(f"step {nm}", fill, 32), [load_of(fill, g) for g in range(32)])
        weave2(e, spine, fill)
        if p == 1:
            e(f"s_cmp_eq_u32 s{S_IT}, s{S_ITSW}")
            e("s_cbranch_scc1 A_SW2")
        rare_check(e, par, nm)
        SALU_COST[0] = 1

    q0 = Seg("a_q0", stateL, pro.vm)
    q0.label("A_Q0")
    for p in range(4):
        step(q0, p, q0=True)
    q0(f"s_mov_b32 s{S_IT}, 1")
    assert q0.lds == stateL
    lp = Seg("a_loop", stateL, stateV)
    lp.label("A_LOOP")
    for p in range(4):
        step(lp, p)
    lp(f"s_add_u32 s{S_IT}, s{S_IT}, 1")
    for it in range(1, 8):
        if f"ai{it}" in opt.get("sp", []):
            lp(f"s_cmp_lg_u32 s{S_IT}, {it}")
            lp(f"s_cbranch_scc1 A_NS{it}")
            stamp(lp, opt, f"ai{it}", raw=True)
            lp.label(f"A_NS{it}")
    lp(f"s_bitcmp1_b32 20, s{S_IT}")
    lp("s_cbranch_scc1 A_KV2C")
    lp(f"s_cmp_lt_u32 s{S_IT}, 7")
    lp("s_cbranch_scc1 A_LOOP")
    stamp(lp, opt, "a_lend", raw=True)
    assert lp.lds == stateL

    peel = {}
    for n in range(28, 33):
        sg = Seg(f"a_p{n}", stateL, stateV)
        step(sg, n % 4, n)
        if n == 31:
            sg(f"s_cmp_ge_u32 s{S_QT}, 8")
            sg("s_cbranch_scc1 A_EARLY")
            sg.label("A_EARLY_RET")
        if n >= 29 and n < 32:
            sg(f"s_cmp_eq_u32 s3, {n-29}")
            sg(f"s_cbranch_scc1 A_TAILW{n-29}")
        peel[n] = sg

    def signal(e):
        flag_line(e, 55, FL_PAIR, S_PAIR)
        flag_set(e, S_WS, 55, 1, V_X + 12)
        e(f"s_mov_b32 s{S_PEND}, 0")

    def tail_body(e, par):
        e.wait(lgkm=0)
        for f in range(16, 16 + D):
            e(rd(f, 0, 0))
        so = soft_ops(par)
        sa = [x for x in so if not x.startswith("v_add")]
        run(e, sa[:20])
        spine = [mf(f, par) for f in range(16, 32)]
        fill = {}
        waits(fill, 16, 32, 16)
        for f in range(16, 32):
            if f + D < 32:
                fill.setdefault(f - 16, []).append(rd(f + D, 0, 0))
        fill.setdefault(0, []).extend(sa[20:])
        pour(fill, [x for x in so if x.startswith("v_add")], 1, 14)
        weave2(e, spine, fill)

    t3 = Seg("a_tail1", stateL, stateV)
    t3(f"v_add_u32 v{V_VA}, 0x4000, v{V_VA}")
    t3.label("A_TAIL1")
    tail_body(t3, 1)
    t3.label("A_FIN")
    t0 = Seg("a_tail0", stateL, stateV)
    t0.label("A_TAILW0")
    t0(f"v_add_u32 v{V_VA}, 0x8000, v{V_VA}")
    t0("s_branch A_TAIL0")
    t0.label("A_TAILW1")
    t0(f"v_add_u32 v{V_VA}, 0xc000, v{V_VA}")
    t0("s_branch A_TAIL1")
    t0.label("A_TAILW2")
    t0(f"v_add_u32 v{V_VA}, 0x10000, v{V_VA}")
    t0.label("A_TAIL0")
    tail_body(t0, 0)
    t0("s_cmp_lg_u32 s3, 0")
    t0("s_cbranch_scc1 A_FIN")
    t0.wait_force(vm=0)
    t0("s_barrier")
    t0(f"s_mov_b32 s58, {EO[0]}")
    t0(f"s_mov_b32 s59, {E2[0]}")
    run(t0, e_dma("e0"))
    t0(f"s_cmp_eq_u32 s{S_PEND}, 0")
    t0("s_cbranch_scc1 A_FIN")
    signal(t0)
    t0("s_branch A_FIN")

    def ret_chain(e, names):
        for k, nm in enumerate(names[:-1]):
            e(f"s_cmp_eq_u32 s{S_RET}, {k}")
            e(f"s_cbranch_scc1 A_RET_{nm}")
        e(f"s_branch A_RET_{names[-1]}")

    def across(e, regs, tmp, op):
        for step in (16, 32):
            for k, r in enumerate(regs):
                e(f"v_mov_b32 v{tmp+k}, v{r}")
            e.nop(2)
            for k, r in enumerate(regs):
                e(f"v_permlane{step}_swap_b32 v{r}, v{tmp+k}")
            for k, r in enumerate(regs):
                e(f"{op} v{r}, v{r}, v{tmp+k}")

    def row_max(e, S):
        t = V_T
        for qb in range(2):
            b = S + 8 * qb
            e(f"v_max3_f32 v{t+qb}, v{b}, v{b+1}, v{b+2}")
            e(f"v_max3_f32 v{t+2+qb}, v{b+3}, v{b+4}, v{b+5}")
            e(f"v_max3_f32 v{t+qb}, v{t+qb}, v{b+6}, v{b+7}")
            e(f"v_max_f32 v{t+qb}, v{t+qb}, v{t+2+qb}")
        across(e, (t, t + 1), t + 2, "v_max_f32")

    def rare(par):
        e = Seg(f"a_rare{par}", stateL, stateV)
        e.label(f"A_RARE{par}")
        S = V_S[par ^ 1]
        t = V_T
        row_max(e, S)
        for qb in range(2):
            e(f"v_max_f32 v{t+qb}, 0, v{t+qb}")
            e(f"v_exp_f32 v{t+4+qb}, -v{t+qb}")
        for r in range(16):
            e(f"v_sub_f32 v{S+r}, v{S+r}, v{t+(r>>3)}")
        for r in range(8):
            e(f"v_sub_f32 v{V_NM+r}, v{V_NM+r}, v{t+(r>>2)}")
        e(f"v_mul_f32 v{V_L0}, v{V_L0}, v{t+4}")
        e(f"v_mul_f32 v{V_L1}, v{V_L1}, v{t+5}")
        for r in range(128):
            e(f"v_mul_f32 v{V_O+r}, v{V_O+r}, v{t+4+((r>>3)&1)}")
        ret_chain(e, rare_sites[par])
        return e

    r0, r1 = rare(0), rare(1)

    fs = Seg("a_first", stateL, stateV)
    e = fs
    e.label("A_FIRST")
    t = V_T
    row_max(e, V_S[0])
    for r in range(16):
        e(f"v_sub_f32 v{V_S[0]+r}, v{V_S[0]+r}, v{t+(r>>3)}")
    for r in range(8):
        e(f"v_sub_f32 v{V_NM+r}, 0, v{t+(r>>2)}")
    e(f"s_cmp_eq_u32 s{S_RET}, 0")
    e("s_cbranch_scc1 A_Q0")
    e(f"s_cmp_eq_u32 s{S_IT}, 7")
    e("s_cbranch_scc1 A_RET_P29")
    e(f"s_cmp_eq_u32 s{S_IT}, 0")
    e("s_cbranch_scc1 A_RET_Q1")
    e("s_branch A_RET_L1")

    sw1 = Seg("a_sw1", stateL, stateV)
    e = sw1
    e.label("A_SW1")
    for r in range(64):
        e(f"v_accvgpr_mov_b32 a{A_Q+r}, a{A_Q2+r}")
    e(f"v_mov_b32 v{V_MS}, v{V_NM}")
    e(f"v_mov_b32 v{V_MS+1}, v{V_NM+4}")
    for r in range(0, 8, 2):
        e(f"v_mov_b64 {v(V_NM+r,2)}, 0")
    e(f"s_cmp_eq_u32 s{S_IT}, 7")
    e("s_cbranch_scc1 A_SW1_RET_P29")
    e(f"s_cmp_eq_u32 s{S_IT}, 0")
    e("s_cbranch_scc1 A_SW1_RET_Q1")
    e("s_branch A_SW1_RET_L1")

    def part_addr(e):
        e(f"s_lshl_b32 s54, s{S_PAIR}, 2")
        e("s_add_u32 s54, s54, s3")
        e("s_lshl_b32 s55, s54, 10")
        e(f"s_add_u32 s55, s55, {ML_OFF}")
        e("s_lshl_b32 s54, s54, 14")
        e(f"s_add_u32 s54, s54, {OP_OFF}")

    sw2 = Seg("a_sw2", stateL, stateV)
    e = sw2
    e.label("A_SW2")
    part_addr(e)
    t = V_X + 12
    e(f"v_lshrrev_b32 v{t+2}, 1, v{V_L16}")
    e(f"buffer_store_dwordx2 {v(V_MS,2)}, v{t+2}, s[{S_WS}:{S_WS+3}], s55 offen sc1")
    e(f"buffer_store_dwordx2 {v(V_L0,2)}, v{t+2}, s[{S_WS}:{S_WS+3}], s55 offen offset:512 sc1")
    for k in range(16):
        if k and k % 4 == 0:
            e("s_add_u32 s54, s54, 4096")
        u = t + 4 + (k % 2) * 4
        for r in range(4):
            o = V_O + 8 * k + 2 * r
            e(f"v_cvt_pk_bf16_f32 v{u+r}, v{o}, v{o+1}")
        for r in range(4):
            e(f"v_mov_b64 {v(V_O+8*k+2*r,2)}, 0")
        e(f"buffer_store_dwordx4 {v(u,4)}, v{V_L16}, s[{S_WS}:{S_WS+3}], s54 offen offset:{(k%4)*1024} sc1")
    e(f"v_mov_b64 {v(V_L0,2)}, 0")
    e(f"s_mov_b32 s{S_PEND}, 1")
    e(f"s_mov_b32 s{S_RET}, 1")
    e("s_branch A_FIRST")

    sig = Seg("a_sig", stateL, stateV)
    sig.label("A_SIG")
    signal(sig)
    sig(f"s_cmp_eq_u32 s{S_IT}, 0")
    sig("s_cbranch_scc1 A_SIG_RET_Q")
    sig("s_branch A_SIG_RET")
    S_HA, S_SLOT, V_FO, kv3 = opt["kv2"]
    sig.label("A_KV2S")
    flag_line(sig, 55, FL_KV2, S_HA)
    sig(f"s_lshl_b32 s53, s{S_IT}, 13")
    sig("s_add_u32 s55, s55, s53")
    flag_set(sig, S_WS, 55, f"s{S_SLOT}", V_X + 12)
    sig(f"s_cmp_eq_u32 s{S_IT}, 0")
    sig("s_cbranch_scc1 A_KV2S_RET_Q")
    sig("s_branch A_KV2S_RET")
    sig.label("A_KV2L")
    flag_line(sig, 85, FL_KV2, S_HEAD)
    sig(f"s_lshr_b32 s53, s{S_IT}, 1")
    sig("s_lshl_b32 s53, s53, 13")
    sig("s_add_u32 s85, s85, s53")
    sig.raw(f"buffer_load_dwordx2 v[6:7], v{V_FO}, s[{S_WS}:{S_WS+3}], s85 offen sc1", "pf")
    sig("s_branch A_KV2L_RET")
    sig.label("A_KV2C")
    sig.wait_force(vm=8)
    if not NEPF:
        sig(f"s_cmp_lg_u32 s{S_IT}, 4")
        sig("s_cbranch_scc1 A_NOEPF")
        sig(f"global_load_dword v{V_PD}, v{V_X+3}, s[80:81]", "pf")
        sig.label("A_NOEPF")
    sig("s_mov_b32 s53, 0")
    sig.label("A_KV2P")
    flag_test(sig, 6)
    sig("s_cbranch_scc1 A_LOOP")
    sig("s_sleep 2")
    sig(f"buffer_load_dwordx2 v[6:7], v{V_FO}, s[{S_WS}:{S_WS+3}], s85 offen sc1")
    sig.wait_force(vm=0)
    sig("s_add_u32 s53, s53, 1")
    sig(f"s_cmp_lt_u32 s53, {opt.get('poll_max', 200000)}")
    sig("s_cbranch_scc1 A_KV2P")
    sig("s_branch A_LOOP")
    sig.label("A_ALTW")
    sig.wait_force(vm=26)
    sig("s_branch A_ALTW_RET")

    e = Seg("a_fin", [], stateV)
    stamp(e, opt, 2)
    stamp(e, opt, "a_fin")
    t = V_T
    CT = V_S[0]
    e(f"s_cmp_ge_u32 s{S_QT}, 8")
    e("s_cbranch_scc1 A_MERGE")
    across(e, (V_L0, V_L1), t, "v_add_f32")
    e(f"v_rcp_f32 v{t}, v{V_L0}")
    e(f"v_rcp_f32 v{t+2}, v{V_L1}")
    e.nop(1)
    e(f"v_mov_b32 v{t+1}, v{t}")
    e(f"v_mov_b32 v{t+3}, v{t+2}")
    for k in range(64):
        e(f"v_pk_mul_f32 {v(V_O+2*k,2)}, {v(V_O+2*k,2)}, {v(t+2*((k>>2)&1),2)}")
        if k:
            e(f"v_cvt_pk_bf16_f32 v{CT+k-1}, v{V_O+2*k-2}, v{V_O+2*k-1}")
    e(f"v_cvt_pk_bf16_f32 v{CT+63}, v{V_O+126}, v{V_O+127}")
    e("s_branch A_EPI")
    fin = e

    ML = V_X + 16

    def part_loads(e):
        part_addr(e)
        e(f"v_lshrrev_b32 v{V_X+12}, 1, v{V_L16}")
        e(f"buffer_load_dwordx2 {v(ML,2)}, v{V_X+12}, s[{S_WS}:{S_WS+3}], s55 offen sc1")
        e(f"buffer_load_dwordx2 {v(ML+2,2)}, v{V_X+12}, s[{S_WS}:{S_WS+3}], s55 offen offset:512 sc1")
        for k in range(16):
            if k and k % 4 == 0:
                e("s_add_u32 s54, s54, 4096")
            e(f"buffer_load_dwordx4 {a(A_Q2+4*k,4)}, v{V_L16}, s[{S_WS}:{S_WS+3}], s54 offen offset:{(k%4)*1024} sc1")

    early = Seg("a_early", stateL, peel[31].vm)
    e = early
    e.label("A_EARLY")
    flag_test(e, V_X + 14)
    e("s_cbranch_scc0 A_EARLY_RET")
    part_loads(e)
    e(f"s_mov_b32 s{S_PEND}, 2")
    e("s_branch A_EARLY_RET")

    mg = Seg("a_merge", [], stateV)
    e = mg
    e.label("A_MERGE")
    e(f"s_cmp_eq_u32 s{S_PEND}, 2")
    e("s_cbranch_scc1 A_HAVE")
    flag_line(e, 55, FL_PAIR, S_PAIR)
    e(f"v_mov_b32 v{t}, 8")
    e("s_mov_b32 s53, 0")
    e.label("A_POLL")
    e(f"buffer_load_dwordx2 {v(t+2,2)}, v{t}, s[{S_WS}:{S_WS+3}], s55 offen sc1")
    e.wait_force(vm=0)
    flag_test(e, t + 2)
    e("s_cbranch_scc1 A_POLL_OK")
    e("s_sleep 4")
    e("s_add_u32 s53, s53, 1")
    e(f"s_cmp_lt_u32 s53, {opt.get('poll_max', 200000)}")
    e("s_cbranch_scc1 A_POLL")
    e.label("A_POLL_OK")
    part_loads(e)
    e.label("A_HAVE")
    W = V_X + 20
    for qb in range(2):
        nm = V_NM + 4 * qb
        c1, c2 = t + 2 * qb, t + 4 + 2 * qb
        e(f"v_min_f32 v{W+qb}, v{nm}, v{ML+qb}")
        e(f"v_sub_f32 v{c1}, v{W+qb}, v{nm}")
        e(f"v_sub_f32 v{c2}, v{W+qb}, v{ML+qb}")
        e(f"v_exp_f32 v{c1}, v{c1}")
        e(f"v_exp_f32 v{c2}, v{c2}")
        e.nop(1)
        e(f"v_mul_f32 v{W+qb}, v{c2}, v{ML+2+qb}")
        e(f"v_fma_f32 v{W+qb}, v{V_L0+qb}, v{c1}, v{W+qb}")
    across(e, (W, W + 1), W + 2, "v_add_f32")
    for qb in range(2):
        c1, c2 = t + 2 * qb, t + 4 + 2 * qb
        e(f"v_rcp_f32 v{W+qb}, v{W+qb}")
        e.nop(1)
        e(f"v_mul_f32 v{c1}, v{c1}, v{W+qb}")
        e(f"v_mul_f32 v{c2}, v{c2}, v{W+qb}")
        e(f"v_mov_b32 v{c1+1}, v{c1}")
        e(f"v_mov_b32 v{c2+1}, v{c2}")
    for k in range(64):
        e(f"v_pk_mul_f32 {v(V_O+2*k,2)}, {v(V_O+2*k,2)}, {v(t+2*((k>>2)&1),2)}")
    for k in range(64):
        u = t + 8 + (k % 2) * 2
        e(f"v_accvgpr_read_b32 v{u+1}, a{A_Q2+k}")
        if k:
            e(f"v_cvt_pk_bf16_f32 v{CT+k-1}, v{V_O+2*k-2}, v{V_O+2*k-1}")
        e(f"v_lshlrev_b32 v{u}, 16, v{u+1}")
        e(f"v_and_b32 v{u+1}, 0xffff0000, v{u+1}")
        e(f"v_pk_fma_f32 {v(V_O+2*k,2)}, {v(u,2)}, {v(t+4+2*((k>>2)&1),2)}, {v(V_O+2*k,2)}")
    e(f"v_cvt_pk_bf16_f32 v{CT+63}, v{V_O+126}, v{V_O+127}")

    e = Seg("a_epi", [], [])
    e.label("A_EPI")
    stamp(e, opt, 3)
    stamp(e, opt, "a_epi")
    YA = (V_O, V_O + 16)
    YP = V_O + 32
    VC = V_O + 48
    ED = opt.get("e_depth", 7)
    NFE, NT = 46, 7
    NF = NFE * NT

    def erd(f):
        c, r = divmod(f, NFE)
        seg, ks = divmod(r, 23)
        if ks < 16:
            off, du = EO[c % 3] + (32 * (ks >> 1) + 4 * (ks & 1)) * 128, 2048
            base = (V_EA + 2, VC + 2, VC + 4)[off >> 16] + seg
        else:
            off, du = E2[c % 3] + 16 * (ks - 16) * 128, 1024
            base = (V_EA, VC)[off >> 16] + seg
        off &= 0xffff
        return [f"ds_read_b64_tr_b16 {a(A_F+(f%8)*4+2*u,2)}, v{base} offset:{off+u*du}" for u in range(2)]

    def ecvt(c, seg):
        ops = [f"v_cvt_pk_bf16_f32 v{YP+8*seg+r}, v{YA[seg]+2*r}, v{YA[seg]+2*r+1}" for r in range(8)]
        st = [(f"buffer_store_dwordx4 {v(YP+8*seg+4*k,4)}, v{V_L16}, s[{S_WS}:{S_WS+3}], s62 offen offset:{seg*2048+k*1024}{YM}",
               "ya" if c < 4 else "yb") for k in range(2)]
        if seg == 1 and c < NT - 1:
            st.append("s_add_u32 s62, s62, 4096")
        return ops, st

    def edma_at(t):
        return [[f"s_mov_b32 s58, {EO[t%3]}", f"s_mov_b32 s59, {E2[t%3]}"]] + e_dma(f"e{t}")

    for k in range(2):
        e(f"v_add_u32 v{VC+k}, 0x10000, v{V_EA+k}")
        e(f"v_add_u32 v{VC+2+k}, 0x10000, v{V_EA+2+k}")
        e(f"v_add_u32 v{VC+4+k}, 0x20000, v{V_EA+2+k}")
    for j in range(8):
        for r in range(4):
            e(f"v_permlane16_swap_b32 v{CT+8*j+r}, v{CT+8*j+4+r}")
    e.wait_force(vm=0)
    e("s_barrier")
    for f in range(ED):
        run(e, erd(f))
    spine, fill = [], {}
    for f in range(NF):
        c, r = divmod(f, NFE)
        seg, ks = divmod(r, 23)
        B = v(CT + 4 * ks, 4) if ks < 16 else a(A_HF + 4 * (ks - 16), 4)
        acc = v(YA[seg], 16)
        spine.append(f"{MFMA} {acc}, {a(A_F+(f%8)*4,4)}, {B}, {'0' if ks == 0 else acc}")
        nf = f + ED
        if nf < NF:
            if nf % NFE == 0:
                t = nf // NFE
                ops = [lambda e, t=t: e.wait_tag(f"e{t}")]
                if t == 6:
                    ops.append(lambda e: e.wait_tag("ya"))
                if t <= 4:
                    ops.append(lambda e: e.wait(lgkm=0))
                fill.setdefault(f, []).extend(ops + ["s_barrier"])
            fill.setdefault(f, []).extend(erd(nf))
        if f % 2 == 0:
            rr = a(A_F + (min(f + 1, NF - 1) % 8) * 4, 4)
            fill.setdefault(f - 1, []).append(lambda e, rr=rr: wait_reg(e, rr))
    if hooks:
        hooks(fill, NFE, ED)
    spread(fill, edma_at(1), 0, 20)
    spread(fill, edma_at(2), 20, 52)
    for t in range(3, NT):
        g0 = max((t - 2) * NFE - ED + 1, 52)
        spread(fill, edma_at(t), g0, (t - 1) * NFE - ED)
    for c in range(NT):
        o, st = ecvt(c, 0)
        pour(fill, o + st, c * NFE + 27, c * NFE + 44)
        if c < NT - 1:
            o, st = ecvt(c, 1)
            if c == NT - 2 and hooks:
                pour(fill, o, (c + 1) * NFE + 4, (c + 1) * NFE + 21)
                fill.setdefault((c + 1) * NFE + 25, []).append(st[0])
                fill.setdefault((c + 1) * NFE + 26, []).extend(st[1:])
            else:
                pour(fill, o + st, (c + 1) * NFE + 4, (c + 1) * NFE + 21)
    if opt.get("verbose"):
        print(gap_report("epilogue", fill, NF), [load_of(fill, g) for g in range(NF)])
    weave(e, spine, fill)
    e.nop(12)
    o, st = ecvt(NT - 1, 1)
    run(e, o + st)
    if finish:
        finish(e)
    e.label(end_label)
    e("s_endpgm")
    epi = e

    pl = [peel[n] for n in range(28, 33)]
    segs = [pro, q0, lp] + pl + [t3, fin, mg, epi, t0, stubs, r0, r1, fs, sw1, sw2, sig, early]
    traces = [
        [pro, fs, q0, lp, lp] + pl + [t3, fin, epi],
        [lp, peel[28], peel[29], t0, fin, mg, epi],
        [lp, r1, lp], [peel[28], r0, peel[29]], [peel[28], sw1, peel[29], sw2, fs, peel[30]], [sig], [stubs],
        [peel[30], peel[31], t0], [peel[29], peel[30], t3], [peel[31], early, peel[32], t3, fin],
    ]
    return segs, traces
```

```python
import re

REG_RE = re.compile(r"^(-?)(?:abs\()?([vas])(?:(\d+)|\[(\d+):(\d+)\])\)?$")
TRANS = ("v_exp_f32", "v_log_f32", "v_rcp_f32", "v_rsq_f32", "v_sqrt_f32", "v_sin_f32", "v_cos_f32")


def regs_of(tok):
    tok = tok.strip()
    if tok in ("vcc", "exec", "m0", "scc"):
        return [(tok, 0)]
    if tok in ("vcc_lo", "vcc_hi"):
        return [("vcc", 0)]
    if tok in ("exec_lo", "exec_hi"):
        return [("exec", 0)]
    m = REG_RE.match(tok)
    if not m:
        return []
    f = m.group(2)
    if m.group(3) is not None:
        return [(f, int(m.group(3)))]
    return [(f, i) for i in range(int(m.group(4)), int(m.group(5)) + 1)]


class Ins:
    __slots__ = ("text", "op", "rd", "wr", "kind", "n", "srcc", "passes", "tag")

    def __init__(self, text, tag=None):
        self.text = text
        self.tag = tag
        t = text.split(";")[0].strip()
        self.rd, self.wr, self.srcc, self.passes, self.n = set(), set(), set(), 0, 0
        if t.endswith(":"):
            self.op, self.kind = t, "label"
            return
        if not t or t.startswith("."):
            self.op, self.kind = t, "dir"
            return
        parts = t.split(None, 1)
        op = parts[0]
        self.op = op
        rest = parts[1] if len(parts) > 1 else ""
        ops = [o.strip() for o in rest.split(",")] if rest else []
        mods = []
        if ops:
            last = ops[-1].split()
            ops[-1] = last[0] if last else ""
            mods = last[1:]
        R = [regs_of(o) for o in ops]

        def rd(i):
            for r in R[i]:
                self.rd.add(r)

        def wr(i):
            for r in R[i]:
                self.wr.add(r)

        if op == "s_nop":
            self.kind, self.n = "nop", int(ops[0], 0) + 1
        elif op == "s_waitcnt":
            self.kind = "wait"
        elif op == "s_barrier":
            self.kind = "barrier"
        elif op in ("s_endpgm", "s_setprio", "s_sleep"):
            self.kind = "salu"
        elif op.startswith("s_cbranch") or op == "s_branch":
            self.kind = "branch"
            if "scc" in op:
                self.rd.add(("scc", 0))
            if "vcc" in op:
                self.rd.add(("vcc", 0))
            if "exec" in op:
                self.rd.add(("exec", 0))
        elif op.startswith("s_load") or op in ("s_memtime", "s_memrealtime"):
            self.kind = "smem"
            wr(0)
            for i in range(1, len(ops)):
                rd(i)
        elif op.startswith("s_cmp") or op.startswith("s_bitcmp"):
            self.kind = "salu"
            for i in range(len(ops)):
                rd(i)
            self.wr.add(("scc", 0))
        elif op.startswith("s_"):
            self.kind = "salu"
            wr(0)
            for i in range(1, len(ops)):
                rd(i)
            if op.startswith("s_cselect") or op.startswith("s_addc") or op.startswith("s_subb"):
                self.rd.add(("scc", 0))
            if "saveexec" in op:
                self.rd.add(("exec", 0))
                self.wr.add(("exec", 0))
            if not (op.startswith("s_mov") or op.startswith("s_mul") or op.startswith("s_cselect") or op.startswith("s_getreg") or op.startswith("s_getpc")):
                self.wr.add(("scc", 0))
            if op in ("s_addk_i32", "s_mulk_i32"):
                rd(0)
        elif op.startswith("v_mfma"):
            self.kind = "mfma"
            wr(0)
            rd(1)
            rd(2)
            rd(3)
            self.srcc = set(R[3])
            self.passes = 8 if "32x32" in op else 4
        elif op.startswith("ds_read") or op.startswith("ds_bpermute") or op.startswith("ds_swizzle"):
            self.kind = "ds_rd"
            wr(0)
            for i in range(1, len(ops)):
                rd(i)
        elif op.startswith("ds_write"):
            self.kind = "ds_wr"
            for i in range(len(ops)):
                rd(i)
        elif op.startswith("buffer_load") and "lds" in mods:
            self.kind = "vm_dma"
            for i in range(len(ops)):
                rd(i)
            self.rd.add(("m0", 0))
        elif op.startswith("buffer_load") or op.startswith("global_load"):
            self.kind = "vm_ld"
            if tag != "pf":
                wr(0)
            for i in range(1, len(ops)):
                rd(i)
        elif op.startswith("buffer_store") or op.startswith("global_store"):
            self.kind = "vm_st"
            for i in range(len(ops)):
                rd(i)
            if op.endswith("x4") or op.endswith("x3"):
                di = 0 if op.startswith("buffer") else 1
                self.srcc = set(R[di])
        elif op.startswith("buffer_atomic") or op.startswith("global_atomic"):
            self.kind = "vm_st"
            for i in range(len(ops)):
                rd(i)
            if "sc0" in mods and tag != "pf":
                self.kind = "vm_ld"
                wr(0)
        elif op in ("buffer_wbl2", "buffer_inv"):
            self.kind = "vm_st"
        elif op.startswith("v_"):
            base = op.replace("_e32", "").replace("_e64", "")
            self.kind = "trans" if base in TRANS else "valu"
            wr(0)
            st = 1
            if base in ("v_add_co_u32", "v_sub_co_u32", "v_addc_co_u32"):
                wr(1)
                st = 2
            for i in range(st, len(ops)):
                rd(i)
            if base.startswith("v_fmac") or base.startswith("v_dot2c") or base.startswith("v_pk_fmac"):
                rd(0)
            if base.startswith("v_permlane"):
                rd(0)
                wr(1)
            self.rd.add(("exec", 0))
        else:
            raise ValueError("unknown instruction: " + text)

    def states(self):
        if self.kind == "nop":
            return self.n
        if self.kind in ("label", "dir"):
            return 0
        return 1


def parse_wait(text):
    vm = re.search(r"vmcnt\((\d+)\)", text)
    lg = re.search(r"lgkmcnt\((\d+)\)", text)
    return (int(vm.group(1)) if vm else None, int(lg.group(1)) if lg else None)


class Seg:
    def __init__(self, name, lds=None, vm=None):
        self.name = name
        self.ins = []
        self.lds = list(lds) if lds else []
        self.vm = list(vm) if vm else []

    def raw(self, text, tag=None):
        i = Ins(text, tag)
        self.ins.append(i)
        return i

    def _need(self, i):
        touched = i.rd | i.wr
        nl = None
        for k, d in enumerate(self.lds):
            if d & touched:
                nl = len(self.lds) - 1 - k
        nv = None
        for k, (tg, d) in enumerate(self.vm):
            if d & touched:
                nv = len(self.vm) - 1 - k
        return nv, nl

    def wait(self, vm=None, lgkm=None):
        parts = []
        if vm is not None and vm < len(self.vm):
            assert vm <= 63
            parts.append(f"vmcnt({vm})")
            self.vm = self.vm[len(self.vm) - vm:] if vm else []
        if lgkm is not None and lgkm < len(self.lds):
            lgkm = min(lgkm, 15)
            parts.append(f"lgkmcnt({lgkm})")
            self.lds = self.lds[len(self.lds) - lgkm:] if lgkm else []
        if parts:
            self.raw("s_waitcnt " + " ".join(parts))

    def wait_force(self, vm=None, lgkm=None):
        parts = []
        if vm is not None:
            parts.append(f"vmcnt({vm})")
            if vm < len(self.vm):
                self.vm = self.vm[len(self.vm) - vm:] if vm else []
        if lgkm is not None:
            parts.append(f"lgkmcnt({lgkm})")
            if lgkm < len(self.lds):
                self.lds = self.lds[len(self.lds) - lgkm:] if lgkm else []
        self.raw("s_waitcnt " + " ".join(parts))

    def wait_tag(self, tag):
        last = None
        for k, (tg, d) in enumerate(self.vm):
            if tg == tag:
                last = k
        if last is not None:
            self.wait(vm=min(63, len(self.vm) - 1 - last))

    def wait_tags(self, tags):
        last = None
        for k, (tg, d) in enumerate(self.vm):
            if tg in tags:
                last = k
        if last is not None:
            self.wait(vm=min(63, len(self.vm) - 1 - last))

    def __call__(self, text, tag=None):
        i = Ins(text, tag)
        nv, nl = self._need(i)
        if nv is not None or nl is not None:
            self.wait(vm=None if nv is None else min(nv, 63), lgkm=nl)
        self.ins.append(i)
        if i.kind == "ds_rd":
            self.lds.append(frozenset(i.wr))
        elif i.kind == "ds_wr":
            self.lds.append(frozenset())
        elif i.kind == "smem":
            self.lds.append(frozenset(i.wr))
            self.lds.append(frozenset(i.wr))
        elif i.kind == "vm_ld":
            self.vm.append((tag, frozenset(i.wr)))
        elif i.kind in ("vm_st", "vm_dma"):
            self.vm.append((tag, frozenset()))
        elif i.kind == "wait":
            vm, lg = parse_wait(text)
            if vm is not None and vm < len(self.vm):
                self.vm = self.vm[len(self.vm) - vm:] if vm else []
            if lg is not None and lg < len(self.lds):
                self.lds = self.lds[len(self.lds) - lg:] if lg else []
        return i

    def label(self, name):
        self.raw(name + ":")

    def nop(self, n):
        while n > 0:
            k = min(n, 16)
            self.raw(f"s_nop {k-1}")
            n -= k

    def text(self):
        out = []
        for i in self.ins:
            t = re.sub(r"\[(\d)_(\d)_(\d)_(\d)\]", r"[\1,\2,\3,\4]", i.text)
            out.append(t if i.kind in ("label",) else "  " + t)
        return "\n".join(out) + "\n"


def is_valu(i):
    return i.kind in ("valu", "trans")


def required(p, c):
    need = 0
    vreg = lambda s: {r for r in s if r[0] in ("v", "a")}
    sreg = lambda s: {r for r in s if r[0] in ("s", "vcc")}
    if is_valu(p):
        w = vreg(p.wr)
        if c.kind == "mfma" and w & c.rd:
            need = max(need, 2)
        if is_valu(c) and w & c.rd:
            if c.op.startswith("v_readfirstlane") or c.op.startswith("v_readlane"):
                need = max(need, 1)
            if c.op.startswith("v_permlane") or "dpp" in c.text:
                need = max(need, 2)
            if p.kind == "trans" and c.kind != "trans":
                need = max(need, 1)
            if "sdwa" in p.text and "dst_sel:DWORD" not in p.text:
                need = max(need, 1)
        ws = sreg(p.wr)
        if ws:
            if is_valu(c) and ws & c.rd:
                need = max(need, 4 if c.op.startswith(("v_readlane", "v_writelane")) else 2)
            if c.kind.startswith("vm_") and ws & c.rd:
                need = max(need, 5)
    if p.kind == "mfma":
        idx = {4: 0, 8: 1}[p.passes]
        d = p.wr
        if c.kind == "mfma":
            if d & c.srcc:
                if not (c.srcc == d and c.passes == p.passes):
                    need = max(need, (6, 10)[idx])
            ab = c.rd - c.srcc if not (c.rd - c.srcc) <= c.srcc else set()
            toks = c.text.split(None, 1)[1].split(",")
            abr = set(regs_of(toks[1])) | set(regs_of(toks[2]))
            if d & abr:
                need = max(need, (8, 12)[idx])
            if d & c.wr and not (c.srcc == d):
                need = max(need, (6, 10)[idx])
        elif is_valu(c):
            if d & (c.rd | c.wr):
                need = max(need, (8, 12)[idx])
            if p.srcc & c.wr:
                need = max(need, (3, 7)[idx])
        elif c.kind in ("ds_rd", "ds_wr", "vm_ld", "vm_st", "vm_dma"):
            if d & (c.rd | c.wr):
                need = max(need, (8, 12)[idx])
            if p.srcc & c.wr:
                need = max(need, (3, 7)[idx])
    if p.kind == "salu" and ("m0", 0) in p.wr and c.kind == "vm_dma":
        need = max(need, 1)
    if p.kind == "vm_st" and p.srcc and p.srcc & c.wr:
        need = max(need, 2 if is_valu(c) else 1)
    return need


def check_trace(name, ins, fix=False):
    probs = []
    real = [i for i in ins if i.kind not in ("label", "dir")]
    for k, c in enumerate(real):
        dist = 0
        j = k - 1
        while j >= 0 and dist < 20:
            p = real[j]
            r = required(p, c)
            if r > dist:
                probs.append(f"[{name}] hazard need {r} have {dist}: '{p.text}' -> '{c.text}'")
            dist += p.states()
            j -= 1
    lds, vm = [], []
    for c in real:
        touched = c.rd | c.wr
        for d, t in lds:
            if d & touched:
                probs.append(f"[{name}] missing lgkm wait: '{t}' -> '{c.text}'")
        for d, t in vm:
            if d & touched:
                probs.append(f"[{name}] missing vm wait: '{t}' -> '{c.text}'")
        if c.kind == "ds_rd":
            lds.append((frozenset(c.wr), c.text))
        elif c.kind == "ds_wr":
            lds.append((frozenset(), c.text))
        elif c.kind == "smem":
            lds.insert(len(lds), (frozenset(c.wr), c.text + " (smem)"))
        elif c.kind == "vm_ld":
            vm.append((frozenset(c.wr), c.text))
        elif c.kind in ("vm_st", "vm_dma"):
            vm.append((frozenset(), c.text))
        elif c.kind == "wait":
            v, l = parse_wait(c.text)
            if v is not None and v < len(vm):
                vm = vm[len(vm) - v:] if v else []
            if l is not None:
                if l == 0:
                    lds = []
                elif any("(smem)" in t for d, t in lds):
                    pass
                elif l < len(lds):
                    lds = lds[len(lds) - l:]
    return probs


def fix_hazards(seg, prev=()):
    out = [i for i in prev if i.kind not in ("label", "dir")]
    base = len(out)
    res = []
    for c in seg.ins:
        if c.kind in ("label", "dir"):
            res.append(c)
            continue
        dist, j, pad = 0, len(out) - 1, 0
        while j >= 0 and dist < 20:
            p = out[j]
            r = required(p, c)
            if r > dist:
                pad = max(pad, r - dist)
            dist += p.states()
            j -= 1
        while pad > 0:
            k = min(pad, 16)
            n = Ins(f"s_nop {k-1}")
            out.append(n)
            res.append(n)
            pad -= k
        out.append(c)
        res.append(c)
    seg.ins = res


def weave(seg, spine, fillers):
    def put(x):
        if isinstance(x, list):
            for y in x:
                put(y)
        elif callable(x):
            x(seg)
        elif isinstance(x, tuple):
            seg(x[0], x[1])
        else:
            seg(x)
    for x in fillers.get(-1, []):
        put(x)
    for g, m in enumerate(spine):
        put(m)
        for x in fillers.get(g, []):
            put(x)


def spread(fill, items, g0, g1, per=None):
    n = len(items)
    if n == 0:
        return
    span = g1 - g0
    for k, it in enumerate(items):
        g = g0 + (k * span) // n
        fill.setdefault(g, []).append(it)


VMEM_COST = [1]
SALU_COST = [1]


def cost_of(x):
    if isinstance(x, list):
        return sum(cost_of(y) for y in x)
    if callable(x):
        return getattr(x, "cost", 1)
    t = x[0] if isinstance(x, tuple) else x
    if t.endswith(":"):
        return 0
    op = t.split()[0]
    if op in TRANS:
        return 2
    if op.startswith(("buffer_", "global_")):
        return VMEM_COST[0]
    if op.startswith("s_") and not op.startswith(("s_cbranch", "s_branch", "s_barrier", "s_nop")):
        return SALU_COST[0]
    return 1


def load_of(fill, g):
    return sum(cost_of(x) for x in fill.get(g, []))


def pour(fill, items, g0, g1):
    if not items:
        return
    gaps = list(range(g0, g1))
    base = [load_of(fill, g) for g in gaps]
    total = sum(cost_of(x) for x in items)
    lo, hi = 0.0, max(base) + total
    for _ in range(50):
        mid = (lo + hi) / 2
        if sum(max(0.0, mid - b) for b in base) >= total:
            hi = mid
        else:
            lo = mid
    free = [max(0.0, hi - b) for b in base]
    cum, acc = [], 0.0
    for f in free:
        acc += f
        cum.append(acc)
    pos, gi = 0.0, 0
    for x in items:
        c = cost_of(x)
        mid = pos + c / 2.0
        while gi < len(gaps) - 1 and cum[gi] < mid:
            gi += 1
        fill.setdefault(gaps[gi], []).append(x)
        pos += c


def run(e, ops):
    for x in ops:
        if isinstance(x, list):
            run(e, x)
        elif callable(x):
            x(e)
        elif isinstance(x, tuple):
            e(x[0], x[1])
        else:
            e(x)


def wait_reg(e, regs):
    rs = set(regs_of(regs))
    n = None
    for k, d in enumerate(e.lds):
        if d & rs:
            n = len(e.lds) - 1 - k
    if n is not None:
        e.wait(lgkm=n)


def gap_report(name, fill, n):
    loads = [load_of(fill, g) for g in range(n)]
    return f"{name}: gaps {n} total {sum(loads)} max {max(loads)} avg {sum(loads)/n:.2f} over5 {sum(max(0,l-5) for l in loads)} over6 {sum(max(0,l-6) for l in loads)}"


def _rw(x):
    if callable(x) and getattr(x, "salu", False):
        return set(), set(), False
    if callable(x) or isinstance(x, list):
        return set(), set(), True
    t, tag = (x if isinstance(x, tuple) else (x, None))
    i = Ins(t, tag)
    rigid = i.kind not in ("valu", "trans", "ds_rd")
    return i.rd - {("exec", 0)}, i.wr, rigid


def _is_salu(x):
    if callable(x):
        return getattr(x, "salu", False)
    if isinstance(x, (list, tuple)):
        return False
    return x.startswith("s_") and not x.startswith(("s_cbranch", "s_branch", "s_barrier", "s_nop"))


def _order(items):
    out = list(items)
    for k, y in enumerate(out):
        if _is_salu(y):
            ok = True
            ry, wy = (set(), set()) if callable(y) else (Ins(y).rd, Ins(y).wr)
            for x in out[:k]:
                rx, wx, rigid = _rw(x)
                t = x[0] if isinstance(x, tuple) else x
                if callable(x) or isinstance(x, list) or t.startswith("s_") or t.endswith(":"):
                    ok = False
                elif (wx & (ry | wy)) or (rx & wy) or ("exec", 0) in wy:
                    ok = False
            if ok:
                out.insert(0, out.pop(k))
            break
    return out


def _flat(items):
    for x in items:
        if isinstance(x, list):
            yield from _flat(x)
        else:
            yield x


def _time(items):
    fl = list(_flat(items))
    t = 0
    for k, x in enumerate(fl):
        if k == 0 and (_is_salu(x) or callable(x)):
            continue
        t += 1 if callable(x) else (2 if (x[0] if isinstance(x, tuple) else x).split()[0] in TRANS else (0 if (x[0] if isinstance(x, tuple) else x).endswith(":") else 1))
    return max(2, t)


W2_ORDER = [1]


def weave2(seg, pairs, fillers):
    run(seg, fillers.get(-1, []))
    for g, (ma, mb) in enumerate(pairs):
        items = fillers.get(g, [])
        n = len(items)
        info = [_rw(x) for x in items]
        best = None
        for mask in range(1 << n) if n <= 10 else [0]:
            ok = True
            for i in range(n):
                if not ok:
                    break
                if mask >> i & 1:
                    for j in range(i + 1, n):
                        if not (mask >> j & 1):
                            ri, wi, gi = info[i]
                            rj, wj, gj = info[j]
                            both_ds = all(isinstance(items[k], str) and items[k].startswith("ds_") for k in (i, j))
                            if gi or gj or both_ds or (wi & (rj | wj)) or (ri & wj):
                                ok = False
                                break
            if ok:
                L = _order([x for k, x in enumerate(items) if not mask >> k & 1])
                R = _order([x for k, x in enumerate(items) if mask >> k & 1])
                cl, cr = sum(map(cost_of, L)), sum(map(cost_of, R))
                key = (_time(L) + _time(R), abs(cl - cr), mask)
                if best is None or key < best[0]:
                    best = (key, L, R)
        seg(ma)
        run(seg, best[1])
        seg(mb)
        run(seg, best[2])
```

```python
from emit import *
from common import *
import attn
from attn import S_HEAD, S_QT, S_W4K, S_PAIR, S_WS, S_WO, S_W2, A_Q, A_Q2, A_HF, V_L16, V_PD
import math

NAME = "parallel_sum__compressed_kv_cla__dense_activation_silu__prompt_kernel"
LDS_BYTES = 160 * 1024
S_CKV, S_W, S_X, S_WQ, S_W1, S_QST, S_OUT = 8, 12, 20, 24, 28, 68, 24
SA, SB, S_LP, S_W8K, S_KVSTR, S_KIND, S_BO, S_KVBASE, S_KVC, S_QB, S_QC, S_XNB, S_XNF = 53, 54, 55, 56, 57, 58, 59, 60, 61, 62, 63, 66, 67
S_HA, S_KVSLOT = 76, 77
V_PA, V_PB, V_FO, V_FL = 3, 4, 5, 6
V_AA, V_AB, V_DA, V_DB = 8, 12, 16, 24
V_FA, V_FB, V_XN = 32, 64, 96
V_AB16, V_AA16, V_WR, V_ST = 8, 212, 224, 7
V_DQ, V_D1, V_AT, V_T = 208, 212, 216, 224
SLOT_ORDER = [8, 9, 0, 1, 4, 5, 2, 3, 6, 7]
V_AT3 = 212
S_KVE, S_EARLY, S_GOTQ, S_GM = 24, 72, 75, 72
H_ACC = (64, 80, 224, 240)
V_GP = V_XN + 46
VPQ, VPK = V_XN + 4, V_XN + 8

def gen_mega(opt):
    ST = opt.get("kv_store_mod", " sc1")
    attn.KVM[0] = opt.get("kv_load_mod", "")
    opt = dict(opt)
    opt.setdefault("y_store_mod", " sc1")
    opt["spk"] = ""
    PFD = 2
    XNM = opt.get('xn_mod', ' sc1')
    A16 = opt.get("a16", 1)
    NPF = 2
    PMAX = opt.get("poll_max", 200000)
    e = Seg("m_pro")
    e.label(NAME)
    e("s_cmp_ge_u32 s2, 256")
    e("s_cbranch_scc1 M_END")
    stamp(e, opt, "entry")
    load_kernargs(e)
    e("s_getpc_b64 s[50:51]")
    e.label("M_PC0")
    if not opt.get("no_cpf0"):
        e("s_lshr_b32 s5, s2, 3")
        e("s_lshl_b32 s5, s5, 11")
        e("v_lshrrev_b32 v1, 4, v0")
        e("v_lshl_add_u32 v1, v1, 7, s5")
        e("v_min_u32 v1, M_B-M_PC0, v1")
        e(f"global_load_dword v{V_PD}, v1, s[50:51]", "pf")
    e("v_lshrrev_b32 v1, 6, v0")
    e("v_and_b32 v0, 63, v0")
    e("v_readfirstlane_b32 s3, v1")
    e("s_and_b32 s4, s2, 7")
    e("s_lshl_b32 s4, s4, 1")
    e("s_lshr_b32 s5, s2, 3")
    e("s_and_b32 s34, s5, 7")
    e("s_lshr_b32 s35, s5, 3")
    e("s_and_b32 s42, s35, 1")
    e("s_add_u32 s42, s42, s4")
    e(f"s_lshr_b32 s{S_KIND}, s35, 1")
    e(f"s_lshr_b32 s{S_QT}, s5, 1")
    e(f"s_and_b32 s{S_HEAD}, s5, 1")
    e(f"s_add_u32 s{S_HEAD}, s{S_HEAD}, s4")
    e("s_and_b32 s36, s3, 1")
    e("s_lshr_b32 s37, s3, 1")
    L31, HI, G, R4, C = 224, 225, 226, 227, 228
    e(f"v_and_b32 v{L31}, 31, v0")
    e(f"v_lshrrev_b32 v{HI}, 5, v0")
    e(f"v_lshrrev_b32 v{G}, 4, v0")
    e(f"v_bfe_u32 v{R4}, v0, 2, 2")
    e(f"v_and_b32 v{C}, 3, v0")
    e("s_and_b32 s7, s35, 1")
    e("s_lshl_b32 s7, s7, 1")
    e("s_add_u32 s7, s7, s37")
    e("s_sub_u32 s39, 3, s7")
    e("s_add_u32 s7, s7, 4")
    e("s_cmp_ge_u32 s35, 2")
    e("s_cselect_b32 s7, s7, s39")
    e("s_lshl_b32 s7, s7, 3")
    e("s_add_u32 s7, s7, s34")
    e("s_lshl_b32 s7, s7, 1")
    e("s_add_u32 s7, s7, s36")
    e("s_lshl_b32 s7, s7, 4")
    e("v_lshrrev_b32 v6, 2, v0")
    e("v_add_u32 v6, s7, v6")
    e(f"v_lshlrev_b32 v{V_PA}, 11, v6")
    e("v_bfe_u32 v7, v0, 1, 1")
    e(f"v_lshl_add_u32 v7, v7, 7, v{V_PA}")
    e("s_lshl_b32 s7, s34, 3")
    e("s_lshl_b32 s39, s3, 1")
    e("s_add_u32 s7, s7, s39")
    e(f"v_add_u32 v6, s7, v{HI}")
    e("v_lshlrev_b32 v6, 13, v6")
    e("v_bfe_u32 v5, v0, 3, 2")
    e("v_lshl_add_u32 v6, v5, 7, v6")
    e("s_lshl_b32 s7, s42, 9")
    e(f"v_add_u32 v{V_PB}, s7, v6")
    e("v_bfe_u32 v6, v0, 2, 1")
    e(f"v_lshl_add_u32 v5, v6, 19, v{V_PB}")
    e("v_lshrrev_b32 v1, 3, v0")
    e.wait_force(lgkm=0)
    e(f"s_mov_b32 s{S_HA}, s42")
    e(f"s_lshl_b32 s{S_KVSLOT}, s{S_KIND}, 3")
    e(f"s_add_u32 s{S_KVSLOT}, s{S_KVSLOT}, s34")
    e(f"s_lshl_b32 s{S_KVSLOT}, s{S_KVSLOT}, 3")
    srd(e, S_CKV, P_CKV, CKV_BYTES)
    e(f"s_cmp_eq_u32 s{S_KIND}, 0")
    e(f"s_cselect_b32 s{S_W}, s{P_WUK}, s{P_WUV}")
    e(f"s_cselect_b32 s{S_W+1}, s{P_WUK+1}, s{P_WUV+1}")
    e(f"s_mov_b32 s{S_W+2}, {WU_BYTES:#x}")
    e(f"s_mov_b32 s{S_W+3}, 0x20000")
    stamp(e, opt, 0)
    stamp(e, opt, "karg")
    e(f"buffer_load_dword v{V_PD}, v7, s[{S_CKV}:{S_CKV+3}], 0 offen", "pf")
    e(f"buffer_load_dword v{V_PD}, v5, s[{S_W}:{S_W+3}], 0 offen", "pf")
    e("v_add_u32 v144, 256, v7")
    e("v_add_u32 v145, 0x100000, v5")
    e(f"v_add_u32 v{V_PA}, {PFD*128}, v{V_PA}")
    e(f"v_add_u32 v{V_PB}, {PFD*0x80000}, v{V_PB}")
    e("s_lshl_b32 s7, s36, 1")
    e("s_sub_u32 s39, 3, s7")
    e("s_add_u32 s7, s7, 4")
    e("s_cmp_eq_u32 s37, 1")
    e("s_cselect_b32 s7, s7, s39")
    e("s_mov_b32 s39, 0xfff80000")
    e("s_cselect_b32 s39, 0x80000, s39")
    e("s_lshl_b32 s7, s7, 3")
    e("s_add_u32 s7, s7, s34")
    e("s_lshl_b32 s7, s7, 5")
    e("v_add_u32 v6, s7, v1")
    e("v_lshlrev_b32 v6, 11, v6")
    e("v_and_b32 v7, 7, v0")
    e(f"v_xor_b32 v7, v7, v{G}")
    e("v_lshlrev_b32 v7, 4, v7")
    for j in range(8):
        if j == 4:
            e("v_add_u32 v6, s39, v6")
        e(f"v_xor_b32 v{V_DA+j}, {((j ^ (j >> 1)) & 1) << 6}, v7")
        e(f"v_add_u32 v{V_DA+j}, v{V_DA+j}, v6")
        if j & 3:
            e(f"v_add_u32 v{V_DA+j}, {(j&3)*(16384-1024)}, v{V_DA+j}")
    e("s_lshl_b32 s7, s3, 4")
    e(f"v_add_u32 v6, s7, v{HI}")
    e("v_lshlrev_b32 v6, 13, v6")
    e(f"s_lshl_b32 s7, s{S_HA}, 9")
    e("v_add_u32 v6, s7, v6")
    e(f"v_lshrrev_b32 v7, 2, v{L31}")
    e(f"v_xor_b32 v7, v7, v{HI}")
    e("v_lshlrev_b32 v7, 6, v7")
    e(f"v_lshl_add_u32 v7, v{C}, 4, v7")
    for j in range(8):
        e(f"v_xor_b32 v{V_DB+j}, {((j&1)<<7) ^ (48 * ((j >> 2) & 1) if A16 else 0)}, v7")
        e(f"v_add_u32 v{V_DB+j}, v{V_DB+j}, v6")
        if j:
            e(f"v_add_u32 v{V_DB+j}, {j*16384-(j&3)*1024}, v{V_DB+j}")
    e(f"s_lshl_b32 s{S_W8K}, s3, 13")
    e(f"s_mov_b32 s{SA}, 0")
    e(f"s_mov_b32 s{SB}, 0")

    def dma_items(b):
        it = []
        for j in range(8):
            pre = [f"s_add_u32 m0, s{S_W8K}, {b*32768 + (j>>2)*4096}"] if (j & 3) == 0 else []
            post = [f"s_add_u32 s{SA}, s{SA}, 128"] if j == 7 else []
            it.append((pre, f"buffer_load_dwordx4 v{V_DA+j}, s[{S_CKV}:{S_CKV+3}], s{SA} offen offset:{(j&3)*1024} lds", post))
        for j in range(8):
            pre = [f"s_add_u32 m0, s{S_W8K}, {65536 + b*32768 + (j>>2)*4096}"] if (j & 3) == 0 else []
            post = [f"s_add_u32 s{SB}, s{SB}, 0x80000"] if j == 7 else []
            it.append((pre, f"buffer_load_dwordx4 v{V_DB+j}, s[{S_W}:{S_W+3}], s{SB} offen offset:{(j&3)*1024} lds", post))
        return it

    NK3 = opt.get('nk3', 12) if A16 else 8
    q = Seg("tmp")
    srd(q, S_WS, P_WS, WS_BYTES)
    srd(q, S_X, P_X, X_BYTES)
    srd(q, S_WQ, P_WQ, WQ_BYTES)
    srd(q, S_W1, P_W1, W1_BYTES)
    if not A16:
        q("s_lshl_b32 s7, s36, 7")
        q(f"v_add_u32 v6, s7, v{L31}")
        q("v_lshlrev_b32 v6, 7, v6")
        q(f"v_bfe_u32 v7, v{L31}, 1, 3")
        q(f"v_xor_b32 v7, v7, v{HI}")
        q("v_lshl_add_u32 v6, v7, 4, v6")
        for k in range(4):
            q(f"v_xor_b32 v{V_AA+k}, {k<<5}, v6")
        q(f"v_lshrrev_b32 v6, 1, v{G}")
        q(f"v_lshl_add_u32 v6, v6, 3, v{R4}")
        q("v_lshlrev_b32 v6, 9, v6")
        q("s_lshl_b32 s7, s37, 8")
        q("s_add_u32 s7, s7, 0x10000")
        q("v_add_u32 v6, s7, v6")
        q(f"v_and_b32 v7, 1, v{G}")
        q("v_lshl_add_u32 v6, v7, 5, v6")
        q(f"v_lshl_add_u32 v6, v{C}, 3, v6")
        for nb in range(4):
            q(f"v_xor_b32 v7, {nb}, v{R4}")
            q(f"v_lshl_add_u32 v{V_AB+nb}, v7, 6, v6")
    else:
        q("v_and_b32 v6, 15, v0")
        q("s_lshl_b32 s7, s36, 7")
        q("v_add_u32 v6, s7, v6")
        q("v_lshlrev_b32 v6, 7, v6")
        q("v_bfe_u32 v7, v0, 1, 3")
        q(f"v_xor_b32 v7, v7, v{G}")
        q(f"v_lshl_add_u32 v{V_AA16}, v7, 4, v6")
        q(f"v_xor_b32 v{V_AA16+1}, 64, v{V_AA16}")
        q(f"v_lshl_add_u32 v6, v{G}, 3, v{R4}")
        q("v_lshlrev_b32 v6, 9, v6")
        q("s_lshl_b32 s7, s37, 8")
        q("s_add_u32 s7, s7, 0x10000")
        q("v_add_u32 v6, s7, v6")
        q(f"s_sub_u32 s7, 1, s{S_KIND}")
        q(f"v_lshrrev_b32 v7, s7, v{C}")
        q("v_and_b32 v7, 1, v7")
        q("v_lshl_add_u32 v6, v7, 3, v6")
        q(f"v_and_b32 v7, 1, v{G}")
        q("v_mul_u32_u24 v7, 3, v7")
        q(f"v_lshl_add_u32 v7, v{R4}, 2, v7")
        q(f"v_lshrrev_b32 v231, s{S_KIND}, v{C}")
        q("v_and_b32 v231, 1, v231")
        q("v_lshlrev_b32 v231, s7, v231")
        q("v_xor_b32 v7, v7, v231")
        q("v_lshl_add_u32 v6, v7, 4, v6")
        for i in range(8):
            nat, perm = i << 5, ((i >> 1) << 6) | ((i & 1) << 4)
            if nat == perm:
                q(f"v_xor_b32 v{V_AB16+i}, {nat}, v6")
            else:
                q(f"s_mul_i32 s7, s{S_KIND}, {nat - perm}")
                q(f"s_add_u32 s7, s7, {perm}")
                q(f"v_xor_b32 v{V_AB16+i}, s7, v6")
    q("s_lshl_b32 s7, s3, 4")
    q(f"v_add_u32 v6, s7, v{G}")
    q(f"v_xor_b32 v7, v{R4}, v{G}")
    q("v_lshlrev_b32 v7, 6, v7")
    q(f"v_lshl_add_u32 v7, v{C}, 4, v7")
    q(f"s_lshl_b32 s38, s{S_HEAD}, 9")
    q(f"v_lshlrev_b32 v{V_DQ}, 13, v6")
    q(f"v_add3_u32 v{V_DQ}, v{V_DQ}, v7, s38")
    for j in range(1, 4):
        q(f"v_add_u32 v{V_DQ+j}, {j*4*8192 - j*1024}, v{V_DQ}")
    q(f"s_mul_i32 s39, s{S_HEAD}, 224")
    q(f"v_mul_u32_u24 v{V_D1+3}, 3584, v6")
    q(f"v_add3_u32 v{V_D1+3}, v{V_D1+3}, v7, s39")
    q(f"v_lshrrev_b32 v6, 1, v{G}")
    q(f"v_lshl_add_u32 v6, v6, 3, v{R4}")
    q("v_lshlrev_b32 v6, 8, v6")
    q(f"v_and_b32 v7, 1, v{G}")
    q("v_lshl_add_u32 v6, v7, 5, v6")
    q(f"v_lshl_add_u32 v6, v{C}, 3, v6")
    for nb in range(4):
        q(f"v_xor_b32 v7, {nb}, v{R4}")
        q(f"v_lshl_add_u32 v{V_AT+nb}, v7, 6, v6")
        q(f"v_add_u32 v{V_AT+4+nb}, 0x10000, v{V_AT+nb}")
    q(f"s_mul_i32 s7, s{S_QT}, 28")
    q("s_mul_i32 s6, s3, 7")
    q("s_add_u32 s7, s7, s6")
    q("v_lshrrev_b32 v6, 2, v0")
    q("v_add_u32 v6, s7, v6")
    q("v_lshlrev_b32 v7, 13, v6")
    q(f"v_lshl_add_u32 v7, v{C}, 7, v7")
    q("v_add_u32 v7, s38, v7")
    q("v_subrev_u32 v6, 7, v6")
    q("v_mul_u32_u24 v6, 3584, v6")
    q(f"v_min_u32 v231, 2, v{C}")
    q("v_lshl_add_u32 v6, v231, 7, v6")
    q("v_add_u32 v6, s39, v6")
    q(f"v_min_u32 v6, {W1_BYTES-4}, v6")
    q("v_cmp_gt_u32 vcc, 28, v0")
    q("s_lshr_b32 s7, s2, 3")
    q("s_lshl_b32 s7, s7, 2")
    q("v_cndmask_b32 v6, v6, v7, vcc")
    q(f"v_mov_b32 v{V_GP}, s{P_W1}")
    q(f"v_mov_b32 v{V_GP+1}, s{P_W1+1}")
    q(f"v_mov_b32 v7, s{P_WQ}")
    q(f"v_mov_b32 v231, s{P_WQ+1}")
    q(f"v_cndmask_b32 v{V_GP}, v{V_GP}, v7, vcc")
    q(f"v_cndmask_b32 v{V_GP+1}, v{V_GP+1}, v231, vcc")
    q("s_add_u32 s7, s7, s3")
    q("s_mul_i32 s7, s7, 640")
    q("s_add_u32 s7, s7, M_B-M_PC0")
    q("v_and_b32 v7, 7, v0")
    q("v_min_u32 v7, 4, v7")
    q("v_lshl_add_u32 v7, v7, 7, s7")
    q("v_min_u32 v7, M_CODE_END-M_PC0-8, v7")
    q("v_cmp_gt_u32 vcc, 56, v0")
    q("v_mov_b32 v231, s50")
    q("v_mov_b32 v232, s51")
    q("v_cndmask_b32 v6, v7, v6, vcc")
    q(f"v_cndmask_b32 v{V_GP}, v231, v{V_GP}, vcc")
    q(f"v_cndmask_b32 v{V_GP+1}, v232, v{V_GP+1}, vcc")
    q(f"v_add_co_u32 v{V_GP}, vcc, v{V_GP}, v6")
    q(f"v_addc_co_u32 v{V_GP+1}, vcc, 0, v{V_GP+1}, vcc")
    q("s_add_u32 s7, s36, 3")
    q("s_lshl_b32 s7, s7, 3")
    q("s_add_u32 s7, s7, s34")
    q(f"s_lshl_b32 s{S_KVBASE}, s{S_HA}, 6")
    q(f"s_add_u32 s{S_KVBASE}, s{S_KVBASE}, s7")
    q(f"s_lshl_b32 s{S_KVBASE}, s{S_KVBASE}, 15")
    q(f"s_lshl_b32 s7, s{S_KIND}, 14")
    q(f"s_add_u32 s{S_KVBASE}, s{S_KVBASE}, s7")
    q("s_lshl_b32 s7, s37, 13")
    q(f"s_add_u32 s{S_KVBASE}, s{S_KVBASE}, s7")
    q("s_lshl_b32 s7, s36, 19")
    q(f"s_sub_u32 s{S_KVSTR}, s7, 0x40000")
    q(f"s_lshl_b32 s7, s{S_QT}, 2")
    q(f"v_and_b32 v{V_FO}, 15, v0")
    q(f"v_lshlrev_b32 v{V_FO}, 3, v{V_FO}")
    q(f"s_add_u32 s{S_XNB}, s7, s3")
    q(f"s_mul_i32 s{S_XNB}, s{S_XNB}, 28672")
    q(f"s_add_u32 s{S_XNB}, s{S_XNB}, {XN_OFF}")
    q(f"v_lshlrev_b32 v{V_L16}, 4, v0")
    q(f"s_lshl_b32 s7, s{S_QT}, 4")
    q(f"s_add_u32 s7, s7, s{S_HEAD}")
    q("s_mul_i32 s7, s7, 7168")
    q("s_mul_i32 s6, s3, 1792")
    q("s_add_u32 s7, s7, s6")
    q("v_lshrrev_b32 v6, 2, v0")
    q("v_min_u32 v6, 14, v6")
    q("v_lshl_add_u32 v146, v6, 7, s7")
    attn.setup_s(q)
    q(f"s_mov_b32 s{S_QST}, s{P_WS}")
    q(f"s_mov_b32 s{S_QST+1}, s{P_WS+1}")
    q(f"s_cmp_ge_u32 s{S_QT}, 8")
    q(f"s_cselect_b32 s{S_QST+2}, {WS_BYTES:#x}, 0")
    q(f"s_mov_b32 s{S_QST+3}, 0x20000")
    q(f"s_lshl_b32 s{S_QB}, s{S_PAIR}, 2")
    q(f"s_add_u32 s{S_QB}, s{S_QB}, s3")
    q(f"s_lshl_b32 s{S_QB}, s{S_QB}, 14")
    q(f"s_add_u32 s{S_QB}, s{S_QB}, {Q_OFF}")
    for i in q.ins:
        e(i.text)
    stamp(e, opt, "setup")
    e.wait_tag("pf")
    stamp(e, opt, "touch")
    NPRE = opt.get("npre", 12)
    for tag, items in (("t0", dma_items(0)), ("dma", dma_items(1)[:NPRE])):
        for pre, d, post in items:
            run(e, pre + [(d, tag)] + post)
    e(f"buffer_load_dword v{V_PD}, v144, s[{S_CKV}:{S_CKV+3}], 0 offen", "pf")
    e(f"buffer_load_dword v{V_PD}, v145, s[{S_W}:{S_W+3}], 0 offen", "pf")
    e(f"buffer_load_dword v{V_PD}, v146, s[{S_X}:{S_X+3}], 0 offen", "pf")
    e("s_or_b32 s7, s2, s3")
    e("s_cbranch_scc1 M_NOPUB")
    e("s_memrealtime s[4:5]")
    e("v_mov_b32 v6, 0")
    e.wait_force(lgkm=0)
    e("s_or_b32 s4, s4, 1")
    e("v_mov_b32 v7, s4")
    e("s_mov_b64 exec, 1")
    e.raw(f"global_store_dword v6, v7, s[{P_DBG}:{P_DBG+1}] sc1")
    e("s_mov_b64 exec, -1")
    e.label("M_NOPUB")
    stamp(e, opt, "dma")
    stamp(e, opt, 1)

    def layernorm(e, n, reduce, norm, T=V_T):
        e("s_mov_b32 s7, 0x3f803f80")
        for k in range(8):
            e(f"v_mov_b32 v{T+k}, 0")
        for r in range(n):
            if n > 28 or opt.get("ln_dot"):
                e(f"v_dot2_f32_bf16 v{T+(r&3)}, v{V_XN+r}, s7, v{T+(r&3)}")
                e(f"v_dot2_f32_bf16 v{T+4+(r&3)}, v{V_XN+r}, v{V_XN+r}, v{T+4+(r&3)}")
            else:
                t = T + 8 + (r % 4) * 2
                e(f"v_lshlrev_b32 v{t}, 16, v{V_XN+r}")
                e(f"v_and_b32 v{t+1}, 0xffff0000, v{V_XN+r}")
                e(f"v_add_f32 v{T+(r&1)*2}, v{T+(r&1)*2}, v{t}")
                e(f"v_add_f32 v{T+(r&1)*2+1}, v{T+(r&1)*2+1}, v{t+1}")
                e(f"v_fmac_f32 v{T+4+(r&1)*2}, v{t}, v{t}")
                e(f"v_fmac_f32 v{T+4+(r&1)*2+1}, v{t+1}, v{t+1}")
        e.nop(4)
        e(f"v_add_f32 v{T}, v{T}, v{T+1}")
        e(f"v_add_f32 v{T+2}, v{T+2}, v{T+3}")
        e(f"v_add_f32 v{T+4}, v{T+4}, v{T+5}")
        e(f"v_add_f32 v{T+6}, v{T+6}, v{T+7}")
        e(f"v_add_f32 v{T}, v{T}, v{T+2}")
        e(f"v_add_f32 v{T+4}, v{T+4}, v{T+6}")
        for step in reduce:
            if isinstance(step, str):
                e.nop(2)
                e(f"v_add_f32_dpp v{T}, v{T}, v{T} {step} row_mask:0xf bank_mask:0xf")
                e(f"v_add_f32_dpp v{T+4}, v{T+4}, v{T+4} {step} row_mask:0xf bank_mask:0xf")
            else:
                e(f"v_mov_b32 v{T+1}, v{T}")
                e(f"v_mov_b32 v{T+5}, v{T+4}")
                e.nop(2)
                e(f"v_permlane{step}_swap_b32 v{T}, v{T+1}")
                e(f"v_permlane{step}_swap_b32 v{T+4}, v{T+5}")
                e(f"v_add_f32 v{T}, v{T}, v{T+1}")
                e(f"v_add_f32 v{T+4}, v{T+4}, v{T+5}")
        e(f"v_mul_f32 v{T}, {f32(1/448)}, v{T}")
        e(f"v_mul_f32 v{T+4}, {f32(1/448)}, v{T+4}")
        e(f"v_fma_f32 v{T+4}, -v{T}, v{T}, v{T+4}")
        e(f"v_max_f32 v{T+4}, 0, v{T+4}")
        e(f"v_add_f32 v{T+4}, {f32(1e-5)}, v{T+4}")
        e(f"v_rsq_f32 v{T+4}, v{T+4}")
        e(f"v_mul_f32 v{T+4}, {f32(QSCALE)}, v{T+4}")
        e(f"v_mul_f32 v{T}, v{T}, v{T+4}")
        e(f"v_mov_b32 v{T+5}, v{T+4}")
        e(f"v_sub_f32 v{T}, 0, v{T}")
        e(f"v_mov_b32 v{T+1}, v{T}")
        for r in norm:
            t = T + 8 + (r % 8) * 2
            e(f"v_lshlrev_b32 v{t}, 16, v{V_XN+r}")
            e(f"v_and_b32 v{t+1}, 0xffff0000, v{V_XN+r}")
            if n > 28:
                e(f"v_pk_fma_f32 {v(t,2)}, {v(t,2)}, {v(T+4,2)}, {v(T,2)}")
            else:
                e(f"v_fma_f32 v{t}, v{t}, v{T+4}, v{T}")
                e(f"v_fma_f32 v{t+1}, v{t+1}, v{T+4}, v{T}")
            e(f"v_cvt_pk_bf16_f32 v{V_XN+r}, v{t}, v{t+1}")

    def ops_of(fn):
        t = Seg("tmp")
        fn(t)
        out, k = [], 0
        ins = t.ins
        while k < len(ins):
            x = (ins[k].text, ins[k].tag) if ins[k].tag else ins[k].text
            if ins[k].op.startswith("s_cmp"):
                out.append([x, ins[k + 1].text])
                k += 2
            else:
                out.append(x)
                k += 1
        return out

    XA, XS, LT = V_XN + 36, V_XN + 37, V_XN + 52
    SX0, SX1 = S_QC, S_KVC

    def x_loads(h):
        h(f"s_lshl_b32 s{SX0}, s3, 8")
        h(f"s_add_u32 s{SX1}, s{SX0}, 128")
        h("s_cmp_eq_u32 s3, 3")
        h(f"s_cselect_b32 s{SX1}, 0, s{SX1}")
        h(f"s_lshl_b32 s7, s{S_QT}, 7")
        h(f"s_lshl_b32 s6, s{S_HEAD}, 3")
        h("s_add_u32 s7, s7, s6")
        h("v_lshrrev_b32 v6, 3, v0")
        h("v_add_u32 v6, s7, v6")
        h("v_mul_u32_u24 v6, 896, v6")
        h("v_and_b32 v7, 7, v0")
        h(f"v_lshl_add_u32 v{XA}, v7, 4, v6")
        h(f"v_mov_b32 v{V_XN+41}, 0")
        for i in range(7):
            h(f"buffer_load_dwordx4 {v(V_XN+i*4,4)}, v{XA}, s[{S_X}:{S_X+3}], 0 offen offset:{i*128}", "x")
        h(f"buffer_load_dwordx4 {v(V_XN+28,4)}, v{XA}, s[{S_X}:{S_X+3}], s{SX0} offen", "x")
        h(f"buffer_load_dwordx4 {v(V_XN+32,4)}, v{XA}, s[{S_X}:{S_X+3}], s{SX1} offen", "x")
        h(f"global_load_dword v{V_XN+43}, v{V_XN+41}, s[{P_DBG}:{P_DBG+1}]", "x")

    def ln_pub(h):
        h(f"s_lshr_b32 s5, s{S_HEAD}, 2")
        h(f"s_lshl_b32 s6, s{S_QT}, 2")
        h("s_add_u32 s5, s5, s6")
        h("s_mul_i32 s5, s5, 28672")
        h(f"s_add_u32 s5, s5, {XN_OFF}")
        h(f"s_lshl_b32 s{SX0}, s{SX0}, 5")
        h(f"s_lshl_b32 s{SX1}, s{SX1}, 5")
        h(f"s_add_u32 s{SX0}, s{SX0}, s5")
        h(f"s_add_u32 s{SX1}, s{SX1}, s5")
        h(f"s_and_b32 s6, s{S_HEAD}, 3")
        h("s_lshl_b32 s6, s6, 7")
        h("v_lshrrev_b32 v6, 3, v0")
        h("v_lshlrev_b32 v6, 4, v6")
        h("v_and_b32 v7, 7, v0")
        h("v_lshl_add_u32 v6, v7, 9, v6")
        h(f"v_add_u32 v{XS}, s6, v6")
        layernorm(h, 28, ("quad_perm:[1_0_3_2]", "quad_perm:[2_3_0_1]", "row_half_mirror"), range(28, 36), LT)
        h(f"buffer_store_dwordx4 {v(V_XN+28,4)}, v{XS}, s[{S_WS}:{S_WS+3}], s{SX0} offen sc1", "st")
        h(f"buffer_store_dwordx4 {v(V_XN+32,4)}, v{XS}, s[{S_WS}:{S_WS+3}], s{SX1} offen sc1", "st")

    def gtouch(k):
        lo = 0xffff << (16 * (k & 1))
        return [[f"s_mov_b32 exec_lo, {lo if k < 2 else 0}", f"s_mov_b32 exec_hi, {0 if k < 2 else lo}",
                 (f"global_load_dword v{V_PD}, {v(V_GP,2)}, off", "pf"), "s_mov_b64 exec, -1"]]

    hk = Seg("m_hook")
    hk.label("M_HOOK")
    hk("s_mov_b32 s6, 0")
    hk.label("M_NSPIN")
    hk(f"v_readfirstlane_b32 s{S_N0}, v{V_XN+43}")
    hk(f"s_cmp_lg_u32 s{S_N0}, 0")
    hk("s_cbranch_scc1 M_NOK")
    hk("s_sleep 8")
    hk(f"global_load_dword v{V_XN+43}, v{V_XN+41}, s[{P_DBG}:{P_DBG+1}] sc1")
    hk.wait_force(vm=0)
    hk("s_add_u32 s6, s6, 1")
    hk(f"s_cmp_lt_u32 s6, {PMAX}")
    hk("s_cbranch_scc1 M_NSPIN")
    hk.label("M_NOK")
    hk(f"s_xor_b32 s{S_N1}, s{S_N0}, {NONCE_K:#x}")
    hk("s_cmp_eq_u32 s3, 0")
    hk(f"s_cselect_b32 s{S_BO}, 3, 99")
    hk(f"s_mov_b64 s[{S_GM}:{S_GM+1}], 0xff")
    hk("s_branch M_HOOK_RET")
    hk.label("M_SIGX")
    flag_line(hk, 7, FL_XN, S_QT)
    hk(f"s_lshl_b32 s6, s{S_HEAD}, 3")
    flag_set(hk, S_WS, 7, "s6", V_XN + 40)
    hk.label("M_HOOK_RET")
    hk(f"s_cmp_eq_u32 s{S_KIND}, 0")
    hk("s_cbranch_scc1 M_LOOP_K")
    hk("s_branch M_LOOP_V")

    def frag_reads(b, ks, st):
        r = []
        fa, fb = V_FA + st * 16, V_FB + st * 16
        order = [("a", 0), ("b", 0), ("a", 1), ("a", 2), ("a", 3), ("b", 1), ("b", 2), ("b", 3)]
        for t, i in order:
            if t == "a":
                r.append(f"ds_read_b128 {v(fa+i*4,4)}, v{V_AA+ks} offset:{i*4096 + b*32768}")
            else:
                for u in range(2):
                    r.append(f"ds_read_b64_tr_b16 {v(fb+i*4+u*2,2)}, v{V_AB+i} offset:{(16*ks+4*u)*512 + b*32768}")
        return r

    e.wait_tag("t0")
    stamp(e, opt, "t0")
    e("s_barrier")
    stamp(e, opt, "bar")
    if not A16:
        for r in frag_reads(0, 0, 0):
            e(r)
    e(f"s_mov_b32 s{S_LP}, 2")
    e(f"s_cmp_eq_u32 s{S_KIND}, 0")
    e("s_cbranch_scc0 M_PRE_V")
    pro = e

    def place_dma(fill, items, g0, g1, tag="dma"):
        n = len(items)
        for k, item in enumerate(items):
            pre, d, post = item[:3]
            g = g0 + (k * (g1 - g0)) // n
            for x in pre:
                fill.setdefault(g - 1, []).append(x)
            fill.setdefault(g, []).append((d, item[3] if len(item) > 3 else tag))
            for x in post:
                fill.setdefault(g, []).append(x)

    def ktile(e, kind, b, dma_k0, dma_k3, last=False, pref=True, tag3="dma", tag0="dma", xn=None):
        for ks in range(4):
            st = ks & 1
            fa, fb = V_FA + st * 16, V_FB + st * 16
            spine = []
            for i in range(4):
                for j in range(4):
                    acc = a((i * 4 + j) * 16, 16)
                    W, Cc = v(fb + i * 4, 4), v(fa + j * 4, 4)
                    A, B = (W, Cc) if kind == 0 else (Cc, W)
                    spine.append(f"{MFMA} {acc}, {A}, {B}, {acc}")
            fill = {}
            fill[-1] = [lambda e: e.wait_force(lgkm=0)]
            if ks < 3:
                spread(fill, frag_reads(b, ks + 1, st ^ 1), 0, 12)
                if ks == 0 and dma_k0:
                    place_dma(fill, dma_k0, 1, 16, tag0)
                if ks == 1 and pref:
                    fill.setdefault(4, []).append((f"buffer_load_dword v{V_PD}, v{V_PA}, s[{S_CKV}:{S_CKV+3}], s{SA} offen", "pf"))
                    fill.setdefault(13, []).append((f"buffer_load_dword v{V_PD}, v{V_PB}, s[{S_W}:{S_W+3}], s{SB} offen", "pf"))
                if ks in (1, 2) and xn is not None:
                    k0 = xn + (ks - 1) * 7
                    for k in range(k0, k0 + 7):
                        g = 1 + 2 * (k - k0)
                        if k % 4 == 0 and k:
                            fill.setdefault(g - 1, []).append(f"s_add_u32 s{S_XNB}, s{S_XNB}, 4096")
                        fill.setdefault(g, []).append((f"buffer_load_dwordx4 {v(V_XN+4*k,4)}, v{V_L16}, s[{S_WS}:{S_WS+3}], s{S_XNB} offen offset:{(k%4)*1024} sc1", "xn"))
            else:
                if last:
                    fill[0] = ["s_barrier"]
                else:
                    fill[0] = [lambda e: e.wait_force(vm=(NPF if pref else 0) + (14 if xn is not None else 0)), "s_barrier"]
                    spread(fill, frag_reads(b ^ 1, 0, 0), 0, 12)
                if dma_k3:
                    place_dma(fill, dma_k3, 2, 16, tag3)
            weave(e, spine, fill)

    def c_read(kind, b, s_, j):
        off = j * 2048
        return f"ds_read_b128 {v(V_FA + s_*32 + j*4, 4)}, v{V_AA16 + ((s_ ^ j) & 1)} offset:{off + b*32768}"

    def w_read(b, s_, i):
        return [f"ds_read_b64_tr_b16 {v(V_WR + i*4 + 2*u, 2)}, v{V_AB16+i} offset:{(32*s_ + 4*u)*512 + b*32768}" for u in range(2)]

    def ktile16(e, kind, b, dma_k0, dma_k3, last=False, pref=True, tag3="dma", tag0="dma", xn=None, first=False, head=False, extra=None):
        for s_ in range(2):
            spine = []
            for i in range(8):
                for j in range(8):
                    if kind == 0:
                        dt, bb, kb, nb = i >> 1, i & 1, j >> 1, j & 1
                    else:
                        dt, nb, kb, bb = i >> 1, i & 1, j >> 1, j & 1
                    acc = a((kb * 4 + dt) * 16 + nb * 8 + bb * 4, 4)
                    W, Cc = v(V_WR + i * 4, 4), v(V_FA + s_ * 32 + j * 4, 4)
                    A, B = (W, Cc) if kind == 0 else (Cc, W)
                    spine.append(f"v_mfma_f32_16x16x32_bf16 {acc}, {A}, {B}, {0 if first and s_ == 0 else acc}")
            fill = {}
            nb_, ns = (b, 1) if s_ == 0 else (b ^ 1, 0)
            more = not (last and s_ == 1)
            for i in range(8):
                r = v(V_WR + i * 4, 4)
                fill.setdefault(8 * i - 1, []).append(lambda e, r=r: wait_reg(e, r))
            r = v(V_FA + s_ * 32 + 28, 4)
            fill.setdefault(-1, []).append(lambda e, r=r: wait_reg(e, r))
            if s_ == 1:
                nx = 14 if xn is not None else 0
                if last:
                    fill.setdefault(7, []).extend([lambda e: e.wait(lgkm=0), "s_barrier"])
                elif pref and not head:
                    fill.setdefault(7, []).extend([lambda e: e.wait_force(vm=NPF + 1, lgkm=0), "s_barrier"])
                else:
                    fill.setdefault(7, []).extend([lambda e: e.wait_tag("dma"), lambda e: e.wait(lgkm=0), "s_barrier"])
            if more:
                for i in range(8):
                    wr = w_read(nb_, ns, i)
                    fill.setdefault(8 * i + 7, []).append(wr[0])
                    fill.setdefault(min(8 * i + 8, 63), []).append(wr[1])
                for j in range(8):
                    fill.setdefault(10 + 6 * j, []).append(c_read(kind, nb_, ns, j))
            if s_ == 0:
                if dma_k0:
                    place_dma(fill, dma_k0, 1 if first else 2, min(34 if first else 56, 2 + (7 * len(dma_k0)) // 2 + (14 if len(dma_k0) > 8 else 0)), tag0)
                if pref:
                    fill.setdefault(36, []).append((f"buffer_load_dword v{V_PD}, v{V_PA}, s[{S_CKV}:{S_CKV+3}], s{SA} offen", "pf"))
                    fill.setdefault(44, []).append((f"buffer_load_dword v{V_PD}, v{V_PB}, s[{S_W}:{S_W+3}], s{SB} offen", "pf"))
            elif dma_k3:
                place_dma(fill, dma_k3, 11, 62, tag3)
            if xn is not None:
                nx = (10, 4)[s_]
                k0 = xn + s_ * 10
                for k in range(k0, k0 + nx):
                    g = (18 + ((k - k0) * 45) // nx) if s_ == 0 else (13 + (k - k0) * 13)
                    if k % 4 == 0 and k:
                        fill.setdefault(g - 1, []).append(f"s_add_u32 s{S_XNB}, s{S_XNB}, 4096")
                    fill.setdefault(g, []).append((f"buffer_load_dwordx4 {v(V_XN+4*k,4)}, v{V_L16}, s[{S_WS}:{S_WS+3}], s{S_XNB} offen offset:{(k%4)*1024}{XNM}", "xn"))
            if opt.get("x_a_nodma"):
                for g in fill:
                    fill[g] = [x for x in fill[g] if not (isinstance(x, tuple) and x[1] in ("dma", "pf"))]
            if opt.get("x_a_nords"):
                for g in fill:
                    fill[g] = [x for x in fill[g] if not (isinstance(x, str) and x.startswith("ds_read"))]
            if opt.get("a_level", 1):
                seq = [(g, x) for g in sorted(fill) for x in fill[g]]
                new, nxt = {}, -1
                for g, x in seq:
                    t = x[0] if isinstance(x, tuple) else x
                    heavy = isinstance(t, str) and t.startswith(("ds_", "buffer_", "global_"))
                    fixed = callable(x) or t == "s_barrier"
                    if fixed:
                        new.setdefault(g, []).append(x)
                        continue
                    gg = min(63, max(g, nxt)) if heavy else min(63, max(g, nxt - 1))
                    new.setdefault(gg, []).append(x)
                    if heavy:
                        nxt = gg + 1
                fill = new
            for g0, g1, ops in (extra or {}).get(s_, []):
                pour(fill, ops, g0, g1)
            weave(e, spine, fill)

    if A16:
        ktile = ktile16

    NT = 21

    def b_dma(u):
        part, kt = divmod(u, 7)
        slot = SLOT_ORDER[u % 10]
        it = []
        for j in range(4):
            pre = []
            if j == 0:
                pre.append(f"s_add_u32 m0, s{S_W4K}, {slot*16384}")
                off = kt * 64 * 3584 if part == 2 else kt * 64 * 8192 + part * 256
                pre.append(f"s_mov_b32 s{S_BO}, {off}")
            if part == 2:
                d = f"buffer_load_dwordx4 v{V_DQ+j}, s[{S_W1}:{S_W1+3}], s{S_BO} offen offset:{j*1024} lds"
            else:
                d = f"buffer_load_dwordx4 v{V_DQ+j}, s[{S_WQ}:{S_WQ+3}], s{S_BO} offen offset:{j*1024} lds"
            it.append((pre, d, [], f"b{u//2}"))
        return it

    segs = [pro]
    traces = [[hk]]
    tails = {}
    extra = []
    vm_loop = [("dma", frozenset())] * 40
    for kind in range(2):
        nm = "KV"[kind]
        pre = Seg(f"m_pre{nm}", pro.lds, pro.vm)
        pre.label(f"M_PRE_{nm}")
        if A16:
            seq = sorted([(8 * i + 7, 0, w_read(0, 0, i)[0]) for i in range(8)] + [(min(8 * i + 8, 63), 1, w_read(0, 0, i)[1]) for i in range(8)]
                         + [(10 + 6 * j, 2, c_read(kind, 0, 0, j)) for j in range(8)])
            for _, _, x in seq:
                pre(x)
        d0, d1 = dma_items(0), dma_items(1)
        lno = ops_of(ln_pub)
        c1, c2, c3 = (len(lno) * 18) // 100, (len(lno) * 46) // 100, (len(lno) * 74) // 100
        ktile(pre, kind, 0, d1[NPRE:], d0[:NK3], first=True, head=True)
        ktile(pre, kind, 1, d0[NK3:], d1[:NK3], head=True, extra={0: [(18, 64, ops_of(x_loads))]})
        stamp(pre, opt, "it1", raw=True)
        ktile(pre, kind, 0, d1[NK3:], d0[:NK3], head=True, extra={0: [(20, 64, lno[:c1])], 1: [(0, 64, lno[c1:c2])]})
        ktile(pre, kind, 1, d0[NK3:], d1[:NK3], head=True, extra={0: [(0, 64, lno[c2:c3])], 1: [(0, 60, lno[c3:])]})
        stamp(pre, opt, "it2", raw=True)
        pre("s_branch M_HOOK")
        lp = Seg(f"m_loop{nm}", pre.lds, vm_loop)
        lp.label(f"M_LOOP_{nm}")
        gt = [["s_mov_b64 exec, s[70:71]" if False else f"s_mov_b64 exec, s[{S_GM}:{S_GM+1}]", (f"global_load_dword v{V_PD}, {v(V_GP,2)}, off", "pf"),
               "s_mov_b64 exec, -1"], [f"s_lshl_b64 s[{S_GM}:{S_GM+1}], s[{S_GM}:{S_GM+1}], 8", f"s_or_b32 s{S_GM}, s{S_GM}, 1"]]
        ktile(lp, kind, 0, d1[NK3:], d0[:NK3], extra={0: [(50, 56, gt)]})
        ktile(lp, kind, 1, d0[NK3:], d1[:NK3], extra={0: [(50, 56, gt)]})
        assert opt.get('x_a_nords') or lp.lds == pre.lds, (len(lp.lds), len(pre.lds))
        lp(f"s_add_u32 s{S_LP}, s{S_LP}, 1")
        for it in range(3, 7):
            if f"it{it}" in opt.get("sp", []):
                lp(f"s_cmp_lg_u32 s{S_LP}, {it}")
                lp(f"s_cbranch_scc1 M_NS{it}_{nm}")
                stamp(lp, opt, f"it{it}", raw=True)
                lp.label(f"M_NS{it}_{nm}")
        lp(f"s_cmp_eq_u32 s{S_LP}, s{S_BO}")
        lp("s_cbranch_scc1 M_SIGX")
        lp(f"s_cmp_lg_u32 s{S_LP}, 5")
        lp(f"s_cbranch_scc1 M_NOPOLL_{nm}")
        flag_line(lp, 7, FL_XN, S_QT)
        lp(f"buffer_load_dwordx2 {v(V_FL,2)}, v{V_FO}, s[{S_WS}:{S_WS+3}], s7 offen sc1", "pf")
        lp.label(f"M_NOPOLL_{nm}")
        lp(f"s_cmp_lt_u32 s{S_LP}, 6")
        lp(f"s_cbranch_scc1 M_LOOP_{nm}")
        tl = Seg(f"m_tail{nm}", lp.lds, lp.vm)
        tl.label(f"M_TAIL{kind}")
        bd = sum((b_dma(u) for u in range(10)), [])
        flag_test(tl, V_FL)
        tl(f"s_cselect_b32 s{S_XNF}, 1, 0")
        ktile(tl, kind, 0, d1[NK3:], d0[:NK3], pref=False, xn=0)
        ktile(tl, kind, 1, d0[NK3:], d1[:NK3], pref=False, xn=14)
        stamp(tl, opt, "it7", raw=True)
        ktile(tl, kind, 0, d1[NK3:] + bd[:8], bd[8:20], pref=False)
        ktile(tl, kind, 1, bd[20:24], bd[24:36], last=True, pref=False)
        if kind == 0:
            tl("s_branch M_B")
        segs += [pre, lp, tl] + ([hk] if kind == 0 else [])
        tails[kind] = tl
        traces.append([pro, pre, lp, lp, tl])

    e = Seg("m_b", tails[0].lds, tails[0].vm)
    e.label("M_B")
    stamp(e, opt, 2)
    stamp(e, opt, "b")
    e(f"s_cmp_lt_u32 s{S_XNF}, {99 if opt.get('force_fb') else 1}")
    e("s_cbranch_scc1 M_FB")
    e.label("M_FB_RET")
    for _ in range(opt.get("x_idle", 0)):
        e("s_sleep 32")
    srd(e, S_WO, P_WO, WO_BYTES)
    srd(e, S_W2, P_W2, W2_BYTES)
    attn.setup_dma(e)
    e(f"v_mov_b32 v6, v{V_D1+3}")
    for nb in range(4):
        e(f"v_add_u32 v{V_AT3+nb}, 0x20000, v{V_AT+nb}")
    fb = Seg("m_fb")
    fb.label("M_FB")
    fb.wait_force(vm=0)
    fb(f"s_lshl_b32 s7, s{S_QT}, 7")
    fb("s_lshl_b32 s6, s3, 5")
    fb("s_add_u32 s7, s7, s6")
    fb("v_and_b32 v6, 31, v0")
    fb("v_add_u32 v6, s7, v6")
    fb("v_mul_u32_u24 v6, 896, v6")
    fb("v_lshrrev_b32 v7, 5, v0")
    fb("v_lshl_add_u32 v6, v7, 4, v6")
    for ks in range(28):
        fb(f"buffer_load_dwordx4 {v(V_XN+ks*4,4)}, v6, s[{S_X}:{S_X+3}], 0 offen offset:{ks*32}", "x")
    layernorm(fb, 112, (32,), range(112))
    fb.nop(2)
    fb("s_branch M_FB_RET")
    extra.append(fb)

    D = opt.get("b_depth", 7)
    NF = NT * 16

    def b_read(f):
        u, rem = divmod(f, 16)
        ks, nb = divmod(rem, 4)
        slot = SLOT_ORDER[u % 10]
        fr = V_FA + (f % 8) * 4
        at = (V_AT, V_AT + 4, V_AT3)[slot >> 2] + nb
        return [f"ds_read_b64_tr_b16 {v(fr+2*h,2)}, v{at} offset:{(slot&3)*16384 + (16*ks+4*h)*256}" for h in range(2)]

    def kv_epi(b, t=8, o=8):
        kb, i = divmod(b, 4)
        ops = []
        if i == 0 and kb:
            ops.append(f"s_add_u32 s{S_KVBASE}, s{S_KVBASE}, s{S_KVSTR}")
        if i % 2 == 0:
            ops.append(f"s_add_u32 s{S_KVC}, s{S_KVBASE}, {KV_OFF + (i>>1)*4096}")
        for c in range(2):
            for r in range(8):
                ops.append(f"v_accvgpr_read_b32 v{t+r}, a{b*16+8*c+r}")
            for r in range(4):
                ops.append(f"v_cvt_pk_bf16_f32 v{t+o+r}, v{t+2*r}, v{t+2*r+1}")
            ops.append((f"buffer_store_dwordx4 {v(t+o,4)}, v{V_L16}, s[{S_WS}:{S_WS+3}], s{S_KVC} offen offset:{(i&1)*2048+c*1024}{ST}", "kvst" if kb < 2 else "kvst2"))
        if opt.get("x_nokvst"):
            ops = [o for o in ops if not isinstance(o, tuple)]
        if opt.get("x_noepi"):
            ops = []
        return ops

    def q_epi(part):
        ops = []
        t = 24 if part == 0 else 20
        for nb in range(4):
            if nb % 2 == 0:
                ops.append(f"s_add_u32 s{S_QC}, s{S_QB}, {part*8192 + (nb>>1)*4096}")
            for c in range(2):
                if part == 0:
                    src = H_ACC[nb] + 8 * c
                else:
                    src = t + 4 * c
                    for r in range(8):
                        ops.append(f"v_accvgpr_read_b32 v{src+r}, a{nb*16+8*c+r}")
                for r in range(4):
                    ops.append(f"v_cvt_pk_bf16_f32 v{t+4*c+r}, v{src+2*r}, v{src+2*r+1}")
            for r in range(4):
                ops.append(f"v_permlane16_swap_b32 v{t+r}, v{t+4+r}")
            for c in range(2):
                ops.append((f"buffer_store_dwordx4 {v(t+4*c,4)}, v{V_L16}, s[{S_QST}:{S_QST+3}], s{S_QC} offen offset:{(nb&1)*2048 + c*1024} sc1", "qst"))
                for r in range(4):
                    ops.append(f"v_accvgpr_write_b32 a{A_Q2 + part*32 + nb*8 + c*4 + r}, v{t+4*c+r}")
        return ops

    GKV, GCHK, GQ = opt.get("g_kv", 6), opt.get("g_chk", 9), 9
    fl = attn.first_loads(S_KVE)
    spine, fill = [], {}
    e.wait_tag("b0")
    e("s_barrier")
    for f in range(D):
        for r in b_read(f):
            e(r)
    place_dma(fill, b_dma(9), 1, 16)
    for f in range(NF):
        u, rem = divmod(f, 16)
        part, kt = divmod(u, 7)
        ks, nb = divmod(rem, 4)
        acc = a(nb * 16, 16) if part == 1 else v(H_ACC[nb], 16)
        c = "0" if (kt == 0 and ks == 0) else acc
        spine.append(f"{MFMA} {acc}, {v(V_FA+(f%8)*4,4)}, {v(V_XN+(kt*4+ks)*4,4)}, {c}")
        nf = f + D
        if nf < NF:
            if nf % 32 == 0:
                g = nf // 32
                ops = [lambda e, g=g: e.wait_tag(f"b{g}")]
                if g == GKV:
                    ops.append(lambda e: e.wait_tag("kvst"))
                if g == GQ:
                    ops.append(lambda e: e.wait_tag("qst"))
                if g == GCHK:
                    ops += [lambda e: flag_test(e, VPK), f"s_cselect_b32 s{S_EARLY}, 1, 0",
                            f"s_cselect_b32 s{S_KVE+2}, {WS_BYTES:#x}, 0"]
                ops.append("s_barrier")
                if g == GKV:
                    ops += ["s_cmp_eq_u32 s3, 0", "s_cbranch_scc1 M_SKV", "M_SKV_RET:"]
                if g == GQ:
                    ops += ["s_cmp_eq_u32 s3, 0", "s_cbranch_scc1 M_SQ", "M_SQ_RET:"]
                if g == 10:
                    ops += [f"s_cmp_lt_u32 s{S_QT}, 8", "s_cbranch_scc1 M_EQ", "M_EQ_RET:"]
                if g == 4:
                    ops += [f"v_add_u32 v{V_DQ+j}, {j*4*3584 - j*1024}, v6" for j in range(4)]
                if f"g{g}" in opt.get("sp", []):
                    ops.append(lambda e, g=g: stamp(e, opt, f"g{g}", raw=True))
                fill.setdefault(f, []).extend(ops)
                if g >= 2:
                    its = []
                    for u2 in (2 * g + 6, 2 * g + 7):
                        if u2 < NT:
                            its += b_dma(u2)
                    if its:
                        place_dma(fill, its, f + 2, f + 30)
                if g == 9:
                    spread(fill, sum(fl[:4], []), f + 2, f + 32)
                if g == 10:
                    spread(fill, sum(fl[4:], []), f + 2, f + 20)
            fill.setdefault(f, []).extend(b_read(nf))
        if f % 2 == 0:
            r = v(V_FA + (min(f + 1, NF - 1) % 8) * 4, 4)
            fill.setdefault(f - 1, []).append(lambda e, r=r: wait_reg(e, r))
    g1, g2a, g2, gq0, gq1 = opt.get("kv_split", (125, 200, 330, 130, 262))
    pour(fill, sum((kv_epi(b) for b in range(0, 8)), []), 2, g1)
    pour(fill, q_epi(0), gq0, 215)
    pour(fill, q_epi(1), 224 + 5, gq1)
    pour(fill, [f"s_mov_b32 s{S_KVE}, s{S_WS}", f"s_mov_b32 s{S_KVE+1}, s{S_WS+1}", f"s_mov_b32 s{S_KVE+3}, 0x20000",
                lambda e: flag_line(e, 73, FL_KV, S_HEAD), lambda e: flag_line(e, 74, FL_PAIR, S_PAIR)], 160, 180)
    fill.setdefault(opt.get("g_pkv", 240), []).append(f"buffer_load_dwordx2 {v(VPK,2)}, v{V_FO}, s[{S_WS}:{S_WS+3}], s73 offen sc1")
    GP = opt.get("g_poll", 298)
    fill.setdefault(GP - 1, []).append(f"v_mov_b32 v{VPQ+2}, 0")
    fill.setdefault(GP, []).append((f"buffer_load_dwordx2 {v(VPQ,2)}, v{VPQ+2}, s[{S_WS}:{S_WS+3}], s74 offen sc1", "pq"))
    fill.setdefault(GP, []).append(f"s_mov_b32 s{S_GOTQ}, 0")
    pour(fill, [f"v_accvgpr_mov_b32 a{A_Q+r}, a{A_Q2+r}" for r in range(64)], gq1 + 2, 312)
    pour(fill, sum((kv_epi(b) for b in range(8, 12)), []), g2a, g2)
    younger = [0]

    def count_pq(e):
        tags = [t for t, d in e.vm]
        younger[0] = len(tags) - 1 - tags.index("pq") if "pq" in tags else 63
    count_pq.cost = 0
    fill[313].insert(fill[313].index("s_barrier"), count_pq)
    for k in range(8, 26):
        for r in (0, 2):
            g = min(range(224 + 4 * k + 5, 336), key=lambda g: (load_of(fill, g), g))
            fill.setdefault(g, []).append(f"v_mov_b64 {v(V_XN+4*k+r,2)}, 0")
    print(gap_report("phase B", fill, NF))
    weave(e, spine, fill)
    stamp(e, opt, 3)
    stamp(e, opt, "bend")

    skv = Seg("m_skv")
    skv.label("M_SKV")
    flag_line(skv, 7, FL_KV, S_HA)
    flag_set(skv, S_WS, 7, f"s{S_KVSLOT}", 20)
    skv("s_branch M_SKV_RET")
    sq = Seg("m_sq")
    sq.label("M_SQ")
    sq(f"s_cmp_lt_u32 s{S_QT}, 8")
    sq("s_cbranch_scc1 M_SQ_RET")
    flag_set(sq, S_WS, 74, 0, V_XN)
    sq("s_branch M_SQ_RET")

    def spin(e, name, vd, voff, line, first=True):
        e("s_mov_b32 s6, 0")
        e.label(name)
        if first:
            e(f"buffer_load_dwordx2 {v(vd,2)}, v{voff}, s[{S_WS}:{S_WS+3}], s{line} offen sc1")
        e.wait_force(vm=0)
        flag_test(e, vd)
        e(f"s_cbranch_scc1 {name}_OK")
        e("s_sleep 2")
        if not first:
            e(f"buffer_load_dwordx2 {v(vd,2)}, v{voff}, s[{S_WS}:{S_WS+3}], s{line} offen sc1")
        e("s_add_u32 s6, s6, 1")
        e(f"s_cmp_lt_u32 s6, {PMAX}")
        e(f"s_cbranch_scc1 {name}")
        e.wait_force(vm=0)
        e.label(name + "_OK")

    late = Seg("m_late")
    late.label("M_LATE")
    spin(late, "M_PKV", VPK, V_FO, 73)
    for grp in attn.first_loads(S_WS):
        run(late, grp)
    late.wait_force(vm=0)
    late("s_branch M_LATE_RET")
    def q_loads(g):
        for k in range(16):
            if k and k % 4 == 0:
                g(f"s_add_u32 s{S_QB}, s{S_QB}, 4096")
            g(f"buffer_load_dwordx4 {a(A_Q+4*k,4)}, v{V_L16}, s[{S_WS}:{S_WS+3}], s{S_QB} offen offset:{(k%4)*1024} sc1", "q")

    gq = Seg("m_getq")
    gq.label("M_EQ")
    gq.wait_force(vm=younger[0])
    flag_test(gq, VPQ)
    gq("s_cbranch_scc0 M_EQ_RET")
    q_loads(gq)
    gq(f"s_mov_b32 s{S_GOTQ}, 1")
    gq("s_branch M_EQ_RET")
    gq.label("M_GETQ")
    gq(f"s_cmp_eq_u32 s{S_GOTQ}, {2 if opt.get('force_late') else 1}")
    gq("s_cbranch_scc1 M_GETQ_RET")
    if opt.get('force_late'):
        gq(f"s_mul_i32 s6, s{S_GOTQ}, 12288")
        gq(f"s_sub_u32 s{S_QB}, s{S_QB}, s6")
    spin(gq, "M_PQ", VPQ, VPQ + 2, 74)
    q_loads(gq)
    gq("s_branch M_GETQ_RET")
    wq = Seg("m_waitq")
    wq.label("M_WAITQ")
    wq.wait_force(vm=0)
    wq("s_branch M_WAITQ_RET")
    extra += [skv, sq, late, gq, wq]

    e(f"s_cmp_eq_u32 s{S_EARLY}, {2 if opt.get('force_late') else 1}")
    e("s_cbranch_scc0 M_LATE")
    e.label("M_LATE_RET")
    e(f"s_cmp_lt_u32 s{S_QT}, 8")
    e("s_cbranch_scc1 M_GETQ")
    e.label("M_GETQ_RET")
    stamp(e, opt, "polled")
    HS = V_XN + 4
    e("v_mov_b32 v20, 0x41800000")
    e("v_mov_b32 v21, 0x41800000")
    for k in range(28):
        nb, r = divmod(k, 8)
        e(f"v_pk_mul_f32 {v(H_ACC[nb]+2*r,2)}, {v(H_ACC[nb]+2*r,2)}, v[20:21]")
    for k in range(28):
        nb, r = divmod(k, 8)
        e(f"v_cvt_pk_bf16_f32 v{HS+k}, v{H_ACC[nb]+2*r}, v{H_ACC[nb]+2*r+1}")
    srd(e, S_OUT, P_OUT, OUT_BYTES)
    attn.setup_v(e)
    e("s_getpc_b64 s[80:81]")
    e.label("M_PC_A")
    e("s_lshr_b32 s7, s2, 3")
    e("s_lshl_b32 s7, s7, 2")
    e("s_add_u32 s7, s7, s3")
    e("s_mul_i32 s7, s7, 512")
    e(f"v_min_u32 v{attn.V_X+3}, 3, v0")
    e(f"v_lshl_add_u32 v{attn.V_X+3}, v{attn.V_X+3}, 7, s7")
    e(f"v_min_u32 v{attn.V_X+3}, M_CODE_END-M_PC_A-8, v{attn.V_X+3}")
    attn.init_state(e, V_XN + 4 * 26)
    e(f"s_cmp_lt_u32 s{S_QT}, 8")
    e("s_cbranch_scc1 M_WAITQ")
    e.label("M_WAITQ_RET")
    stamp(e, opt, 4)
    stamp(e, opt, "a0")

    RA, RB, XR, VO, VP = 184, 32, 12, 2, 10

    def hooks(fill, NFE, ED):
        g = 6 * NFE - ED
        fill[g].extend(["s_cmp_eq_u32 s3, 0", "s_cbranch_scc1 M_SYA", "M_SYA_RET:"])
        ops = [f"s_lshl_b32 s7, s{S_QT}, 2", f"s_lshr_b32 s4, s{S_HEAD}, 2", "s_add_u32 s4, s4, s7",
               f"s_and_b32 s5, s{S_HEAD}, 3", "s_lshl_b32 s6, s3, 2", "s_add_u32 s5, s5, s6",
               "s_mul_i32 s6, s4, 28", "s_add_u32 s6, s6, s5", "s_lshl_b32 s6, s6, 10",
               f"s_add_u32 s53, s6, {Y_OFF}", "s_add_u32 s54, s53, 16384",
               f"v_and_b32 v{VO}, 31, v0", "v_lshrrev_b32 v3, 5, v0", "s_lshl_b32 s4, s4, 5", f"v_add_u32 v{VO}, s4, v{VO}",
               f"v_mul_u32_u24 v{VO}, 896, v{VO}", f"v_lshl_add_u32 v{VO}, v3, 3, v{VO}", "s_lshl_b32 s5, s5, 5",
               f"v_add_u32 v{VO}, s5, v{VO}"]
        ops += [f"buffer_load_dwordx2 {v(XR+2*k,2)}, v{VO}, s[{S_X}:{S_X+3}], 0 offen offset:{(k>>1)*512+(k&1)*16}" for k in range(4)]
        ops += [lambda e: flag_line(e, 55, FL_Y, S_QT), lambda e: flag_line(e, 63, FL_YA, S_QT)]
        pour(fill, ops, 5 * NFE + 2, 5 * NFE + 34)
        fill.setdefault(6 * NFE + opt.get("g_pa", 22), []).append(
            (f"buffer_load_dwordx2 {v(VP,2)}, v{V_FO}, s[{S_WS}:{S_WS+3}], s63 offen sc1", "pa"))

    sya = Seg("m_sya")
    sya.label("M_SYA")
    sya(f"s_lshl_b32 s6, s{S_HEAD}, 3")
    flag_set(sya, S_WS, 63, "s6", 20)
    sya("s_branch M_SYA_RET")
    extra.append(sya)

    def finish(e):
        stamp(e, opt, "yend")

        def loads(base, sreg, tag):
            for h in range(16):
                e(f"buffer_load_dwordx4 {v(base+4*h,4)}, v{V_L16}, s[{S_WS}:{S_WS+3}], s{sreg} offen sc1", tag)
                if h < 15:
                    e(f"s_add_u32 s{sreg}, s{sreg}, {64*28*1024}")

        def reduce(base, xr, off):
            acc, t = 20, 28
            for r in range(4):
                e(f"v_lshlrev_b32 v{acc+2*r}, 16, v{xr+r}")
                e(f"v_and_b32 v{acc+1+2*r}, 0xffff0000, v{xr+r}")
            for h in range(16):
                for r in range(4):
                    src = base + 4 * h + r
                    u = t + 2 * (r & 1)
                    e(f"v_lshlrev_b32 v{u}, 16, v{src}")
                    e(f"v_and_b32 v{u+1}, 0xffff0000, v{src}")
                    e(f"v_pk_add_f32 {v(acc+2*r,2)}, {v(acc+2*r,2)}, {v(u,2)}")
            for r in range(4):
                e(f"v_cvt_pk_bf16_f32 v{xr+r}, v{acc+2*r}, v{acc+1+2*r}")
            e(f"buffer_store_dwordx2 {v(xr,2)}, v{VO}, s[{S_OUT}:{S_OUT+3}], 0 offen offset:{off}")
            e(f"buffer_store_dwordx2 {v(xr+2,2)}, v{VO}, s[{S_OUT}:{S_OUT+3}], 0 offen offset:{off+16}")

        flag_test(e, VP)
        e("s_cselect_b32 s60, 1, 0")
        e("s_cbranch_scc0 M_NOA")
        loads(RA, 53, "ra")
        e.wait_force(vm=16)
        e("s_branch M_A1")
        e.label("M_NOA")
        e.wait_force(vm=0)
        e.label("M_A1")
        e("s_barrier")

        e("s_cmp_lg_u32 s3, 3")
        e("s_cbranch_scc1 M_PA_OK")
        e(f"s_lshl_b32 s6, s{S_HEAD}, 3")
        flag_set(e, S_WS, 55, "s6", 20)
        e("s_cmp_eq_u32 s60, 1")
        e("s_cbranch_scc1 M_PA_OK")
        spin(e, "M_PA", VP, V_FO, 63)
        e("s_barrier")
        e("s_cmp_eq_u32 s60, 1")
        e("s_cbranch_scc1 M_A2")
        loads(RA, 53, "ra")
        e.label("M_A2")
        e("s_cmp_eq_u32 s3, 3")
        e("s_cbranch_scc1 M_W3")
        e.wait_force(vm=0)
        reduce(RA, XR, 0)
        e("s_barrier")
        stamp(e, opt, "ypoll")
        e.vm = []
        loads(RB, 54, "rb")
        reduce(RB, XR + 4, 512)
        e("s_branch M_DONE")
        e.label("M_W3")
        spin(e, "M_PB", VP, V_FO, 55)
        e("s_barrier")
        stamp(e, opt, "ypoll")
        reduce(RA, XR, 0)
        e.label("M_DONE")
        stamp(e, opt, 5)
        stamp(e, opt, "end")
        stamp_flush(e, opt, 0, S_WS, 6)

    aopt = dict(opt)
    aopt["code_pf"] = not opt.get("no_cpf")
    aopt["stash"] = HS
    aopt["kv2"] = (S_HA, S_KVSLOT, V_FO, sum((kv_epi(b, attn.V_X + 4, 0) for b in range(12, 16)), []))
    if not opt.get("sp"):
        aopt["sp"] = ["none"]
        aopt["spk"] = ""
    asegs, atraces = attn.gen_attn(e, aopt, "M_END", finish, hooks)
    z = Seg("m_z")
    z.label("M_CODE_END")
    segs += asegs + extra + [z]
    for t in traces[1:]:
        t.append(e)
    traces += atraces + [[tails[0], fb, e]] + [[x] for x in extra]
    return segs, traces
```

```python
import re

REG_RE = re.compile(r"^(-?)(?:abs\()?([vas])(?:(\d+)|\[(\d+):(\d+)\])\)?$")
TRANS = ("v_exp_f32", "v_log_f32", "v_rcp_f32", "v_rsq_f32", "v_sqrt_f32", "v_sin_f32", "v_cos_f32")


def regs_of(tok):
    tok = tok.strip()
    if tok in ("vcc", "exec", "m0", "scc"):
        return [(tok, 0)]
    if tok in ("vcc_lo", "vcc_hi"):
        return [("vcc", 0)]
    if tok in ("exec_lo", "exec_hi"):
        return [("exec", 0)]
    m = REG_RE.match(tok)
    if not m:
        return []
    f = m.group(2)
    if m.group(3) is not None:
        return [(f, int(m.group(3)))]
    return [(f, i) for i in range(int(m.group(4)), int(m.group(5)) + 1)]


class Ins:
    __slots__ = ("text", "op", "rd", "wr", "kind", "n", "srcc", "passes", "tag")

    def __init__(self, text, tag=None):
        self.text = text
        self.tag = tag
        t = text.split(";")[0].strip()
        self.rd, self.wr, self.srcc, self.passes, self.n = set(), set(), set(), 0, 0
        if t.endswith(":"):
            self.op, self.kind = t, "label"
            return
        if not t or t.startswith("."):
            self.op, self.kind = t, "dir"
            return
        parts = t.split(None, 1)
        op = parts[0]
        self.op = op
        rest = parts[1] if len(parts) > 1 else ""
        ops = [o.strip() for o in rest.split(",")] if rest else []
        mods = []
        if ops:
            last = ops[-1].split()
            ops[-1] = last[0] if last else ""
            mods = last[1:]
        R = [regs_of(o) for o in ops]

        def rd(i):
            for r in R[i]:
                self.rd.add(r)

        def wr(i):
            for r in R[i]:
                self.wr.add(r)

        if op == "s_nop":
            self.kind, self.n = "nop", int(ops[0], 0) + 1
        elif op == "s_waitcnt":
            self.kind = "wait"
        elif op == "s_barrier":
            self.kind = "barrier"
        elif op in ("s_endpgm", "s_setprio", "s_sleep"):
            self.kind = "salu"
        elif op.startswith("s_cbranch") or op == "s_branch":
            self.kind = "branch"
            if "scc" in op:
                self.rd.add(("scc", 0))
            if "vcc" in op:
                self.rd.add(("vcc", 0))
            if "exec" in op:
                self.rd.add(("exec", 0))
        elif op.startswith("s_load") or op in ("s_memtime", "s_memrealtime"):
            self.kind = "smem"
            wr(0)
            for i in range(1, len(ops)):
                rd(i)
        elif op.startswith("s_cmp") or op.startswith("s_bitcmp"):
            self.kind = "salu"
            for i in range(len(ops)):
                rd(i)
            self.wr.add(("scc", 0))
        elif op.startswith("s_"):
            self.kind = "salu"
            wr(0)
            for i in range(1, len(ops)):
                rd(i)
            if op.startswith("s_cselect") or op.startswith("s_addc") or op.startswith("s_subb"):
                self.rd.add(("scc", 0))
            if "saveexec" in op:
                self.rd.add(("exec", 0))
                self.wr.add(("exec", 0))
            if not (op.startswith("s_mov") or op.startswith("s_mul") or op.startswith("s_cselect") or op.startswith("s_getreg") or op.startswith("s_getpc")):
                self.wr.add(("scc", 0))
            if op in ("s_addk_i32", "s_mulk_i32"):
                rd(0)
        elif op.startswith("v_mfma"):
            self.kind = "mfma"
            wr(0)
            rd(1)
            rd(2)
            rd(3)
            self.srcc = set(R[3])
            self.passes = 8 if "32x32" in op else 4
        elif op.startswith("ds_read") or op.startswith("ds_bpermute") or op.startswith("ds_swizzle"):
            self.kind = "ds_rd"
            wr(0)
            for i in range(1, len(ops)):
                rd(i)
        elif op.startswith("ds_write"):
            self.kind = "ds_wr"
            for i in range(len(ops)):
                rd(i)
        elif op.startswith("buffer_load") and "lds" in mods:
            self.kind = "vm_dma"
            for i in range(len(ops)):
                rd(i)
            self.rd.add(("m0", 0))
        elif op.startswith("buffer_load") or op.startswith("global_load"):
            self.kind = "vm_ld"
            if tag != "pf":
                wr(0)
            for i in range(1, len(ops)):
                rd(i)
        elif op.startswith("buffer_store") or op.startswith("global_store"):
            self.kind = "vm_st"
            for i in range(len(ops)):
                rd(i)
            if op.endswith("x4") or op.endswith("x3"):
                di = 0 if op.startswith("buffer") else 1
                self.srcc = set(R[di])
        elif op.startswith("buffer_atomic") or op.startswith("global_atomic"):
            self.kind = "vm_st"
            for i in range(len(ops)):
                rd(i)
            if "sc0" in mods and tag != "pf":
                self.kind = "vm_ld"
                wr(0)
        elif op in ("buffer_wbl2", "buffer_inv"):
            self.kind = "vm_st"
        elif op.startswith("v_"):
            base = op.replace("_e32", "").replace("_e64", "")
            self.kind = "trans" if base in TRANS else "valu"
            wr(0)
            st = 1
            if base in ("v_add_co_u32", "v_sub_co_u32", "v_addc_co_u32"):
                wr(1)
                st = 2
            for i in range(st, len(ops)):
                rd(i)
            if base.startswith("v_fmac") or base.startswith("v_dot2c") or base.startswith("v_pk_fmac"):
                rd(0)
            if base.startswith("v_permlane"):
                rd(0)
                wr(1)
            self.rd.add(("exec", 0))
        else:
            raise ValueError("unknown instruction: " + text)

    def states(self):
        if self.kind == "nop":
            return self.n
        if self.kind in ("label", "dir"):
            return 0
        return 1


def parse_wait(text):
    vm = re.search(r"vmcnt\((\d+)\)", text)
    lg = re.search(r"lgkmcnt\((\d+)\)", text)
    return (int(vm.group(1)) if vm else None, int(lg.group(1)) if lg else None)


class Seg:
    def __init__(self, name, lds=None, vm=None):
        self.name = name
        self.ins = []
        self.lds = list(lds) if lds else []
        self.vm = list(vm) if vm else []

    def raw(self, text, tag=None):
        i = Ins(text, tag)
        self.ins.append(i)
        return i

    def _need(self, i):
        touched = i.rd | i.wr
        nl = None
        for k, d in enumerate(self.lds):
            if d & touched:
                nl = len(self.lds) - 1 - k
        nv = None
        for k, (tg, d) in enumerate(self.vm):
            if d & touched:
                nv = len(self.vm) - 1 - k
        return nv, nl

    def wait(self, vm=None, lgkm=None):
        parts = []
        if vm is not None and vm < len(self.vm):
            assert vm <= 63
            parts.append(f"vmcnt({vm})")
            self.vm = self.vm[len(self.vm) - vm:] if vm else []
        if lgkm is not None and lgkm < len(self.lds):
            lgkm = min(lgkm, 15)
            parts.append(f"lgkmcnt({lgkm})")
            self.lds = self.lds[len(self.lds) - lgkm:] if lgkm else []
        if parts:
            self.raw("s_waitcnt " + " ".join(parts))

    def wait_force(self, vm=None, lgkm=None):
        parts = []
        if vm is not None:
            parts.append(f"vmcnt({vm})")
            if vm < len(self.vm):
                self.vm = self.vm[len(self.vm) - vm:] if vm else []
        if lgkm is not None:
            parts.append(f"lgkmcnt({lgkm})")
            if lgkm < len(self.lds):
                self.lds = self.lds[len(self.lds) - lgkm:] if lgkm else []
        self.raw("s_waitcnt " + " ".join(parts))

    def wait_tag(self, tag):
        last = None
        for k, (tg, d) in enumerate(self.vm):
            if tg == tag:
                last = k
        if last is not None:
            self.wait(vm=min(63, len(self.vm) - 1 - last))

    def wait_tags(self, tags):
        last = None
        for k, (tg, d) in enumerate(self.vm):
            if tg in tags:
                last = k
        if last is not None:
            self.wait(vm=min(63, len(self.vm) - 1 - last))

    def __call__(self, text, tag=None):
        i = Ins(text, tag)
        nv, nl = self._need(i)
        if nv is not None or nl is not None:
            self.wait(vm=None if nv is None else min(nv, 63), lgkm=nl)
        self.ins.append(i)
        if i.kind == "ds_rd":
            self.lds.append(frozenset(i.wr))
        elif i.kind == "ds_wr":
            self.lds.append(frozenset())
        elif i.kind == "smem":
            self.lds.append(frozenset(i.wr))
            self.lds.append(frozenset(i.wr))
        elif i.kind == "vm_ld":
            self.vm.append((tag, frozenset(i.wr)))
        elif i.kind in ("vm_st", "vm_dma"):
            self.vm.append((tag, frozenset()))
        elif i.kind == "wait":
            vm, lg = parse_wait(text)
            if vm is not None and vm < len(self.vm):
                self.vm = self.vm[len(self.vm) - vm:] if vm else []
            if lg is not None and lg < len(self.lds):
                self.lds = self.lds[len(self.lds) - lg:] if lg else []
        return i

    def label(self, name):
        self.raw(name + ":")

    def nop(self, n):
        while n > 0:
            k = min(n, 16)
            self.raw(f"s_nop {k-1}")
            n -= k

    def text(self):
        out = []
        for i in self.ins:
            t = re.sub(r"\[(\d)_(\d)_(\d)_(\d)\]", r"[\1,\2,\3,\4]", i.text)
            out.append(t if i.kind in ("label",) else "  " + t)
        return "\n".join(out) + "\n"


def is_valu(i):
    return i.kind in ("valu", "trans")


def required(p, c):
    need = 0
    vreg = lambda s: {r for r in s if r[0] in ("v", "a")}
    sreg = lambda s: {r for r in s if r[0] in ("s", "vcc")}
    if is_valu(p):
        w = vreg(p.wr)
        if c.kind == "mfma" and w & c.rd:
            need = max(need, 2)
        if is_valu(c) and w & c.rd:
            if c.op.startswith("v_readfirstlane") or c.op.startswith("v_readlane"):
                need = max(need, 1)
            if c.op.startswith("v_permlane") or "dpp" in c.text:
                need = max(need, 2)
            if p.kind == "trans" and c.kind != "trans":
                need = max(need, 1)
            if "sdwa" in p.text and "dst_sel:DWORD" not in p.text:
                need = max(need, 1)
        ws = sreg(p.wr)
        if ws:
            if is_valu(c) and ws & c.rd:
                need = max(need, 4 if c.op.startswith(("v_readlane", "v_writelane")) else 2)
            if c.kind.startswith("vm_") and ws & c.rd:
                need = max(need, 5)
    if p.kind == "mfma":
        idx = {4: 0, 8: 1}[p.passes]
        d = p.wr
        if c.kind == "mfma":
            if d & c.srcc:
                if not (c.srcc == d and c.passes == p.passes):
                    need = max(need, (6, 10)[idx])
            ab = c.rd - c.srcc if not (c.rd - c.srcc) <= c.srcc else set()
            toks = c.text.split(None, 1)[1].split(",")
            abr = set(regs_of(toks[1])) | set(regs_of(toks[2]))
            if d & abr:
                need = max(need, (8, 12)[idx])
            if d & c.wr and not (c.srcc == d):
                need = max(need, (6, 10)[idx])
        elif is_valu(c):
            if d & (c.rd | c.wr):
                need = max(need, (8, 12)[idx])
            if p.srcc & c.wr:
                need = max(need, (3, 7)[idx])
        elif c.kind in ("ds_rd", "ds_wr", "vm_ld", "vm_st", "vm_dma"):
            if d & (c.rd | c.wr):
                need = max(need, (8, 12)[idx])
            if p.srcc & c.wr:
                need = max(need, (3, 7)[idx])
    if p.kind == "salu" and ("m0", 0) in p.wr and c.kind == "vm_dma":
        need = max(need, 1)
    if p.kind == "vm_st" and p.srcc and p.srcc & c.wr:
        need = max(need, 2 if is_valu(c) else 1)
    return need


def check_trace(name, ins, fix=False):
    probs = []
    real = [i for i in ins if i.kind not in ("label", "dir")]
    for k, c in enumerate(real):
        dist = 0
        j = k - 1
        while j >= 0 and dist < 20:
            p = real[j]
            r = required(p, c)
            if r > dist:
                probs.append(f"[{name}] hazard need {r} have {dist}: '{p.text}' -> '{c.text}'")
            dist += p.states()
            j -= 1
    lds, vm = [], []
    for c in real:
        touched = c.rd | c.wr
        for d, t in lds:
            if d & touched:
                probs.append(f"[{name}] missing lgkm wait: '{t}' -> '{c.text}'")
        for d, t in vm:
            if d & touched:
                probs.append(f"[{name}] missing vm wait: '{t}' -> '{c.text}'")
        if c.kind == "ds_rd":
            lds.append((frozenset(c.wr), c.text))
        elif c.kind == "ds_wr":
            lds.append((frozenset(), c.text))
        elif c.kind == "smem":
            lds.insert(len(lds), (frozenset(c.wr), c.text + " (smem)"))
        elif c.kind == "vm_ld":
            vm.append((frozenset(c.wr), c.text))
        elif c.kind in ("vm_st", "vm_dma"):
            vm.append((frozenset(), c.text))
        elif c.kind == "wait":
            v, l = parse_wait(c.text)
            if v is not None and v < len(vm):
                vm = vm[len(vm) - v:] if v else []
            if l is not None:
                if l == 0:
                    lds = []
                elif any("(smem)" in t for d, t in lds):
                    pass
                elif l < len(lds):
                    lds = lds[len(lds) - l:]
    return probs


def fix_hazards(seg, prev=()):
    out = [i for i in prev if i.kind not in ("label", "dir")]
    base = len(out)
    res = []
    for c in seg.ins:
        if c.kind in ("label", "dir"):
            res.append(c)
            continue
        dist, j, pad = 0, len(out) - 1, 0
        while j >= 0 and dist < 20:
            p = out[j]
            r = required(p, c)
            if r > dist:
                pad = max(pad, r - dist)
            dist += p.states()
            j -= 1
        while pad > 0:
            k = min(pad, 16)
            n = Ins(f"s_nop {k-1}")
            out.append(n)
            res.append(n)
            pad -= k
        out.append(c)
        res.append(c)
    seg.ins = res


def weave(seg, spine, fillers):
    def put(x):
        if isinstance(x, list):
            for y in x:
                put(y)
        elif callable(x):
            x(seg)
        elif isinstance(x, tuple):
            seg(x[0], x[1])
        else:
            seg(x)
    for x in fillers.get(-1, []):
        put(x)
    for g, m in enumerate(spine):
        put(m)
        for x in fillers.get(g, []):
            put(x)


def spread(fill, items, g0, g1, per=None):
    n = len(items)
    if n == 0:
        return
    span = g1 - g0
    for k, it in enumerate(items):
        g = g0 + (k * span) // n
        fill.setdefault(g, []).append(it)


VMEM_COST = [1]
SALU_COST = [1]


def cost_of(x):
    if isinstance(x, list):
        return sum(cost_of(y) for y in x)
    if callable(x):
        return getattr(x, "cost", 1)
    t = x[0] if isinstance(x, tuple) else x
    if t.endswith(":"):
        return 0
    op = t.split()[0]
    if op in TRANS:
        return 2
    if op.startswith(("buffer_", "global_")):
        return VMEM_COST[0]
    if op.startswith("s_") and not op.startswith(("s_cbranch", "s_branch", "s_barrier", "s_nop")):
        return SALU_COST[0]
    return 1


def load_of(fill, g):
    return sum(cost_of(x) for x in fill.get(g, []))


def pour(fill, items, g0, g1):
    if not items:
        return
    gaps = list(range(g0, g1))
    base = [load_of(fill, g) for g in gaps]
    total = sum(cost_of(x) for x in items)
    lo, hi = 0.0, max(base) + total
    for _ in range(50):
        mid = (lo + hi) / 2
        if sum(max(0.0, mid - b) for b in base) >= total:
            hi = mid
        else:
            lo = mid
    free = [max(0.0, hi - b) for b in base]
    cum, acc = [], 0.0
    for f in free:
        acc += f
        cum.append(acc)
    pos, gi = 0.0, 0
    for x in items:
        c = cost_of(x)
        mid = pos + c / 2.0
        while gi < len(gaps) - 1 and cum[gi] < mid:
            gi += 1
        fill.setdefault(gaps[gi], []).append(x)
        pos += c


def run(e, ops):
    for x in ops:
        if isinstance(x, list):
            run(e, x)
        elif callable(x):
            x(e)
        elif isinstance(x, tuple):
            e(x[0], x[1])
        else:
            e(x)


def wait_reg(e, regs):
    rs = set(regs_of(regs))
    n = None
    for k, d in enumerate(e.lds):
        if d & rs:
            n = len(e.lds) - 1 - k
    if n is not None:
        e.wait(lgkm=n)


def gap_report(name, fill, n):
    loads = [load_of(fill, g) for g in range(n)]
    return f"{name}: gaps {n} total {sum(loads)} max {max(loads)} avg {sum(loads)/n:.2f} over5 {sum(max(0,l-5) for l in loads)} over6 {sum(max(0,l-6) for l in loads)}"


def _rw(x):
    if callable(x) and getattr(x, "salu", False):
        return set(), set(), False
    if callable(x) or isinstance(x, list):
        return set(), set(), True
    t, tag = (x if isinstance(x, tuple) else (x, None))
    i = Ins(t, tag)
    rigid = i.kind not in ("valu", "trans", "ds_rd")
    return i.rd - {("exec", 0)}, i.wr, rigid


def _is_salu(x):
    if callable(x):
        return getattr(x, "salu", False)
    if isinstance(x, (list, tuple)):
        return False
    return x.startswith("s_") and not x.startswith(("s_cbranch", "s_branch", "s_barrier", "s_nop"))


def _order(items):
    out = list(items)
    for k, y in enumerate(out):
        if _is_salu(y):
            ok = True
            ry, wy = (set(), set()) if callable(y) else (Ins(y).rd, Ins(y).wr)
            for x in out[:k]:
                rx, wx, rigid = _rw(x)
                t = x[0] if isinstance(x, tuple) else x
                if callable(x) or isinstance(x, list) or t.startswith("s_") or t.endswith(":"):
                    ok = False
                elif (wx & (ry | wy)) or (rx & wy) or ("exec", 0) in wy:
                    ok = False
            if ok:
                out.insert(0, out.pop(k))
            break
    return out


def _flat(items):
    for x in items:
        if isinstance(x, list):
            yield from _flat(x)
        else:
            yield x


def _time(items):
    fl = list(_flat(items))
    t = 0
    for k, x in enumerate(fl):
        if k == 0 and (_is_salu(x) or callable(x)):
            continue
        t += 1 if callable(x) else (2 if (x[0] if isinstance(x, tuple) else x).split()[0] in TRANS else (0 if (x[0] if isinstance(x, tuple) else x).endswith(":") else 1))
    return max(2, t)


W2_ORDER = [1]


def weave2(seg, pairs, fillers):
    run(seg, fillers.get(-1, []))
    for g, (ma, mb) in enumerate(pairs):
        items = fillers.get(g, [])
        n = len(items)
        info = [_rw(x) for x in items]
        best = None
        for mask in range(1 << n) if n <= 10 else [0]:
            ok = True
            for i in range(n):
                if not ok:
                    break
                if mask >> i & 1:
                    for j in range(i + 1, n):
                        if not (mask >> j & 1):
                            ri, wi, gi = info[i]
                            rj, wj, gj = info[j]
                            both_ds = all(isinstance(items[k], str) and items[k].startswith("ds_") for k in (i, j))
                            if gi or gj or both_ds or (wi & (rj | wj)) or (ri & wj):
                                ok = False
                                break
            if ok:
                L = _order([x for k, x in enumerate(items) if not mask >> k & 1])
                R = _order([x for k, x in enumerate(items) if mask >> k & 1])
                cl, cr = sum(map(cost_of, L)), sum(map(cost_of, R))
                key = (_time(L) + _time(R), abs(cl - cr), mask)
                if best is None or key < best[0]:
                    best = (key, L, R)
        seg(ma)
        run(seg, best[1])
        seg(mb)
        run(seg, best[2])


def waiter(regs, cost=1):
    w = lambda e: wait_reg(e, regs)
    w.salu, w.cost = True, cost
    return w
```

```python
from emit import *
from common import *

LDS_BYTES = 160 * 1024
S_WS, S_WO, S_W2, S_Y1 = 16, 8, 12, 28
V_L16, V_PD = 1, 2
V_DMA, V_DMA2 = 3, 4
V_L0, V_L1, V_VA, V_HA, V_D0, V_NEGBIG, V_MAX, V_MS = 8, 9, 10, 11, 13, 14, 15, 16
V_T = 18
V_S = (32, 48)
V_P = (64, 72)
V_NM = 80
V_X = 96
V_O = 128
A_Q, A_Q2, A_F, A_HF = 0, 64, 128, 192
S_HEAD, S_QT, S_NH, S_IT, S_T, S_RET, S_DELTA, S_ITH, S_OFFH, S_OFFD = 32, 33, 34, 35, 36, 37, 38, 39, 40, 41
S_KVB, S_W4K, S_PAIR, S_ITSW, S_ITSIG, S_PEND = 42, 43, 48, 49, 50, 51
S_OFF = 44
THR = 16.0
VSLOT = {32: 0x20000, 33: 0x24000}
S_NEG, S_QS, S_PFO, S_PFD, S_PUB = 52, 82, 83, 84, 78
V_KP = 12
KPD = 7
KVM = [""]


def setup_s(e):
    e(f"s_lshl_b32 s4, s{S_QT}, 2")
    e(f"s_sub_u32 s{S_NH}, 30, s4")
    e(f"s_sub_u32 s6, 15, s{S_QT}")
    e(f"s_cmp_ge_u32 s{S_QT}, 8")
    e(f"s_cselect_b32 s{S_NH}, 0, s{S_NH}")
    e(f"s_cselect_b32 s{S_PAIR}, s6, s{S_QT}")
    e(f"s_lshl_b32 s5, s{S_HEAD}, 3")
    e(f"s_add_u32 s{S_PAIR}, s{S_PAIR}, s5")
    e(f"s_lshl_b32 s{S_W4K}, s3, 12")
    e(f"s_lshl_b32 s{S_KVB}, s{S_HEAD}, 21")
    e(f"s_sub_u32 s5, 29, s{S_NH}")
    e("s_lshl_b32 s5, s5, 15")
    e(f"s_add_u32 s{S_OFFH}, s5, s{S_KVB}")
    e("s_lshl_b32 s5, s4, 15")
    e(f"s_add_u32 s{S_OFFD}, s5, s{S_KVB}")
    e(f"s_sub_u32 s5, s{S_NH}, 6")
    e("s_lshr_b32 s5, s5, 2")
    e(f"s_cmp_ge_u32 s{S_NH}, 6")
    e(f"s_cselect_b32 s{S_ITH}, s5, 99")
    e(f"s_lshr_b32 s5, s{S_NH}, 2")
    e(f"s_cmp_ge_u32 s{S_QT}, 8")
    e(f"s_cselect_b32 s{S_ITSW}, 99, s5")
    e(f"s_mov_b32 s{S_ITSIG}, s{S_ITSW}")
    e("s_cmp_eq_u32 s3, 0")
    e(f"s_cselect_b32 s{S_ITSIG}, s{S_ITSIG}, 99")
    e(f"s_mov_b32 s{S_NEG}, 0xffff8000")
    e(f"s_mov_b32 s{S_PEND}, 0")
    e(f"s_mov_b32 s{S_IT}, 0")
    e(f"s_mov_b32 s{S_T}, {f32(THR)}")


def setup_dma(e):
    e(f"v_lshlrev_b32 v{V_L16}, 4, v0")
    e(f"v_add_u32 v{V_DMA}, s{S_W4K}, v{V_L16}")
    e(f"v_add_u32 v{V_DMA2}, 0x4000, v{V_DMA}")


def setup_v(e):
    e(f"s_mul_i32 s5, s{S_QT}, 112")
    e("s_mul_i32 s6, s3, 28")
    e("s_add_u32 s5, s5, s6")
    e(f"v_min_u32 v{V_T}, 27, v0")
    e(f"v_add_u32 v{V_T}, s5, v{V_T}")
    e(f"s_mul_i32 s5, s{S_HEAD}, 229376")
    e(f"v_lshl_add_u32 v{V_X+1}, v{V_T}, 7, s5")
    e("s_mul_i32 s6, s3, 13")
    e(f"v_min_u32 v{V_T}, 12, v0")
    e(f"v_add_u32 v{V_T}, s6, v{V_T}")
    e(f"v_min_u32 v{V_T}, 48, v{V_T}")
    e(f"s_mul_i32 s5, s{S_QT}, 49")
    e(f"v_add_u32 v{V_T}, s5, v{V_T}")
    e(f"s_mul_i32 s5, s{S_HEAD}, 100352")
    e(f"v_lshl_add_u32 v{V_X+2}, v{V_T}, 7, s5")
    e(f"v_add_u32 v{V_VA}, 0x10000, v{V_L16}")
    e(f"v_and_b32 v{V_T}, 15, v0")
    e(f"v_lshrrev_b32 v{V_T+1}, 4, v0")
    e(f"v_lshlrev_b32 v{V_T+1}, 2, v{V_T+1}")
    e(f"v_sub_u32 v{V_D0}, v{V_T}, v{V_T+1}")
    e(f"v_mov_b32 v{V_NEGBIG}, {f32(-1e30)}")
    e(f"s_mov_b32 s{S_QS}, {f32(16 * QSCALE)}")
    e("s_cmp_eq_u32 s3, 0")
    e(f"s_cselect_b32 s{S_PUB}, 2, 0")
    e(f"s_and_b32 s5, s{S_QT}, 7")
    e("s_lshl_b32 s5, s5, 2")
    e("s_add_u32 s5, s5, s3")
    e("s_lshl_b32 s5, s5, 10")
    e(f"v_and_b32 v{V_T}, 7, v0")
    e(f"v_lshl_add_u32 v{V_KP}, v{V_T}, 7, s5")
    e(f"v_bfe_u32 v{V_T}, v0, 3, 2")
    e(f"v_lshl_add_u32 v{V_KP}, v{V_T}, 15, v{V_KP}")
    e(f"s_cmp_ge_u32 s{S_QT}, 8")
    e(f"s_cselect_b32 s{S_PFO}, {29 - KPD - 3}, {30 + KPD}")
    e(f"s_cselect_b32 s{S_PFD}, -4, 4")
    e("s_mul_i32 s5, s3, 7168")
    e("s_add_u32 s5, s5, 0x20000")
    e(f"v_add_u32 v{V_HA}, s5, v{V_L16}")


def idx_ops(dst, n):
    return [
        f"s_mov_b32 s{dst}, {(29-n) << 15}",
        f"s_cmp_gt_u32 s{S_NH}, {n}",
        f"s_cselect_b32 s{dst}, {(30+n) << 15}, s{dst}",
        f"s_add_u32 s{dst}, s{dst}, s{S_KVB}",
    ]


def dmaK(slot, off, tag="dma", S_WS=S_WS):
    return [f"s_add_u32 m0, s{S_W4K}, {slot*16384}"] + [
        (f"buffer_load_dwordx4 v{V_DMA}, s[{S_WS}:{S_WS+3}], s{off} offen offset:{j*1024}{KVM[0]} lds", tag) for j in range(4)]


def dmaV(base, off, tag="dma", S_WS=S_WS):
    return [f"s_add_u32 m0, s{S_W4K}, {base}"] + [
        (f"buffer_load_dwordx4 v{V_DMA2}, s[{S_WS}:{S_WS+3}], s{off} offen offset:{j*1024}{KVM[0]} lds", tag) for j in range(4)]


def first_loads(sr=S_WS):
    out = [[idx_ops(S_OFF + n, n)] for n in range(4)]
    seq = [out[0] + dmaK(0, S_OFF + 0, "k0", sr), dmaV(0x10000, S_OFF + 0, "v0", sr), out[1] + dmaK(1, S_OFF + 1, "k1", sr),
           dmaV(0x14000, S_OFF + 1, "v1", sr), out[2] + dmaK(2, S_OFF + 2, "k2", sr), out[3] + dmaK(3, S_OFF + 3, "k3", sr)]
    return seq


def init_state(e, o_from=V_O):
    for r in range(o_from, V_O + 128, 2):
        e(f"v_mov_b64 {v(r,2)}, 0")
    for r in range(0, 8, 2):
        e(f"v_mov_b64 {v(V_NM+r,2)}, 0")
    e(f"v_mov_b64 {v(V_L0,2)}, 0")


def gen_attn(e, opt, end_label, finish=None, hooks=None):
    D = opt.get("a_depth", 14)
    WG = opt.get("a_waitgrp", 8)
    YM = opt.get("y_store_mod", "")
    SC = opt.get("salu_cost", 0.25)
    KPF = 1 if opt.get("kpf") else 0
    NEPF = 3 if opt.get("loop_epf") else 0

    def rd(f, kslot, vbase):
        d = a(A_F + (f % 16) * 4, 4)
        if f < 16:
            return f"ds_read_b128 {d}, v{V_L16} offset:{kslot*16384 + f*1024}"
        return f"ds_read_b128 {d}, v{V_VA} offset:{vbase + (f-16)*1024}"

    M16 = "v_mfma_f32_16x16x32_bf16"

    def m1(f, qb, par):
        fr = a(A_F + (f % 16) * 4, 4)
        if f < 16:
            j, kb = divmod(f, 2)
            S = v(V_S[par ^ 1] + qb * 8 + kb * 4, 4)
            C = v(V_NM + qb * 4, 4) if j == 0 else S
            return f"{M16} {S}, {fr}, {a(A_Q+(j*2+qb)*4,4)}, {C}"
        j, b = divmod(f - 16, 2)
        O = v(V_O + (j * 2 + qb) * 8 + b * 4, 4)
        return f"{M16} {O}, {fr}, {v(V_P[par]+4*qb,4)}, {O}"

    def mf(u, par):
        if 16 <= u < 20:
            f, qb = 16 + 2 * (u & 1), (u - 16) >> 1
            return (m1(f, qb, par), m1(f + 1, qb, par))
        return (m1(u, 0, par), m1(u, 1, par))

    def max_ops(par):
        S = V_S[par]
        t = V_T
        ops = [f"v_max3_f32 v{t+k}, v{S+3*k}, v{S+3*k+1}, v{S+3*k+2}" for k in range(5)]
        ops += [f"v_max3_f32 v{t}, v{t}, v{t+1}, v{t+2}", f"v_max3_f32 v{t+3}, v{t+3}, v{t+4}, v{S+15}",
                f"v_max_f32 v{V_MAX}, v{t}, v{t+3}", f"v_cmp_lt_f32 vcc, s{S_T}, v{V_MAX}"]
        return ops

    def soft_ops(par):
        S, P = V_S[par], V_P[par]
        ops = []
        for k in range(9):
            if k < 8:
                ops += [f"v_exp_f32 v{S+2*k}, v{S+2*k}", f"v_exp_f32 v{S+2*k+1}, v{S+2*k+1}"]
            if k > 0:
                j = k - 1
                ops += [f"v_cvt_pk_bf16_f32 v{P+j}, v{S+2*j}, v{S+2*j+1}",
                        f"v_add_f32 v{V_L0+(j>>2)}, v{V_L0+(j>>2)}, v{S+2*j}", f"v_add_f32 v{V_L0+(j>>2)}, v{V_L0+(j>>2)}, v{S+2*j+1}"]
        return ops

    def mask_ops(par, t):
        S = V_S[par]
        ops = [[f"s_sub_u32 s54, {t}, s3", "s_lshl_b32 s54, s54, 5", f"v_subrev_u32 v{V_X}, s54, v{V_D0}"]]
        for h in range(4):
            for r in range(4 * h, 4 * h + 4):
                ops.append(f"v_cmp_le_i32 s[{64+2*(r%8)}:{65+2*(r%8)}], {16*(((r>>2)&1) - (r>>3)) + (r&3)}, v{V_X}")
            if h > 0:
                for r in range(4 * h - 4, 4 * h):
                    ops.append(f"v_cndmask_b32 v{S+r}, v{V_NEGBIG}, v{S+r}, s[{64+2*(r%8)}:{65+2*(r%8)}]")
        ops.append("s_nop 0")
        for r in range(12, 16):
            ops.append(f"v_cndmask_b32 v{S+r}, v{V_NEGBIG}, v{S+r}, s[{64+2*(r%8)}:{65+2*(r%8)}]")
        return ops

    def waits(fill, lo, hi, shift=0):
        for f in range(lo, hi, WG):
            r = a(A_F + ((f + WG - 1) % 16) * 4, 4)
            w = lambda e, r=r: wait_reg(e, r)
            w.salu, w.cost = True, SC
            fill.setdefault(f - 1 - shift, []).append(w)

    def place(fill, ops, g0, step=2):
        fill.setdefault(g0, []).append(ops[0])
        for j, d in enumerate(ops[1:]):
            fill.setdefault(g0 + 1 + step * j, []).append(d)

    rare_sites = {0: [], 1: []}
    stubs = Seg("a_stubs")

    def rare_check(e, par, name):
        k = len(rare_sites[par])
        rare_sites[par].append(name)
        e(f"s_cbranch_vccnz A_ST_{name}" if not opt.get("x_drop") else "s_nop 0")
        e.label(f"A_RET_{name}")
        stubs.label(f"A_ST_{name}")
        stubs(f"s_mov_b32 s{S_RET}, {k}")
        stubs(f"s_branch A_RARE{par}")

    V_EV, V_EA = V_X + 4, V_X + 8

    def e_setup():
        ops = ["v_lshrrev_b32 v24, 3, v0", "v_mul_u32_u24 v24, 896, v24", "v_lshrrev_b32 v26, 4, v0", "v_and_b32 v25, 7, v0",
               "v_lshlrev_b32 v27, 1, v26", "v_xor_b32 v25, v25, v27", f"v_lshl_add_u32 v{V_EV}, v25, 4, v24"]
        ops += [f"v_add_u32 v{V_EV+j}, {j*7168 - j*1024}, v{V_EV}" for j in range(1, 4)]
        ops += [f"s_mul_i32 s56, s{S_HEAD}, 229376", "s_mul_i32 s4, s3, 57344", "s_add_u32 s56, s56, s4",
                f"s_mul_i32 s57, s{S_HEAD}, 100352", "s_mul_i32 s4, s3, 28672", "s_add_u32 s57, s57, s4",
                "s_lshl_b32 s60, s3, 13"]
        ops += ["v_lshrrev_b32 v24, 2, v0", "v_bfe_u32 v25, v0, 3, 2", "v_lshlrev_b32 v24, 7, v24", "v_lshl_add_u32 v24, v25, 5, v24",
                "v_and_b32 v25, 3, v0", f"v_lshl_add_u32 v{V_EA}, v25, 3, v24"]
        ops += [f"v_xor_b32 v{V_EA+cb}, {cb << 5}, v{V_EA}" for cb in range(1, 4)]
        ops += [f"s_lshl_b32 s62, s{S_HEAD}, 6", f"s_lshl_b32 s4, s{S_QT}, 2", "s_add_u32 s62, s62, s4", "s_add_u32 s62, s62, s3",
                "s_mul_i32 s62, s62, 28672", f"s_add_u32 s62, s62, {Y_OFF}"]
        return ops

    def e_dma(tag="edma"):
        ops = []
        for grp in range(2):
            ops.append(["s_add_u32 s61, s58, s60", f"s_add_u32 m0, s61, {grp*4096}", f"s_add_u32 s61, s56, {grp*32*896}"])
            for j in range(4):
                ops.append((f"buffer_load_dwordx4 v{V_EV+j}, s[{S_WO}:{S_WO+3}], s61 offen offset:{j*1024} lds", tag))
        ops.append([f"s_add_u32 m0, s59, s{S_W4K}", "s_add_u32 s56, s56, 128"])
        for j in range(4):
            ops.append((f"buffer_load_dwordx4 v{V_EV+j}, s[{S_W2}:{S_W2+3}], s57 offen offset:{j*1024} lds", tag))
        ops.append("s_add_u32 s57, s57, 128")
        return ops

    EO = (0x8000, 0x14000, 0x20000)
    E2 = (0x10000, 0x1c000, 0x0)

    e.wait_tag("q")
    e.wait_tag("k0")
    e.wait(lgkm=0)
    e("s_barrier")
    HS = opt["stash"]
    for k in range(7):
        e(f"ds_write_b128 v{V_HA}, {v(HS+4*k,4)} offset:{k*1024}")
    for f in range(D):
        e(rd(f, 0, 0))
    spine = [mf(f, 1) for f in range(16)]
    fill = {}
    waits(fill, 0, 16)
    for f in range(16):
        nf = f + D
        if nf == 16:
            fill.setdefault(f, []).extend([lambda e: e.wait_tag("k1"), lambda e: e.wait(lgkm=0), "s_barrier"])
        fill.setdefault(f, []).append(rd(nf % 16, 0 if nf < 16 else 1, 0))
    weave2(e, spine, fill)
    run(e, idx_ops(S_OFF + 0, 4))
    e(f"s_cmp_gt_u32 s{S_NH}, 4")
    e(f"s_cselect_b32 s{S_DELTA}, 0x8000, s{S_NEG}")
    run(e, dmaK(0, S_OFF + 0, "k4"))
    stamp(e, opt, 1, raw=True)
    stamp(e, opt, "a_loop", raw=True)
    e(f"s_mov_b32 s{S_RET}, 0")
    e("s_branch A_FIRST")
    pro = e
    stateL, stateV = list(e.lds), [("dma", frozenset())] * 63

    def step(e, p, n=None, q0=False):
        par = p & 1
        SALU_COST[0] = SC
        nm = (f"Q{p}" if q0 else f"L{p}") if n is None else f"P{n}"
        sx = "_Q" if q0 else ""
        if p == 1:
            e(f"s_cmp_eq_u32 s{S_IT}, s{S_ITSW}")
            e(f"s_cbranch_scc1 A_SW1")
            e.label(f"A_SW1_RET_{nm}")
        spine = [mf(f, par) for f in range(32)]
        fill = {}
        waits(fill, 0, 32)
        vb = p * 16384 if n not in VSLOT else VSLOT[n] - 0x10000
        gb = 32 - D
        if n == 32:
            fill.setdefault(-1, []).append(f"v_add_u32 v{V_VA}, 0x10000, v{V_VA}")
            vb = 0
        for f in range(32):
            nf = f + D
            if nf == 32 and (n is None or n <= 30):
                vm = {None: 8, 28: 10, 29: 18, 30: 0}[n]
                if q0:
                    fill.setdefault(f, []).extend([lambda e: e.wait_tags((f"k{p+2}", f"v{p+1}")), "s_barrier"])
                elif n is None and p == 2:
                    fill.setdefault(f, []).append([f"s_cmp_eq_u32 s{S_IT}, s{S_ITSW}", "s_cbranch_scc1 A_ALTW",
                                                   lambda e, vm=vm: e.wait_force(vm=vm), "A_ALTW_RET:", "s_barrier"])
                else:
                    fill.setdefault(f, []).extend([lambda e, vm=vm: e.wait_force(vm=vm), "s_barrier"])
            if nf < 32:
                fill.setdefault(f, []).append(rd(nf, (p + 1) % 4, vb))
            elif n != 32:
                fill.setdefault(f, []).append(rd(nf - 32, (p + 2) % 4, 0))
        if n is None or n <= 28:
            place(fill, dmaV(0x10000 + ((p + 2) % 4) * 16384, S_OFF + (p + 2) % 4, f"v{p+2}"), 0, 4)
        if n is None or n <= 28:
            o = [f"s_add_u32 s{S_OFF+(p+1)%4}, s{S_OFF+p}, s{S_DELTA}"]
            if p == 1:
                d = S_OFF + 2
                o += [[f"s_cmp_eq_u32 s{S_IT}, s{S_ITH}", f"s_cselect_b32 s{d}, s{S_OFFH}, s{d}", f"s_cselect_b32 s{S_DELTA}, s{S_NEG}, s{S_DELTA}"],
                      [f"s_cmp_eq_u32 s{S_IT}, 6", f"s_cselect_b32 s{d}, s{S_OFFD}, s{d}", f"s_cselect_b32 s{S_DELTA}, 0x8000, s{S_DELTA}"]]
            place(fill, dmaK((p + 1) % 4, S_OFF + (p + 1) % 4, f"k{p+5}"), gb + 1, 3)
            late_o = o
        else:
            late_o = []
        if n == 29:
            place(fill, dmaV(0x10000 + 3 * 16384, S_OFF + 3), 0, 1)
            place(fill, dmaV(VSLOT[32], S_OFF + 0), 6, 1)
            place(fill, dmaV(VSLOT[33], S_OFF + 1), 12, 1)
        if n == 28:
            fill.setdefault(14, []).append((f"buffer_load_dword v{V_PD}, v{V_X+1}, s[{S_WO}:{S_WO+3}], 0 offen", "pf"))
            fill.setdefault(16, []).append((f"buffer_load_dword v{V_PD}, v{V_X+2}, s[{S_W2}:{S_W2+3}], 0 offen", "pf"))
            pour(fill, e_setup(), 9, 31)
        if n == 30:
            fill.setdefault(gb, []).extend([f"s_mov_b32 s58, {EO[0]}", f"s_mov_b32 s59, {E2[0]}"])
            pour(fill, e_dma("e0"), gb + 1, 32)
        if n is None and p == 3:
            fill.setdefault(gb + 3, []).append([f"s_cmp_eq_u32 s{S_IT}, s{S_ITSIG}", "s_cbranch_scc1 A_SIG", f"A_SIG_RET{sx}:"])
        if n is None and p == 2:
            if not q0:
                fill.setdefault(17, []).append([f"s_bitcmp1_b32 10, s{S_IT}", "s_cbranch_scc1 A_KV2L", "A_KV2L_RET:"])
            fill.setdefault(gb + 3, []).append([f"s_cmp_lt_u32 s{S_IT}, s{S_PUB}", "s_cbranch_scc1 A_KV2S", f"A_KV2S_RET{sx}:"])
        if n == 31:
            fill.setdefault(2, []).extend([lambda e: flag_line(e, 55, FL_PAIR, S_PAIR), f"v_mov_b32 v{V_X+12}, 8"])
            fill.setdefault(4, []).append((f"buffer_load_dwordx2 {v(V_X+14,2)}, v{V_X+12}, s[{S_WS}:{S_WS+3}], s55 offen sc1", "ep"))
        if n is None and p == 0 and KPF:
            fill.setdefault(9, []).append([f"s_max_i32 s53, s{S_PFO}, 0", "s_min_i32 s53, s53, 60", "s_lshl_b32 s53, s53, 15",
                                           f"s_add_u32 s53, s53, s{S_KVB}"])
            fill.setdefault(11, []).append((f"buffer_load_dword v{V_PD}, v{V_KP}, s[{S_WS}:{S_WS+3}], s53 offen", "pf"))
            fill.setdefault(12, []).append(f"s_add_i32 s{S_PFO}, s{S_PFO}, s{S_PFD}")
        if n is None and p == 3 and NEPF:
            fill.setdefault(10, []).append((f"buffer_load_dword v{V_PD}, v{V_X+1}, s[{S_WO}:{S_WO+3}], 0 offen", "pf"))
            fill.setdefault(12, []).append((f"buffer_load_dword v{V_PD}, v{V_X+2}, s[{S_W2}:{S_W2+3}], 0 offen", "pf"))
            if NEPF == 3:
                fill.setdefault(14, []).append((f"global_load_dword v{V_PD}, v{V_X+3}, s[80:81]", "pf"))
        if n is None:
            RW, X_, T_, OU = V_X + 24, V_X + 28, V_T + 6, V_T + 10
            h = p >> 1
            if p == 0 and q0:
                fill.setdefault(0, []).append(f"ds_read_b128 {v(RW,4)}, v{V_HA}")
            elif p == 0:
                fill.setdefault(0, []).append(f"ds_write_b128 v{V_HA}, {v(OU,4)}")
                fill.setdefault(2, []).append(f"ds_read_b128 {v(RW,4)}, v{V_HA} offset:1024")
                fill.setdefault(3, []).append(f"v_add_u32 v{V_HA}, 0x400, v{V_HA}")
            if p % 2 == 0:
                sl = []
                for r in range(2):
                    sl += [f"v_lshlrev_b32 v{X_+2*r}, 16, v{RW+2*h+r}", f"v_and_b32 v{X_+2*r+1}, 0xffff0000, v{RW+2*h+r}"]
                sl += [f"v_exp_f32 v{T_+r}, -v{X_+r}" for r in range(4)]
            else:
                sl = [f"v_fma_f32 v{T_+r}, v{T_+r}, s{S_QS}, s{S_QS}" for r in range(4)]
                sl += [f"v_rcp_f32 v{T_+r}, v{T_+r}" for r in range(4)]
                sl += [f"v_mul_f32 v{T_+r}, v{T_+r}, v{X_+r}" for r in range(4)]
                sl += [f"v_cvt_pk_bf16_f32 v{OU+2*h+r}, v{T_+2*r}, v{T_+2*r+1}" for r in range(2)]
            silu = sl
        else:
            silu = []
        if n == 28:
            fill.setdefault(-1, []).extend([f"ds_write_b128 v{V_HA}, {v(V_T+10,4)}", f"v_subrev_u32 v{V_HA}, 0x1800, v{V_HA}"])
            for k in range(6):
                fill.setdefault(k, []).append(f"ds_read_b128 {a(A_HF+4*k,4)}, v{V_HA} offset:{k*1024}")
            for qb in range(2):
                fill.setdefault(6 + qb, []).append(f"ds_read_b64 {a(A_HF+24+4*qb,2)}, v{V_HA} offset:{6144+8*qb}")
                fill.setdefault(20 + qb, []).extend([f"v_accvgpr_write_b32 a{A_HF+26+4*qb}, 0", f"v_accvgpr_write_b32 a{A_HF+27+4*qb}, 0"])
        so = soft_ops(par)
        mo = (mask_ops(par ^ 1, n - 29) if n is not None and n >= 29 else []) + max_ops(par ^ 1)
        sa = [x for x in so if not x.startswith("v_add")]
        pour(fill, sa, 0, 17)
        pour(fill, late_o, 10, gb + 2)
        pour(fill, mo, 18, 32)
        if opt.get("x_nosilu"):
            silu = [x for x in silu if x.startswith(("ds_", "v_add_u32"))]
        if opt.get("x_pk"):
            adds = [x for x in so if x.startswith("v_add")]
            so = sa + [f"v_add_pk {k}" for k in range(8)]
        pour(fill, silu, 16 if p == 0 else 0, 32)
        if q0:
            kv3 = opt["kv2"][3]
            cut = [0, 32, 64, 96, len(kv3)]
            pour(fill, kv3[cut[p]:cut[p+1]], 0, 12 if p == 3 else 32)
        for x in so:
            if x.startswith("v_add_pk"):
                k = int(x.split()[1])
                S_ = V_S[par]
                acc = V_NM + 8 + 2 * (k >> 2)
                g0 = [g for g in fill for y in fill[g] if isinstance(y, str) and y.startswith(f"v_exp_f32 v{S_+2*k+1},")][0]
                g = min(range(g0 + 1, 32), key=lambda g: (load_of(fill, g), g))
                fill[g].append(f"v_pk_add_f32 {v(acc,2)}, {v(acc,2)}, {v(S_+2*k,2)}")
            elif x.startswith("v_add"):
                src = x.split(",")[-1].strip()
                g0 = [g for g in fill for y in fill[g] if isinstance(y, str) and y.startswith(f"v_exp_f32 {src},")][0]
                g = min(range(g0 + 1, 32), key=lambda g: (load_of(fill, g), g))
                fill[g].append(x)
        if n is None:
            def drop(pred):
                for g in fill:
                    fill[g] = [x for x in fill[g] if not pred(x)]
            txt = lambda x: x[0] if isinstance(x, tuple) else (x if isinstance(x, str) else "")
            if opt.get("x_nobar"):
                drop(lambda x: txt(x) == "s_barrier")
            if opt.get("x_nodma"):
                drop(lambda x: " lds" in txt(x))
            if opt.get("x_novalu"):
                drop(lambda x: txt(x).startswith(("v_exp", "v_add_f32", "v_cvt", "v_max", "v_mul", "v_rcp", "v_fma", "v_lshl", "v_and")))
            for pat in opt.get("x_drop", []):
                drop(lambda x: txt(x).startswith(pat))
            if opt.get("x_noexp"):
                for g in fill:
                    fill[g] = [x.replace("v_exp_f32", "v_mov_b32").replace("v_rcp_f32", "v_mov_b32") if isinstance(x, str) else x for x in fill[g]]
        if opt.get("verbose"):
            print(gap_report(f"step {nm}", fill, 32), [load_of(fill, g) for g in range(32)])
        weave2(e, spine, fill)
        if p == 1:
            e(f"s_cmp_eq_u32 s{S_IT}, s{S_ITSW}")
            e("s_cbranch_scc1 A_SW2")
        rare_check(e, par, nm)
        SALU_COST[0] = 1

    q0 = Seg("a_q0", stateL, pro.vm)
    q0.label("A_Q0")
    for p in range(4):
        step(q0, p, q0=True)
    q0(f"s_mov_b32 s{S_IT}, 1")
    assert q0.lds == stateL
    lp = Seg("a_loop", stateL, stateV)
    lp.label("A_LOOP")
    for p in range(4):
        step(lp, p)
    lp(f"s_add_u32 s{S_IT}, s{S_IT}, 1")
    for it in range(1, 8):
        if f"ai{it}" in opt.get("sp", []):
            lp(f"s_cmp_lg_u32 s{S_IT}, {it}")
            lp(f"s_cbranch_scc1 A_NS{it}")
            stamp(lp, opt, f"ai{it}", raw=True)
            lp.label(f"A_NS{it}")
    lp(f"s_bitcmp1_b32 20, s{S_IT}")
    lp("s_cbranch_scc1 A_KV2C")
    lp(f"s_cmp_lt_u32 s{S_IT}, 7")
    lp("s_cbranch_scc1 A_LOOP")
    stamp(lp, opt, "a_lend", raw=True)
    assert lp.lds == stateL

    peel = {}
    for n in range(28, 33):
        sg = Seg(f"a_p{n}", stateL, stateV)
        step(sg, n % 4, n)
        if n == 31:
            sg(f"s_cmp_ge_u32 s{S_QT}, 8")
            sg("s_cbranch_scc1 A_EARLY")
            sg.label("A_EARLY_RET")
        if n >= 29 and n < 32:
            sg(f"s_cmp_eq_u32 s3, {n-29}")
            sg(f"s_cbranch_scc1 A_TAILW{n-29}")
        peel[n] = sg

    def signal(e):
        flag_line(e, 55, FL_PAIR, S_PAIR)
        flag_set(e, S_WS, 55, 1, V_X + 12)
        e(f"s_mov_b32 s{S_PEND}, 0")

    def tail_body(e, par):
        e.wait(lgkm=0)
        for f in range(16, 16 + D):
            e(rd(f, 0, 0))
        so = soft_ops(par)
        sa = [x for x in so if not x.startswith("v_add")]
        run(e, sa[:20])
        spine = [mf(f, par) for f in range(16, 32)]
        fill = {}
        waits(fill, 16, 32, 16)
        for f in range(16, 32):
            if f + D < 32:
                fill.setdefault(f - 16, []).append(rd(f + D, 0, 0))
        fill.setdefault(0, []).extend(sa[20:])
        pour(fill, [x for x in so if x.startswith("v_add")], 1, 14)
        weave2(e, spine, fill)

    t3 = Seg("a_tail1", stateL, stateV)
    t3(f"v_add_u32 v{V_VA}, 0x4000, v{V_VA}")
    t3.label("A_TAIL1")
    tail_body(t3, 1)
    t3.label("A_FIN")
    t0 = Seg("a_tail0", stateL, stateV)
    t0.label("A_TAILW0")
    t0(f"v_add_u32 v{V_VA}, 0x8000, v{V_VA}")
    t0("s_branch A_TAIL0")
    t0.label("A_TAILW1")
    t0(f"v_add_u32 v{V_VA}, 0xc000, v{V_VA}")
    t0("s_branch A_TAIL1")
    t0.label("A_TAILW2")
    t0(f"v_add_u32 v{V_VA}, 0x10000, v{V_VA}")
    t0.label("A_TAIL0")
    tail_body(t0, 0)
    t0("s_cmp_lg_u32 s3, 0")
    t0("s_cbranch_scc1 A_FIN")
    t0.wait_force(vm=0)
    t0("s_barrier")
    t0(f"s_mov_b32 s58, {EO[0]}")
    t0(f"s_mov_b32 s59, {E2[0]}")
    run(t0, e_dma("e0"))
    t0(f"s_cmp_eq_u32 s{S_PEND}, 0")
    t0("s_cbranch_scc1 A_FIN")
    signal(t0)
    t0("s_branch A_FIN")

    def ret_chain(e, names):
        for k, nm in enumerate(names[:-1]):
            e(f"s_cmp_eq_u32 s{S_RET}, {k}")
            e(f"s_cbranch_scc1 A_RET_{nm}")
        e(f"s_branch A_RET_{names[-1]}")

    def across(e, regs, tmp, op):
        for step in (16, 32):
            for k, r in enumerate(regs):
                e(f"v_mov_b32 v{tmp+k}, v{r}")
            e.nop(2)
            for k, r in enumerate(regs):
                e(f"v_permlane{step}_swap_b32 v{r}, v{tmp+k}")
            for k, r in enumerate(regs):
                e(f"{op} v{r}, v{r}, v{tmp+k}")

    def row_max(e, S):
        t = V_T
        for qb in range(2):
            b = S + 8 * qb
            e(f"v_max3_f32 v{t+qb}, v{b}, v{b+1}, v{b+2}")
            e(f"v_max3_f32 v{t+2+qb}, v{b+3}, v{b+4}, v{b+5}")
            e(f"v_max3_f32 v{t+qb}, v{t+qb}, v{b+6}, v{b+7}")
            e(f"v_max_f32 v{t+qb}, v{t+qb}, v{t+2+qb}")
        across(e, (t, t + 1), t + 2, "v_max_f32")

    def rare(par):
        e = Seg(f"a_rare{par}", stateL, stateV)
        e.label(f"A_RARE{par}")
        S = V_S[par ^ 1]
        t = V_T
        row_max(e, S)
        for qb in range(2):
            e(f"v_max_f32 v{t+qb}, 0, v{t+qb}")
            e(f"v_exp_f32 v{t+4+qb}, -v{t+qb}")
        for r in range(16):
            e(f"v_sub_f32 v{S+r}, v{S+r}, v{t+(r>>3)}")
        for r in range(8):
            e(f"v_sub_f32 v{V_NM+r}, v{V_NM+r}, v{t+(r>>2)}")
        e(f"v_mul_f32 v{V_L0}, v{V_L0}, v{t+4}")
        e(f"v_mul_f32 v{V_L1}, v{V_L1}, v{t+5}")
        for r in range(128):
            e(f"v_mul_f32 v{V_O+r}, v{V_O+r}, v{t+4+((r>>3)&1)}")
        ret_chain(e, rare_sites[par])
        return e

    r0, r1 = rare(0), rare(1)

    fs = Seg("a_first", stateL, stateV)
    e = fs
    e.label("A_FIRST")
    t = V_T
    row_max(e, V_S[0])
    for r in range(16):
        e(f"v_sub_f32 v{V_S[0]+r}, v{V_S[0]+r}, v{t+(r>>3)}")
    for r in range(8):
        e(f"v_sub_f32 v{V_NM+r}, 0, v{t+(r>>2)}")
    e(f"s_cmp_eq_u32 s{S_RET}, 0")
    e("s_cbranch_scc1 A_Q0")
    e(f"s_cmp_eq_u32 s{S_IT}, 7")
    e("s_cbranch_scc1 A_RET_P29")
    e(f"s_cmp_eq_u32 s{S_IT}, 0")
    e("s_cbranch_scc1 A_RET_Q1")
    e("s_branch A_RET_L1")

    sw1 = Seg("a_sw1", stateL, stateV)
    e = sw1
    e.label("A_SW1")
    for r in range(64):
        e(f"v_accvgpr_mov_b32 a{A_Q+r}, a{A_Q2+r}")
    e(f"v_mov_b32 v{V_MS}, v{V_NM}")
    e(f"v_mov_b32 v{V_MS+1}, v{V_NM+4}")
    for r in range(0, 8, 2):
        e(f"v_mov_b64 {v(V_NM+r,2)}, 0")
    e(f"s_cmp_eq_u32 s{S_IT}, 7")
    e("s_cbranch_scc1 A_SW1_RET_P29")
    e(f"s_cmp_eq_u32 s{S_IT}, 0")
    e("s_cbranch_scc1 A_SW1_RET_Q1")
    e("s_branch A_SW1_RET_L1")

    def part_addr(e):
        e(f"s_lshl_b32 s54, s{S_PAIR}, 2")
        e("s_add_u32 s54, s54, s3")
        e("s_lshl_b32 s55, s54, 10")
        e(f"s_add_u32 s55, s55, {ML_OFF}")
        e("s_lshl_b32 s54, s54, 14")
        e(f"s_add_u32 s54, s54, {OP_OFF}")

    sw2 = Seg("a_sw2", stateL, stateV)
    e = sw2
    e.label("A_SW2")
    part_addr(e)
    t = V_X + 12
    e(f"v_lshrrev_b32 v{t+2}, 1, v{V_L16}")
    e(f"buffer_store_dwordx2 {v(V_MS,2)}, v{t+2}, s[{S_WS}:{S_WS+3}], s55 offen sc1")
    e(f"buffer_store_dwordx2 {v(V_L0,2)}, v{t+2}, s[{S_WS}:{S_WS+3}], s55 offen offset:512 sc1")
    for k in range(16):
        if k and k % 4 == 0:
            e("s_add_u32 s54, s54, 4096")
        u = t + 4 + (k % 2) * 4
        for r in range(4):
            o = V_O + 8 * k + 2 * r
            e(f"v_cvt_pk_bf16_f32 v{u+r}, v{o}, v{o+1}")
        for r in range(4):
            e(f"v_mov_b64 {v(V_O+8*k+2*r,2)}, 0")
        e(f"buffer_store_dwordx4 {v(u,4)}, v{V_L16}, s[{S_WS}:{S_WS+3}], s54 offen offset:{(k%4)*1024} sc1")
    e(f"v_mov_b64 {v(V_L0,2)}, 0")
    e(f"s_mov_b32 s{S_PEND}, 1")
    e(f"s_mov_b32 s{S_RET}, 1")
    e("s_branch A_FIRST")

    sig = Seg("a_sig", stateL, stateV)
    sig.label("A_SIG")
    signal(sig)
    sig(f"s_cmp_eq_u32 s{S_IT}, 0")
    sig("s_cbranch_scc1 A_SIG_RET_Q")
    sig("s_branch A_SIG_RET")
    S_HA, S_SLOT, V_FO, kv3 = opt["kv2"]
    sig.label("A_KV2S")
    flag_line(sig, 55, FL_KV2, S_HA)
    sig(f"s_lshl_b32 s53, s{S_IT}, 13")
    sig("s_add_u32 s55, s55, s53")
    flag_set(sig, S_WS, 55, f"s{S_SLOT}", V_X + 12)
    sig(f"s_cmp_eq_u32 s{S_IT}, 0")
    sig("s_cbranch_scc1 A_KV2S_RET_Q")
    sig("s_branch A_KV2S_RET")
    sig.label("A_KV2L")
    flag_line(sig, 85, FL_KV2, S_HEAD)
    sig(f"s_lshr_b32 s53, s{S_IT}, 1")
    sig("s_lshl_b32 s53, s53, 13")
    sig("s_add_u32 s85, s85, s53")
    sig.raw(f"buffer_load_dwordx2 v[6:7], v{V_FO}, s[{S_WS}:{S_WS+3}], s85 offen sc1", "pf")
    sig("s_branch A_KV2L_RET")
    sig.label("A_KV2C")
    sig.wait_force(vm=8)
    if not NEPF:
        sig(f"s_cmp_lg_u32 s{S_IT}, 4")
        sig("s_cbranch_scc1 A_NOEPF")
        sig(f"global_load_dword v{V_PD}, v{V_X+3}, s[80:81]", "pf")
        sig.label("A_NOEPF")
    sig("s_mov_b32 s53, 0")
    sig.label("A_KV2P")
    flag_test(sig, 6)
    sig("s_cbranch_scc1 A_LOOP")
    sig("s_sleep 2")
    sig(f"buffer_load_dwordx2 v[6:7], v{V_FO}, s[{S_WS}:{S_WS+3}], s85 offen sc1")
    sig.wait_force(vm=0)
    sig("s_add_u32 s53, s53, 1")
    sig(f"s_cmp_lt_u32 s53, {opt.get('poll_max', 200000)}")
    sig("s_cbranch_scc1 A_KV2P")
    sig("s_branch A_LOOP")
    sig.label("A_ALTW")
    sig.wait_force(vm=26)
    sig("s_branch A_ALTW_RET")

    e = Seg("a_fin", [], stateV)
    stamp(e, opt, 2)
    stamp(e, opt, "a_fin")
    t = V_T
    CT = V_S[0]
    e(f"s_cmp_ge_u32 s{S_QT}, 8")
    e("s_cbranch_scc1 A_MERGE")
    across(e, (V_L0, V_L1), t, "v_add_f32")
    e(f"v_rcp_f32 v{t}, v{V_L0}")
    e(f"v_rcp_f32 v{t+2}, v{V_L1}")
    e.nop(1)
    e(f"v_mov_b32 v{t+1}, v{t}")
    e(f"v_mov_b32 v{t+3}, v{t+2}")
    for k in range(64):
        e(f"v_pk_mul_f32 {v(V_O+2*k,2)}, {v(V_O+2*k,2)}, {v(t+2*((k>>2)&1),2)}")
        if k:
            e(f"v_cvt_pk_bf16_f32 v{CT+k-1}, v{V_O+2*k-2}, v{V_O+2*k-1}")
    e(f"v_cvt_pk_bf16_f32 v{CT+63}, v{V_O+126}, v{V_O+127}")
    e("s_branch A_EPI")
    fin = e

    ML = V_X + 16

    def part_loads(e):
        part_addr(e)
        e(f"v_lshrrev_b32 v{V_X+12}, 1, v{V_L16}")
        e(f"buffer_load_dwordx2 {v(ML,2)}, v{V_X+12}, s[{S_WS}:{S_WS+3}], s55 offen sc1")
        e(f"buffer_load_dwordx2 {v(ML+2,2)}, v{V_X+12}, s[{S_WS}:{S_WS+3}], s55 offen offset:512 sc1")
        for k in range(16):
            if k and k % 4 == 0:
                e("s_add_u32 s54, s54, 4096")
            e(f"buffer_load_dwordx4 {a(A_Q2+4*k,4)}, v{V_L16}, s[{S_WS}:{S_WS+3}], s54 offen offset:{(k%4)*1024} sc1")

    early = Seg("a_early", stateL, peel[31].vm)
    e = early
    e.label("A_EARLY")
    flag_test(e, V_X + 14)
    e("s_cbranch_scc0 A_EARLY_RET")
    part_loads(e)
    e(f"s_mov_b32 s{S_PEND}, 2")
    e("s_branch A_EARLY_RET")

    mg = Seg("a_merge", [], stateV)
    e = mg
    e.label("A_MERGE")
    e(f"s_cmp_eq_u32 s{S_PEND}, 2")
    e("s_cbranch_scc1 A_HAVE")
    flag_line(e, 55, FL_PAIR, S_PAIR)
    e(f"v_mov_b32 v{t}, 8")
    e("s_mov_b32 s53, 0")
    e.label("A_POLL")
    e(f"buffer_load_dwordx2 {v(t+2,2)}, v{t}, s[{S_WS}:{S_WS+3}], s55 offen sc1")
    e.wait_force(vm=0)
    flag_test(e, t + 2)
    e("s_cbranch_scc1 A_POLL_OK")
    e("s_sleep 4")
    e("s_add_u32 s53, s53, 1")
    e(f"s_cmp_lt_u32 s53, {opt.get('poll_max', 200000)}")
    e("s_cbranch_scc1 A_POLL")
    e.label("A_POLL_OK")
    part_loads(e)
    e.label("A_HAVE")
    W = V_X + 20
    for qb in range(2):
        nm = V_NM + 4 * qb
        c1, c2 = t + 2 * qb, t + 4 + 2 * qb
        e(f"v_min_f32 v{W+qb}, v{nm}, v{ML+qb}")
        e(f"v_sub_f32 v{c1}, v{W+qb}, v{nm}")
        e(f"v_sub_f32 v{c2}, v{W+qb}, v{ML+qb}")
        e(f"v_exp_f32 v{c1}, v{c1}")
        e(f"v_exp_f32 v{c2}, v{c2}")
        e.nop(1)
        e(f"v_mul_f32 v{W+qb}, v{c2}, v{ML+2+qb}")
        e(f"v_fma_f32 v{W+qb}, v{V_L0+qb}, v{c1}, v{W+qb}")
    across(e, (W, W + 1), W + 2, "v_add_f32")
    for qb in range(2):
        c1, c2 = t + 2 * qb, t + 4 + 2 * qb
        e(f"v_rcp_f32 v{W+qb}, v{W+qb}")
        e.nop(1)
        e(f"v_mul_f32 v{c1}, v{c1}, v{W+qb}")
        e(f"v_mul_f32 v{c2}, v{c2}, v{W+qb}")
        e(f"v_mov_b32 v{c1+1}, v{c1}")
        e(f"v_mov_b32 v{c2+1}, v{c2}")
    for k in range(64):
        e(f"v_pk_mul_f32 {v(V_O+2*k,2)}, {v(V_O+2*k,2)}, {v(t+2*((k>>2)&1),2)}")
    for k in range(64):
        u = t + 8 + (k % 2) * 2
        e(f"v_accvgpr_read_b32 v{u+1}, a{A_Q2+k}")
        if k:
            e(f"v_cvt_pk_bf16_f32 v{CT+k-1}, v{V_O+2*k-2}, v{V_O+2*k-1}")
        e(f"v_lshlrev_b32 v{u}, 16, v{u+1}")
        e(f"v_and_b32 v{u+1}, 0xffff0000, v{u+1}")
        e(f"v_pk_fma_f32 {v(V_O+2*k,2)}, {v(u,2)}, {v(t+4+2*((k>>2)&1),2)}, {v(V_O+2*k,2)}")
    e(f"v_cvt_pk_bf16_f32 v{CT+63}, v{V_O+126}, v{V_O+127}")

    e = Seg("a_epi", [], [])
    e.label("A_EPI")
    stamp(e, opt, 3)
    stamp(e, opt, "a_epi")
    YA = (V_O, V_O + 16)
    YP = V_O + 32
    VC = V_O + 48
    ED = opt.get("e_depth", 7)
    NFE, NT = 48, 7
    NF = NFE * NT

    def eunit(f):
        c, r = divmod(f, NFE)
        seg, r = divmod(r, 24)
        ks, b = divmod(r, 2)
        return c, seg, ks, b

    def erd(f):
        c, seg, ks, b = eunit(f)
        off = (EO[c % 3] + 32 * ks * 128) if ks < 8 else (E2[c % 3] + 32 * (ks - 8) * 128)
        base = (V_EA, VC, VC + 4)[off >> 16] + seg * 2 + b
        off &= 0xffff
        return [f"ds_read_b64_tr_b16 {a(A_F+(f%8)*4+2*u,2)}, v{base} offset:{off+u*2048}" for u in range(2)]

    def ecvt(c, seg):
        ops = [f"v_cvt_pk_bf16_f32 v{YP+8*seg+r}, v{YA[seg]+2*r}, v{YA[seg]+2*r+1}" for r in range(8)]
        st = [(f"buffer_store_dwordx4 {v(YP+8*seg+4*k,4)}, v{V_L16}, s[{S_WS}:{S_WS+3}], s62 offen offset:{seg*2048+k*1024}{YM}",
               "ya" if c < 4 else "yb") for k in range(2)]
        if seg == 1 and c < NT - 1:
            st.append("s_add_u32 s62, s62, 4096")
        return ops, st

    def edma_at(t):
        return [[f"s_mov_b32 s58, {EO[t%3]}", f"s_mov_b32 s59, {E2[t%3]}"]] + e_dma(f"e{t}")

    for k in range(4):
        e(f"v_add_u32 v{VC+k}, 0x10000, v{V_EA+k}")
        e(f"v_add_u32 v{VC+4+k}, 0x20000, v{V_EA+k}")
    SALU_COST[0] = SC
    e.wait_force(vm=0)
    e("s_barrier")
    for f in range(ED):
        run(e, erd(f))
    spine, fill = [], {}
    for f in range(NF):
        c, seg, ks, b = eunit(f)
        pr = []
        for qb in range(2):
            B = v(CT + (ks * 2 + qb) * 4, 4) if ks < 8 else a(A_HF + ((ks - 8) * 2 + qb) * 4, 4)
            acc = v(YA[seg] + qb * 8 + b * 4, 4)
            pr.append(f"{M16} {acc}, {a(A_F+(f%8)*4,4)}, {B}, {'0' if ks == 0 else acc}")
        spine.append(tuple(pr))
        nf = f + ED
        if nf < NF:
            if nf % NFE == 0:
                t = nf // NFE
                ops = [lambda e, t=t: e.wait_tag(f"e{t}")]
                if t == 6:
                    ops.append(lambda e: e.wait_tag("ya"))
                if t <= 4:
                    ops.append(lambda e: e.wait(lgkm=0))
                fill.setdefault(f, []).append(ops + ["s_barrier"])
            fill.setdefault(f, []).extend(erd(nf))
        if f % 2 == 0:
            rr = a(A_F + (min(f + 1, NF - 1) % 8) * 4, 4)
            fill.setdefault(f - 1, []).append(waiter(rr, opt.get('wait_cost', 0.25)))
    if hooks:
        hooks(fill, NFE, ED)
    spread(fill, edma_at(1), 0, 20)
    spread(fill, edma_at(2), 20, 52)
    for t in range(3, NT):
        g0 = max((t - 2) * NFE - ED + 1, 52)
        spread(fill, edma_at(t), g0, (t - 1) * NFE - ED)
    for c in range(NT):
        o, st = ecvt(c, 0)
        pour(fill, o + st, c * NFE + 27, c * NFE + 46)
        if c < NT - 1:
            o, st = ecvt(c, 1)
            if c == NT - 2 and hooks:
                pour(fill, o, (c + 1) * NFE + 4, (c + 1) * NFE + 21)
                fill.setdefault((c + 1) * NFE + 25, []).append(st[0])
                fill.setdefault((c + 1) * NFE + 26, []).extend(st[1:])
            else:
                pour(fill, o + st, (c + 1) * NFE + 4, (c + 1) * NFE + 21)
    if opt.get("verbose"):
        print(gap_report("epilogue", fill, NF), [load_of(fill, g) for g in range(NF)])
    weave2(e, spine, fill)
    SALU_COST[0] = 1
    e.nop(8)
    o, st = ecvt(NT - 1, 1)
    run(e, o + st)
    if finish:
        finish(e)
    e.label(end_label)
    e("s_endpgm")
    epi = e

    pl = [peel[n] for n in range(28, 33)]
    segs = [pro, q0, lp] + pl + [t3, fin, mg, epi, t0, stubs, r0, r1, fs, sw1, sw2, sig, early]
    traces = [
        [pro, fs, q0, lp, lp] + pl + [t3, fin, epi],
        [lp, peel[28], peel[29], t0, fin, mg, epi],
        [lp, r1, lp], [peel[28], r0, peel[29]], [peel[28], sw1, peel[29], sw2, fs, peel[30]], [sig], [stubs],
        [peel[30], peel[31], t0], [peel[29], peel[30], t3], [peel[31], early, peel[32], t3, fin],
    ]
    return segs, traces
```

```python
from emit import *
from common import *
import attn
from attn import S_HEAD, S_QT, S_W4K, S_PAIR, S_WS, S_WO, S_W2, A_Q, A_Q2, A_HF, V_L16, V_PD
import math

NAME = "parallel_sum__compressed_kv_cla__dense_activation_silu__prompt_kernel"
LDS_BYTES = 160 * 1024
S_CKV, S_W, S_X, S_WQ, S_W1, S_QST, S_OUT = 8, 12, 20, 24, 28, 68, 24
SA, SB, S_LP, S_W8K, S_KVSTR, S_KIND, S_BO, S_KVBASE, S_KVC, S_QB, S_QC, S_XNB, S_XNF = 53, 54, 55, 56, 57, 58, 59, 60, 61, 62, 63, 66, 67
S_HA, S_KVSLOT = 76, 77
V_PA, V_PB, V_FO, V_FL = 3, 4, 5, 6
V_AA, V_AB, V_DA, V_DB = 8, 12, 16, 24
V_FA, V_FB, V_XN = 32, 64, 96
V_AB16, V_AA16, V_WR, V_ST = 8, 212, 224, 7
V_DQ, V_D1, V_AT, V_T = 208, 212, 216, 224
SLOT_ORDER = [8, 9, 0, 1, 4, 5, 2, 3, 6, 7]
WIN = {0: 0, 1: 0, 2: 0x8000, 3: 0x8000, 4: 0x8000, 5: 0x8000, 6: 0x18000, 7: 0x18000, 8: 0x18000, 9: 0x18000}
S_KVE, S_EARLY, S_GOTQ, S_GM = 24, 72, 75, 72
H_ACC = (64, 80, 224, 240)
V_GP = V_XN + 46
VPQ, VPK = V_XN + 4, V_XN + 8

def gen_mega(opt):
    ST = opt.get("kv_store_mod", " sc1")
    attn.KVM[0] = opt.get("kv_load_mod", "")
    opt = dict(opt)
    opt.setdefault("y_store_mod", " sc1")
    opt["spk"] = ""
    PFD = 2
    WC = opt.get('wait_cost', 0.25)
    XNM = opt.get('xn_mod', ' sc1')
    A16 = opt.get("a16", 1)
    NPF = 2
    PMAX = opt.get("poll_max", 200000)
    e = Seg("m_pro")
    e.label(NAME)
    e("s_cmp_ge_u32 s2, 256")
    e("s_cbranch_scc1 M_END")
    stamp(e, opt, "entry")
    load_kernargs(e)
    e("s_getpc_b64 s[50:51]")
    e.label("M_PC0")
    if not opt.get("no_cpf0"):
        e("s_lshr_b32 s5, s2, 3")
        e("s_lshl_b32 s5, s5, 11")
        e("v_lshrrev_b32 v1, 4, v0")
        e("v_lshl_add_u32 v1, v1, 7, s5")
        e("v_min_u32 v1, M_B-M_PC0, v1")
        e(f"global_load_dword v{V_PD}, v1, s[50:51]", "pf")
    e("v_lshrrev_b32 v1, 6, v0")
    e("v_and_b32 v0, 63, v0")
    e("v_readfirstlane_b32 s3, v1")
    e("s_and_b32 s4, s2, 7")
    e("s_lshl_b32 s4, s4, 1")
    e("s_lshr_b32 s5, s2, 3")
    e("s_and_b32 s34, s5, 7")
    e("s_lshr_b32 s35, s5, 3")
    e("s_and_b32 s42, s35, 1")
    e("s_add_u32 s42, s42, s4")
    e(f"s_lshr_b32 s{S_KIND}, s35, 1")
    e(f"s_lshr_b32 s{S_QT}, s5, 1")
    e(f"s_and_b32 s{S_HEAD}, s5, 1")
    e(f"s_add_u32 s{S_HEAD}, s{S_HEAD}, s4")
    e("s_and_b32 s36, s3, 1")
    e("s_lshr_b32 s37, s3, 1")
    L31, HI, G, R4, C = 224, 225, 226, 227, 228
    e(f"v_and_b32 v{L31}, 31, v0")
    e(f"v_lshrrev_b32 v{HI}, 5, v0")
    e(f"v_lshrrev_b32 v{G}, 4, v0")
    e(f"v_bfe_u32 v{R4}, v0, 2, 2")
    e(f"v_and_b32 v{C}, 3, v0")
    e("s_and_b32 s7, s35, 1")
    e("s_lshl_b32 s7, s7, 1")
    e("s_add_u32 s7, s7, s37")
    e("s_sub_u32 s39, 3, s7")
    e("s_add_u32 s7, s7, 4")
    e("s_cmp_ge_u32 s35, 2")
    e("s_cselect_b32 s7, s7, s39")
    e("s_lshl_b32 s7, s7, 3")
    e("s_add_u32 s7, s7, s34")
    e("s_lshl_b32 s7, s7, 1")
    e("s_add_u32 s7, s7, s36")
    e("s_lshl_b32 s7, s7, 4")
    e("v_lshrrev_b32 v6, 2, v0")
    e("v_add_u32 v6, s7, v6")
    e(f"v_lshlrev_b32 v{V_PA}, 11, v6")
    e("v_bfe_u32 v7, v0, 1, 1")
    e(f"v_lshl_add_u32 v7, v7, 7, v{V_PA}")
    e("s_lshl_b32 s7, s34, 3")
    e("s_lshl_b32 s39, s3, 1")
    e("s_add_u32 s7, s7, s39")
    e(f"v_add_u32 v6, s7, v{HI}")
    e("v_lshlrev_b32 v6, 13, v6")
    e("v_bfe_u32 v5, v0, 3, 2")
    e("v_lshl_add_u32 v6, v5, 7, v6")
    e("s_lshl_b32 s7, s42, 9")
    e(f"v_add_u32 v{V_PB}, s7, v6")
    e("v_bfe_u32 v6, v0, 2, 1")
    e(f"v_lshl_add_u32 v5, v6, 19, v{V_PB}")
    e("v_lshrrev_b32 v1, 3, v0")
    e.wait_force(lgkm=0)
    e(f"s_mov_b32 s{S_HA}, s42")
    e(f"s_lshl_b32 s{S_KVSLOT}, s{S_KIND}, 3")
    e(f"s_add_u32 s{S_KVSLOT}, s{S_KVSLOT}, s34")
    e(f"s_lshl_b32 s{S_KVSLOT}, s{S_KVSLOT}, 3")
    srd(e, S_CKV, P_CKV, CKV_BYTES)
    e(f"s_cmp_eq_u32 s{S_KIND}, 0")
    e(f"s_cselect_b32 s{S_W}, s{P_WUK}, s{P_WUV}")
    e(f"s_cselect_b32 s{S_W+1}, s{P_WUK+1}, s{P_WUV+1}")
    e(f"s_mov_b32 s{S_W+2}, {WU_BYTES:#x}")
    e(f"s_mov_b32 s{S_W+3}, 0x20000")
    stamp(e, opt, 0)
    stamp(e, opt, "karg")
    e(f"buffer_load_dword v{V_PD}, v7, s[{S_CKV}:{S_CKV+3}], 0 offen", "pf")
    e(f"buffer_load_dword v{V_PD}, v5, s[{S_W}:{S_W+3}], 0 offen", "pf")
    e("v_add_u32 v144, 256, v7")
    e("v_add_u32 v145, 0x100000, v5")
    e(f"v_add_u32 v{V_PA}, {PFD*128}, v{V_PA}")
    e(f"v_add_u32 v{V_PB}, {PFD*0x80000}, v{V_PB}")
    e("s_lshl_b32 s7, s36, 1")
    e("s_sub_u32 s39, 3, s7")
    e("s_add_u32 s7, s7, 4")
    e("s_cmp_eq_u32 s37, 1")
    e("s_cselect_b32 s7, s7, s39")
    e("s_mov_b32 s39, 0xfff80000")
    e("s_cselect_b32 s39, 0x80000, s39")
    e("s_lshl_b32 s7, s7, 3")
    e("s_add_u32 s7, s7, s34")
    e("s_lshl_b32 s7, s7, 5")
    e("v_add_u32 v6, s7, v1")
    e("v_lshlrev_b32 v6, 11, v6")
    e("v_and_b32 v7, 7, v0")
    e(f"v_xor_b32 v7, v7, v{G}")
    e("v_lshlrev_b32 v7, 4, v7")
    for j in range(8):
        if j == 4:
            e("v_add_u32 v6, s39, v6")
        e(f"v_xor_b32 v{V_DA+j}, {((j ^ (j >> 1)) & 1) << 6}, v7")
        e(f"v_add_u32 v{V_DA+j}, v{V_DA+j}, v6")
        if j & 3:
            e(f"v_add_u32 v{V_DA+j}, {(j&3)*(16384-1024)}, v{V_DA+j}")
    e("s_lshl_b32 s7, s3, 4")
    e(f"v_add_u32 v6, s7, v{HI}")
    e("v_lshlrev_b32 v6, 13, v6")
    e(f"s_lshl_b32 s7, s{S_HA}, 9")
    e("v_add_u32 v6, s7, v6")
    e(f"v_lshrrev_b32 v7, 2, v{L31}")
    e(f"v_xor_b32 v7, v7, v{HI}")
    e("v_lshlrev_b32 v7, 6, v7")
    e(f"v_lshl_add_u32 v7, v{C}, 4, v7")
    for j in range(8):
        e(f"v_xor_b32 v{V_DB+j}, {((j&1)<<7) ^ (48 * ((j >> 2) & 1) if A16 else 0)}, v7")
        e(f"v_add_u32 v{V_DB+j}, v{V_DB+j}, v6")
        if j:
            e(f"v_add_u32 v{V_DB+j}, {j*16384-(j&3)*1024}, v{V_DB+j}")
    e(f"s_lshl_b32 s{S_W8K}, s3, 13")
    e(f"s_mov_b32 s{SA}, 0")
    e(f"s_mov_b32 s{SB}, 0")

    def dma_items(b):
        it = []
        for j in range(8):
            pre = [f"s_add_u32 m0, s{S_W8K}, {b*32768 + (j>>2)*4096}"] if (j & 3) == 0 else []
            post = [f"s_add_u32 s{SA}, s{SA}, 128"] if j == 7 else []
            it.append((pre, f"buffer_load_dwordx4 v{V_DA+j}, s[{S_CKV}:{S_CKV+3}], s{SA} offen offset:{(j&3)*1024} lds", post))
        for j in range(8):
            pre = [f"s_add_u32 m0, s{S_W8K}, {65536 + b*32768 + (j>>2)*4096}"] if (j & 3) == 0 else []
            post = [f"s_add_u32 s{SB}, s{SB}, 0x80000"] if j == 7 else []
            it.append((pre, f"buffer_load_dwordx4 v{V_DB+j}, s[{S_W}:{S_W+3}], s{SB} offen offset:{(j&3)*1024} lds", post))
        return it

    NK3 = opt.get('nk3', 12) if A16 else 8
    q = Seg("tmp")
    srd(q, S_WS, P_WS, WS_BYTES)
    srd(q, S_X, P_X, X_BYTES)
    srd(q, S_WQ, P_WQ, WQ_BYTES)
    srd(q, S_W1, P_W1, W1_BYTES)
    if not A16:
        q("s_lshl_b32 s7, s36, 7")
        q(f"v_add_u32 v6, s7, v{L31}")
        q("v_lshlrev_b32 v6, 7, v6")
        q(f"v_bfe_u32 v7, v{L31}, 1, 3")
        q(f"v_xor_b32 v7, v7, v{HI}")
        q("v_lshl_add_u32 v6, v7, 4, v6")
        for k in range(4):
            q(f"v_xor_b32 v{V_AA+k}, {k<<5}, v6")
        q(f"v_lshrrev_b32 v6, 1, v{G}")
        q(f"v_lshl_add_u32 v6, v6, 3, v{R4}")
        q("v_lshlrev_b32 v6, 9, v6")
        q("s_lshl_b32 s7, s37, 8")
        q("s_add_u32 s7, s7, 0x10000")
        q("v_add_u32 v6, s7, v6")
        q(f"v_and_b32 v7, 1, v{G}")
        q("v_lshl_add_u32 v6, v7, 5, v6")
        q(f"v_lshl_add_u32 v6, v{C}, 3, v6")
        for nb in range(4):
            q(f"v_xor_b32 v7, {nb}, v{R4}")
            q(f"v_lshl_add_u32 v{V_AB+nb}, v7, 6, v6")
    else:
        q("v_and_b32 v6, 15, v0")
        q("s_lshl_b32 s7, s36, 7")
        q("v_add_u32 v6, s7, v6")
        q("v_lshlrev_b32 v6, 7, v6")
        q("v_bfe_u32 v7, v0, 1, 3")
        q(f"v_xor_b32 v7, v7, v{G}")
        q(f"v_lshl_add_u32 v{V_AA16}, v7, 4, v6")
        q(f"v_xor_b32 v{V_AA16+1}, 64, v{V_AA16}")
        q(f"v_lshl_add_u32 v6, v{G}, 3, v{R4}")
        q("v_lshlrev_b32 v6, 9, v6")
        q("s_lshl_b32 s7, s37, 8")
        q("s_add_u32 s7, s7, 0x10000")
        q("v_add_u32 v6, s7, v6")
        q(f"v_and_b32 v7, 1, v{C}")
        q("v_lshl_add_u32 v6, v7, 3, v6")
        q(f"v_and_b32 v7, 1, v{G}")
        q("v_mul_u32_u24 v7, 3, v7")
        q(f"v_lshl_add_u32 v7, v{R4}, 2, v7")
        q(f"v_lshrrev_b32 v231, 1, v{C}")
        q("v_xor_b32 v7, v7, v231")
        q("v_lshl_add_u32 v6, v7, 4, v6")
        for i in range(8):
            q(f"v_xor_b32 v{V_AB16+i}, {i << 5}, v6")
    q("s_lshl_b32 s7, s3, 4")
    q(f"v_add_u32 v6, s7, v{G}")
    q(f"v_xor_b32 v7, v{R4}, v{G}")
    q("v_lshlrev_b32 v7, 6, v7")
    q(f"v_lshl_add_u32 v7, v{C}, 4, v7")
    q(f"s_lshl_b32 s38, s{S_HEAD}, 9")
    q("v_xor_b32 v231, 32, v7")
    q("v_lshlrev_b32 v232, 13, v6")
    q(f"v_add3_u32 v{V_DQ}, v232, v7, s38")
    q(f"v_add3_u32 v{V_DQ+2}, v232, v231, s38")
    q(f"v_add_u32 v{V_DQ+1}, {4*8192 - 1024}, v{V_DQ}")
    q(f"v_add_u32 v{V_DQ+3}, {3*(4*8192 - 1024)}, v{V_DQ+2}")
    q(f"v_add_u32 v{V_DQ+2}, {2*(4*8192 - 1024)}, v{V_DQ+2}")
    q(f"s_mul_i32 s39, s{S_HEAD}, 224")
    q("v_mul_u32_u24 v232, 3584, v6")
    q(f"v_add3_u32 v{V_D1+2}, v232, v7, s39")
    q(f"v_add3_u32 v{V_D1+3}, v232, v231, s39")
    q(f"v_lshl_add_u32 v6, v{G}, 3, v{R4}")
    q("v_lshlrev_b32 v6, 8, v6")
    q(f"v_and_b32 v7, 1, v{G}")
    q(f"v_lshl_add_u32 v7, v{R4}, 1, v7")
    q("v_lshl_add_u32 v6, v7, 5, v6")
    q(f"v_lshl_add_u32 v6, v{C}, 3, v6")
    q(f"v_add_u32 v6, {WIN[8]}, v6")
    for cb in range(8):
        q(f"v_xor_b32 v{V_AT+cb}, {cb << 5}, v6")
    q(f"s_mul_i32 s7, s{S_QT}, 28")
    q("s_mul_i32 s6, s3, 7")
    q("s_add_u32 s7, s7, s6")
    q("v_lshrrev_b32 v6, 2, v0")
    q("v_add_u32 v6, s7, v6")
    q("v_lshlrev_b32 v7, 13, v6")
    q(f"v_lshl_add_u32 v7, v{C}, 7, v7")
    q("v_add_u32 v7, s38, v7")
    q("v_subrev_u32 v6, 7, v6")
    q("v_mul_u32_u24 v6, 3584, v6")
    q(f"v_min_u32 v231, 2, v{C}")
    q("v_lshl_add_u32 v6, v231, 7, v6")
    q("v_add_u32 v6, s39, v6")
    q(f"v_min_u32 v6, {W1_BYTES-4}, v6")
    q("v_cmp_gt_u32 vcc, 28, v0")
    q("s_lshr_b32 s7, s2, 3")
    q("s_lshl_b32 s7, s7, 2")
    q("v_cndmask_b32 v6, v6, v7, vcc")
    q(f"v_mov_b32 v{V_GP}, s{P_W1}")
    q(f"v_mov_b32 v{V_GP+1}, s{P_W1+1}")
    q(f"v_mov_b32 v7, s{P_WQ}")
    q(f"v_mov_b32 v231, s{P_WQ+1}")
    q(f"v_cndmask_b32 v{V_GP}, v{V_GP}, v7, vcc")
    q(f"v_cndmask_b32 v{V_GP+1}, v{V_GP+1}, v231, vcc")
    q("s_add_u32 s7, s7, s3")
    q("s_mul_i32 s7, s7, 640")
    q("s_add_u32 s7, s7, M_B-M_PC0")
    q("v_and_b32 v7, 7, v0")
    q("v_min_u32 v7, 4, v7")
    q("v_lshl_add_u32 v7, v7, 7, s7")
    q("v_min_u32 v7, M_CODE_END-M_PC0-8, v7")
    q("v_cmp_gt_u32 vcc, 56, v0")
    q("v_mov_b32 v231, s50")
    q("v_mov_b32 v232, s51")
    q("v_cndmask_b32 v6, v7, v6, vcc")
    q(f"v_cndmask_b32 v{V_GP}, v231, v{V_GP}, vcc")
    q(f"v_cndmask_b32 v{V_GP+1}, v232, v{V_GP+1}, vcc")
    q(f"v_add_co_u32 v{V_GP}, vcc, v{V_GP}, v6")
    q(f"v_addc_co_u32 v{V_GP+1}, vcc, 0, v{V_GP+1}, vcc")
    q("s_add_u32 s7, s36, 3")
    q("s_lshl_b32 s7, s7, 3")
    q("s_add_u32 s7, s7, s34")
    q(f"s_lshl_b32 s{S_KVBASE}, s{S_HA}, 6")
    q(f"s_add_u32 s{S_KVBASE}, s{S_KVBASE}, s7")
    q(f"s_lshl_b32 s{S_KVBASE}, s{S_KVBASE}, 15")
    q(f"s_lshl_b32 s7, s{S_KIND}, 14")
    q(f"s_add_u32 s{S_KVBASE}, s{S_KVBASE}, s7")
    q("s_lshl_b32 s7, s37, 13")
    q(f"s_add_u32 s{S_KVBASE}, s{S_KVBASE}, s7")
    q("s_lshl_b32 s7, s36, 19")
    q(f"s_sub_u32 s{S_KVSTR}, s7, 0x40000")
    q(f"s_lshl_b32 s7, s{S_QT}, 2")
    q(f"v_and_b32 v{V_FO}, 15, v0")
    q(f"v_lshlrev_b32 v{V_FO}, 3, v{V_FO}")
    q(f"s_add_u32 s{S_XNB}, s7, s3")
    q(f"s_mul_i32 s{S_XNB}, s{S_XNB}, 28672")
    q(f"s_add_u32 s{S_XNB}, s{S_XNB}, {XN_OFF}")
    q(f"v_lshlrev_b32 v{V_L16}, 4, v0")
    q(f"s_lshl_b32 s7, s{S_QT}, 4")
    q(f"s_add_u32 s7, s7, s{S_HEAD}")
    q("s_mul_i32 s7, s7, 7168")
    q("s_mul_i32 s6, s3, 1792")
    q("s_add_u32 s7, s7, s6")
    q("v_lshrrev_b32 v6, 2, v0")
    q("v_min_u32 v6, 14, v6")
    q("v_lshl_add_u32 v146, v6, 7, s7")
    attn.setup_s(q)
    q(f"s_mov_b32 s{S_QST}, s{P_WS}")
    q(f"s_mov_b32 s{S_QST+1}, s{P_WS+1}")
    q(f"s_cmp_ge_u32 s{S_QT}, 8")
    q(f"s_cselect_b32 s{S_QST+2}, {WS_BYTES:#x}, 0")
    q(f"s_mov_b32 s{S_QST+3}, 0x20000")
    q(f"s_lshl_b32 s{S_QB}, s{S_PAIR}, 2")
    q(f"s_add_u32 s{S_QB}, s{S_QB}, s3")
    q(f"s_lshl_b32 s{S_QB}, s{S_QB}, 14")
    q(f"s_add_u32 s{S_QB}, s{S_QB}, {Q_OFF}")
    for i in q.ins:
        e(i.text)
    stamp(e, opt, "setup")
    e.wait_tag("pf")
    stamp(e, opt, "touch")
    NPRE = opt.get("npre", 12)
    for tag, items in (("t0", dma_items(0)), ("dma", dma_items(1)[:NPRE])):
        for pre, d, post in items:
            run(e, pre + [(d, tag)] + post)
    e(f"buffer_load_dword v{V_PD}, v144, s[{S_CKV}:{S_CKV+3}], 0 offen", "pf")
    e(f"buffer_load_dword v{V_PD}, v145, s[{S_W}:{S_W+3}], 0 offen", "pf")
    e(f"buffer_load_dword v{V_PD}, v146, s[{S_X}:{S_X+3}], 0 offen", "pf")
    e("s_or_b32 s7, s2, s3")
    e("s_cbranch_scc1 M_NOPUB")
    e("s_memrealtime s[4:5]")
    e("v_mov_b32 v6, 0")
    e.wait_force(lgkm=0)
    e("s_or_b32 s4, s4, 1")
    e("v_mov_b32 v7, s4")
    e("s_mov_b64 exec, 1")
    e.raw(f"global_store_dword v6, v7, s[{P_DBG}:{P_DBG+1}] sc1")
    e("s_mov_b64 exec, -1")
    e.label("M_NOPUB")
    stamp(e, opt, "dma")
    stamp(e, opt, 1)

    def layernorm(e, n, reduce, norm, T=V_T):
        e("s_mov_b32 s7, 0x3f803f80")
        for k in range(8):
            e(f"v_mov_b32 v{T+k}, 0")
        for r in range(n):
            if n > 28 or opt.get("ln_dot"):
                e(f"v_dot2_f32_bf16 v{T+(r&3)}, v{V_XN+r}, s7, v{T+(r&3)}")
                e(f"v_dot2_f32_bf16 v{T+4+(r&3)}, v{V_XN+r}, v{V_XN+r}, v{T+4+(r&3)}")
            else:
                t = T + 8 + (r % 4) * 2
                e(f"v_lshlrev_b32 v{t}, 16, v{V_XN+r}")
                e(f"v_and_b32 v{t+1}, 0xffff0000, v{V_XN+r}")
                e(f"v_add_f32 v{T+(r&1)*2}, v{T+(r&1)*2}, v{t}")
                e(f"v_add_f32 v{T+(r&1)*2+1}, v{T+(r&1)*2+1}, v{t+1}")
                e(f"v_fmac_f32 v{T+4+(r&1)*2}, v{t}, v{t}")
                e(f"v_fmac_f32 v{T+4+(r&1)*2+1}, v{t+1}, v{t+1}")
        e.nop(4)
        e(f"v_add_f32 v{T}, v{T}, v{T+1}")
        e(f"v_add_f32 v{T+2}, v{T+2}, v{T+3}")
        e(f"v_add_f32 v{T+4}, v{T+4}, v{T+5}")
        e(f"v_add_f32 v{T+6}, v{T+6}, v{T+7}")
        e(f"v_add_f32 v{T}, v{T}, v{T+2}")
        e(f"v_add_f32 v{T+4}, v{T+4}, v{T+6}")
        for step in reduce:
            if isinstance(step, str):
                e.nop(2)
                e(f"v_add_f32_dpp v{T}, v{T}, v{T} {step} row_mask:0xf bank_mask:0xf")
                e(f"v_add_f32_dpp v{T+4}, v{T+4}, v{T+4} {step} row_mask:0xf bank_mask:0xf")
            else:
                e(f"v_mov_b32 v{T+1}, v{T}")
                e(f"v_mov_b32 v{T+5}, v{T+4}")
                e.nop(2)
                e(f"v_permlane{step}_swap_b32 v{T}, v{T+1}")
                e(f"v_permlane{step}_swap_b32 v{T+4}, v{T+5}")
                e(f"v_add_f32 v{T}, v{T}, v{T+1}")
                e(f"v_add_f32 v{T+4}, v{T+4}, v{T+5}")
        e(f"v_mul_f32 v{T}, {f32(1/448)}, v{T}")
        e(f"v_mul_f32 v{T+4}, {f32(1/448)}, v{T+4}")
        e(f"v_fma_f32 v{T+4}, -v{T}, v{T}, v{T+4}")
        e(f"v_max_f32 v{T+4}, 0, v{T+4}")
        e(f"v_add_f32 v{T+4}, {f32(1e-5)}, v{T+4}")
        e(f"v_rsq_f32 v{T+4}, v{T+4}")
        e(f"v_mul_f32 v{T+4}, {f32(QSCALE)}, v{T+4}")
        e(f"v_mul_f32 v{T}, v{T}, v{T+4}")
        e(f"v_mov_b32 v{T+5}, v{T+4}")
        e(f"v_sub_f32 v{T}, 0, v{T}")
        e(f"v_mov_b32 v{T+1}, v{T}")
        for r in norm:
            t = T + 8 + (r % 8) * 2
            e(f"v_lshlrev_b32 v{t}, 16, v{V_XN+r}")
            e(f"v_and_b32 v{t+1}, 0xffff0000, v{V_XN+r}")
            if n > 28:
                e(f"v_pk_fma_f32 {v(t,2)}, {v(t,2)}, {v(T+4,2)}, {v(T,2)}")
            else:
                e(f"v_fma_f32 v{t}, v{t}, v{T+4}, v{T}")
                e(f"v_fma_f32 v{t+1}, v{t+1}, v{T+4}, v{T}")
            e(f"v_cvt_pk_bf16_f32 v{V_XN+r}, v{t}, v{t+1}")

    def ops_of(fn):
        t = Seg("tmp")
        fn(t)
        out, k = [], 0
        ins = t.ins
        while k < len(ins):
            x = (ins[k].text, ins[k].tag) if ins[k].tag else ins[k].text
            if ins[k].op.startswith("s_cmp"):
                out.append([x, ins[k + 1].text])
                k += 2
            else:
                out.append(x)
                k += 1
        return out

    XA, XS, LT = V_XN + 36, V_XN + 37, V_XN + 52
    SX0, SX1 = S_QC, S_KVC

    def x_loads(h):
        h(f"s_lshl_b32 s{SX0}, s3, 8")
        h(f"s_add_u32 s{SX1}, s{SX0}, 128")
        h("s_cmp_eq_u32 s3, 3")
        h(f"s_cselect_b32 s{SX1}, 0, s{SX1}")
        h(f"s_lshl_b32 s7, s{S_QT}, 7")
        h(f"s_lshl_b32 s6, s{S_HEAD}, 3")
        h("s_add_u32 s7, s7, s6")
        h("v_lshrrev_b32 v6, 3, v0")
        h("v_add_u32 v6, s7, v6")
        h("v_mul_u32_u24 v6, 896, v6")
        h("v_and_b32 v7, 7, v0")
        h(f"v_lshl_add_u32 v{XA}, v7, 4, v6")
        h(f"v_mov_b32 v{V_XN+41}, 0")
        for i in range(7):
            h(f"buffer_load_dwordx4 {v(V_XN+i*4,4)}, v{XA}, s[{S_X}:{S_X+3}], 0 offen offset:{i*128}", "x")
        h(f"buffer_load_dwordx4 {v(V_XN+28,4)}, v{XA}, s[{S_X}:{S_X+3}], s{SX0} offen", "x")
        h(f"buffer_load_dwordx4 {v(V_XN+32,4)}, v{XA}, s[{S_X}:{S_X+3}], s{SX1} offen", "x")
        h(f"global_load_dword v{V_XN+43}, v{V_XN+41}, s[{P_DBG}:{P_DBG+1}]", "x")

    def ln_pub(h):
        h(f"s_lshr_b32 s5, s{S_HEAD}, 2")
        h(f"s_lshl_b32 s6, s{S_QT}, 2")
        h("s_add_u32 s5, s5, s6")
        h("s_mul_i32 s5, s5, 28672")
        h(f"s_add_u32 s5, s5, {XN_OFF}")
        h(f"s_lshl_b32 s{SX0}, s{SX0}, 5")
        h(f"s_lshl_b32 s{SX1}, s{SX1}, 5")
        h(f"s_add_u32 s{SX0}, s{SX0}, s5")
        h(f"s_add_u32 s{SX1}, s{SX1}, s5")
        h(f"s_bfe_u32 s6, s{S_HEAD}, 0x10001")
        h("s_lshl_b32 s6, s6, 10")
        h(f"s_and_b32 s5, s{S_HEAD}, 1")
        h("s_lshl_b32 s5, s5, 7")
        h("s_add_u32 s6, s6, s5")
        h("v_lshrrev_b32 v6, 3, v0")
        h("v_lshlrev_b32 v6, 4, v6")
        h("v_and_b32 v7, 3, v0")
        h("v_lshl_add_u32 v6, v7, 8, v6")
        h("v_bfe_u32 v7, v0, 2, 1")
        h("v_lshl_add_u32 v6, v7, 11, v6")
        h(f"v_add_u32 v{XS}, s6, v6")
        layernorm(h, 28, ("quad_perm:[1_0_3_2]", "quad_perm:[2_3_0_1]", "row_half_mirror"), range(28, 36), LT)
        h(f"buffer_store_dwordx4 {v(V_XN+28,4)}, v{XS}, s[{S_WS}:{S_WS+3}], s{SX0} offen sc1", "st")
        h(f"buffer_store_dwordx4 {v(V_XN+32,4)}, v{XS}, s[{S_WS}:{S_WS+3}], s{SX1} offen sc1", "st")

    def gtouch(k):
        lo = 0xffff << (16 * (k & 1))
        return [[f"s_mov_b32 exec_lo, {lo if k < 2 else 0}", f"s_mov_b32 exec_hi, {0 if k < 2 else lo}",
                 (f"global_load_dword v{V_PD}, {v(V_GP,2)}, off", "pf"), "s_mov_b64 exec, -1"]]

    hk = Seg("m_hook")
    hk.label("M_HOOK")
    hk("s_mov_b32 s6, 0")
    hk.label("M_NSPIN")
    hk(f"v_readfirstlane_b32 s{S_N0}, v{V_XN+43}")
    hk(f"s_cmp_lg_u32 s{S_N0}, 0")
    hk("s_cbranch_scc1 M_NOK")
    hk("s_sleep 8")
    hk(f"global_load_dword v{V_XN+43}, v{V_XN+41}, s[{P_DBG}:{P_DBG+1}] sc1")
    hk.wait_force(vm=0)
    hk("s_add_u32 s6, s6, 1")
    hk(f"s_cmp_lt_u32 s6, {PMAX}")
    hk("s_cbranch_scc1 M_NSPIN")
    hk.label("M_NOK")
    hk(f"s_xor_b32 s{S_N1}, s{S_N0}, {NONCE_K:#x}")
    hk("s_cmp_eq_u32 s3, 0")
    hk(f"s_cselect_b32 s{S_BO}, 3, 99")
    hk(f"s_mov_b64 s[{S_GM}:{S_GM+1}], 0xff")
    hk("s_branch M_HOOK_RET")
    hk.label("M_SIGX")
    flag_line(hk, 7, FL_XN, S_QT)
    hk(f"s_lshl_b32 s6, s{S_HEAD}, 3")
    flag_set(hk, S_WS, 7, "s6", V_XN + 40)
    hk.label("M_HOOK_RET")
    hk(f"s_cmp_eq_u32 s{S_KIND}, 0")
    hk("s_cbranch_scc1 M_LOOP_K")
    hk("s_branch M_LOOP_V")

    def frag_reads(b, ks, st):
        r = []
        fa, fb = V_FA + st * 16, V_FB + st * 16
        order = [("a", 0), ("b", 0), ("a", 1), ("a", 2), ("a", 3), ("b", 1), ("b", 2), ("b", 3)]
        for t, i in order:
            if t == "a":
                r.append(f"ds_read_b128 {v(fa+i*4,4)}, v{V_AA+ks} offset:{i*4096 + b*32768}")
            else:
                for u in range(2):
                    r.append(f"ds_read_b64_tr_b16 {v(fb+i*4+u*2,2)}, v{V_AB+i} offset:{(16*ks+4*u)*512 + b*32768}")
        return r

    e.wait_tag("t0")
    stamp(e, opt, "t0")
    e("s_barrier")
    stamp(e, opt, "bar")
    if not A16:
        for r in frag_reads(0, 0, 0):
            e(r)
    e(f"s_mov_b32 s{S_LP}, 2")
    e(f"s_cmp_eq_u32 s{S_KIND}, 0")
    e("s_cbranch_scc0 M_PRE_V")
    pro = e

    def place_dma(fill, items, g0, g1, tag="dma"):
        n = len(items)
        for k, item in enumerate(items):
            pre, d, post = item[:3]
            g = g0 + (k * (g1 - g0)) // n
            for x in pre:
                fill.setdefault(g - 1, []).append(x)
            fill.setdefault(g, []).append((d, item[3] if len(item) > 3 else tag))
            for x in post:
                fill.setdefault(g, []).append(x)

    def ktile(e, kind, b, dma_k0, dma_k3, last=False, pref=True, tag3="dma", tag0="dma", xn=None):
        for ks in range(4):
            st = ks & 1
            fa, fb = V_FA + st * 16, V_FB + st * 16
            spine = []
            for i in range(4):
                for j in range(4):
                    acc = a((i * 4 + j) * 16, 16)
                    W, Cc = v(fb + i * 4, 4), v(fa + j * 4, 4)
                    A, B = (W, Cc) if kind == 0 else (Cc, W)
                    spine.append(f"{MFMA} {acc}, {A}, {B}, {acc}")
            fill = {}
            fill[-1] = [lambda e: e.wait_force(lgkm=0)]
            if ks < 3:
                spread(fill, frag_reads(b, ks + 1, st ^ 1), 0, 12)
                if ks == 0 and dma_k0:
                    place_dma(fill, dma_k0, 1, 16, tag0)
                if ks == 1 and pref:
                    fill.setdefault(4, []).append((f"buffer_load_dword v{V_PD}, v{V_PA}, s[{S_CKV}:{S_CKV+3}], s{SA} offen", "pf"))
                    fill.setdefault(13, []).append((f"buffer_load_dword v{V_PD}, v{V_PB}, s[{S_W}:{S_W+3}], s{SB} offen", "pf"))
                if ks in (1, 2) and xn is not None:
                    k0 = xn + (ks - 1) * 7
                    for k in range(k0, k0 + 7):
                        g = 1 + 2 * (k - k0)
                        if k % 4 == 0 and k:
                            fill.setdefault(g - 1, []).append(f"s_add_u32 s{S_XNB}, s{S_XNB}, 4096")
                        fill.setdefault(g, []).append((f"buffer_load_dwordx4 {v(V_XN+4*k,4)}, v{V_L16}, s[{S_WS}:{S_WS+3}], s{S_XNB} offen offset:{(k%4)*1024} sc1", "xn"))
            else:
                if last:
                    fill[0] = ["s_barrier"]
                else:
                    fill[0] = [lambda e: e.wait_force(vm=(NPF if pref else 0) + (14 if xn is not None else 0)), "s_barrier"]
                    spread(fill, frag_reads(b ^ 1, 0, 0), 0, 12)
                if dma_k3:
                    place_dma(fill, dma_k3, 2, 16, tag3)
            weave(e, spine, fill)

    def c_read(kind, b, s_, j):
        off = j * 2048
        return f"ds_read_b128 {v(V_FA + s_*32 + j*4, 4)}, v{V_AA16 + ((s_ ^ j) & 1)} offset:{off + b*32768}"

    def w_read(b, s_, i):
        return [f"ds_read_b64_tr_b16 {v(V_WR + i*4 + 2*u, 2)}, v{V_AB16+i} offset:{(32*s_ + 4*u)*512 + b*32768}" for u in range(2)]

    def ktile16(e, kind, b, dma_k0, dma_k3, last=False, pref=True, tag3="dma", tag0="dma", xn=None, first=False, head=False, extra=None):
        for s_ in range(2):
            spine = []
            for i in range(8):
                for j in range(8):
                    if kind == 0:
                        dt, bb, kb, nb = i >> 1, i & 1, j >> 1, j & 1
                    else:
                        dt, nb, kb, bb = i >> 1, i & 1, j >> 1, j & 1
                    acc = a((kb * 4 + dt) * 16 + nb * 8 + bb * 4, 4)
                    W, Cc = v(V_WR + i * 4, 4), v(V_FA + s_ * 32 + j * 4, 4)
                    A, B = (W, Cc) if kind == 0 else (Cc, W)
                    spine.append(f"v_mfma_f32_16x16x32_bf16 {acc}, {A}, {B}, {0 if first and s_ == 0 else acc}")
            fill = {}
            nb_, ns = (b, 1) if s_ == 0 else (b ^ 1, 0)
            more = not (last and s_ == 1)
            for i in range(8):
                r = v(V_WR + i * 4, 4)
                fill.setdefault(8 * i - 1, []).append(lambda e, r=r: wait_reg(e, r))
            r = v(V_FA + s_ * 32 + 28, 4)
            fill.setdefault(-1, []).append(lambda e, r=r: wait_reg(e, r))
            if s_ == 1:
                nx = 14 if xn is not None else 0
                if last:
                    fill.setdefault(7, []).extend([lambda e: e.wait(lgkm=0), "s_barrier"])
                elif pref and not head:
                    fill.setdefault(7, []).extend([lambda e: e.wait_force(vm=NPF + 1, lgkm=0), "s_barrier"])
                else:
                    fill.setdefault(7, []).extend([lambda e: e.wait_tag("dma"), lambda e: e.wait(lgkm=0), "s_barrier"])
            if more:
                for i in range(8):
                    wr = w_read(nb_, ns, i)
                    fill.setdefault(8 * i + 7, []).append(wr[0])
                    fill.setdefault(min(8 * i + 8, 63), []).append(wr[1])
                for j in range(8):
                    fill.setdefault(10 + 6 * j, []).append(c_read(kind, nb_, ns, j))
            if s_ == 0:
                if dma_k0:
                    place_dma(fill, dma_k0, 1 if first else 2, min(34 if first else 56, 2 + (7 * len(dma_k0)) // 2 + (14 if len(dma_k0) > 8 else 0)), tag0)
                if pref:
                    fill.setdefault(36, []).append((f"buffer_load_dword v{V_PD}, v{V_PA}, s[{S_CKV}:{S_CKV+3}], s{SA} offen", "pf"))
                    fill.setdefault(44, []).append((f"buffer_load_dword v{V_PD}, v{V_PB}, s[{S_W}:{S_W+3}], s{SB} offen", "pf"))
            elif dma_k3:
                place_dma(fill, dma_k3, 11, 62, tag3)
            if xn is not None:
                nx = (10, 4)[s_]
                k0 = xn + s_ * 10
                for k in range(k0, k0 + nx):
                    g = (18 + ((k - k0) * 45) // nx) if s_ == 0 else (13 + (k - k0) * 13)
                    if k % 4 == 0 and k:
                        fill.setdefault(g - 1, []).append(f"s_add_u32 s{S_XNB}, s{S_XNB}, 4096")
                    fill.setdefault(g, []).append((f"buffer_load_dwordx4 {v(V_XN+4*k,4)}, v{V_L16}, s[{S_WS}:{S_WS+3}], s{S_XNB} offen offset:{(k%4)*1024}{XNM}", "xn"))
            if opt.get("x_a_nodma"):
                for g in fill:
                    fill[g] = [x for x in fill[g] if not (isinstance(x, tuple) and x[1] in ("dma", "pf"))]
            if opt.get("x_a_nords"):
                for g in fill:
                    fill[g] = [x for x in fill[g] if not (isinstance(x, str) and x.startswith("ds_read"))]
            if opt.get("a_level", 1):
                seq = [(g, x) for g in sorted(fill) for x in fill[g]]
                new, nxt = {}, -1
                for g, x in seq:
                    t = x[0] if isinstance(x, tuple) else x
                    heavy = isinstance(t, str) and t.startswith(("ds_", "buffer_", "global_"))
                    fixed = callable(x) or t == "s_barrier"
                    if fixed:
                        new.setdefault(g, []).append(x)
                        continue
                    gg = min(63, max(g, nxt)) if heavy else min(63, max(g, nxt - 1))
                    new.setdefault(gg, []).append(x)
                    if heavy:
                        nxt = gg + 1
                fill = new
            for g0, g1, ops in (extra or {}).get(s_, []):
                pour(fill, ops, g0, g1)
            weave(e, spine, fill)

    if A16:
        ktile = ktile16

    NT = 21

    def b_dma(u):
        part, kt = divmod(u, 7)
        slot = SLOT_ORDER[u % 10]
        it = []
        for j in range(4):
            pre = []
            if j == 0:
                pre.append(f"s_add_u32 m0, s{S_W4K}, {slot*16384}")
                off = kt * 64 * 3584 if part == 2 else kt * 64 * 8192 + part * 256
                pre.append(f"s_mov_b32 s{S_BO}, {off}")
            if part == 2:
                d = f"buffer_load_dwordx4 v{V_D1+j}, s[{S_W1}:{S_W1+3}], s{S_BO} offen offset:{j*1024} lds"
            else:
                d = f"buffer_load_dwordx4 v{V_DQ+j}, s[{S_WQ}:{S_WQ+3}], s{S_BO} offen offset:{j*1024} lds"
            it.append((pre, d, [], f"b{u//2}"))
        return it

    segs = [pro]
    traces = [[hk]]
    tails = {}
    extra = []
    vm_loop = [("dma", frozenset())] * 40
    for kind in range(2):
        nm = "KV"[kind]
        pre = Seg(f"m_pre{nm}", pro.lds, pro.vm)
        pre.label(f"M_PRE_{nm}")
        if A16:
            seq = sorted([(8 * i + 7, 0, w_read(0, 0, i)[0]) for i in range(8)] + [(min(8 * i + 8, 63), 1, w_read(0, 0, i)[1]) for i in range(8)]
                         + [(10 + 6 * j, 2, c_read(kind, 0, 0, j)) for j in range(8)])
            for _, _, x in seq:
                pre(x)
        d0, d1 = dma_items(0), dma_items(1)
        lno = ops_of(ln_pub)
        c1, c2, c3 = (len(lno) * 18) // 100, (len(lno) * 46) // 100, (len(lno) * 74) // 100
        ktile(pre, kind, 0, d1[NPRE:], d0[:NK3], first=True, head=True)
        ktile(pre, kind, 1, d0[NK3:], d1[:NK3], head=True, extra={0: [(18, 64, ops_of(x_loads))]})
        stamp(pre, opt, "it1", raw=True)
        ktile(pre, kind, 0, d1[NK3:], d0[:NK3], head=True, extra={0: [(20, 64, lno[:c1])], 1: [(0, 64, lno[c1:c2])]})
        ktile(pre, kind, 1, d0[NK3:], d1[:NK3], head=True, extra={0: [(0, 64, lno[c2:c3])], 1: [(0, 60, lno[c3:])]})
        stamp(pre, opt, "it2", raw=True)
        pre("s_branch M_HOOK")
        lp = Seg(f"m_loop{nm}", pre.lds, vm_loop)
        lp.label(f"M_LOOP_{nm}")
        gt = [["s_mov_b64 exec, s[70:71]" if False else f"s_mov_b64 exec, s[{S_GM}:{S_GM+1}]", (f"global_load_dword v{V_PD}, {v(V_GP,2)}, off", "pf"),
               "s_mov_b64 exec, -1"], [f"s_lshl_b64 s[{S_GM}:{S_GM+1}], s[{S_GM}:{S_GM+1}], 8", f"s_or_b32 s{S_GM}, s{S_GM}, 1"]]
        ktile(lp, kind, 0, d1[NK3:], d0[:NK3], extra={0: [(50, 56, gt)]})
        ktile(lp, kind, 1, d0[NK3:], d1[:NK3], extra={0: [(50, 56, gt)]})
        assert opt.get('x_a_nords') or lp.lds == pre.lds, (len(lp.lds), len(pre.lds))
        lp(f"s_add_u32 s{S_LP}, s{S_LP}, 1")
        for it in range(3, 7):
            if f"it{it}" in opt.get("sp", []):
                lp(f"s_cmp_lg_u32 s{S_LP}, {it}")
                lp(f"s_cbranch_scc1 M_NS{it}_{nm}")
                stamp(lp, opt, f"it{it}", raw=True)
                lp.label(f"M_NS{it}_{nm}")
        lp(f"s_cmp_eq_u32 s{S_LP}, s{S_BO}")
        lp("s_cbranch_scc1 M_SIGX")
        lp(f"s_cmp_lg_u32 s{S_LP}, 5")
        lp(f"s_cbranch_scc1 M_NOPOLL_{nm}")
        flag_line(lp, 7, FL_XN, S_QT)
        lp(f"buffer_load_dwordx2 {v(V_FL,2)}, v{V_FO}, s[{S_WS}:{S_WS+3}], s7 offen sc1", "pf")
        lp.label(f"M_NOPOLL_{nm}")
        lp(f"s_cmp_lt_u32 s{S_LP}, 6")
        lp(f"s_cbranch_scc1 M_LOOP_{nm}")
        tl = Seg(f"m_tail{nm}", lp.lds, lp.vm)
        tl.label(f"M_TAIL{kind}")
        bd = sum((b_dma(u) for u in range(10)), [])
        flag_test(tl, V_FL)
        tl(f"s_cselect_b32 s{S_XNF}, 1, 0")
        ktile(tl, kind, 0, d1[NK3:], d0[:NK3], pref=False, xn=0)
        ktile(tl, kind, 1, d0[NK3:], d1[:NK3], pref=False, xn=14)
        stamp(tl, opt, "it7", raw=True)
        ktile(tl, kind, 0, d1[NK3:] + bd[:8], bd[8:20], pref=False)
        ktile(tl, kind, 1, bd[20:24], bd[24:36], last=True, pref=False)
        if kind == 0:
            tl("s_branch M_B")
        segs += [pre, lp, tl] + ([hk] if kind == 0 else [])
        tails[kind] = tl
        traces.append([pro, pre, lp, lp, tl])

    e = Seg("m_b", tails[0].lds, tails[0].vm)
    e.label("M_B")
    stamp(e, opt, 2)
    stamp(e, opt, "b")
    e(f"s_cmp_lt_u32 s{S_XNF}, {99 if opt.get('force_fb') else 1}")
    e("s_cbranch_scc1 M_FB")
    e.label("M_FB_RET")
    for _ in range(opt.get("x_idle", 0)):
        e("s_sleep 32")
    srd(e, S_WO, P_WO, WO_BYTES)
    srd(e, S_W2, P_W2, W2_BYTES)
    attn.setup_dma(e)
    e(f"v_mov_b32 v{V_D1}, v{V_D1+2}")
    e(f"v_add_u32 v{V_D1+1}, {4*3584 - 1024}, v{V_D1+2}")
    e(f"v_add_u32 v{V_D1+2}, {2*(4*3584 - 1024)}, v{V_D1+3}")
    e(f"v_add_u32 v{V_D1+3}, {3*(4*3584 - 1024)}, v{V_D1+3}")
    fb = Seg("m_fb")
    fb.label("M_FB")
    fb.wait_force(vm=0)
    fb(f"s_lshl_b32 s7, s{S_QT}, 7")
    fb("s_lshl_b32 s6, s3, 5")
    fb("s_add_u32 s7, s7, s6")
    fb("v_and_b32 v6, 31, v0")
    fb("v_add_u32 v6, s7, v6")
    fb("v_mul_u32_u24 v6, 896, v6")
    fb("v_lshrrev_b32 v7, 5, v0")
    fb("v_lshl_add_u32 v6, v7, 5, v6")
    for ks in range(28):
        fb(f"buffer_load_dwordx4 {v(V_XN+ks*4,4)}, v6, s[{S_X}:{S_X+3}], 0 offen offset:{(ks>>1)*64 + (ks&1)*16}", "x")
    layernorm(fb, 112, (32,), range(112))
    fb.nop(2)
    for j in range(14):
        for r in range(4):
            fb(f"v_permlane16_swap_b32 v{V_XN+8*j+r}, v{V_XN+8*j+4+r}")
    fb.nop(2)
    fb("s_branch M_FB_RET")
    extra.append(fb)

    D = opt.get("b_depth", 7)
    units = [(u, s_, cb) for u in range(NT) for s_ in range(2) for cb in range(8) if not (u >= 14 and cb == 7)]
    NF = len(units)
    gstart = {}
    for f, (u, s_, cb) in enumerate(units):
        gstart.setdefault(u // 2, f)
    first_of = {f: g for g, f in gstart.items()}
    cur_win = [WIN[8]] * 8

    def b_read(f):
        u, s_, cb = units[f]
        slot = SLOT_ORDER[u % 10]
        fr = V_FA + (f % 8) * 4
        ops = []
        if cur_win[cb] != WIN[slot]:
            dlt = WIN[slot] - cur_win[cb]
            ops.append(f"v_add_u32 v{V_AT+cb}, {dlt:#x}, v{V_AT+cb}" if dlt > 0 else f"v_subrev_u32 v{V_AT+cb}, {-dlt:#x}, v{V_AT+cb}")
            cur_win[cb] = WIN[slot]
        return ops + [f"ds_read_b64_tr_b16 {v(fr+2*h,2)}, v{V_AT+cb} offset:{slot*16384 - WIN[slot] + (32*s_+4*h)*256}" for h in range(2)]

    def kv_epi(b, t=8, o=8):
        kb, i = divmod(b, 4)
        ops = []
        if i == 0 and kb:
            ops.append(f"s_add_u32 s{S_KVBASE}, s{S_KVBASE}, s{S_KVSTR}")
        if i % 2 == 0:
            ops.append(f"s_add_u32 s{S_KVC}, s{S_KVBASE}, {KV_OFF + (i>>1)*4096}")
        for c in range(2):
            for r in range(8):
                ops.append(f"v_accvgpr_read_b32 v{t+r}, a{b*16+8*c+r}")
            for r in range(4):
                ops.append(f"v_cvt_pk_bf16_f32 v{t+o+r}, v{t+2*r}, v{t+2*r+1}")
            ops.append((f"buffer_store_dwordx4 {v(t+o,4)}, v{V_L16}, s[{S_WS}:{S_WS+3}], s{S_KVC} offen offset:{(i&1)*2048+c*1024}{ST}", "kvst" if kb < 2 else "kvst2"))
        if opt.get("x_nokvst"):
            ops = [o for o in ops if not isinstance(o, tuple)]
        if opt.get("x_noepi"):
            ops = []
        return ops

    def q_epi(part):
        ops = []
        t = 20
        for nb in range(4):
            if nb % 2 == 0:
                ops.append(f"s_add_u32 s{S_QC}, s{S_QB}, {part*8192 + (nb>>1)*4096}")
            for c in range(2):
                if part == 0:
                    src = H_ACC[nb] + 8 * c
                else:
                    src = t
                    for r in range(8):
                        ops.append(f"v_accvgpr_read_b32 v{t+r}, a{nb*16+8*c+r}")
                for r in range(4):
                    ops.append(f"v_cvt_pk_bf16_f32 v{t+8+r}, v{src+2*r}, v{src+2*r+1}")
                ops.append((f"buffer_store_dwordx4 {v(t+8,4)}, v{V_L16}, s[{S_QST}:{S_QST+3}], s{S_QC} offen offset:{(nb&1)*2048 + c*1024} sc1", "qst"))
                for r in range(4):
                    ops.append(f"v_accvgpr_write_b32 a{A_Q2 + part*32 + nb*8 + c*4 + r}, v{t+8+r}")
        return ops

    GKV, GCHK, GQ = opt.get("g_kv", 6), opt.get("g_chk", 9), 9
    fl = attn.first_loads(S_KVE)
    younger = [0]

    def count_pq(e):
        tags = [t for t, d in e.vm]
        younger[0] = len(tags) - 1 - tags.index("pq") if "pq" in tags else 63
    count_pq.cost = 0
    SALU_COST[0] = 0.25
    spine, fill = [], {}
    e.wait_tag("b0")
    e("s_barrier")
    for f in range(D):
        for r in b_read(f):
            e(r)
    place_dma(fill, b_dma(9), 1, 16)
    for f in range(NF):
        u, s_, cb = units[f]
        part, kt = divmod(u, 7)
        pr = []
        for qb in range(2):
            o = qb * 8 + (cb & 1) * 4
            acc = a((cb >> 1) * 16 + o, 4) if part == 1 else v(H_ACC[cb >> 1] + o, 4)
            c = "0" if (kt == 0 and s_ == 0) else acc
            pr.append(f"v_mfma_f32_16x16x32_bf16 {acc}, {v(V_FA+(f%8)*4,4)}, {v(V_XN+((kt*2+s_)*2+qb)*4,4)}, {c}")
        spine.append(tuple(pr))
        nf = f + D
        if nf < NF:
            if nf in first_of:
                g = first_of[nf]
                ops = [lambda e, g=g: e.wait_tag(f"b{g}")]
                if g == GKV:
                    ops.append(lambda e: e.wait_tag("kvst"))
                if g == GQ:
                    ops.append(lambda e: e.wait_tag("qst"))
                if g == GCHK:
                    ops += [lambda e: flag_test(e, VPK), f"s_cselect_b32 s{S_EARLY}, 1, 0",
                            f"s_cselect_b32 s{S_KVE+2}, {WS_BYTES:#x}, 0"]
                ops.append("s_barrier")
                if g == GKV:
                    ops += ["s_cmp_eq_u32 s3, 0", "s_cbranch_scc1 M_SKV", "M_SKV_RET:"]
                if g == GQ:
                    ops += ["s_cmp_eq_u32 s3, 0", "s_cbranch_scc1 M_SQ", "M_SQ_RET:"]
                if g == 10:
                    ops += [f"s_cmp_lt_u32 s{S_QT}, 8", "s_cbranch_scc1 M_EQ", "M_EQ_RET:"]
                if f"g{g}" in opt.get("sp", []):
                    ops.append(lambda e, g=g: stamp(e, opt, f"g{g}", raw=True))
                if g == 10:
                    ops.insert(ops.index("s_barrier"), count_pq)
                fill.setdefault(f, []).append(ops)
                if g >= 2:
                    its = []
                    for u2 in (2 * g + 6, 2 * g + 7):
                        if u2 < NT:
                            its += b_dma(u2)
                    if its:
                        place_dma(fill, its, f + 2, f + 27)
                if g == 9:
                    spread(fill, sum(fl[:4], []), f + 2, f + 28)
                if g == 10:
                    spread(fill, sum(fl[4:], []), f + 2, f + 20)
            fill.setdefault(f, []).extend(b_read(nf))
        if f % 2 == 0:
            r = v(V_FA + (min(f + 1, NF - 1) % 8) * 4, 4)
            fill.setdefault(f - 1, []).append(waiter(r, WC))
    g1, g2a, g2, gq0, gq1 = opt.get("kv_split", (125, 200, 318, 130, 256))
    pour(fill, sum((kv_epi(b) for b in range(0, 8)), []), 2, g1)
    pour(fill, q_epi(0), gq0, 215)
    pour(fill, q_epi(1), 224 + 5, gq1)
    pour(fill, [f"s_mov_b32 s{S_KVE}, s{S_WS}", f"s_mov_b32 s{S_KVE+1}, s{S_WS+1}", f"s_mov_b32 s{S_KVE+3}, 0x20000",
                lambda e: flag_line(e, 73, FL_KV, S_HEAD), lambda e: flag_line(e, 74, FL_PAIR, S_PAIR)], 160, 180)
    fill.setdefault(opt.get("g_pkv", 240), []).append(f"buffer_load_dwordx2 {v(VPK,2)}, v{V_FO}, s[{S_WS}:{S_WS+3}], s73 offen sc1")
    GP = opt.get("g_poll", 288)
    fill.setdefault(GP - 1, []).append(f"v_mov_b32 v{VPQ+2}, 0")
    fill.setdefault(GP, []).append((f"buffer_load_dwordx2 {v(VPQ,2)}, v{VPQ+2}, s[{S_WS}:{S_WS+3}], s74 offen sc1", "pq"))
    fill.setdefault(GP, []).append(f"s_mov_b32 s{S_GOTQ}, 0")
    pour(fill, [f"v_accvgpr_mov_b32 a{A_Q+r}, a{A_Q2+r}" for r in range(64)], gq1 + 2, 300)
    pour(fill, sum((kv_epi(b) for b in range(8, 12)), []), g2a, g2)
    for k in range(8, 26):
        for r in (0, 2):
            g = min(range(224 + 7 * (k >> 1) + 8, NF), key=lambda g: (load_of(fill, g), g))
            fill.setdefault(g, []).append(f"v_mov_b64 {v(V_XN+4*k+r,2)}, 0")
    print(gap_report("phase B", fill, NF))
    weave2(e, spine, fill)
    SALU_COST[0] = 1
    stamp(e, opt, 3)
    stamp(e, opt, "bend")

    skv = Seg("m_skv")
    skv.label("M_SKV")
    flag_line(skv, 7, FL_KV, S_HA)
    flag_set(skv, S_WS, 7, f"s{S_KVSLOT}", 20)
    skv("s_branch M_SKV_RET")
    sq = Seg("m_sq")
    sq.label("M_SQ")
    sq(f"s_cmp_lt_u32 s{S_QT}, 8")
    sq("s_cbranch_scc1 M_SQ_RET")
    flag_set(sq, S_WS, 74, 0, V_XN)
    sq("s_branch M_SQ_RET")

    def spin(e, name, vd, voff, line, first=True):
        e("s_mov_b32 s6, 0")
        e.label(name)
        if first:
            e(f"buffer_load_dwordx2 {v(vd,2)}, v{voff}, s[{S_WS}:{S_WS+3}], s{line} offen sc1")
        e.wait_force(vm=0)
        flag_test(e, vd)
        e(f"s_cbranch_scc1 {name}_OK")
        e("s_sleep 2")
        if not first:
            e(f"buffer_load_dwordx2 {v(vd,2)}, v{voff}, s[{S_WS}:{S_WS+3}], s{line} offen sc1")
        e("s_add_u32 s6, s6, 1")
        e(f"s_cmp_lt_u32 s6, {PMAX}")
        e(f"s_cbranch_scc1 {name}")
        e.wait_force(vm=0)
        e.label(name + "_OK")

    late = Seg("m_late")
    late.label("M_LATE")
    spin(late, "M_PKV", VPK, V_FO, 73)
    for grp in attn.first_loads(S_WS):
        run(late, grp)
    late.wait_force(vm=0)
    late("s_branch M_LATE_RET")
    def q_loads(g):
        for k in range(16):
            if k and k % 4 == 0:
                g(f"s_add_u32 s{S_QB}, s{S_QB}, 4096")
            g(f"buffer_load_dwordx4 {a(A_Q+4*k,4)}, v{V_L16}, s[{S_WS}:{S_WS+3}], s{S_QB} offen offset:{(k%4)*1024} sc1", "q")

    gq = Seg("m_getq")
    gq.label("M_EQ")
    gq.wait_force(vm=younger[0])
    flag_test(gq, VPQ)
    gq("s_cbranch_scc0 M_EQ_RET")
    q_loads(gq)
    gq(f"s_mov_b32 s{S_GOTQ}, 1")
    gq("s_branch M_EQ_RET")
    gq.label("M_GETQ")
    gq(f"s_cmp_eq_u32 s{S_GOTQ}, {2 if opt.get('force_late') else 1}")
    gq("s_cbranch_scc1 M_GETQ_RET")
    if opt.get('force_late'):
        gq(f"s_mul_i32 s6, s{S_GOTQ}, 12288")
        gq(f"s_sub_u32 s{S_QB}, s{S_QB}, s6")
    spin(gq, "M_PQ", VPQ, VPQ + 2, 74)
    q_loads(gq)
    gq("s_branch M_GETQ_RET")
    wq = Seg("m_waitq")
    wq.label("M_WAITQ")
    wq.wait_force(vm=0)
    wq("s_branch M_WAITQ_RET")
    extra += [skv, sq, late, gq, wq]

    e(f"s_cmp_eq_u32 s{S_EARLY}, {2 if opt.get('force_late') else 1}")
    e("s_cbranch_scc0 M_LATE")
    e.label("M_LATE_RET")
    e(f"s_cmp_lt_u32 s{S_QT}, 8")
    e("s_cbranch_scc1 M_GETQ")
    e.label("M_GETQ_RET")
    stamp(e, opt, "polled")
    HS = V_XN + 4
    e("v_mov_b32 v20, 0x41800000")
    e("v_mov_b32 v21, 0x41800000")
    hsrc = [H_ACC[k >> 3] + 2 * (k & 7) for k in range(24)] + [H_ACC[3], H_ACC[3] + 2, H_ACC[3] + 8, H_ACC[3] + 10]
    for r in hsrc:
        e(f"v_pk_mul_f32 {v(r,2)}, {v(r,2)}, v[20:21]")
    for k, r in enumerate(hsrc):
        e(f"v_cvt_pk_bf16_f32 v{HS+k}, v{r}, v{r+1}")
    srd(e, S_OUT, P_OUT, OUT_BYTES)
    attn.setup_v(e)
    e("s_getpc_b64 s[80:81]")
    e.label("M_PC_A")
    e("s_lshr_b32 s7, s2, 3")
    e("s_lshl_b32 s7, s7, 2")
    e("s_add_u32 s7, s7, s3")
    e("s_mul_i32 s7, s7, 512")
    e(f"v_min_u32 v{attn.V_X+3}, 3, v0")
    e(f"v_lshl_add_u32 v{attn.V_X+3}, v{attn.V_X+3}, 7, s7")
    e(f"v_min_u32 v{attn.V_X+3}, M_CODE_END-M_PC_A-8, v{attn.V_X+3}")
    attn.init_state(e, V_XN + 4 * 26)
    e(f"s_cmp_lt_u32 s{S_QT}, 8")
    e("s_cbranch_scc1 M_WAITQ")
    e.label("M_WAITQ_RET")
    stamp(e, opt, 4)
    stamp(e, opt, "a0")

    RA, RB, XR, VO, VP = 184, 32, 12, 2, 10

    def hooks(fill, NFE, ED):
        g = 6 * NFE - ED
        fill[g].append(["s_cmp_eq_u32 s3, 0", "s_cbranch_scc1 M_SYA", "M_SYA_RET:"])
        ops = [f"s_lshl_b32 s7, s{S_QT}, 2", f"s_lshr_b32 s4, s{S_HEAD}, 2", "s_add_u32 s4, s4, s7",
               f"s_and_b32 s5, s{S_HEAD}, 3", "s_lshl_b32 s6, s3, 2", "s_add_u32 s5, s5, s6",
               "s_mul_i32 s6, s4, 28", "s_add_u32 s6, s6, s5", "s_lshl_b32 s6, s6, 10",
               f"s_add_u32 s53, s6, {Y_OFF}", "s_add_u32 s54, s53, 16384",
               f"v_and_b32 v{VO}, 15, v0", "v_lshrrev_b32 v3, 4, v0", "s_lshl_b32 s4, s4, 1", f"s_and_b32 s6, s{S_HEAD}, 1",
               "s_add_u32 s4, s4, s6", "s_lshl_b32 s4, s4, 4", f"v_add_u32 v{VO}, s4, v{VO}",
               f"v_mul_u32_u24 v{VO}, 896, v{VO}", f"v_lshl_add_u32 v{VO}, v3, 3, v{VO}", "s_lshr_b32 s5, s5, 1", "s_lshl_b32 s5, s5, 6",
               f"v_add_u32 v{VO}, s5, v{VO}"]
        ops += [f"buffer_load_dwordx2 {v(XR+2*k,2)}, v{VO}, s[{S_X}:{S_X+3}], 0 offen offset:{(k>>1)*512+(k&1)*32}" for k in range(4)]
        ops += [lambda e: flag_line(e, 55, FL_Y, S_QT), lambda e: flag_line(e, 63, FL_YA, S_QT)]
        pour(fill, ops, 5 * NFE + 2, 5 * NFE + 34)
        fill.setdefault(6 * NFE + opt.get("g_pa", 22), []).append(
            (f"buffer_load_dwordx2 {v(VP,2)}, v{V_FO}, s[{S_WS}:{S_WS+3}], s63 offen sc1", "pa"))

    sya = Seg("m_sya")
    sya.label("M_SYA")
    sya(f"s_lshl_b32 s6, s{S_HEAD}, 3")
    flag_set(sya, S_WS, 63, "s6", 20)
    sya("s_branch M_SYA_RET")
    extra.append(sya)

    def finish(e):
        stamp(e, opt, "yend")

        def loads(base, sreg, tag):
            for h in range(16):
                e(f"buffer_load_dwordx4 {v(base+4*h,4)}, v{V_L16}, s[{S_WS}:{S_WS+3}], s{sreg} offen sc1", tag)
                if h < 15:
                    e(f"s_add_u32 s{sreg}, s{sreg}, {64*28*1024}")

        def reduce(base, xr, off):
            acc, t = 20, 28
            for r in range(4):
                e(f"v_lshlrev_b32 v{acc+2*r}, 16, v{xr+r}")
                e(f"v_and_b32 v{acc+1+2*r}, 0xffff0000, v{xr+r}")
            for h in range(16):
                for r in range(4):
                    src = base + 4 * h + r
                    u = t + 2 * (r & 1)
                    e(f"v_lshlrev_b32 v{u}, 16, v{src}")
                    e(f"v_and_b32 v{u+1}, 0xffff0000, v{src}")
                    e(f"v_pk_add_f32 {v(acc+2*r,2)}, {v(acc+2*r,2)}, {v(u,2)}")
            for r in range(4):
                e(f"v_cvt_pk_bf16_f32 v{xr+r}, v{acc+2*r}, v{acc+1+2*r}")
            e(f"buffer_store_dwordx2 {v(xr,2)}, v{VO}, s[{S_OUT}:{S_OUT+3}], 0 offen offset:{off}")
            e(f"buffer_store_dwordx2 {v(xr+2,2)}, v{VO}, s[{S_OUT}:{S_OUT+3}], 0 offen offset:{off+32}")

        flag_test(e, VP)
        e("s_cselect_b32 s60, 1, 0")
        e("s_cbranch_scc0 M_NOA")
        loads(RA, 53, "ra")
        e.wait_force(vm=16)
        e("s_branch M_A1")
        e.label("M_NOA")
        e.wait_force(vm=0)
        e.label("M_A1")
        e("s_barrier")

        e("s_cmp_lg_u32 s3, 3")
        e("s_cbranch_scc1 M_PA_OK")
        e(f"s_lshl_b32 s6, s{S_HEAD}, 3")
        flag_set(e, S_WS, 55, "s6", 20)
        e("s_cmp_eq_u32 s60, 1")
        e("s_cbranch_scc1 M_PA_OK")
        spin(e, "M_PA", VP, V_FO, 63)
        e("s_barrier")
        e("s_cmp_eq_u32 s60, 1")
        e("s_cbranch_scc1 M_A2")
        loads(RA, 53, "ra")
        e.label("M_A2")
        e("s_cmp_eq_u32 s3, 3")
        e("s_cbranch_scc1 M_W3")
        e.wait_force(vm=0)
        reduce(RA, XR, 0)
        e("s_barrier")
        stamp(e, opt, "ypoll")
        e.vm = []
        loads(RB, 54, "rb")
        reduce(RB, XR + 4, 512)
        e("s_branch M_DONE")
        e.label("M_W3")
        spin(e, "M_PB", VP, V_FO, 55)
        e("s_barrier")
        stamp(e, opt, "ypoll")
        reduce(RA, XR, 0)
        e.label("M_DONE")
        stamp(e, opt, 5)
        stamp(e, opt, "end")
        stamp_flush(e, opt, 0, S_WS, 6)

    aopt = dict(opt)
    aopt["code_pf"] = not opt.get("no_cpf")
    aopt["stash"] = HS
    aopt["kv2"] = (S_HA, S_KVSLOT, V_FO, sum((kv_epi(b, attn.V_X + 4, 0) for b in range(12, 16)), []))
    if not opt.get("sp"):
        aopt["sp"] = ["none"]
        aopt["spk"] = ""
    asegs, atraces = attn.gen_attn(e, aopt, "M_END", finish, hooks)
    z = Seg("m_z")
    z.label("M_CODE_END")
    segs += asegs + extra + [z]
    for t in traces[1:]:
        t.append(e)
    traces += atraces + [[tails[0], fb, e]] + [[x] for x in extra]
    return segs, traces
```

```python
from emit import *
from common import *

LDS_BYTES = 160 * 1024
S_WS, S_WO, S_W2, S_Y1 = 16, 8, 12, 28
V_L16, V_PD = 1, 2
V_DMA, V_DMA2 = 3, 4
V_L0, V_L1, V_VA, V_HA, V_D0, V_NEGBIG, V_MAX, V_MS = 8, 9, 10, 11, 13, 14, 15, 16
V_T = 18
V_S = (32, 48)
V_P = (64, 72)
V_NM = 80
V_X = 96
V_O = 128
A_Q, A_Q2, A_F, A_HF = 0, 64, 128, 192
S_HEAD, S_QT, S_NH, S_IT, S_T, S_RET, S_DELTA, S_ITH, S_OFFH, S_OFFD = 32, 33, 34, 35, 36, 37, 38, 39, 40, 41
S_KVB, S_W4K, S_PAIR, S_ITSW, S_ITSIG, S_PEND = 42, 43, 48, 49, 50, 51
S_OFF = 44
THR = 16.0
VSLOT = {32: 0x20000, 33: 0x24000}
S_NEG, S_QS, S_PFO, S_PFD, S_PUB = 52, 82, 83, 84, 78
V_KP = 12
KPD = 7
KVM = [""]


def setup_s(e):
    e(f"s_lshl_b32 s4, s{S_QT}, 2")
    e(f"s_sub_u32 s{S_NH}, 30, s4")
    e(f"s_sub_u32 s6, 15, s{S_QT}")
    e(f"s_cmp_ge_u32 s{S_QT}, 8")
    e(f"s_cselect_b32 s{S_NH}, 0, s{S_NH}")
    e(f"s_cselect_b32 s{S_PAIR}, s6, s{S_QT}")
    e(f"s_lshl_b32 s5, s{S_HEAD}, 3")
    e(f"s_add_u32 s{S_PAIR}, s{S_PAIR}, s5")
    e(f"s_lshl_b32 s{S_W4K}, s3, 12")
    e(f"s_lshl_b32 s{S_KVB}, s{S_HEAD}, 21")
    e(f"s_sub_u32 s5, 29, s{S_NH}")
    e("s_lshl_b32 s5, s5, 15")
    e(f"s_add_u32 s{S_OFFH}, s5, s{S_KVB}")
    e("s_lshl_b32 s5, s4, 15")
    e(f"s_add_u32 s{S_OFFD}, s5, s{S_KVB}")
    e(f"s_sub_u32 s5, s{S_NH}, 6")
    e("s_lshr_b32 s5, s5, 2")
    e(f"s_cmp_ge_u32 s{S_NH}, 6")
    e(f"s_cselect_b32 s{S_ITH}, s5, 99")
    e(f"s_lshr_b32 s5, s{S_NH}, 2")
    e(f"s_cmp_ge_u32 s{S_QT}, 8")
    e(f"s_cselect_b32 s{S_ITSW}, 99, s5")
    e(f"s_mov_b32 s{S_ITSIG}, s{S_ITSW}")
    e("s_cmp_eq_u32 s3, 0")
    e(f"s_cselect_b32 s{S_ITSIG}, s{S_ITSIG}, 99")
    e(f"s_mov_b32 s{S_NEG}, 0xffff8000")
    e(f"s_mov_b32 s{S_PEND}, 0")
    e(f"s_mov_b32 s{S_IT}, 0")
    e(f"s_mov_b32 s{S_T}, {f32(THR)}")


def setup_dma(e):
    e(f"v_lshlrev_b32 v{V_L16}, 4, v0")
    e(f"v_add_u32 v{V_DMA}, s{S_W4K}, v{V_L16}")
    e(f"v_add_u32 v{V_DMA2}, 0x4000, v{V_DMA}")


def setup_v(e):
    e(f"s_mul_i32 s5, s{S_QT}, {112*128}")
    e(f"s_mul_i32 s6, s3, {28*128}")
    e("s_add_u32 s5, s5, s6")
    e(f"s_mul_i32 s6, s{S_HEAD}, 229376")
    e(f"s_add_u32 s{S_PFO}, s5, s6")
    e(f"v_lshrrev_b32 v{V_T}, 4, v0")
    e(f"v_lshlrev_b32 v{V_X+1}, 7, v{V_T}")
    e(f"s_mul_i32 s5, s{S_QT}, {49*128}")
    e(f"s_mul_i32 s6, s3, {13*128}")
    e("s_add_u32 s5, s5, s6")
    e(f"s_mul_i32 s6, s{S_HEAD}, 100352")
    e(f"s_add_u32 s{S_PFD}, s5, s6")
    e(f"v_lshrrev_b32 v{V_T}, 5, v0")
    e(f"v_lshlrev_b32 v{V_X+2}, 7, v{V_T}")
    e(f"v_add_u32 v{V_VA}, 0x10000, v{V_L16}")
    e(f"v_and_b32 v{V_T}, 15, v0")
    e(f"v_lshrrev_b32 v{V_T+1}, 4, v0")
    e(f"v_lshlrev_b32 v{V_T+1}, 2, v{V_T+1}")
    e(f"v_sub_u32 v{V_D0}, v{V_T}, v{V_T+1}")
    e(f"v_mov_b32 v{V_NEGBIG}, {f32(-1e30)}")
    for r in range(4):
        e(f"v_cmp_le_i32 s[{64+2*r}:{65+2*r}], {r}, v{V_D0}")
    e(f"s_mov_b32 s{S_QS}, {f32(16 * QSCALE)}")
    e("s_cmp_eq_u32 s3, 0")
    e(f"s_cselect_b32 s{S_PUB}, 2, 0")
    e("s_mul_i32 s5, s3, 7168")
    e("s_add_u32 s5, s5, 0x20000")
    e(f"v_add_u32 v{V_HA}, s5, v{V_L16}")


def idx_ops(dst, n):
    return [
        f"s_mov_b32 s{dst}, {(29-n) << 15}",
        f"s_cmp_gt_u32 s{S_NH}, {n}",
        f"s_cselect_b32 s{dst}, {(30+n) << 15}, s{dst}",
        f"s_add_u32 s{dst}, s{dst}, s{S_KVB}",
    ]


def dmaK(slot, off, tag="dma", S_WS=S_WS):
    return [f"s_add_u32 m0, s{S_W4K}, {slot*16384}"] + [
        (f"buffer_load_dwordx4 v{V_DMA}, s[{S_WS}:{S_WS+3}], s{off} offen offset:{j*1024}{KVM[0]} lds", tag) for j in range(4)]


def dmaV(base, off, tag="dma", S_WS=S_WS):
    return [f"s_add_u32 m0, s{S_W4K}, {base}"] + [
        (f"buffer_load_dwordx4 v{V_DMA2}, s[{S_WS}:{S_WS+3}], s{off} offen offset:{j*1024}{KVM[0]} lds", tag) for j in range(4)]


def first_loads(sr=S_WS):
    out = [[idx_ops(S_OFF + n, n)] for n in range(4)]
    seq = [out[0] + dmaK(0, S_OFF + 0, "k0", sr), dmaV(0x10000, S_OFF + 0, "v0", sr), out[1] + dmaK(1, S_OFF + 1, "k1", sr),
           dmaV(0x14000, S_OFF + 1, "v1", sr), out[2] + dmaK(2, S_OFF + 2, "k2", sr), out[3] + dmaK(3, S_OFF + 3, "k3", sr)]
    return seq


def init_state(e, o_from=V_O):
    for r in range(o_from, V_O + 128, 2):
        e(f"v_mov_b64 {v(r,2)}, 0")
    for r in range(0, 8, 2):
        e(f"v_mov_b64 {v(V_NM+r,2)}, 0")
    e(f"v_mov_b64 {v(V_L0,2)}, 0")


def gen_attn(e, opt, end_label, finish=None, hooks=None):
    D = opt.get("a_depth", 14)
    WG = opt.get("a_waitgrp", 8)
    YM = opt.get("y_store_mod", "")
    SC = opt.get("salu_cost", 0.25)
    KPF = 1 if opt.get("kpf") else 0
    NEPF = 3 if opt.get("loop_epf") else 0

    def rd(f, kslot, vbase):
        d = a(A_F + (f % 16) * 4, 4)
        if f < 16:
            return f"ds_read_b128 {d}, v{V_L16} offset:{kslot*16384 + f*1024}"
        return f"ds_read_b128 {d}, v{V_VA} offset:{vbase + (f-16)*1024}"

    M16 = "v_mfma_f32_16x16x32_bf16"

    def m1(f, qb, par):
        fr = a(A_F + (f % 16) * 4, 4)
        if f < 16:
            j, kb = divmod(f, 2)
            S = v(V_S[par ^ 1] + qb * 8 + kb * 4, 4)
            C = v(V_NM + qb * 4, 4) if j == 0 else S
            return f"{M16} {S}, {fr}, {a(A_Q+(j*2+qb)*4,4)}, {C}"
        j, b = divmod(f - 16, 2)
        O = v(V_O + (j * 2 + qb) * 8 + b * 4, 4)
        return f"{M16} {O}, {fr}, {v(V_P[par]+4*qb,4)}, {O}"

    def mf(u, par):
        if 16 <= u < 20:
            f, qb = 16 + 2 * (u & 1), (u - 16) >> 1
            return (m1(f, qb, par), m1(f + 1, qb, par))
        return (m1(u, 0, par), m1(u, 1, par))

    def max_ops(par):
        S = V_S[par]
        t = V_T
        ops = [f"v_max3_f32 v{t+k}, v{S+3*k}, v{S+3*k+1}, v{S+3*k+2}" for k in range(5)]
        ops += [f"v_max3_f32 v{t}, v{t}, v{t+1}, v{t+2}", f"v_max3_f32 v{t+3}, v{t+3}, v{t+4}, v{S+15}",
                f"v_max_f32 v{V_MAX}, v{t}, v{t+3}", f"v_cmp_lt_f32 vcc, s{S_T}, v{V_MAX}"]
        return ops

    def soft_ops(par):
        S, P = V_S[par], V_P[par]
        ops = []
        for k in range(9):
            if k < 8:
                ops += [f"v_exp_f32 v{S+2*k}, v{S+2*k}", f"v_exp_f32 v{S+2*k+1}, v{S+2*k+1}"]
            if k > 0:
                j = k - 1
                ops += [f"v_cvt_pk_bf16_f32 v{P+j}, v{S+2*j}, v{S+2*j+1}",
                        f"v_add_f32 v{V_L0+(j>>2)}, v{V_L0+(j>>2)}, v{S+2*j}", f"v_add_f32 v{V_L0+(j>>2)}, v{V_L0+(j>>2)}, v{S+2*j+1}"]
        return ops

    def mask_ops(par):
        S = V_S[par]
        ops = [f"v_mov_b32 v{S+4+r}, v{V_NEGBIG}" for r in range(4)]
        for b in (0, 12):
            ops += [f"v_cndmask_b32 v{S+b+r}, v{V_NEGBIG}, v{S+b+r}, s[{64+2*r}:{65+2*r}]" for r in range(4)]
        return ops

    def waits(fill, lo, hi, shift=0):
        for f in range(lo, hi, WG):
            r = a(A_F + ((f + WG - 1) % 16) * 4, 4)
            w = lambda e, r=r: wait_reg(e, r)
            w.salu, w.cost = True, SC
            fill.setdefault(f - 1 - shift, []).append(w)

    def place(fill, ops, g0, step=2):
        fill.setdefault(g0, []).append(ops[0])
        for j, d in enumerate(ops[1:]):
            fill.setdefault(g0 + 1 + step * j, []).append(d)

    rare_sites = {0: [], 1: []}
    stubs = Seg("a_stubs")

    def rare_check(e, par, name):
        k = len(rare_sites[par])
        rare_sites[par].append(name)
        e(f"s_cbranch_vccnz A_ST_{name}" if not opt.get("x_drop") else "s_nop 0")
        e.label(f"A_RET_{name}")
        stubs.label(f"A_ST_{name}")
        stubs(f"s_mov_b32 s{S_RET}, {k}")
        stubs(f"s_branch A_RARE{par}")

    V_EV, V_EA = V_X + 4, V_X + 8

    def e_setup():
        ops = ["v_lshrrev_b32 v24, 3, v0", "v_mul_u32_u24 v24, 896, v24", "v_lshrrev_b32 v26, 4, v0", "v_and_b32 v25, 7, v0",
               "v_lshlrev_b32 v27, 1, v26", "v_xor_b32 v25, v25, v27", f"v_lshl_add_u32 v{V_EV}, v25, 4, v24"]
        ops += [f"v_add_u32 v{V_EV+j}, {j*7168 - j*1024}, v{V_EV}" for j in range(1, 4)]
        ops += [f"s_mul_i32 s56, s{S_HEAD}, 229376", "s_mul_i32 s4, s3, 57344", "s_add_u32 s56, s56, s4",
                f"s_mul_i32 s57, s{S_HEAD}, 100352", "s_mul_i32 s4, s3, 28672", "s_add_u32 s57, s57, s4",
                "s_lshl_b32 s60, s3, 13"]
        ops += ["v_lshrrev_b32 v24, 2, v0", "v_bfe_u32 v25, v0, 3, 2", "v_lshlrev_b32 v24, 7, v24", "v_lshl_add_u32 v24, v25, 5, v24",
                "v_and_b32 v25, 3, v0", f"v_lshl_add_u32 v{V_EA}, v25, 3, v24"]
        ops += [f"v_xor_b32 v{V_EA+cb}, {cb << 5}, v{V_EA}" for cb in range(1, 4)]
        ops += [f"s_lshl_b32 s62, s{S_HEAD}, 6", f"s_lshl_b32 s4, s{S_QT}, 2", "s_add_u32 s62, s62, s4", "s_add_u32 s62, s62, s3",
                "s_mul_i32 s62, s62, 28672", f"s_add_u32 s62, s62, {Y_OFF}"]
        return ops

    def e_dma(tag="edma"):
        ops = []
        for grp in range(2):
            ops.append(["s_add_u32 s61, s58, s60", f"s_add_u32 m0, s61, {grp*4096}", f"s_add_u32 s61, s56, {grp*32*896}"])
            for j in range(4):
                ops.append((f"buffer_load_dwordx4 v{V_EV+j}, s[{S_WO}:{S_WO+3}], s61 offen offset:{j*1024} lds", tag))
        ops.append([f"s_add_u32 m0, s59, s{S_W4K}", "s_add_u32 s56, s56, 128"])
        for j in range(4):
            ops.append((f"buffer_load_dwordx4 v{V_EV+j}, s[{S_W2}:{S_W2+3}], s57 offen offset:{j*1024} lds", tag))
        ops.append("s_add_u32 s57, s57, 128")
        return ops

    EO = (0x8000, 0x14000, 0x20000)
    E2 = (0x10000, 0x1c000, 0x0)

    e.wait_tag("q")
    e.wait_tag("k0")
    e.wait(lgkm=0)
    e("s_barrier")
    HS = opt["stash"]
    for k in range(7):
        e(f"ds_write_b128 v{V_HA}, {v(HS+4*k,4)} offset:{k*1024}")
    for f in range(D):
        e(rd(f, 0, 0))
    spine = [mf(f, 1) for f in range(16)]
    fill = {}
    waits(fill, 0, 16)
    for f in range(16):
        nf = f + D
        if nf == 16:
            fill.setdefault(f, []).extend([lambda e: e.wait_tag("k1"), lambda e: e.wait(lgkm=0), "s_barrier"])
        fill.setdefault(f, []).append(rd(nf % 16, 0 if nf < 16 else 1, 0))
    weave2(e, spine, fill)
    run(e, idx_ops(S_OFF + 0, 4))
    e(f"s_cmp_gt_u32 s{S_NH}, 4")
    e(f"s_cselect_b32 s{S_DELTA}, 0x8000, s{S_NEG}")
    run(e, dmaK(0, S_OFF + 0, "k4"))
    stamp(e, opt, 1, raw=True)
    stamp(e, opt, "a_loop", raw=True)
    e(f"s_mov_b32 s{S_RET}, 0")
    e("s_branch A_FIRST")
    pro = e
    stateL, stateV = list(e.lds), [("dma", frozenset())] * 63

    def step(e, p, n=None, q0=False):
        par = p & 1
        SALU_COST[0] = SC
        nm = (f"Q{p}" if q0 else f"L{p}") if n is None else f"P{n}"
        sx = "_Q" if q0 else ""
        if p == 1:
            e(f"s_cmp_eq_u32 s{S_IT}, s{S_ITSW}")
            e(f"s_cbranch_scc1 A_SW1")
            e.label(f"A_SW1_RET_{nm}")
        spine = [mf(f, par) for f in range(32)]
        fill = {}
        waits(fill, 0, 32)
        vb = p * 16384 if n not in VSLOT else VSLOT[n] - 0x10000
        gb = 32 - D
        if n == 32:
            fill.setdefault(-1, []).append(f"v_add_u32 v{V_VA}, 0x10000, v{V_VA}")
            vb = 0
        for f in range(32):
            nf = f + D
            if nf == 32 and (n is None or n <= 30):
                vm = {None: 9, 28: 9, 29: 12, 30: 0}[n]
                if q0:
                    fill.setdefault(f, []).extend([lambda e: e.wait_tags((f"k{p+2}", f"v{p+1}")), "s_barrier"])
                elif n is None and p == 2:
                    fill.setdefault(f, []).append([f"s_cmp_eq_u32 s{S_IT}, s{S_ITSW}", "s_cbranch_scc1 A_ALTW",
                                                   lambda e, vm=vm: e.wait_force(vm=vm), "A_ALTW_RET:", "s_barrier"])
                else:
                    fill.setdefault(f, []).extend([lambda e, vm=vm: e.wait_force(vm=vm), "s_barrier"])
            if nf < 32:
                fill.setdefault(f, []).append(rd(nf, (p + 1) % 4, vb))
            elif n != 32:
                fill.setdefault(f, []).append(rd(nf - 32, (p + 2) % 4, 0))
        if n is None or n <= 29:
            place(fill, dmaV(0x10000 + ((p + 2) % 4) * 16384, S_OFF + (p + 2) % 4, f"v{p+2}"), 0, 4)
        if n is None or n <= 28:
            o = [f"s_add_u32 s{S_OFF+(p+1)%4}, s{S_OFF+p}, s{S_DELTA}"]
            if p == 1:
                d = S_OFF + 2
                o += [[f"s_cmp_eq_u32 s{S_IT}, s{S_ITH}", f"s_cselect_b32 s{d}, s{S_OFFH}, s{d}", f"s_cselect_b32 s{S_DELTA}, s{S_NEG}, s{S_DELTA}"],
                      [f"s_cmp_eq_u32 s{S_IT}, 6", f"s_cselect_b32 s{d}, s{S_OFFD}, s{d}", f"s_cselect_b32 s{S_DELTA}, 0x8000, s{S_DELTA}"]]
            if n == 28:
                for x, g in zip(dmaK(1, S_OFF + 1) + dmaV(VSLOT[32], S_OFF + 0), (19, 20, 21, 23, 24, 25, 26, 28, 29, 31)):
                    fill.setdefault(g, []).append(x)
            else:
                place(fill, dmaK((p + 1) % 4, S_OFF + (p + 1) % 4, f"k{p+5}"), gb + 1, 3)
            late_o = o
        else:
            late_o = []
        if n == 29:
            place(fill, dmaV(VSLOT[33], S_OFF + 1), gb + 1, 3)
        if n == 28:
            pour(fill, e_setup(), 9, 31)
        if n == 30:
            fill.setdefault(gb, []).extend([f"s_mov_b32 s58, {EO[0]}", f"s_mov_b32 s59, {E2[0]}"])
            spread(fill, e_dma("e0")[:5], gb + 1, 32)
        if n == 31:
            spread(fill, e_dma("e0")[5:], 6, 30)
        if n == 32:
            pl_ = [f"s_lshl_b32 s54, s{S_PAIR}, 2", "s_add_u32 s54, s54, s3", "s_lshl_b32 s55, s54, 10", f"s_add_u32 s55, s55, {ML_OFF}",
                   "s_lshl_b32 s54, s54, 14", f"s_add_u32 s54, s54, {OP_OFF}", f"v_lshrrev_b32 v{V_X+12}, 1, v{V_L16}"]
            fill.setdefault(-1, []).extend(pl_)
            G_ = S_Y1
            ld = [f"buffer_load_dwordx2 {v(V_X+16,2)}, v{V_X+12}, s[{G_}:{G_+3}], s55 offen sc1",
                  f"buffer_load_dwordx2 {v(V_X+18,2)}, v{V_X+12}, s[{G_}:{G_+3}], s55 offen offset:512 sc1"]
            for k in range(16):
                if k and k % 4 == 0:
                    ld.append("s_add_u32 s54, s54, 4096")
                ld.append(f"buffer_load_dwordx4 {a(A_Q2+4*k,4)}, v{V_L16}, s[{G_}:{G_+3}], s54 offen offset:{(k%4)*1024} sc1")
            spread(fill, ld, 0, 24)
        if n is None and p == 3:
            fill.setdefault(gb + 3, []).append([f"s_cmp_eq_u32 s{S_IT}, s{S_ITSIG}", "s_cbranch_scc1 A_SIG", f"A_SIG_RET{sx}:"])
        if n is None and p == 2:
            if not q0:
                fill.setdefault(17, []).append([f"s_bitcmp1_b32 10, s{S_IT}", "s_cbranch_scc1 A_KV2L", "A_KV2L_RET:"])
            fill.setdefault(gb + 3, []).append([f"s_cmp_lt_u32 s{S_IT}, s{S_PUB}", "s_cbranch_scc1 A_KV2S", f"A_KV2S_RET{sx}:"])
        if n == 31:
            fill.setdefault(2, []).extend([lambda e: flag_line(e, 55, FL_PAIR, S_PAIR), f"v_mov_b32 v{V_X+12}, 8"])
            fill.setdefault(4, []).append((f"buffer_load_dwordx2 {v(V_X+14,2)}, v{V_X+12}, s[{S_WS}:{S_WS+3}], s55 offen sc1", "ep"))
        if n is None and p == 1:
            fill.setdefault(15, []).append((f"buffer_load_dword v{V_PD}, v{V_X+1}, s[{S_WO}:{S_WO+3}], s{S_PFO} offen", "pf"))
            fill.setdefault(16, []).append(f"s_add_u32 s{S_PFO}, s{S_PFO}, 512")
        if n is None and p == 3:
            fill.setdefault(15, []).append((f"buffer_load_dword v{V_PD}, v{V_X+2}, s[{S_W2}:{S_W2+3}], s{S_PFD} offen", "pf"))
            fill.setdefault(16, []).append(f"s_add_u32 s{S_PFD}, s{S_PFD}, 256")
        if n is None:
            RW, X_, T_, OU = V_X + 24, V_X + 28, V_T + 6, V_T + 10
            h = p >> 1
            if p == 0 and q0:
                fill.setdefault(0, []).append(f"ds_read_b128 {v(RW,4)}, v{V_HA}")
            elif p == 0:
                fill.setdefault(0, []).append(f"ds_write_b128 v{V_HA}, {v(OU,4)}")
                fill.setdefault(2, []).append(f"ds_read_b128 {v(RW,4)}, v{V_HA} offset:1024")
                fill.setdefault(3, []).append(f"v_add_u32 v{V_HA}, 0x400, v{V_HA}")
            if p % 2 == 0:
                sl = []
                for r in range(2):
                    sl += [f"v_lshlrev_b32 v{X_+2*r}, 16, v{RW+2*h+r}", f"v_and_b32 v{X_+2*r+1}, 0xffff0000, v{RW+2*h+r}"]
                sl += [f"v_exp_f32 v{T_+r}, -v{X_+r}" for r in range(4)]
            else:
                sl = [f"v_fma_f32 v{T_+r}, v{T_+r}, s{S_QS}, s{S_QS}" for r in range(4)]
                sl += [f"v_rcp_f32 v{T_+r}, v{T_+r}" for r in range(4)]
                sl += [f"v_mul_f32 v{T_+r}, v{T_+r}, v{X_+r}" for r in range(4)]
                sl += [f"v_cvt_pk_bf16_f32 v{OU+2*h+r}, v{T_+2*r}, v{T_+2*r+1}" for r in range(2)]
            silu = sl
        else:
            silu = []
        if n == 28:
            fill.setdefault(-1, []).extend([f"ds_write_b128 v{V_HA}, {v(V_T+10,4)}", f"v_subrev_u32 v{V_HA}, 0x1800, v{V_HA}"])
            for k in range(6):
                fill.setdefault(k, []).append(f"ds_read_b128 {a(A_HF+4*k,4)}, v{V_HA} offset:{k*1024}")
            for qb in range(2):
                fill.setdefault(6 + qb, []).append(f"ds_read_b64 {a(A_HF+24+4*qb,2)}, v{V_HA} offset:{6144+8*qb}")
                fill.setdefault(20 + qb, []).extend([f"v_accvgpr_write_b32 a{A_HF+26+4*qb}, 0", f"v_accvgpr_write_b32 a{A_HF+27+4*qb}, 0"])
        so = soft_ops(par)
        mo = max_ops(par ^ 1)
        if n == 32:
            mo = mask_ops(par ^ 1) + mo
        elif n is not None and n >= 29:
            mo = [[f"s_cmp_eq_u32 s3, {n-29}", f"s_cbranch_scc1 A_MASK{n}", f"A_MASK{n}_RET:"]] + mo
            stubs.label(f"A_MASK{n}")
            stubs.nop(8)
            run(stubs, mask_ops(par ^ 1))
            stubs(f"s_branch A_MASK{n}_RET")
        sa = [x for x in so if not x.startswith("v_add")]
        pour(fill, sa, 0, 17)
        pour(fill, late_o, 10, gb + 2)
        pour(fill, mo, 18, 32)
        if opt.get("x_nosilu"):
            silu = [x for x in silu if x.startswith(("ds_", "v_add_u32"))]
        if opt.get("x_pk"):
            adds = [x for x in so if x.startswith("v_add")]
            so = sa + [f"v_add_pk {k}" for k in range(8)]
        pour(fill, silu, 16 if p == 0 else 0, 32)
        if q0:
            kv3 = opt["kv2"][3]
            cut = [0, 32, 64, 96, len(kv3)]
            pour(fill, kv3[cut[p]:cut[p+1]], 0, 12 if p == 3 else 32)
        for x in so:
            if x.startswith("v_add_pk"):
                k = int(x.split()[1])
                S_ = V_S[par]
                acc = V_NM + 8 + 2 * (k >> 2)
                g0 = [g for g in fill for y in fill[g] if isinstance(y, str) and y.startswith(f"v_exp_f32 v{S_+2*k+1},")][0]
                g = min(range(g0 + 1, 32), key=lambda g: (load_of(fill, g), g))
                fill[g].append(f"v_pk_add_f32 {v(acc,2)}, {v(acc,2)}, {v(S_+2*k,2)}")
            elif x.startswith("v_add"):
                src = x.split(",")[-1].strip()
                g0 = [g for g in fill for y in fill[g] if isinstance(y, str) and y.startswith(f"v_exp_f32 {src},")][0]
                g = min(range(g0 + 1, 32), key=lambda g: (load_of(fill, g), g))
                fill[g].append(x)
        if n is None:
            def drop(pred):
                for g in fill:
                    fill[g] = [x for x in fill[g] if not pred(x)]
            txt = lambda x: x[0] if isinstance(x, tuple) else (x if isinstance(x, str) else "")
            if opt.get("x_nobar"):
                drop(lambda x: txt(x) == "s_barrier")
            if opt.get("x_nodma"):
                drop(lambda x: " lds" in txt(x))
            if opt.get("x_novalu"):
                drop(lambda x: txt(x).startswith(("v_exp", "v_add_f32", "v_cvt", "v_max", "v_mul", "v_rcp", "v_fma", "v_lshl", "v_and")))
            for pat in opt.get("x_drop", []):
                drop(lambda x: txt(x).startswith(pat))
            if opt.get("x_noexp"):
                for g in fill:
                    fill[g] = [x.replace("v_exp_f32", "v_mov_b32").replace("v_rcp_f32", "v_mov_b32") if isinstance(x, str) else x for x in fill[g]]
        if opt.get("verbose"):
            print(gap_report(f"step {nm}", fill, 32), [load_of(fill, g) for g in range(32)])
        weave2(e, spine, fill)
        if p == 1:
            e(f"s_cmp_eq_u32 s{S_IT}, s{S_ITSW}")
            e("s_cbranch_scc1 A_SW2")
        rare_check(e, par, nm)
        SALU_COST[0] = 1

    q0 = Seg("a_q0", stateL, pro.vm)
    q0.label("A_Q0")
    for p in range(4):
        step(q0, p, q0=True)
    q0(f"s_mov_b32 s{S_IT}, 1")
    assert q0.lds == stateL
    lp = Seg("a_loop", stateL, stateV)
    lp.label("A_LOOP")
    for p in range(4):
        step(lp, p)
    lp(f"s_add_u32 s{S_IT}, s{S_IT}, 1")
    for it in range(1, 8):
        if f"ai{it}" in opt.get("sp", []):
            lp(f"s_cmp_lg_u32 s{S_IT}, {it}")
            lp(f"s_cbranch_scc1 A_NS{it}")
            stamp(lp, opt, f"ai{it}", raw=True)
            lp.label(f"A_NS{it}")
    lp(f"s_bitcmp1_b32 20, s{S_IT}")
    lp("s_cbranch_scc1 A_KV2C")
    lp(f"s_cmp_lt_u32 s{S_IT}, 7")
    lp("s_cbranch_scc1 A_LOOP")
    stamp(lp, opt, "a_lend", raw=True)
    assert lp.lds == stateL

    peel = {}
    for n in range(28, 33):
        sg = Seg(f"a_p{n}", stateL, stateV)
        step(sg, n % 4, n)
        stamp(sg, opt, f"p{n}", raw=True)
        if n >= 29 and n < 32:
            sg(f"s_cmp_eq_u32 s3, {n-29}")
            sg(f"s_cbranch_scc1 A_TAILW{n-29}")
        if n == 31:
            flag_test(sg, V_X + 14)
            sg("s_cselect_b32 s53, 2, 0")
            sg(f"s_cmp_ge_u32 s{S_QT}, 8")
            sg(f"s_cselect_b32 s{S_PEND}, s53, 0")
            sg(f"s_mov_b32 s{S_Y1}, s{S_WS}")
            sg(f"s_mov_b32 s{S_Y1+1}, s{S_WS+1}")
            sg(f"s_mul_i32 s{S_Y1+2}, s{S_PEND}, {WS_BYTES//2:#x}")
            sg(f"s_mov_b32 s{S_Y1+3}, 0x20000")
        peel[n] = sg

    def signal(e):
        flag_line(e, 55, FL_PAIR, S_PAIR)
        flag_set(e, S_WS, 55, 1, V_X + 12)
        e(f"s_mov_b32 s{S_PEND}, 0")

    def tail_body(e, par):
        e.wait(lgkm=0)
        for f in range(16, 16 + D):
            e(rd(f, 0, 0))
        so = soft_ops(par)
        sa = [x for x in so if not x.startswith("v_add")]
        run(e, sa[:20])
        spine = [mf(f, par) for f in range(16, 32)]
        fill = {}
        waits(fill, 16, 32, 16)
        for f in range(16, 32):
            if f + D < 32:
                fill.setdefault(f - 16, []).append(rd(f + D, 0, 0))
        fill.setdefault(0, []).extend(sa[20:])
        pour(fill, [x for x in so if x.startswith("v_add")], 1, 14)
        weave2(e, spine, fill)

    t3 = Seg("a_tail1", stateL, stateV)
    t3(f"v_add_u32 v{V_VA}, 0x4000, v{V_VA}")
    t3.label("A_TAIL1")
    tail_body(t3, 1)
    t3.label("A_FIN")
    t0 = Seg("a_tail0", stateL, stateV)
    t0.label("A_TAILW0")
    t0(f"v_add_u32 v{V_VA}, 0x8000, v{V_VA}")
    t0("s_branch A_TAIL0")
    t0.label("A_TAILW1")
    t0(f"v_add_u32 v{V_VA}, 0xc000, v{V_VA}")
    run(t0, e_dma("e0")[5:])
    t0("s_branch A_TAIL1")
    t0.label("A_TAILW2")
    t0(f"v_add_u32 v{V_VA}, 0x10000, v{V_VA}")
    t0.label("A_TAIL0")
    tail_body(t0, 0)
    t0("s_cmp_lg_u32 s3, 0")
    t0("s_cbranch_scc1 A_FIN")
    t0.wait_force(vm=0)
    t0("s_barrier")
    t0(f"s_mov_b32 s58, {EO[0]}")
    t0(f"s_mov_b32 s59, {E2[0]}")
    run(t0, e_dma("e0"))
    t0(f"s_cmp_eq_u32 s{S_PEND}, 0")
    t0("s_cbranch_scc1 A_FIN")
    signal(t0)
    t0("s_branch A_FIN")

    def ret_chain(e, names):
        for k, nm in enumerate(names[:-1]):
            e(f"s_cmp_eq_u32 s{S_RET}, {k}")
            e(f"s_cbranch_scc1 A_RET_{nm}")
        e(f"s_branch A_RET_{names[-1]}")

    def across(e, regs, tmp, op):
        for step in (16, 32):
            for k, r in enumerate(regs):
                e(f"v_mov_b32 v{tmp+k}, v{r}")
            e.nop(2)
            for k, r in enumerate(regs):
                e(f"v_permlane{step}_swap_b32 v{r}, v{tmp+k}")
            for k, r in enumerate(regs):
                e(f"{op} v{r}, v{r}, v{tmp+k}")

    def row_max(e, S):
        t = V_T
        for qb in range(2):
            b = S + 8 * qb
            e(f"v_max3_f32 v{t+qb}, v{b}, v{b+1}, v{b+2}")
            e(f"v_max3_f32 v{t+2+qb}, v{b+3}, v{b+4}, v{b+5}")
            e(f"v_max3_f32 v{t+qb}, v{t+qb}, v{b+6}, v{b+7}")
            e(f"v_max_f32 v{t+qb}, v{t+qb}, v{t+2+qb}")
        across(e, (t, t + 1), t + 2, "v_max_f32")

    def rare(par):
        e = Seg(f"a_rare{par}", stateL, stateV)
        e.label(f"A_RARE{par}")
        S = V_S[par ^ 1]
        t = V_T
        row_max(e, S)
        for qb in range(2):
            e(f"v_max_f32 v{t+qb}, 0, v{t+qb}")
            e(f"v_exp_f32 v{t+4+qb}, -v{t+qb}")
        for r in range(16):
            e(f"v_sub_f32 v{S+r}, v{S+r}, v{t+(r>>3)}")
        for r in range(8):
            e(f"v_sub_f32 v{V_NM+r}, v{V_NM+r}, v{t+(r>>2)}")
        e(f"v_mul_f32 v{V_L0}, v{V_L0}, v{t+4}")
        e(f"v_mul_f32 v{V_L1}, v{V_L1}, v{t+5}")
        for r in range(128):
            e(f"v_mul_f32 v{V_O+r}, v{V_O+r}, v{t+4+((r>>3)&1)}")
        ret_chain(e, rare_sites[par])
        return e

    r0, r1 = rare(0), rare(1)

    fs = Seg("a_first", stateL, stateV)
    e = fs
    e.label("A_FIRST")
    t = V_T
    row_max(e, V_S[0])
    for r in range(16):
        e(f"v_sub_f32 v{V_S[0]+r}, v{V_S[0]+r}, v{t+(r>>3)}")
    for r in range(8):
        e(f"v_sub_f32 v{V_NM+r}, 0, v{t+(r>>2)}")
    e(f"s_cmp_eq_u32 s{S_RET}, 0")
    e("s_cbranch_scc1 A_Q0")
    e(f"s_cmp_eq_u32 s{S_IT}, 7")
    e("s_cbranch_scc1 A_RET_P29")
    e(f"s_cmp_eq_u32 s{S_IT}, 0")
    e("s_cbranch_scc1 A_RET_Q1")
    e("s_branch A_RET_L1")

    sw1 = Seg("a_sw1", stateL, stateV)
    e = sw1
    e.label("A_SW1")
    for r in range(64):
        e(f"v_accvgpr_mov_b32 a{A_Q+r}, a{A_Q2+r}")
    e(f"v_mov_b32 v{V_MS}, v{V_NM}")
    e(f"v_mov_b32 v{V_MS+1}, v{V_NM+4}")
    for r in range(0, 8, 2):
        e(f"v_mov_b64 {v(V_NM+r,2)}, 0")
    e(f"s_cmp_eq_u32 s{S_IT}, 7")
    e("s_cbranch_scc1 A_SW1_RET_P29")
    e(f"s_cmp_eq_u32 s{S_IT}, 0")
    e("s_cbranch_scc1 A_SW1_RET_Q1")
    e("s_branch A_SW1_RET_L1")

    def part_addr(e):
        e(f"s_lshl_b32 s54, s{S_PAIR}, 2")
        e("s_add_u32 s54, s54, s3")
        e("s_lshl_b32 s55, s54, 10")
        e(f"s_add_u32 s55, s55, {ML_OFF}")
        e("s_lshl_b32 s54, s54, 14")
        e(f"s_add_u32 s54, s54, {OP_OFF}")

    sw2 = Seg("a_sw2", stateL, stateV)
    e = sw2
    e.label("A_SW2")
    part_addr(e)
    t = V_X + 12
    e(f"v_lshrrev_b32 v{t+2}, 1, v{V_L16}")
    e(f"buffer_store_dwordx2 {v(V_MS,2)}, v{t+2}, s[{S_WS}:{S_WS+3}], s55 offen sc1")
    e(f"buffer_store_dwordx2 {v(V_L0,2)}, v{t+2}, s[{S_WS}:{S_WS+3}], s55 offen offset:512 sc1")
    for k in range(16):
        if k and k % 4 == 0:
            e("s_add_u32 s54, s54, 4096")
        u = t + 4 + (k % 2) * 4
        for r in range(4):
            o = V_O + 8 * k + 2 * r
            e(f"v_cvt_pk_bf16_f32 v{u+r}, v{o}, v{o+1}")
        for r in range(4):
            e(f"v_mov_b64 {v(V_O+8*k+2*r,2)}, 0")
        e(f"buffer_store_dwordx4 {v(u,4)}, v{V_L16}, s[{S_WS}:{S_WS+3}], s54 offen offset:{(k%4)*1024} sc1")
    e(f"v_mov_b64 {v(V_L0,2)}, 0")
    e(f"s_mov_b32 s{S_PEND}, 1")
    e(f"s_mov_b32 s{S_RET}, 1")
    e("s_branch A_FIRST")

    sig = Seg("a_sig", stateL, stateV)
    sig.label("A_SIG")
    signal(sig)
    sig(f"s_cmp_eq_u32 s{S_IT}, 0")
    sig("s_cbranch_scc1 A_SIG_RET_Q")
    sig("s_branch A_SIG_RET")
    S_HA, S_SLOT, V_FO, kv3 = opt["kv2"]
    sig.label("A_KV2S")
    flag_line(sig, 55, FL_KV2, S_HA)
    sig(f"s_lshl_b32 s53, s{S_IT}, 13")
    sig("s_add_u32 s55, s55, s53")
    flag_set(sig, S_WS, 55, f"s{S_SLOT}", V_X + 12)
    sig(f"s_cmp_eq_u32 s{S_IT}, 0")
    sig("s_cbranch_scc1 A_KV2S_RET_Q")
    sig("s_branch A_KV2S_RET")
    sig.label("A_KV2L")
    flag_line(sig, 85, FL_KV2, S_HEAD)
    sig(f"s_lshr_b32 s53, s{S_IT}, 1")
    sig("s_lshl_b32 s53, s53, 13")
    sig("s_add_u32 s85, s85, s53")
    sig.raw(f"buffer_load_dwordx2 v[6:7], v{V_FO}, s[{S_WS}:{S_WS+3}], s85 offen sc1", "pf")
    sig("s_branch A_KV2L_RET")
    sig.label("A_KV2C")
    sig.wait_force(vm=8)
    if not NEPF:
        sig(f"s_cmp_lg_u32 s{S_IT}, 4")
        sig("s_cbranch_scc1 A_NOEPF")
        sig(f"global_load_dword v{V_PD}, v{V_X+3}, s[80:81]", "pf")
        sig.label("A_NOEPF")
    sig("s_mov_b32 s53, 0")
    sig.label("A_KV2P")
    flag_test(sig, 6)
    sig("s_cbranch_scc1 A_LOOP")
    sig("s_sleep 2")
    sig(f"buffer_load_dwordx2 v[6:7], v{V_FO}, s[{S_WS}:{S_WS+3}], s85 offen sc1")
    sig.wait_force(vm=0)
    sig("s_add_u32 s53, s53, 1")
    sig(f"s_cmp_lt_u32 s53, {opt.get('poll_max', 200000)}")
    sig("s_cbranch_scc1 A_KV2P")
    sig("s_branch A_LOOP")
    sig.label("A_ALTW")
    sig.wait_force(vm=27)
    sig("s_branch A_ALTW_RET")

    e = Seg("a_fin", [], stateV)
    stamp(e, opt, 2)
    stamp(e, opt, "a_fin")
    t = V_T
    CT = V_S[0]
    e(f"s_cmp_ge_u32 s{S_QT}, 8")
    e("s_cbranch_scc1 A_MERGE")
    across(e, (V_L0, V_L1), t, "v_add_f32")
    e(f"v_rcp_f32 v{t}, v{V_L0}")
    e(f"v_rcp_f32 v{t+2}, v{V_L1}")
    e.nop(1)
    e(f"v_mov_b32 v{t+1}, v{t}")
    e(f"v_mov_b32 v{t+3}, v{t+2}")
    for k in range(64):
        e(f"v_pk_mul_f32 {v(V_O+2*k,2)}, {v(V_O+2*k,2)}, {v(t+2*((k>>2)&1),2)}")
        if k:
            e(f"v_cvt_pk_bf16_f32 v{CT+k-1}, v{V_O+2*k-2}, v{V_O+2*k-1}")
    e(f"v_cvt_pk_bf16_f32 v{CT+63}, v{V_O+126}, v{V_O+127}")
    e("s_branch A_EPI")
    fin = e

    ML = V_X + 16

    def part_loads(e):
        part_addr(e)
        e(f"v_lshrrev_b32 v{V_X+12}, 1, v{V_L16}")
        e(f"buffer_load_dwordx2 {v(ML,2)}, v{V_X+12}, s[{S_WS}:{S_WS+3}], s55 offen sc1")
        e(f"buffer_load_dwordx2 {v(ML+2,2)}, v{V_X+12}, s[{S_WS}:{S_WS+3}], s55 offen offset:512 sc1")
        for k in range(16):
            if k and k % 4 == 0:
                e("s_add_u32 s54, s54, 4096")
            e(f"buffer_load_dwordx4 {a(A_Q2+4*k,4)}, v{V_L16}, s[{S_WS}:{S_WS+3}], s54 offen offset:{(k%4)*1024} sc1")

    mg = Seg("a_merge", [], stateV)
    e = mg
    e.label("A_MERGE")
    e(f"s_cmp_eq_u32 s{S_PEND}, 2")
    e("s_cbranch_scc1 A_HAVE")
    flag_line(e, 55, FL_PAIR, S_PAIR)
    e(f"v_mov_b32 v{t}, 8")
    e("s_mov_b32 s53, 0")
    e.label("A_POLL")
    e(f"buffer_load_dwordx2 {v(t+2,2)}, v{t}, s[{S_WS}:{S_WS+3}], s55 offen sc1")
    e.wait_force(vm=0)
    flag_test(e, t + 2)
    e("s_cbranch_scc1 A_POLL_OK")
    e("s_sleep 4")
    e("s_add_u32 s53, s53, 1")
    e(f"s_cmp_lt_u32 s53, {opt.get('poll_max', 200000)}")
    e("s_cbranch_scc1 A_POLL")
    e.label("A_POLL_OK")
    part_loads(e)
    e.label("A_HAVE")
    W = V_X + 20
    for qb in range(2):
        nm = V_NM + 4 * qb
        c1, c2 = t + 2 * qb, t + 4 + 2 * qb
        e(f"v_min_f32 v{W+qb}, v{nm}, v{ML+qb}")
        e(f"v_sub_f32 v{c1}, v{W+qb}, v{nm}")
        e(f"v_sub_f32 v{c2}, v{W+qb}, v{ML+qb}")
        e(f"v_exp_f32 v{c1}, v{c1}")
        e(f"v_exp_f32 v{c2}, v{c2}")
        e.nop(1)
        e(f"v_mul_f32 v{W+qb}, v{c2}, v{ML+2+qb}")
        e(f"v_fma_f32 v{W+qb}, v{V_L0+qb}, v{c1}, v{W+qb}")
    across(e, (W, W + 1), W + 2, "v_add_f32")
    for qb in range(2):
        c1, c2 = t + 2 * qb, t + 4 + 2 * qb
        e(f"v_rcp_f32 v{W+qb}, v{W+qb}")
        e.nop(1)
        e(f"v_mul_f32 v{c1}, v{c1}, v{W+qb}")
        e(f"v_mul_f32 v{c2}, v{c2}, v{W+qb}")
        e(f"v_mov_b32 v{c1+1}, v{c1}")
        e(f"v_mov_b32 v{c2+1}, v{c2}")
    for k in range(64):
        e(f"v_pk_mul_f32 {v(V_O+2*k,2)}, {v(V_O+2*k,2)}, {v(t+2*((k>>2)&1),2)}")
    for k in range(64):
        u = t + 8 + (k % 2) * 2
        e(f"v_accvgpr_read_b32 v{u+1}, a{A_Q2+k}")
        if k:
            e(f"v_cvt_pk_bf16_f32 v{CT+k-1}, v{V_O+2*k-2}, v{V_O+2*k-1}")
        e(f"v_lshlrev_b32 v{u}, 16, v{u+1}")
        e(f"v_and_b32 v{u+1}, 0xffff0000, v{u+1}")
        e(f"v_pk_fma_f32 {v(V_O+2*k,2)}, {v(u,2)}, {v(t+4+2*((k>>2)&1),2)}, {v(V_O+2*k,2)}")
    e(f"v_cvt_pk_bf16_f32 v{CT+63}, v{V_O+126}, v{V_O+127}")

    e = Seg("a_epi", [], [])
    e.label("A_EPI")
    stamp(e, opt, 3)
    stamp(e, opt, "a_epi")
    YA = (V_O, V_O + 16)
    YP = V_O + 32
    VC = V_O + 48
    ED = opt.get("e_depth", 7)
    NFE, NT = 48, 7
    K16 = opt.get("k16", 1)
    NF = NFE * NT

    def eunit(f):
        c, r = divmod(f, NFE)
        seg, r = divmod(r, 24)
        ks, b = divmod(r, 2)
        return c, seg, ks, b

    def erd(f):
        c, seg, ks, b = eunit(f)
        off = (EO[c % 3] + 32 * ks * 128) if ks < 8 else (E2[c % 3] + 32 * (ks - 8) * 128)
        base = (V_EA, VC, VC + 4)[off >> 16] + seg * 2 + b
        off &= 0xffff
        return [f"ds_read_b64_tr_b16 {a(A_F+(f%8)*4+2*u,2)}, v{base} offset:{off+u*2048}" for u in range(1 if (ks == 11 and K16) else 2)]

    def ecvt(c, seg):
        ops = [f"v_cvt_pk_bf16_f32 v{YP+8*seg+r}, v{YA[seg]+2*r}, v{YA[seg]+2*r+1}" for r in range(8)]
        st = [(f"buffer_store_dwordx4 {v(YP+8*seg+4*k,4)}, v{V_L16}, s[{S_WS}:{S_WS+3}], s62 offen offset:{seg*2048+k*1024}{YM}",
               "ya" if c < 4 else "yb") for k in range(2)]
        if seg == 1 and c < NT - 1:
            st.append("s_add_u32 s62, s62, 4096")
        return ops, st

    def edma_at(t):
        return [[f"s_mov_b32 s58, {EO[t%3]}", f"s_mov_b32 s59, {E2[t%3]}"]] + e_dma(f"e{t}")

    for k in range(4):
        e(f"v_add_u32 v{VC+k}, 0x10000, v{V_EA+k}")
        e(f"v_add_u32 v{VC+4+k}, 0x20000, v{V_EA+k}")
    SALU_COST[0] = SC
    e.wait_force(vm=0)
    e("s_barrier")
    for f in range(ED):
        run(e, erd(f))
    spine, fill = [], {}
    for f in range(NF):
        c, seg, ks, b = eunit(f)
        pr = []
        for qb in range(2):
            B = v(CT + (ks * 2 + qb) * 4, 4) if ks < 8 else a(A_HF + ((ks - 8) * 2 + qb) * 4, 4)
            acc = v(YA[seg] + qb * 8 + b * 4, 4)
            if ks == 11 and K16:
                pr.append(f"v_mfma_f32_16x16x16_bf16 {acc}, {a(A_F+(f%8)*4,2)}, {a(A_HF+(6+qb)*4,2)}, {acc}")
            else:
                pr.append(f"{M16} {acc}, {a(A_F+(f%8)*4,4)}, {B}, {'0' if ks == 0 else acc}")
        spine.append(tuple(pr))
        nf = f + ED
        if nf < NF:
            if nf % NFE == 0:
                t = nf // NFE
                ops = [lambda e, t=t: e.wait_tag(f"e{t}")]
                if t == 6:
                    ops.append(lambda e: e.wait_tag("ya"))
                if t <= 4:
                    ops.append(lambda e: e.wait(lgkm=0))
                fill.setdefault(f, []).append(ops + ["s_barrier"])
            fill.setdefault(f, []).extend(erd(nf))
        if f % 2 == 0:
            rr = a(A_F + (min(f + 1, NF - 1) % 8) * 4, 4)
            fill.setdefault(f - 1, []).append(waiter(rr, opt.get('wait_cost', 0.25)))
    if hooks:
        hooks(fill, NFE, ED)
    spread(fill, edma_at(1), 0, 20)
    spread(fill, edma_at(2), 20, 52)
    for t in range(3, NT):
        g0 = max((t - 2) * NFE - ED + 1, 52)
        spread(fill, edma_at(t), g0, (t - 1) * NFE - ED)
    for c in range(NT):
        o, st = ecvt(c, 0)
        pour(fill, o + st, c * NFE + 27, c * NFE + 46)
        if c < NT - 1:
            o, st = ecvt(c, 1)
            if c == NT - 2 and hooks:
                pour(fill, o, (c + 1) * NFE + 4, (c + 1) * NFE + 21)
                fill.setdefault((c + 1) * NFE + 25, []).append(st[0])
                fill.setdefault((c + 1) * NFE + 26, []).extend(st[1:])
            else:
                pour(fill, o + st, (c + 1) * NFE + 4, (c + 1) * NFE + 21)
    if opt.get("verbose"):
        print(gap_report("epilogue", fill, NF), [load_of(fill, g) for g in range(NF)])
    weave2(e, spine, fill)
    SALU_COST[0] = 1
    e.nop(8)
    o, st = ecvt(NT - 1, 1)
    run(e, o + st)
    if finish:
        finish(e)
    e.label(end_label)
    e("s_endpgm")
    epi = e

    pl = [peel[n] for n in range(28, 33)]
    segs = [pro, q0, lp] + pl + [t3, fin, mg, epi, t0, stubs, r0, r1, fs, sw1, sw2, sig]
    traces = [
        [pro, fs, q0, lp, lp] + pl + [t3, fin, epi],
        [lp, peel[28], peel[29], t0, fin, mg, epi],
        [lp, r1, lp], [peel[28], r0, peel[29]], [peel[28], sw1, peel[29], sw2, fs, peel[30]], [sig], [stubs],
        [peel[30], peel[31], t0], [peel[29], peel[30], t3],
    ]
    return segs, traces
```

```python
import re

REG_RE = re.compile(r"^(-?)(?:abs\()?([vas])(?:(\d+)|\[(\d+):(\d+)\])\)?$")
TRANS = ("v_exp_f32", "v_log_f32", "v_rcp_f32", "v_rsq_f32", "v_sqrt_f32", "v_sin_f32", "v_cos_f32")


def regs_of(tok):
    tok = tok.strip()
    if tok in ("vcc", "exec", "m0", "scc"):
        return [(tok, 0)]
    if tok in ("vcc_lo", "vcc_hi"):
        return [("vcc", 0)]
    if tok in ("exec_lo", "exec_hi"):
        return [("exec", 0)]
    m = REG_RE.match(tok)
    if not m:
        return []
    f = m.group(2)
    if m.group(3) is not None:
        return [(f, int(m.group(3)))]
    return [(f, i) for i in range(int(m.group(4)), int(m.group(5)) + 1)]


class Ins:
    __slots__ = ("text", "op", "rd", "wr", "kind", "n", "srcc", "passes", "tag")

    def __init__(self, text, tag=None):
        self.text = text
        self.tag = tag
        t = text.split(";")[0].strip()
        self.rd, self.wr, self.srcc, self.passes, self.n = set(), set(), set(), 0, 0
        if t.endswith(":"):
            self.op, self.kind = t, "label"
            return
        if not t or t.startswith("."):
            self.op, self.kind = t, "dir"
            return
        parts = t.split(None, 1)
        op = parts[0]
        self.op = op
        rest = parts[1] if len(parts) > 1 else ""
        ops = [o.strip() for o in rest.split(",")] if rest else []
        mods = []
        if ops:
            last = ops[-1].split()
            ops[-1] = last[0] if last else ""
            mods = last[1:]
        R = [regs_of(o) for o in ops]

        def rd(i):
            for r in R[i]:
                self.rd.add(r)

        def wr(i):
            for r in R[i]:
                self.wr.add(r)

        if op == "s_nop":
            self.kind, self.n = "nop", int(ops[0], 0) + 1
        elif op == "s_waitcnt":
            self.kind = "wait"
        elif op == "s_barrier":
            self.kind = "barrier"
        elif op in ("s_endpgm", "s_setprio", "s_sleep"):
            self.kind = "salu"
        elif op.startswith("s_cbranch") or op == "s_branch":
            self.kind = "branch"
            if "scc" in op:
                self.rd.add(("scc", 0))
            if "vcc" in op:
                self.rd.add(("vcc", 0))
            if "exec" in op:
                self.rd.add(("exec", 0))
        elif op.startswith("s_load") or op in ("s_memtime", "s_memrealtime"):
            self.kind = "smem"
            wr(0)
            for i in range(1, len(ops)):
                rd(i)
        elif op.startswith("s_cmp") or op.startswith("s_bitcmp"):
            self.kind = "salu"
            for i in range(len(ops)):
                rd(i)
            self.wr.add(("scc", 0))
        elif op.startswith("s_"):
            self.kind = "salu"
            wr(0)
            for i in range(1, len(ops)):
                rd(i)
            if op.startswith("s_cselect") or op.startswith("s_addc") or op.startswith("s_subb"):
                self.rd.add(("scc", 0))
            if "saveexec" in op:
                self.rd.add(("exec", 0))
                self.wr.add(("exec", 0))
            if not (op.startswith("s_mov") or op.startswith("s_mul") or op.startswith("s_cselect") or op.startswith("s_getreg") or op.startswith("s_getpc")):
                self.wr.add(("scc", 0))
            if op in ("s_addk_i32", "s_mulk_i32"):
                rd(0)
        elif op.startswith("v_mfma"):
            self.kind = "mfma"
            wr(0)
            rd(1)
            rd(2)
            rd(3)
            self.srcc = set(R[3])
            self.passes = 8 if "32x32" in op else 4
        elif op.startswith("ds_read") or op.startswith("ds_bpermute") or op.startswith("ds_swizzle"):
            self.kind = "ds_rd"
            wr(0)
            for i in range(1, len(ops)):
                rd(i)
        elif op.startswith("ds_write"):
            self.kind = "ds_wr"
            for i in range(len(ops)):
                rd(i)
        elif op.startswith("buffer_load") and "lds" in mods:
            self.kind = "vm_dma"
            for i in range(len(ops)):
                rd(i)
            self.rd.add(("m0", 0))
        elif op.startswith("buffer_load") or op.startswith("global_load"):
            self.kind = "vm_ld"
            if tag != "pf":
                wr(0)
            for i in range(1, len(ops)):
                rd(i)
        elif op.startswith("buffer_store") or op.startswith("global_store"):
            self.kind = "vm_st"
            for i in range(len(ops)):
                rd(i)
            if op.endswith("x4") or op.endswith("x3"):
                di = 0 if op.startswith("buffer") else 1
                self.srcc = set(R[di])
        elif op.startswith("buffer_atomic") or op.startswith("global_atomic"):
            self.kind = "vm_st"
            for i in range(len(ops)):
                rd(i)
            if "sc0" in mods and tag != "pf":
                self.kind = "vm_ld"
                wr(0)
        elif op in ("buffer_wbl2", "buffer_inv"):
            self.kind = "vm_st"
        elif op.startswith("v_"):
            base = op.replace("_e32", "").replace("_e64", "")
            self.kind = "trans" if base in TRANS else "valu"
            wr(0)
            st = 1
            if base in ("v_add_co_u32", "v_sub_co_u32", "v_addc_co_u32"):
                wr(1)
                st = 2
            for i in range(st, len(ops)):
                rd(i)
            if base.startswith("v_fmac") or base.startswith("v_dot2c") or base.startswith("v_pk_fmac"):
                rd(0)
            if base.startswith("v_permlane"):
                rd(0)
                wr(1)
            self.rd.add(("exec", 0))
        else:
            raise ValueError("unknown instruction: " + text)

    def states(self):
        if self.kind == "nop":
            return self.n
        if self.kind in ("label", "dir"):
            return 0
        return 1


def parse_wait(text):
    vm = re.search(r"vmcnt\((\d+)\)", text)
    lg = re.search(r"lgkmcnt\((\d+)\)", text)
    return (int(vm.group(1)) if vm else None, int(lg.group(1)) if lg else None)


class Seg:
    def __init__(self, name, lds=None, vm=None):
        self.name = name
        self.ins = []
        self.lds = list(lds) if lds else []
        self.vm = list(vm) if vm else []

    def raw(self, text, tag=None):
        i = Ins(text, tag)
        self.ins.append(i)
        return i

    def _need(self, i):
        touched = i.rd | i.wr
        nl = None
        for k, d in enumerate(self.lds):
            if d & touched:
                nl = len(self.lds) - 1 - k
        nv = None
        for k, (tg, d) in enumerate(self.vm):
            if d & touched:
                nv = len(self.vm) - 1 - k
        return nv, nl

    def wait(self, vm=None, lgkm=None):
        parts = []
        if vm is not None and vm < len(self.vm):
            assert vm <= 63
            parts.append(f"vmcnt({vm})")
            self.vm = self.vm[len(self.vm) - vm:] if vm else []
        if lgkm is not None and lgkm < len(self.lds):
            lgkm = min(lgkm, 15)
            parts.append(f"lgkmcnt({lgkm})")
            self.lds = self.lds[len(self.lds) - lgkm:] if lgkm else []
        if parts:
            self.raw("s_waitcnt " + " ".join(parts))

    def wait_force(self, vm=None, lgkm=None):
        parts = []
        if vm is not None:
            parts.append(f"vmcnt({vm})")
            if vm < len(self.vm):
                self.vm = self.vm[len(self.vm) - vm:] if vm else []
        if lgkm is not None:
            parts.append(f"lgkmcnt({lgkm})")
            if lgkm < len(self.lds):
                self.lds = self.lds[len(self.lds) - lgkm:] if lgkm else []
        self.raw("s_waitcnt " + " ".join(parts))

    def wait_tag(self, tag):
        last = None
        for k, (tg, d) in enumerate(self.vm):
            if tg == tag:
                last = k
        if last is not None:
            self.wait(vm=min(63, len(self.vm) - 1 - last))

    def wait_tags(self, tags):
        last = None
        for k, (tg, d) in enumerate(self.vm):
            if tg in tags:
                last = k
        if last is not None:
            self.wait(vm=min(63, len(self.vm) - 1 - last))

    def __call__(self, text, tag=None):
        i = Ins(text, tag)
        nv, nl = self._need(i)
        if nv is not None or nl is not None:
            self.wait(vm=None if nv is None else min(nv, 63), lgkm=nl)
        self.ins.append(i)
        if i.kind == "ds_rd":
            self.lds.append(frozenset(i.wr))
        elif i.kind == "ds_wr":
            self.lds.append(frozenset())
        elif i.kind == "smem":
            self.lds.append(frozenset(i.wr))
            self.lds.append(frozenset(i.wr))
        elif i.kind == "vm_ld":
            self.vm.append((tag, frozenset(i.wr)))
        elif i.kind in ("vm_st", "vm_dma"):
            self.vm.append((tag, frozenset()))
        elif i.kind == "wait":
            vm, lg = parse_wait(text)
            if vm is not None and vm < len(self.vm):
                self.vm = self.vm[len(self.vm) - vm:] if vm else []
            if lg is not None and lg < len(self.lds):
                self.lds = self.lds[len(self.lds) - lg:] if lg else []
        return i

    def label(self, name):
        self.raw(name + ":")

    def nop(self, n):
        while n > 0:
            k = min(n, 16)
            self.raw(f"s_nop {k-1}")
            n -= k

    def text(self):
        out = []
        for i in self.ins:
            t = re.sub(r"\[(\d)_(\d)_(\d)_(\d)\]", r"[\1,\2,\3,\4]", i.text)
            out.append(t if i.kind in ("label",) else "  " + t)
        return "\n".join(out) + "\n"


def is_valu(i):
    return i.kind in ("valu", "trans")


def required(p, c):
    need = 0
    vreg = lambda s: {r for r in s if r[0] in ("v", "a")}
    sreg = lambda s: {r for r in s if r[0] in ("s", "vcc")}
    if is_valu(p):
        w = vreg(p.wr)
        if c.kind == "mfma" and w & c.rd:
            need = max(need, 2)
        if is_valu(c) and w & c.rd:
            if c.op.startswith("v_readfirstlane") or c.op.startswith("v_readlane"):
                need = max(need, 1)
            if c.op.startswith("v_permlane") or "dpp" in c.text:
                need = max(need, 2)
            if p.kind == "trans" and c.kind != "trans":
                need = max(need, 1)
            if "sdwa" in p.text and "dst_sel:DWORD" not in p.text:
                need = max(need, 1)
        ws = sreg(p.wr)
        if ws:
            if is_valu(c) and ws & c.rd:
                need = max(need, 4 if c.op.startswith(("v_readlane", "v_writelane")) else 2)
            if c.kind.startswith("vm_") and ws & c.rd:
                need = max(need, 5)
    if p.kind == "mfma":
        idx = {4: 0, 8: 1}[p.passes]
        d = p.wr
        if c.kind == "mfma":
            if d & c.srcc:
                if not (c.srcc == d and c.op == p.op):
                    need = max(need, (6, 10)[idx])
            ab = c.rd - c.srcc if not (c.rd - c.srcc) <= c.srcc else set()
            toks = c.text.split(None, 1)[1].split(",")
            abr = set(regs_of(toks[1])) | set(regs_of(toks[2]))
            if d & abr:
                need = max(need, (8, 12)[idx])
            if d & c.wr and not (c.srcc == d):
                need = max(need, (6, 10)[idx])
        elif is_valu(c):
            if d & (c.rd | c.wr):
                need = max(need, (8, 12)[idx])
            if p.srcc & c.wr:
                need = max(need, (3, 7)[idx])
        elif c.kind in ("ds_rd", "ds_wr", "vm_ld", "vm_st", "vm_dma"):
            if d & (c.rd | c.wr):
                need = max(need, (8, 12)[idx])
            if p.srcc & c.wr:
                need = max(need, (3, 7)[idx])
    if p.kind == "salu" and ("m0", 0) in p.wr and c.kind == "vm_dma":
        need = max(need, 1)
    if p.kind == "vm_st" and p.srcc and p.srcc & c.wr:
        need = max(need, 2 if is_valu(c) else 1)
    return need


def check_trace(name, ins, fix=False):
    probs = []
    real = [i for i in ins if i.kind not in ("label", "dir")]
    for k, c in enumerate(real):
        dist = 0
        j = k - 1
        while j >= 0 and dist < 20:
            p = real[j]
            r = required(p, c)
            if r > dist:
                probs.append(f"[{name}] hazard need {r} have {dist}: '{p.text}' -> '{c.text}'")
            dist += p.states()
            j -= 1
    lds, vm = [], []
    for c in real:
        touched = c.rd | c.wr
        for d, t in lds:
            if d & touched:
                probs.append(f"[{name}] missing lgkm wait: '{t}' -> '{c.text}'")
        for d, t in vm:
            if d & touched:
                probs.append(f"[{name}] missing vm wait: '{t}' -> '{c.text}'")
        if c.kind == "ds_rd":
            lds.append((frozenset(c.wr), c.text))
        elif c.kind == "ds_wr":
            lds.append((frozenset(), c.text))
        elif c.kind == "smem":
            lds.insert(len(lds), (frozenset(c.wr), c.text + " (smem)"))
        elif c.kind == "vm_ld":
            vm.append((frozenset(c.wr), c.text))
        elif c.kind in ("vm_st", "vm_dma"):
            vm.append((frozenset(), c.text))
        elif c.kind == "wait":
            v, l = parse_wait(c.text)
            if v is not None and v < len(vm):
                vm = vm[len(vm) - v:] if v else []
            if l is not None:
                if l == 0:
                    lds = []
                elif any("(smem)" in t for d, t in lds):
                    pass
                elif l < len(lds):
                    lds = lds[len(lds) - l:]
    return probs


def fix_hazards(seg, prev=()):
    out = [i for i in prev if i.kind not in ("label", "dir")]
    base = len(out)
    res = []
    for c in seg.ins:
        if c.kind in ("label", "dir"):
            res.append(c)
            continue
        dist, j, pad = 0, len(out) - 1, 0
        while j >= 0 and dist < 20:
            p = out[j]
            r = required(p, c)
            if r > dist:
                pad = max(pad, r - dist)
            dist += p.states()
            j -= 1
        while pad > 0:
            k = min(pad, 16)
            n = Ins(f"s_nop {k-1}")
            out.append(n)
            res.append(n)
            pad -= k
        out.append(c)
        res.append(c)
    seg.ins = res


def weave(seg, spine, fillers):
    def put(x):
        if isinstance(x, list):
            for y in x:
                put(y)
        elif callable(x):
            x(seg)
        elif isinstance(x, tuple):
            seg(x[0], x[1])
        else:
            seg(x)
    for x in fillers.get(-1, []):
        put(x)
    for g, m in enumerate(spine):
        put(m)
        for x in fillers.get(g, []):
            put(x)


def spread(fill, items, g0, g1, per=None):
    n = len(items)
    if n == 0:
        return
    span = g1 - g0
    for k, it in enumerate(items):
        g = g0 + (k * span) // n
        fill.setdefault(g, []).append(it)


VMEM_COST = [1]
SALU_COST = [1]


def cost_of(x):
    if isinstance(x, list):
        return sum(cost_of(y) for y in x)
    if callable(x):
        return getattr(x, "cost", 1)
    t = x[0] if isinstance(x, tuple) else x
    if t.endswith(":"):
        return 0
    op = t.split()[0]
    if op in TRANS:
        return 2
    if op.startswith(("buffer_", "global_")):
        return VMEM_COST[0]
    if op.startswith("s_") and not op.startswith(("s_cbranch", "s_branch", "s_barrier", "s_nop")):
        return SALU_COST[0]
    return 1


def load_of(fill, g):
    return sum(cost_of(x) for x in fill.get(g, []))


def pour(fill, items, g0, g1):
    if not items:
        return
    gaps = list(range(g0, g1))
    base = [load_of(fill, g) for g in gaps]
    total = sum(cost_of(x) for x in items)
    lo, hi = 0.0, max(base) + total
    for _ in range(50):
        mid = (lo + hi) / 2
        if sum(max(0.0, mid - b) for b in base) >= total:
            hi = mid
        else:
            lo = mid
    free = [max(0.0, hi - b) for b in base]
    cum, acc = [], 0.0
    for f in free:
        acc += f
        cum.append(acc)
    pos, gi = 0.0, 0
    for x in items:
        c = cost_of(x)
        mid = pos + c / 2.0
        while gi < len(gaps) - 1 and cum[gi] < mid:
            gi += 1
        fill.setdefault(gaps[gi], []).append(x)
        pos += c


def run(e, ops):
    for x in ops:
        if isinstance(x, list):
            run(e, x)
        elif callable(x):
            x(e)
        elif isinstance(x, tuple):
            e(x[0], x[1])
        else:
            e(x)


def wait_reg(e, regs):
    rs = set(regs_of(regs))
    n = None
    for k, d in enumerate(e.lds):
        if d & rs:
            n = len(e.lds) - 1 - k
    if n is not None:
        e.wait(lgkm=n)


def gap_report(name, fill, n):
    loads = [load_of(fill, g) for g in range(n)]
    return f"{name}: gaps {n} total {sum(loads)} max {max(loads)} avg {sum(loads)/n:.2f} over5 {sum(max(0,l-5) for l in loads)} over6 {sum(max(0,l-6) for l in loads)}"


def _rw(x):
    if callable(x) and getattr(x, "salu", False):
        return set(), set(), False
    if callable(x) or isinstance(x, list):
        return set(), set(), True
    t, tag = (x if isinstance(x, tuple) else (x, None))
    i = Ins(t, tag)
    rigid = i.kind not in ("valu", "trans", "ds_rd")
    return i.rd - {("exec", 0)}, i.wr, rigid


def _is_salu(x):
    if callable(x):
        return getattr(x, "salu", False)
    if isinstance(x, (list, tuple)):
        return False
    return x.startswith("s_") and not x.startswith(("s_cbranch", "s_branch", "s_barrier", "s_nop"))


def _order(items):
    out = list(items)
    for k, y in enumerate(out):
        if _is_salu(y):
            ok = True
            ry, wy = (set(), set()) if callable(y) else (Ins(y).rd, Ins(y).wr)
            for x in out[:k]:
                rx, wx, rigid = _rw(x)
                t = x[0] if isinstance(x, tuple) else x
                if callable(x) or isinstance(x, list) or t.startswith("s_") or t.endswith(":"):
                    ok = False
                elif (wx & (ry | wy)) or (rx & wy) or ("exec", 0) in wy:
                    ok = False
            if ok:
                out.insert(0, out.pop(k))
            break
    return out


def _flat(items):
    for x in items:
        if isinstance(x, list):
            yield from _flat(x)
        else:
            yield x


def _time(items):
    fl = list(_flat(items))
    t = 0
    for k, x in enumerate(fl):
        if k == 0 and (_is_salu(x) or callable(x)):
            continue
        t += 1 if callable(x) else (2 if (x[0] if isinstance(x, tuple) else x).split()[0] in TRANS else (0 if (x[0] if isinstance(x, tuple) else x).endswith(":") else 1))
    return max(2, t)


W2_ORDER = [1]


def weave2(seg, pairs, fillers):
    run(seg, fillers.get(-1, []))
    for g, (ma, mb) in enumerate(pairs):
        items = fillers.get(g, [])
        n = len(items)
        info = [_rw(x) for x in items]
        best = None
        for mask in range(1 << n) if n <= 10 else [0]:
            ok = True
            for i in range(n):
                if not ok:
                    break
                if mask >> i & 1:
                    for j in range(i + 1, n):
                        if not (mask >> j & 1):
                            ri, wi, gi = info[i]
                            rj, wj, gj = info[j]
                            both_ds = all(isinstance(items[k], str) and items[k].startswith("ds_") for k in (i, j))
                            if gi or gj or both_ds or (wi & (rj | wj)) or (ri & wj):
                                ok = False
                                break
            if ok:
                L = _order([x for k, x in enumerate(items) if not mask >> k & 1])
                R = _order([x for k, x in enumerate(items) if mask >> k & 1])
                cl, cr = sum(map(cost_of, L)), sum(map(cost_of, R))
                key = (_time(L) + _time(R), abs(cl - cr), mask)
                if best is None or key < best[0]:
                    best = (key, L, R)
        seg(ma)
        run(seg, best[1])
        seg(mb)
        run(seg, best[2])


def waiter(regs, cost=1):
    w = lambda e: wait_reg(e, regs)
    w.salu, w.cost = True, cost
    return w
```

```python
from emit import *
from common import *
import attn
from attn import S_HEAD, S_QT, S_W4K, S_PAIR, S_WS, S_WO, S_W2, A_Q, A_Q2, A_HF, V_L16, V_PD
import math

NAME = "parallel_sum__compressed_kv_cla__dense_activation_silu__prompt_kernel"
LDS_BYTES = 160 * 1024
S_CKV, S_W, S_X, S_WQ, S_W1, S_QST, S_OUT = 8, 12, 20, 24, 28, 68, 24
SA, SB, S_LP, S_W8K, S_KVSTR, S_KIND, S_BO, S_KVBASE, S_KVC, S_QB, S_QC, S_XNB, S_XNF = 53, 54, 55, 56, 57, 58, 59, 60, 61, 62, 63, 66, 67
S_HA, S_KVSLOT = 76, 77
V_PA, V_PB, V_FO, V_FL = 3, 4, 5, 6
V_AA, V_AB, V_DA, V_DB = 8, 12, 16, 24
V_FA, V_FB, V_XN = 32, 64, 96
V_AB16, V_AA16, V_WR, V_ST = 8, 212, 224, 7
V_DQ, V_D1, V_AT, V_T = 208, 212, 216, 224
SLOT_ORDER = [8, 9, 0, 1, 4, 5, 2, 3, 6, 7]
WIN = {0: 0, 1: 0, 2: 0x8000, 3: 0x8000, 4: 0x8000, 5: 0x8000, 6: 0x18000, 7: 0x18000, 8: 0x18000, 9: 0x18000}
S_KVE, S_EARLY, S_GOTQ, S_GM = 24, 72, 75, 72
H_ACC = (64, 80, 224, 240)
V_GP = V_XN + 46
VPQ, VPK = V_XN + 4, V_XN + 8

def gen_mega(opt):
    ST = opt.get("kv_store_mod", " sc1")
    attn.KVM[0] = opt.get("kv_load_mod", "")
    opt = dict(opt)
    opt.setdefault("y_store_mod", " sc1")
    opt["spk"] = ""
    PFD = 2
    WC = opt.get('wait_cost', 0.25)
    XNM = opt.get('xn_mod', ' sc1')
    A16 = opt.get("a16", 1)
    NPF = 2
    PMAX = opt.get("poll_max", 200000)
    e = Seg("m_pro")
    e.label(NAME)
    e("s_cmp_ge_u32 s2, 256")
    e("s_cbranch_scc1 M_END")
    stamp(e, opt, "entry")
    load_kernargs(e)
    e("s_getpc_b64 s[50:51]")
    e.label("M_PC0")
    if not opt.get("no_cpf0"):
        e("s_lshr_b32 s5, s2, 3")
        e("s_lshl_b32 s5, s5, 11")
        e("v_lshrrev_b32 v1, 4, v0")
        e("v_lshl_add_u32 v1, v1, 7, s5")
        e("v_min_u32 v1, M_B-M_PC0, v1")
        e(f"global_load_dword v{V_PD}, v1, s[50:51]", "pf")
    e("v_lshrrev_b32 v1, 6, v0")
    e("v_and_b32 v0, 63, v0")
    e("v_readfirstlane_b32 s3, v1")
    e("s_and_b32 s4, s2, 7")
    e("s_lshl_b32 s4, s4, 1")
    e("s_lshr_b32 s5, s2, 3")
    e("s_and_b32 s34, s5, 7")
    e("s_lshr_b32 s35, s5, 3")
    e("s_and_b32 s42, s35, 1")
    e("s_add_u32 s42, s42, s4")
    e(f"s_lshr_b32 s{S_KIND}, s35, 1")
    e(f"s_lshr_b32 s{S_QT}, s5, 1")
    e(f"s_and_b32 s{S_HEAD}, s5, 1")
    e(f"s_add_u32 s{S_HEAD}, s{S_HEAD}, s4")
    e("s_and_b32 s36, s3, 1")
    e("s_lshr_b32 s37, s3, 1")
    L31, HI, G, R4, C = 224, 225, 226, 227, 228
    e(f"v_and_b32 v{L31}, 31, v0")
    e(f"v_lshrrev_b32 v{HI}, 5, v0")
    e(f"v_lshrrev_b32 v{G}, 4, v0")
    e(f"v_bfe_u32 v{R4}, v0, 2, 2")
    e(f"v_and_b32 v{C}, 3, v0")
    e("s_and_b32 s7, s35, 1")
    e("s_lshl_b32 s7, s7, 1")
    e("s_add_u32 s7, s7, s37")
    e("s_sub_u32 s39, 3, s7")
    e("s_add_u32 s7, s7, 4")
    e("s_cmp_ge_u32 s35, 2")
    e("s_cselect_b32 s7, s7, s39")
    e("s_lshl_b32 s7, s7, 3")
    e("s_add_u32 s7, s7, s34")
    e("s_lshl_b32 s7, s7, 1")
    e("s_add_u32 s7, s7, s36")
    e("s_lshl_b32 s7, s7, 4")
    e("v_lshrrev_b32 v6, 2, v0")
    e("v_add_u32 v6, s7, v6")
    e(f"v_lshlrev_b32 v{V_PA}, 11, v6")
    e("v_bfe_u32 v7, v0, 1, 1")
    e(f"v_lshl_add_u32 v7, v7, 7, v{V_PA}")
    e("s_lshl_b32 s7, s34, 3")
    e("s_lshl_b32 s39, s3, 1")
    e("s_add_u32 s7, s7, s39")
    e(f"v_add_u32 v6, s7, v{HI}")
    e("v_lshlrev_b32 v6, 13, v6")
    e("v_bfe_u32 v5, v0, 3, 2")
    e("v_lshl_add_u32 v6, v5, 7, v6")
    e("s_lshl_b32 s7, s42, 9")
    e(f"v_add_u32 v{V_PB}, s7, v6")
    e("v_bfe_u32 v6, v0, 2, 1")
    e(f"v_lshl_add_u32 v5, v6, 19, v{V_PB}")
    e("v_lshrrev_b32 v1, 3, v0")
    e.wait_force(lgkm=0)
    e(f"s_mov_b32 s{S_HA}, s42")
    e(f"s_lshl_b32 s{S_KVSLOT}, s{S_KIND}, 3")
    e(f"s_add_u32 s{S_KVSLOT}, s{S_KVSLOT}, s34")
    e(f"s_lshl_b32 s{S_KVSLOT}, s{S_KVSLOT}, 3")
    srd(e, S_CKV, P_CKV, CKV_BYTES)
    e(f"s_cmp_eq_u32 s{S_KIND}, 0")
    e(f"s_cselect_b32 s{S_W}, s{P_WUK}, s{P_WUV}")
    e(f"s_cselect_b32 s{S_W+1}, s{P_WUK+1}, s{P_WUV+1}")
    e(f"s_mov_b32 s{S_W+2}, {WU_BYTES:#x}")
    e(f"s_mov_b32 s{S_W+3}, 0x20000")
    stamp(e, opt, 0)
    stamp(e, opt, "karg")
    e(f"buffer_load_dword v{V_PD}, v7, s[{S_CKV}:{S_CKV+3}], 0 offen", "pf")
    e(f"buffer_load_dword v{V_PD}, v5, s[{S_W}:{S_W+3}], 0 offen", "pf")
    e("v_add_u32 v144, 256, v7")
    e("v_add_u32 v145, 0x100000, v5")
    e(f"v_add_u32 v{V_PA}, {PFD*128}, v{V_PA}")
    e(f"v_add_u32 v{V_PB}, {PFD*0x80000}, v{V_PB}")
    e("s_lshl_b32 s7, s36, 1")
    e("s_sub_u32 s39, 3, s7")
    e("s_add_u32 s7, s7, 4")
    e("s_cmp_eq_u32 s37, 1")
    e("s_cselect_b32 s7, s7, s39")
    e("s_mov_b32 s39, 0xfff80000")
    e("s_cselect_b32 s39, 0x80000, s39")
    e("s_lshl_b32 s7, s7, 3")
    e("s_add_u32 s7, s7, s34")
    e("s_lshl_b32 s7, s7, 5")
    e("v_add_u32 v6, s7, v1")
    e("v_lshlrev_b32 v6, 11, v6")
    e("v_and_b32 v7, 7, v0")
    e(f"v_xor_b32 v7, v7, v{G}")
    e("v_lshlrev_b32 v7, 4, v7")
    for j in range(8):
        if j == 4:
            e("v_add_u32 v6, s39, v6")
        e(f"v_xor_b32 v{V_DA+j}, {((j ^ (j >> 1)) & 1) << 6}, v7")
        e(f"v_add_u32 v{V_DA+j}, v{V_DA+j}, v6")
        if j & 3:
            e(f"v_add_u32 v{V_DA+j}, {(j&3)*(16384-1024)}, v{V_DA+j}")
    e("s_lshl_b32 s7, s3, 4")
    e(f"v_add_u32 v6, s7, v{HI}")
    e("v_lshlrev_b32 v6, 13, v6")
    e(f"s_lshl_b32 s7, s{S_HA}, 9")
    e("v_add_u32 v6, s7, v6")
    e(f"v_lshrrev_b32 v7, 2, v{L31}")
    e(f"v_xor_b32 v7, v7, v{HI}")
    e("v_lshlrev_b32 v7, 6, v7")
    e(f"v_lshl_add_u32 v7, v{C}, 4, v7")
    for j in range(8):
        e(f"v_xor_b32 v{V_DB+j}, {((j&1)<<7) ^ (48 * ((j >> 2) & 1) if A16 else 0)}, v7")
        e(f"v_add_u32 v{V_DB+j}, v{V_DB+j}, v6")
        if j:
            e(f"v_add_u32 v{V_DB+j}, {j*16384-(j&3)*1024}, v{V_DB+j}")
    e(f"s_lshl_b32 s{S_W8K}, s3, 13")
    e(f"s_mov_b32 s{SA}, 0")
    e(f"s_mov_b32 s{SB}, 0")

    def dma_items(b):
        it = []
        for j in range(8):
            pre = [f"s_add_u32 m0, s{S_W8K}, {b*32768 + (j>>2)*4096}"] if (j & 3) == 0 else []
            post = [f"s_add_u32 s{SA}, s{SA}, 128"] if j == 7 else []
            it.append((pre, f"buffer_load_dwordx4 v{V_DA+j}, s[{S_CKV}:{S_CKV+3}], s{SA} offen offset:{(j&3)*1024} lds", post))
        for j in range(8):
            pre = [f"s_add_u32 m0, s{S_W8K}, {65536 + b*32768 + (j>>2)*4096}"] if (j & 3) == 0 else []
            post = [f"s_add_u32 s{SB}, s{SB}, 0x80000"] if j == 7 else []
            it.append((pre, f"buffer_load_dwordx4 v{V_DB+j}, s[{S_W}:{S_W+3}], s{SB} offen offset:{(j&3)*1024} lds", post))
        return it

    NK3 = opt.get('nk3', 12) if A16 else 8
    q = Seg("tmp")
    srd(q, S_WS, P_WS, WS_BYTES)
    srd(q, S_X, P_X, X_BYTES)
    srd(q, S_WQ, P_WQ, WQ_BYTES)
    srd(q, S_W1, P_W1, W1_BYTES)
    if not A16:
        q("s_lshl_b32 s7, s36, 7")
        q(f"v_add_u32 v6, s7, v{L31}")
        q("v_lshlrev_b32 v6, 7, v6")
        q(f"v_bfe_u32 v7, v{L31}, 1, 3")
        q(f"v_xor_b32 v7, v7, v{HI}")
        q("v_lshl_add_u32 v6, v7, 4, v6")
        for k in range(4):
            q(f"v_xor_b32 v{V_AA+k}, {k<<5}, v6")
        q(f"v_lshrrev_b32 v6, 1, v{G}")
        q(f"v_lshl_add_u32 v6, v6, 3, v{R4}")
        q("v_lshlrev_b32 v6, 9, v6")
        q("s_lshl_b32 s7, s37, 8")
        q("s_add_u32 s7, s7, 0x10000")
        q("v_add_u32 v6, s7, v6")
        q(f"v_and_b32 v7, 1, v{G}")
        q("v_lshl_add_u32 v6, v7, 5, v6")
        q(f"v_lshl_add_u32 v6, v{C}, 3, v6")
        for nb in range(4):
            q(f"v_xor_b32 v7, {nb}, v{R4}")
            q(f"v_lshl_add_u32 v{V_AB+nb}, v7, 6, v6")
    else:
        q("v_and_b32 v6, 15, v0")
        q("s_lshl_b32 s7, s36, 7")
        q("v_add_u32 v6, s7, v6")
        q("v_lshlrev_b32 v6, 7, v6")
        q("v_bfe_u32 v7, v0, 1, 3")
        q(f"v_xor_b32 v7, v7, v{G}")
        q(f"v_lshl_add_u32 v{V_AA16}, v7, 4, v6")
        q(f"v_xor_b32 v{V_AA16+1}, 64, v{V_AA16}")
        q(f"v_lshl_add_u32 v6, v{G}, 3, v{R4}")
        q("v_lshlrev_b32 v6, 9, v6")
        q("s_lshl_b32 s7, s37, 8")
        q("s_add_u32 s7, s7, 0x10000")
        q("v_add_u32 v6, s7, v6")
        q(f"v_and_b32 v7, 1, v{C}")
        q("v_lshl_add_u32 v6, v7, 3, v6")
        q(f"v_and_b32 v7, 1, v{G}")
        q("v_mul_u32_u24 v7, 3, v7")
        q(f"v_lshl_add_u32 v7, v{R4}, 2, v7")
        q(f"v_lshrrev_b32 v231, 1, v{C}")
        q("v_xor_b32 v7, v7, v231")
        q("v_lshl_add_u32 v6, v7, 4, v6")
        for i in range(8):
            q(f"v_xor_b32 v{V_AB16+i}, {i << 5}, v6")
    q("s_lshl_b32 s7, s3, 4")
    q(f"v_add_u32 v6, s7, v{G}")
    q(f"v_xor_b32 v7, v{R4}, v{G}")
    q("v_lshlrev_b32 v7, 6, v7")
    q(f"v_lshl_add_u32 v7, v{C}, 4, v7")
    q(f"s_lshl_b32 s38, s{S_HEAD}, 9")
    q("v_xor_b32 v231, 32, v7")
    q("v_lshlrev_b32 v232, 13, v6")
    q(f"v_add3_u32 v{V_DQ}, v232, v7, s38")
    q(f"v_add3_u32 v{V_DQ+2}, v232, v231, s38")
    q(f"v_add_u32 v{V_DQ+1}, {4*8192 - 1024}, v{V_DQ}")
    q(f"v_add_u32 v{V_DQ+3}, {3*(4*8192 - 1024)}, v{V_DQ+2}")
    q(f"v_add_u32 v{V_DQ+2}, {2*(4*8192 - 1024)}, v{V_DQ+2}")
    q(f"s_mul_i32 s39, s{S_HEAD}, 224")
    q("v_mul_u32_u24 v232, 3584, v6")
    q(f"v_add3_u32 v{V_D1+2}, v232, v7, s39")
    q(f"v_add3_u32 v{V_D1+3}, v232, v231, s39")
    q(f"v_lshl_add_u32 v6, v{G}, 3, v{R4}")
    q("v_lshlrev_b32 v6, 8, v6")
    q(f"v_and_b32 v7, 1, v{G}")
    q(f"v_lshl_add_u32 v7, v{R4}, 1, v7")
    q("v_lshl_add_u32 v6, v7, 5, v6")
    q(f"v_lshl_add_u32 v6, v{C}, 3, v6")
    q(f"v_add_u32 v6, {WIN[8]}, v6")
    for cb in range(8):
        q(f"v_xor_b32 v{V_AT+cb}, {cb << 5}, v6")
    q(f"s_mul_i32 s7, s{S_QT}, 28")
    q("s_mul_i32 s6, s3, 7")
    q("s_add_u32 s7, s7, s6")
    q("v_lshrrev_b32 v6, 2, v0")
    q("v_add_u32 v6, s7, v6")
    q("v_lshlrev_b32 v7, 13, v6")
    q(f"v_lshl_add_u32 v7, v{C}, 7, v7")
    q("v_add_u32 v7, s38, v7")
    q("v_subrev_u32 v6, 7, v6")
    q("v_mul_u32_u24 v6, 3584, v6")
    q(f"v_min_u32 v231, 2, v{C}")
    q("v_lshl_add_u32 v6, v231, 7, v6")
    q("v_add_u32 v6, s39, v6")
    q(f"v_min_u32 v6, {W1_BYTES-4}, v6")
    q("v_cmp_gt_u32 vcc, 28, v0")
    q("s_lshr_b32 s7, s2, 3")
    q("s_lshl_b32 s7, s7, 2")
    q("v_cndmask_b32 v6, v6, v7, vcc")
    q(f"v_mov_b32 v{V_GP}, s{P_W1}")
    q(f"v_mov_b32 v{V_GP+1}, s{P_W1+1}")
    q(f"v_mov_b32 v7, s{P_WQ}")
    q(f"v_mov_b32 v231, s{P_WQ+1}")
    q(f"v_cndmask_b32 v{V_GP}, v{V_GP}, v7, vcc")
    q(f"v_cndmask_b32 v{V_GP+1}, v{V_GP+1}, v231, vcc")
    q("s_add_u32 s7, s7, s3")
    q("s_mul_i32 s7, s7, 640")
    q("s_add_u32 s7, s7, M_B-M_PC0")
    q("v_and_b32 v7, 7, v0")
    q("v_min_u32 v7, 4, v7")
    q("v_lshl_add_u32 v7, v7, 7, s7")
    q("v_min_u32 v7, M_CODE_END-M_PC0-8, v7")
    q("v_cmp_gt_u32 vcc, 56, v0")
    q("v_mov_b32 v231, s50")
    q("v_mov_b32 v232, s51")
    q("v_cndmask_b32 v6, v7, v6, vcc")
    q(f"v_cndmask_b32 v{V_GP}, v231, v{V_GP}, vcc")
    q(f"v_cndmask_b32 v{V_GP+1}, v232, v{V_GP+1}, vcc")
    q(f"v_add_co_u32 v{V_GP}, vcc, v{V_GP}, v6")
    q(f"v_addc_co_u32 v{V_GP+1}, vcc, 0, v{V_GP+1}, vcc")
    q("s_add_u32 s7, s36, 3")
    q("s_lshl_b32 s7, s7, 3")
    q("s_add_u32 s7, s7, s34")
    q(f"s_lshl_b32 s{S_KVBASE}, s{S_HA}, 6")
    q(f"s_add_u32 s{S_KVBASE}, s{S_KVBASE}, s7")
    q(f"s_lshl_b32 s{S_KVBASE}, s{S_KVBASE}, 15")
    q(f"s_lshl_b32 s7, s{S_KIND}, 14")
    q(f"s_add_u32 s{S_KVBASE}, s{S_KVBASE}, s7")
    q("s_lshl_b32 s7, s37, 13")
    q(f"s_add_u32 s{S_KVBASE}, s{S_KVBASE}, s7")
    q("s_lshl_b32 s7, s36, 19")
    q(f"s_sub_u32 s{S_KVSTR}, s7, 0x40000")
    q(f"s_lshl_b32 s7, s{S_QT}, 2")
    q(f"v_and_b32 v{V_FO}, 15, v0")
    q(f"v_lshlrev_b32 v{V_FO}, 3, v{V_FO}")
    q(f"s_add_u32 s{S_XNB}, s7, s3")
    q(f"s_mul_i32 s{S_XNB}, s{S_XNB}, 28672")
    q(f"s_add_u32 s{S_XNB}, s{S_XNB}, {XN_OFF}")
    q(f"v_lshlrev_b32 v{V_L16}, 4, v0")
    q(f"s_lshl_b32 s7, s{S_QT}, 4")
    q(f"s_add_u32 s7, s7, s{S_HEAD}")
    q("s_mul_i32 s7, s7, 7168")
    q("s_mul_i32 s6, s3, 1792")
    q("s_add_u32 s7, s7, s6")
    q("v_lshrrev_b32 v6, 2, v0")
    q("v_min_u32 v6, 14, v6")
    q("v_lshl_add_u32 v146, v6, 7, s7")
    attn.setup_s(q)
    q(f"s_mov_b32 s{S_QST}, s{P_WS}")
    q(f"s_mov_b32 s{S_QST+1}, s{P_WS+1}")
    q(f"s_cmp_ge_u32 s{S_QT}, 8")
    q(f"s_cselect_b32 s{S_QST+2}, {WS_BYTES:#x}, 0")
    q(f"s_mov_b32 s{S_QST+3}, 0x20000")
    q(f"s_lshl_b32 s{S_QB}, s{S_PAIR}, 2")
    q(f"s_add_u32 s{S_QB}, s{S_QB}, s3")
    q(f"s_lshl_b32 s{S_QB}, s{S_QB}, 14")
    q(f"s_add_u32 s{S_QB}, s{S_QB}, {Q_OFF}")
    for i in q.ins:
        e(i.text)
    stamp(e, opt, "setup")
    e.wait_tag("pf")
    stamp(e, opt, "touch")
    NPRE = opt.get("npre", 12)
    for tag, items in (("t0", dma_items(0)), ("dma", dma_items(1)[:NPRE])):
        for pre, d, post in items:
            run(e, pre + [(d, tag)] + post)
    e(f"buffer_load_dword v{V_PD}, v144, s[{S_CKV}:{S_CKV+3}], 0 offen", "pf")
    e(f"buffer_load_dword v{V_PD}, v145, s[{S_W}:{S_W+3}], 0 offen", "pf")
    e(f"buffer_load_dword v{V_PD}, v146, s[{S_X}:{S_X+3}], 0 offen", "pf")
    e("s_or_b32 s7, s2, s3")
    e("s_cbranch_scc1 M_NOPUB")
    e("s_memrealtime s[4:5]")
    e("v_mov_b32 v6, 0")
    e.wait_force(lgkm=0)
    e("s_or_b32 s4, s4, 1")
    e("v_mov_b32 v7, s4")
    e("s_mov_b64 exec, 1")
    e.raw(f"global_store_dword v6, v7, s[{P_DBG}:{P_DBG+1}] sc1")
    e("s_mov_b64 exec, -1")
    e.label("M_NOPUB")
    stamp(e, opt, "dma")
    stamp(e, opt, 1)

    def layernorm(e, n, reduce, norm, T=V_T):
        e("s_mov_b32 s7, 0x3f803f80")
        for k in range(8):
            e(f"v_mov_b32 v{T+k}, 0")
        for r in range(n):
            if n > 28 or opt.get("ln_dot"):
                e(f"v_dot2_f32_bf16 v{T+(r&3)}, v{V_XN+r}, s7, v{T+(r&3)}")
                e(f"v_dot2_f32_bf16 v{T+4+(r&3)}, v{V_XN+r}, v{V_XN+r}, v{T+4+(r&3)}")
            else:
                t = T + 8 + (r % 4) * 2
                e(f"v_lshlrev_b32 v{t}, 16, v{V_XN+r}")
                e(f"v_and_b32 v{t+1}, 0xffff0000, v{V_XN+r}")
                e(f"v_add_f32 v{T+(r&1)*2}, v{T+(r&1)*2}, v{t}")
                e(f"v_add_f32 v{T+(r&1)*2+1}, v{T+(r&1)*2+1}, v{t+1}")
                e(f"v_fmac_f32 v{T+4+(r&1)*2}, v{t}, v{t}")
                e(f"v_fmac_f32 v{T+4+(r&1)*2+1}, v{t+1}, v{t+1}")
        e.nop(4)
        e(f"v_add_f32 v{T}, v{T}, v{T+1}")
        e(f"v_add_f32 v{T+2}, v{T+2}, v{T+3}")
        e(f"v_add_f32 v{T+4}, v{T+4}, v{T+5}")
        e(f"v_add_f32 v{T+6}, v{T+6}, v{T+7}")
        e(f"v_add_f32 v{T}, v{T}, v{T+2}")
        e(f"v_add_f32 v{T+4}, v{T+4}, v{T+6}")
        for step in reduce:
            if isinstance(step, str):
                e.nop(2)
                e(f"v_add_f32_dpp v{T}, v{T}, v{T} {step} row_mask:0xf bank_mask:0xf")
                e(f"v_add_f32_dpp v{T+4}, v{T+4}, v{T+4} {step} row_mask:0xf bank_mask:0xf")
            else:
                e(f"v_mov_b32 v{T+1}, v{T}")
                e(f"v_mov_b32 v{T+5}, v{T+4}")
                e.nop(2)
                e(f"v_permlane{step}_swap_b32 v{T}, v{T+1}")
                e(f"v_permlane{step}_swap_b32 v{T+4}, v{T+5}")
                e(f"v_add_f32 v{T}, v{T}, v{T+1}")
                e(f"v_add_f32 v{T+4}, v{T+4}, v{T+5}")
        e(f"v_mul_f32 v{T}, {f32(1/448)}, v{T}")
        e(f"v_mul_f32 v{T+4}, {f32(1/448)}, v{T+4}")
        e(f"v_fma_f32 v{T+4}, -v{T}, v{T}, v{T+4}")
        e(f"v_max_f32 v{T+4}, 0, v{T+4}")
        e(f"v_add_f32 v{T+4}, {f32(1e-5)}, v{T+4}")
        e(f"v_rsq_f32 v{T+4}, v{T+4}")
        e(f"v_mul_f32 v{T+4}, {f32(QSCALE)}, v{T+4}")
        e(f"v_mul_f32 v{T}, v{T}, v{T+4}")
        e(f"v_mov_b32 v{T+5}, v{T+4}")
        e(f"v_sub_f32 v{T}, 0, v{T}")
        e(f"v_mov_b32 v{T+1}, v{T}")
        for r in norm:
            t = T + 8 + (r % 8) * 2
            e(f"v_lshlrev_b32 v{t}, 16, v{V_XN+r}")
            e(f"v_and_b32 v{t+1}, 0xffff0000, v{V_XN+r}")
            if n > 28:
                e(f"v_pk_fma_f32 {v(t,2)}, {v(t,2)}, {v(T+4,2)}, {v(T,2)}")
            else:
                e(f"v_fma_f32 v{t}, v{t}, v{T+4}, v{T}")
                e(f"v_fma_f32 v{t+1}, v{t+1}, v{T+4}, v{T}")
            e(f"v_cvt_pk_bf16_f32 v{V_XN+r}, v{t}, v{t+1}")

    def ops_of(fn):
        t = Seg("tmp")
        fn(t)
        out, k = [], 0
        ins = t.ins
        while k < len(ins):
            x = (ins[k].text, ins[k].tag) if ins[k].tag else ins[k].text
            if ins[k].op.startswith("s_cmp"):
                out.append([x, ins[k + 1].text])
                k += 2
            else:
                out.append(x)
                k += 1
        return out

    XA, XS, LT = V_XN + 36, V_XN + 37, V_XN + 52
    SX0, SX1 = S_QC, S_KVC

    def x_loads(h):
        h(f"s_lshl_b32 s{SX0}, s3, 8")
        h(f"s_add_u32 s{SX1}, s{SX0}, 128")
        h("s_cmp_eq_u32 s3, 3")
        h(f"s_cselect_b32 s{SX1}, 0, s{SX1}")
        h(f"s_lshl_b32 s7, s{S_QT}, 7")
        h(f"s_lshl_b32 s6, s{S_HEAD}, 3")
        h("s_add_u32 s7, s7, s6")
        h("v_lshrrev_b32 v6, 3, v0")
        h("v_add_u32 v6, s7, v6")
        h("v_mul_u32_u24 v6, 896, v6")
        h("v_and_b32 v7, 7, v0")
        h(f"v_lshl_add_u32 v{XA}, v7, 4, v6")
        h(f"v_mov_b32 v{V_XN+41}, 0")
        for i in range(7):
            h(f"buffer_load_dwordx4 {v(V_XN+i*4,4)}, v{XA}, s[{S_X}:{S_X+3}], 0 offen offset:{i*128}", "x")
        h(f"buffer_load_dwordx4 {v(V_XN+28,4)}, v{XA}, s[{S_X}:{S_X+3}], s{SX0} offen", "x")
        h(f"buffer_load_dwordx4 {v(V_XN+32,4)}, v{XA}, s[{S_X}:{S_X+3}], s{SX1} offen", "x")
        h(f"global_load_dword v{V_XN+43}, v{V_XN+41}, s[{P_DBG}:{P_DBG+1}]", "x")

    def ln_pub(h):
        h(f"s_lshr_b32 s5, s{S_HEAD}, 2")
        h(f"s_lshl_b32 s6, s{S_QT}, 2")
        h("s_add_u32 s5, s5, s6")
        h("s_mul_i32 s5, s5, 28672")
        h(f"s_add_u32 s5, s5, {XN_OFF}")
        h(f"s_lshl_b32 s{SX0}, s{SX0}, 5")
        h(f"s_lshl_b32 s{SX1}, s{SX1}, 5")
        h(f"s_add_u32 s{SX0}, s{SX0}, s5")
        h(f"s_add_u32 s{SX1}, s{SX1}, s5")
        h(f"s_bfe_u32 s6, s{S_HEAD}, 0x10001")
        h("s_lshl_b32 s6, s6, 10")
        h(f"s_and_b32 s5, s{S_HEAD}, 1")
        h("s_lshl_b32 s5, s5, 7")
        h("s_add_u32 s6, s6, s5")
        h("v_lshrrev_b32 v6, 3, v0")
        h("v_lshlrev_b32 v6, 4, v6")
        h("v_and_b32 v7, 3, v0")
        h("v_lshl_add_u32 v6, v7, 8, v6")
        h("v_bfe_u32 v7, v0, 2, 1")
        h("v_lshl_add_u32 v6, v7, 11, v6")
        h(f"v_add_u32 v{XS}, s6, v6")
        layernorm(h, 28, ("quad_perm:[1_0_3_2]", "quad_perm:[2_3_0_1]", "row_half_mirror"), range(28, 36), LT)
        h(f"buffer_store_dwordx4 {v(V_XN+28,4)}, v{XS}, s[{S_WS}:{S_WS+3}], s{SX0} offen sc1", "st")
        h(f"buffer_store_dwordx4 {v(V_XN+32,4)}, v{XS}, s[{S_WS}:{S_WS+3}], s{SX1} offen sc1", "st")

    def gtouch(k):
        lo = 0xffff << (16 * (k & 1))
        return [[f"s_mov_b32 exec_lo, {lo if k < 2 else 0}", f"s_mov_b32 exec_hi, {0 if k < 2 else lo}",
                 (f"global_load_dword v{V_PD}, {v(V_GP,2)}, off", "pf"), "s_mov_b64 exec, -1"]]

    hk = Seg("m_hook")
    hk.label("M_HOOK")
    hk("s_mov_b32 s6, 0")
    hk.label("M_NSPIN")
    hk(f"v_readfirstlane_b32 s{S_N0}, v{V_XN+43}")
    hk(f"s_cmp_lg_u32 s{S_N0}, 0")
    hk("s_cbranch_scc1 M_NOK")
    hk("s_sleep 8")
    hk(f"global_load_dword v{V_XN+43}, v{V_XN+41}, s[{P_DBG}:{P_DBG+1}] sc1")
    hk.wait_force(vm=0)
    hk("s_add_u32 s6, s6, 1")
    hk(f"s_cmp_lt_u32 s6, {PMAX}")
    hk("s_cbranch_scc1 M_NSPIN")
    hk.label("M_NOK")
    hk(f"s_xor_b32 s{S_N1}, s{S_N0}, {NONCE_K:#x}")
    hk("s_cmp_eq_u32 s3, 0")
    hk(f"s_cselect_b32 s{S_BO}, 3, 99")
    hk(f"s_mov_b64 s[{S_GM}:{S_GM+1}], 0xff")
    hk("s_branch M_HOOK_RET")
    hk.label("M_SIGX")
    flag_line(hk, 7, FL_XN, S_QT)
    hk(f"s_lshl_b32 s6, s{S_HEAD}, 3")
    flag_set(hk, S_WS, 7, "s6", V_XN + 40)
    hk.label("M_HOOK_RET")
    hk(f"s_cmp_eq_u32 s{S_KIND}, 0")
    hk("s_cbranch_scc1 M_LOOP_K")
    hk("s_branch M_LOOP_V")

    def frag_reads(b, ks, st):
        r = []
        fa, fb = V_FA + st * 16, V_FB + st * 16
        order = [("a", 0), ("b", 0), ("a", 1), ("a", 2), ("a", 3), ("b", 1), ("b", 2), ("b", 3)]
        for t, i in order:
            if t == "a":
                r.append(f"ds_read_b128 {v(fa+i*4,4)}, v{V_AA+ks} offset:{i*4096 + b*32768}")
            else:
                for u in range(2):
                    r.append(f"ds_read_b64_tr_b16 {v(fb+i*4+u*2,2)}, v{V_AB+i} offset:{(16*ks+4*u)*512 + b*32768}")
        return r

    e.wait_tag("t0")
    stamp(e, opt, "t0")
    e("s_barrier")
    stamp(e, opt, "bar")
    if not A16:
        for r in frag_reads(0, 0, 0):
            e(r)
    e(f"s_mov_b32 s{S_LP}, 2")
    e(f"s_cmp_eq_u32 s{S_KIND}, 0")
    e("s_cbranch_scc0 M_PRE_V")
    pro = e

    def place_dma(fill, items, g0, g1, tag="dma"):
        n = len(items)
        for k, item in enumerate(items):
            pre, d, post = item[:3]
            g = g0 + (k * (g1 - g0)) // n
            for x in pre:
                fill.setdefault(g - 1, []).append(x)
            fill.setdefault(g, []).append((d, item[3] if len(item) > 3 else tag))
            for x in post:
                fill.setdefault(g, []).append(x)

    def ktile(e, kind, b, dma_k0, dma_k3, last=False, pref=True, tag3="dma", tag0="dma", xn=None):
        for ks in range(4):
            st = ks & 1
            fa, fb = V_FA + st * 16, V_FB + st * 16
            spine = []
            for i in range(4):
                for j in range(4):
                    acc = a((i * 4 + j) * 16, 16)
                    W, Cc = v(fb + i * 4, 4), v(fa + j * 4, 4)
                    A, B = (W, Cc) if kind == 0 else (Cc, W)
                    spine.append(f"{MFMA} {acc}, {A}, {B}, {acc}")
            fill = {}
            fill[-1] = [lambda e: e.wait_force(lgkm=0)]
            if ks < 3:
                spread(fill, frag_reads(b, ks + 1, st ^ 1), 0, 12)
                if ks == 0 and dma_k0:
                    place_dma(fill, dma_k0, 1, 16, tag0)
                if ks == 1 and pref:
                    fill.setdefault(4, []).append((f"buffer_load_dword v{V_PD}, v{V_PA}, s[{S_CKV}:{S_CKV+3}], s{SA} offen", "pf"))
                    fill.setdefault(13, []).append((f"buffer_load_dword v{V_PD}, v{V_PB}, s[{S_W}:{S_W+3}], s{SB} offen", "pf"))
                if ks in (1, 2) and xn is not None:
                    k0 = xn + (ks - 1) * 7
                    for k in range(k0, k0 + 7):
                        g = 1 + 2 * (k - k0)
                        if k % 4 == 0 and k:
                            fill.setdefault(g - 1, []).append(f"s_add_u32 s{S_XNB}, s{S_XNB}, 4096")
                        fill.setdefault(g, []).append((f"buffer_load_dwordx4 {v(V_XN+4*k,4)}, v{V_L16}, s[{S_WS}:{S_WS+3}], s{S_XNB} offen offset:{(k%4)*1024} sc1", "xn"))
            else:
                if last:
                    fill[0] = ["s_barrier"]
                else:
                    fill[0] = [lambda e: e.wait_force(vm=(NPF if pref else 0) + (14 if xn is not None else 0)), "s_barrier"]
                    spread(fill, frag_reads(b ^ 1, 0, 0), 0, 12)
                if dma_k3:
                    place_dma(fill, dma_k3, 2, 16, tag3)
            weave(e, spine, fill)

    def c_read(kind, b, s_, j):
        off = j * 2048
        return f"ds_read_b128 {v(V_FA + s_*32 + j*4, 4)}, v{V_AA16 + ((s_ ^ j) & 1)} offset:{off + b*32768}"

    def w_read(b, s_, i):
        return [f"ds_read_b64_tr_b16 {v(V_WR + i*4 + 2*u, 2)}, v{V_AB16+i} offset:{(32*s_ + 4*u)*512 + b*32768}" for u in range(2)]

    def ktile16(e, kind, b, dma_k0, dma_k3, last=False, pref=True, tag3="dma", tag0="dma", xn=None, first=False, head=False, extra=None):
        for s_ in range(2):
            spine = []
            for i in range(8):
                for j in range(8):
                    if kind == 0:
                        dt, bb, kb, nb = i >> 1, i & 1, j >> 1, j & 1
                    else:
                        dt, nb, kb, bb = i >> 1, i & 1, j >> 1, j & 1
                    acc = a((kb * 4 + dt) * 16 + nb * 8 + bb * 4, 4)
                    W, Cc = v(V_WR + i * 4, 4), v(V_FA + s_ * 32 + j * 4, 4)
                    A, B = (W, Cc) if kind == 0 else (Cc, W)
                    spine.append(f"v_mfma_f32_16x16x32_bf16 {acc}, {A}, {B}, {0 if first and s_ == 0 else acc}")
            fill = {}
            nb_, ns = (b, 1) if s_ == 0 else (b ^ 1, 0)
            more = not (last and s_ == 1)
            for i in range(8):
                r = v(V_WR + i * 4, 4)
                fill.setdefault(8 * i - 1, []).append(lambda e, r=r: wait_reg(e, r))
            r = v(V_FA + s_ * 32 + 28, 4)
            fill.setdefault(-1, []).append(lambda e, r=r: wait_reg(e, r))
            if s_ == 1:
                nx = 14 if xn is not None else 0
                if last:
                    fill.setdefault(7, []).extend([lambda e: e.wait(lgkm=0), "s_barrier"])
                elif pref and not head:
                    fill.setdefault(7, []).extend([lambda e: e.wait_force(vm=NPF + 1, lgkm=0), "s_barrier"])
                else:
                    fill.setdefault(7, []).extend([lambda e: e.wait_tag("dma"), lambda e: e.wait(lgkm=0), "s_barrier"])
            if more:
                for i in range(8):
                    wr = w_read(nb_, ns, i)
                    fill.setdefault(8 * i + 7, []).append(wr[0])
                    fill.setdefault(min(8 * i + 8, 63), []).append(wr[1])
                for j in range(8):
                    fill.setdefault(10 + 6 * j, []).append(c_read(kind, nb_, ns, j))
            if s_ == 0:
                if dma_k0:
                    place_dma(fill, dma_k0, 1 if first else 2, min(34 if first else 56, 2 + (7 * len(dma_k0)) // 2 + (14 if len(dma_k0) > 8 else 0)), tag0)
                if pref:
                    fill.setdefault(36, []).append((f"buffer_load_dword v{V_PD}, v{V_PA}, s[{S_CKV}:{S_CKV+3}], s{SA} offen", "pf"))
                    fill.setdefault(44, []).append((f"buffer_load_dword v{V_PD}, v{V_PB}, s[{S_W}:{S_W+3}], s{SB} offen", "pf"))
            elif dma_k3:
                place_dma(fill, dma_k3, 11, 62, tag3)
            if xn is not None:
                nx = (10, 4)[s_]
                k0 = xn + s_ * 10
                for k in range(k0, k0 + nx):
                    g = (18 + ((k - k0) * 45) // nx) if s_ == 0 else (13 + (k - k0) * 13)
                    if k % 4 == 0 and k:
                        fill.setdefault(g - 1, []).append(f"s_add_u32 s{S_XNB}, s{S_XNB}, 4096")
                    fill.setdefault(g, []).append((f"buffer_load_dwordx4 {v(V_XN+4*k,4)}, v{V_L16}, s[{S_WS}:{S_WS+3}], s{S_XNB} offen offset:{(k%4)*1024}{XNM}", "xn"))
            if opt.get("x_a_nodma"):
                for g in fill:
                    fill[g] = [x for x in fill[g] if not (isinstance(x, tuple) and x[1] in ("dma", "pf"))]
            if opt.get("x_a_nords"):
                for g in fill:
                    fill[g] = [x for x in fill[g] if not (isinstance(x, str) and x.startswith("ds_read"))]
            if opt.get("a_level", 1):
                seq = [(g, x) for g in sorted(fill) for x in fill[g]]
                new, nxt = {}, -1
                for g, x in seq:
                    t = x[0] if isinstance(x, tuple) else x
                    heavy = isinstance(t, str) and t.startswith(("ds_", "buffer_", "global_"))
                    fixed = callable(x) or t == "s_barrier"
                    if fixed:
                        new.setdefault(g, []).append(x)
                        continue
                    gg = min(63, max(g, nxt)) if heavy else min(63, max(g, nxt - 1))
                    new.setdefault(gg, []).append(x)
                    if heavy:
                        nxt = gg + 1
                fill = new
            for g0, g1, ops in (extra or {}).get(s_, []):
                pour(fill, ops, g0, g1)
            weave(e, spine, fill)

    if A16:
        ktile = ktile16

    NT = 21

    def b_dma(u):
        part, kt = divmod(u, 7)
        slot = SLOT_ORDER[u % 10]
        it = []
        for j in range(4):
            pre = []
            if j == 0:
                pre.append(f"s_add_u32 m0, s{S_W4K}, {slot*16384}")
                off = kt * 64 * 3584 if part == 2 else kt * 64 * 8192 + part * 256
                pre.append(f"s_mov_b32 s{S_BO}, {off}")
            if part == 2:
                d = f"buffer_load_dwordx4 v{V_D1+j}, s[{S_W1}:{S_W1+3}], s{S_BO} offen offset:{j*1024} lds"
            else:
                d = f"buffer_load_dwordx4 v{V_DQ+j}, s[{S_WQ}:{S_WQ+3}], s{S_BO} offen offset:{j*1024} lds"
            it.append((pre, d, [], f"b{u//2}"))
        return it

    segs = [pro]
    traces = [[hk]]
    tails = {}
    extra = []
    vm_loop = [("dma", frozenset())] * 40
    for kind in range(2):
        nm = "KV"[kind]
        pre = Seg(f"m_pre{nm}", pro.lds, pro.vm)
        pre.label(f"M_PRE_{nm}")
        if A16:
            seq = sorted([(8 * i + 7, 0, w_read(0, 0, i)[0]) for i in range(8)] + [(min(8 * i + 8, 63), 1, w_read(0, 0, i)[1]) for i in range(8)]
                         + [(10 + 6 * j, 2, c_read(kind, 0, 0, j)) for j in range(8)])
            for _, _, x in seq:
                pre(x)
        d0, d1 = dma_items(0), dma_items(1)
        lno = ops_of(ln_pub)
        c1, c2, c3 = (len(lno) * 18) // 100, (len(lno) * 46) // 100, (len(lno) * 74) // 100
        ktile(pre, kind, 0, d1[NPRE:], d0[:NK3], first=True, head=True)
        ktile(pre, kind, 1, d0[NK3:], d1[:NK3], head=True, extra={0: [(18, 64, ops_of(x_loads))]})
        stamp(pre, opt, "it1", raw=True)
        ktile(pre, kind, 0, d1[NK3:], d0[:NK3], head=True, extra={0: [(20, 64, lno[:c1])], 1: [(0, 64, lno[c1:c2])]})
        ktile(pre, kind, 1, d0[NK3:], d1[:NK3], head=True, extra={0: [(0, 64, lno[c2:c3])], 1: [(0, 60, lno[c3:])]})
        stamp(pre, opt, "it2", raw=True)
        pre("s_branch M_HOOK")
        lp = Seg(f"m_loop{nm}", pre.lds, vm_loop)
        lp.label(f"M_LOOP_{nm}")
        gt = [["s_mov_b64 exec, s[70:71]" if False else f"s_mov_b64 exec, s[{S_GM}:{S_GM+1}]", (f"global_load_dword v{V_PD}, {v(V_GP,2)}, off", "pf"),
               "s_mov_b64 exec, -1"], [f"s_lshl_b64 s[{S_GM}:{S_GM+1}], s[{S_GM}:{S_GM+1}], 8", f"s_or_b32 s{S_GM}, s{S_GM}, 1"]]
        ktile(lp, kind, 0, d1[NK3:], d0[:NK3], extra={0: [(50, 56, gt)]})
        ktile(lp, kind, 1, d0[NK3:], d1[:NK3], extra={0: [(50, 56, gt)]})
        assert opt.get('x_a_nords') or lp.lds == pre.lds, (len(lp.lds), len(pre.lds))
        lp(f"s_add_u32 s{S_LP}, s{S_LP}, 1")
        for it in range(3, 7):
            if f"it{it}" in opt.get("sp", []):
                lp(f"s_cmp_lg_u32 s{S_LP}, {it}")
                lp(f"s_cbranch_scc1 M_NS{it}_{nm}")
                stamp(lp, opt, f"it{it}", raw=True)
                lp.label(f"M_NS{it}_{nm}")
        lp(f"s_cmp_eq_u32 s{S_LP}, s{S_BO}")
        lp("s_cbranch_scc1 M_SIGX")
        lp(f"s_cmp_lg_u32 s{S_LP}, 5")
        lp(f"s_cbranch_scc1 M_NOPOLL_{nm}")
        flag_line(lp, 7, FL_XN, S_QT)
        lp(f"buffer_load_dwordx2 {v(V_FL,2)}, v{V_FO}, s[{S_WS}:{S_WS+3}], s7 offen sc1", "pf")
        lp.label(f"M_NOPOLL_{nm}")
        lp(f"s_cmp_lt_u32 s{S_LP}, 6")
        lp(f"s_cbranch_scc1 M_LOOP_{nm}")
        tl = Seg(f"m_tail{nm}", lp.lds, lp.vm)
        tl.label(f"M_TAIL{kind}")
        bd = sum((b_dma(u) for u in range(10)), [])
        flag_test(tl, V_FL)
        tl(f"s_cselect_b32 s{S_XNF}, 1, 0")
        ktile(tl, kind, 0, d1[NK3:], d0[:NK3], pref=False, xn=0)
        ktile(tl, kind, 1, d0[NK3:], d1[:NK3], pref=False, xn=14)
        stamp(tl, opt, "it7", raw=True)
        ktile(tl, kind, 0, d1[NK3:] + bd[:8], bd[8:20], pref=False)
        ktile(tl, kind, 1, bd[20:24], bd[24:36], last=True, pref=False)
        if kind == 0:
            tl("s_branch M_B")
        segs += [pre, lp, tl] + ([hk] if kind == 0 else [])
        tails[kind] = tl
        traces.append([pro, pre, lp, lp, tl])

    e = Seg("m_b", tails[0].lds, tails[0].vm)
    e.label("M_B")
    stamp(e, opt, 2)
    stamp(e, opt, "b")
    e(f"s_cmp_lt_u32 s{S_XNF}, {99 if opt.get('force_fb') else 1}")
    e("s_cbranch_scc1 M_FB")
    e.label("M_FB_RET")
    for _ in range(opt.get("x_idle", 0)):
        e("s_sleep 32")
    srd(e, S_WO, P_WO, WO_BYTES)
    srd(e, S_W2, P_W2, W2_BYTES)
    attn.setup_dma(e)
    e(f"v_mov_b32 v{V_D1}, v{V_D1+2}")
    e(f"v_add_u32 v{V_D1+1}, {4*3584 - 1024}, v{V_D1+2}")
    e(f"v_add_u32 v{V_D1+2}, {2*(4*3584 - 1024)}, v{V_D1+3}")
    e(f"v_add_u32 v{V_D1+3}, {3*(4*3584 - 1024)}, v{V_D1+3}")
    fb = Seg("m_fb")
    fb.label("M_FB")
    if opt.get("count_fb"):
        fb("v_mov_b32 v6, 4")
        fb("v_mov_b32 v7, 1")
        fb("s_mov_b64 exec, 1")
        fb(f"global_atomic_add v6, v7, s[{P_DBG}:{P_DBG+1}]")
        fb("s_mov_b64 exec, -1")
    fb.wait_force(vm=0)
    fb(f"s_lshl_b32 s7, s{S_QT}, 7")
    fb("s_lshl_b32 s6, s3, 5")
    fb("s_add_u32 s7, s7, s6")
    fb("v_and_b32 v6, 31, v0")
    fb("v_add_u32 v6, s7, v6")
    fb("v_mul_u32_u24 v6, 896, v6")
    fb("v_lshrrev_b32 v7, 5, v0")
    fb("v_lshl_add_u32 v6, v7, 5, v6")
    for ks in range(28):
        fb(f"buffer_load_dwordx4 {v(V_XN+ks*4,4)}, v6, s[{S_X}:{S_X+3}], 0 offen offset:{(ks>>1)*64 + (ks&1)*16}", "x")
    layernorm(fb, 112, (32,), range(112))
    fb.nop(2)
    for j in range(14):
        for r in range(4):
            fb(f"v_permlane16_swap_b32 v{V_XN+8*j+r}, v{V_XN+8*j+4+r}")
    fb.nop(2)
    fb("s_branch M_FB_RET")
    extra.append(fb)

    D = opt.get("b_depth", 7)
    units = [(u, s_, cb) for u in range(NT) for s_ in range(2) for cb in range(8) if not (u >= 14 and cb == 7)]
    NF = len(units)
    gstart = {}
    for f, (u, s_, cb) in enumerate(units):
        gstart.setdefault(u // 2, f)
    first_of = {f: g for g, f in gstart.items()}
    cur_win = [WIN[8]] * 8

    def b_read(f):
        u, s_, cb = units[f]
        slot = SLOT_ORDER[u % 10]
        fr = V_FA + (f % 8) * 4
        ops = []
        if cur_win[cb] != WIN[slot]:
            dlt = WIN[slot] - cur_win[cb]
            ops.append(f"v_add_u32 v{V_AT+cb}, {dlt:#x}, v{V_AT+cb}" if dlt > 0 else f"v_subrev_u32 v{V_AT+cb}, {-dlt:#x}, v{V_AT+cb}")
            cur_win[cb] = WIN[slot]
        return ops + [f"ds_read_b64_tr_b16 {v(fr+2*h,2)}, v{V_AT+cb} offset:{slot*16384 - WIN[slot] + (32*s_+4*h)*256}" for h in range(2)]

    def kv_epi(b, t=8, o=8):
        kb, i = divmod(b, 4)
        ops = []
        if i == 0 and kb:
            ops.append(f"s_add_u32 s{S_KVBASE}, s{S_KVBASE}, s{S_KVSTR}")
        if i % 2 == 0:
            ops.append(f"s_add_u32 s{S_KVC}, s{S_KVBASE}, {KV_OFF + (i>>1)*4096}")
        for c in range(2):
            for r in range(8):
                ops.append(f"v_accvgpr_read_b32 v{t+r}, a{b*16+8*c+r}")
            for r in range(4):
                ops.append(f"v_cvt_pk_bf16_f32 v{t+o+r}, v{t+2*r}, v{t+2*r+1}")
            ops.append((f"buffer_store_dwordx4 {v(t+o,4)}, v{V_L16}, s[{S_WS}:{S_WS+3}], s{S_KVC} offen offset:{(i&1)*2048+c*1024}{ST}", "kvst" if kb < 2 else "kvst2"))
        if opt.get("x_nokvst"):
            ops = [o for o in ops if not isinstance(o, tuple)]
        if opt.get("x_noepi"):
            ops = []
        return ops

    def q_epi(part):
        ops = []
        t = 20
        for nb in range(4):
            if nb % 2 == 0:
                ops.append(f"s_add_u32 s{S_QC}, s{S_QB}, {part*8192 + (nb>>1)*4096}")
            for c in range(2):
                if part == 0:
                    src = H_ACC[nb] + 8 * c
                else:
                    src = t
                    for r in range(8):
                        ops.append(f"v_accvgpr_read_b32 v{t+r}, a{nb*16+8*c+r}")
                for r in range(4):
                    ops.append(f"v_cvt_pk_bf16_f32 v{t+8+r}, v{src+2*r}, v{src+2*r+1}")
                ops.append((f"buffer_store_dwordx4 {v(t+8,4)}, v{V_L16}, s[{S_QST}:{S_QST+3}], s{S_QC} offen offset:{(nb&1)*2048 + c*1024} sc1", "qst"))
                for r in range(4):
                    ops.append(f"v_accvgpr_write_b32 a{A_Q2 + part*32 + nb*8 + c*4 + r}, v{t+8+r}")
        return ops

    GKV, GCHK, GQ = opt.get("g_kv", 6), opt.get("g_chk", 9), 9
    fl = attn.first_loads(S_KVE)
    younger = [0]

    def count_pq(e):
        tags = [t for t, d in e.vm]
        younger[0] = len(tags) - 1 - tags.index("pq") if "pq" in tags else 63
    count_pq.cost = 0
    SALU_COST[0] = 0.25
    spine, fill = [], {}
    e.wait_tag("b0")
    e("s_barrier")
    for f in range(D):
        for r in b_read(f):
            e(r)
    place_dma(fill, b_dma(9), 1, 16)
    for f in range(NF):
        u, s_, cb = units[f]
        part, kt = divmod(u, 7)
        pr = []
        for qb in range(2):
            o = qb * 8 + (cb & 1) * 4
            acc = a((cb >> 1) * 16 + o, 4) if part == 1 else v(H_ACC[cb >> 1] + o, 4)
            c = "0" if (kt == 0 and s_ == 0) else acc
            pr.append(f"v_mfma_f32_16x16x32_bf16 {acc}, {v(V_FA+(f%8)*4,4)}, {v(V_XN+((kt*2+s_)*2+qb)*4,4)}, {c}")
        spine.append(tuple(pr))
        nf = f + D
        if nf < NF:
            if nf in first_of:
                g = first_of[nf]
                ops = [lambda e, g=g: e.wait_tag(f"b{g}")]
                if g == GKV:
                    ops.append(lambda e: e.wait_tag("kvst"))
                if g == GQ:
                    ops.append(lambda e: e.wait_tag("qst"))
                if g == GCHK:
                    ops += [lambda e: flag_test(e, VPK), f"s_cselect_b32 s{S_EARLY}, 1, 0",
                            f"s_cselect_b32 s{S_KVE+2}, {WS_BYTES:#x}, 0"]
                ops.append("s_barrier")
                if g == GKV:
                    ops += ["s_cmp_eq_u32 s3, 0", "s_cbranch_scc1 M_SKV", "M_SKV_RET:"]
                if g == GQ:
                    ops += ["s_cmp_eq_u32 s3, 0", "s_cbranch_scc1 M_SQ", "M_SQ_RET:"]
                if g == 10:
                    ops += [f"s_cmp_lt_u32 s{S_QT}, 8", "s_cbranch_scc1 M_EQ", "M_EQ_RET:"]
                if f"g{g}" in opt.get("sp", []):
                    ops.append(lambda e, g=g: stamp(e, opt, f"g{g}", raw=True))
                if g == 10:
                    ops.insert(ops.index("s_barrier"), count_pq)
                fill.setdefault(f, []).append(ops)
                if g >= 2:
                    its = []
                    for u2 in (2 * g + 6, 2 * g + 7):
                        if u2 < NT:
                            its += b_dma(u2)
                    if its:
                        place_dma(fill, its, f + 2, f + 27)
                if g == 9:
                    spread(fill, sum(fl[:4], []), f + 2, f + 28)
                if g == 10:
                    spread(fill, sum(fl[4:], []), f + 2, f + 20)
            fill.setdefault(f, []).extend(b_read(nf))
        if f % 2 == 0:
            r = v(V_FA + (min(f + 1, NF - 1) % 8) * 4, 4)
            fill.setdefault(f - 1, []).append(waiter(r, WC))
    g1, g2a, g2, gq0, gq1 = opt.get("kv_split", (125, 200, 318, 130, 256))
    pour(fill, sum((kv_epi(b) for b in range(0, 8)), []), 2, g1)
    pour(fill, q_epi(0), gq0, 215)
    pour(fill, q_epi(1), 224 + 5, gq1)
    pour(fill, [f"s_mov_b32 s{S_KVE}, s{S_WS}", f"s_mov_b32 s{S_KVE+1}, s{S_WS+1}", f"s_mov_b32 s{S_KVE+3}, 0x20000",
                lambda e: flag_line(e, 73, FL_KV, S_HEAD), lambda e: flag_line(e, 74, FL_PAIR, S_PAIR)], 160, 180)
    fill.setdefault(opt.get("g_pkv", 240), []).append(f"buffer_load_dwordx2 {v(VPK,2)}, v{V_FO}, s[{S_WS}:{S_WS+3}], s73 offen sc1")
    GP = opt.get("g_poll", 288)
    fill.setdefault(GP - 1, []).append(f"v_mov_b32 v{VPQ+2}, 0")
    fill.setdefault(GP, []).append((f"buffer_load_dwordx2 {v(VPQ,2)}, v{VPQ+2}, s[{S_WS}:{S_WS+3}], s74 offen sc1", "pq"))
    fill.setdefault(GP, []).append(f"s_mov_b32 s{S_GOTQ}, 0")
    pour(fill, [f"v_accvgpr_mov_b32 a{A_Q+r}, a{A_Q2+r}" for r in range(64)], gq1 + 2, 300)
    pour(fill, sum((kv_epi(b) for b in range(8, 12)), []), g2a, g2)
    for k in range(8, 26):
        for r in (0, 2):
            g = min(range(224 + 7 * (k >> 1) + 8, NF), key=lambda g: (load_of(fill, g), g))
            fill.setdefault(g, []).append(f"v_mov_b64 {v(V_XN+4*k+r,2)}, 0")
    print(gap_report("phase B", fill, NF))
    weave2(e, spine, fill)
    SALU_COST[0] = 1
    stamp(e, opt, 3)
    stamp(e, opt, "bend")

    skv = Seg("m_skv")
    skv.label("M_SKV")
    flag_line(skv, 7, FL_KV, S_HA)
    flag_set(skv, S_WS, 7, f"s{S_KVSLOT}", 20)
    skv("s_branch M_SKV_RET")
    sq = Seg("m_sq")
    sq.label("M_SQ")
    sq(f"s_cmp_lt_u32 s{S_QT}, 8")
    sq("s_cbranch_scc1 M_SQ_RET")
    flag_set(sq, S_WS, 74, 0, V_XN)
    sq("s_branch M_SQ_RET")

    def spin(e, name, vd, voff, line, first=True):
        e("s_mov_b32 s6, 0")
        e.label(name)
        if first:
            e(f"buffer_load_dwordx2 {v(vd,2)}, v{voff}, s[{S_WS}:{S_WS+3}], s{line} offen sc1")
        e.wait_force(vm=0)
        flag_test(e, vd)
        e(f"s_cbranch_scc1 {name}_OK")
        e("s_sleep 2")
        if not first:
            e(f"buffer_load_dwordx2 {v(vd,2)}, v{voff}, s[{S_WS}:{S_WS+3}], s{line} offen sc1")
        e("s_add_u32 s6, s6, 1")
        e(f"s_cmp_lt_u32 s6, {PMAX}")
        e(f"s_cbranch_scc1 {name}")
        e.wait_force(vm=0)
        e.label(name + "_OK")

    late = Seg("m_late")
    late.label("M_LATE")
    spin(late, "M_PKV", VPK, V_FO, 73)
    for grp in attn.first_loads(S_WS):
        run(late, grp)
    late.wait_force(vm=0)
    late("s_branch M_LATE_RET")
    def q_loads(g):
        for k in range(16):
            if k and k % 4 == 0:
                g(f"s_add_u32 s{S_QB}, s{S_QB}, 4096")
            g(f"buffer_load_dwordx4 {a(A_Q+4*k,4)}, v{V_L16}, s[{S_WS}:{S_WS+3}], s{S_QB} offen offset:{(k%4)*1024} sc1", "q")

    gq = Seg("m_getq")
    gq.label("M_EQ")
    gq.wait_force(vm=younger[0])
    flag_test(gq, VPQ)
    gq("s_cbranch_scc0 M_EQ_RET")
    q_loads(gq)
    gq(f"s_mov_b32 s{S_GOTQ}, 1")
    gq("s_branch M_EQ_RET")
    gq.label("M_GETQ")
    gq(f"s_cmp_eq_u32 s{S_GOTQ}, {2 if opt.get('force_late') else 1}")
    gq("s_cbranch_scc1 M_GETQ_RET")
    if opt.get('force_late'):
        gq(f"s_mul_i32 s6, s{S_GOTQ}, 12288")
        gq(f"s_sub_u32 s{S_QB}, s{S_QB}, s6")
    spin(gq, "M_PQ", VPQ, VPQ + 2, 74)
    q_loads(gq)
    gq("s_branch M_GETQ_RET")
    wq = Seg("m_waitq")
    wq.label("M_WAITQ")
    wq.wait_force(vm=0)
    wq("s_branch M_WAITQ_RET")
    extra += [skv, sq, late, gq, wq]

    e(f"s_cmp_eq_u32 s{S_EARLY}, {2 if opt.get('force_late') else 1}")
    e("s_cbranch_scc0 M_LATE")
    e.label("M_LATE_RET")
    e(f"s_cmp_lt_u32 s{S_QT}, 8")
    e("s_cbranch_scc1 M_GETQ")
    e.label("M_GETQ_RET")
    stamp(e, opt, "polled")
    HS = V_XN + 4
    e("v_mov_b32 v20, 0x41800000")
    e("v_mov_b32 v21, 0x41800000")
    hsrc = [H_ACC[k >> 3] + 2 * (k & 7) for k in range(24)] + [H_ACC[3], H_ACC[3] + 2, H_ACC[3] + 8, H_ACC[3] + 10]
    for r in hsrc:
        e(f"v_pk_mul_f32 {v(r,2)}, {v(r,2)}, v[20:21]")
    for k, r in enumerate(hsrc):
        e(f"v_cvt_pk_bf16_f32 v{HS+k}, v{r}, v{r+1}")
    srd(e, S_OUT, P_OUT, OUT_BYTES)
    attn.setup_v(e)
    e("s_getpc_b64 s[80:81]")
    e.label("M_PC_A")
    e("s_lshr_b32 s7, s2, 3")
    e("s_lshl_b32 s7, s7, 2")
    e("s_add_u32 s7, s7, s3")
    e("s_mul_i32 s7, s7, 512")
    e(f"v_min_u32 v{attn.V_X+3}, 3, v0")
    e(f"v_lshl_add_u32 v{attn.V_X+3}, v{attn.V_X+3}, 7, s7")
    e(f"v_min_u32 v{attn.V_X+3}, M_CODE_END-M_PC_A-8, v{attn.V_X+3}")
    attn.init_state(e, V_XN + 4 * 26)
    e(f"s_cmp_lt_u32 s{S_QT}, 8")
    e("s_cbranch_scc1 M_WAITQ")
    e.label("M_WAITQ_RET")
    stamp(e, opt, 4)
    stamp(e, opt, "a0")

    RA, RB, XR, VO, VP = 184, 32, 12, 2, 10

    def hooks(fill, NFE, ED):
        g = 6 * NFE - ED
        fill[g].append(["s_cmp_eq_u32 s3, 0", "s_cbranch_scc1 M_SYA", "M_SYA_RET:"])
        ops = [f"s_lshl_b32 s7, s{S_QT}, 2", f"s_lshr_b32 s4, s{S_HEAD}, 2", "s_add_u32 s4, s4, s7",
               f"s_and_b32 s5, s{S_HEAD}, 3", "s_lshl_b32 s6, s3, 2", "s_add_u32 s5, s5, s6",
               "s_mul_i32 s6, s4, 28", "s_add_u32 s6, s6, s5", "s_lshl_b32 s6, s6, 10",
               f"s_add_u32 s53, s6, {Y_OFF}", "s_add_u32 s54, s53, 16384",
               f"v_and_b32 v{VO}, 15, v0", "v_lshrrev_b32 v3, 4, v0", "s_lshl_b32 s4, s4, 1", f"s_and_b32 s6, s{S_HEAD}, 1",
               "s_add_u32 s4, s4, s6", "s_lshl_b32 s4, s4, 4", f"v_add_u32 v{VO}, s4, v{VO}",
               f"v_mul_u32_u24 v{VO}, 896, v{VO}", f"v_lshl_add_u32 v{VO}, v3, 3, v{VO}", "s_lshr_b32 s5, s5, 1", "s_lshl_b32 s5, s5, 6",
               f"v_add_u32 v{VO}, s5, v{VO}"]
        ops += [f"buffer_load_dwordx2 {v(XR+2*k,2)}, v{VO}, s[{S_X}:{S_X+3}], 0 offen offset:{(k>>1)*512+(k&1)*32}" for k in range(4)]
        ops += [lambda e: flag_line(e, 55, FL_Y, S_QT), lambda e: flag_line(e, 63, FL_YA, S_QT)]
        pour(fill, ops, 5 * NFE + 2, 5 * NFE + 34)
        fill.setdefault(6 * NFE + opt.get("g_pa", 22), []).append(
            (f"buffer_load_dwordx2 {v(VP,2)}, v{V_FO}, s[{S_WS}:{S_WS+3}], s63 offen sc1", "pa"))

    sya = Seg("m_sya")
    sya.label("M_SYA")
    sya(f"s_lshl_b32 s6, s{S_HEAD}, 3")
    flag_set(sya, S_WS, 63, "s6", 20)
    sya("s_branch M_SYA_RET")
    extra.append(sya)

    def finish(e):
        stamp(e, opt, "yend")

        def loads(base, sreg, tag):
            for h in range(16):
                e(f"buffer_load_dwordx4 {v(base+4*h,4)}, v{V_L16}, s[{S_WS}:{S_WS+3}], s{sreg} offen sc1", tag)
                if h < 15:
                    e(f"s_add_u32 s{sreg}, s{sreg}, {64*28*1024}")

        def reduce(base, xr, off):
            acc, t = 20, 28
            for r in range(4):
                e(f"v_lshlrev_b32 v{acc+2*r}, 16, v{xr+r}")
                e(f"v_and_b32 v{acc+1+2*r}, 0xffff0000, v{xr+r}")
            for h in range(16):
                for r in range(4):
                    src = base + 4 * h + r
                    u = t + 2 * (r & 1)
                    e(f"v_lshlrev_b32 v{u}, 16, v{src}")
                    e(f"v_and_b32 v{u+1}, 0xffff0000, v{src}")
                    e(f"v_pk_add_f32 {v(acc+2*r,2)}, {v(acc+2*r,2)}, {v(u,2)}")
            for r in range(4):
                e(f"v_cvt_pk_bf16_f32 v{xr+r}, v{acc+2*r}, v{acc+1+2*r}")
            e(f"buffer_store_dwordx2 {v(xr,2)}, v{VO}, s[{S_OUT}:{S_OUT+3}], 0 offen offset:{off}")
            e(f"buffer_store_dwordx2 {v(xr+2,2)}, v{VO}, s[{S_OUT}:{S_OUT+3}], 0 offen offset:{off+32}")

        flag_test(e, VP)
        e("s_cselect_b32 s60, 1, 0")
        e("s_cbranch_scc0 M_NOA")
        loads(RA, 53, "ra")
        e.wait_force(vm=16)
        e("s_branch M_A1")
        e.label("M_NOA")
        e.wait_force(vm=0)
        e.label("M_A1")
        e("s_barrier")

        e("s_cmp_lg_u32 s3, 3")
        e("s_cbranch_scc1 M_PA_OK")
        e(f"s_lshl_b32 s6, s{S_HEAD}, 3")
        flag_set(e, S_WS, 55, "s6", 20)
        e("s_cmp_eq_u32 s60, 1")
        e("s_cbranch_scc1 M_PA_OK")
        spin(e, "M_PA", VP, V_FO, 63)
        e("s_barrier")
        e("s_cmp_eq_u32 s60, 1")
        e("s_cbranch_scc1 M_A2")
        loads(RA, 53, "ra")
        e.label("M_A2")
        e("s_cmp_eq_u32 s3, 3")
        e("s_cbranch_scc1 M_W3")
        e.wait_force(vm=0)
        reduce(RA, XR, 0)
        e("s_barrier")
        stamp(e, opt, "ypoll")
        e.vm = []
        loads(RB, 54, "rb")
        reduce(RB, XR + 4, 512)
        e("s_branch M_DONE")
        e.label("M_W3")
        spin(e, "M_PB", VP, V_FO, 55)
        e("s_barrier")
        stamp(e, opt, "ypoll")
        reduce(RA, XR, 0)
        e.label("M_DONE")
        stamp(e, opt, 5)
        stamp(e, opt, "end")
        stamp_flush(e, opt, 0, S_WS, 6)

    aopt = dict(opt)
    aopt["code_pf"] = not opt.get("no_cpf")
    aopt["stash"] = HS
    aopt["kv2"] = (S_HA, S_KVSLOT, V_FO, sum((kv_epi(b, attn.V_X + 4, 0) for b in range(12, 16)), []))
    if not opt.get("sp"):
        aopt["sp"] = ["none"]
        aopt["spk"] = ""
    asegs, atraces = attn.gen_attn(e, aopt, "M_END", finish, hooks)
    z = Seg("m_z")
    z.label("M_CODE_END")
    segs += asegs + extra + [z]
    for t in traces[1:]:
        t.append(e)
    traces += atraces + [[tails[0], fb, e]] + [[x] for x in extra]
    return segs, traces
```

```python
from emit import *
from common import *

LDS_BYTES = 160 * 1024
S_WS, S_WO, S_W2, S_Y1 = 16, 8, 12, 28
V_L16, V_PD = 1, 2
V_DMA, V_DMA2 = 3, 4
V_L0, V_L1, V_VA, V_HA, V_D0, V_NEGBIG, V_MAX, V_MS = 8, 9, 10, 11, 13, 14, 15, 16
V_T = 18
V_S = (32, 48)
V_P = (64, 72)
V_NM = 80
V_X = 96
V_O = 128
A_Q, A_Q2, A_F, A_HF = 0, 64, 128, 192
S_HEAD, S_QT, S_NH, S_IT, S_T, S_RET, S_DELTA, S_ITH, S_OFFH, S_OFFD = 32, 33, 34, 35, 36, 37, 38, 39, 40, 41
S_KVB, S_W4K, S_PAIR, S_ITSW, S_ITSIG, S_PEND = 42, 43, 48, 49, 50, 51
S_OFF = 44
THR = 16.0
VSLOT = {32: 0x20000, 33: 0x24000}
S_NEG, S_QS, S_PFO, S_PFD, S_PUB = 52, 82, 83, 84, 78
V_KP = 12
KPD = 7
KVM = [""]


def setup_s(e):
    e(f"s_lshl_b32 s4, s{S_QT}, 2")
    e(f"s_sub_u32 s{S_NH}, 30, s4")
    e(f"s_sub_u32 s6, 15, s{S_QT}")
    e(f"s_cmp_ge_u32 s{S_QT}, 8")
    e(f"s_cselect_b32 s{S_NH}, 0, s{S_NH}")
    e(f"s_cselect_b32 s{S_PAIR}, s6, s{S_QT}")
    e(f"s_lshl_b32 s5, s{S_HEAD}, 3")
    e(f"s_add_u32 s{S_PAIR}, s{S_PAIR}, s5")
    e(f"s_lshl_b32 s{S_W4K}, s3, 12")
    e(f"s_lshl_b32 s{S_KVB}, s{S_HEAD}, 21")
    e(f"s_sub_u32 s5, 29, s{S_NH}")
    e("s_lshl_b32 s5, s5, 15")
    e(f"s_add_u32 s{S_OFFH}, s5, s{S_KVB}")
    e("s_lshl_b32 s5, s4, 15")
    e(f"s_add_u32 s{S_OFFD}, s5, s{S_KVB}")
    e(f"s_sub_u32 s5, s{S_NH}, 6")
    e("s_lshr_b32 s5, s5, 2")
    e(f"s_cmp_ge_u32 s{S_NH}, 6")
    e(f"s_cselect_b32 s{S_ITH}, s5, 99")
    e(f"s_lshr_b32 s5, s{S_NH}, 2")
    e(f"s_cmp_ge_u32 s{S_QT}, 8")
    e(f"s_cselect_b32 s{S_ITSW}, 99, s5")
    e(f"s_mov_b32 s{S_ITSIG}, s{S_ITSW}")
    e("s_cmp_eq_u32 s3, 0")
    e(f"s_cselect_b32 s{S_ITSIG}, s{S_ITSIG}, 99")
    e(f"s_mov_b32 s{S_NEG}, 0xffff8000")
    e(f"s_mov_b32 s{S_PEND}, 0")
    e(f"s_mov_b32 s{S_IT}, 0")
    e(f"s_mov_b32 s{S_T}, {f32(THR)}")


def setup_dma(e):
    e(f"v_lshlrev_b32 v{V_L16}, 4, v0")
    e(f"v_add_u32 v{V_DMA}, s{S_W4K}, v{V_L16}")
    e(f"v_add_u32 v{V_DMA2}, 0x4000, v{V_DMA}")


def setup_v(e):
    e(f"s_mul_i32 s5, s{S_QT}, {112*128}")
    e(f"s_mul_i32 s6, s3, {28*128}")
    e("s_add_u32 s5, s5, s6")
    e(f"s_mul_i32 s6, s{S_HEAD}, 229376")
    e(f"s_add_u32 s{S_PFO}, s5, s6")
    e(f"v_lshrrev_b32 v{V_T}, 4, v0")
    e(f"v_lshlrev_b32 v{V_X+1}, 7, v{V_T}")
    e(f"s_mul_i32 s5, s{S_QT}, {49*128}")
    e(f"s_mul_i32 s6, s3, {13*128}")
    e("s_add_u32 s5, s5, s6")
    e(f"s_mul_i32 s6, s{S_HEAD}, 100352")
    e(f"s_add_u32 s{S_PFD}, s5, s6")
    e(f"v_lshrrev_b32 v{V_T}, 5, v0")
    e(f"v_lshlrev_b32 v{V_X+2}, 7, v{V_T}")
    e(f"v_add_u32 v{V_VA}, 0x10000, v{V_L16}")
    e(f"v_and_b32 v{V_T}, 15, v0")
    e(f"v_lshrrev_b32 v{V_T+1}, 4, v0")
    e(f"v_lshlrev_b32 v{V_T+1}, 2, v{V_T+1}")
    e(f"v_sub_u32 v{V_D0}, v{V_T}, v{V_T+1}")
    e(f"v_mov_b32 v{V_NEGBIG}, {f32(-1e30)}")
    for r in range(4):
        e(f"v_cmp_le_i32 s[{64+2*r}:{65+2*r}], {r}, v{V_D0}")
    e(f"s_mov_b32 s{S_QS}, {f32(16 * QSCALE)}")
    e("s_cmp_eq_u32 s3, 0")
    e(f"s_cselect_b32 s{S_PUB}, 2, 0")
    e("s_mul_i32 s5, s3, 7168")
    e("s_add_u32 s5, s5, 0x20000")
    e(f"v_add_u32 v{V_HA}, s5, v{V_L16}")


def idx_ops(dst, n):
    return [
        f"s_mov_b32 s{dst}, {(29-n) << 15}",
        f"s_cmp_gt_u32 s{S_NH}, {n}",
        f"s_cselect_b32 s{dst}, {(30+n) << 15}, s{dst}",
        f"s_add_u32 s{dst}, s{dst}, s{S_KVB}",
    ]


def dmaK(slot, off, tag="dma", S_WS=S_WS):
    return [f"s_add_u32 m0, s{S_W4K}, {slot*16384}"] + [
        (f"buffer_load_dwordx4 v{V_DMA}, s[{S_WS}:{S_WS+3}], s{off} offen offset:{j*1024}{KVM[0]} lds", tag) for j in range(4)]


def dmaV(base, off, tag="dma", S_WS=S_WS):
    return [f"s_add_u32 m0, s{S_W4K}, {base}"] + [
        (f"buffer_load_dwordx4 v{V_DMA2}, s[{S_WS}:{S_WS+3}], s{off} offen offset:{j*1024}{KVM[0]} lds", tag) for j in range(4)]


def first_loads(sr=S_WS):
    out = [[idx_ops(S_OFF + n, n)] for n in range(4)]
    seq = [out[0] + dmaK(0, S_OFF + 0, "k0", sr), dmaV(0x10000, S_OFF + 0, "v0", sr), out[1] + dmaK(1, S_OFF + 1, "k1", sr),
           dmaV(0x14000, S_OFF + 1, "v1", sr), out[2] + dmaK(2, S_OFF + 2, "k2", sr), out[3] + dmaK(3, S_OFF + 3, "k3", sr)]
    return seq


def init_state(e, o_from=V_O):
    for r in range(o_from, V_O + 128, 2):
        e(f"v_mov_b64 {v(r,2)}, 0")
    for r in range(0, 8, 2):
        e(f"v_mov_b64 {v(V_NM+r,2)}, 0")
    e(f"v_mov_b64 {v(V_L0,2)}, 0")


def gen_attn(e, opt, end_label, finish=None, hooks=None):
    D = opt.get("a_depth", 14)
    WG = opt.get("a_waitgrp", 8)
    YM = opt.get("y_store_mod", "")
    SC = opt.get("salu_cost", 0.25)
    KPF = 1 if opt.get("kpf") else 0
    NEPF = 3 if opt.get("loop_epf") else 0

    def rd(f, kslot, vbase):
        d = a(A_F + (f % 16) * 4, 4)
        if f < 16:
            return f"ds_read_b128 {d}, v{V_L16} offset:{kslot*16384 + f*1024}"
        return f"ds_read_b128 {d}, v{V_VA} offset:{vbase + (f-16)*1024}"

    M16 = "v_mfma_f32_16x16x32_bf16"

    def m1(f, qb, par):
        fr = a(A_F + (f % 16) * 4, 4)
        if f < 16:
            j, kb = divmod(f, 2)
            S = v(V_S[par ^ 1] + qb * 8 + kb * 4, 4)
            C = v(V_NM + qb * 4, 4) if j == 0 else S
            return f"{M16} {S}, {fr}, {a(A_Q+(j*2+qb)*4,4)}, {C}"
        j, b = divmod(f - 16, 2)
        O = v(V_O + (j * 2 + qb) * 8 + b * 4, 4)
        return f"{M16} {O}, {fr}, {v(V_P[par]+4*qb,4)}, {O}"

    def mf(u, par):
        if 16 <= u < 20:
            f, qb = 16 + 2 * (u & 1), (u - 16) >> 1
            return (m1(f, qb, par), m1(f + 1, qb, par))
        return (m1(u, 0, par), m1(u, 1, par))

    def max_ops(par):
        S = V_S[par]
        t = V_T
        ops = [f"v_max3_f32 v{t+k}, v{S+3*k}, v{S+3*k+1}, v{S+3*k+2}" for k in range(5)]
        ops += [f"v_max3_f32 v{t}, v{t}, v{t+1}, v{t+2}", f"v_max3_f32 v{t+3}, v{t+3}, v{t+4}, v{S+15}",
                f"v_max_f32 v{V_MAX}, v{t}, v{t+3}", f"v_cmp_lt_f32 vcc, s{S_T}, v{V_MAX}"]
        return ops

    def soft_ops(par):
        S, P = V_S[par], V_P[par]
        ops = []
        for k in range(9):
            if k < 8:
                ops += [f"v_exp_f32 v{S+2*k}, v{S+2*k}", f"v_exp_f32 v{S+2*k+1}, v{S+2*k+1}"]
            if k > 0:
                j = k - 1
                ops += [f"v_cvt_pk_bf16_f32 v{P+j}, v{S+2*j}, v{S+2*j+1}",
                        f"v_add_f32 v{V_L0+(j>>2)}, v{V_L0+(j>>2)}, v{S+2*j}", f"v_add_f32 v{V_L0+(j>>2)}, v{V_L0+(j>>2)}, v{S+2*j+1}"]
        return ops

    def mask_ops(par):
        S = V_S[par]
        ops = [f"v_mov_b32 v{S+4+r}, v{V_NEGBIG}" for r in range(4)]
        for b in (0, 12):
            ops += [f"v_cndmask_b32 v{S+b+r}, v{V_NEGBIG}, v{S+b+r}, s[{64+2*r}:{65+2*r}]" for r in range(4)]
        return ops

    def waits(fill, lo, hi, shift=0):
        for f in range(lo, hi, WG):
            r = a(A_F + ((f + WG - 1) % 16) * 4, 4)
            w = lambda e, r=r: wait_reg(e, r)
            w.salu, w.cost = True, SC
            fill.setdefault(f - 1 - shift, []).append(w)

    def place(fill, ops, g0, step=2):
        fill.setdefault(g0, []).append(ops[0])
        for j, d in enumerate(ops[1:]):
            fill.setdefault(g0 + 1 + step * j, []).append(d)

    rare_sites = {0: [], 1: []}
    stubs = Seg("a_stubs")

    def rare_check(e, par, name):
        k = len(rare_sites[par])
        rare_sites[par].append(name)
        e(f"s_cbranch_vccnz A_ST_{name}" if not opt.get("x_drop") else "s_nop 0")
        e.label(f"A_RET_{name}")
        stubs.label(f"A_ST_{name}")
        stubs(f"s_mov_b32 s{S_RET}, {k}")
        stubs(f"s_branch A_RARE{par}")

    V_EV, V_EA = V_X + 4, V_X + 8

    def e_setup():
        ops = ["v_lshrrev_b32 v24, 3, v0", "v_mul_u32_u24 v24, 896, v24", "v_lshrrev_b32 v26, 4, v0", "v_and_b32 v25, 7, v0",
               "v_lshlrev_b32 v27, 1, v26", "v_xor_b32 v25, v25, v27", f"v_lshl_add_u32 v{V_EV}, v25, 4, v24"]
        ops += [f"v_add_u32 v{V_EV+j}, {j*7168 - j*1024}, v{V_EV}" for j in range(1, 4)]
        ops += [f"s_mul_i32 s56, s{S_HEAD}, 229376", "s_mul_i32 s4, s3, 57344", "s_add_u32 s56, s56, s4",
                f"s_mul_i32 s57, s{S_HEAD}, 100352", "s_mul_i32 s4, s3, 28672", "s_add_u32 s57, s57, s4",
                "s_lshl_b32 s60, s3, 13"]
        ops += ["v_lshrrev_b32 v24, 2, v0", "v_bfe_u32 v25, v0, 3, 2", "v_lshlrev_b32 v24, 7, v24", "v_lshl_add_u32 v24, v25, 5, v24",
                "v_and_b32 v25, 3, v0", f"v_lshl_add_u32 v{V_EA}, v25, 3, v24"]
        ops += [f"v_xor_b32 v{V_EA+cb}, {cb << 5}, v{V_EA}" for cb in range(1, 4)]
        ops += [f"s_lshl_b32 s62, s{S_HEAD}, 6", f"s_lshl_b32 s4, s{S_QT}, 2", "s_add_u32 s62, s62, s4", "s_add_u32 s62, s62, s3",
                "s_mul_i32 s62, s62, 28672", f"s_add_u32 s62, s62, {Y_OFF}"]
        return ops

    def e_dma(tag="edma"):
        ops = []
        for grp in range(2):
            ops.append(["s_add_u32 s61, s58, s60", f"s_add_u32 m0, s61, {grp*4096}", f"s_add_u32 s61, s56, {grp*32*896}"])
            for j in range(4):
                ops.append((f"buffer_load_dwordx4 v{V_EV+j}, s[{S_WO}:{S_WO+3}], s61 offen offset:{j*1024} lds", tag))
        ops.append([f"s_add_u32 m0, s59, s{S_W4K}", "s_add_u32 s56, s56, 128"])
        for j in range(4):
            ops.append((f"buffer_load_dwordx4 v{V_EV+j}, s[{S_W2}:{S_W2+3}], s57 offen offset:{j*1024} lds", tag))
        ops.append("s_add_u32 s57, s57, 128")
        return ops

    EO = (0x8000, 0x14000, 0x20000)
    E2 = (0x10000, 0x1c000, 0x0)

    e.wait_tag("q")
    e.wait_tag("k0")
    e.wait(lgkm=0)
    e("s_barrier")
    HS = opt["stash"]
    for k in range(7):
        e(f"ds_write_b128 v{V_HA}, {v(HS+4*k,4)} offset:{k*1024}")
    for f in range(D):
        e(rd(f, 0, 0))
    spine = [mf(f, 1) for f in range(16)]
    fill = {}
    waits(fill, 0, 16)
    for f in range(16):
        nf = f + D
        if nf == 16:
            fill.setdefault(f, []).extend([lambda e: e.wait_tag("k1"), lambda e: e.wait(lgkm=0), "s_barrier"])
        fill.setdefault(f, []).append(rd(nf % 16, 0 if nf < 16 else 1, 0))
    weave2(e, spine, fill)
    run(e, idx_ops(S_OFF + 0, 4))
    e(f"s_cmp_gt_u32 s{S_NH}, 4")
    e(f"s_cselect_b32 s{S_DELTA}, 0x8000, s{S_NEG}")
    run(e, dmaK(0, S_OFF + 0, "k4"))
    stamp(e, opt, 1, raw=True)
    stamp(e, opt, "a_loop", raw=True)
    e(f"s_mov_b32 s{S_RET}, 0")
    e("s_branch A_FIRST")
    pro = e
    stateL, stateV = list(e.lds), [("dma", frozenset())] * 63

    def step(e, p, n=None, q0=False):
        par = p & 1
        SALU_COST[0] = SC
        nm = (f"Q{p}" if q0 else f"L{p}") if n is None else f"P{n}"
        sx = "_Q" if q0 else ""
        if p == 1:
            e(f"s_cmp_eq_u32 s{S_IT}, s{S_ITSW}")
            e(f"s_cbranch_scc1 A_SW1")
            e.label(f"A_SW1_RET_{nm}")
        spine = [mf(f, par) for f in range(32)]
        fill = {}
        waits(fill, 0, 32)
        vb = p * 16384 if n not in VSLOT else VSLOT[n] - 0x10000
        gb = 32 - D
        if n == 32:
            fill.setdefault(-1, []).append(f"v_add_u32 v{V_VA}, 0x10000, v{V_VA}")
            vb = 0
        for f in range(32):
            nf = f + D
            if nf == 32 and (n is None or n <= 30):
                vm = {None: 9, 28: 9, 29: 12, 30: 0}[n]
                if q0:
                    fill.setdefault(f, []).extend([lambda e: e.wait_tags((f"k{p+2}", f"v{p+1}")), "s_barrier"])
                elif n is None and p == 2:
                    fill.setdefault(f, []).append([f"s_cmp_eq_u32 s{S_IT}, s{S_ITSW}", "s_cbranch_scc1 A_ALTW",
                                                   lambda e, vm=vm: e.wait_force(vm=vm), "A_ALTW_RET:", "s_barrier"])
                else:
                    fill.setdefault(f, []).extend([lambda e, vm=vm: e.wait_force(vm=vm), "s_barrier"])
            if nf < 32:
                fill.setdefault(f, []).append(rd(nf, (p + 1) % 4, vb))
            elif n != 32:
                fill.setdefault(f, []).append(rd(nf - 32, (p + 2) % 4, 0))
        if n is None or n <= 29:
            place(fill, dmaV(0x10000 + ((p + 2) % 4) * 16384, S_OFF + (p + 2) % 4, f"v{p+2}"), 0, 4)
        if n is None or n <= 28:
            o = [f"s_add_u32 s{S_OFF+(p+1)%4}, s{S_OFF+p}, s{S_DELTA}"]
            if p == 1:
                d = S_OFF + 2
                o += [[f"s_cmp_eq_u32 s{S_IT}, s{S_ITH}", f"s_cselect_b32 s{d}, s{S_OFFH}, s{d}", f"s_cselect_b32 s{S_DELTA}, s{S_NEG}, s{S_DELTA}"],
                      [f"s_cmp_eq_u32 s{S_IT}, 6", f"s_cselect_b32 s{d}, s{S_OFFD}, s{d}", f"s_cselect_b32 s{S_DELTA}, 0x8000, s{S_DELTA}"]]
            if n == 28:
                for x, g in zip(dmaK(1, S_OFF + 1) + dmaV(VSLOT[32], S_OFF + 0), (19, 20, 21, 23, 24, 25, 26, 28, 29, 31)):
                    fill.setdefault(g, []).append(x)
            else:
                place(fill, dmaK((p + 1) % 4, S_OFF + (p + 1) % 4, f"k{p+5}"), gb + 1, 3)
            late_o = o
        else:
            late_o = []
        if n == 29:
            place(fill, dmaV(VSLOT[33], S_OFF + 1), gb + 1, 3)
        if n == 28:
            pour(fill, e_setup(), 9, 31)
        if n == 30:
            fill.setdefault(gb, []).extend([f"s_mov_b32 s58, {EO[0]}", f"s_mov_b32 s59, {E2[0]}"])
            spread(fill, e_dma("e0")[:5], gb + 1, 32)
        if n == 31:
            spread(fill, e_dma("e0")[5:], 6, 30)
        if n == 32:
            pl_ = [f"s_lshl_b32 s54, s{S_PAIR}, 2", "s_add_u32 s54, s54, s3", "s_lshl_b32 s55, s54, 10", f"s_add_u32 s55, s55, {ML_OFF}",
                   "s_lshl_b32 s54, s54, 14", f"s_add_u32 s54, s54, {OP_OFF}", f"v_lshrrev_b32 v{V_X+12}, 1, v{V_L16}"]
            fill.setdefault(-1, []).extend(pl_)
            G_ = S_Y1
            ld = [f"buffer_load_dwordx2 {v(V_X+16,2)}, v{V_X+12}, s[{G_}:{G_+3}], s55 offen sc1",
                  f"buffer_load_dwordx2 {v(V_X+18,2)}, v{V_X+12}, s[{G_}:{G_+3}], s55 offen offset:512 sc1"]
            for k in range(16):
                if k and k % 4 == 0:
                    ld.append("s_add_u32 s54, s54, 4096")
                ld.append(f"buffer_load_dwordx4 {a(A_Q2+4*k,4)}, v{V_L16}, s[{G_}:{G_+3}], s54 offen offset:{(k%4)*1024} sc1")
            spread(fill, ld, 0, 24)
        if n is None and p == 3:
            fill.setdefault(gb + 3, []).append([f"s_cmp_eq_u32 s{S_IT}, s{S_ITSIG}", "s_cbranch_scc1 A_SIG", f"A_SIG_RET{sx}:"])
        if n is None and p == 2:
            if not q0:
                fill.setdefault(17, []).append([f"s_bitcmp1_b32 10, s{S_IT}", "s_cbranch_scc1 A_KV2L", "A_KV2L_RET:"])
            fill.setdefault(gb + 3, []).append([f"s_cmp_lt_u32 s{S_IT}, s{S_PUB}", "s_cbranch_scc1 A_KV2S", f"A_KV2S_RET{sx}:"])
        if n == 31:
            fill.setdefault(2, []).extend([lambda e: flag_line(e, 55, FL_PAIR, S_PAIR), f"v_mov_b32 v{V_X+12}, 8"])
            fill.setdefault(4, []).append((f"buffer_load_dwordx2 {v(V_X+14,2)}, v{V_X+12}, s[{S_WS}:{S_WS+3}], s55 offen sc1", "ep"))
        if n is None and p == 1:
            fill.setdefault(15, []).append((f"buffer_load_dword v{V_PD}, v{V_X+1}, s[{S_WO}:{S_WO+3}], s{S_PFO} offen", "pf"))
            fill.setdefault(16, []).append(f"s_add_u32 s{S_PFO}, s{S_PFO}, 512")
        if n is None and p == 3:
            fill.setdefault(15, []).append((f"buffer_load_dword v{V_PD}, v{V_X+2}, s[{S_W2}:{S_W2+3}], s{S_PFD} offen", "pf"))
            fill.setdefault(16, []).append(f"s_add_u32 s{S_PFD}, s{S_PFD}, 256")
        if n is None:
            RW, X_, T_, OU = V_X + 24, V_X + 28, V_T + 6, V_T + 10
            h = p >> 1
            if p == 0 and q0:
                fill.setdefault(0, []).append(f"ds_read_b128 {v(RW,4)}, v{V_HA}")
            elif p == 0:
                fill.setdefault(0, []).append(f"ds_write_b128 v{V_HA}, {v(OU,4)}")
                fill.setdefault(2, []).append(f"ds_read_b128 {v(RW,4)}, v{V_HA} offset:1024")
                fill.setdefault(3, []).append(f"v_add_u32 v{V_HA}, 0x400, v{V_HA}")
            if p % 2 == 0:
                sl = []
                for r in range(2):
                    sl += [f"v_lshlrev_b32 v{X_+2*r}, 16, v{RW+2*h+r}", f"v_and_b32 v{X_+2*r+1}, 0xffff0000, v{RW+2*h+r}"]
                sl += [f"v_exp_f32 v{T_+r}, -v{X_+r}" for r in range(4)]
            else:
                sl = [f"v_fma_f32 v{T_+r}, v{T_+r}, s{S_QS}, s{S_QS}" for r in range(4)]
                sl += [f"v_rcp_f32 v{T_+r}, v{T_+r}" for r in range(4)]
                sl += [f"v_mul_f32 v{T_+r}, v{T_+r}, v{X_+r}" for r in range(4)]
                sl += [f"v_cvt_pk_bf16_f32 v{OU+2*h+r}, v{T_+2*r}, v{T_+2*r+1}" for r in range(2)]
            silu = sl
        else:
            silu = []
        if n == 28:
            fill.setdefault(-1, []).extend([f"ds_write_b128 v{V_HA}, {v(V_T+10,4)}", f"v_subrev_u32 v{V_HA}, 0x1800, v{V_HA}"])
            for k in range(6):
                fill.setdefault(k, []).append(f"ds_read_b128 {a(A_HF+4*k,4)}, v{V_HA} offset:{k*1024}")
            for qb in range(2):
                fill.setdefault(6 + qb, []).append(f"ds_read_b64 {a(A_HF+24+4*qb,2)}, v{V_HA} offset:{6144+8*qb}")
                fill.setdefault(20 + qb, []).extend([f"v_accvgpr_write_b32 a{A_HF+26+4*qb}, 0", f"v_accvgpr_write_b32 a{A_HF+27+4*qb}, 0"])
        so = soft_ops(par)
        mo = max_ops(par ^ 1)
        if n == 32:
            mo = mask_ops(par ^ 1) + mo
        elif n is not None and n >= 29:
            mo = [[f"s_cmp_eq_u32 s3, {n-29}", f"s_cbranch_scc1 A_MASK{n}", f"A_MASK{n}_RET:"]] + mo
            stubs.label(f"A_MASK{n}")
            stubs.nop(8)
            run(stubs, mask_ops(par ^ 1))
            stubs(f"s_branch A_MASK{n}_RET")
        sa = [x for x in so if not x.startswith("v_add")]
        pour(fill, sa, 0, 17)
        pour(fill, late_o, 10, gb + 2)
        pour(fill, mo, 18, 32)
        if opt.get("x_nosilu"):
            silu = [x for x in silu if x.startswith(("ds_", "v_add_u32"))]
        if opt.get("x_pk"):
            adds = [x for x in so if x.startswith("v_add")]
            so = sa + [f"v_add_pk {k}" for k in range(8)]
        pour(fill, silu, 16 if p == 0 else 0, 32)
        if q0:
            kv3 = opt["kv2"][3]
            cut = [0, 32, 64, 96, len(kv3)]
            pour(fill, kv3[cut[p]:cut[p+1]], 0, 12 if p == 3 else 32)
        for x in so:
            if x.startswith("v_add_pk"):
                k = int(x.split()[1])
                S_ = V_S[par]
                acc = V_NM + 8 + 2 * (k >> 2)
                g0 = [g for g in fill for y in fill[g] if isinstance(y, str) and y.startswith(f"v_exp_f32 v{S_+2*k+1},")][0]
                g = min(range(g0 + 1, 32), key=lambda g: (load_of(fill, g), g))
                fill[g].append(f"v_pk_add_f32 {v(acc,2)}, {v(acc,2)}, {v(S_+2*k,2)}")
            elif x.startswith("v_add"):
                src = x.split(",")[-1].strip()
                g0 = [g for g in fill for y in fill[g] if isinstance(y, str) and y.startswith(f"v_exp_f32 {src},")][0]
                g = min(range(g0 + 1, 32), key=lambda g: (load_of(fill, g), g))
                fill[g].append(x)
        if n is None:
            def drop(pred):
                for g in fill:
                    fill[g] = [x for x in fill[g] if not pred(x)]
            txt = lambda x: x[0] if isinstance(x, tuple) else (x if isinstance(x, str) else "")
            if opt.get("x_nobar"):
                drop(lambda x: txt(x) == "s_barrier")
            if opt.get("x_nodma"):
                drop(lambda x: " lds" in txt(x))
            if opt.get("x_novalu"):
                drop(lambda x: txt(x).startswith(("v_exp", "v_add_f32", "v_cvt", "v_max", "v_mul", "v_rcp", "v_fma", "v_lshl", "v_and")))
            for pat in opt.get("x_drop", []):
                drop(lambda x: txt(x).startswith(pat))
            if opt.get("x_noexp"):
                for g in fill:
                    fill[g] = [x.replace("v_exp_f32", "v_mov_b32").replace("v_rcp_f32", "v_mov_b32") if isinstance(x, str) else x for x in fill[g]]
        if opt.get("verbose"):
            print(gap_report(f"step {nm}", fill, 32), [load_of(fill, g) for g in range(32)])
        weave2(e, spine, fill)
        if p == 1:
            e(f"s_cmp_eq_u32 s{S_IT}, s{S_ITSW}")
            e("s_cbranch_scc1 A_SW2")
        rare_check(e, par, nm)
        jitter(e, opt, True)
        SALU_COST[0] = 1

    q0 = Seg("a_q0", stateL, pro.vm)
    q0.label("A_Q0")
    for p in range(4):
        step(q0, p, q0=True)
    q0(f"s_mov_b32 s{S_IT}, 1")
    assert q0.lds == stateL
    if opt.get("a_align") is not None:
        q0.raw(".p2align 6")
        for _ in range(opt["a_align"]):
            q0.raw("s_nop 0")
    lp = Seg("a_loop", stateL, stateV)
    lp.label("A_LOOP")
    for p in range(4):
        step(lp, p)
    lp(f"s_add_u32 s{S_IT}, s{S_IT}, 1")
    for it in range(1, 8):
        if f"ai{it}" in opt.get("sp", []):
            lp(f"s_cmp_lg_u32 s{S_IT}, {it}")
            lp(f"s_cbranch_scc1 A_NS{it}")
            stamp(lp, opt, f"ai{it}", raw=True)
            lp.label(f"A_NS{it}")
    lp(f"s_bitcmp1_b32 20, s{S_IT}")
    lp("s_cbranch_scc1 A_KV2C")
    lp(f"s_cmp_lt_u32 s{S_IT}, 7")
    lp("s_cbranch_scc1 A_LOOP")
    stamp(lp, opt, "a_lend", raw=True)
    jitter(lp, opt)
    assert lp.lds == stateL

    peel = {}
    for n in range(28, 33):
        sg = Seg(f"a_p{n}", stateL, stateV)
        step(sg, n % 4, n)
        stamp(sg, opt, f"p{n}", raw=True)
        if n >= 29 and n < 32:
            sg(f"s_cmp_eq_u32 s3, {n-29}")
            sg(f"s_cbranch_scc1 A_TAILW{n-29}")
        if n == 31:
            flag_test(sg, V_X + 14)
            sg("s_cselect_b32 s53, 2, 0")
            sg(f"s_cmp_ge_u32 s{S_QT}, 8")
            sg(f"s_cselect_b32 s{S_PEND}, s53, 0")
            sg(f"s_mov_b32 s{S_Y1}, s{S_WS}")
            sg(f"s_mov_b32 s{S_Y1+1}, s{S_WS+1}")
            sg(f"s_mul_i32 s{S_Y1+2}, s{S_PEND}, {WS_BYTES//2:#x}")
            sg(f"s_mov_b32 s{S_Y1+3}, 0x20000")
        peel[n] = sg

    def signal(e):
        flag_line(e, 55, FL_PAIR, S_PAIR)
        flag_set(e, S_WS, 55, 1, V_X + 12)
        e(f"s_mov_b32 s{S_PEND}, 0")

    def tail_body(e, par):
        e.wait(lgkm=0)
        for f in range(16, 16 + D):
            e(rd(f, 0, 0))
        so = soft_ops(par)
        sa = [x for x in so if not x.startswith("v_add")]
        run(e, sa[:20])
        spine = [mf(f, par) for f in range(16, 32)]
        fill = {}
        waits(fill, 16, 32, 16)
        for f in range(16, 32):
            if f + D < 32:
                fill.setdefault(f - 16, []).append(rd(f + D, 0, 0))
        fill.setdefault(0, []).extend(sa[20:])
        pour(fill, [x for x in so if x.startswith("v_add")], 1, 14)
        weave2(e, spine, fill)

    t3 = Seg("a_tail1", stateL, stateV)
    t3(f"v_add_u32 v{V_VA}, 0x4000, v{V_VA}")
    t3.label("A_TAIL1")
    tail_body(t3, 1)
    t3.label("A_FIN")
    t0 = Seg("a_tail0", stateL, stateV)
    t0.label("A_TAILW0")
    t0(f"v_add_u32 v{V_VA}, 0x8000, v{V_VA}")
    t0("s_branch A_TAIL0")
    t0.label("A_TAILW1")
    t0(f"v_add_u32 v{V_VA}, 0xc000, v{V_VA}")
    run(t0, e_dma("e0")[5:])
    t0("s_branch A_TAIL1")
    t0.label("A_TAILW2")
    t0(f"v_add_u32 v{V_VA}, 0x10000, v{V_VA}")
    t0.label("A_TAIL0")
    tail_body(t0, 0)
    t0("s_cmp_lg_u32 s3, 0")
    t0("s_cbranch_scc1 A_FIN")
    t0.wait_force(vm=0)
    t0("s_barrier")
    t0(f"s_mov_b32 s58, {EO[0]}")
    t0(f"s_mov_b32 s59, {E2[0]}")
    run(t0, e_dma("e0"))
    t0(f"s_cmp_eq_u32 s{S_PEND}, 0")
    t0("s_cbranch_scc1 A_FIN")
    signal(t0)
    t0("s_branch A_FIN")

    def ret_chain(e, names):
        for k, nm in enumerate(names[:-1]):
            e(f"s_cmp_eq_u32 s{S_RET}, {k}")
            e(f"s_cbranch_scc1 A_RET_{nm}")
        e(f"s_branch A_RET_{names[-1]}")

    def across(e, regs, tmp, op):
        for step in (16, 32):
            for k, r in enumerate(regs):
                e(f"v_mov_b32 v{tmp+k}, v{r}")
            e.nop(2)
            for k, r in enumerate(regs):
                e(f"v_permlane{step}_swap_b32 v{r}, v{tmp+k}")
            for k, r in enumerate(regs):
                e(f"{op} v{r}, v{r}, v{tmp+k}")

    def row_max(e, S):
        t = V_T
        for qb in range(2):
            b = S + 8 * qb
            e(f"v_max3_f32 v{t+qb}, v{b}, v{b+1}, v{b+2}")
            e(f"v_max3_f32 v{t+2+qb}, v{b+3}, v{b+4}, v{b+5}")
            e(f"v_max3_f32 v{t+qb}, v{t+qb}, v{b+6}, v{b+7}")
            e(f"v_max_f32 v{t+qb}, v{t+qb}, v{t+2+qb}")
        across(e, (t, t + 1), t + 2, "v_max_f32")

    def rare(par):
        e = Seg(f"a_rare{par}", stateL, stateV)
        e.label(f"A_RARE{par}")
        S = V_S[par ^ 1]
        t = V_T
        row_max(e, S)
        for qb in range(2):
            e(f"v_max_f32 v{t+qb}, 0, v{t+qb}")
            e(f"v_exp_f32 v{t+4+qb}, -v{t+qb}")
        for r in range(16):
            e(f"v_sub_f32 v{S+r}, v{S+r}, v{t+(r>>3)}")
        for r in range(8):
            e(f"v_sub_f32 v{V_NM+r}, v{V_NM+r}, v{t+(r>>2)}")
        e(f"v_mul_f32 v{V_L0}, v{V_L0}, v{t+4}")
        e(f"v_mul_f32 v{V_L1}, v{V_L1}, v{t+5}")
        for r in range(128):
            e(f"v_mul_f32 v{V_O+r}, v{V_O+r}, v{t+4+((r>>3)&1)}")
        ret_chain(e, rare_sites[par])
        return e

    r0, r1 = rare(0), rare(1)

    fs = Seg("a_first", stateL, stateV)
    e = fs
    e.label("A_FIRST")
    t = V_T
    row_max(e, V_S[0])
    for r in range(16):
        e(f"v_sub_f32 v{V_S[0]+r}, v{V_S[0]+r}, v{t+(r>>3)}")
    for r in range(8):
        e(f"v_sub_f32 v{V_NM+r}, 0, v{t+(r>>2)}")
    e(f"s_cmp_eq_u32 s{S_RET}, 0")
    e("s_cbranch_scc1 A_Q0")
    e(f"s_cmp_eq_u32 s{S_IT}, 7")
    e("s_cbranch_scc1 A_RET_P29")
    e(f"s_cmp_eq_u32 s{S_IT}, 0")
    e("s_cbranch_scc1 A_RET_Q1")
    e("s_branch A_RET_L1")

    sw1 = Seg("a_sw1", stateL, stateV)
    e = sw1
    e.label("A_SW1")
    for r in range(64):
        e(f"v_accvgpr_mov_b32 a{A_Q+r}, a{A_Q2+r}")
    e(f"v_mov_b32 v{V_MS}, v{V_NM}")
    e(f"v_mov_b32 v{V_MS+1}, v{V_NM+4}")
    for r in range(0, 8, 2):
        e(f"v_mov_b64 {v(V_NM+r,2)}, 0")
    e(f"s_cmp_eq_u32 s{S_IT}, 7")
    e("s_cbranch_scc1 A_SW1_RET_P29")
    e(f"s_cmp_eq_u32 s{S_IT}, 0")
    e("s_cbranch_scc1 A_SW1_RET_Q1")
    e("s_branch A_SW1_RET_L1")

    def part_addr(e):
        e(f"s_lshl_b32 s54, s{S_PAIR}, 2")
        e("s_add_u32 s54, s54, s3")
        e("s_lshl_b32 s55, s54, 10")
        e(f"s_add_u32 s55, s55, {ML_OFF}")
        e("s_lshl_b32 s54, s54, 14")
        e(f"s_add_u32 s54, s54, {OP_OFF}")

    sw2 = Seg("a_sw2", stateL, stateV)
    e = sw2
    e.label("A_SW2")
    part_addr(e)
    t = V_X + 12
    e(f"v_lshrrev_b32 v{t+2}, 1, v{V_L16}")
    e(f"buffer_store_dwordx2 {v(V_MS,2)}, v{t+2}, s[{S_WS}:{S_WS+3}], s55 offen sc1")
    e(f"buffer_store_dwordx2 {v(V_L0,2)}, v{t+2}, s[{S_WS}:{S_WS+3}], s55 offen offset:512 sc1")
    for k in range(16):
        if k and k % 4 == 0:
            e("s_add_u32 s54, s54, 4096")
        u = t + 4 + (k % 2) * 4
        for r in range(4):
            o = V_O + 8 * k + 2 * r
            e(f"v_cvt_pk_bf16_f32 v{u+r}, v{o}, v{o+1}")
        for r in range(4):
            e(f"v_mov_b64 {v(V_O+8*k+2*r,2)}, 0")
        e(f"buffer_store_dwordx4 {v(u,4)}, v{V_L16}, s[{S_WS}:{S_WS+3}], s54 offen offset:{(k%4)*1024} sc1")
    e(f"v_mov_b64 {v(V_L0,2)}, 0")
    e(f"s_mov_b32 s{S_PEND}, 1")
    e(f"s_mov_b32 s{S_RET}, 1")
    e("s_branch A_FIRST")

    sig = Seg("a_sig", stateL, stateV)
    sig.label("A_SIG")
    signal(sig)
    sig(f"s_cmp_eq_u32 s{S_IT}, 0")
    sig("s_cbranch_scc1 A_SIG_RET_Q")
    sig("s_branch A_SIG_RET")
    S_HA, S_SLOT, V_FO, kv3 = opt["kv2"]
    sig.label("A_KV2S")
    flag_line(sig, 55, FL_KV2, S_HA)
    sig(f"s_lshl_b32 s53, s{S_IT}, 13")
    sig("s_add_u32 s55, s55, s53")
    flag_set(sig, S_WS, 55, f"s{S_SLOT}", V_X + 12)
    sig(f"s_cmp_eq_u32 s{S_IT}, 0")
    sig("s_cbranch_scc1 A_KV2S_RET_Q")
    sig("s_branch A_KV2S_RET")
    sig.label("A_KV2L")
    flag_line(sig, 85, FL_KV2, S_HEAD)
    sig(f"s_lshr_b32 s53, s{S_IT}, 1")
    sig("s_lshl_b32 s53, s53, 13")
    sig("s_add_u32 s85, s85, s53")
    sig.raw(f"buffer_load_dwordx2 v[6:7], v{V_FO}, s[{S_WS}:{S_WS+3}], s85 offen sc1", "pf")
    sig("s_branch A_KV2L_RET")
    sig.label("A_KV2C")
    sig.wait_force(vm=8)
    if not NEPF:
        sig(f"s_cmp_lg_u32 s{S_IT}, 4")
        sig("s_cbranch_scc1 A_NOEPF")
        sig(f"global_load_dword v{V_PD}, v{V_X+3}, s[80:81]", "pf")
        sig.label("A_NOEPF")
    sig("s_mov_b32 s53, 0")
    sig.label("A_KV2P")
    flag_test(sig, 6)
    sig("s_cbranch_scc1 A_LOOP")
    sig("s_sleep 2")
    sig(f"buffer_load_dwordx2 v[6:7], v{V_FO}, s[{S_WS}:{S_WS+3}], s85 offen sc1")
    sig.wait_force(vm=0)
    sig("s_add_u32 s53, s53, 1")
    sig(f"s_cmp_lt_u32 s53, {opt.get('poll_max', 200000)}")
    sig("s_cbranch_scc1 A_KV2P")
    sig("s_branch A_LOOP")
    sig.label("A_ALTW")
    sig.wait_force(vm=27)
    sig("s_branch A_ALTW_RET")

    e = Seg("a_fin", [], stateV)
    stamp(e, opt, 2)
    stamp(e, opt, "a_fin")
    t = V_T
    CT = V_S[0]
    e(f"s_cmp_ge_u32 s{S_QT}, 8")
    e("s_cbranch_scc1 A_MERGE")
    across(e, (V_L0, V_L1), t, "v_add_f32")
    e(f"v_rcp_f32 v{t}, v{V_L0}")
    e(f"v_rcp_f32 v{t+2}, v{V_L1}")
    e.nop(1)
    e(f"v_mov_b32 v{t+1}, v{t}")
    e(f"v_mov_b32 v{t+3}, v{t+2}")
    for k in range(64):
        e(f"v_pk_mul_f32 {v(V_O+2*k,2)}, {v(V_O+2*k,2)}, {v(t+2*((k>>2)&1),2)}")
        if k:
            e(f"v_cvt_pk_bf16_f32 v{CT+k-1}, v{V_O+2*k-2}, v{V_O+2*k-1}")
    e(f"v_cvt_pk_bf16_f32 v{CT+63}, v{V_O+126}, v{V_O+127}")
    e("s_branch A_EPI")
    fin = e

    ML = V_X + 16

    def part_loads(e):
        part_addr(e)
        e(f"v_lshrrev_b32 v{V_X+12}, 1, v{V_L16}")
        e(f"buffer_load_dwordx2 {v(ML,2)}, v{V_X+12}, s[{S_WS}:{S_WS+3}], s55 offen sc1")
        e(f"buffer_load_dwordx2 {v(ML+2,2)}, v{V_X+12}, s[{S_WS}:{S_WS+3}], s55 offen offset:512 sc1")
        for k in range(16):
            if k and k % 4 == 0:
                e("s_add_u32 s54, s54, 4096")
            e(f"buffer_load_dwordx4 {a(A_Q2+4*k,4)}, v{V_L16}, s[{S_WS}:{S_WS+3}], s54 offen offset:{(k%4)*1024} sc1")

    mg = Seg("a_merge", [], stateV)
    e = mg
    e.label("A_MERGE")
    e(f"s_cmp_eq_u32 s{S_PEND}, 2")
    e("s_cbranch_scc1 A_HAVE")
    flag_line(e, 55, FL_PAIR, S_PAIR)
    e(f"v_mov_b32 v{t}, 8")
    e("s_mov_b32 s53, 0")
    e.label("A_POLL")
    e(f"buffer_load_dwordx2 {v(t+2,2)}, v{t}, s[{S_WS}:{S_WS+3}], s55 offen sc1")
    e.wait_force(vm=0)
    flag_test(e, t + 2)
    e("s_cbranch_scc1 A_POLL_OK")
    e("s_sleep 4")
    e("s_add_u32 s53, s53, 1")
    e(f"s_cmp_lt_u32 s53, {opt.get('poll_max', 200000)}")
    e("s_cbranch_scc1 A_POLL")
    e.label("A_POLL_OK")
    part_loads(e)
    e.label("A_HAVE")
    W = V_X + 20
    for qb in range(2):
        nm = V_NM + 4 * qb
        c1, c2 = t + 2 * qb, t + 4 + 2 * qb
        e(f"v_min_f32 v{W+qb}, v{nm}, v{ML+qb}")
        e(f"v_sub_f32 v{c1}, v{W+qb}, v{nm}")
        e(f"v_sub_f32 v{c2}, v{W+qb}, v{ML+qb}")
        e(f"v_exp_f32 v{c1}, v{c1}")
        e(f"v_exp_f32 v{c2}, v{c2}")
        e.nop(1)
        e(f"v_mul_f32 v{W+qb}, v{c2}, v{ML+2+qb}")
        e(f"v_fma_f32 v{W+qb}, v{V_L0+qb}, v{c1}, v{W+qb}")
    across(e, (W, W + 1), W + 2, "v_add_f32")
    for qb in range(2):
        c1, c2 = t + 2 * qb, t + 4 + 2 * qb
        e(f"v_rcp_f32 v{W+qb}, v{W+qb}")
        e.nop(1)
        e(f"v_mul_f32 v{c1}, v{c1}, v{W+qb}")
        e(f"v_mul_f32 v{c2}, v{c2}, v{W+qb}")
        e(f"v_mov_b32 v{c1+1}, v{c1}")
        e(f"v_mov_b32 v{c2+1}, v{c2}")
    for k in range(64):
        e(f"v_pk_mul_f32 {v(V_O+2*k,2)}, {v(V_O+2*k,2)}, {v(t+2*((k>>2)&1),2)}")
    for k in range(64):
        u = t + 8 + (k % 2) * 2
        e(f"v_accvgpr_read_b32 v{u+1}, a{A_Q2+k}")
        if k:
            e(f"v_cvt_pk_bf16_f32 v{CT+k-1}, v{V_O+2*k-2}, v{V_O+2*k-1}")
        e(f"v_lshlrev_b32 v{u}, 16, v{u+1}")
        e(f"v_and_b32 v{u+1}, 0xffff0000, v{u+1}")
        e(f"v_pk_fma_f32 {v(V_O+2*k,2)}, {v(u,2)}, {v(t+4+2*((k>>2)&1),2)}, {v(V_O+2*k,2)}")
    e(f"v_cvt_pk_bf16_f32 v{CT+63}, v{V_O+126}, v{V_O+127}")

    e = Seg("a_epi", [], [])
    e.label("A_EPI")
    stamp(e, opt, 3)
    stamp(e, opt, "a_epi")
    jitter(e, opt)
    jitter(e, opt, True)
    YA = (V_O, V_O + 16)
    YP = V_O + 32
    VC = V_O + 48
    ED = opt.get("e_depth", 7)
    NFE, NT = 48, 7
    K16 = opt.get("k16", 1)
    NF = NFE * NT

    def eunit(f):
        c, r = divmod(f, NFE)
        seg, r = divmod(r, 24)
        ks, b = divmod(r, 2)
        return c, seg, ks, b

    def erd(f):
        c, seg, ks, b = eunit(f)
        off = (EO[c % 3] + 32 * ks * 128) if ks < 8 else (E2[c % 3] + 32 * (ks - 8) * 128)
        base = (V_EA, VC, VC + 4)[off >> 16] + seg * 2 + b
        off &= 0xffff
        return [f"ds_read_b64_tr_b16 {a(A_F+(f%8)*4+2*u,2)}, v{base} offset:{off+u*2048}" for u in range(1 if (ks == 11 and K16) else 2)]

    def ecvt(c, seg):
        ops = [f"v_cvt_pk_bf16_f32 v{YP+8*seg+r}, v{YA[seg]+2*r}, v{YA[seg]+2*r+1}" for r in range(8)]
        st = [(f"buffer_store_dwordx4 {v(YP+8*seg+4*k,4)}, v{V_L16}, s[{S_WS}:{S_WS+3}], s62 offen offset:{seg*2048+k*1024}{YM}",
               "ya" if c < 4 else "yb") for k in range(2)]
        if seg == 1 and c < NT - 1:
            st.append("s_add_u32 s62, s62, 4096")
        return ops, st

    def edma_at(t):
        return [[f"s_mov_b32 s58, {EO[t%3]}", f"s_mov_b32 s59, {E2[t%3]}"]] + e_dma(f"e{t}")

    for k in range(4):
        e(f"v_add_u32 v{VC+k}, 0x10000, v{V_EA+k}")
        e(f"v_add_u32 v{VC+4+k}, 0x20000, v{V_EA+k}")
    SALU_COST[0] = SC
    e.wait_force(vm=0)
    e("s_barrier")
    for f in range(ED):
        run(e, erd(f))
    spine, fill = [], {}
    for f in range(NF):
        c, seg, ks, b = eunit(f)
        pr = []
        for qb in range(2):
            B = v(CT + (ks * 2 + qb) * 4, 4) if ks < 8 else a(A_HF + ((ks - 8) * 2 + qb) * 4, 4)
            acc = v(YA[seg] + qb * 8 + b * 4, 4)
            if ks == 11 and K16:
                pr.append(f"v_mfma_f32_16x16x16_bf16 {acc}, {a(A_F+(f%8)*4,2)}, {a(A_HF+(6+qb)*4,2)}, {acc}")
            else:
                pr.append(f"{M16} {acc}, {a(A_F+(f%8)*4,4)}, {B}, {'0' if ks == 0 else acc}")
        spine.append(tuple(pr))
        nf = f + ED
        if nf < NF:
            if nf % NFE == 0:
                t = nf // NFE
                ops = [lambda e, t=t: e.wait_tag(f"e{t}")]
                if t == 6:
                    ops.append(lambda e: e.wait_tag("ya"))
                if t <= 4:
                    ops.append(lambda e: e.wait(lgkm=0))
                fill.setdefault(f, []).append(ops + ["s_barrier"])
            fill.setdefault(f, []).extend(erd(nf))
        BW = opt.get("b_wait", 2)
        if f % BW == 0:
            rr = a(A_F + (min(f + BW - 1, NF - 1) % 8) * 4, 4)
            fill.setdefault(f - 1, []).append(waiter(rr, opt.get('wait_cost', 0.25)))
    if hooks:
        hooks(fill, NFE, ED)
    spread(fill, edma_at(1), 0, 20)
    spread(fill, edma_at(2), 20, 52)
    for t in range(3, NT):
        g0 = max((t - 2) * NFE - ED + 1, 52)
        spread(fill, edma_at(t), g0, (t - 1) * NFE - ED)
    for c in range(NT):
        o, st = ecvt(c, 0)
        pour(fill, o + st, c * NFE + 27, c * NFE + 46)
        if c < NT - 1:
            o, st = ecvt(c, 1)
            if c == NT - 2 and hooks:
                pour(fill, o, (c + 1) * NFE + 4, (c + 1) * NFE + 21)
                fill.setdefault((c + 1) * NFE + 25, []).append(st[0])
                fill.setdefault((c + 1) * NFE + 26, []).extend(st[1:])
            else:
                pour(fill, o + st, (c + 1) * NFE + 4, (c + 1) * NFE + 21)
    if opt.get("verbose"):
        print(gap_report("epilogue", fill, NF), [load_of(fill, g) for g in range(NF)])
    weave2(e, spine, fill)
    SALU_COST[0] = 1
    e.nop(8)
    o, st = ecvt(NT - 1, 1)
    run(e, o + st)
    if finish:
        finish(e)
    e.label(end_label)
    e("s_endpgm")
    epi = e

    pl = [peel[n] for n in range(28, 33)]
    segs = [pro, q0, lp] + pl + [t3, fin, mg, epi, t0, stubs, r0, r1, fs, sw1, sw2, sig]
    traces = [
        [pro, fs, q0, lp, lp] + pl + [t3, fin, epi],
        [lp, peel[28], peel[29], t0, fin, mg, epi],
        [lp, r1, lp], [peel[28], r0, peel[29]], [peel[28], sw1, peel[29], sw2, fs, peel[30]], [sig], [stubs],
        [peel[30], peel[31], t0], [peel[29], peel[30], t3],
    ]
    return segs, traces
```

```python
MB = 1 << 20
KV_OFF = 0
Q_OFF = 32 * MB
H_OFF = 48 * MB
OP_OFF = 56 * MB
ML_OFF = 72 * MB
Y_OFF = 80 * MB
XN_OFF = 112 * MB
FL_OFF = 116 * MB
STAMP_OFF = 128 * MB
DUMMY_OFF = 192 * MB
WS_BYTES = 256 * MB

X_BYTES = 2048 * 448 * 2
CKV_BYTES = 2048 * 1024 * 2
WQ_BYTES = 448 * 4096 * 2
WU_BYTES = 1024 * 4096 * 2
WO_BYTES = 4096 * 448 * 2
W1_BYTES = 448 * 1792 * 2
W2_BYTES = 1792 * 448 * 2
OUT_BYTES = 2048 * 448 * 2

MFMA = "v_mfma_f32_32x32x16_bf16"
QSCALE = 1.4426950408889634 / 16.0


def v(b, n=1):
    return f"v{b}" if n == 1 else f"v[{b}:{b+n-1}]"


def a(b, n=1):
    return f"a{b}" if n == 1 else f"a[{b}:{b+n-1}]"


def s(b, n=1):
    return f"s{b}" if n == 1 else f"s[{b}:{b+n-1}]"


def srd(e, d, ptr, nbytes):
    e(f"s_mov_b32 s{d}, s{ptr}")
    e(f"s_mov_b32 s{d+1}, s{ptr+1}")
    e(f"s_mov_b32 s{d+2}, {nbytes:#x}")
    e(f"s_mov_b32 s{d+3}, 0x20000")


def load_kernargs(e):
    e("s_load_dwordx16 s[64:79], s[0:1], 0")
    e("s_load_dwordx8 s[80:87], s[0:1], 64")


P_X, P_CKV, P_WQ, P_WUK, P_WUV, P_WO, P_W1, P_W2, P_OUT, P_DBG, P_WS = 64, 66, 68, 70, 72, 74, 78, 80, 82, 84, 86


def kd(name, vgpr, acc, sgpr=102):
    return f""".amdhsa_kernel {name}
  .amdhsa_next_free_vgpr {vgpr}
  .amdhsa_next_free_sgpr {sgpr}
  .amdhsa_accum_offset {acc}
  .amdhsa_group_segment_fixed_size 0
  .amdhsa_kernarg_size 96
  .amdhsa_user_sgpr_count 2
  .amdhsa_user_sgpr_kernarg_segment_ptr 1
  .amdhsa_system_sgpr_workgroup_id_x 1
.end_amdhsa_kernel
"""


def f32(x):
    import struct
    return "0x%08x" % struct.unpack("<I", struct.pack("<f", x))[0]


def stamp(e, opt, idx, raw=False):
    if isinstance(idx, str):
        pts = opt.get("sp", [])
        if idx not in pts:
            return
        idx = pts.index(idx)
    elif opt.get("sp") and e.name.startswith(opt.get("spk", "k1")):
        return
    if opt.get("stamps"):
        f = e.raw if raw else e
        f("s_memtime s[100:101]")
        f("s_waitcnt lgkmcnt(0)")
        f(f"s_mov_b32 s{88+2*idx}, s100")
        f("s_memrealtime s[100:101]")
        f("s_waitcnt lgkmcnt(0)")
        f(f"s_mov_b32 s{89+2*idx}, s100")


def stamp_flush(e, opt, kern, srd_ws, n, waves=4):
    if opt.get("stamps") and opt.get("dbgwg") is not None:
        e(f"s_cmp_lg_u32 s2, {opt['dbgwg']}")
        e("s_cbranch_scc1 ST_SKIP")
        e("s_cmp_lg_u32 s3, 3")
        e("s_cbranch_scc1 ST_SKIP")
        e("s_load_dwordx2 s[4:5], s[0:1], 80")
        e.wait_force(lgkm=0)
        e("v_mov_b32 v2, 0")
        for i in range(n - 1):
            e(f"s_sub_u32 s6, s{91+2*i}, s{89+2*i}")
            e("v_mov_b32 v3, s6")
            e(f"global_store_dword v2, v3, s[4:5] offset:{4+4*i}")
            e(f"s_sub_u32 s6, s{90+2*i}, s{88+2*i}")
            e("v_mov_b32 v3, s6")
            e(f"global_store_dword v2, v3, s[4:5] offset:{32+4*i}")
        e.label("ST_SKIP")
    elif opt.get("stamps"):
        e(f"s_mul_i32 s7, s2, {waves}")
        e("s_add_u32 s7, s7, s3")
        e("s_lshl_b32 s7, s7, 6")
        e(f"s_add_u32 s7, s7, {STAMP_OFF + kern*MB}")
        e("v_mov_b32 v2, 0")
        for i in range(2 * n):
            e(f"v_mov_b32 v3, s{88+i}")
            e(f"buffer_store_dword v3, v2, s[{srd_ws}:{srd_ws+3}], s7 offen offset:{4*i}")


S_N0, S_N1 = 86, 87
NONCE_K = 0x5bd1e995
FL_XN, FL_KV, FL_Y, FL_PAIR, FL_YA, FL_KV2 = 0, 16, 32, 48, 176, 192
LDS_NONCE = 0x27ff0


def flag_line(e, dst, base, idx_sreg):
    e(f"s_lshl_b32 s{dst}, s{idx_sreg}, 9")
    e(f"s_add_u32 s{dst}, s{dst}, {FL_OFF + base*512}")


def flag_set(e, ws, line_sreg, slot, vt):
    e(f"v_mov_b32 v{vt}, s{S_N0}")
    e(f"v_mov_b32 v{vt+1}, s{S_N1}")
    e(f"v_mov_b32 v{vt+2}, {slot*8 if isinstance(slot, int) else slot}")
    e("s_mov_b64 exec, 1")
    e(f"buffer_store_dwordx2 v[{vt}:{vt+1}], v{vt+2}, s[{ws}:{ws+3}], s{line_sreg} offen sc1")
    e("s_mov_b64 exec, -1")


def flag_test(e, vd, sa=4):
    e(f"v_cmp_eq_u32 vcc, s{S_N0}, v{vd}")
    e(f"v_cmp_eq_u32 s[{sa}:{sa+1}], s{S_N1}, v{vd+1}")
    e.nop(1)
    e(f"s_and_b64 vcc, vcc, s[{sa}:{sa+1}]")
    e("s_cmp_eq_u64 vcc, exec")


_JN = [0]


def jitter(e, opt, per_wave=False):
    if not opt.get("jitter"):
        return
    _JN[0] += 1
    k = _JN[0]
    e.raw("s_memtime s[100:101]")
    e.raw("s_waitcnt lgkmcnt(0)")
    if per_wave:
        e.raw("s_lshr_b32 s100, s100, 4")
    else:
        e.raw(f"s_mul_i32 s100, s2, {2654435761 >> (k % 7) | 1}")
        e.raw(f"s_lshr_b32 s100, s100, {5 + k % 9}")
    e.raw("s_and_b32 s100, s100, 7")
    e.raw(f"s_cbranch_scc1 JIT{k}")
    for _ in range(opt["jitter"] if not per_wave else 1):
        e.raw("s_sleep 127" if not per_wave else "s_sleep 20")
    e.raw(f"JIT{k}:")
```

```python
from emit import *
from common import *
import attn
from attn import S_HEAD, S_QT, S_W4K, S_PAIR, S_WS, S_WO, S_W2, A_Q, A_Q2, A_HF, V_L16, V_PD
import math

NAME = "parallel_sum__compressed_kv_cla__dense_activation_silu__prompt_kernel"
LDS_BYTES = 160 * 1024
S_CKV, S_W, S_X, S_WQ, S_W1, S_QST, S_OUT = 8, 12, 20, 24, 28, 68, 24
SA, SB, S_LP, S_W8K, S_KVSTR, S_KIND, S_BO, S_KVBASE, S_KVC, S_QB, S_QC, S_XNB, S_XNF = 53, 54, 55, 56, 57, 58, 59, 60, 61, 62, 63, 66, 67
S_HA, S_KVSLOT = 76, 77
V_PA, V_PB, V_FO, V_FL = 3, 4, 5, 6
V_AA, V_AB, V_DA, V_DB = 8, 12, 16, 24
V_FA, V_FB, V_XN = 32, 64, 96
V_AB16, V_AA16, V_WR, V_ST = 8, 212, 224, 7
V_DQ, V_D1, V_AT, V_T = 208, 212, 216, 224
SLOT_ORDER = [8, 9, 0, 1, 4, 5, 2, 3, 6, 7]
WIN = {0: 0, 1: 0, 2: 0x8000, 3: 0x8000, 4: 0x8000, 5: 0x8000, 6: 0x18000, 7: 0x18000, 8: 0x18000, 9: 0x18000}
S_KVE, S_EARLY, S_GOTQ, S_GM = 24, 72, 75, 72
H_ACC = (64, 80, 224, 240)
V_GP, V_GP2 = V_XN + 46, V_XN + 80
VPQ, VPK = V_XN + 4, V_XN + 8

def gen_mega(opt):
    ST = opt.get("kv_store_mod", " sc1")
    attn.KVM[0] = opt.get("kv_load_mod", "")
    opt = dict(opt)
    opt.setdefault("y_store_mod", " sc1")
    opt["spk"] = ""
    PFD = 2
    GP2 = opt.get('gp2', 1)
    WC = opt.get('wait_cost', 0.25)
    XNM = opt.get('xn_mod', ' sc1')
    A16 = opt.get("a16", 1)
    NPF = 2
    PMAX = opt.get("poll_max", 200000)
    e = Seg("m_pro")
    e.label(NAME)
    e("s_cmp_ge_u32 s2, 256")
    e("s_cbranch_scc1 M_END")
    stamp(e, opt, "entry")
    jitter(e, opt)
    load_kernargs(e)
    e("s_getpc_b64 s[50:51]")
    e.label("M_PC0")
    if not opt.get("no_cpf0"):
        e("s_lshr_b32 s5, s2, 3")
        e("s_lshl_b32 s5, s5, 11")
        e("v_lshrrev_b32 v1, 4, v0")
        e("v_lshl_add_u32 v1, v1, 7, s5")
        e("v_min_u32 v1, M_B-M_PC0, v1")
        e(f"global_load_dword v{V_PD}, v1, s[50:51]", "pf")
    e("v_lshrrev_b32 v1, 6, v0")
    e("v_and_b32 v0, 63, v0")
    e("v_readfirstlane_b32 s3, v1")
    e("s_and_b32 s4, s2, 7")
    e("s_lshl_b32 s4, s4, 1")
    e("s_lshr_b32 s5, s2, 3")
    e("s_and_b32 s34, s5, 7")
    e("s_lshr_b32 s35, s5, 3")
    e("s_and_b32 s42, s35, 1")
    e("s_add_u32 s42, s42, s4")
    e(f"s_lshr_b32 s{S_KIND}, s35, 1")
    e(f"s_lshr_b32 s{S_QT}, s5, 1")
    e(f"s_and_b32 s{S_HEAD}, s5, 1")
    e(f"s_add_u32 s{S_HEAD}, s{S_HEAD}, s4")
    e("s_and_b32 s36, s3, 1")
    e("s_lshr_b32 s37, s3, 1")
    L31, HI, G, R4, C = 224, 225, 226, 227, 228
    e(f"v_and_b32 v{L31}, 31, v0")
    e(f"v_lshrrev_b32 v{HI}, 5, v0")
    e(f"v_lshrrev_b32 v{G}, 4, v0")
    e(f"v_bfe_u32 v{R4}, v0, 2, 2")
    e(f"v_and_b32 v{C}, 3, v0")
    e("s_and_b32 s7, s35, 1")
    e("s_lshl_b32 s7, s7, 1")
    e("s_add_u32 s7, s7, s37")
    e("s_sub_u32 s39, 3, s7")
    e("s_add_u32 s7, s7, 4")
    e("s_cmp_ge_u32 s35, 2")
    e("s_cselect_b32 s7, s7, s39")
    e("s_lshl_b32 s7, s7, 3")
    e("s_add_u32 s7, s7, s34")
    e("s_lshl_b32 s7, s7, 1")
    e("s_add_u32 s7, s7, s36")
    e("s_lshl_b32 s7, s7, 4")
    e("v_lshrrev_b32 v6, 2, v0")
    e("v_add_u32 v6, s7, v6")
    e(f"v_lshlrev_b32 v{V_PA}, 11, v6")
    e("v_bfe_u32 v7, v0, 1, 1")
    e(f"v_lshl_add_u32 v7, v7, 7, v{V_PA}")
    e("s_lshl_b32 s7, s34, 3")
    e("s_lshl_b32 s39, s3, 1")
    e("s_add_u32 s7, s7, s39")
    e(f"v_add_u32 v6, s7, v{HI}")
    e("v_lshlrev_b32 v6, 13, v6")
    e("v_bfe_u32 v5, v0, 3, 2")
    e("v_lshl_add_u32 v6, v5, 7, v6")
    e("s_lshl_b32 s7, s42, 9")
    e(f"v_add_u32 v{V_PB}, s7, v6")
    e("v_bfe_u32 v6, v0, 2, 1")
    e(f"v_lshl_add_u32 v5, v6, 19, v{V_PB}")
    e("v_lshrrev_b32 v1, 3, v0")
    e.wait_force(lgkm=0)
    e(f"s_mov_b32 s{S_HA}, s42")
    e(f"s_lshl_b32 s{S_KVSLOT}, s{S_KIND}, 3")
    e(f"s_add_u32 s{S_KVSLOT}, s{S_KVSLOT}, s34")
    e(f"s_lshl_b32 s{S_KVSLOT}, s{S_KVSLOT}, 3")
    srd(e, S_CKV, P_CKV, CKV_BYTES)
    e(f"s_cmp_eq_u32 s{S_KIND}, 0")
    e(f"s_cselect_b32 s{S_W}, s{P_WUK}, s{P_WUV}")
    e(f"s_cselect_b32 s{S_W+1}, s{P_WUK+1}, s{P_WUV+1}")
    e(f"s_mov_b32 s{S_W+2}, {WU_BYTES:#x}")
    e(f"s_mov_b32 s{S_W+3}, 0x20000")
    stamp(e, opt, 0)
    stamp(e, opt, "karg")
    e(f"buffer_load_dword v{V_PD}, v7, s[{S_CKV}:{S_CKV+3}], 0 offen", "pf")
    e(f"buffer_load_dword v{V_PD}, v5, s[{S_W}:{S_W+3}], 0 offen", "pf")
    e("v_add_u32 v144, 256, v7")
    e("v_add_u32 v145, 0x100000, v5")
    e(f"v_add_u32 v{V_PA}, {PFD*128}, v{V_PA}")
    e(f"v_add_u32 v{V_PB}, {PFD*0x80000}, v{V_PB}")
    e("s_lshl_b32 s7, s36, 1")
    e("s_sub_u32 s39, 3, s7")
    e("s_add_u32 s7, s7, 4")
    e("s_cmp_eq_u32 s37, 1")
    e("s_cselect_b32 s7, s7, s39")
    e("s_mov_b32 s39, 0xfff80000")
    e("s_cselect_b32 s39, 0x80000, s39")
    e("s_lshl_b32 s7, s7, 3")
    e("s_add_u32 s7, s7, s34")
    e("s_lshl_b32 s7, s7, 5")
    e("v_add_u32 v6, s7, v1")
    e("v_lshlrev_b32 v6, 11, v6")
    e("v_and_b32 v7, 7, v0")
    e(f"v_xor_b32 v7, v7, v{G}")
    e("v_lshlrev_b32 v7, 4, v7")
    for j in range(8):
        if j == 4:
            e("v_add_u32 v6, s39, v6")
        e(f"v_xor_b32 v{V_DA+j}, {((j ^ (j >> 1)) & 1) << 6}, v7")
        e(f"v_add_u32 v{V_DA+j}, v{V_DA+j}, v6")
        if j & 3:
            e(f"v_add_u32 v{V_DA+j}, {(j&3)*(16384-1024)}, v{V_DA+j}")
    e("s_lshl_b32 s7, s3, 4")
    e(f"v_add_u32 v6, s7, v{HI}")
    e("v_lshlrev_b32 v6, 13, v6")
    e(f"s_lshl_b32 s7, s{S_HA}, 9")
    e("v_add_u32 v6, s7, v6")
    e(f"v_lshrrev_b32 v7, 2, v{L31}")
    e(f"v_xor_b32 v7, v7, v{HI}")
    e("v_lshlrev_b32 v7, 6, v7")
    e(f"v_lshl_add_u32 v7, v{C}, 4, v7")
    for j in range(8):
        e(f"v_xor_b32 v{V_DB+j}, {((j&1)<<7) ^ (48 * ((j >> 2) & 1) if A16 else 0)}, v7")
        e(f"v_add_u32 v{V_DB+j}, v{V_DB+j}, v6")
        if j:
            e(f"v_add_u32 v{V_DB+j}, {j*16384-(j&3)*1024}, v{V_DB+j}")
    e(f"s_lshl_b32 s{S_W8K}, s3, 13")
    e(f"s_mov_b32 s{SA}, 0")
    e(f"s_mov_b32 s{SB}, 0")

    def dma_items(b):
        it = []
        for j in range(8):
            pre = [f"s_add_u32 m0, s{S_W8K}, {b*32768 + (j>>2)*4096}"] if (j & 3) == 0 else []
            post = [f"s_add_u32 s{SA}, s{SA}, 128"] if j == 7 else []
            it.append((pre, f"buffer_load_dwordx4 v{V_DA+j}, s[{S_CKV}:{S_CKV+3}], s{SA} offen offset:{(j&3)*1024} lds", post))
        for j in range(8):
            pre = [f"s_add_u32 m0, s{S_W8K}, {65536 + b*32768 + (j>>2)*4096}"] if (j & 3) == 0 else []
            post = [f"s_add_u32 s{SB}, s{SB}, 0x80000"] if j == 7 else []
            it.append((pre, f"buffer_load_dwordx4 v{V_DB+j}, s[{S_W}:{S_W+3}], s{SB} offen offset:{(j&3)*1024} lds", post))
        return it

    NK3 = opt.get('nk3', 12) if A16 else 8
    q = Seg("tmp")
    srd(q, S_WS, P_WS, WS_BYTES)
    srd(q, S_X, P_X, X_BYTES)
    srd(q, S_WQ, P_WQ, WQ_BYTES)
    srd(q, S_W1, P_W1, W1_BYTES)
    if not A16:
        q("s_lshl_b32 s7, s36, 7")
        q(f"v_add_u32 v6, s7, v{L31}")
        q("v_lshlrev_b32 v6, 7, v6")
        q(f"v_bfe_u32 v7, v{L31}, 1, 3")
        q(f"v_xor_b32 v7, v7, v{HI}")
        q("v_lshl_add_u32 v6, v7, 4, v6")
        for k in range(4):
            q(f"v_xor_b32 v{V_AA+k}, {k<<5}, v6")
        q(f"v_lshrrev_b32 v6, 1, v{G}")
        q(f"v_lshl_add_u32 v6, v6, 3, v{R4}")
        q("v_lshlrev_b32 v6, 9, v6")
        q("s_lshl_b32 s7, s37, 8")
        q("s_add_u32 s7, s7, 0x10000")
        q("v_add_u32 v6, s7, v6")
        q(f"v_and_b32 v7, 1, v{G}")
        q("v_lshl_add_u32 v6, v7, 5, v6")
        q(f"v_lshl_add_u32 v6, v{C}, 3, v6")
        for nb in range(4):
            q(f"v_xor_b32 v7, {nb}, v{R4}")
            q(f"v_lshl_add_u32 v{V_AB+nb}, v7, 6, v6")
    else:
        q("v_and_b32 v6, 15, v0")
        q("s_lshl_b32 s7, s36, 7")
        q("v_add_u32 v6, s7, v6")
        q("v_lshlrev_b32 v6, 7, v6")
        q("v_bfe_u32 v7, v0, 1, 3")
        q(f"v_xor_b32 v7, v7, v{G}")
        q(f"v_lshl_add_u32 v{V_AA16}, v7, 4, v6")
        q(f"v_xor_b32 v{V_AA16+1}, 64, v{V_AA16}")
        q(f"v_lshl_add_u32 v6, v{G}, 3, v{R4}")
        q("v_lshlrev_b32 v6, 9, v6")
        q("s_lshl_b32 s7, s37, 8")
        q("s_add_u32 s7, s7, 0x10000")
        q("v_add_u32 v6, s7, v6")
        q(f"v_and_b32 v7, 1, v{C}")
        q("v_lshl_add_u32 v6, v7, 3, v6")
        q(f"v_and_b32 v7, 1, v{G}")
        q("v_mul_u32_u24 v7, 3, v7")
        q(f"v_lshl_add_u32 v7, v{R4}, 2, v7")
        q(f"v_lshrrev_b32 v231, 1, v{C}")
        q("v_xor_b32 v7, v7, v231")
        q("v_lshl_add_u32 v6, v7, 4, v6")
        for i in range(8):
            q(f"v_xor_b32 v{V_AB16+i}, {i << 5}, v6")
    q("s_lshl_b32 s7, s3, 4")
    q(f"v_add_u32 v6, s7, v{G}")
    q(f"v_xor_b32 v7, v{R4}, v{G}")
    q("v_lshlrev_b32 v7, 6, v7")
    q(f"v_lshl_add_u32 v7, v{C}, 4, v7")
    q(f"s_lshl_b32 s38, s{S_HEAD}, 9")
    q("v_xor_b32 v231, 32, v7")
    q("v_lshlrev_b32 v232, 13, v6")
    q(f"v_add3_u32 v{V_DQ}, v232, v7, s38")
    q(f"v_add3_u32 v{V_DQ+2}, v232, v231, s38")
    q(f"v_add_u32 v{V_DQ+1}, {4*8192 - 1024}, v{V_DQ}")
    q(f"v_add_u32 v{V_DQ+3}, {3*(4*8192 - 1024)}, v{V_DQ+2}")
    q(f"v_add_u32 v{V_DQ+2}, {2*(4*8192 - 1024)}, v{V_DQ+2}")
    q(f"s_mul_i32 s39, s{S_HEAD}, 224")
    q("v_mul_u32_u24 v232, 3584, v6")
    q(f"v_add3_u32 v{V_D1+2}, v232, v7, s39")
    q(f"v_add3_u32 v{V_D1+3}, v232, v231, s39")
    q(f"v_lshl_add_u32 v6, v{G}, 3, v{R4}")
    q("v_lshlrev_b32 v6, 8, v6")
    q(f"v_and_b32 v7, 1, v{G}")
    q(f"v_lshl_add_u32 v7, v{R4}, 1, v7")
    q("v_lshl_add_u32 v6, v7, 5, v6")
    q(f"v_lshl_add_u32 v6, v{C}, 3, v6")
    q(f"v_add_u32 v6, {WIN[8]}, v6")
    for cb in range(8):
        q(f"v_xor_b32 v{V_AT+cb}, {cb << 5}, v6")
    q(f"s_mul_i32 s7, s{S_QT}, 28")
    q("s_mul_i32 s6, s3, 7")
    q("s_add_u32 s7, s7, s6")
    q("v_lshrrev_b32 v6, 2, v0")
    q("v_add_u32 v6, s7, v6")
    q("v_lshlrev_b32 v7, 13, v6")
    q(f"v_lshl_add_u32 v7, v{C}, 7, v7")
    q("v_add_u32 v7, s38, v7")
    q("v_subrev_u32 v6, 7, v6")
    q("v_mul_u32_u24 v6, 3584, v6")
    q(f"v_min_u32 v231, 2, v{C}")
    q("v_lshl_add_u32 v6, v231, 7, v6")
    q("v_add_u32 v6, s39, v6")
    q(f"v_min_u32 v6, {W1_BYTES-4}, v6")
    q("v_cmp_gt_u32 vcc, 28, v0")
    q("s_lshr_b32 s7, s2, 3")
    q("s_lshl_b32 s7, s7, 2")
    q("v_cndmask_b32 v6, v6, v7, vcc")
    q(f"v_mov_b32 v{V_GP}, s{P_W1}")
    q(f"v_mov_b32 v{V_GP+1}, s{P_W1+1}")
    q(f"v_mov_b32 v7, s{P_WQ}")
    q(f"v_mov_b32 v231, s{P_WQ+1}")
    q(f"v_cndmask_b32 v{V_GP}, v{V_GP}, v7, vcc")
    q(f"v_cndmask_b32 v{V_GP+1}, v{V_GP+1}, v231, vcc")
    q("s_add_u32 s7, s7, s3")
    q("s_mul_i32 s7, s7, 640")
    q("s_add_u32 s7, s7, M_B-M_PC0")
    q("v_and_b32 v7, 7, v0")
    q("v_min_u32 v7, 4, v7")
    q("v_lshl_add_u32 v7, v7, 7, s7")
    q("v_min_u32 v7, M_CODE_END-M_PC0-8, v7")
    q("v_cmp_gt_u32 vcc, 56, v0")
    q("v_mov_b32 v231, s50")
    q("v_mov_b32 v232, s51")
    q("v_cndmask_b32 v6, v7, v6, vcc")
    q(f"v_cndmask_b32 v{V_GP}, v231, v{V_GP}, vcc")
    q(f"v_cndmask_b32 v{V_GP+1}, v232, v{V_GP+1}, vcc")
    q(f"v_add_co_u32 v{V_GP}, vcc, v{V_GP}, v6")
    q(f"v_addc_co_u32 v{V_GP+1}, vcc, 0, v{V_GP+1}, vcc")
    if GP2:
        q(f"s_mul_i32 s7, s{S_QT}, {112*128}")
        q(f"s_mul_i32 s6, s3, {28*128}")
        q("s_add_u32 s7, s7, s6")
        q(f"s_mul_i32 s6, s{S_HEAD}, 229376")
        q("s_add_u32 s7, s7, s6")
        q(f"v_min_u32 v6, 27, v{L31}")
        q("v_lshl_add_u32 v6, v6, 7, s7")
        q(f"s_mul_i32 s7, s{S_QT}, {49*128}")
        q(f"s_mul_i32 s6, s3, {13*128}")
        q("s_add_u32 s7, s7, s6")
        q(f"s_mul_i32 s6, s{S_HEAD}, 100352")
        q("s_add_u32 s7, s7, s6")
        q(f"v_lshrrev_b32 v7, 1, v{L31}")
        q("v_lshl_add_u32 v7, v7, 7, s7")
        q(f"v_min_u32 v7, {W2_BYTES-4}, v7")
        q("v_cmp_gt_u32 vcc, 32, v0")
        q(f"v_mov_b32 v{V_GP2}, s{P_W2}")
        q(f"v_mov_b32 v{V_GP2+1}, s{P_W2+1}")
        q(f"v_mov_b32 v231, s{P_WO}")
        q(f"v_mov_b32 v232, s{P_WO+1}")
        q("v_cndmask_b32 v6, v7, v6, vcc")
        q(f"v_cndmask_b32 v{V_GP2}, v{V_GP2}, v231, vcc")
        q(f"v_cndmask_b32 v{V_GP2+1}, v{V_GP2+1}, v232, vcc")
        q(f"v_add_co_u32 v{V_GP2}, vcc, v{V_GP2}, v6")
        q(f"v_addc_co_u32 v{V_GP2+1}, vcc, 0, v{V_GP2+1}, vcc")
    q("s_add_u32 s7, s36, 3")
    q("s_lshl_b32 s7, s7, 3")
    q("s_add_u32 s7, s7, s34")
    q(f"s_lshl_b32 s{S_KVBASE}, s{S_HA}, 6")
    q(f"s_add_u32 s{S_KVBASE}, s{S_KVBASE}, s7")
    q(f"s_lshl_b32 s{S_KVBASE}, s{S_KVBASE}, 15")
    q(f"s_lshl_b32 s7, s{S_KIND}, 14")
    q(f"s_add_u32 s{S_KVBASE}, s{S_KVBASE}, s7")
    q("s_lshl_b32 s7, s37, 13")
    q(f"s_add_u32 s{S_KVBASE}, s{S_KVBASE}, s7")
    q("s_lshl_b32 s7, s36, 19")
    q(f"s_sub_u32 s{S_KVSTR}, s7, 0x40000")
    q(f"s_lshl_b32 s7, s{S_QT}, 2")
    q(f"v_and_b32 v{V_FO}, 15, v0")
    q(f"v_lshlrev_b32 v{V_FO}, 3, v{V_FO}")
    q(f"s_add_u32 s{S_XNB}, s7, s3")
    q(f"s_mul_i32 s{S_XNB}, s{S_XNB}, 28672")
    q(f"s_add_u32 s{S_XNB}, s{S_XNB}, {XN_OFF}")
    q(f"v_lshlrev_b32 v{V_L16}, 4, v0")
    q(f"s_lshl_b32 s7, s{S_QT}, 4")
    q(f"s_add_u32 s7, s7, s{S_HEAD}")
    q("s_mul_i32 s7, s7, 7168")
    q("s_mul_i32 s6, s3, 1792")
    q("s_add_u32 s7, s7, s6")
    q("v_lshrrev_b32 v6, 2, v0")
    q("v_min_u32 v6, 14, v6")
    q("v_lshl_add_u32 v146, v6, 7, s7")
    attn.setup_s(q)
    q(f"s_mov_b32 s{S_QST}, s{P_WS}")
    q(f"s_mov_b32 s{S_QST+1}, s{P_WS+1}")
    q(f"s_cmp_ge_u32 s{S_QT}, 8")
    q(f"s_cselect_b32 s{S_QST+2}, {WS_BYTES:#x}, 0")
    q(f"s_mov_b32 s{S_QST+3}, 0x20000")
    q(f"s_lshl_b32 s{S_QB}, s{S_PAIR}, 2")
    q(f"s_add_u32 s{S_QB}, s{S_QB}, s3")
    q(f"s_lshl_b32 s{S_QB}, s{S_QB}, 14")
    q(f"s_add_u32 s{S_QB}, s{S_QB}, {Q_OFF}")
    for i in q.ins:
        e(i.text)
    stamp(e, opt, "setup")
    e.wait_tag("pf")
    stamp(e, opt, "touch")
    NPRE = opt.get("npre", 12)
    for tag, items in (("t0", dma_items(0)), ("dma", dma_items(1)[:NPRE])):
        for pre, d, post in items:
            run(e, pre + [(d, tag)] + post)
    e(f"buffer_load_dword v{V_PD}, v144, s[{S_CKV}:{S_CKV+3}], 0 offen", "pf")
    e(f"buffer_load_dword v{V_PD}, v145, s[{S_W}:{S_W+3}], 0 offen", "pf")
    e(f"buffer_load_dword v{V_PD}, v146, s[{S_X}:{S_X+3}], 0 offen", "pf")
    e("s_or_b32 s7, s2, s3")
    e("s_cbranch_scc1 M_NOPUB")
    e("s_memrealtime s[4:5]")
    e("v_mov_b32 v6, 0")
    e.wait_force(lgkm=0)
    e("s_or_b32 s4, s4, 1")
    e("v_mov_b32 v7, s4")
    e("s_mov_b64 exec, 1")
    e.raw(f"global_store_dword v6, v7, s[{P_DBG}:{P_DBG+1}] sc1")
    e("s_mov_b64 exec, -1")
    e.label("M_NOPUB")
    stamp(e, opt, "dma")
    stamp(e, opt, 1)

    def layernorm(e, n, reduce, norm, T=V_T):
        e("s_mov_b32 s7, 0x3f803f80")
        for k in range(8):
            e(f"v_mov_b32 v{T+k}, 0")
        for r in range(n):
            if n > 28 or opt.get("ln_dot"):
                e(f"v_dot2_f32_bf16 v{T+(r&3)}, v{V_XN+r}, s7, v{T+(r&3)}")
                e(f"v_dot2_f32_bf16 v{T+4+(r&3)}, v{V_XN+r}, v{V_XN+r}, v{T+4+(r&3)}")
            else:
                t = T + 8 + (r % 4) * 2
                e(f"v_lshlrev_b32 v{t}, 16, v{V_XN+r}")
                e(f"v_and_b32 v{t+1}, 0xffff0000, v{V_XN+r}")
                e(f"v_add_f32 v{T+(r&1)*2}, v{T+(r&1)*2}, v{t}")
                e(f"v_add_f32 v{T+(r&1)*2+1}, v{T+(r&1)*2+1}, v{t+1}")
                e(f"v_fmac_f32 v{T+4+(r&1)*2}, v{t}, v{t}")
                e(f"v_fmac_f32 v{T+4+(r&1)*2+1}, v{t+1}, v{t+1}")
        e.nop(4)
        e(f"v_add_f32 v{T}, v{T}, v{T+1}")
        e(f"v_add_f32 v{T+2}, v{T+2}, v{T+3}")
        e(f"v_add_f32 v{T+4}, v{T+4}, v{T+5}")
        e(f"v_add_f32 v{T+6}, v{T+6}, v{T+7}")
        e(f"v_add_f32 v{T}, v{T}, v{T+2}")
        e(f"v_add_f32 v{T+4}, v{T+4}, v{T+6}")
        for step in reduce:
            if isinstance(step, str):
                e.nop(2)
                e(f"v_add_f32_dpp v{T}, v{T}, v{T} {step} row_mask:0xf bank_mask:0xf")
                e(f"v_add_f32_dpp v{T+4}, v{T+4}, v{T+4} {step} row_mask:0xf bank_mask:0xf")
            else:
                e(f"v_mov_b32 v{T+1}, v{T}")
                e(f"v_mov_b32 v{T+5}, v{T+4}")
                e.nop(2)
                e(f"v_permlane{step}_swap_b32 v{T}, v{T+1}")
                e(f"v_permlane{step}_swap_b32 v{T+4}, v{T+5}")
                e(f"v_add_f32 v{T}, v{T}, v{T+1}")
                e(f"v_add_f32 v{T+4}, v{T+4}, v{T+5}")
        e(f"v_mul_f32 v{T}, {f32(1/448)}, v{T}")
        e(f"v_mul_f32 v{T+4}, {f32(1/448)}, v{T+4}")
        e(f"v_fma_f32 v{T+4}, -v{T}, v{T}, v{T+4}")
        e(f"v_max_f32 v{T+4}, 0, v{T+4}")
        e(f"v_add_f32 v{T+4}, {f32(1e-5)}, v{T+4}")
        e(f"v_rsq_f32 v{T+4}, v{T+4}")
        e(f"v_mul_f32 v{T+4}, {f32(QSCALE)}, v{T+4}")
        e(f"v_mul_f32 v{T}, v{T}, v{T+4}")
        e(f"v_mov_b32 v{T+5}, v{T+4}")
        e(f"v_sub_f32 v{T}, 0, v{T}")
        e(f"v_mov_b32 v{T+1}, v{T}")
        for r in norm:
            t = T + 8 + (r % 8) * 2
            e(f"v_lshlrev_b32 v{t}, 16, v{V_XN+r}")
            e(f"v_and_b32 v{t+1}, 0xffff0000, v{V_XN+r}")
            if n > 28:
                e(f"v_pk_fma_f32 {v(t,2)}, {v(t,2)}, {v(T+4,2)}, {v(T,2)}")
            else:
                e(f"v_fma_f32 v{t}, v{t}, v{T+4}, v{T}")
                e(f"v_fma_f32 v{t+1}, v{t+1}, v{T+4}, v{T}")
            e(f"v_cvt_pk_bf16_f32 v{V_XN+r}, v{t}, v{t+1}")

    def ops_of(fn):
        t = Seg("tmp")
        fn(t)
        out, k = [], 0
        ins = t.ins
        while k < len(ins):
            x = (ins[k].text, ins[k].tag) if ins[k].tag else ins[k].text
            if ins[k].op.startswith("s_cmp"):
                out.append([x, ins[k + 1].text])
                k += 2
            else:
                out.append(x)
                k += 1
        return out

    XA, XS, LT = V_XN + 36, V_XN + 37, V_XN + 52
    SX0, SX1 = S_QC, S_KVC

    def x_loads(h):
        h(f"s_lshl_b32 s{SX0}, s3, 8")
        h(f"s_add_u32 s{SX1}, s{SX0}, 128")
        h("s_cmp_eq_u32 s3, 3")
        h(f"s_cselect_b32 s{SX1}, 0, s{SX1}")
        h(f"s_lshl_b32 s7, s{S_QT}, 7")
        h(f"s_lshl_b32 s6, s{S_HEAD}, 3")
        h("s_add_u32 s7, s7, s6")
        h("v_lshrrev_b32 v6, 3, v0")
        h("v_add_u32 v6, s7, v6")
        h("v_mul_u32_u24 v6, 896, v6")
        h("v_and_b32 v7, 7, v0")
        h(f"v_lshl_add_u32 v{XA}, v7, 4, v6")
        h(f"v_mov_b32 v{V_XN+41}, 0")
        for i in range(7):
            h(f"buffer_load_dwordx4 {v(V_XN+i*4,4)}, v{XA}, s[{S_X}:{S_X+3}], 0 offen offset:{i*128}", "x")
        h(f"buffer_load_dwordx4 {v(V_XN+28,4)}, v{XA}, s[{S_X}:{S_X+3}], s{SX0} offen", "x")
        h(f"buffer_load_dwordx4 {v(V_XN+32,4)}, v{XA}, s[{S_X}:{S_X+3}], s{SX1} offen", "x")
        h(f"global_load_dword v{V_XN+43}, v{V_XN+41}, s[{P_DBG}:{P_DBG+1}]", "x")

    def ln_pub(h):
        h(f"s_lshr_b32 s5, s{S_HEAD}, 2")
        h(f"s_lshl_b32 s6, s{S_QT}, 2")
        h("s_add_u32 s5, s5, s6")
        h("s_mul_i32 s5, s5, 28672")
        h(f"s_add_u32 s5, s5, {XN_OFF}")
        h(f"s_lshl_b32 s{SX0}, s{SX0}, 5")
        h(f"s_lshl_b32 s{SX1}, s{SX1}, 5")
        h(f"s_add_u32 s{SX0}, s{SX0}, s5")
        h(f"s_add_u32 s{SX1}, s{SX1}, s5")
        h(f"s_bfe_u32 s6, s{S_HEAD}, 0x10001")
        h("s_lshl_b32 s6, s6, 10")
        h(f"s_and_b32 s5, s{S_HEAD}, 1")
        h("s_lshl_b32 s5, s5, 7")
        h("s_add_u32 s6, s6, s5")
        h("v_lshrrev_b32 v6, 3, v0")
        h("v_lshlrev_b32 v6, 4, v6")
        h("v_and_b32 v7, 3, v0")
        h("v_lshl_add_u32 v6, v7, 8, v6")
        h("v_bfe_u32 v7, v0, 2, 1")
        h("v_lshl_add_u32 v6, v7, 11, v6")
        h(f"v_add_u32 v{XS}, s6, v6")
        layernorm(h, 28, ("quad_perm:[1_0_3_2]", "quad_perm:[2_3_0_1]", "row_half_mirror"), range(28, 36), LT)
        h(f"buffer_store_dwordx4 {v(V_XN+28,4)}, v{XS}, s[{S_WS}:{S_WS+3}], s{SX0} offen sc1", "st")
        h(f"buffer_store_dwordx4 {v(V_XN+32,4)}, v{XS}, s[{S_WS}:{S_WS+3}], s{SX1} offen sc1", "st")

    def gtouch(k):
        lo = 0xffff << (16 * (k & 1))
        return [[f"s_mov_b32 exec_lo, {lo if k < 2 else 0}", f"s_mov_b32 exec_hi, {0 if k < 2 else lo}",
                 (f"global_load_dword v{V_PD}, {v(V_GP,2)}, off", "pf"), "s_mov_b64 exec, -1"]]

    hk = Seg("m_hook")
    hk.label("M_HOOK")
    hk("s_mov_b32 s6, 0")
    hk.label("M_NSPIN")
    hk(f"v_readfirstlane_b32 s{S_N0}, v{V_XN+43}")
    hk(f"s_cmp_lg_u32 s{S_N0}, 0")
    hk("s_cbranch_scc1 M_NOK")
    hk("s_sleep 8")
    hk(f"global_load_dword v{V_XN+43}, v{V_XN+41}, s[{P_DBG}:{P_DBG+1}] sc1")
    hk.wait_force(vm=0)
    hk("s_add_u32 s6, s6, 1")
    hk(f"s_cmp_lt_u32 s6, {PMAX}")
    hk("s_cbranch_scc1 M_NSPIN")
    hk.label("M_NOK")
    hk(f"s_xor_b32 s{S_N1}, s{S_N0}, {NONCE_K:#x}")
    hk("s_cmp_eq_u32 s3, 0")
    hk(f"s_cselect_b32 s{S_BO}, 3, 99")
    hk(f"s_mov_b64 s[{S_GM}:{S_GM+1}], 0xff")
    hk("s_branch M_HOOK_RET")
    hk.label("M_SIGX")
    flag_line(hk, 7, FL_XN, S_QT)
    hk(f"s_lshl_b32 s6, s{S_HEAD}, 3")
    flag_set(hk, S_WS, 7, "s6", V_XN + 40)
    hk.label("M_HOOK_RET")
    hk(f"s_cmp_eq_u32 s{S_KIND}, 0")
    hk("s_cbranch_scc1 M_LOOP_K")
    hk("s_branch M_LOOP_V")

    def frag_reads(b, ks, st):
        r = []
        fa, fb = V_FA + st * 16, V_FB + st * 16
        order = [("a", 0), ("b", 0), ("a", 1), ("a", 2), ("a", 3), ("b", 1), ("b", 2), ("b", 3)]
        for t, i in order:
            if t == "a":
                r.append(f"ds_read_b128 {v(fa+i*4,4)}, v{V_AA+ks} offset:{i*4096 + b*32768}")
            else:
                for u in range(2):
                    r.append(f"ds_read_b64_tr_b16 {v(fb+i*4+u*2,2)}, v{V_AB+i} offset:{(16*ks+4*u)*512 + b*32768}")
        return r

    e.wait_tag("t0")
    stamp(e, opt, "t0")
    e("s_barrier")
    stamp(e, opt, "bar")
    if not A16:
        for r in frag_reads(0, 0, 0):
            e(r)
    e(f"s_mov_b32 s{S_LP}, 2")
    e(f"s_cmp_eq_u32 s{S_KIND}, 0")
    e("s_cbranch_scc0 M_PRE_V")
    pro = e

    def place_dma(fill, items, g0, g1, tag="dma"):
        n = len(items)
        for k, item in enumerate(items):
            pre, d, post = item[:3]
            g = g0 + (k * (g1 - g0)) // n
            for x in pre:
                fill.setdefault(g - 1, []).append(x)
            fill.setdefault(g, []).append((d, item[3] if len(item) > 3 else tag))
            for x in post:
                fill.setdefault(g, []).append(x)

    def ktile(e, kind, b, dma_k0, dma_k3, last=False, pref=True, tag3="dma", tag0="dma", xn=None):
        for ks in range(4):
            st = ks & 1
            fa, fb = V_FA + st * 16, V_FB + st * 16
            spine = []
            for i in range(4):
                for j in range(4):
                    acc = a((i * 4 + j) * 16, 16)
                    W, Cc = v(fb + i * 4, 4), v(fa + j * 4, 4)
                    A, B = (W, Cc) if kind == 0 else (Cc, W)
                    spine.append(f"{MFMA} {acc}, {A}, {B}, {acc}")
            fill = {}
            fill[-1] = [lambda e: e.wait_force(lgkm=0)]
            if ks < 3:
                spread(fill, frag_reads(b, ks + 1, st ^ 1), 0, 12)
                if ks == 0 and dma_k0:
                    place_dma(fill, dma_k0, 1, 16, tag0)
                if ks == 1 and pref:
                    fill.setdefault(4, []).append((f"buffer_load_dword v{V_PD}, v{V_PA}, s[{S_CKV}:{S_CKV+3}], s{SA} offen", "pf"))
                    fill.setdefault(13, []).append((f"buffer_load_dword v{V_PD}, v{V_PB}, s[{S_W}:{S_W+3}], s{SB} offen", "pf"))
                if ks in (1, 2) and xn is not None:
                    k0 = xn + (ks - 1) * 7
                    for k in range(k0, k0 + 7):
                        g = 1 + 2 * (k - k0)
                        if k % 4 == 0 and k:
                            fill.setdefault(g - 1, []).append(f"s_add_u32 s{S_XNB}, s{S_XNB}, 4096")
                        fill.setdefault(g, []).append((f"buffer_load_dwordx4 {v(V_XN+4*k,4)}, v{V_L16}, s[{S_WS}:{S_WS+3}], s{S_XNB} offen offset:{(k%4)*1024} sc1", "xn"))
            else:
                if last:
                    fill[0] = ["s_barrier"]
                else:
                    fill[0] = [lambda e: e.wait_force(vm=(NPF if pref else 0) + (14 if xn is not None else 0)), "s_barrier"]
                    spread(fill, frag_reads(b ^ 1, 0, 0), 0, 12)
                if dma_k3:
                    place_dma(fill, dma_k3, 2, 16, tag3)
            weave(e, spine, fill)

    def c_read(kind, b, s_, j):
        off = j * 2048
        return f"ds_read_b128 {v(V_FA + s_*32 + j*4, 4)}, v{V_AA16 + ((s_ ^ j) & 1)} offset:{off + b*32768}"

    def w_read(b, s_, i):
        return [f"ds_read_b64_tr_b16 {v(V_WR + i*4 + 2*u, 2)}, v{V_AB16+i} offset:{(32*s_ + 4*u)*512 + b*32768}" for u in range(2)]

    def ktile16(e, kind, b, dma_k0, dma_k3, last=False, pref=True, tag3="dma", tag0="dma", xn=None, first=False, head=False, extra=None):
        for s_ in range(2):
            spine = []
            for i in range(8):
                for j in range(8):
                    if kind == 0:
                        dt, bb, kb, nb = i >> 1, i & 1, j >> 1, j & 1
                    else:
                        dt, nb, kb, bb = i >> 1, i & 1, j >> 1, j & 1
                    acc = a((kb * 4 + dt) * 16 + nb * 8 + bb * 4, 4)
                    W, Cc = v(V_WR + i * 4, 4), v(V_FA + s_ * 32 + j * 4, 4)
                    A, B = (W, Cc) if kind == 0 else (Cc, W)
                    spine.append(f"v_mfma_f32_16x16x32_bf16 {acc}, {A}, {B}, {0 if first and s_ == 0 else acc}")
            fill = {}
            nb_, ns = (b, 1) if s_ == 0 else (b ^ 1, 0)
            more = not (last and s_ == 1)
            for i in range(8):
                r = v(V_WR + i * 4, 4)
                fill.setdefault(8 * i - 1, []).append(lambda e, r=r: wait_reg(e, r))
            r = v(V_FA + s_ * 32 + 28, 4)
            fill.setdefault(-1, []).append(lambda e, r=r: wait_reg(e, r))
            if s_ == 1:
                nx = 14 if xn is not None else 0
                if last:
                    fill.setdefault(7, []).extend([lambda e: e.wait(lgkm=0), "s_barrier"])
                elif pref and not head:
                    fill.setdefault(7, []).extend([lambda e: e.wait_force(vm=NPF + 1 + GP2, lgkm=0), "s_barrier"])
                else:
                    fill.setdefault(7, []).extend([lambda e: e.wait_tag("dma"), lambda e: e.wait(lgkm=0), "s_barrier"])
            if more:
                for i in range(8):
                    wr = w_read(nb_, ns, i)
                    fill.setdefault(8 * i + 7, []).append(wr[0])
                    fill.setdefault(min(8 * i + 8, 63), []).append(wr[1])
                for j in range(8):
                    fill.setdefault(10 + 6 * j, []).append(c_read(kind, nb_, ns, j))
            if s_ == 0:
                if dma_k0:
                    place_dma(fill, dma_k0, 1 if first else 2, min(34 if first else 56, 2 + (7 * len(dma_k0)) // 2 + (14 if len(dma_k0) > 8 else 0)), tag0)
                if pref:
                    fill.setdefault(36, []).append((f"buffer_load_dword v{V_PD}, v{V_PA}, s[{S_CKV}:{S_CKV+3}], s{SA} offen", "pf"))
                    fill.setdefault(44, []).append((f"buffer_load_dword v{V_PD}, v{V_PB}, s[{S_W}:{S_W+3}], s{SB} offen", "pf"))
            elif dma_k3:
                place_dma(fill, dma_k3, 11, 62, tag3)
            if xn is not None:
                nx = (10, 4)[s_]
                k0 = xn + s_ * 10
                for k in range(k0, k0 + nx):
                    g = (18 + ((k - k0) * 45) // nx) if s_ == 0 else (13 + (k - k0) * 13)
                    if k % 4 == 0 and k:
                        fill.setdefault(g - 1, []).append(f"s_add_u32 s{S_XNB}, s{S_XNB}, 4096")
                    fill.setdefault(g, []).append((f"buffer_load_dwordx4 {v(V_XN+4*k,4)}, v{V_L16}, s[{S_WS}:{S_WS+3}], s{S_XNB} offen offset:{(k%4)*1024}{XNM}", "xn"))
            if opt.get("x_a_nodma"):
                for g in fill:
                    fill[g] = [x for x in fill[g] if not (isinstance(x, tuple) and x[1] in ("dma", "pf"))]
            if opt.get("x_a_nords"):
                for g in fill:
                    fill[g] = [x for x in fill[g] if not (isinstance(x, str) and x.startswith("ds_read"))]
            if opt.get("a_level", 1):
                seq = [(g, x) for g in sorted(fill) for x in fill[g]]
                new, nxt = {}, -1
                for g, x in seq:
                    t = x[0] if isinstance(x, tuple) else x
                    heavy = isinstance(t, str) and t.startswith(("ds_", "buffer_", "global_"))
                    fixed = callable(x) or t == "s_barrier"
                    if fixed:
                        new.setdefault(g, []).append(x)
                        continue
                    gg = min(63, max(g, nxt)) if heavy else min(63, max(g, nxt - 1))
                    new.setdefault(gg, []).append(x)
                    if heavy:
                        nxt = gg + 1
                fill = new
            for g0, g1, ops in (extra or {}).get(s_, []):
                pour(fill, ops, g0, g1)
            weave(e, spine, fill)

    if A16:
        ktile = ktile16

    NT = 21

    def b_dma(u):
        part, kt = divmod(u, 7)
        slot = SLOT_ORDER[u % 10]
        it = []
        for j in range(4):
            pre = []
            if j == 0:
                pre.append(f"s_add_u32 m0, s{S_W4K}, {slot*16384}")
                off = kt * 64 * 3584 if part == 2 else kt * 64 * 8192 + part * 256
                pre.append(f"s_mov_b32 s{S_BO}, {off}")
            if part == 2:
                d = f"buffer_load_dwordx4 v{V_D1+j}, s[{S_W1}:{S_W1+3}], s{S_BO} offen offset:{j*1024} lds"
            else:
                d = f"buffer_load_dwordx4 v{V_DQ+j}, s[{S_WQ}:{S_WQ+3}], s{S_BO} offen offset:{j*1024} lds"
            it.append((pre, d, [], f"b{u//2}"))
        return it

    segs = [pro]
    traces = [[hk]]
    tails = {}
    extra = []
    vm_loop = [("dma", frozenset())] * 40
    for kind in range(2):
        nm = "KV"[kind]
        pre = Seg(f"m_pre{nm}", pro.lds, pro.vm)
        pre.label(f"M_PRE_{nm}")
        if A16:
            seq = sorted([(8 * i + 7, 0, w_read(0, 0, i)[0]) for i in range(8)] + [(min(8 * i + 8, 63), 1, w_read(0, 0, i)[1]) for i in range(8)]
                         + [(10 + 6 * j, 2, c_read(kind, 0, 0, j)) for j in range(8)])
            for _, _, x in seq:
                pre(x)
        d0, d1 = dma_items(0), dma_items(1)
        lno = ops_of(ln_pub)
        c1, c2, c3 = (len(lno) * 18) // 100, (len(lno) * 46) // 100, (len(lno) * 74) // 100
        ktile(pre, kind, 0, d1[NPRE:], d0[:NK3], first=True, head=True)
        ktile(pre, kind, 1, d0[NK3:], d1[:NK3], head=True, extra={0: [(18, 64, ops_of(x_loads))]})
        stamp(pre, opt, "it1", raw=True)
        ktile(pre, kind, 0, d1[NK3:], d0[:NK3], head=True, extra={0: [(20, 64, lno[:c1])], 1: [(0, 64, lno[c1:c2])]})
        ktile(pre, kind, 1, d0[NK3:], d1[:NK3], head=True, extra={0: [(0, 64, lno[c2:c3])], 1: [(0, 60, lno[c3:])]})
        stamp(pre, opt, "it2", raw=True)
        pre("s_branch M_HOOK")
        lp = Seg(f"m_loop{nm}", pre.lds, vm_loop)
        lp.label(f"M_LOOP_{nm}")
        gt = [["s_mov_b64 exec, s[70:71]" if False else f"s_mov_b64 exec, s[{S_GM}:{S_GM+1}]", (f"global_load_dword v{V_PD}, {v(V_GP,2)}, off", "pf")]
              + ([(f"global_load_dword v{V_PD}, {v(V_GP2,2)}, off", "pf")] if GP2 else []) + ["s_mov_b64 exec, -1"], [f"s_lshl_b64 s[{S_GM}:{S_GM+1}], s[{S_GM}:{S_GM+1}], 8", f"s_or_b32 s{S_GM}, s{S_GM}, 1"]]
        ktile(lp, kind, 0, d1[NK3:], d0[:NK3], extra={0: [(50, 56, gt)]})
        ktile(lp, kind, 1, d0[NK3:], d1[:NK3], extra={0: [(50, 56, gt)]})
        assert opt.get('x_a_nords') or lp.lds == pre.lds, (len(lp.lds), len(pre.lds))
        jitter(lp, opt, True)
        lp(f"s_add_u32 s{S_LP}, s{S_LP}, 1")
        for it in range(3, 7):
            if f"it{it}" in opt.get("sp", []):
                lp(f"s_cmp_lg_u32 s{S_LP}, {it}")
                lp(f"s_cbranch_scc1 M_NS{it}_{nm}")
                stamp(lp, opt, f"it{it}", raw=True)
                lp.label(f"M_NS{it}_{nm}")
        lp(f"s_cmp_eq_u32 s{S_LP}, s{S_BO}")
        lp("s_cbranch_scc1 M_SIGX")
        lp(f"s_cmp_lg_u32 s{S_LP}, 5")
        lp(f"s_cbranch_scc1 M_NOPOLL_{nm}")
        flag_line(lp, 7, FL_XN, S_QT)
        lp(f"buffer_load_dwordx2 {v(V_FL,2)}, v{V_FO}, s[{S_WS}:{S_WS+3}], s7 offen sc1", "pf")
        lp.label(f"M_NOPOLL_{nm}")
        lp(f"s_cmp_lt_u32 s{S_LP}, 6")
        lp(f"s_cbranch_scc1 M_LOOP_{nm}")
        tl = Seg(f"m_tail{nm}", lp.lds, lp.vm)
        tl.label(f"M_TAIL{kind}")
        bd = sum((b_dma(u) for u in range(10)), [])
        flag_test(tl, V_FL)
        tl(f"s_cselect_b32 s{S_XNF}, 1, 0")
        ktile(tl, kind, 0, d1[NK3:], d0[:NK3], pref=False, xn=0)
        ktile(tl, kind, 1, d0[NK3:], d1[:NK3], pref=False, xn=14)
        stamp(tl, opt, "it7", raw=True)
        ktile(tl, kind, 0, d1[NK3:] + bd[:8], bd[8:20], pref=False)
        ktile(tl, kind, 1, bd[20:24], bd[24:36], last=True, pref=False)
        if kind == 0:
            tl("s_branch M_B")
        segs += [pre, lp, tl] + ([hk] if kind == 0 else [])
        tails[kind] = tl
        traces.append([pro, pre, lp, lp, tl])

    e = Seg("m_b", tails[0].lds, tails[0].vm)
    e.label("M_B")
    stamp(e, opt, 2)
    stamp(e, opt, "b")
    e(f"s_cmp_lt_u32 s{S_XNF}, {99 if opt.get('force_fb') else 1}")
    e("s_cbranch_scc1 M_FB")
    e.label("M_FB_RET")
    jitter(e, opt)
    jitter(e, opt, True)
    for _ in range(opt.get("x_idle", 0)):
        e("s_sleep 32")
    srd(e, S_WO, P_WO, WO_BYTES)
    srd(e, S_W2, P_W2, W2_BYTES)
    attn.setup_dma(e)
    e(f"v_mov_b32 v{V_D1}, v{V_D1+2}")
    e(f"v_add_u32 v{V_D1+1}, {4*3584 - 1024}, v{V_D1+2}")
    e(f"v_add_u32 v{V_D1+2}, {2*(4*3584 - 1024)}, v{V_D1+3}")
    e(f"v_add_u32 v{V_D1+3}, {3*(4*3584 - 1024)}, v{V_D1+3}")
    fb = Seg("m_fb")
    fb.label("M_FB")
    if opt.get("count_fb"):
        fb("v_mov_b32 v6, 4")
        fb("v_mov_b32 v7, 1")
        fb("s_mov_b64 exec, 1")
        fb(f"global_atomic_add v6, v7, s[{P_DBG}:{P_DBG+1}]")
        fb("s_mov_b64 exec, -1")
    fb.wait_force(vm=0)
    fb(f"s_lshl_b32 s7, s{S_QT}, 7")
    fb("s_lshl_b32 s6, s3, 5")
    fb("s_add_u32 s7, s7, s6")
    fb("v_and_b32 v6, 31, v0")
    fb("v_add_u32 v6, s7, v6")
    fb("v_mul_u32_u24 v6, 896, v6")
    fb("v_lshrrev_b32 v7, 5, v0")
    fb("v_lshl_add_u32 v6, v7, 5, v6")
    for ks in range(28):
        fb(f"buffer_load_dwordx4 {v(V_XN+ks*4,4)}, v6, s[{S_X}:{S_X+3}], 0 offen offset:{(ks>>1)*64 + (ks&1)*16}", "x")
    layernorm(fb, 112, (32,), range(112))
    fb.nop(2)
    for j in range(14):
        for r in range(4):
            fb(f"v_permlane16_swap_b32 v{V_XN+8*j+r}, v{V_XN+8*j+4+r}")
    fb.nop(2)
    fb("s_branch M_FB_RET")
    extra.append(fb)

    D = opt.get("b_depth", 7)
    units = [(u, s_, cb) for u in range(NT) for s_ in range(2) for cb in range(8) if not (u >= 14 and cb == 7)]
    NF = len(units)
    gstart = {}
    for f, (u, s_, cb) in enumerate(units):
        gstart.setdefault(u // 2, f)
    first_of = {f: g for g, f in gstart.items()}
    cur_win = [WIN[8]] * 8

    def b_read(f):
        u, s_, cb = units[f]
        slot = SLOT_ORDER[u % 10]
        fr = V_FA + (f % 8) * 4
        ops = []
        if cur_win[cb] != WIN[slot]:
            dlt = WIN[slot] - cur_win[cb]
            ops.append(f"v_add_u32 v{V_AT+cb}, {dlt:#x}, v{V_AT+cb}" if dlt > 0 else f"v_subrev_u32 v{V_AT+cb}, {-dlt:#x}, v{V_AT+cb}")
            cur_win[cb] = WIN[slot]
        return ops + [f"ds_read_b64_tr_b16 {v(fr+2*h,2)}, v{V_AT+cb} offset:{slot*16384 - WIN[slot] + (32*s_+4*h)*256}" for h in range(2)]

    def kv_epi(b, t=8, o=8):
        kb, i = divmod(b, 4)
        ops = []
        if i == 0 and kb:
            ops.append(f"s_add_u32 s{S_KVBASE}, s{S_KVBASE}, s{S_KVSTR}")
        if i % 2 == 0:
            ops.append(f"s_add_u32 s{S_KVC}, s{S_KVBASE}, {KV_OFF + (i>>1)*4096}")
        for c in range(2):
            for r in range(8):
                ops.append(f"v_accvgpr_read_b32 v{t+r}, a{b*16+8*c+r}")
            for r in range(4):
                ops.append(f"v_cvt_pk_bf16_f32 v{t+o+r}, v{t+2*r}, v{t+2*r+1}")
            ops.append((f"buffer_store_dwordx4 {v(t+o,4)}, v{V_L16}, s[{S_WS}:{S_WS+3}], s{S_KVC} offen offset:{(i&1)*2048+c*1024}{ST}", "kvst" if kb < 2 else "kvst2"))
        if opt.get("x_nokvst"):
            ops = [o for o in ops if not isinstance(o, tuple)]
        if opt.get("x_noepi"):
            ops = []
        return ops

    def q_epi(part):
        ops = []
        t = 20
        for nb in range(4):
            if nb % 2 == 0:
                ops.append(f"s_add_u32 s{S_QC}, s{S_QB}, {part*8192 + (nb>>1)*4096}")
            for c in range(2):
                if part == 0:
                    src = H_ACC[nb] + 8 * c
                else:
                    src = t
                    for r in range(8):
                        ops.append(f"v_accvgpr_read_b32 v{t+r}, a{nb*16+8*c+r}")
                for r in range(4):
                    ops.append(f"v_cvt_pk_bf16_f32 v{t+8+r}, v{src+2*r}, v{src+2*r+1}")
                ops.append((f"buffer_store_dwordx4 {v(t+8,4)}, v{V_L16}, s[{S_QST}:{S_QST+3}], s{S_QC} offen offset:{(nb&1)*2048 + c*1024} sc1", "qst"))
                for r in range(4):
                    ops.append(f"v_accvgpr_write_b32 a{A_Q2 + part*32 + nb*8 + c*4 + r}, v{t+8+r}")
        return ops

    GKV, GCHK, GQ = opt.get("g_kv", 6), opt.get("g_chk", 9), 9
    fl = attn.first_loads(S_KVE)
    younger = [0]

    def count_pq(e):
        tags = [t for t, d in e.vm]
        younger[0] = len(tags) - 1 - tags.index("pq") if "pq" in tags else 63
    count_pq.cost = 0
    SALU_COST[0] = 0.25
    spine, fill = [], {}
    e.wait_tag("b0")
    e("s_barrier")
    for f in range(D):
        for r in b_read(f):
            e(r)
    place_dma(fill, b_dma(9), 1, 16)
    for f in range(NF):
        u, s_, cb = units[f]
        part, kt = divmod(u, 7)
        pr = []
        for qb in range(2):
            o = qb * 8 + (cb & 1) * 4
            acc = a((cb >> 1) * 16 + o, 4) if part == 1 else v(H_ACC[cb >> 1] + o, 4)
            c = "0" if (kt == 0 and s_ == 0) else acc
            pr.append(f"v_mfma_f32_16x16x32_bf16 {acc}, {v(V_FA+(f%8)*4,4)}, {v(V_XN+((kt*2+s_)*2+qb)*4,4)}, {c}")
        spine.append(tuple(pr))
        nf = f + D
        if nf < NF:
            if nf in first_of:
                g = first_of[nf]
                ops = [lambda e, g=g: e.wait_tag(f"b{g}")]
                if g == GKV:
                    ops.append(lambda e: e.wait_tag("kvst"))
                if g == GQ:
                    ops.append(lambda e: e.wait_tag("qst"))
                if g == GCHK:
                    ops += [lambda e: flag_test(e, VPK), f"s_cselect_b32 s{S_EARLY}, 1, 0",
                            f"s_cselect_b32 s{S_KVE+2}, {WS_BYTES:#x}, 0"]
                ops.append("s_barrier")
                if g == GKV:
                    ops += ["s_cmp_eq_u32 s3, 0", "s_cbranch_scc1 M_SKV", "M_SKV_RET:"]
                if g == GQ:
                    ops += ["s_cmp_eq_u32 s3, 0", "s_cbranch_scc1 M_SQ", "M_SQ_RET:"]
                if g == 10:
                    ops += [f"s_cmp_lt_u32 s{S_QT}, 8", "s_cbranch_scc1 M_EQ", "M_EQ_RET:"]
                if f"g{g}" in opt.get("sp", []):
                    ops.append(lambda e, g=g: stamp(e, opt, f"g{g}", raw=True))
                if g == 10:
                    ops.insert(ops.index("s_barrier"), count_pq)
                fill.setdefault(f, []).append(ops)
                if g >= 2:
                    its = []
                    for u2 in (2 * g + 6, 2 * g + 7):
                        if u2 < NT:
                            its += b_dma(u2)
                    if its:
                        place_dma(fill, its, f + 2, f + 27)
                if g == 9:
                    spread(fill, sum(fl[:4], []), f + 2, f + 28)
                if g == 10:
                    spread(fill, sum(fl[4:], []), f + 2, f + 20)
            fill.setdefault(f, []).extend(b_read(nf))
        BW = opt.get("b_wait", 2)
        if f % BW == 0:
            r = v(V_FA + (min(f + BW - 1, NF - 1) % 8) * 4, 4)
            fill.setdefault(f - 1, []).append(waiter(r, WC))
    g1, g2a, g2, gq0, gq1 = opt.get("kv_split", (125, 200, 318, 130, 256))
    pour(fill, sum((kv_epi(b) for b in range(0, 8)), []), 2, g1)
    pour(fill, q_epi(0), gq0, 215)
    pour(fill, q_epi(1), 224 + 5, gq1)
    pour(fill, [f"s_mov_b32 s{S_KVE}, s{S_WS}", f"s_mov_b32 s{S_KVE+1}, s{S_WS+1}", f"s_mov_b32 s{S_KVE+3}, 0x20000",
                lambda e: flag_line(e, 73, FL_KV, S_HEAD), lambda e: flag_line(e, 74, FL_PAIR, S_PAIR)], 160, 180)
    fill.setdefault(opt.get("g_pkv", 240), []).append(f"buffer_load_dwordx2 {v(VPK,2)}, v{V_FO}, s[{S_WS}:{S_WS+3}], s73 offen sc1")
    GP = opt.get("g_poll", 288)
    fill.setdefault(GP - 1, []).append(f"v_mov_b32 v{VPQ+2}, 0")
    fill.setdefault(GP, []).append((f"buffer_load_dwordx2 {v(VPQ,2)}, v{VPQ+2}, s[{S_WS}:{S_WS+3}], s74 offen sc1", "pq"))
    fill.setdefault(GP, []).append(f"s_mov_b32 s{S_GOTQ}, 0")
    pour(fill, [f"v_accvgpr_mov_b32 a{A_Q+r}, a{A_Q2+r}" for r in range(64)], gq1 + 2, 300)
    pour(fill, sum((kv_epi(b) for b in range(8, 12)), []), g2a, g2)
    for k in range(8, 26):
        for r in (0, 2):
            g = min(range(224 + 7 * (k >> 1) + 8, NF), key=lambda g: (load_of(fill, g), g))
            fill.setdefault(g, []).append(f"v_mov_b64 {v(V_XN+4*k+r,2)}, 0")
    print(gap_report("phase B", fill, NF))
    weave2(e, spine, fill)
    SALU_COST[0] = 1
    stamp(e, opt, 3)
    stamp(e, opt, "bend")
    jitter(e, opt, True)

    skv = Seg("m_skv")
    skv.label("M_SKV")
    flag_line(skv, 7, FL_KV, S_HA)
    flag_set(skv, S_WS, 7, f"s{S_KVSLOT}", 20)
    skv("s_branch M_SKV_RET")
    sq = Seg("m_sq")
    sq.label("M_SQ")
    sq(f"s_cmp_lt_u32 s{S_QT}, 8")
    sq("s_cbranch_scc1 M_SQ_RET")
    flag_set(sq, S_WS, 74, 0, V_XN)
    sq("s_branch M_SQ_RET")

    def spin(e, name, vd, voff, line, first=True):
        e("s_mov_b32 s6, 0")
        e.label(name)
        if first:
            e(f"buffer_load_dwordx2 {v(vd,2)}, v{voff}, s[{S_WS}:{S_WS+3}], s{line} offen sc1")
        e.wait_force(vm=0)
        flag_test(e, vd)
        e(f"s_cbranch_scc1 {name}_OK")
        e("s_sleep 2")
        if not first:
            e(f"buffer_load_dwordx2 {v(vd,2)}, v{voff}, s[{S_WS}:{S_WS+3}], s{line} offen sc1")
        e("s_add_u32 s6, s6, 1")
        e(f"s_cmp_lt_u32 s6, {PMAX}")
        e(f"s_cbranch_scc1 {name}")
        e.wait_force(vm=0)
        e.label(name + "_OK")

    late = Seg("m_late")
    late.label("M_LATE")
    spin(late, "M_PKV", VPK, V_FO, 73)
    for grp in attn.first_loads(S_WS):
        run(late, grp)
    late.wait_force(vm=0)
    late("s_branch M_LATE_RET")
    def q_loads(g):
        for k in range(16):
            if k and k % 4 == 0:
                g(f"s_add_u32 s{S_QB}, s{S_QB}, 4096")
            g(f"buffer_load_dwordx4 {a(A_Q+4*k,4)}, v{V_L16}, s[{S_WS}:{S_WS+3}], s{S_QB} offen offset:{(k%4)*1024} sc1", "q")

    gq = Seg("m_getq")
    gq.label("M_EQ")
    gq.wait_force(vm=younger[0])
    flag_test(gq, VPQ)
    gq("s_cbranch_scc0 M_EQ_RET")
    q_loads(gq)
    gq(f"s_mov_b32 s{S_GOTQ}, 1")
    gq("s_branch M_EQ_RET")
    gq.label("M_GETQ")
    gq(f"s_cmp_eq_u32 s{S_GOTQ}, {2 if opt.get('force_late') else 1}")
    gq("s_cbranch_scc1 M_GETQ_RET")
    if opt.get('force_late'):
        gq(f"s_mul_i32 s6, s{S_GOTQ}, 12288")
        gq(f"s_sub_u32 s{S_QB}, s{S_QB}, s6")
    spin(gq, "M_PQ", VPQ, VPQ + 2, 74)
    q_loads(gq)
    gq("s_branch M_GETQ_RET")
    wq = Seg("m_waitq")
    wq.label("M_WAITQ")
    wq.wait_force(vm=0)
    wq("s_branch M_WAITQ_RET")
    extra += [skv, sq, late, gq, wq]

    e(f"s_cmp_eq_u32 s{S_EARLY}, {2 if opt.get('force_late') else 1}")
    e("s_cbranch_scc0 M_LATE")
    e.label("M_LATE_RET")
    e(f"s_cmp_lt_u32 s{S_QT}, 8")
    e("s_cbranch_scc1 M_GETQ")
    e.label("M_GETQ_RET")
    stamp(e, opt, "polled")
    HS = V_XN + 4
    e("v_mov_b32 v20, 0x41800000")
    e("v_mov_b32 v21, 0x41800000")
    hsrc = [H_ACC[k >> 3] + 2 * (k & 7) for k in range(24)] + [H_ACC[3], H_ACC[3] + 2, H_ACC[3] + 8, H_ACC[3] + 10]
    for r in hsrc:
        e(f"v_pk_mul_f32 {v(r,2)}, {v(r,2)}, v[20:21]")
    for k, r in enumerate(hsrc):
        e(f"v_cvt_pk_bf16_f32 v{HS+k}, v{r}, v{r+1}")
    srd(e, S_OUT, P_OUT, OUT_BYTES)
    attn.setup_v(e)
    e("s_getpc_b64 s[80:81]")
    e.label("M_PC_A")
    e("s_lshr_b32 s7, s2, 3")
    e("s_lshl_b32 s7, s7, 2")
    e("s_add_u32 s7, s7, s3")
    e("s_mul_i32 s7, s7, 512")
    e(f"v_min_u32 v{attn.V_X+3}, 3, v0")
    e(f"v_lshl_add_u32 v{attn.V_X+3}, v{attn.V_X+3}, 7, s7")
    e(f"v_min_u32 v{attn.V_X+3}, M_CODE_END-M_PC_A-8, v{attn.V_X+3}")
    attn.init_state(e, V_XN + 4 * 26)
    e(f"s_cmp_lt_u32 s{S_QT}, 8")
    e("s_cbranch_scc1 M_WAITQ")
    e.label("M_WAITQ_RET")
    stamp(e, opt, 4)
    stamp(e, opt, "a0")
    jitter(e, opt)

    RA, RB, XR, VO, VP = 184, 32, 12, 2, 10

    def hooks(fill, NFE, ED):
        g = 6 * NFE - ED
        fill[g].append(["s_cmp_eq_u32 s3, 0", "s_cbranch_scc1 M_SYA", "M_SYA_RET:"])
        ops = [f"s_lshl_b32 s7, s{S_QT}, 2", f"s_lshr_b32 s4, s{S_HEAD}, 2", "s_add_u32 s4, s4, s7",
               f"s_and_b32 s5, s{S_HEAD}, 3", "s_lshl_b32 s6, s3, 2", "s_add_u32 s5, s5, s6",
               "s_mul_i32 s6, s4, 28", "s_add_u32 s6, s6, s5", "s_lshl_b32 s6, s6, 10",
               f"s_add_u32 s53, s6, {Y_OFF}", "s_add_u32 s54, s53, 16384",
               f"v_and_b32 v{VO}, 15, v0", "v_lshrrev_b32 v3, 4, v0", "s_lshl_b32 s4, s4, 1", f"s_and_b32 s6, s{S_HEAD}, 1",
               "s_add_u32 s4, s4, s6", "s_lshl_b32 s4, s4, 4", f"v_add_u32 v{VO}, s4, v{VO}",
               f"v_mul_u32_u24 v{VO}, 896, v{VO}", f"v_lshl_add_u32 v{VO}, v3, 3, v{VO}", "s_lshr_b32 s5, s5, 1", "s_lshl_b32 s5, s5, 6",
               f"v_add_u32 v{VO}, s5, v{VO}"]
        ops += [f"buffer_load_dwordx2 {v(XR+2*k,2)}, v{VO}, s[{S_X}:{S_X+3}], 0 offen offset:{(k>>1)*512+(k&1)*32}" for k in range(4)]
        ops += [lambda e: flag_line(e, 55, FL_Y, S_QT), lambda e: flag_line(e, 63, FL_YA, S_QT)]
        pour(fill, ops, 5 * NFE + 2, 5 * NFE + 34)
        fill.setdefault(6 * NFE + opt.get("g_pa", 22), []).append(
            (f"buffer_load_dwordx2 {v(VP,2)}, v{V_FO}, s[{S_WS}:{S_WS+3}], s63 offen sc1", "pa"))

    sya = Seg("m_sya")
    sya.label("M_SYA")
    sya(f"s_lshl_b32 s6, s{S_HEAD}, 3")
    flag_set(sya, S_WS, 63, "s6", 20)
    sya("s_branch M_SYA_RET")
    extra.append(sya)

    def finish(e):
        stamp(e, opt, "yend")
        jitter(e, opt, True)

        def loads(base, sreg, tag):
            for h in range(16):
                e(f"buffer_load_dwordx4 {v(base+4*h,4)}, v{V_L16}, s[{S_WS}:{S_WS+3}], s{sreg} offen sc1", tag)
                if h < 15:
                    e(f"s_add_u32 s{sreg}, s{sreg}, {64*28*1024}")

        def reduce(base, xr, off):
            acc, t = 20, 28
            for r in range(4):
                e(f"v_lshlrev_b32 v{acc+2*r}, 16, v{xr+r}")
                e(f"v_and_b32 v{acc+1+2*r}, 0xffff0000, v{xr+r}")
            for h in range(16):
                for r in range(4):
                    src = base + 4 * h + r
                    u = t + 2 * (r & 1)
                    e(f"v_lshlrev_b32 v{u}, 16, v{src}")
                    e(f"v_and_b32 v{u+1}, 0xffff0000, v{src}")
                    e(f"v_pk_add_f32 {v(acc+2*r,2)}, {v(acc+2*r,2)}, {v(u,2)}")
            for r in range(4):
                e(f"v_cvt_pk_bf16_f32 v{xr+r}, v{acc+2*r}, v{acc+1+2*r}")
            e(f"buffer_store_dwordx2 {v(xr,2)}, v{VO}, s[{S_OUT}:{S_OUT+3}], 0 offen offset:{off}")
            e(f"buffer_store_dwordx2 {v(xr+2,2)}, v{VO}, s[{S_OUT}:{S_OUT+3}], 0 offen offset:{off+32}")

        flag_test(e, VP)
        e("s_cselect_b32 s60, 1, 0")
        e("s_cbranch_scc0 M_NOA")
        loads(RA, 53, "ra")
        e.wait_force(vm=16)
        e("s_branch M_A1")
        e.label("M_NOA")
        e.wait_force(vm=0)
        e.label("M_A1")
        e("s_barrier")

        e("s_cmp_lg_u32 s3, 3")
        e("s_cbranch_scc1 M_PA_OK")
        e(f"s_lshl_b32 s6, s{S_HEAD}, 3")
        flag_set(e, S_WS, 55, "s6", 20)
        e("s_cmp_eq_u32 s60, 1")
        e("s_cbranch_scc1 M_PA_OK")
        spin(e, "M_PA", VP, V_FO, 63)
        e("s_barrier")
        e("s_cmp_eq_u32 s60, 1")
        e("s_cbranch_scc1 M_A2")
        loads(RA, 53, "ra")
        e.label("M_A2")
        e("s_cmp_eq_u32 s3, 3")
        e("s_cbranch_scc1 M_W3")
        e.wait_force(vm=0)
        reduce(RA, XR, 0)
        e("s_barrier")
        stamp(e, opt, "ypoll")
        e.vm = []
        loads(RB, 54, "rb")
        reduce(RB, XR + 4, 512)
        e("s_branch M_DONE")
        e.label("M_W3")
        spin(e, "M_PB", VP, V_FO, 55)
        e("s_barrier")
        stamp(e, opt, "ypoll")
        reduce(RA, XR, 0)
        e.label("M_DONE")
        stamp(e, opt, 5)
        stamp(e, opt, "end")
        stamp_flush(e, opt, 0, S_WS, 6)

    aopt = dict(opt)
    aopt["code_pf"] = not opt.get("no_cpf")
    aopt["stash"] = HS
    aopt["kv2"] = (S_HA, S_KVSLOT, V_FO, sum((kv_epi(b, attn.V_X + 4, 0) for b in range(12, 16)), []))
    if not opt.get("sp"):
        aopt["sp"] = ["none"]
        aopt["spk"] = ""
    asegs, atraces = attn.gen_attn(e, aopt, "M_END", finish, hooks)
    z = Seg("m_z")
    z.label("M_CODE_END")
    segs += asegs + extra + [z]
    for t in traces[1:]:
        t.append(e)
    traces += atraces + [[tails[0], fb, e]] + [[x] for x in extra]
    return segs, traces
```

```python
import sys, json
from emit import *
from common import *
import k1

NAME = "parallel_sum__compressed_kv_cla__dense_activation_silu__prompt"

def build(opt, kernels=("k1", "k2", "k3")):
    hdr = []
    body = []
    kds = []
    probs = []
    def finish(segs, traces):
        done = set()
        for t in traces:
            prev = []
            for sg in t:
                if id(sg) not in done:
                    fix_hazards(sg, prev)
                    done.add(id(sg))
                prev = sg.ins[-40:]
        for n, t in enumerate(traces):
            ins = [i for sg in t for i in sg.ins]
            probs.extend(check_trace("+".join(sg.name for sg in t), ins))
        body.append(".p2align 8\n" + "".join(sg.text() for sg in segs))
    if "mega" in kernels:
        import mega
        hdr.append(f"; @launch grid=(256,1,1) block=(256,1,1) lds={mega.LDS_BYTES}")
        finish(*mega.gen_mega(opt))
        kds.append(kd(mega.NAME, 512, 256))
    if "k1" in kernels:
        hdr.append("; @launch kernel=proj_kernel grid=(256,1,1) block=(256,1,1) lds=131072")
        finish(*k1.gen_k1(opt))
        kds.append(kd("proj_kernel", 512, 256))
    if "k2" in kernels:
        import k2
        hdr.append(f"; @launch kernel=attn_kernel grid=(256,1,1) block=(256,1,1) lds={k2.LDS_BYTES}")
        finish(*k2.gen_k2(opt))
        kds.append(kd("attn_kernel", 512, 256))
    if "k3" in kernels:
        import k3
        hdr.append(f"; @launch kernel=reduce_kernel grid=({k3.GRID},1,1) block=(256,1,1) lds=0")
        finish(*k3.gen_k3(opt))
        kds.append(kd("reduce_kernel", k3.VGPRS, k3.VGPRS))
    ref = open(f"cdna_kernels/{NAME}.s.ref").read().splitlines()
    top = [l for l in ref if l.startswith(";") and "@launch" not in l and "Override" not in l and "grid=ceil" not in l]
    txt = "\n".join(top) + "\n" + "\n".join(hdr) + "\n"
    txt += '.amdgcn_target "amdgcn-amd-amdhsa--gfx950"\n.text\n'
    for k in ("proj_kernel", "attn_kernel", "reduce_kernel"):
        if any(k in h for h in hdr):
            txt += f".globl {k}\n.type {k},@function\n"
    if "mega" in kernels:
        txt += f".globl {NAME}_kernel\n.type {NAME}_kernel,@function\n"
    txt += "".join(body)
    txt += '.section .rodata,"a"\n'
    for k in kds:
        txt += ".p2align 6\n" + k
    dm = opt.get("dma_mod", " sc1")
    if dm:
        import re
        txt = re.sub(r"(offset:\d+) lds", lambda m: m.group(1) + dm + " lds", txt)
    pm = opt.get("pf_mod", "")
    if pm:
        import re
        txt = re.sub(r"((?:buffer|global)_load_dword v2, [^\n]*)", lambda m: m.group(1) + pm, txt)
    return txt, probs

if __name__ == "__main__":
    out = sys.argv[1]
    kernels = sys.argv[2].split(",") if len(sys.argv) > 2 else ("k1", "k2", "k3")
    opt = json.loads(sys.argv[3]) if len(sys.argv) > 3 else {}
    import emit
    emit.VMEM_COST[0] = opt.get('vmem_cost', 1)
    emit.W2_ORDER[0] = opt.get('w2_order', 1)
    txt, probs = build(opt, kernels)
    for p in probs[:40]:
        print("PROBLEM", p)
    open(out, "w").write(txt)
    print("wrote", out, len(txt), "bytes;", len(probs), "problems")
```

```python
import sys, json
from emit import *
from common import *
import k1

NAME = "parallel_sum__compressed_kv_cla__dense_activation_silu__prompt"

def build(opt, kernels=("k1", "k2", "k3")):
    hdr = []
    body = []
    kds = []
    probs = []
    def finish(segs, traces):
        done = set()
        for t in traces:
            prev = []
            for sg in t:
                if id(sg) not in done:
                    fix_hazards(sg, prev)
                    done.add(id(sg))
                prev = sg.ins[-40:]
        for n, t in enumerate(traces):
            ins = [i for sg in t for i in sg.ins]
            probs.extend(check_trace("+".join(sg.name for sg in t), ins))
        body.append(".p2align 8\n" + "".join(sg.text() for sg in segs))
    if "mega" in kernels:
        import mega
        hdr.append(f"; @launch grid=(256,1,1) block=(256,1,1) lds={mega.LDS_BYTES}")
        finish(*mega.gen_mega(opt))
        kds.append(kd(mega.NAME, 512, 256))
    if "k1" in kernels:
        hdr.append("; @launch kernel=proj_kernel grid=(256,1,1) block=(256,1,1) lds=131072")
        finish(*k1.gen_k1(opt))
        kds.append(kd("proj_kernel", 512, 256))
    if "k2" in kernels:
        import k2
        hdr.append(f"; @launch kernel=attn_kernel grid=(256,1,1) block=(256,1,1) lds={k2.LDS_BYTES}")
        finish(*k2.gen_k2(opt))
        kds.append(kd("attn_kernel", 512, 256))
    if "k3" in kernels:
        import k3
        hdr.append(f"; @launch kernel=reduce_kernel grid=({k3.GRID},1,1) block=(256,1,1) lds=0")
        finish(*k3.gen_k3(opt))
        kds.append(kd("reduce_kernel", k3.VGPRS, k3.VGPRS))
    ref = open(f"cdna_kernels/{NAME}.s.ref").read().splitlines()
    top = [l for l in ref if l.startswith(";") and "@launch" not in l and "Override" not in l and "grid=ceil" not in l]
    txt = "\n".join(top) + "\n" + "\n".join(hdr) + "\n"
    txt += '.amdgcn_target "amdgcn-amd-amdhsa--gfx950"\n'
    txt += """; One fused kernel, 256 workgroups of 4 waves (one per CU), generated by a script.  Phases of every workgroup:
"""
    txt += '.text\n'
    for k in ("proj_kernel", "attn_kernel", "reduce_kernel"):
        if any(k in h for h in hdr):
            txt += f".globl {k}\n.type {k},@function\n"
    if "mega" in kernels:
        txt += f".globl {NAME}_kernel\n.type {NAME}_kernel,@function\n"
    txt += "".join(body)
    txt += '.section .rodata,"a"\n'
    for k in kds:
        txt += ".p2align 6\n" + k
    dm = opt.get("dma_mod", " sc1")
    if dm:
        import re
        txt = re.sub(r"(offset:\d+) lds", lambda m: m.group(1) + dm + " lds", txt)
    pm = opt.get("pf_mod", "")
    if pm:
        import re
        txt = re.sub(r"((?:buffer|global)_load_dword v2, [^\n]*)", lambda m: m.group(1) + pm, txt)
    return txt, probs

if __name__ == "__main__":
    out = sys.argv[1]
    kernels = sys.argv[2].split(",") if len(sys.argv) > 2 else ("k1", "k2", "k3")
    opt = json.loads(sys.argv[3]) if len(sys.argv) > 3 else {}
    import emit
    emit.VMEM_COST[0] = opt.get('vmem_cost', 1)
    emit.W2_ORDER[0] = opt.get('w2_order', 1)
    txt, probs = build(opt, kernels)
    for p in probs[:40]:
        print("PROBLEM", p)
    open(out, "w").write(txt)
    print("wrote", out, len(txt), "bytes;", len(probs), "problems")
```
